```python
import torch

def _softmax(x, axis=-1):
    return torch.softmax(x, dim=axis)
def _gelu(x):
    return torch.nn.functional.gelu(x, approximate="tanh")
def _silu(x):
    return torch.nn.functional.silu(x)
def _sigmoid(x):
    return torch.sigmoid(x)
def _layernorm(x, axis=-1, eps=1e-5):
    m = x.mean(dim=axis, keepdim=True)
    v = x.var(dim=axis, keepdim=True, unbiased=False)
    return (x - m) / torch.sqrt(v + eps)
def _scatter_add(tgt, idx, src, axis=0):
    return tgt.clone().index_add_(axis, idx, src)
def _segment_sum(src, seg, n):
    out = torch.zeros((n,) + src.shape[1:], dtype=src.dtype)
    return out.index_add_(0, seg, src)
def _pad(x, pw):
    flat = tuple(v for pair in reversed(pw) for v in pair)
    return torch.nn.functional.pad(x, flat)

kernel_name = 'parallel_sum__gqa_block_cached__mixer_channel_mlp__decode'

def setup_inputs():

    _w = (lambda a: (lambda t: t.to(torch.bfloat16) if t.is_floating_point() else t)(torch.as_tensor(a)))
    def _A_setup():
        B, Sq, D = 8, 1, 448
        Hq, Hkv, Sk, Dh = 16, 8, 4096, 256
        assert Hq % Hkv == 0, (Hq, Hkv)
        return {
            "x": _w((lambda *s: torch.randn(*s, dtype=torch.bfloat16) * 0.05)(B, Sq, D)),
            "k_cache": _w((lambda *s: torch.randn(*s, dtype=torch.bfloat16) * 3.2)(B, Hkv, Sk, Dh)),
            "v_cache": _w((lambda *s: torch.randn(*s, dtype=torch.bfloat16) * 0.4)(B, Hkv, Sk, Dh)),
            "wq": _w((lambda *s: torch.randn(*s, dtype=torch.bfloat16) * 3.2)(D, Hq * Dh) * (D ** -0.5)),
            "wo": _w((lambda *s: torch.randn(*s, dtype=torch.bfloat16) * 0.4)(Hq * Dh, D) * ((Hq * Dh) ** -0.5)),
        }
    _A_in = _A_setup()

    def _B_setup():
        B, S, D, F = 8, 1, 448, 1792
        return {
            "x": _w((lambda *s: torch.randn(*s, dtype=torch.bfloat16) * 0.05)(B, S, D)),
            "w1": _w((lambda *s: torch.randn(*s, dtype=torch.bfloat16) * 3.2)(D, F) * (D ** -0.5)),
            "b1": _w((lambda *s: torch.randn(*s, dtype=torch.bfloat16) * 0.8)(F)),
            "w2": _w((lambda *s: torch.randn(*s, dtype=torch.bfloat16) * 0.1)(F, D) * (F ** -0.5)),
            "b2": _w((lambda *s: torch.randn(*s, dtype=torch.bfloat16) * 0.1)(D)),
        }
    _B_in = _B_setup()

    return {
        "A_x": _A_in["x"],
        "A_k_cache": _A_in["k_cache"],
        "A_v_cache": _A_in["v_cache"],
        "A_wq": _A_in["wq"],
        "A_wo": _A_in["wo"],
        "B_x": _B_in["x"],
        "B_w1": _B_in["w1"],
        "B_b1": _B_in["b1"],
        "B_w2": _B_in["w2"],
        "B_b2": _B_in["b2"],
    }

def reference(A_x, A_k_cache, A_v_cache, A_wq, A_wo, B_x, B_w1, B_b1, B_w2, B_b2):
    def _A_ref(x, k_cache, v_cache, wq, wo):
        B, Sq, D = x.shape
        Hq, Dh = 16, 256
        Hkv = k_cache.shape[1]
        rep = Hq // Hkv
        q = (lambda x, *d: x.permute(*d))((x @ wq).reshape(B, Sq, Hq, Dh), 0, 2, 1, 3)
        k = (lambda x, n, axis: torch.repeat_interleave(x, n, dim=axis))(k_cache, rep, axis=1)
        v = (lambda x, n, axis: torch.repeat_interleave(x, n, dim=axis))(v_cache, rep, axis=1)
        scores = torch.einsum("bhqd,bhkd->bhqk", q, k) * (Dh ** -0.5)
        p = _softmax(scores, axis=-1)
        o = torch.einsum("bhqk,bhkd->bhqd", p, v)
        return (lambda x, *d: x.permute(*d))(o, 0, 2, 1, 3).reshape(B, Sq, Hq * Dh) @ wo

    def _B_ref(x, w1, b1, w2, b2):
        y = _layernorm(x, axis=-1)
        h = _gelu(torch.einsum("bsd,df->bsf", y, w1) + b1)
        return torch.einsum("bsf,fd->bsd", h, w2) + b2

    x = A_x
    xn = _layernorm(x, axis=-1)
    return x + _A_ref(xn, A_k_cache, A_v_cache, A_wq, A_wo) + _B_ref(xn, B_w1, B_b1, B_w2, B_b2)
```

```python
import re

def regs_of(tok):
    tok = tok.strip()
    tok = re.sub(r'^(-|\|)|\|$', '', tok)
    m = re.fullmatch(r'abs\((.*)\)', tok)
    if m: tok = m.group(1)
    m = re.fullmatch(r'([vsa])(\d+)', tok)
    if m: return {(m.group(1), int(m.group(2)))}
    m = re.fullmatch(r'([vsa])\[(\d+):(\d+)\]', tok)
    if m: return {(m.group(1), i) for i in range(int(m.group(2)), int(m.group(3)) + 1)}
    if tok == 'vcc': return {('s', 'vcc_lo'), ('s', 'vcc_hi')}
    if tok in ('vcc_lo', 'vcc_hi'): return {('s', tok)}
    if tok == 'exec': return {('s', 'exec')}
    if tok == 'm0': return {('s', 'm0')}
    return set()

TRANS = ('v_exp_f32', 'v_log_f32', 'v_rcp_f32', 'v_rsq_f32', 'v_sqrt_f32', 'v_sin_f32', 'v_cos_f32')

class Ins:
    def __init__(self, text):
        self.text = text
        t = text.split(';')[0].strip()
        self.label = None; self.op = None
        self.w = set(); self.r = set(); self.kind = 'other'
        self.dpp = False; self.srcC = set(); self.srcAB = set(); self.store_data = set()
        self.target = None; self.lanesel = set(); self.lds_dma = False
        if not t: self.kind = 'blank'; return
        if t.endswith(':'): self.label = t[:-1]; self.kind = 'label'; return
        if t.startswith('.'): self.kind = 'dir'; return
        parts = t.split(None, 1)
        op = parts[0]; self.op = op
        rest = parts[1] if len(parts) > 1 else ''
        ops = []; cur = ''; depth = 0
        for ch in rest:
            if ch in '[(': depth += 1
            if ch in '])': depth -= 1
            if ch == ',' and depth == 0: ops.append(cur.strip()); cur = ''
            else: cur += ch
        if cur.strip(): ops.append(cur.strip())
        mods = ''
        if ops:
            last = ops[-1].split(None, 1)
            if len(last) > 1: ops[-1] = last[0]; mods = last[1]
        self.ops = ops; self.mods = mods
        R = lambda i: regs_of(ops[i]) if i < len(ops) else set()
        if op.startswith('v_mfma'):
            self.kind = 'mfma'; self.w = R(0); self.srcAB = R(1) | R(2); self.srcC = R(3); self.r = self.srcAB | self.srcC
            self.passes = 8 if '32x32' in op else 4
        elif op.startswith('v_'):
            self.kind = 'valu'
            self.dpp = ('_dpp' in op) or any(k in mods for k in ('quad_perm', 'row_shr', 'row_shl', 'row_ror', 'row_bcast', 'row_mirror', 'row_half_mirror', 'wave_'))
            if op.startswith('v_cmp'):
                self.w = R(0); self.r = R(1) | R(2)
                if op.startswith('v_cmpx'): self.w |= {('s', 'exec')}
            elif op.startswith('v_permlane'):
                self.w = R(0) | R(1); self.r = R(0) | R(1)
            elif op.startswith(('v_add_co', 'v_sub_co', 'v_addc_co', 'v_subb_co', 'v_subrev_co')):
                self.w = R(0) | R(1); self.r = set().union(*[R(i) for i in range(2, len(ops))])
            elif op.startswith('v_readlane'):
                self.w = R(0); self.r = R(1) | R(2); self.lanesel = R(2)
            elif op.startswith('v_writelane'):
                self.w = R(0); self.r = R(0) | R(1) | R(2); self.lanesel = R(2)
            elif op == 'v_nop':
                pass
            else:
                self.w = R(0); self.r = set().union(set(), *[R(i) for i in range(1, len(ops))])
                if op.startswith(('v_fmac', 'v_dot2c', 'v_pk_fmac')) or self.dpp: self.r |= R(0)
                if op.startswith('v_cndmask') and len(ops) == 3: self.r |= regs_of('vcc')
        elif op in ('buffer_wbl2', 'buffer_inv'):
            self.kind = 'sctl'
        elif op.startswith(('buffer_', 'global_')):
            self.kind = 'vmem'
            is_store = '_store' in op or '_atomic' in op
            self.lds_dma = bool(re.search(r'\blds\b', mods)) or 'load_lds' in op
            if self.lds_dma:
                self.r = set().union(*[R(i) for i in range(len(ops))]) | {('s', 'm0')}
            elif is_store:
                self.r = set().union(*[R(i) for i in range(len(ops))])
                data = R(0) if op.startswith('buffer_') else R(1)
                if 'x3' in op or 'x4' in op: self.store_data = data
            else:
                self.w = R(0); self.r = set().union(*[R(i) for i in range(1, len(ops))])
        elif op.startswith('ds_'):
            self.kind = 'ds'
            if op.startswith(('ds_read', 'ds_bpermute', 'ds_permute', 'ds_swizzle')) or '_rtn' in op:
                self.w = R(0); self.r = set().union(*[R(i) for i in range(1, len(ops))])
            else:
                self.r = set().union(*[R(i) for i in range(len(ops))])
        elif op.startswith('s_'):
            self.kind = 'salu'
            if op in ('s_branch',) or op.startswith('s_cbranch'):
                self.kind = 'branch'; self.target = ops[0]
            elif op == 's_endpgm': self.kind = 'end'
            elif op == 's_nop': self.kind = 'nop'; self.n = int(ops[0], 0) + 1
            elif op.startswith(('s_waitcnt', 's_barrier', 's_sleep', 's_setprio')): self.kind = 'sctl'
            elif op.startswith('s_cmp') or op.startswith('s_bitcmp'): self.r = R(0) | R(1)
            else:
                self.w = R(0); self.r = set().union(set(), *[R(i) for i in range(1, len(ops))])
                if 'saveexec' in op: self.w |= {('s', 'exec')}
        else:
            raise ValueError('unknown instruction: ' + text)
    def states(self):
        if self.kind in ('blank', 'label', 'dir'): return 0
        if self.kind == 'nop': return self.n
        return 1

def vg(s): return {x for x in s if x[0] in 'va'}
def sg(s): return {x for x in s if x[0] == 's'}

def need(p, c):
    n = 0
    if p.kind == 'valu':
        wv, ws = vg(p.w), sg(p.w)
        if c.kind == 'mfma' and wv & c.r: n = max(n, 2)
        if c.kind == 'valu':
            if c.dpp and wv & c.r: n = max(n, 2)
            if c.op.startswith('v_permlane') and wv & c.r: n = max(n, 2)
            if c.op.startswith(('v_readlane', 'v_readfirstlane')) and wv & c.r: n = max(n, 1)
            if ws & c.r: n = max(n, 2)
            if ws & c.lanesel: n = max(n, 4)
            if re.sub(r'_e(32|64)$', '', p.op) in TRANS and (wv & c.r) : n = max(n, 1)
            if ('s', 'exec') in ws: n = max(n, 5)
        if c.kind == 'vmem' and ws & c.r: n = max(n, 5)
        if c.kind == 'salu' and ws & c.r: n = max(n, 1)
        if c.kind == 'mfma' and ('s', 'exec') in ws: n = max(n, 4)
    if p.kind == 'mfma':
        big = {4: 8, 8: 12}[p.passes]; ov = {4: 6, 8: 10}[p.passes]; war = {4: 3, 8: 7}[p.passes]
        if c.kind == 'mfma':
            if p.w & c.srcAB: n = max(n, big)
            if p.w & c.srcC and not (p.w == c.srcC and p.passes == c.passes): n = max(n, ov)
            if p.w & c.w and not (p.w == c.w): n = max(n, ov)
            if p.w & c.w and not (p.w & c.srcC): n = max(n, big)
        if c.kind in ('valu', 'vmem', 'ds') and p.w & (c.r | c.w): n = max(n, big)
        if c.kind == 'valu' and p.srcC & c.w: n = max(n, war)
    if p.kind == 'salu' and ('s', 'm0') in p.w and c.kind == 'vmem' and c.lds_dma: n = max(n, 1)
    if p.kind == 'vmem' and p.store_data & c.w: n = max(n, 2)
    return n

MAXW = 12
def pad(lines):
    ins = [Ins(l) for l in lines]
    total = 0
    def maps():
        labels = {x.label: i for i, x in enumerate(ins) if x.kind == 'label'}
        srcs = {}
        for i, x in enumerate(ins):
            if x.kind == 'branch':
                assert x.target in labels, x.target
                srcs.setdefault(labels[x.target], []).append(i)
        return srcs
    srcs = maps()
    def preds(i):
        out = []
        if i > 0:
            p = ins[i - 1]
            if not (p.kind == 'end' or (p.kind == 'branch' and p.op == 's_branch')): out.append(i - 1)
        if ins[i].kind == 'label': out += srcs.get(i, [])
        return out
    ci = 0
    while ci < len(ins):
        c = ins[ci]
        if c.kind in ('valu', 'mfma', 'vmem', 'ds', 'salu'):
            short = 0
            stack = [(p, 0) for p in preds(ci)]
            seen = {}
            while stack:
                i, d = stack.pop()
                if d >= MAXW or seen.get(i, 99) <= d: continue
                seen[i] = d
                p = ins[i]
                k = need(p, c) if p.kind in ('valu', 'mfma', 'salu', 'vmem') else 0
                if k > d: short = max(short, k - d)
                nd = d + p.states()
                for q in preds(i): stack.append((q, nd))
            if short:
                ins.insert(ci, Ins(f'    s_nop {short - 1}'))
                total += short
                srcs = maps()
                ci += 1
        ci += 1
    return [x.text for x in ins], total

class Asm:
    def __init__(self): self.l = []
    def __call__(self, s):
        for x in s.split('\n'):
            x = x.rstrip()
            if x.strip(): self.l.append(x if (x.strip().endswith(':') and not x.strip().startswith(';')) else '    ' + x.strip())
    def text(self):
        out, n = pad(self.l)
        return '\n'.join(out), n
```

```python
import sys, math, struct
from asmlib import Asm

NAME = 'parallel_sum__gqa_block_cached__mixer_channel_mlp__decode'
def f2u(x): return struct.unpack('<I', struct.pack('<f', x))[0]

QBUF, MLBUF, MFLAG, OBUF, MBUF, WS_USED = 0x1000, 0x21000, 0x23000, 0x24000, 0x64000, 0xC6000
STAMP_OFF = 536870912 - (1 << 20)
L_WO = 0; L_WQ = 0; L_W1 = 16384; L_W2 = 73728
L_PART = 131072; L_XN = 131072
L_Y = 147456; XSTR = 1056
L_Q = L_Y + 8448
L_FIN = L_Q + 1024
L_ML = L_FIN + 2304
L_F = L_ML + 128
L_XB = L_F + 64
LDS_BYTES = L_XB + 128
OOB = 0x7F000000
C_EXP = math.log2(math.e) / 16.0

DEF = dict(R=24, D=4, D0=6, DH=8, pol='nt', wpol='', diag=False, budget=2, name=NAME + '_kernel', spin=1 << 16)

def srd(a, n, base, off, size):
    if off is None:
        a(f's_mov_b32 s{n}, s{base}\ns_mov_b32 s{n+1}, s{base+1}')
    else:
        a(f's_add_u32 s{n}, s{base}, {off}\ns_addc_u32 s{n+1}, s{base+1}, 0')
    a(f's_mov_b32 s{n+2}, {size}\ns_mov_b32 s{n+3}, 0x20000')

def wave_sum(a, v, s):
    for m in ('row_shr:1', 'row_shr:2', 'row_shr:4', 'row_shr:8'):
        a(f'v_add_f32_dpp v{v}, v{v}, v{v} {m} row_mask:0xf bank_mask:0xf')
    a(f'v_add_f32_dpp v{v}, v{v}, v{v} row_bcast:15 row_mask:0xa bank_mask:0xf')
    a(f'v_add_f32_dpp v{v}, v{v}, v{v} row_bcast:31 row_mask:0xc bank_mask:0xf')
    a(f'v_readlane_b32 s{s}, v{v}, 63')

def rnd_bf16(a, v):
    a(f'v_cvt_pk_bf16_f32 v{v}, v{v}, v{v}\nv_and_b32 v{v}, 0xffff0000, v{v}')

def unpack(a, src, dst, n):
    for i in range(n):
        a(f'v_and_b32 v{dst+2*i+1}, 0xffff0000, v{src+i}\nv_lshlrev_b32 v{dst+2*i}, 16, v{src+i}')

def layernorm(a, X, F, T, valid):
    unpack(a, X, F, 4)
    a(f'v_add_f32 v{T}, v{F}, v{F+1}\nv_add_f32 v{T+1}, v{F+2}, v{F+3}')
    a(f'v_add_f32 v{T}, v{T}, v{F+4}\nv_add_f32 v{T+1}, v{T+1}, v{F+5}')
    a(f'v_add_f32 v{T}, v{T}, v{F+6}\nv_add_f32 v{T+1}, v{T+1}, v{F+7}\nv_add_f32 v{T}, v{T}, v{T+1}')
    a(f'v_cndmask_b32 v{T}, 0, v{T}, {valid}')
    wave_sum(a, T, 37)
    a(f'v_mov_b32 v{T}, s37\nv_mul_f32 v{T}, {hex(f2u(1/448))}, v{T}')
    a(f'v_sub_f32 v{T+2}, v{F}, v{T}\nv_mul_f32 v{T+1}, v{T+2}, v{T+2}')
    for i in range(1, 8):
        a(f'v_sub_f32 v{T+2}, v{F+i}, v{T}\nv_fmac_f32 v{T+1}, v{T+2}, v{T+2}')
    a(f'v_cndmask_b32 v{T+1}, 0, v{T+1}, {valid}')
    wave_sum(a, T + 1, 37)
    rnd_bf16(a, T)
    a(f'v_mov_b32 v{T+1}, s37\nv_mul_f32 v{T+1}, {hex(f2u(1/448))}, v{T+1}')
    rnd_bf16(a, T + 1)
    a(f'v_add_f32 v{T+1}, {hex(f2u(1e-5))}, v{T+1}')
    rnd_bf16(a, T + 1)
    a(f'v_sqrt_f32 v{T+1}, v{T+1}')
    rnd_bf16(a, T + 1)
    a(f'v_rcp_f32 v{T+1}, v{T+1}')
    for i in range(8): a(f'v_sub_f32 v{F+i}, v{F+i}, v{T}')
    for i in range(4): a(f'v_cvt_pk_bf16_f32 v{X+i}, v{F+2*i}, v{F+2*i+1}')
    unpack(a, X, F, 4)
    for i in range(8): a(f'v_mul_f32 v{F+i}, v{F+i}, v{T+1}')
    for i in range(4): a(f'v_cvt_pk_bf16_f32 v{X+i}, v{F+2*i}, v{F+2*i+1}')

def xgroup(a, op, v, t):
    a(f'v_mov_b32 v{t}, v{v}\nv_permlane16_swap_b32 v{v}, v{t}\n{op} v{v}, v{v}, v{t}')
    a(f'v_mov_b32 v{t}, v{v}\nv_permlane32_swap_b32 v{v}, v{t}\n{op} v{v}, v{v}, v{t}')

def stamp(a, P, reg):
    if P['diag']: a(f's_memrealtime s[{reg}:{reg+1}]')

def stamp_store(a, P, items, hw=False):
    if not P['diag']: return
    a('s_waitcnt lgkmcnt(0)')
    a(f's_lshl_b32 s37, s2, 6\ns_add_u32 s37, s37, {STAMP_OFF}')
    srd(a, 40, 28, 's37', 64)
    a('s_mov_b64 exec, 1\nv_mov_b32 v1, 0')
    for idx, reg in items:
        a(f'v_mov_b32 v2, s{reg}\nv_mov_b32 v3, s{reg+1}\nbuffer_store_dwordx2 v[2:3], v1, s[40:43], 0 offen offset:{idx*8}')
    if hw:
        a('s_getreg_b32 s38, hwreg(HW_REG_XCC_ID)\ns_getreg_b32 s39, hwreg(HW_REG_HW_ID)')
        a('v_mov_b32 v2, s38\nv_mov_b32 v3, s39\nbuffer_store_dwordx2 v[2:3], v1, s[40:43], 0 offen offset:56')
    a('s_mov_b64 exec, -1')

def streamer(a, P):
    R, D, D0, pol = P['R'], P['D'], P['D0'], P['pol']
    Q, S, DT, RING = 8, 16, 48, 56
    slot = lambda i: RING + 4 * (i % R)
    sl = lambda i: f'v[{slot(i)}:{slot(i)+3}]'
    stamp(a, P, 88)
    a('v_and_b32 v1, 3, v0\nv_lshlrev_b32 v1, 4, v1\nv_bfe_u32 v3, v0, 2, 2\nv_lshl_add_u32 v1, v3, 9, v1')
    a('v_lshrrev_b32 v3, 4, v0\nv_lshl_add_u32 v1, v3, 6, v1')
    a('v_and_b32 v2, 15, v0\nv_lshlrev_b32 v2, 4, v2\nv_lshl_add_u32 v2, v3, 9, v2')
    a('s_mul_i32 s37, s30, 896\nv_lshl_add_u32 v3, v0, 4, s37')
    a(f's_mov_b64 s[82:83], 0x00ffffff\ns_lshl_b64 s[82:83], s[82:83], 32\ns_mov_b32 s82, -1')
    a(f'v_mov_b32 v4, {hex(OOB)}\nv_cndmask_b32 v3, v4, v3, s[82:83]')
    a('s_lshl_b32 s38, s33, 5\ns_add_u32 s38, s38, s34')
    a('s_lshl_b32 s37, s38, 19\ns_lshl_b32 s39, s30, 16\ns_add_u32 s37, s37, s39')
    a('s_add_u32 s35, s30, s32\ns_and_b32 s35, s35, 7\ns_lshl_b32 s35, s35, 12')
    a('s_waitcnt lgkmcnt(0)')
    srd(a, 48, 4, None, 7168)
    a(f'buffer_load_dwordx4 v[{S}:{S+3}], v3, s[48:51], 0 offen')
    srd(a, 40, 6, 's37', 65536)
    srd(a, 44, 8, 's37', 65536)
    def issue(i):
        j = i % 64; G, t = j >> 1, j & 1
        if t == 0: a(f's_xor_b32 s36, s35, {G*2048}')
        r, va = ('s[40:43]', 'v1') if i < 64 else ('s[44:47]', 'v2')
        a(f'buffer_load_dwordx4 {sl(i)}, {va}, {r}, s36 offen offset:{t*256} {pol}')
    for i in range(D0): issue(i)
    srd(a, 52, 28, None, WS_USED)
    for e in range(2):
        for r in range(4):
            m16 = (0x11 << r) << (8 * e); m32 = m16 | (m16 << 16)
            a(f's_mov_b32 s{64+2*(4*e+r)}, {hex(m32)}\ns_mov_b32 s{65+2*(4*e+r)}, {hex(m32)}')
    a('s_mov_b32 s80, 0x05040100\ns_mov_b32 s81, 0x07060302')
    a(f's_waitcnt vmcnt({D0})')
    layernorm(a, S, S + 4, S + 12, 's[82:83]')
    a(f's_mul_i32 s37, s30, {XSTR}\nv_lshl_add_u32 v3, v0, 4, s37')
    a(f'v_add_u32 v4, {L_XN}, v3\nds_write_b128 v4, v[{S}:{S+3}]\ns_waitcnt lgkmcnt(0)\ns_barrier')
    a('s_cmp_lt_u32 s32, 28\ns_cbranch_scc1 L_noln2')
    layernorm(a, S, S + 4, S + 12, 's[82:83]')
    a(f'v_add_u32 v4, {L_Y}, v3\nds_write_b128 v4, v[{S}:{S+3}]\ns_waitcnt lgkmcnt(0)')
    a('L_noln2:')
    for i in range(D0, R):
        a(f's_waitcnt vmcnt({D-1})'); issue(i)
    a('v_bfe_u32 v3, v0, 2, 1\nv_lshlrev_b32 v3, 9, v3\nv_and_b32 v4, 3, v0\nv_lshl_add_u32 v3, v4, 4, v3')
    a(f'v_lshrrev_b32 v4, 4, v0\nv_lshl_add_u32 v3, v4, 6, v3\nv_add_u32 v3, {L_Q}, v3')
    a(f's_barrier')
    a(f'ds_read_b128 v[{Q}:{Q+3}], v3\nds_read_b128 v[{Q+4}:{Q+7}], v3 offset:256')
    a(f'v_mov_b32 v4, 0xff800000\ns_mov_b32 s83, {hex(f2u(C_EXP))}\ns_waitcnt lgkmcnt(0)')
    chunks = []
    def kdpp(G):
        d = DT + 4 * (G & 1)
        a(f'v_mov_b32_dpp v{S+G}, v{d} quad_perm:[0,0,0,0] row_mask:0xf bank_mask:0xf')
        for r in range(1, 4):
            a(f'v_add_f32_dpp v{S+G}, v{d+r}, v{S+G} quad_perm:[{r},{r},{r},{r}] row_mask:0xf bank_mask:0xf')
        if G & 1:
            a(f'v_cvt_pk_bf16_f32 v5, v{S+G-1}, v{S+G}\nv_lshlrev_b32 v{S+G-1}, 16, v5\nv_and_b32 v{S+G}, 0xffff0000, v5')
            a(f'v_max3_f32 v4, v4, v{S+G-1}, v{S+G}')
    def kchunk(G):
        def fn():
            d = DT + 4 * (G & 1)
            a(f'v_mfma_f32_16x16x32_bf16 v[{d}:{d+3}], {sl(2*G)}, v[{Q}:{Q+3}], 0')
            a(f'v_mfma_f32_16x16x32_bf16 v[{d}:{d+3}], {sl(2*G+1)}, v[{Q+4}:{Q+7}], v[{d}:{d+3}]')
            if G: kdpp(G - 1)
        return fn
    for G in range(32): chunks.append((2 * G + 1, [2 * G, 2 * G + 1], kchunk(G)))
    def sm0():
        kdpp(31)
        xgroup(a, 'v_max_f32', 4, 5)
        a('v_mul_f32 v6, s83, v4\nv_mov_b32 v7, 0')
        stamp(a, P, 90)
    chunks.append((63, [], sm0))
    def sm(k):
        def fn():
            for g in range(8 * k, 8 * k + 8): a(f'v_fma_f32 v{S+g}, v{S+g}, s83, -v6')
            for g in range(8 * k, 8 * k + 8): a(f'v_exp_f32 v{S+g}, v{S+g}')
            for g in range(8 * k, 8 * k + 8): a(f'v_add_f32 v7, v7, v{S+g}')
            for i in range(4 * k, 4 * k + 4): a(f'v_cvt_pk_bf16_f32 v{S+i}, v{S+2*i}, v{S+2*i+1}')
        return fn
    for k in range(4): chunks.append((63, [], sm(k)))
    def sm_end():
        xgroup(a, 'v_add_f32', 7, 5)
        a(f'v_mov_b32 v5, v7\nv_bfe_u32 v3, v0, 2, 1\nv_lshlrev_b32 v3, 6, v3\ns_lshl_b32 s37, s30, 3\ns_add_u32 s37, s37, {L_ML}\nv_add_u32 v3, s37, v3')
        a('s_mov_b64 exec, 0x11\nds_write_b64 v3, v[4:5]\ns_mov_b64 exec, -1')
    chunks.append((63, [], sm_end))
    AT = [32, 36]; PT = [40, 44, 8, 12]; ACC = DT
    cnt = [0, 0]
    def vchunk(T, e, r):
        def fn():
            A = AT[cnt[0] & 1]; cnt[0] += 1
            mk = 64 + 2 * (4 * e + r)
            for p in range(4): a(f'v_cndmask_b32 v{A+p}, 0, v{S+4*T+p}, s[{mk}:{mk+1}]')
            for jj in range(2):
                j = 4 * jj + r; m, hh = j >> 1, j & 1
                B = PT[cnt[1] & 3]; cnt[1] += 1
                for p in range(4):
                    ev = 64 + 16 * T + 2 * (2 * p) + e; od = ev + 2
                    a(f'v_perm_b32 v{B+p}, v{slot(od)+m}, v{slot(ev)+m}, s{80+hh}')
                c = '0' if (T == 0 and e == 0 and r == 0) else f'v[{ACC+4*jj}:{ACC+4*jj+3}]'
                a(f'v_mfma_f32_16x16x32_bf16 v[{ACC+4*jj}:{ACC+4*jj+3}], v[{A}:{A+3}], v[{B}:{B+3}], {c}')
        return fn
    for T in range(4):
        for e in range(2):
            for r in range(4):
                fr = [64 + 16 * T + 2 * g + e for g in range(8)] if r == 3 else []
                chunks.append((64 + 16 * T + 14 + e, fr, vchunk(T, e, r)))
    freed = set(); ci = 0; landed = -1
    def run_chunk(issued):
        nonlocal ci, landed
        nd, fr, fn = chunks[ci]; ci += 1
        if nd > landed:
            a(f's_waitcnt vmcnt({issued-1-nd})'); landed = nd
        fn(); freed.update(fr)
    for i in range(R, 128):
        while (i - R) not in freed: run_chunk(i)
        if i - D > landed:
            a(f's_waitcnt vmcnt({D-1})'); landed = i - D
        issue(i)
        n = 0
        while ci < len(chunks) and chunks[ci][0] <= landed and n < P['budget']:
            run_chunk(i + 1); n += 1
    def tail_addr():
        a(f'v_lshrrev_b32 v3, 5, v0\nv_lshlrev_b32 v3, 9, v3\nv_bfe_u32 v4, v0, 4, 1\nv_lshl_add_u32 v3, v4, 10, v3')
        a(f'v_and_b32 v4, 15, v0\nv_lshl_add_u32 v3, v4, 5, v3\ns_lshl_b32 s37, s30, 11\ns_add_u32 s37, s37, {L_PART}\nv_add_u32 v3, s37, v3')
        a(f's_lshl_b32 s37, s30, 8\ns_add_u32 s37, s37, {L_PART}\nv_lshl_add_u32 v4, v0, 2, s37')
        a(f's_lshr_b32 s37, s30, 2\ns_lshl_b32 s37, s37, 5\ns_add_u32 s37, s37, {L_F}\nv_mov_b32 v5, s37')
        a(f'v_lshrrev_b32 v6, 1, v0\nv_lshlrev_b32 v6, 2, v6')
        a(f's_lshl_b32 s60, s38, 10\ns_lshl_b32 s37, s30, 7\ns_add_u32 s60, s60, s37\ns_add_u32 s60, s60, {OBUF}')
        a(f'v_bfe_u32 v7, v0, 2, 2\nv_lshlrev_b32 v7, 10, v7\nv_and_b32 v1, 3, v0\nv_lshl_add_u32 v7, v1, 6, v7\nv_lshrrev_b32 v1, 4, v0\nv_lshl_add_u32 v7, v1, 4, v7')
        a(f's_lshl_b32 s61, s33, 15\ns_lshl_b32 s37, s30, 12\ns_add_u32 s61, s61, s37\ns_add_u32 s61, s61, {OBUF}')
        a(f'v_and_b32 v2, 15, v0\nv_lshlrev_b32 v2, 3, v2\nv_lshl_add_u32 v2, v1, 8, v2\ns_lshl_b32 s37, s30, 14\nv_add_u32 v2, s37, v2')
    tail_addr()
    while ci < len(chunks): run_chunk(128)
    a(f'ds_write_b128 v3, v[{ACC}:{ACC+3}]\nds_write_b128 v3, v[{ACC+4}:{ACC+7}] offset:16\ns_waitcnt lgkmcnt(0)\ns_barrier')
    stamp(a, P, 92)
    for w in range(4): a(f'ds_read2st64_b32 v[{16+2*w}:{17+2*w}], v4 offset0:{16*w} offset1:{16*w+8}')
    a('ds_read_b128 v[24:27], v5\nds_read_b128 v[28:31], v5 offset:16\ns_waitcnt lgkmcnt(0)')
    a('v_mul_f32 v32, v16, v24\nv_mul_f32 v33, v17, v25')
    for w in range(2, 8): a(f'v_fmac_f32 v{32+(w&1)}, v{16+w}, v{24+w}')
    a('v_add_f32 v32, v32, v33')
    a('v_mov_b32_dpp v33, v32 quad_perm:[1,0,3,2] row_mask:0xf bank_mask:0xf')
    a('v_cvt_pk_bf16_f32 v32, v32, v33\nv_min_u32 v32, -2, v32')
    a('s_mov_b32 exec_lo, 0x55555555\ns_mov_b32 exec_hi, 0x55555555')
    a('buffer_store_dword v32, v6, s[52:55], s60 offen sc1\ns_mov_b64 exec, -1')
    a('s_cmp_lt_u32 s32, 28\ns_cbranch_scc1 L_final')
    if P['diag']:
        a('s_cmp_lg_u32 s30, 0\ns_cbranch_scc1 L_end')
        stamp(a, P, 94)
        stamp_store(a, P, [(0, 88), (3, 90), (5, 92), (6, 94)], hw=True)
    a('s_endpgm')
    a('L_final:')
    BF, AF, DF = 56, 120, 136
    a(f's_mov_b32 s86, {P["spin"]}')
    for blk in range(4): a(f'buffer_load_dwordx4 v[{AF+4*blk}:{AF+4*blk+3}], v7, s[52:55], s61 offen offset:{blk*256} sc1')
    for blk in range(4):
        for jj in range(4):
            b = BF + 16 * blk + 4 * jj; o = blk * 4096 + jj * 1024
            a(f'ds_read_b64_tr_b16 v[{b}:{b+1}], v2 offset:{o}\nds_read_b64_tr_b16 v[{b+2}:{b+3}], v2 offset:{o+128}')
    a(f'v_and_b32 v3, 15, v0\nv_mul_u32_u24 v3, 144, v3\nv_lshl_add_u32 v3, v1, 2, v3\ns_lshl_b32 s37, s30, 4\ns_add_u32 s37, s37, {L_FIN}\nv_add_u32 v3, s37, v3')
    a('s_branch L_gchk')
    a('L_gpoll:')
    a('s_sleep 1')
    for blk in range(4): a(f'buffer_load_dwordx4 v[{AF+4*blk}:{AF+4*blk+3}], v7, s[52:55], s61 offen offset:{blk*256} sc1')
    a('L_gchk:')
    a('s_waitcnt vmcnt(0)')
    a(f'v_max3_u32 v16, v{AF}, v{AF+1}, v{AF+2}\nv_max3_u32 v17, v{AF+3}, v{AF+4}, v{AF+5}\nv_max3_u32 v18, v{AF+6}, v{AF+7}, v{AF+8}')
    a(f'v_max3_u32 v16, v16, v{AF+9}, v{AF+10}\nv_max3_u32 v17, v17, v{AF+11}, v{AF+12}\nv_max3_u32 v18, v18, v{AF+13}, v{AF+14}')
    a(f'v_max3_u32 v16, v16, v17, v{AF+15}\nv_max_u32 v16, v16, v18\nv_cmp_eq_u32 vcc, -1, v16')
    a('s_sub_u32 s86, s86, 1\ns_cbranch_scc1 L_gdone\ns_cbranch_vccnz L_gpoll')
    a('L_gdone:')
    a('s_waitcnt lgkmcnt(0)')
    for blk in range(4):
        for jj in range(4):
            b = BF + 16 * blk + 4 * jj; d = DF + 4 * jj
            c = '0' if blk == 0 else f'v[{d}:{d+3}]'
            a(f'v_mfma_f32_16x16x32_bf16 v[{d}:{d+3}], v[{AF+4*blk}:{AF+4*blk+3}], v[{b}:{b+3}], {c}')
    a(f'v_add_f32 v16, v{DF}, v{DF+5}\nv_add_f32 v17, v{DF+10}, v{DF+15}\nv_add_f32 v16, v16, v17')
    a('ds_write_b32 v3, v16')
    a(f'v_lshrrev_b32 v4, 2, v0\nv_mul_u32_u24 v5, 144, v4\nv_and_b32 v6, 3, v0\nv_lshl_add_u32 v5, v6, 5, v5\nv_add_u32 v5, {L_FIN}, v5')
    a(f'v_lshlrev_b32 v6, 3, v4\nv_add_u32 v6, {L_XB}, v6')
    a('s_mul_i32 s37, s33, 896\ns_lshl_b32 s39, s34, 5\ns_add_u32 s37, s37, s39\nv_lshl_add_u32 v4, v4, 1, s37')
    srd(a, 44, 24, None, 7168)
    a('s_waitcnt lgkmcnt(0)\ns_barrier')
    a('s_cmp_lg_u32 s30, 0\ns_cbranch_scc1 L_end')
    a('ds_read_b128 v[16:19], v5\nds_read_b128 v[20:23], v5 offset:16\nds_read_b64 v[24:25], v6\ns_waitcnt lgkmcnt(0)')
    a('v_add_f32 v16, v16, v17\nv_add_f32 v18, v18, v19\nv_add_f32 v20, v20, v21\nv_add_f32 v22, v22, v23')
    a('v_add_f32 v16, v16, v18\nv_add_f32 v20, v20, v22\nv_add_f32 v16, v16, v20')
    a('v_add_f32_dpp v16, v16, v16 quad_perm:[1,0,3,2] row_mask:0xf bank_mask:0xf')
    a('v_add_f32_dpp v16, v16, v16 quad_perm:[2,3,0,1] row_mask:0xf bank_mask:0xf')
    rnd_bf16(a, 16)
    a('v_add_f32 v16, v24, v16'); rnd_bf16(a, 16)
    a('v_add_f32 v16, v16, v25\nv_cvt_pk_bf16_f32 v16, v16, v16')
    a('s_mov_b32 exec_lo, 0x11111111\ns_mov_b32 exec_hi, 0x11111111')
    a('buffer_store_short v16, v4, s[44:47], 0 offen')
    if P['diag']:
        a('s_mov_b64 exec, -1\ns_waitcnt vmcnt(0)')
        stamp(a, P, 94)
        stamp_store(a, P, [(0, 88), (3, 90), (5, 92), (6, 94)], hw=True)
    a('s_endpgm')

def dma_loop(a, P, lab, n, vaddr, sstep, lds0):
    a(f's_mov_b32 s36, 0\ns_mov_b32 s62, {lds0}\ns_mov_b32 s63, {n}')
    a(f'{lab}:')
    a(f's_mov_b32 m0, s62\ns_waitcnt vmcnt({P["DH"]-1})')
    a(f'buffer_load_dwordx4 v{vaddr}, s[56:59], s36 offen {P["wpol"]} lds')
    a(f's_add_u32 s36, s36, {sstep}\ns_add_u32 s62, s62, 1024\ns_sub_u32 s63, s63, 1\ns_cmp_lg_u32 s63, 0\ns_cbranch_scc1 {lab}')

def helper(a, P):
    a('L_helper:')
    a('v_lshrrev_b32 v1, 1, v0\nv_lshlrev_b32 v1, 13, v1\nv_and_b32 v2, 1, v0\nv_lshl_add_u32 v1, v2, 4, v1')
    a('s_lshl_b32 s37, s31, 5\ns_add_u32 s37, s37, s32\ns_lshl_b32 s37, s37, 5')
    a(f's_sub_u32 s39, {448*8192}, s37')
    a('s_lshl_b32 s38, s33, 5\ns_add_u32 s38, s38, s34')
    a('s_waitcnt lgkmcnt(0)')
    a('s_load_dwordx2 s[84:85], s[28:29], 0')
    srd(a, 56, 10, 's37', 's39')
    for i in range(14):
        a(f's_mov_b32 m0, {L_WQ+i*1024}\ns_mov_b32 s36, {i*262144}')
        a(f'buffer_load_dwordx4 v1, s[56:59], s36 offen {P["wpol"]} lds')
    srd(a, 52, 28, None, WS_USED)
    a('v_mov_b32 v4, -1\nv_mov_b32 v5, -1\nv_mov_b32 v6, -1\nv_mov_b32 v7, -1\nv_lshlrev_b32 v2, 4, v0')
    a(f's_lshl_b32 s37, s38, 10\ns_add_u32 s37, s37, {OBUF}\nbuffer_store_dwordx4 v[4:7], v2, s[52:55], s37 offen sc1')
    a(f'v_lshlrev_b32 v3, 3, v0\nv_add_u32 v3, {L_ML}, v3\ns_mov_b64 exec, 0xffff\nds_write_b64 v3, v[4:5]\ns_mov_b64 exec, -1')
    a(f'v_and_b32 v8, 7, v0\nv_mul_u32_u24 v8, {XSTR}, v8\nv_lshrrev_b32 v9, 4, v0\nv_lshl_add_u32 v8, v9, 4, v8')
    a(f'v_add_u32 v11, {L_XN}, v8')
    a(f'v_and_b32 v10, 15, v0\nv_lshlrev_b32 v12, 3, v10\nv_lshl_add_u32 v12, v9, 8, v12')
    a(f'v_lshlrev_b32 v13, 14, v10\nv_lshl_add_u32 v13, v9, 4, v13\nv_mov_b32 v14, {hex(OOB)}\nv_cmp_gt_u32 vcc, 8, v10\nv_cndmask_b32 v13, v14, v13, vcc')
    a(f's_lshl_b32 s60, s31, 11\ns_lshl_b32 s37, s32, 6\ns_add_u32 s60, s60, s37\ns_add_u32 s60, s60, {QBUF}')
    a(f's_lshl_b32 s61, s33, 3\ns_lshr_b32 s37, s34, 2\ns_add_u32 s61, s61, s37\ns_lshl_b32 s61, s61, 11\ns_add_u32 s61, s61, {QBUF}')
    a(f's_mov_b32 s83, {hex(f2u(C_EXP))}')
    a('s_waitcnt lgkmcnt(0)')
    a('s_add_u32 s84, s84, 0x9E3779B9\ns_addc_u32 s85, s85, 0x7F4A7C15')
    a('s_barrier')
    XF, WF, DQ = 16, 72, 128
    for ks in range(4): a(f'ds_read_b128 v[{XF+4*ks}:{XF+4*ks+3}], v11 offset:{ks*64}')
    a('s_waitcnt vmcnt(1)')
    def rd(ks):
        if ks >= 4: a(f'ds_read_b128 v[{XF+4*ks}:{XF+4*ks+3}], v11 offset:{ks*64}')
        a(f'ds_read_b64_tr_b16 v[{WF+4*ks}:{WF+4*ks+1}], v12 offset:{L_WQ+ks*1024}')
        a(f'ds_read_b64_tr_b16 v[{WF+4*ks+2}:{WF+4*ks+3}], v12 offset:{L_WQ+ks*1024+128}')
    for ks in range(4): rd(ks)
    for ks in range(14):
        if ks + 4 < 14: rd(ks + 4)
        later = sum((3 if k >= 4 else 2) for k in range(ks + 1, min(ks + 5, 14)))
        a(f's_waitcnt lgkmcnt({later})')
        c = '0' if ks == 0 else f'v[{DQ}:{DQ+3}]'
        a(f'v_mfma_f32_16x16x32_bf16 v[{DQ}:{DQ+3}], v[{WF+4*ks}:{WF+4*ks+3}], v[{XF+4*ks}:{XF+4*ks+3}], {c}')
    a(f'v_mov_b32 v6, s84\nv_mov_b32 v7, s85')
    a(f'v_cvt_pk_bf16_f32 v4, v{DQ}, v{DQ+1}\nv_cvt_pk_bf16_f32 v5, v{DQ+2}, v{DQ+3}')
    a('buffer_store_dwordx4 v[4:7], v13, s[52:55], s60 offen sc1')
    stamp(a, P, 88)
    a(f's_mov_b32 s86, {P["spin"]}\nv_lshlrev_b32 v3, 3, v0\nv_add_u32 v3, {L_Q}, v3')
    a('L_qpoll:')
    a('buffer_load_dwordx4 v[16:19], v2, s[52:55], s61 offen sc1\nbuffer_load_dwordx4 v[20:23], v2, s[52:55], s61 offen offset:1024 sc1')
    a('s_waitcnt vmcnt(0)')
    a('v_cmp_ne_u64 vcc, s[84:85], v[18:19]\nv_cmp_ne_u64 s[62:63], s[84:85], v[22:23]\ns_or_b64 vcc, vcc, s[62:63]')
    a('s_sub_u32 s86, s86, 1\ns_cbranch_scc1 L_qdone\ns_cbranch_vccnz L_qpoll')
    a('L_qdone:')
    a('ds_write_b64 v3, v[16:17]\nds_write_b64 v3, v[20:21] offset:512\ns_waitcnt lgkmcnt(0)\ns_barrier')
    stamp(a, P, 90)
    a('s_cmp_lt_u32 s32, 28\ns_cbranch_scc0 L_mlp')
    a(f's_lshl_b32 s37, s34, 5\ns_sub_u32 s39, {4096*896}, s37')
    srd(a, 56, 12, 's37', 's39')
    a('v_lshrrev_b32 v1, 1, v0\nv_mul_u32_u24 v1, 896, v1\nv_and_b32 v3, 1, v0\nv_lshl_add_u32 v1, v3, 4, v1')
    dma_loop(a, P, 'L_wo', 128, 1, 32 * 896, L_WO)
    a('s_branch L_ml')
    a('L_mlp:')
    a('s_sub_u32 s59, s32, 28\ns_lshl_b32 s87, s59, 3\ns_add_u32 s87, s87, s31')
    a('s_cmp_lt_u32 s87, 28\ns_cbranch_scc0 L_ml')
    YF = 16
    a(f'v_add_u32 v11, {L_Y}, v8')
    for ks in range(14): a(f'ds_read_b128 v[{YF+4*ks}:{YF+4*ks+3}], v11 offset:{ks*64}')
    a('s_lshl_b32 s37, s87, 7')
    srd(a, 56, 18, 's37', 128)
    a('v_lshlrev_b32 v3, 3, v9')
    B1R = 72
    for t in range(4): a(f'buffer_load_dwordx2 v[{B1R+2*t}:{B1R+2*t+1}], v3, s[56:59], 0 offen offset:{t*32}')
    a(f's_sub_u32 s39, {448*3584}, s37')
    srd(a, 56, 16, 's37', 's39')
    a('v_lshrrev_b32 v1, 3, v0\nv_mul_u32_u24 v1, 3584, v1\nv_and_b32 v3, 7, v0\nv_lshl_add_u32 v1, v3, 4, v1')
    dma_loop(a, P, 'L_w1', 56, 1, 8 * 3584, L_W1)
    a('s_mul_i32 s37, s87, 57344')
    srd(a, 56, 20, 's37', 57344)
    dma_loop(a, P, 'L_w2', 56, 2, 1024, L_W2)
    a(f'v_bfe_u32 v3, v0, 2, 2\nv_lshl_add_u32 v4, v9, 3, v3\nv_lshlrev_b32 v4, 7, v4\nv_and_b32 v5, 3, v0\nv_lshl_add_u32 v4, v5, 3, v4\nv_add_u32 v4, {L_W1}, v4')
    a(f'v_lshl_add_u32 v6, v9, 2, v3\nv_mul_u32_u24 v6, 896, v6\nv_lshl_add_u32 v6, v5, 3, v6\nv_add_u32 v6, {L_W2}, v6')
    a(f'v_mul_u32_u24 v13, 1792, v10\nv_lshl_add_u32 v13, v9, 4, v13\nv_cmp_gt_u32 vcc, 8, v10\nv_cndmask_b32 v13, v14, v13, vcc')
    TA, D1 = 80, 112
    seq = [(t, ks) for t in range(4) for ks in range(14)]
    def rd1(n):
        t, ks = seq[n]; r = TA + 4 * (n % 8); o = ks * 4096 + t * 32
        a(f'ds_read_b64_tr_b16 v[{r}:{r+1}], v4 offset:{o}\nds_read_b64_tr_b16 v[{r+2}:{r+3}], v4 offset:{o+512}')
    a('s_waitcnt lgkmcnt(0)')
    for n in range(6): rd1(n)
    for n, (t, ks) in enumerate(seq):
        if n + 6 < len(seq): rd1(n + 6)
        a(f's_waitcnt lgkmcnt({2*min(6, len(seq)-1-n)})')
        r = TA + 4 * (n % 8); d = D1 + 4 * t
        c = '0' if ks == 0 else f'v[{d}:{d+3}]'
        a(f'v_mfma_f32_16x16x32_bf16 v[{d}:{d+3}], v[{r}:{r+3}], v[{YF+4*ks}:{YF+4*ks+3}], {c}')
    BU = 16; HF = 64
    unpack(a, B1R, BU, 8)
    k0 = 2 * 0.7978845608028654 * math.log2(math.e); k1 = k0 * 0.044715
    a(f's_mov_b32 s62, {hex(f2u(-k1))}\nv_mov_b32 v15, {hex(f2u(-k0))}')
    for i in range(8): a(f'v_cvt_pk_bf16_f32 v{32+i}, v{D1+2*i}, v{D1+2*i+1}')
    unpack(a, 32, D1, 8)
    for i in range(16): a(f'v_add_f32 v{D1+i}, v{D1+i}, v{BU+i}')
    for i in range(8): a(f'v_cvt_pk_bf16_f32 v{32+i}, v{D1+2*i}, v{D1+2*i+1}')
    unpack(a, 32, D1, 8)
    for i in range(16): a(f'v_mul_f32 v{BU+i}, v{D1+i}, v{D1+i}')
    for i in range(16): a(f'v_fma_f32 v{BU+i}, v{BU+i}, s62, v15')
    for i in range(16): a(f'v_mul_f32 v{BU+i}, v{BU+i}, v{D1+i}')
    for i in range(16): a(f'v_exp_f32 v{BU+i}, v{BU+i}')
    for i in range(16): a(f'v_add_f32 v{BU+i}, 1.0, v{BU+i}')
    for i in range(16): a(f'v_rcp_f32 v{BU+i}, v{BU+i}')
    for i in range(16): a(f'v_mul_f32 v{D1+i}, v{D1+i}, v{BU+i}')
    for i in range(8): a(f'v_cvt_pk_bf16_f32 v{HF+i}, v{D1+2*i}, v{D1+2*i+1}')
    a(f's_mul_i32 s60, s87, 14336\ns_add_u32 s60, s60, {MBUF}\ns_waitcnt vmcnt(0)')
    seq2 = [(nt, k) for nt in range(28) for k in range(2)]
    def rd2(n):
        nt, k = seq2[n]; r = TA + 4 * (n % 8); o = k * 32 * 896 + nt * 32
        a(f'ds_read_b64_tr_b16 v[{r}:{r+1}], v6 offset:{o}\nds_read_b64_tr_b16 v[{r+2}:{r+3}], v6 offset:{o+14336}')
    for n in range(6): rd2(n)
    D2 = [112, 116, 120, 124]
    def st2(nt):
        d = D2[nt % 4]
        a(f'buffer_store_dwordx4 v[{d}:{d+3}], v13, s[52:55], s60 offen offset:{nt*64} sc1')
    for n, (nt, k) in enumerate(seq2):
        if n + 6 < len(seq2): rd2(n + 6)
        a(f's_waitcnt lgkmcnt({2*min(6, len(seq2)-1-n)})')
        r = TA + 4 * (n % 8); d = D2[nt % 4]
        c = '0' if k == 0 else f'v[{d}:{d+3}]'
        a(f'v_mfma_f32_16x16x32_bf16 v[{d}:{d+3}], v[{r}:{r+3}], v[{HF+4*k}:{HF+4*k+3}], {c}')
        if k == 1 and nt >= 2: st2(nt - 2)
    st2(26); st2(27)
    a(f'v_mov_b32 v6, s84\nv_mov_b32 v7, s85\nv_mov_b32 v4, 0\ns_lshl_b32 s37, s87, 4\ns_add_u32 s37, s37, {MFLAG}')
    a('s_waitcnt vmcnt(0)\ns_mov_b64 exec, 1\nbuffer_store_dwordx2 v[6:7], v4, s[52:55], s37 offen sc1\ns_mov_b64 exec, -1')
    a('L_ml:')
    a(f'v_and_b32 v3, 15, v0\nv_lshlrev_b32 v3, 3, v3\nv_add_u32 v3, {L_ML}, v3\ns_mov_b32 s86, {P["spin"]*16}')
    a('L_mlw:')
    a('s_sleep 4\nds_read_b64 v[16:17], v3\ns_waitcnt lgkmcnt(0)\nv_cmp_eq_u32 vcc, -1, v16')
    a('s_sub_u32 s86, s86, 1\ns_cbranch_scc1 L_mlwd\ns_cbranch_vccnz L_mlw')
    a('L_mlwd:')
    d8 = ('quad_perm:[1,0,3,2]', 'quad_perm:[2,3,0,1]', 'row_half_mirror')
    a('v_mov_b32 v18, v16')
    for m in d8: a(f'v_max_f32_dpp v18, v18, v18 {m} row_mask:0xf bank_mask:0xf')
    a('v_sub_f32 v19, v16, v18\nv_mul_f32 v19, s83, v19\nv_exp_f32 v19, v19\nv_mul_f32 v19, v19, v17')
    for m in d8: a(f'v_add_f32_dpp v19, v19, v19 {m} row_mask:0xf bank_mask:0xf')
    a('v_mov_b32 v20, s84\nv_mov_b32 v21, s85\nv_lshlrev_b32 v4, 6, v0')
    a(f's_lshl_b32 s61, s33, 10\ns_add_u32 s61, s61, {MLBUF}\ns_lshl_b32 s37, s34, 4\ns_add_u32 s37, s37, s61')
    a('s_waitcnt vmcnt(0)\ns_mov_b64 exec, 0x101\nbuffer_store_dwordx4 v[18:21], v4, s[52:55], s37 offen sc1\ns_mov_b64 exec, -1')
    a(f's_mov_b32 s86, {P["spin"]}')
    a('L_mlp2:')
    a('s_sleep 2\nbuffer_load_dwordx4 v[24:27], v2, s[52:55], s61 offen sc1\ns_waitcnt vmcnt(0)')
    a('v_cmp_ne_u64 vcc, s[84:85], v[26:27]')
    a('s_sub_u32 s86, s86, 1\ns_cbranch_scc1 L_mlp2d\ns_cbranch_vccnz L_mlp2')
    a('L_mlp2d:')
    a('v_mov_b32 v28, v24')
    for m in d8[:2]: a(f'v_max_f32_dpp v28, v28, v28 {m} row_mask:0xf bank_mask:0xf')
    a('v_sub_f32 v29, v24, v28\nv_mul_f32 v29, s83, v29\nv_exp_f32 v29, v29\nv_mul_f32 v29, v29, v25')
    for m in d8[:2]: a(f'v_add_f32_dpp v29, v29, v29 {m} row_mask:0xf bank_mask:0xf')
    a('s_and_b32 s37, s34, 28\ns_add_u32 s39, s37, 32')
    a('v_readlane_b32 s62, v28, s37\nv_readlane_b32 s63, v29, s37\nv_readlane_b32 s60, v28, s39\nv_readlane_b32 s59, v29, s39')
    a('v_mov_b32 v30, s62\nv_mov_b32 v31, s63\nv_mov_b32 v32, s60\nv_mov_b32 v33, s59')
    a('s_mov_b32 s62, 0xff00ff00\ns_mov_b32 s63, 0xff00ff00')
    a('v_cndmask_b32 v30, v30, v32, s[62:63]\nv_cndmask_b32 v31, v31, v33, s[62:63]')
    a('v_sub_f32 v30, v16, v30\nv_mul_f32 v30, s83, v30\nv_exp_f32 v30, v30\nv_rcp_f32 v31, v31\nv_mul_f32 v30, v30, v31')
    a(f'v_lshlrev_b32 v3, 2, v0\nv_add_u32 v3, {L_F}, v3\ns_mov_b64 exec, 0xffff\nds_write_b32 v3, v30\ns_mov_b64 exec, -1')
    a('s_cmp_lg_u32 s2, 0\ns_cbranch_scc1 L_noep')
    a('v_mov_b32 v4, 0\ns_mov_b64 exec, 1\nbuffer_store_dwordx2 v[20:21], v4, s[52:55], 0 offen sc1\ns_mov_b64 exec, -1')
    a('L_noep:')
    a('s_cmp_lt_u32 s32, 28\ns_cbranch_scc0 L_hend')
    a(f'v_cmp_gt_u32 vcc, 28, v0\nv_mov_b32 v3, 0\nv_cndmask_b32 v3, v3, v2, vcc\ns_mov_b32 s86, {P["spin"]}\ns_mov_b32 s37, {MFLAG}')
    a('L_mf:')
    a('buffer_load_dwordx2 v[16:17], v3, s[52:55], s37 offen sc1\ns_waitcnt vmcnt(0)\nv_cmp_ne_u64 vcc, s[84:85], v[16:17]')
    a('s_sub_u32 s86, s86, 1\ns_cbranch_scc1 L_mfd\ns_cbranch_vccz L_mfd\ns_sleep 4\ns_branch L_mf')
    a('L_mfd:')
    a('v_lshrrev_b32 v3, 2, v0\nv_mul_u32_u24 v3, 14336, v3\nv_and_b32 v5, 3, v0\nv_lshl_add_u32 v3, v5, 4, v3')
    a(f'v_add_u32 v4, {16*14336}, v3\nv_cmp_gt_u32 vcc, 48, v0\nv_cndmask_b32 v4, v14, v4, vcc')
    a(f's_mul_i32 s37, s33, 1792\ns_lshl_b32 s39, s34, 6\ns_add_u32 s37, s37, s39\ns_add_u32 s37, s37, {MBUF}')
    a('buffer_load_dwordx4 v[16:19], v3, s[52:55], s37 offen sc1\nbuffer_load_dwordx4 v[20:23], v4, s[52:55], s37 offen sc1')
    a('v_lshlrev_b32 v6, 3, v5\ns_lshl_b32 s39, s34, 5')
    srd(a, 56, 22, None, 896)
    a('buffer_load_dwordx2 v[24:25], v6, s[56:59], s39 offen')
    srd(a, 48, 4, None, 7168)
    a('s_mul_i32 s37, s33, 896\ns_add_u32 s37, s37, s39\nbuffer_load_dwordx2 v[26:27], v6, s[48:51], s37 offen')
    a('s_waitcnt vmcnt(0)')
    for i in range(4): a(f'v_add_f32 v{16+i}, v{16+i}, v{20+i}')
    for m in ('row_ror:4', 'row_ror:8'):
        for i in range(4): a(f'v_add_f32_dpp v{16+i}, v{16+i}, v{16+i} {m} row_mask:0xf bank_mask:0xf')
    for i in range(4): xgroup(a, 'v_add_f32', 16 + i, 20 + i)
    unpack(a, 24, 28, 2)
    a('v_cvt_pk_bf16_f32 v20, v16, v17\nv_cvt_pk_bf16_f32 v21, v18, v19')
    unpack(a, 20, 16, 2)
    for i in range(4): a(f'v_add_f32 v{16+i}, v{16+i}, v{28+i}')
    a('v_cvt_pk_bf16_f32 v20, v16, v17\nv_cvt_pk_bf16_f32 v21, v18, v19')
    a('v_lshlrev_b32 v32, 16, v26\nv_lshlrev_b32 v33, 16, v20\nv_and_b32 v34, 0xffff0000, v26\nv_and_b32 v35, 0xffff0000, v20')
    a('v_lshlrev_b32 v36, 16, v27\nv_lshlrev_b32 v37, 16, v21\nv_and_b32 v38, 0xffff0000, v27\nv_and_b32 v39, 0xffff0000, v21')
    a(f'v_lshlrev_b32 v3, 5, v0\nv_add_u32 v3, {L_XB}, v3\ns_mov_b64 exec, 0xf')
    a('ds_write_b128 v3, v[32:35]\nds_write_b128 v3, v[36:39] offset:16\ns_mov_b64 exec, -1')
    a('L_hend:')
    a('s_waitcnt vmcnt(0) lgkmcnt(0)')
    stamp(a, P, 92)
    stamp_store(a, P, [(1, 88), (2, 90), (4, 92)])
    a('s_endpgm')

def body(P):
    a = Asm()
    a('s_cmp_ge_u32 s2, 256\ns_cbranch_scc1 L_end')
    a('s_load_dwordx16 s[4:19], s[0:1], 0\ns_load_dwordx8 s[20:27], s[0:1], 64\ns_load_dwordx2 s[28:29], s[0:1], 96')
    a('v_lshrrev_b32 v1, 6, v0\nv_and_b32 v0, 63, v0\nv_readfirstlane_b32 s30, v1')
    a('s_and_b32 s31, s2, 7\ns_lshr_b32 s32, s2, 3\ns_mul_i32 s37, s31, 28\ns_add_u32 s37, s37, s32')
    a('s_and_b32 s33, s37, 7\ns_lshr_b32 s34, s37, 3\ns_cmp_lt_u32 s32, 28\ns_cselect_b32 s33, s33, s31\ns_cselect_b32 s34, s34, s32')
    a('s_cmp_eq_u32 s30, 8\ns_cbranch_scc1 L_helper')
    streamer(a, P)
    helper(a, P)
    a('L_end:\ns_endpgm')
    txt, n = a.text()
    return txt, n

def vgprs(P): return max(56 + 4 * P['R'], 152)

def kernel(P):
    txt, n = body(P)
    nm = P['name']
    txt = txt.replace('L_', f'L{nm[-24:]}_') if P.get('uniq') else txt
    return txt

def final_file(P):
    ref = open(f'cdna_kernels/{NAME}.s.ref').read()
    head = ref[:ref.index('; Override launch')]
    nm = P['name']; vg = vgprs(P)
    return head + f'''; Single launch: 256 workgroups x (8 streaming waves + 1 helper wave). Generated by gen/gen.py.
; @launch grid=(256,1,1) block=(576,1,1) lds={LDS_BYTES}
.amdgcn_target "amdgcn-amd-amdhsa--gfx950"
.text
.globl {nm}
.p2align 8
.type {nm},@function
{nm}:
{kernel(P)}
.section .rodata,"a"
.p2align 6
.amdhsa_kernel {nm}
  .amdhsa_next_free_vgpr {vg}
  .amdhsa_next_free_sgpr 102
  .amdhsa_accum_offset {(vg+3)//4*4}
  .amdhsa_group_segment_fixed_size 0
  .amdhsa_kernarg_size 104
  .amdhsa_user_sgpr_count 2
  .amdhsa_user_sgpr_kernarg_segment_ptr 1
  .amdhsa_system_sgpr_workgroup_id_x 1
.end_amdhsa_kernel
'''

if __name__ == '__main__':
    P = dict(DEF)
    out = f'cdna_kernels/{NAME}.s'
    for kv in sys.argv[1:]:
        k, v = kv.split('=', 1)
        if k == 'out': out = v
        else: P[k] = type(DEF[k])(v) if not isinstance(DEF[k], bool) else v == '1'
    open(out, 'w').write(final_file(P))
    print('wrote', out)
```

```python
import sys, math, struct
from asmlib import Asm

NAME = 'parallel_sum__gqa_block_cached__mixer_channel_mlp__decode'
def f2u(x): return struct.unpack('<I', struct.pack('<f', x))[0]

QBUF, MLBUF, MFLAG, OBUF, MBUF, WS_USED = 0x1000, 0x21000, 0x23000, 0x24000, 0x64000, 0xC6000
STAMP_OFF = 536870912 - (1 << 20)
L_WO = 0; L_WQ = 0; L_W1 = 16384; L_W2 = 73728
L_PART = 131072; L_XN = 131072
L_Y = 147456; XSTR = 1056
L_Q = L_Y + 8448
L_FIN = L_Q + 1024
L_ML = L_FIN + 2304
L_F = L_ML + 128
L_XB = L_F + 64
LDS_BYTES = L_XB + 128
OOB = 0x7F000000
C_EXP = math.log2(math.e) / 16.0

DEF = dict(R=24, D=4, D0=6, DH=8, pol='nt', wpol='nt', xpol='', diag=False, budget=2, name=NAME + '_kernel', spin=1 << 16, pts='start+qpub+B1+Kdone+hend+B2+end')

def srd(a, n, base, off, size):
    if off is None:
        a(f's_mov_b32 s{n}, s{base}\ns_mov_b32 s{n+1}, s{base+1}')
    else:
        a(f's_add_u32 s{n}, s{base}, {off}\ns_addc_u32 s{n+1}, s{base+1}, 0')
    a(f's_mov_b32 s{n+2}, {size}\ns_mov_b32 s{n+3}, 0x20000')

def wave_sum(a, v, s):
    for m in ('row_shr:1', 'row_shr:2', 'row_shr:4', 'row_shr:8'):
        a(f'v_add_f32_dpp v{v}, v{v}, v{v} {m} row_mask:0xf bank_mask:0xf')
    a(f'v_add_f32_dpp v{v}, v{v}, v{v} row_bcast:15 row_mask:0xa bank_mask:0xf')
    a(f'v_add_f32_dpp v{v}, v{v}, v{v} row_bcast:31 row_mask:0xc bank_mask:0xf')
    a(f'v_readlane_b32 s{s}, v{v}, 63')

def rnd_bf16(a, v):
    a(f'v_cvt_pk_bf16_f32 v{v}, v{v}, v{v}\nv_and_b32 v{v}, 0xffff0000, v{v}')

def unpack(a, src, dst, n):
    for i in range(n):
        a(f'v_and_b32 v{dst+2*i+1}, 0xffff0000, v{src+i}\nv_lshlrev_b32 v{dst+2*i}, 16, v{src+i}')

def layernorm(a, X, F, T, valid):
    unpack(a, X, F, 4)
    a(f'v_add_f32 v{T}, v{F}, v{F+1}\nv_add_f32 v{T+1}, v{F+2}, v{F+3}')
    a(f'v_add_f32 v{T}, v{T}, v{F+4}\nv_add_f32 v{T+1}, v{T+1}, v{F+5}')
    a(f'v_add_f32 v{T}, v{T}, v{F+6}\nv_add_f32 v{T+1}, v{T+1}, v{F+7}\nv_add_f32 v{T}, v{T}, v{T+1}')
    a(f'v_cndmask_b32 v{T}, 0, v{T}, {valid}')
    wave_sum(a, T, 37)
    a(f'v_mov_b32 v{T}, s37\nv_mul_f32 v{T}, {hex(f2u(1/448))}, v{T}')
    a(f'v_sub_f32 v{T+2}, v{F}, v{T}\nv_mul_f32 v{T+1}, v{T+2}, v{T+2}')
    for i in range(1, 8):
        a(f'v_sub_f32 v{T+2}, v{F+i}, v{T}\nv_fmac_f32 v{T+1}, v{T+2}, v{T+2}')
    a(f'v_cndmask_b32 v{T+1}, 0, v{T+1}, {valid}')
    wave_sum(a, T + 1, 37)
    rnd_bf16(a, T)
    a(f'v_mov_b32 v{T+1}, s37\nv_mul_f32 v{T+1}, {hex(f2u(1/448))}, v{T+1}')
    rnd_bf16(a, T + 1)
    a(f'v_add_f32 v{T+1}, {hex(f2u(1e-5))}, v{T+1}')
    rnd_bf16(a, T + 1)
    a(f'v_sqrt_f32 v{T+1}, v{T+1}')
    rnd_bf16(a, T + 1)
    a(f'v_rcp_f32 v{T+1}, v{T+1}')
    for i in range(8): a(f'v_sub_f32 v{F+i}, v{F+i}, v{T}')
    for i in range(4): a(f'v_cvt_pk_bf16_f32 v{X+i}, v{F+2*i}, v{F+2*i+1}')
    unpack(a, X, F, 4)
    for i in range(8): a(f'v_mul_f32 v{F+i}, v{F+i}, v{T+1}')
    for i in range(4): a(f'v_cvt_pk_bf16_f32 v{X+i}, v{F+2*i}, v{F+2*i+1}')

def xgroup(a, op, v, t):
    a(f'v_mov_b32 v{t}, v{v}\nv_permlane16_swap_b32 v{v}, v{t}\n{op} v{v}, v{v}, v{t}')
    a(f'v_mov_b32 v{t}, v{v}\nv_permlane32_swap_b32 v{v}, v{t}\n{op} v{v}, v{v}, v{t}')

S_PTS = ['start', 'xland', 'sB0', 'sB1a', 'sB1', 'Kdone', 'Vlast', 'B2', 'ost', 'gok', 'B3', 'end']
H_PTS = ['hstart', 'hB0', 'wqland', 'qpub', 'qp1', 'qok', 'B1', 'wodone', 'mlpub', 'mlok', 'hend']
def pts(P): return P['pts'].split('+') if isinstance(P['pts'], str) else P['pts']
def stamp(a, P, name):
    if P['diag'] and name in pts(P):
        reg = 88 + 2 * pts(P).index(name)
        a(f's_memrealtime s[{reg}:{reg+1}]\ns_waitcnt lgkmcnt(0)')
def stamp_items(P, lst): return [(i, 88 + 2 * i) for i, n in enumerate(pts(P)) if n in lst]
def stamp_init(a, P):
    if P['diag']:
        for i in range(7): a(f's_mov_b64 s[{88+2*i}:{89+2*i}], 0')

def stamp_store(a, P, items, hw=False):
    if not P['diag']: return
    a('s_waitcnt lgkmcnt(0)')
    a(f's_lshl_b32 s37, s2, 6\ns_add_u32 s37, s37, {STAMP_OFF}')
    srd(a, 40, 28, 's37', 64)
    a('s_mov_b64 exec, 1\nv_mov_b32 v1, 0')
    for idx, reg in items:
        a(f'v_mov_b32 v2, s{reg}\nv_mov_b32 v3, s{reg+1}\nbuffer_store_dwordx2 v[2:3], v1, s[40:43], 0 offen offset:{idx*8}')
    if hw:
        a('s_getreg_b32 s38, hwreg(HW_REG_XCC_ID)\ns_getreg_b32 s39, hwreg(HW_REG_HW_ID)')
        a('v_mov_b32 v2, s38\nv_mov_b32 v3, s39\nbuffer_store_dwordx2 v[2:3], v1, s[40:43], 0 offen offset:56')
    a('s_mov_b64 exec, -1')

def streamer(a, P):
    R, D, D0, pol = P['R'], P['D'], P['D0'], P['pol']
    Q, S, DT, RING = 8, 16, 48, 56
    slot = lambda i: RING + 4 * (i % R)
    sl = lambda i: f'v[{slot(i)}:{slot(i)+3}]'
    stamp(a, P, 'start')
    a('v_and_b32 v1, 3, v0\nv_lshlrev_b32 v1, 4, v1\nv_bfe_u32 v3, v0, 2, 2\nv_lshl_add_u32 v1, v3, 9, v1')
    a('v_lshrrev_b32 v3, 4, v0\nv_lshl_add_u32 v1, v3, 6, v1')
    a('v_and_b32 v2, 15, v0\nv_lshlrev_b32 v2, 4, v2\nv_lshl_add_u32 v2, v3, 9, v2')
    a('s_mul_i32 s37, s30, 896\nv_lshl_add_u32 v3, v0, 4, s37')
    a(f's_mov_b64 s[82:83], 0x00ffffff\ns_lshl_b64 s[82:83], s[82:83], 32\ns_mov_b32 s82, -1')
    a(f'v_mov_b32 v4, {hex(OOB)}\nv_cndmask_b32 v3, v4, v3, s[82:83]')
    a('s_lshl_b32 s38, s33, 5\ns_add_u32 s38, s38, s34')
    a('s_lshl_b32 s37, s38, 19\ns_lshl_b32 s39, s30, 16\ns_add_u32 s37, s37, s39')
    a('s_add_u32 s35, s30, s32\ns_and_b32 s35, s35, 7\ns_lshl_b32 s35, s35, 12')
    a('s_waitcnt lgkmcnt(0)')
    srd(a, 48, 4, None, 7168)
    a(f'buffer_load_dwordx4 v[{S}:{S+3}], v3, s[48:51], 0 offen {P["xpol"]}')
    srd(a, 40, 6, 's37', 65536)
    srd(a, 44, 8, 's37', 65536)
    def issue(i):
        j = i % 64; G, t = j >> 1, j & 1
        if t == 0: a(f's_xor_b32 s36, s35, {G*2048}')
        r, va = ('s[40:43]', 'v1') if i < 64 else ('s[44:47]', 'v2')
        a(f'buffer_load_dwordx4 {sl(i)}, {va}, {r}, s36 offen offset:{t*256} {pol}')
    for i in range(D0): issue(i)
    srd(a, 52, 28, None, WS_USED)
    for e in range(2):
        for r in range(4):
            m16 = (0x11 << r) << (8 * e); m32 = m16 | (m16 << 16)
            a(f's_mov_b32 s{64+2*(4*e+r)}, {hex(m32)}\ns_mov_b32 s{65+2*(4*e+r)}, {hex(m32)}')
    a('s_mov_b32 s80, 0x05040100\ns_mov_b32 s81, 0x07060302')
    a(f's_waitcnt vmcnt({D0})')
    stamp(a, P, 'xland')
    layernorm(a, S, S + 4, S + 12, 's[82:83]')
    a(f's_mul_i32 s37, s30, {XSTR}\nv_lshl_add_u32 v3, v0, 4, s37')
    a(f'v_add_u32 v4, {L_XN}, v3\nds_write_b128 v4, v[{S}:{S+3}]\ns_waitcnt lgkmcnt(0)\ns_barrier')
    stamp(a, P, 'sB0')
    a('s_cmp_lt_u32 s32, 28\ns_cbranch_scc1 L_noln2')
    layernorm(a, S, S + 4, S + 12, 's[82:83]')
    a(f'v_add_u32 v4, {L_Y}, v3\nds_write_b128 v4, v[{S}:{S+3}]\ns_waitcnt lgkmcnt(0)')
    a('L_noln2:')
    for i in range(D0, R):
        a(f's_waitcnt vmcnt({D-1})'); issue(i)
    a('v_bfe_u32 v3, v0, 2, 1\nv_lshlrev_b32 v3, 9, v3\nv_and_b32 v4, 3, v0\nv_lshl_add_u32 v3, v4, 4, v3')
    a(f'v_lshrrev_b32 v4, 4, v0\nv_lshl_add_u32 v3, v4, 6, v3\nv_add_u32 v3, {L_Q}, v3')
    stamp(a, P, 'sB1a')
    a(f's_barrier')
    stamp(a, P, 'sB1')
    a(f'ds_read_b128 v[{Q}:{Q+3}], v3\nds_read_b128 v[{Q+4}:{Q+7}], v3 offset:256')
    a(f'v_mov_b32 v4, 0xff800000\ns_mov_b32 s83, {hex(f2u(C_EXP))}\ns_waitcnt lgkmcnt(0)')
    chunks = []
    def kdpp(G):
        d = DT + 4 * (G & 1)
        a(f'v_mov_b32_dpp v{S+G}, v{d} quad_perm:[0,0,0,0] row_mask:0xf bank_mask:0xf')
        for r in range(1, 4):
            a(f'v_add_f32_dpp v{S+G}, v{d+r}, v{S+G} quad_perm:[{r},{r},{r},{r}] row_mask:0xf bank_mask:0xf')
        if G & 1:
            a(f'v_cvt_pk_bf16_f32 v5, v{S+G-1}, v{S+G}\nv_lshlrev_b32 v{S+G-1}, 16, v5\nv_and_b32 v{S+G}, 0xffff0000, v5')
            a(f'v_max3_f32 v4, v4, v{S+G-1}, v{S+G}')
    def kchunk(G):
        def fn():
            d = DT + 4 * (G & 1)
            a(f'v_mfma_f32_16x16x32_bf16 v[{d}:{d+3}], {sl(2*G)}, v[{Q}:{Q+3}], 0')
            a(f'v_mfma_f32_16x16x32_bf16 v[{d}:{d+3}], {sl(2*G+1)}, v[{Q+4}:{Q+7}], v[{d}:{d+3}]')
            if G: kdpp(G - 1)
        return fn
    for G in range(32): chunks.append((2 * G + 1, [2 * G, 2 * G + 1], kchunk(G)))
    def sm0():
        kdpp(31)
        xgroup(a, 'v_max_f32', 4, 5)
        a('v_mul_f32 v6, s83, v4\nv_mov_b32 v7, 0')
        stamp(a, P, 'Kdone')
    chunks.append((63, [], sm0))
    def sm(k):
        def fn():
            for g in range(8 * k, 8 * k + 8): a(f'v_fma_f32 v{S+g}, v{S+g}, s83, -v6')
            for g in range(8 * k, 8 * k + 8): a(f'v_exp_f32 v{S+g}, v{S+g}')
            for g in range(8 * k, 8 * k + 8): a(f'v_add_f32 v7, v7, v{S+g}')
            for i in range(4 * k, 4 * k + 4): a(f'v_cvt_pk_bf16_f32 v{S+i}, v{S+2*i}, v{S+2*i+1}')
        return fn
    for k in range(4): chunks.append((63, [], sm(k)))
    def sm_end():
        xgroup(a, 'v_add_f32', 7, 5)
        a(f'v_mov_b32 v5, v7\nv_bfe_u32 v3, v0, 2, 1\nv_lshlrev_b32 v3, 6, v3\ns_lshl_b32 s37, s30, 3\ns_add_u32 s37, s37, {L_ML}\nv_add_u32 v3, s37, v3')
        a('s_mov_b64 exec, 0x11\nds_write_b64 v3, v[4:5]\ns_mov_b64 exec, -1')
    chunks.append((63, [], sm_end))
    AT = [32, 36]; PT = [40, 44, 8, 12]; ACC = DT
    cnt = [0, 0]
    def vchunk(T, e, r):
        def fn():
            A = AT[cnt[0] & 1]; cnt[0] += 1
            mk = 64 + 2 * (4 * e + r)
            for p in range(4): a(f'v_cndmask_b32 v{A+p}, 0, v{S+4*T+p}, s[{mk}:{mk+1}]')
            for jj in range(2):
                j = 4 * jj + r; m, hh = j >> 1, j & 1
                B = PT[cnt[1] & 3]; cnt[1] += 1
                for p in range(4):
                    ev = 64 + 16 * T + 2 * (2 * p) + e; od = ev + 2
                    a(f'v_perm_b32 v{B+p}, v{slot(od)+m}, v{slot(ev)+m}, s{80+hh}')
                c = '0' if (T == 0 and e == 0 and r == 0) else f'v[{ACC+4*jj}:{ACC+4*jj+3}]'
                a(f'v_mfma_f32_16x16x32_bf16 v[{ACC+4*jj}:{ACC+4*jj+3}], v[{A}:{A+3}], v[{B}:{B+3}], {c}')
        return fn
    for T in range(4):
        for e in range(2):
            for r in range(4):
                fr = [64 + 16 * T + 2 * g + e for g in range(8)] if r == 3 else []
                chunks.append((64 + 16 * T + 14 + e, fr, vchunk(T, e, r)))
    freed = set(); ci = 0; landed = -1
    def run_chunk(issued):
        nonlocal ci, landed
        nd, fr, fn = chunks[ci]; ci += 1
        if nd > landed:
            a(f's_waitcnt vmcnt({issued-1-nd})'); landed = nd
        fn(); freed.update(fr)
    for i in range(R, 128):
        while (i - R) not in freed: run_chunk(i)
        if i - D > landed:
            a(f's_waitcnt vmcnt({D-1})'); landed = i - D
        issue(i)
        n = 0
        while ci < len(chunks) and chunks[ci][0] <= landed and n < P['budget']:
            run_chunk(i + 1); n += 1
    def tail_addr():
        a(f'v_lshrrev_b32 v3, 5, v0\nv_lshlrev_b32 v3, 9, v3\nv_bfe_u32 v4, v0, 4, 1\nv_lshl_add_u32 v3, v4, 10, v3')
        a(f'v_and_b32 v4, 15, v0\nv_lshl_add_u32 v3, v4, 5, v3\ns_lshl_b32 s37, s30, 11\ns_add_u32 s37, s37, {L_PART}\nv_add_u32 v3, s37, v3')
        a(f's_lshl_b32 s37, s30, 8\ns_add_u32 s37, s37, {L_PART}\nv_lshl_add_u32 v4, v0, 2, s37')
        a(f's_lshr_b32 s37, s30, 2\ns_lshl_b32 s37, s37, 5\ns_add_u32 s37, s37, {L_F}\nv_mov_b32 v5, s37')
        a(f'v_lshrrev_b32 v6, 1, v0\nv_lshlrev_b32 v6, 2, v6')
        a(f's_lshl_b32 s60, s38, 10\ns_lshl_b32 s37, s30, 7\ns_add_u32 s60, s60, s37\ns_add_u32 s60, s60, {OBUF}')
        a(f'v_bfe_u32 v7, v0, 2, 2\nv_lshlrev_b32 v7, 10, v7\nv_and_b32 v1, 3, v0\nv_lshl_add_u32 v7, v1, 6, v7\nv_lshrrev_b32 v1, 4, v0\nv_lshl_add_u32 v7, v1, 4, v7')
        a(f's_lshl_b32 s61, s33, 15\ns_lshl_b32 s37, s30, 12\ns_add_u32 s61, s61, s37\ns_add_u32 s61, s61, {OBUF}')
        a(f'v_and_b32 v2, 15, v0\nv_lshlrev_b32 v2, 3, v2\nv_lshl_add_u32 v2, v1, 8, v2\ns_lshl_b32 s37, s30, 14\nv_add_u32 v2, s37, v2')
    tail_addr()
    while ci < len(chunks): run_chunk(128)
    stamp(a, P, 'Vlast')
    a(f'ds_write_b128 v3, v[{ACC}:{ACC+3}]\nds_write_b128 v3, v[{ACC+4}:{ACC+7}] offset:16\ns_waitcnt lgkmcnt(0)\ns_barrier')
    stamp(a, P, 'B2')
    for w in range(4): a(f'ds_read2st64_b32 v[{16+2*w}:{17+2*w}], v4 offset0:{16*w} offset1:{16*w+8}')
    a('ds_read_b128 v[24:27], v5\nds_read_b128 v[28:31], v5 offset:16\ns_waitcnt lgkmcnt(0)')
    a('v_mul_f32 v32, v16, v24\nv_mul_f32 v33, v17, v25')
    for w in range(2, 8): a(f'v_fmac_f32 v{32+(w&1)}, v{16+w}, v{24+w}')
    a('v_add_f32 v32, v32, v33')
    a('v_mov_b32_dpp v33, v32 quad_perm:[1,0,3,2] row_mask:0xf bank_mask:0xf')
    a('v_cvt_pk_bf16_f32 v32, v32, v33\nv_min_u32 v32, -2, v32')
    a('s_mov_b32 exec_lo, 0x55555555\ns_mov_b32 exec_hi, 0x55555555')
    a('buffer_store_dword v32, v6, s[52:55], s60 offen sc1\ns_mov_b64 exec, -1')
    stamp(a, P, 'ost')
    a('s_cmp_lt_u32 s32, 28\ns_cbranch_scc1 L_final')
    if P['diag']:
        a('s_cmp_lg_u32 s30, 0\ns_cbranch_scc1 L_end')
        stamp(a, P, 'end')
        stamp_store(a, P, stamp_items(P, S_PTS), hw=True)
    a('s_endpgm')
    a('L_final:')
    BF, AF, DF = 56, 120, 136
    a(f's_mov_b32 s86, {P["spin"]}')
    for blk in range(4): a(f'buffer_load_dwordx4 v[{AF+4*blk}:{AF+4*blk+3}], v7, s[52:55], s61 offen offset:{blk*256} sc1')
    for blk in range(4):
        for jj in range(4):
            b = BF + 16 * blk + 4 * jj; o = blk * 4096 + jj * 1024
            a(f'ds_read_b64_tr_b16 v[{b}:{b+1}], v2 offset:{o}\nds_read_b64_tr_b16 v[{b+2}:{b+3}], v2 offset:{o+128}')
    a(f'v_and_b32 v3, 15, v0\nv_mul_u32_u24 v3, 144, v3\nv_lshl_add_u32 v3, v1, 2, v3\ns_lshl_b32 s37, s30, 4\ns_add_u32 s37, s37, {L_FIN}\nv_add_u32 v3, s37, v3')
    a('s_branch L_gchk')
    a('L_gpoll:')
    a('s_sleep 1')
    for blk in range(4): a(f'buffer_load_dwordx4 v[{AF+4*blk}:{AF+4*blk+3}], v7, s[52:55], s61 offen offset:{blk*256} sc1')
    a('L_gchk:')
    a('s_waitcnt vmcnt(0)')
    a(f'v_max3_u32 v16, v{AF}, v{AF+1}, v{AF+2}\nv_max3_u32 v17, v{AF+3}, v{AF+4}, v{AF+5}\nv_max3_u32 v18, v{AF+6}, v{AF+7}, v{AF+8}')
    a(f'v_max3_u32 v16, v16, v{AF+9}, v{AF+10}\nv_max3_u32 v17, v17, v{AF+11}, v{AF+12}\nv_max3_u32 v18, v18, v{AF+13}, v{AF+14}')
    a(f'v_max3_u32 v16, v16, v17, v{AF+15}\nv_max_u32 v16, v16, v18\nv_cmp_eq_u32 vcc, -1, v16')
    a('s_sub_u32 s86, s86, 1\ns_cbranch_scc1 L_gdone\ns_cbranch_vccnz L_gpoll')
    a('L_gdone:')
    stamp(a, P, 'gok')
    a('s_waitcnt lgkmcnt(0)')
    for blk in range(4):
        for jj in range(4):
            b = BF + 16 * blk + 4 * jj; d = DF + 4 * jj
            c = '0' if blk == 0 else f'v[{d}:{d+3}]'
            a(f'v_mfma_f32_16x16x32_bf16 v[{d}:{d+3}], v[{AF+4*blk}:{AF+4*blk+3}], v[{b}:{b+3}], {c}')
    a(f'v_add_f32 v16, v{DF}, v{DF+5}\nv_add_f32 v17, v{DF+10}, v{DF+15}\nv_add_f32 v16, v16, v17')
    a('ds_write_b32 v3, v16')
    a(f'v_lshrrev_b32 v4, 2, v0\nv_mul_u32_u24 v5, 144, v4\nv_and_b32 v6, 3, v0\nv_lshl_add_u32 v5, v6, 5, v5\nv_add_u32 v5, {L_FIN}, v5')
    a(f'v_lshlrev_b32 v6, 3, v4\nv_add_u32 v6, {L_XB}, v6')
    a('s_mul_i32 s37, s33, 896\ns_lshl_b32 s39, s34, 5\ns_add_u32 s37, s37, s39\nv_lshl_add_u32 v4, v4, 1, s37')
    srd(a, 44, 24, None, 7168)
    a('s_waitcnt lgkmcnt(0)\ns_barrier')
    stamp(a, P, 'B3')
    a('s_cmp_lg_u32 s30, 0\ns_cbranch_scc1 L_end')
    a('ds_read_b128 v[16:19], v5\nds_read_b128 v[20:23], v5 offset:16\nds_read_b64 v[24:25], v6\ns_waitcnt lgkmcnt(0)')
    a('v_add_f32 v16, v16, v17\nv_add_f32 v18, v18, v19\nv_add_f32 v20, v20, v21\nv_add_f32 v22, v22, v23')
    a('v_add_f32 v16, v16, v18\nv_add_f32 v20, v20, v22\nv_add_f32 v16, v16, v20')
    a('v_add_f32_dpp v16, v16, v16 quad_perm:[1,0,3,2] row_mask:0xf bank_mask:0xf')
    a('v_add_f32_dpp v16, v16, v16 quad_perm:[2,3,0,1] row_mask:0xf bank_mask:0xf')
    rnd_bf16(a, 16)
    a('v_add_f32 v16, v24, v16'); rnd_bf16(a, 16)
    a('v_add_f32 v16, v16, v25\nv_cvt_pk_bf16_f32 v16, v16, v16')
    a('s_mov_b32 exec_lo, 0x11111111\ns_mov_b32 exec_hi, 0x11111111')
    a('buffer_store_short v16, v4, s[44:47], 0 offen')
    if P['diag']:
        a('s_mov_b64 exec, -1\ns_waitcnt vmcnt(0)')
        stamp(a, P, 'end')
        stamp_store(a, P, stamp_items(P, S_PTS), hw=True)
    a('s_endpgm')

def dma_loop(a, P, lab, n, vaddr, sstep, lds0):
    a(f's_mov_b32 s36, 0\ns_mov_b32 s62, {lds0}\ns_mov_b32 s63, {n}')
    a(f'{lab}:')
    a(f's_mov_b32 m0, s62\ns_waitcnt vmcnt({P["DH"]-1})')
    a(f'buffer_load_dwordx4 v{vaddr}, s[56:59], s36 offen {P["wpol"]} lds')
    a(f's_add_u32 s36, s36, {sstep}\ns_add_u32 s62, s62, 1024\ns_sub_u32 s63, s63, 1\ns_cmp_lg_u32 s63, 0\ns_cbranch_scc1 {lab}')

def helper(a, P):
    a('L_helper:')
    stamp(a, P, 'hstart')
    a('v_lshrrev_b32 v1, 1, v0\nv_lshlrev_b32 v1, 13, v1\nv_and_b32 v2, 1, v0\nv_lshl_add_u32 v1, v2, 4, v1')
    a('s_lshl_b32 s37, s31, 5\ns_add_u32 s37, s37, s32\ns_lshl_b32 s37, s37, 5')
    a(f's_sub_u32 s39, {448*8192}, s37')
    a('s_lshl_b32 s38, s33, 5\ns_add_u32 s38, s38, s34')
    a('s_waitcnt lgkmcnt(0)')
    a('s_load_dwordx2 s[84:85], s[28:29], 0')
    srd(a, 56, 10, 's37', 's39')
    for i in range(14):
        a(f's_mov_b32 m0, {L_WQ+i*1024}\ns_mov_b32 s36, {i*262144}')
        a(f'buffer_load_dwordx4 v1, s[56:59], s36 offen {P["wpol"]} lds')
    srd(a, 52, 28, None, WS_USED)
    a('v_mov_b32 v4, -1\nv_mov_b32 v5, -1\nv_mov_b32 v6, -1\nv_mov_b32 v7, -1\nv_lshlrev_b32 v2, 4, v0')
    a(f's_lshl_b32 s37, s38, 10\ns_add_u32 s37, s37, {OBUF}\nbuffer_store_dwordx4 v[4:7], v2, s[52:55], s37 offen sc1')
    a(f'v_lshlrev_b32 v3, 3, v0\nv_add_u32 v3, {L_ML}, v3\ns_mov_b64 exec, 0xffff\nds_write_b64 v3, v[4:5]\ns_mov_b64 exec, -1')
    a(f'v_and_b32 v8, 7, v0\nv_mul_u32_u24 v8, {XSTR}, v8\nv_lshrrev_b32 v9, 4, v0\nv_lshl_add_u32 v8, v9, 4, v8')
    a(f'v_add_u32 v11, {L_XN}, v8')
    a(f'v_and_b32 v10, 15, v0\nv_lshlrev_b32 v12, 3, v10\nv_lshl_add_u32 v12, v9, 8, v12')
    a(f'v_lshlrev_b32 v13, 14, v10\nv_lshl_add_u32 v13, v9, 4, v13\nv_mov_b32 v14, {hex(OOB)}\nv_cmp_gt_u32 vcc, 8, v10\nv_cndmask_b32 v13, v14, v13, vcc')
    a(f's_lshl_b32 s60, s31, 11\ns_lshl_b32 s37, s32, 6\ns_add_u32 s60, s60, s37\ns_add_u32 s60, s60, {QBUF}')
    a(f's_lshl_b32 s61, s33, 3\ns_lshr_b32 s37, s34, 2\ns_add_u32 s61, s61, s37\ns_lshl_b32 s61, s61, 11\ns_add_u32 s61, s61, {QBUF}')
    a(f's_mov_b32 s83, {hex(f2u(C_EXP))}')
    a('s_waitcnt lgkmcnt(0)')
    a('s_add_u32 s84, s84, 0x9E3779B9\ns_addc_u32 s85, s85, 0x7F4A7C15')
    a('s_barrier')
    stamp(a, P, 'hB0')
    XF, WF, DQ = 16, 72, 128
    for ks in range(4): a(f'ds_read_b128 v[{XF+4*ks}:{XF+4*ks+3}], v11 offset:{ks*64}')
    a('s_waitcnt vmcnt(1)')
    stamp(a, P, 'wqland')
    def rd(ks):
        if ks >= 4: a(f'ds_read_b128 v[{XF+4*ks}:{XF+4*ks+3}], v11 offset:{ks*64}')
        a(f'ds_read_b64_tr_b16 v[{WF+4*ks}:{WF+4*ks+1}], v12 offset:{L_WQ+ks*1024}')
        a(f'ds_read_b64_tr_b16 v[{WF+4*ks+2}:{WF+4*ks+3}], v12 offset:{L_WQ+ks*1024+128}')
    for ks in range(4): rd(ks)
    for ks in range(14):
        if ks + 4 < 14: rd(ks + 4)
        later = sum((3 if k >= 4 else 2) for k in range(ks + 1, min(ks + 5, 14)))
        a(f's_waitcnt lgkmcnt({later})')
        c = '0' if ks == 0 else f'v[{DQ}:{DQ+3}]'
        a(f'v_mfma_f32_16x16x32_bf16 v[{DQ}:{DQ+3}], v[{WF+4*ks}:{WF+4*ks+3}], v[{XF+4*ks}:{XF+4*ks+3}], {c}')
    a(f'v_mov_b32 v6, s84\nv_mov_b32 v7, s85')
    a(f'v_cvt_pk_bf16_f32 v4, v{DQ}, v{DQ+1}\nv_cvt_pk_bf16_f32 v5, v{DQ+2}, v{DQ+3}')
    a('buffer_store_dwordx4 v[4:7], v13, s[52:55], s60 offen sc1')
    stamp(a, P, 'qpub')
    a(f's_mov_b32 s86, {P["spin"]}\nv_lshlrev_b32 v3, 3, v0\nv_add_u32 v3, {L_Q}, v3')
    a('L_qpoll:')
    a('buffer_load_dwordx4 v[16:19], v2, s[52:55], s61 offen sc1\nbuffer_load_dwordx4 v[20:23], v2, s[52:55], s61 offen offset:1024 sc1')
    a('s_waitcnt vmcnt(0)')
    a('v_cmp_ne_u64 vcc, s[84:85], v[18:19]\nv_cmp_ne_u64 s[62:63], s[84:85], v[22:23]\ns_or_b64 vcc, vcc, s[62:63]')
    a('s_sub_u32 s86, s86, 1\ns_cbranch_scc1 L_qdone\ns_cbranch_vccnz L_qpoll')
    a('L_qdone:')
    stamp(a, P, 'qok')
    a('ds_write_b64 v3, v[16:17]\nds_write_b64 v3, v[20:21] offset:512\ns_waitcnt lgkmcnt(0)\ns_barrier')
    stamp(a, P, 'B1')
    a('s_cmp_lt_u32 s32, 28\ns_cbranch_scc0 L_mlp')
    a(f's_lshl_b32 s37, s34, 5\ns_sub_u32 s39, {4096*896}, s37')
    srd(a, 56, 12, 's37', 's39')
    a('v_lshrrev_b32 v1, 1, v0\nv_mul_u32_u24 v1, 896, v1\nv_and_b32 v3, 1, v0\nv_lshl_add_u32 v1, v3, 4, v1')
    dma_loop(a, P, 'L_wo', 128, 1, 32 * 896, L_WO)
    a('s_branch L_ml')
    a('L_mlp:')
    a('s_sub_u32 s59, s32, 28\ns_lshl_b32 s87, s59, 3\ns_add_u32 s87, s87, s31')
    a('s_cmp_lt_u32 s87, 28\ns_cbranch_scc0 L_ml')
    YF = 16
    a(f'v_add_u32 v11, {L_Y}, v8')
    for ks in range(14): a(f'ds_read_b128 v[{YF+4*ks}:{YF+4*ks+3}], v11 offset:{ks*64}')
    a('s_lshl_b32 s37, s87, 7')
    srd(a, 56, 18, 's37', 128)
    a('v_lshlrev_b32 v3, 3, v9')
    B1R = 72
    for t in range(4): a(f'buffer_load_dwordx2 v[{B1R+2*t}:{B1R+2*t+1}], v3, s[56:59], 0 offen offset:{t*32}')
    a(f's_sub_u32 s39, {448*3584}, s37')
    srd(a, 56, 16, 's37', 's39')
    a('v_lshrrev_b32 v1, 3, v0\nv_mul_u32_u24 v1, 3584, v1\nv_and_b32 v3, 7, v0\nv_lshl_add_u32 v1, v3, 4, v1')
    dma_loop(a, P, 'L_w1', 56, 1, 8 * 3584, L_W1)
    a('s_mul_i32 s37, s87, 57344')
    srd(a, 56, 20, 's37', 57344)
    dma_loop(a, P, 'L_w2', 56, 2, 1024, L_W2)
    a(f'v_bfe_u32 v3, v0, 2, 2\nv_lshl_add_u32 v4, v9, 3, v3\nv_lshlrev_b32 v4, 7, v4\nv_and_b32 v5, 3, v0\nv_lshl_add_u32 v4, v5, 3, v4\nv_add_u32 v4, {L_W1}, v4')
    a(f'v_lshl_add_u32 v6, v9, 2, v3\nv_mul_u32_u24 v6, 896, v6\nv_lshl_add_u32 v6, v5, 3, v6\nv_add_u32 v6, {L_W2}, v6')
    a(f'v_mul_u32_u24 v13, 1792, v10\nv_lshl_add_u32 v13, v9, 4, v13\nv_cmp_gt_u32 vcc, 8, v10\nv_cndmask_b32 v13, v14, v13, vcc')
    TA, D1 = 80, 112
    seq = [(t, ks) for t in range(4) for ks in range(14)]
    def rd1(n):
        t, ks = seq[n]; r = TA + 4 * (n % 8); o = ks * 4096 + t * 32
        a(f'ds_read_b64_tr_b16 v[{r}:{r+1}], v4 offset:{o}\nds_read_b64_tr_b16 v[{r+2}:{r+3}], v4 offset:{o+512}')
    a('s_waitcnt lgkmcnt(0)')
    for n in range(6): rd1(n)
    for n, (t, ks) in enumerate(seq):
        if n + 6 < len(seq): rd1(n + 6)
        a(f's_waitcnt lgkmcnt({2*min(6, len(seq)-1-n)})')
        r = TA + 4 * (n % 8); d = D1 + 4 * t
        c = '0' if ks == 0 else f'v[{d}:{d+3}]'
        a(f'v_mfma_f32_16x16x32_bf16 v[{d}:{d+3}], v[{r}:{r+3}], v[{YF+4*ks}:{YF+4*ks+3}], {c}')
    BU = 16; HF = 64
    unpack(a, B1R, BU, 8)
    k0 = 2 * 0.7978845608028654 * math.log2(math.e); k1 = k0 * 0.044715
    a(f's_mov_b32 s62, {hex(f2u(-k1))}\nv_mov_b32 v15, {hex(f2u(-k0))}')
    for i in range(8): a(f'v_cvt_pk_bf16_f32 v{32+i}, v{D1+2*i}, v{D1+2*i+1}')
    unpack(a, 32, D1, 8)
    for i in range(16): a(f'v_add_f32 v{D1+i}, v{D1+i}, v{BU+i}')
    for i in range(8): a(f'v_cvt_pk_bf16_f32 v{32+i}, v{D1+2*i}, v{D1+2*i+1}')
    unpack(a, 32, D1, 8)
    for i in range(16): a(f'v_mul_f32 v{BU+i}, v{D1+i}, v{D1+i}')
    for i in range(16): a(f'v_fma_f32 v{BU+i}, v{BU+i}, s62, v15')
    for i in range(16): a(f'v_mul_f32 v{BU+i}, v{BU+i}, v{D1+i}')
    for i in range(16): a(f'v_exp_f32 v{BU+i}, v{BU+i}')
    for i in range(16): a(f'v_add_f32 v{BU+i}, 1.0, v{BU+i}')
    for i in range(16): a(f'v_rcp_f32 v{BU+i}, v{BU+i}')
    for i in range(16): a(f'v_mul_f32 v{D1+i}, v{D1+i}, v{BU+i}')
    for i in range(8): a(f'v_cvt_pk_bf16_f32 v{HF+i}, v{D1+2*i}, v{D1+2*i+1}')
    a(f's_mul_i32 s60, s87, 14336\ns_add_u32 s60, s60, {MBUF}\ns_waitcnt vmcnt(0)')
    seq2 = [(nt, k) for nt in range(28) for k in range(2)]
    def rd2(n):
        nt, k = seq2[n]; r = TA + 4 * (n % 8); o = k * 32 * 896 + nt * 32
        a(f'ds_read_b64_tr_b16 v[{r}:{r+1}], v6 offset:{o}\nds_read_b64_tr_b16 v[{r+2}:{r+3}], v6 offset:{o+14336}')
    for n in range(6): rd2(n)
    D2 = [112, 116, 120, 124]
    def st2(nt):
        d = D2[nt % 4]
        a(f'buffer_store_dwordx4 v[{d}:{d+3}], v13, s[52:55], s60 offen offset:{nt*64} sc1')
    for n, (nt, k) in enumerate(seq2):
        if n + 6 < len(seq2): rd2(n + 6)
        a(f's_waitcnt lgkmcnt({2*min(6, len(seq2)-1-n)})')
        r = TA + 4 * (n % 8); d = D2[nt % 4]
        c = '0' if k == 0 else f'v[{d}:{d+3}]'
        a(f'v_mfma_f32_16x16x32_bf16 v[{d}:{d+3}], v[{r}:{r+3}], v[{HF+4*k}:{HF+4*k+3}], {c}')
        if k == 1 and nt >= 2: st2(nt - 2)
    st2(26); st2(27)
    a(f'v_mov_b32 v6, s84\nv_mov_b32 v7, s85\nv_mov_b32 v4, 0\ns_lshl_b32 s37, s87, 4\ns_add_u32 s37, s37, {MFLAG}')
    a('s_waitcnt vmcnt(0)\ns_mov_b64 exec, 1\nbuffer_store_dwordx2 v[6:7], v4, s[52:55], s37 offen sc1\ns_mov_b64 exec, -1')
    a('L_ml:')
    stamp(a, P, 'wodone')
    a(f'v_and_b32 v3, 15, v0\nv_lshlrev_b32 v3, 3, v3\nv_add_u32 v3, {L_ML}, v3\ns_mov_b32 s86, {P["spin"]*16}')
    a('L_mlw:')
    a('s_sleep 4\nds_read_b64 v[16:17], v3\ns_waitcnt lgkmcnt(0)\nv_cmp_eq_u32 vcc, -1, v16')
    a('s_sub_u32 s86, s86, 1\ns_cbranch_scc1 L_mlwd\ns_cbranch_vccnz L_mlw')
    a('L_mlwd:')
    d8 = ('quad_perm:[1,0,3,2]', 'quad_perm:[2,3,0,1]', 'row_half_mirror')
    a('v_mov_b32 v18, v16')
    for m in d8: a(f'v_max_f32_dpp v18, v18, v18 {m} row_mask:0xf bank_mask:0xf')
    a('v_sub_f32 v19, v16, v18\nv_mul_f32 v19, s83, v19\nv_exp_f32 v19, v19\nv_mul_f32 v19, v19, v17')
    for m in d8: a(f'v_add_f32_dpp v19, v19, v19 {m} row_mask:0xf bank_mask:0xf')
    a('v_mov_b32 v20, s84\nv_mov_b32 v21, s85\nv_lshlrev_b32 v4, 6, v0')
    a(f's_lshl_b32 s61, s33, 10\ns_add_u32 s61, s61, {MLBUF}\ns_lshl_b32 s37, s34, 4\ns_add_u32 s37, s37, s61')
    a('s_waitcnt vmcnt(0)\ns_mov_b64 exec, 0x101\nbuffer_store_dwordx4 v[18:21], v4, s[52:55], s37 offen sc1\ns_mov_b64 exec, -1')
    a(f's_mov_b32 s86, {P["spin"]}')
    stamp(a, P, 'mlpub')
    a('L_mlp2:')
    a('s_sleep 2\nbuffer_load_dwordx4 v[24:27], v2, s[52:55], s61 offen sc1\ns_waitcnt vmcnt(0)')
    a('v_cmp_ne_u64 vcc, s[84:85], v[26:27]')
    a('s_sub_u32 s86, s86, 1\ns_cbranch_scc1 L_mlp2d\ns_cbranch_vccnz L_mlp2')
    a('L_mlp2d:')
    stamp(a, P, 'mlok')
    a('v_mov_b32 v28, v24')
    for m in d8[:2]: a(f'v_max_f32_dpp v28, v28, v28 {m} row_mask:0xf bank_mask:0xf')
    a('v_sub_f32 v29, v24, v28\nv_mul_f32 v29, s83, v29\nv_exp_f32 v29, v29\nv_mul_f32 v29, v29, v25')
    for m in d8[:2]: a(f'v_add_f32_dpp v29, v29, v29 {m} row_mask:0xf bank_mask:0xf')
    a('s_and_b32 s37, s34, 28\ns_add_u32 s39, s37, 32')
    a('v_readlane_b32 s62, v28, s37\nv_readlane_b32 s63, v29, s37\nv_readlane_b32 s60, v28, s39\nv_readlane_b32 s59, v29, s39')
    a('v_mov_b32 v30, s62\nv_mov_b32 v31, s63\nv_mov_b32 v32, s60\nv_mov_b32 v33, s59')
    a('s_mov_b32 s62, 0xff00ff00\ns_mov_b32 s63, 0xff00ff00')
    a('v_cndmask_b32 v30, v30, v32, s[62:63]\nv_cndmask_b32 v31, v31, v33, s[62:63]')
    a('v_sub_f32 v30, v16, v30\nv_mul_f32 v30, s83, v30\nv_exp_f32 v30, v30\nv_rcp_f32 v31, v31\nv_mul_f32 v30, v30, v31')
    a(f'v_lshlrev_b32 v3, 2, v0\nv_add_u32 v3, {L_F}, v3\ns_mov_b64 exec, 0xffff\nds_write_b32 v3, v30\ns_mov_b64 exec, -1')
    a('s_cmp_lg_u32 s2, 0\ns_cbranch_scc1 L_noep')
    a('v_mov_b32 v4, 0\ns_mov_b64 exec, 1\nbuffer_store_dwordx2 v[20:21], v4, s[52:55], 0 offen sc1\ns_mov_b64 exec, -1')
    a('L_noep:')
    a('s_cmp_lt_u32 s32, 28\ns_cbranch_scc0 L_hend')
    a(f'v_cmp_gt_u32 vcc, 28, v0\nv_mov_b32 v3, 0\nv_cndmask_b32 v3, v3, v2, vcc\ns_mov_b32 s86, {P["spin"]}\ns_mov_b32 s37, {MFLAG}')
    a('L_mf:')
    a('buffer_load_dwordx2 v[16:17], v3, s[52:55], s37 offen sc1\ns_waitcnt vmcnt(0)\nv_cmp_ne_u64 vcc, s[84:85], v[16:17]')
    a('s_sub_u32 s86, s86, 1\ns_cbranch_scc1 L_mfd\ns_cbranch_vccz L_mfd\ns_sleep 4\ns_branch L_mf')
    a('L_mfd:')
    a('v_lshrrev_b32 v3, 2, v0\nv_mul_u32_u24 v3, 14336, v3\nv_and_b32 v5, 3, v0\nv_lshl_add_u32 v3, v5, 4, v3')
    a(f'v_add_u32 v4, {16*14336}, v3\nv_cmp_gt_u32 vcc, 48, v0\nv_cndmask_b32 v4, v14, v4, vcc')
    a(f's_mul_i32 s37, s33, 1792\ns_lshl_b32 s39, s34, 6\ns_add_u32 s37, s37, s39\ns_add_u32 s37, s37, {MBUF}')
    a('buffer_load_dwordx4 v[16:19], v3, s[52:55], s37 offen sc1\nbuffer_load_dwordx4 v[20:23], v4, s[52:55], s37 offen sc1')
    a('v_lshlrev_b32 v6, 3, v5\ns_lshl_b32 s39, s34, 5')
    srd(a, 56, 22, None, 896)
    a('buffer_load_dwordx2 v[24:25], v6, s[56:59], s39 offen')
    srd(a, 48, 4, None, 7168)
    a('s_mul_i32 s37, s33, 896\ns_add_u32 s37, s37, s39\nbuffer_load_dwordx2 v[26:27], v6, s[48:51], s37 offen')
    a('s_waitcnt vmcnt(0)')
    for i in range(4): a(f'v_add_f32 v{16+i}, v{16+i}, v{20+i}')
    for m in ('row_ror:4', 'row_ror:8'):
        for i in range(4): a(f'v_add_f32_dpp v{16+i}, v{16+i}, v{16+i} {m} row_mask:0xf bank_mask:0xf')
    for i in range(4): xgroup(a, 'v_add_f32', 16 + i, 20 + i)
    unpack(a, 24, 28, 2)
    a('v_cvt_pk_bf16_f32 v20, v16, v17\nv_cvt_pk_bf16_f32 v21, v18, v19')
    unpack(a, 20, 16, 2)
    for i in range(4): a(f'v_add_f32 v{16+i}, v{16+i}, v{28+i}')
    a('v_cvt_pk_bf16_f32 v20, v16, v17\nv_cvt_pk_bf16_f32 v21, v18, v19')
    a('v_lshlrev_b32 v32, 16, v26\nv_lshlrev_b32 v33, 16, v20\nv_and_b32 v34, 0xffff0000, v26\nv_and_b32 v35, 0xffff0000, v20')
    a('v_lshlrev_b32 v36, 16, v27\nv_lshlrev_b32 v37, 16, v21\nv_and_b32 v38, 0xffff0000, v27\nv_and_b32 v39, 0xffff0000, v21')
    a(f'v_lshlrev_b32 v3, 5, v0\nv_add_u32 v3, {L_XB}, v3\ns_mov_b64 exec, 0xf')
    a('ds_write_b128 v3, v[32:35]\nds_write_b128 v3, v[36:39] offset:16\ns_mov_b64 exec, -1')
    a('L_hend:')
    a('s_waitcnt vmcnt(0) lgkmcnt(0)')
    stamp(a, P, 'hend')
    stamp_store(a, P, stamp_items(P, H_PTS))
    a('s_endpgm')

def body(P):
    a = Asm()
    a('s_cmp_ge_u32 s2, 256\ns_cbranch_scc1 L_end')
    a('s_load_dwordx16 s[4:19], s[0:1], 0\ns_load_dwordx8 s[20:27], s[0:1], 64\ns_load_dwordx2 s[28:29], s[0:1], 96')
    a('v_lshrrev_b32 v1, 6, v0\nv_and_b32 v0, 63, v0\nv_readfirstlane_b32 s30, v1')
    a('s_and_b32 s31, s2, 7\ns_lshr_b32 s32, s2, 3\ns_mul_i32 s37, s31, 28\ns_add_u32 s37, s37, s32')
    a('s_and_b32 s33, s37, 7\ns_lshr_b32 s34, s37, 3\ns_cmp_lt_u32 s32, 28\ns_cselect_b32 s33, s33, s31\ns_cselect_b32 s34, s34, s32')
    stamp_init(a, P)
    a('s_cmp_eq_u32 s30, 8\ns_cbranch_scc1 L_helper')
    streamer(a, P)
    helper(a, P)
    a('L_end:\ns_endpgm')
    txt, n = a.text()
    return txt, n

def vgprs(P): return max(56 + 4 * P['R'], 152)

def kernel(P):
    txt, n = body(P)
    nm = P['name']
    txt = txt.replace('L_', f'L{nm[-24:]}_') if P.get('uniq') else txt
    return txt

def final_file(P):
    ref = open(f'cdna_kernels/{NAME}.s.ref').read()
    head = ref[:ref.index('; Override launch')]
    nm = P['name']; vg = vgprs(P)
    return head + f'''; Single launch: 256 workgroups x (8 streaming waves + 1 helper wave). Generated by gen/gen.py.
; @launch grid=(256,1,1) block=(576,1,1) lds={LDS_BYTES}
.amdgcn_target "amdgcn-amd-amdhsa--gfx950"
.text
.globl {nm}
.p2align 8
.type {nm},@function
{nm}:
{kernel(P)}
.section .rodata,"a"
.p2align 6
.amdhsa_kernel {nm}
  .amdhsa_next_free_vgpr {vg}
  .amdhsa_next_free_sgpr 102
  .amdhsa_accum_offset {(vg+3)//4*4}
  .amdhsa_group_segment_fixed_size 0
  .amdhsa_kernarg_size 104
  .amdhsa_user_sgpr_count 2
  .amdhsa_user_sgpr_kernarg_segment_ptr 1
  .amdhsa_system_sgpr_workgroup_id_x 1
.end_amdhsa_kernel
'''

if __name__ == '__main__':
    P = dict(DEF)
    out = f'cdna_kernels/{NAME}.s'
    for kv in sys.argv[1:]:
        k, v = kv.split('=', 1)
        if k == 'out': out = v
        else: P[k] = type(DEF[k])(v) if not isinstance(DEF[k], bool) else v == '1'
    open(out, 'w').write(final_file(P))
    print('wrote', out)
```

```python
import sys, math, struct
from asmlib import Asm

NAME = 'parallel_sum__gqa_block_cached__mixer_channel_mlp__decode'
def f2u(x): return struct.unpack('<I', struct.pack('<f', x))[0]

QBUF, MLBUF, MFLAG, OBUF, MBUF, WS_USED = 0x1000, 0x21000, 0x23000, 0x24000, 0x64000, 0xC6000
STAMP_OFF = 536870912 - (1 << 20)
L_WO = 0; L_WQ = 0; L_W1 = 16384; L_W2 = 73728
L_PART = 131072; L_XN = 131072
L_Y = 147456; XSTR = 1056
L_Q = L_Y + 8448
L_FIN = L_Q + 1024
L_ML = L_FIN + 2304
L_F = L_ML + 128
L_XB = L_F + 64
LDS_BYTES = L_XB + 128
OOB = 0x7F000000
C_EXP = math.log2(math.e) / 16.0

DEF = dict(R=24, D=4, D0=6, DH=8, pol='nt', wpol='nt', xpol='', diag=False, budget=2, name=NAME + '_kernel', spin=1 << 16, hold=0, pts='start+qpub+B1+Kdone+hend+B2+end')

def srd(a, n, base, off, size):
    if off is None:
        a(f's_mov_b32 s{n}, s{base}\ns_mov_b32 s{n+1}, s{base+1}')
    else:
        a(f's_add_u32 s{n}, s{base}, {off}\ns_addc_u32 s{n+1}, s{base+1}, 0')
    a(f's_mov_b32 s{n+2}, {size}\ns_mov_b32 s{n+3}, 0x20000')

def wave_sum(a, v, s):
    for m in ('row_shr:1', 'row_shr:2', 'row_shr:4', 'row_shr:8'):
        a(f'v_add_f32_dpp v{v}, v{v}, v{v} {m} row_mask:0xf bank_mask:0xf')
    a(f'v_add_f32_dpp v{v}, v{v}, v{v} row_bcast:15 row_mask:0xa bank_mask:0xf')
    a(f'v_add_f32_dpp v{v}, v{v}, v{v} row_bcast:31 row_mask:0xc bank_mask:0xf')
    a(f'v_readlane_b32 s{s}, v{v}, 63')

def rnd_bf16(a, v):
    a(f'v_cvt_pk_bf16_f32 v{v}, v{v}, v{v}\nv_and_b32 v{v}, 0xffff0000, v{v}')

def unpack(a, src, dst, n):
    for i in range(n):
        a(f'v_and_b32 v{dst+2*i+1}, 0xffff0000, v{src+i}\nv_lshlrev_b32 v{dst+2*i}, 16, v{src+i}')

def layernorm(a, X, F, T, valid):
    unpack(a, X, F, 4)
    a(f'v_add_f32 v{T}, v{F}, v{F+1}\nv_add_f32 v{T+1}, v{F+2}, v{F+3}')
    a(f'v_add_f32 v{T}, v{T}, v{F+4}\nv_add_f32 v{T+1}, v{T+1}, v{F+5}')
    a(f'v_add_f32 v{T}, v{T}, v{F+6}\nv_add_f32 v{T+1}, v{T+1}, v{F+7}\nv_add_f32 v{T}, v{T}, v{T+1}')
    a(f'v_cndmask_b32 v{T}, 0, v{T}, {valid}')
    wave_sum(a, T, 37)
    a(f'v_mov_b32 v{T}, s37\nv_mul_f32 v{T}, {hex(f2u(1/448))}, v{T}')
    a(f'v_sub_f32 v{T+2}, v{F}, v{T}\nv_mul_f32 v{T+1}, v{T+2}, v{T+2}')
    for i in range(1, 8):
        a(f'v_sub_f32 v{T+2}, v{F+i}, v{T}\nv_fmac_f32 v{T+1}, v{T+2}, v{T+2}')
    a(f'v_cndmask_b32 v{T+1}, 0, v{T+1}, {valid}')
    wave_sum(a, T + 1, 37)
    rnd_bf16(a, T)
    a(f'v_mov_b32 v{T+1}, s37\nv_mul_f32 v{T+1}, {hex(f2u(1/448))}, v{T+1}')
    rnd_bf16(a, T + 1)
    a(f'v_add_f32 v{T+1}, {hex(f2u(1e-5))}, v{T+1}')
    rnd_bf16(a, T + 1)
    a(f'v_sqrt_f32 v{T+1}, v{T+1}')
    rnd_bf16(a, T + 1)
    a(f'v_rcp_f32 v{T+1}, v{T+1}')
    for i in range(8): a(f'v_sub_f32 v{F+i}, v{F+i}, v{T}')
    for i in range(4): a(f'v_cvt_pk_bf16_f32 v{X+i}, v{F+2*i}, v{F+2*i+1}')
    unpack(a, X, F, 4)
    for i in range(8): a(f'v_mul_f32 v{F+i}, v{F+i}, v{T+1}')
    for i in range(4): a(f'v_cvt_pk_bf16_f32 v{X+i}, v{F+2*i}, v{F+2*i+1}')

def xgroup(a, op, v, t):
    a(f'v_mov_b32 v{t}, v{v}\nv_permlane16_swap_b32 v{v}, v{t}\n{op} v{v}, v{v}, v{t}')
    a(f'v_mov_b32 v{t}, v{v}\nv_permlane32_swap_b32 v{v}, v{t}\n{op} v{v}, v{v}, v{t}')

S_PTS = ['start', 'xland', 'sB0', 'sB1a', 'sB1', 'Kdone', 'Vlast', 'B2', 'ost', 'gok', 'B3', 'end']
H_PTS = ['hstart', 'hB0', 'wqland', 'qpub', 'qp1', 'qok', 'B1', 'wodone', 'mlpub', 'mlok', 'hend']
def pts(P): return P['pts'].split('+') if isinstance(P['pts'], str) else P['pts']
def stamp(a, P, name):
    if P['diag'] and name in pts(P):
        reg = 88 + 2 * pts(P).index(name)
        a(f's_memrealtime s[{reg}:{reg+1}]\ns_waitcnt lgkmcnt(0)')
def stamp_items(P, lst): return [(i, 88 + 2 * i) for i, n in enumerate(pts(P)) if n in lst]
def stamp_init(a, P):
    if P['diag']:
        for i in range(7): a(f's_mov_b64 s[{88+2*i}:{89+2*i}], 0')

def stamp_store(a, P, items, hw=False):
    if not P['diag']: return
    a('s_waitcnt lgkmcnt(0)')
    a(f's_lshl_b32 s37, s2, 6\ns_add_u32 s37, s37, {STAMP_OFF}')
    srd(a, 40, 28, 's37', 64)
    a('s_mov_b64 exec, 1\nv_mov_b32 v1, 0')
    for idx, reg in items:
        a(f'v_mov_b32 v2, s{reg}\nv_mov_b32 v3, s{reg+1}\nbuffer_store_dwordx2 v[2:3], v1, s[40:43], 0 offen offset:{idx*8}')
    if hw:
        a('s_getreg_b32 s38, hwreg(HW_REG_XCC_ID)\ns_getreg_b32 s39, hwreg(HW_REG_HW_ID)')
        a('v_mov_b32 v2, s38\nv_mov_b32 v3, s39\nbuffer_store_dwordx2 v[2:3], v1, s[40:43], 0 offen offset:56')
    a('s_mov_b64 exec, -1')

def streamer(a, P):
    R, D, D0, pol = P['R'], P['D'], P['D0'], P['pol']
    Q, S, DT, RING = 8, 16, 48, 56
    slot = lambda i: RING + 4 * (i % R)
    sl = lambda i: f'v[{slot(i)}:{slot(i)+3}]'
    stamp(a, P, 'start')
    if P['hold']: a('s_memrealtime s[98:99]')
    a('v_and_b32 v1, 3, v0\nv_lshlrev_b32 v1, 4, v1\nv_bfe_u32 v3, v0, 2, 2\nv_lshl_add_u32 v1, v3, 9, v1')
    a('v_lshrrev_b32 v3, 4, v0\nv_lshl_add_u32 v1, v3, 6, v1')
    a('v_and_b32 v2, 15, v0\nv_lshlrev_b32 v2, 4, v2\nv_lshl_add_u32 v2, v3, 9, v2')
    a('s_mul_i32 s37, s30, 896\nv_lshl_add_u32 v3, v0, 4, s37')
    a(f's_mov_b64 s[82:83], 0x00ffffff\ns_lshl_b64 s[82:83], s[82:83], 32\ns_mov_b32 s82, -1')
    a(f'v_mov_b32 v4, {hex(OOB)}\nv_cndmask_b32 v3, v4, v3, s[82:83]')
    a('s_lshl_b32 s38, s33, 5\ns_add_u32 s38, s38, s34')
    a('s_lshl_b32 s37, s38, 19\ns_lshl_b32 s39, s30, 16\ns_add_u32 s37, s37, s39')
    a('s_add_u32 s35, s30, s32\ns_and_b32 s35, s35, 7\ns_lshl_b32 s35, s35, 12')
    a('s_waitcnt lgkmcnt(0)')
    srd(a, 48, 4, None, 7168)
    a(f'buffer_load_dwordx4 v[{S}:{S+3}], v3, s[48:51], 0 offen {P["xpol"]}')
    srd(a, 40, 6, 's37', 65536)
    srd(a, 44, 8, 's37', 65536)
    def issue(i):
        j = i % 64; G, t = j >> 1, j & 1
        if t == 0: a(f's_xor_b32 s36, s35, {G*2048}')
        r, va = ('s[40:43]', 'v1') if i < 64 else ('s[44:47]', 'v2')
        a(f'buffer_load_dwordx4 {sl(i)}, {va}, {r}, s36 offen offset:{t*256} {pol}')
    for i in range(D0): issue(i)
    srd(a, 52, 28, None, WS_USED)
    for e in range(2):
        for r in range(4):
            m16 = (0x11 << r) << (8 * e); m32 = m16 | (m16 << 16)
            a(f's_mov_b32 s{64+2*(4*e+r)}, {hex(m32)}\ns_mov_b32 s{65+2*(4*e+r)}, {hex(m32)}')
    a('s_mov_b32 s80, 0x05040100\ns_mov_b32 s81, 0x07060302')
    a(f's_waitcnt vmcnt({D0})')
    stamp(a, P, 'xland')
    layernorm(a, S, S + 4, S + 12, 's[82:83]')
    a(f's_mul_i32 s37, s30, {XSTR}\nv_lshl_add_u32 v3, v0, 4, s37')
    a(f'v_add_u32 v4, {L_XN}, v3\nds_write_b128 v4, v[{S}:{S+3}]\ns_waitcnt lgkmcnt(0)\ns_barrier')
    stamp(a, P, 'sB0')
    a('s_cmp_lt_u32 s32, 28\ns_cbranch_scc1 L_noln2')
    layernorm(a, S, S + 4, S + 12, 's[82:83]')
    a(f'v_add_u32 v4, {L_Y}, v3\nds_write_b128 v4, v[{S}:{S+3}]\ns_waitcnt lgkmcnt(0)')
    a('L_noln2:')
    for i in range(D0, R):
        a(f's_waitcnt vmcnt({D-1})'); issue(i)
    a('v_bfe_u32 v3, v0, 2, 1\nv_lshlrev_b32 v3, 9, v3\nv_and_b32 v4, 3, v0\nv_lshl_add_u32 v3, v4, 4, v3')
    a(f'v_lshrrev_b32 v4, 4, v0\nv_lshl_add_u32 v3, v4, 6, v3\nv_add_u32 v3, {L_Q}, v3')
    stamp(a, P, 'sB1a')
    a(f's_barrier')
    stamp(a, P, 'sB1')
    a(f'ds_read_b128 v[{Q}:{Q+3}], v3\nds_read_b128 v[{Q+4}:{Q+7}], v3 offset:256')
    a(f'v_mov_b32 v4, 0xff800000\ns_mov_b32 s83, {hex(f2u(C_EXP))}\ns_waitcnt lgkmcnt(0)')
    chunks = []
    def kdpp(G):
        d = DT + 4 * (G & 1)
        a(f'v_mov_b32_dpp v{S+G}, v{d} quad_perm:[0,0,0,0] row_mask:0xf bank_mask:0xf')
        for r in range(1, 4):
            a(f'v_add_f32_dpp v{S+G}, v{d+r}, v{S+G} quad_perm:[{r},{r},{r},{r}] row_mask:0xf bank_mask:0xf')
        if G & 1:
            a(f'v_cvt_pk_bf16_f32 v5, v{S+G-1}, v{S+G}\nv_lshlrev_b32 v{S+G-1}, 16, v5\nv_and_b32 v{S+G}, 0xffff0000, v5')
            a(f'v_max3_f32 v4, v4, v{S+G-1}, v{S+G}')
    def kchunk(G):
        def fn():
            d = DT + 4 * (G & 1)
            a(f'v_mfma_f32_16x16x32_bf16 v[{d}:{d+3}], {sl(2*G)}, v[{Q}:{Q+3}], 0')
            a(f'v_mfma_f32_16x16x32_bf16 v[{d}:{d+3}], {sl(2*G+1)}, v[{Q+4}:{Q+7}], v[{d}:{d+3}]')
            if G: kdpp(G - 1)
        return fn
    for G in range(32): chunks.append((2 * G + 1, [2 * G, 2 * G + 1], kchunk(G)))
    def sm0():
        kdpp(31)
        xgroup(a, 'v_max_f32', 4, 5)
        a('v_mul_f32 v6, s83, v4\nv_mov_b32 v7, 0')
        stamp(a, P, 'Kdone')
    chunks.append((63, [], sm0))
    def sm(k):
        def fn():
            for g in range(8 * k, 8 * k + 8): a(f'v_fma_f32 v{S+g}, v{S+g}, s83, -v6')
            for g in range(8 * k, 8 * k + 8): a(f'v_exp_f32 v{S+g}, v{S+g}')
            for g in range(8 * k, 8 * k + 8): a(f'v_add_f32 v7, v7, v{S+g}')
            for i in range(4 * k, 4 * k + 4): a(f'v_cvt_pk_bf16_f32 v{S+i}, v{S+2*i}, v{S+2*i+1}')
        return fn
    for k in range(4): chunks.append((63, [], sm(k)))
    def sm_end():
        xgroup(a, 'v_add_f32', 7, 5)
        a(f'v_mov_b32 v5, v7\nv_bfe_u32 v3, v0, 2, 1\nv_lshlrev_b32 v3, 6, v3\ns_lshl_b32 s37, s30, 3\ns_add_u32 s37, s37, {L_ML}\nv_add_u32 v3, s37, v3')
        a('s_mov_b64 exec, 0x11\nds_write_b64 v3, v[4:5]\ns_mov_b64 exec, -1')
    chunks.append((63, [], sm_end))
    AT = [32, 36]; PT = [40, 44, 8, 12]; ACC = DT
    cnt = [0, 0]
    def vchunk(T, e, r):
        def fn():
            A = AT[cnt[0] & 1]; cnt[0] += 1
            mk = 64 + 2 * (4 * e + r)
            for p in range(4): a(f'v_cndmask_b32 v{A+p}, 0, v{S+4*T+p}, s[{mk}:{mk+1}]')
            for jj in range(2):
                j = 4 * jj + r; m, hh = j >> 1, j & 1
                B = PT[cnt[1] & 3]; cnt[1] += 1
                for p in range(4):
                    ev = 64 + 16 * T + 2 * (2 * p) + e; od = ev + 2
                    a(f'v_perm_b32 v{B+p}, v{slot(od)+m}, v{slot(ev)+m}, s{80+hh}')
                c = '0' if (T == 0 and e == 0 and r == 0) else f'v[{ACC+4*jj}:{ACC+4*jj+3}]'
                a(f'v_mfma_f32_16x16x32_bf16 v[{ACC+4*jj}:{ACC+4*jj+3}], v[{A}:{A+3}], v[{B}:{B+3}], {c}')
        return fn
    for T in range(4):
        for e in range(2):
            for r in range(4):
                fr = [64 + 16 * T + 2 * g + e for g in range(8)] if r == 3 else []
                chunks.append((64 + 16 * T + 14 + e, fr, vchunk(T, e, r)))
    freed = set(); ci = 0; landed = -1
    def run_chunk(issued):
        nonlocal ci, landed
        nd, fr, fn = chunks[ci]; ci += 1
        if nd > landed:
            a(f's_waitcnt vmcnt({issued-1-nd})'); landed = nd
        fn(); freed.update(fr)
    for i in range(R, 128):
        while (i - R) not in freed: run_chunk(i)
        if i - D > landed:
            a(f's_waitcnt vmcnt({D-1})'); landed = i - D
        issue(i)
        n = 0
        while ci < len(chunks) and chunks[ci][0] <= landed and n < P['budget']:
            run_chunk(i + 1); n += 1
    def tail_addr():
        a(f'v_lshrrev_b32 v3, 5, v0\nv_lshlrev_b32 v3, 9, v3\nv_bfe_u32 v4, v0, 4, 1\nv_lshl_add_u32 v3, v4, 10, v3')
        a(f'v_and_b32 v4, 15, v0\nv_lshl_add_u32 v3, v4, 5, v3\ns_lshl_b32 s37, s30, 11\ns_add_u32 s37, s37, {L_PART}\nv_add_u32 v3, s37, v3')
        a(f's_lshl_b32 s37, s30, 8\ns_add_u32 s37, s37, {L_PART}\nv_lshl_add_u32 v4, v0, 2, s37')
        a(f's_lshr_b32 s37, s30, 2\ns_lshl_b32 s37, s37, 5\ns_add_u32 s37, s37, {L_F}\nv_mov_b32 v5, s37')
        a(f'v_lshrrev_b32 v6, 1, v0\nv_lshlrev_b32 v6, 2, v6')
        a(f's_lshl_b32 s60, s38, 10\ns_lshl_b32 s37, s30, 7\ns_add_u32 s60, s60, s37\ns_add_u32 s60, s60, {OBUF}')
        a(f'v_bfe_u32 v7, v0, 2, 2\nv_lshlrev_b32 v7, 10, v7\nv_and_b32 v1, 3, v0\nv_lshl_add_u32 v7, v1, 6, v7\nv_lshrrev_b32 v1, 4, v0\nv_lshl_add_u32 v7, v1, 4, v7')
        a(f's_lshl_b32 s61, s33, 15\ns_lshl_b32 s37, s30, 12\ns_add_u32 s61, s61, s37\ns_add_u32 s61, s61, {OBUF}')
        a(f'v_and_b32 v2, 15, v0\nv_lshlrev_b32 v2, 3, v2\nv_lshl_add_u32 v2, v1, 8, v2\ns_lshl_b32 s37, s30, 14\nv_add_u32 v2, s37, v2')
    tail_addr()
    while ci < len(chunks): run_chunk(128)
    stamp(a, P, 'Vlast')
    a(f'ds_write_b128 v3, v[{ACC}:{ACC+3}]\nds_write_b128 v3, v[{ACC+4}:{ACC+7}] offset:16\ns_waitcnt lgkmcnt(0)\ns_barrier')
    stamp(a, P, 'B2')
    for w in range(4): a(f'ds_read2st64_b32 v[{16+2*w}:{17+2*w}], v4 offset0:{16*w} offset1:{16*w+8}')
    a('ds_read_b128 v[24:27], v5\nds_read_b128 v[28:31], v5 offset:16\ns_waitcnt lgkmcnt(0)')
    a('v_mul_f32 v32, v16, v24\nv_mul_f32 v33, v17, v25')
    for w in range(2, 8): a(f'v_fmac_f32 v{32+(w&1)}, v{16+w}, v{24+w}')
    a('v_add_f32 v32, v32, v33')
    a('v_mov_b32_dpp v33, v32 quad_perm:[1,0,3,2] row_mask:0xf bank_mask:0xf')
    a('v_cvt_pk_bf16_f32 v32, v32, v33\nv_min_u32 v32, -2, v32')
    a('s_mov_b32 exec_lo, 0x55555555\ns_mov_b32 exec_hi, 0x55555555')
    a('buffer_store_dword v32, v6, s[52:55], s60 offen sc1\ns_mov_b64 exec, -1')
    stamp(a, P, 'ost')
    a('s_cmp_lt_u32 s32, 28\ns_cbranch_scc1 L_final')
    if P['diag']:
        a('s_cmp_lg_u32 s30, 0\ns_cbranch_scc1 L_end')
        stamp(a, P, 'end')
        stamp_store(a, P, stamp_items(P, S_PTS), hw=True)
    a('s_endpgm')
    a('L_final:')
    BF, AF, DF = 56, 120, 136
    a(f's_mov_b32 s86, {P["spin"]}')
    for blk in range(4): a(f'buffer_load_dwordx4 v[{AF+4*blk}:{AF+4*blk+3}], v7, s[52:55], s61 offen offset:{blk*256} sc1')
    for blk in range(4):
        for jj in range(4):
            b = BF + 16 * blk + 4 * jj; o = blk * 4096 + jj * 1024
            a(f'ds_read_b64_tr_b16 v[{b}:{b+1}], v2 offset:{o}\nds_read_b64_tr_b16 v[{b+2}:{b+3}], v2 offset:{o+128}')
    a(f'v_and_b32 v3, 15, v0\nv_mul_u32_u24 v3, 144, v3\nv_lshl_add_u32 v3, v1, 2, v3\ns_lshl_b32 s37, s30, 4\ns_add_u32 s37, s37, {L_FIN}\nv_add_u32 v3, s37, v3')
    a('s_branch L_gchk')
    a('L_gpoll:')
    a('s_sleep 1')
    for blk in range(4): a(f'buffer_load_dwordx4 v[{AF+4*blk}:{AF+4*blk+3}], v7, s[52:55], s61 offen offset:{blk*256} sc1')
    a('L_gchk:')
    a('s_waitcnt vmcnt(0)')
    a(f'v_max3_u32 v16, v{AF}, v{AF+1}, v{AF+2}\nv_max3_u32 v17, v{AF+3}, v{AF+4}, v{AF+5}\nv_max3_u32 v18, v{AF+6}, v{AF+7}, v{AF+8}')
    a(f'v_max3_u32 v16, v16, v{AF+9}, v{AF+10}\nv_max3_u32 v17, v17, v{AF+11}, v{AF+12}\nv_max3_u32 v18, v18, v{AF+13}, v{AF+14}')
    a(f'v_max3_u32 v16, v16, v17, v{AF+15}\nv_max_u32 v16, v16, v18\nv_cmp_eq_u32 vcc, -1, v16')
    a('s_sub_u32 s86, s86, 1\ns_cbranch_scc1 L_gdone\ns_cbranch_vccnz L_gpoll')
    a('L_gdone:')
    stamp(a, P, 'gok')
    a('s_waitcnt lgkmcnt(0)')
    for blk in range(4):
        for jj in range(4):
            b = BF + 16 * blk + 4 * jj; d = DF + 4 * jj
            c = '0' if blk == 0 else f'v[{d}:{d+3}]'
            a(f'v_mfma_f32_16x16x32_bf16 v[{d}:{d+3}], v[{AF+4*blk}:{AF+4*blk+3}], v[{b}:{b+3}], {c}')
    a(f'v_add_f32 v16, v{DF}, v{DF+5}\nv_add_f32 v17, v{DF+10}, v{DF+15}\nv_add_f32 v16, v16, v17')
    a('ds_write_b32 v3, v16')
    a(f'v_lshrrev_b32 v4, 2, v0\nv_mul_u32_u24 v5, 144, v4\nv_and_b32 v6, 3, v0\nv_lshl_add_u32 v5, v6, 5, v5\nv_add_u32 v5, {L_FIN}, v5')
    a(f'v_lshlrev_b32 v6, 3, v4\nv_add_u32 v6, {L_XB}, v6')
    a('s_mul_i32 s37, s33, 896\ns_lshl_b32 s39, s34, 5\ns_add_u32 s37, s37, s39\nv_lshl_add_u32 v4, v4, 1, s37')
    srd(a, 44, 24, None, 7168)
    a('s_waitcnt lgkmcnt(0)\ns_barrier')
    stamp(a, P, 'B3')
    a('s_cmp_lg_u32 s30, 0\ns_cbranch_scc1 L_end')
    a('ds_read_b128 v[16:19], v5\nds_read_b128 v[20:23], v5 offset:16\nds_read_b64 v[24:25], v6\ns_waitcnt lgkmcnt(0)')
    a('v_add_f32 v16, v16, v17\nv_add_f32 v18, v18, v19\nv_add_f32 v20, v20, v21\nv_add_f32 v22, v22, v23')
    a('v_add_f32 v16, v16, v18\nv_add_f32 v20, v20, v22\nv_add_f32 v16, v16, v20')
    a('v_add_f32_dpp v16, v16, v16 quad_perm:[1,0,3,2] row_mask:0xf bank_mask:0xf')
    a('v_add_f32_dpp v16, v16, v16 quad_perm:[2,3,0,1] row_mask:0xf bank_mask:0xf')
    rnd_bf16(a, 16)
    a('v_add_f32 v16, v24, v16'); rnd_bf16(a, 16)
    a('v_add_f32 v16, v16, v25\nv_cvt_pk_bf16_f32 v16, v16, v16')
    a('s_mov_b32 exec_lo, 0x11111111\ns_mov_b32 exec_hi, 0x11111111')
    a('buffer_store_short v16, v4, s[44:47], 0 offen')
    if P['hold']:
        a(f'L_hold:\ns_memrealtime s[96:97]\ns_waitcnt lgkmcnt(0)\ns_sub_u32 s96, s96, s98\ns_cmp_lt_u32 s96, {P["hold"]}\ns_cbranch_scc1 L_hold')
    if P['diag']:
        a('s_mov_b64 exec, -1\ns_waitcnt vmcnt(0)')
        stamp(a, P, 'end')
        stamp_store(a, P, stamp_items(P, S_PTS), hw=True)
    a('s_endpgm')

def dma_loop(a, P, lab, n, vaddr, sstep, lds0):
    a(f's_mov_b32 s36, 0\ns_mov_b32 s62, {lds0}\ns_mov_b32 s63, {n}')
    a(f'{lab}:')
    a(f's_mov_b32 m0, s62\ns_waitcnt vmcnt({P["DH"]-1})')
    a(f'buffer_load_dwordx4 v{vaddr}, s[56:59], s36 offen {P["wpol"]} lds')
    a(f's_add_u32 s36, s36, {sstep}\ns_add_u32 s62, s62, 1024\ns_sub_u32 s63, s63, 1\ns_cmp_lg_u32 s63, 0\ns_cbranch_scc1 {lab}')

def helper(a, P):
    a('L_helper:')
    stamp(a, P, 'hstart')
    a('v_lshrrev_b32 v1, 1, v0\nv_lshlrev_b32 v1, 13, v1\nv_and_b32 v2, 1, v0\nv_lshl_add_u32 v1, v2, 4, v1')
    a('s_lshl_b32 s37, s31, 5\ns_add_u32 s37, s37, s32\ns_lshl_b32 s37, s37, 5')
    a(f's_sub_u32 s39, {448*8192}, s37')
    a('s_lshl_b32 s38, s33, 5\ns_add_u32 s38, s38, s34')
    a('s_waitcnt lgkmcnt(0)')
    a('s_load_dwordx2 s[84:85], s[28:29], 0')
    srd(a, 56, 10, 's37', 's39')
    for i in range(14):
        a(f's_mov_b32 m0, {L_WQ+i*1024}\ns_mov_b32 s36, {i*262144}')
        a(f'buffer_load_dwordx4 v1, s[56:59], s36 offen {P["wpol"]} lds')
    srd(a, 52, 28, None, WS_USED)
    a('v_mov_b32 v4, -1\nv_mov_b32 v5, -1\nv_mov_b32 v6, -1\nv_mov_b32 v7, -1\nv_lshlrev_b32 v2, 4, v0')
    a(f's_lshl_b32 s37, s38, 10\ns_add_u32 s37, s37, {OBUF}\nbuffer_store_dwordx4 v[4:7], v2, s[52:55], s37 offen sc1')
    a(f'v_lshlrev_b32 v3, 3, v0\nv_add_u32 v3, {L_ML}, v3\ns_mov_b64 exec, 0xffff\nds_write_b64 v3, v[4:5]\ns_mov_b64 exec, -1')
    a(f'v_and_b32 v8, 7, v0\nv_mul_u32_u24 v8, {XSTR}, v8\nv_lshrrev_b32 v9, 4, v0\nv_lshl_add_u32 v8, v9, 4, v8')
    a(f'v_add_u32 v11, {L_XN}, v8')
    a(f'v_and_b32 v10, 15, v0\nv_lshlrev_b32 v12, 3, v10\nv_lshl_add_u32 v12, v9, 8, v12')
    a(f'v_lshlrev_b32 v13, 14, v10\nv_lshl_add_u32 v13, v9, 4, v13\nv_mov_b32 v14, {hex(OOB)}\nv_cmp_gt_u32 vcc, 8, v10\nv_cndmask_b32 v13, v14, v13, vcc')
    a(f's_lshl_b32 s60, s31, 11\ns_lshl_b32 s37, s32, 6\ns_add_u32 s60, s60, s37\ns_add_u32 s60, s60, {QBUF}')
    a(f's_lshl_b32 s61, s33, 3\ns_lshr_b32 s37, s34, 2\ns_add_u32 s61, s61, s37\ns_lshl_b32 s61, s61, 11\ns_add_u32 s61, s61, {QBUF}')
    a(f's_mov_b32 s83, {hex(f2u(C_EXP))}')
    a('s_waitcnt lgkmcnt(0)')
    a('s_add_u32 s84, s84, 0x9E3779B9\ns_addc_u32 s85, s85, 0x7F4A7C15')
    a('s_barrier')
    stamp(a, P, 'hB0')
    XF, WF, DQ = 16, 72, 128
    for ks in range(4): a(f'ds_read_b128 v[{XF+4*ks}:{XF+4*ks+3}], v11 offset:{ks*64}')
    a('s_waitcnt vmcnt(1)')
    stamp(a, P, 'wqland')
    def rd(ks):
        if ks >= 4: a(f'ds_read_b128 v[{XF+4*ks}:{XF+4*ks+3}], v11 offset:{ks*64}')
        a(f'ds_read_b64_tr_b16 v[{WF+4*ks}:{WF+4*ks+1}], v12 offset:{L_WQ+ks*1024}')
        a(f'ds_read_b64_tr_b16 v[{WF+4*ks+2}:{WF+4*ks+3}], v12 offset:{L_WQ+ks*1024+128}')
    for ks in range(4): rd(ks)
    for ks in range(14):
        if ks + 4 < 14: rd(ks + 4)
        later = sum((3 if k >= 4 else 2) for k in range(ks + 1, min(ks + 5, 14)))
        a(f's_waitcnt lgkmcnt({later})')
        c = '0' if ks == 0 else f'v[{DQ}:{DQ+3}]'
        a(f'v_mfma_f32_16x16x32_bf16 v[{DQ}:{DQ+3}], v[{WF+4*ks}:{WF+4*ks+3}], v[{XF+4*ks}:{XF+4*ks+3}], {c}')
    a(f'v_mov_b32 v6, s84\nv_mov_b32 v7, s85')
    a(f'v_cvt_pk_bf16_f32 v4, v{DQ}, v{DQ+1}\nv_cvt_pk_bf16_f32 v5, v{DQ+2}, v{DQ+3}')
    a('buffer_store_dwordx4 v[4:7], v13, s[52:55], s60 offen sc1')
    stamp(a, P, 'qpub')
    a(f's_mov_b32 s86, {P["spin"]}\nv_lshlrev_b32 v3, 3, v0\nv_add_u32 v3, {L_Q}, v3')
    a('L_qpoll:')
    a('buffer_load_dwordx4 v[16:19], v2, s[52:55], s61 offen sc1\nbuffer_load_dwordx4 v[20:23], v2, s[52:55], s61 offen offset:1024 sc1')
    a('s_waitcnt vmcnt(0)')
    a('v_cmp_ne_u64 vcc, s[84:85], v[18:19]\nv_cmp_ne_u64 s[62:63], s[84:85], v[22:23]\ns_or_b64 vcc, vcc, s[62:63]')
    a('s_sub_u32 s86, s86, 1\ns_cbranch_scc1 L_qdone\ns_cbranch_vccnz L_qpoll')
    a('L_qdone:')
    stamp(a, P, 'qok')
    a('ds_write_b64 v3, v[16:17]\nds_write_b64 v3, v[20:21] offset:512\ns_waitcnt lgkmcnt(0)\ns_barrier')
    stamp(a, P, 'B1')
    a('s_cmp_lt_u32 s32, 28\ns_cbranch_scc0 L_mlp')
    a(f's_lshl_b32 s37, s34, 5\ns_sub_u32 s39, {4096*896}, s37')
    srd(a, 56, 12, 's37', 's39')
    a('v_lshrrev_b32 v1, 1, v0\nv_mul_u32_u24 v1, 896, v1\nv_and_b32 v3, 1, v0\nv_lshl_add_u32 v1, v3, 4, v1')
    dma_loop(a, P, 'L_wo', 128, 1, 32 * 896, L_WO)
    a('s_branch L_ml')
    a('L_mlp:')
    a('s_sub_u32 s59, s32, 28\ns_lshl_b32 s87, s59, 3\ns_add_u32 s87, s87, s31')
    a('s_cmp_lt_u32 s87, 28\ns_cbranch_scc0 L_ml')
    YF = 16
    a(f'v_add_u32 v11, {L_Y}, v8')
    for ks in range(14): a(f'ds_read_b128 v[{YF+4*ks}:{YF+4*ks+3}], v11 offset:{ks*64}')
    a('s_lshl_b32 s37, s87, 7')
    srd(a, 56, 18, 's37', 128)
    a('v_lshlrev_b32 v3, 3, v9')
    B1R = 72
    for t in range(4): a(f'buffer_load_dwordx2 v[{B1R+2*t}:{B1R+2*t+1}], v3, s[56:59], 0 offen offset:{t*32}')
    a(f's_sub_u32 s39, {448*3584}, s37')
    srd(a, 56, 16, 's37', 's39')
    a('v_lshrrev_b32 v1, 3, v0\nv_mul_u32_u24 v1, 3584, v1\nv_and_b32 v3, 7, v0\nv_lshl_add_u32 v1, v3, 4, v1')
    dma_loop(a, P, 'L_w1', 56, 1, 8 * 3584, L_W1)
    a('s_mul_i32 s37, s87, 57344')
    srd(a, 56, 20, 's37', 57344)
    dma_loop(a, P, 'L_w2', 56, 2, 1024, L_W2)
    a(f'v_bfe_u32 v3, v0, 2, 2\nv_lshl_add_u32 v4, v9, 3, v3\nv_lshlrev_b32 v4, 7, v4\nv_and_b32 v5, 3, v0\nv_lshl_add_u32 v4, v5, 3, v4\nv_add_u32 v4, {L_W1}, v4')
    a(f'v_lshl_add_u32 v6, v9, 2, v3\nv_mul_u32_u24 v6, 896, v6\nv_lshl_add_u32 v6, v5, 3, v6\nv_add_u32 v6, {L_W2}, v6')
    a(f'v_mul_u32_u24 v13, 1792, v10\nv_lshl_add_u32 v13, v9, 4, v13\nv_cmp_gt_u32 vcc, 8, v10\nv_cndmask_b32 v13, v14, v13, vcc')
    TA, D1 = 80, 112
    seq = [(t, ks) for t in range(4) for ks in range(14)]
    def rd1(n):
        t, ks = seq[n]; r = TA + 4 * (n % 8); o = ks * 4096 + t * 32
        a(f'ds_read_b64_tr_b16 v[{r}:{r+1}], v4 offset:{o}\nds_read_b64_tr_b16 v[{r+2}:{r+3}], v4 offset:{o+512}')
    a('s_waitcnt lgkmcnt(0)')
    for n in range(6): rd1(n)
    for n, (t, ks) in enumerate(seq):
        if n + 6 < len(seq): rd1(n + 6)
        a(f's_waitcnt lgkmcnt({2*min(6, len(seq)-1-n)})')
        r = TA + 4 * (n % 8); d = D1 + 4 * t
        c = '0' if ks == 0 else f'v[{d}:{d+3}]'
        a(f'v_mfma_f32_16x16x32_bf16 v[{d}:{d+3}], v[{r}:{r+3}], v[{YF+4*ks}:{YF+4*ks+3}], {c}')
    BU = 16; HF = 64
    unpack(a, B1R, BU, 8)
    k0 = 2 * 0.7978845608028654 * math.log2(math.e); k1 = k0 * 0.044715
    a(f's_mov_b32 s62, {hex(f2u(-k1))}\nv_mov_b32 v15, {hex(f2u(-k0))}')
    for i in range(8): a(f'v_cvt_pk_bf16_f32 v{32+i}, v{D1+2*i}, v{D1+2*i+1}')
    unpack(a, 32, D1, 8)
    for i in range(16): a(f'v_add_f32 v{D1+i}, v{D1+i}, v{BU+i}')
    for i in range(8): a(f'v_cvt_pk_bf16_f32 v{32+i}, v{D1+2*i}, v{D1+2*i+1}')
    unpack(a, 32, D1, 8)
    for i in range(16): a(f'v_mul_f32 v{BU+i}, v{D1+i}, v{D1+i}')
    for i in range(16): a(f'v_fma_f32 v{BU+i}, v{BU+i}, s62, v15')
    for i in range(16): a(f'v_mul_f32 v{BU+i}, v{BU+i}, v{D1+i}')
    for i in range(16): a(f'v_exp_f32 v{BU+i}, v{BU+i}')
    for i in range(16): a(f'v_add_f32 v{BU+i}, 1.0, v{BU+i}')
    for i in range(16): a(f'v_rcp_f32 v{BU+i}, v{BU+i}')
    for i in range(16): a(f'v_mul_f32 v{D1+i}, v{D1+i}, v{BU+i}')
    for i in range(8): a(f'v_cvt_pk_bf16_f32 v{HF+i}, v{D1+2*i}, v{D1+2*i+1}')
    a(f's_mul_i32 s60, s87, 14336\ns_add_u32 s60, s60, {MBUF}\ns_waitcnt vmcnt(0)')
    seq2 = [(nt, k) for nt in range(28) for k in range(2)]
    def rd2(n):
        nt, k = seq2[n]; r = TA + 4 * (n % 8); o = k * 32 * 896 + nt * 32
        a(f'ds_read_b64_tr_b16 v[{r}:{r+1}], v6 offset:{o}\nds_read_b64_tr_b16 v[{r+2}:{r+3}], v6 offset:{o+14336}')
    for n in range(6): rd2(n)
    D2 = [112, 116, 120, 124]
    def st2(nt):
        d = D2[nt % 4]
        a(f'buffer_store_dwordx4 v[{d}:{d+3}], v13, s[52:55], s60 offen offset:{nt*64} sc1')
    for n, (nt, k) in enumerate(seq2):
        if n + 6 < len(seq2): rd2(n + 6)
        a(f's_waitcnt lgkmcnt({2*min(6, len(seq2)-1-n)})')
        r = TA + 4 * (n % 8); d = D2[nt % 4]
        c = '0' if k == 0 else f'v[{d}:{d+3}]'
        a(f'v_mfma_f32_16x16x32_bf16 v[{d}:{d+3}], v[{r}:{r+3}], v[{HF+4*k}:{HF+4*k+3}], {c}')
        if k == 1 and nt >= 2: st2(nt - 2)
    st2(26); st2(27)
    a(f'v_mov_b32 v6, s84\nv_mov_b32 v7, s85\nv_mov_b32 v4, 0\ns_lshl_b32 s37, s87, 4\ns_add_u32 s37, s37, {MFLAG}')
    a('s_waitcnt vmcnt(0)\ns_mov_b64 exec, 1\nbuffer_store_dwordx2 v[6:7], v4, s[52:55], s37 offen sc1\ns_mov_b64 exec, -1')
    a('L_ml:')
    stamp(a, P, 'wodone')
    a(f'v_and_b32 v3, 15, v0\nv_lshlrev_b32 v3, 3, v3\nv_add_u32 v3, {L_ML}, v3\ns_mov_b32 s86, {P["spin"]*16}')
    a('L_mlw:')
    a('s_sleep 4\nds_read_b64 v[16:17], v3\ns_waitcnt lgkmcnt(0)\nv_cmp_eq_u32 vcc, -1, v16')
    a('s_sub_u32 s86, s86, 1\ns_cbranch_scc1 L_mlwd\ns_cbranch_vccnz L_mlw')
    a('L_mlwd:')
    d8 = ('quad_perm:[1,0,3,2]', 'quad_perm:[2,3,0,1]', 'row_half_mirror')
    a('v_mov_b32 v18, v16')
    for m in d8: a(f'v_max_f32_dpp v18, v18, v18 {m} row_mask:0xf bank_mask:0xf')
    a('v_sub_f32 v19, v16, v18\nv_mul_f32 v19, s83, v19\nv_exp_f32 v19, v19\nv_mul_f32 v19, v19, v17')
    for m in d8: a(f'v_add_f32_dpp v19, v19, v19 {m} row_mask:0xf bank_mask:0xf')
    a('v_mov_b32 v20, s84\nv_mov_b32 v21, s85\nv_lshlrev_b32 v4, 6, v0')
    a(f's_lshl_b32 s61, s33, 10\ns_add_u32 s61, s61, {MLBUF}\ns_lshl_b32 s37, s34, 4\ns_add_u32 s37, s37, s61')
    a('s_waitcnt vmcnt(0)\ns_mov_b64 exec, 0x101\nbuffer_store_dwordx4 v[18:21], v4, s[52:55], s37 offen sc1\ns_mov_b64 exec, -1')
    a(f's_mov_b32 s86, {P["spin"]}')
    stamp(a, P, 'mlpub')
    a('L_mlp2:')
    a('s_sleep 2\nbuffer_load_dwordx4 v[24:27], v2, s[52:55], s61 offen sc1\ns_waitcnt vmcnt(0)')
    a('v_cmp_ne_u64 vcc, s[84:85], v[26:27]')
    a('s_sub_u32 s86, s86, 1\ns_cbranch_scc1 L_mlp2d\ns_cbranch_vccnz L_mlp2')
    a('L_mlp2d:')
    stamp(a, P, 'mlok')
    a('v_mov_b32 v28, v24')
    for m in d8[:2]: a(f'v_max_f32_dpp v28, v28, v28 {m} row_mask:0xf bank_mask:0xf')
    a('v_sub_f32 v29, v24, v28\nv_mul_f32 v29, s83, v29\nv_exp_f32 v29, v29\nv_mul_f32 v29, v29, v25')
    for m in d8[:2]: a(f'v_add_f32_dpp v29, v29, v29 {m} row_mask:0xf bank_mask:0xf')
    a('s_and_b32 s37, s34, 28\ns_add_u32 s39, s37, 32')
    a('v_readlane_b32 s62, v28, s37\nv_readlane_b32 s63, v29, s37\nv_readlane_b32 s60, v28, s39\nv_readlane_b32 s59, v29, s39')
    a('v_mov_b32 v30, s62\nv_mov_b32 v31, s63\nv_mov_b32 v32, s60\nv_mov_b32 v33, s59')
    a('s_mov_b32 s62, 0xff00ff00\ns_mov_b32 s63, 0xff00ff00')
    a('v_cndmask_b32 v30, v30, v32, s[62:63]\nv_cndmask_b32 v31, v31, v33, s[62:63]')
    a('v_sub_f32 v30, v16, v30\nv_mul_f32 v30, s83, v30\nv_exp_f32 v30, v30\nv_rcp_f32 v31, v31\nv_mul_f32 v30, v30, v31')
    a(f'v_lshlrev_b32 v3, 2, v0\nv_add_u32 v3, {L_F}, v3\ns_mov_b64 exec, 0xffff\nds_write_b32 v3, v30\ns_mov_b64 exec, -1')
    a('s_cmp_lg_u32 s2, 0\ns_cbranch_scc1 L_noep')
    a('v_mov_b32 v4, 0\ns_mov_b64 exec, 1\nbuffer_store_dwordx2 v[20:21], v4, s[52:55], 0 offen sc1\ns_mov_b64 exec, -1')
    a('L_noep:')
    a('s_cmp_lt_u32 s32, 28\ns_cbranch_scc0 L_hend')
    a(f'v_cmp_gt_u32 vcc, 28, v0\nv_mov_b32 v3, 0\nv_cndmask_b32 v3, v3, v2, vcc\ns_mov_b32 s86, {P["spin"]}\ns_mov_b32 s37, {MFLAG}')
    a('L_mf:')
    a('buffer_load_dwordx2 v[16:17], v3, s[52:55], s37 offen sc1\ns_waitcnt vmcnt(0)\nv_cmp_ne_u64 vcc, s[84:85], v[16:17]')
    a('s_sub_u32 s86, s86, 1\ns_cbranch_scc1 L_mfd\ns_cbranch_vccz L_mfd\ns_sleep 4\ns_branch L_mf')
    a('L_mfd:')
    a('v_lshrrev_b32 v3, 2, v0\nv_mul_u32_u24 v3, 14336, v3\nv_and_b32 v5, 3, v0\nv_lshl_add_u32 v3, v5, 4, v3')
    a(f'v_add_u32 v4, {16*14336}, v3\nv_cmp_gt_u32 vcc, 48, v0\nv_cndmask_b32 v4, v14, v4, vcc')
    a(f's_mul_i32 s37, s33, 1792\ns_lshl_b32 s39, s34, 6\ns_add_u32 s37, s37, s39\ns_add_u32 s37, s37, {MBUF}')
    a('buffer_load_dwordx4 v[16:19], v3, s[52:55], s37 offen sc1\nbuffer_load_dwordx4 v[20:23], v4, s[52:55], s37 offen sc1')
    a('v_lshlrev_b32 v6, 3, v5\ns_lshl_b32 s39, s34, 5')
    srd(a, 56, 22, None, 896)
    a('buffer_load_dwordx2 v[24:25], v6, s[56:59], s39 offen')
    srd(a, 48, 4, None, 7168)
    a('s_mul_i32 s37, s33, 896\ns_add_u32 s37, s37, s39\nbuffer_load_dwordx2 v[26:27], v6, s[48:51], s37 offen')
    a('s_waitcnt vmcnt(0)')
    for i in range(4): a(f'v_add_f32 v{16+i}, v{16+i}, v{20+i}')
    for m in ('row_ror:4', 'row_ror:8'):
        for i in range(4): a(f'v_add_f32_dpp v{16+i}, v{16+i}, v{16+i} {m} row_mask:0xf bank_mask:0xf')
    for i in range(4): xgroup(a, 'v_add_f32', 16 + i, 20 + i)
    unpack(a, 24, 28, 2)
    a('v_cvt_pk_bf16_f32 v20, v16, v17\nv_cvt_pk_bf16_f32 v21, v18, v19')
    unpack(a, 20, 16, 2)
    for i in range(4): a(f'v_add_f32 v{16+i}, v{16+i}, v{28+i}')
    a('v_cvt_pk_bf16_f32 v20, v16, v17\nv_cvt_pk_bf16_f32 v21, v18, v19')
    a('v_lshlrev_b32 v32, 16, v26\nv_lshlrev_b32 v33, 16, v20\nv_and_b32 v34, 0xffff0000, v26\nv_and_b32 v35, 0xffff0000, v20')
    a('v_lshlrev_b32 v36, 16, v27\nv_lshlrev_b32 v37, 16, v21\nv_and_b32 v38, 0xffff0000, v27\nv_and_b32 v39, 0xffff0000, v21')
    a(f'v_lshlrev_b32 v3, 5, v0\nv_add_u32 v3, {L_XB}, v3\ns_mov_b64 exec, 0xf')
    a('ds_write_b128 v3, v[32:35]\nds_write_b128 v3, v[36:39] offset:16\ns_mov_b64 exec, -1')
    a('L_hend:')
    a('s_waitcnt vmcnt(0) lgkmcnt(0)')
    stamp(a, P, 'hend')
    stamp_store(a, P, stamp_items(P, H_PTS))
    a('s_endpgm')

def body(P):
    a = Asm()
    a('s_cmp_ge_u32 s2, 256\ns_cbranch_scc1 L_end')
    a('s_load_dwordx16 s[4:19], s[0:1], 0\ns_load_dwordx8 s[20:27], s[0:1], 64\ns_load_dwordx2 s[28:29], s[0:1], 96')
    a('v_lshrrev_b32 v1, 6, v0\nv_and_b32 v0, 63, v0\nv_readfirstlane_b32 s30, v1')
    a('s_and_b32 s31, s2, 7\ns_lshr_b32 s32, s2, 3\ns_mul_i32 s37, s31, 28\ns_add_u32 s37, s37, s32')
    a('s_and_b32 s33, s37, 7\ns_lshr_b32 s34, s37, 3\ns_cmp_lt_u32 s32, 28\ns_cselect_b32 s33, s33, s31\ns_cselect_b32 s34, s34, s32')
    stamp_init(a, P)
    a('s_cmp_eq_u32 s30, 8\ns_cbranch_scc1 L_helper')
    streamer(a, P)
    helper(a, P)
    a('L_end:\ns_endpgm')
    txt, n = a.text()
    return txt, n

def vgprs(P): return max(56 + 4 * P['R'], 152)

def kernel(P):
    txt, n = body(P)
    nm = P['name']
    txt = txt.replace('L_', f'L{nm[-24:]}_') if P.get('uniq') else txt
    return txt

def final_file(P):
    ref = open(f'cdna_kernels/{NAME}.s.ref').read()
    head = ref[:ref.index('; Override launch')]
    nm = P['name']; vg = vgprs(P)
    return head + f'''; Single launch: 256 workgroups x (8 streaming waves + 1 helper wave). Generated by gen/gen.py.
; @launch grid=(256,1,1) block=(576,1,1) lds={LDS_BYTES}
.amdgcn_target "amdgcn-amd-amdhsa--gfx950"
.text
.globl {nm}
.p2align 8
.type {nm},@function
{nm}:
{kernel(P)}
.section .rodata,"a"
.p2align 6
.amdhsa_kernel {nm}
  .amdhsa_next_free_vgpr {vg}
  .amdhsa_next_free_sgpr 102
  .amdhsa_accum_offset {(vg+3)//4*4}
  .amdhsa_group_segment_fixed_size 0
  .amdhsa_kernarg_size 104
  .amdhsa_user_sgpr_count 2
  .amdhsa_user_sgpr_kernarg_segment_ptr 1
  .amdhsa_system_sgpr_workgroup_id_x 1
.end_amdhsa_kernel
'''

if __name__ == '__main__':
    P = dict(DEF)
    out = f'cdna_kernels/{NAME}.s'
    for kv in sys.argv[1:]:
        k, v = kv.split('=', 1)
        if k == 'out': out = v
        else: P[k] = type(DEF[k])(v) if not isinstance(DEF[k], bool) else v == '1'
    open(out, 'w').write(final_file(P))
    print('wrote', out)
```

```python
import sys, math, struct
from asmlib import Asm

NAME = 'parallel_sum__gqa_block_cached__mixer_channel_mlp__decode'
def f2u(x): return struct.unpack('<I', struct.pack('<f', x))[0]

QBUF, MLBUF, MFLAG, OBUF, MBUF, WTF, WT, WS_USED = 0x1000, 0x21000, 0x23000, 0x24000, 0x64000, 0xC6000, 0x100000, 0x480000
STAMP_OFF = 536870912 - (1 << 20)
L_WO = 0; L_WQ = 0; L_W1 = 16384; L_W2 = 73728
L_PART = 131072
L_Q = L_PART + 16384
L_FIN = L_Q + 1024
L_ML = L_FIN + 2304
L_F = L_ML + 128
L_XB = L_F + 64
LDS_BYTES = L_XB + 128
OOB = 0x7F000000
C_EXP = math.log2(math.e) / 16.0

DEF = dict(R=24, D=4, D0=4, DH=8, pol='nt', wpol='', xpol='', tpol='sc1', mpol='nt', diag=False, budget=2, name=NAME + '_kernel', spin=1 << 16, wolin=0, hold=0, pts='start+qpub+B1+Kdone+hend+B2+end')

def srd(a, n, base, off, size):
    if off is None:
        a(f's_mov_b32 s{n}, s{base}\ns_mov_b32 s{n+1}, s{base+1}')
    else:
        a(f's_add_u32 s{n}, s{base}, {off}\ns_addc_u32 s{n+1}, s{base+1}, 0')
    a(f's_mov_b32 s{n+2}, {size}\ns_mov_b32 s{n+3}, 0x20000')

def wave_sum(a, v, s):
    for m in ('row_shr:1', 'row_shr:2', 'row_shr:4', 'row_shr:8'):
        a(f'v_add_f32_dpp v{v}, v{v}, v{v} {m} row_mask:0xf bank_mask:0xf')
    a(f'v_add_f32_dpp v{v}, v{v}, v{v} row_bcast:15 row_mask:0xa bank_mask:0xf')
    a(f'v_add_f32_dpp v{v}, v{v}, v{v} row_bcast:31 row_mask:0xc bank_mask:0xf')
    a(f'v_readlane_b32 s{s}, v{v}, 63')

def rnd_bf16(a, v):
    a(f'v_cvt_pk_bf16_f32 v{v}, v{v}, v{v}\nv_and_b32 v{v}, 0xffff0000, v{v}')

def unpack(a, src, dst, n):
    for i in range(n):
        a(f'v_and_b32 v{dst+2*i+1}, 0xffff0000, v{src+i}\nv_lshlrev_b32 v{dst+2*i}, 16, v{src+i}')

def row_sum(a, v, t):
    a(f'v_add_f32_dpp v{v}, v{v}, v{v} row_ror:8 row_mask:0xf bank_mask:0xf')
    xgroup(a, 'v_add_f32', v, t)

def layernorm(a, X, F, T):
    pr = lambda r: f'v[{r}:{r+1}]'
    unpack(a, X, F, 28)
    a(f'v_pk_add_f32 {pr(T)}, {pr(F)}, {pr(F+2)}\nv_pk_add_f32 {pr(T+2)}, {pr(F+4)}, {pr(F+6)}')
    for i in range(4, 28): a(f'v_pk_add_f32 {pr(T+2*(i&1))}, {pr(T+2*(i&1))}, {pr(F+2*i)}')
    a(f'v_pk_add_f32 {pr(T)}, {pr(T)}, {pr(T+2)}\nv_add_f32 v{T}, v{T}, v{T+1}')
    row_sum(a, T, T + 1)
    a(f'v_mul_f32 v{T}, {hex(f2u(-1/448))}, v{T}\nv_mov_b32 v{T+1}, v{T}')
    for i in range(28):
        d = T + 4 + 2 * (i & 1)
        a(f'v_pk_add_f32 {pr(d)}, {pr(F+2*i)}, {pr(T)}')
        if i == 0: a(f'v_pk_mul_f32 {pr(T+2)}, {pr(d)}, {pr(d)}')
        else: a(f'v_pk_fma_f32 {pr(T+2)}, {pr(d)}, {pr(d)}, {pr(T+2)}')
    a(f'v_add_f32 v{T+2}, v{T+2}, v{T+3}')
    row_sum(a, T + 2, T + 3)
    rnd_bf16(a, T)
    a(f'v_mov_b32 v{T+1}, v{T}\nv_mul_f32 v{T+2}, {hex(f2u(1/448))}, v{T+2}')
    rnd_bf16(a, T + 2)
    a(f'v_add_f32 v{T+2}, {hex(f2u(1e-5))}, v{T+2}')
    rnd_bf16(a, T + 2)
    a(f'v_sqrt_f32 v{T+2}, v{T+2}')
    for i in range(28): a(f'v_pk_add_f32 {pr(F+2*i)}, {pr(F+2*i)}, {pr(T)}')
    rnd_bf16(a, T + 2)
    a(f'v_rcp_f32 v{T+2}, v{T+2}')
    for i in range(28): a(f'v_cvt_pk_bf16_f32 v{X+i}, v{F+2*i}, v{F+2*i+1}')
    a(f'v_mov_b32 v{T+3}, v{T+2}')
    unpack(a, X, F, 28)
    for i in range(28): a(f'v_pk_mul_f32 {pr(F+2*i)}, {pr(F+2*i)}, {pr(T+2)}')
    for i in range(28): a(f'v_cvt_pk_bf16_f32 v{X+i}, v{F+2*i}, v{F+2*i+1}')

def xgroup(a, op, v, t):
    a(f'v_mov_b32 v{t}, v{v}\nv_permlane16_swap_b32 v{v}, v{t}\n{op} v{v}, v{v}, v{t}')
    a(f'v_mov_b32 v{t}, v{v}\nv_permlane32_swap_b32 v{v}, v{t}\n{op} v{v}, v{v}, v{t}')

S_PTS = ['start', 'skarg', 'siss0', 'sB1a', 'sB1', 'Kdone', 'Vlast', 'B2', 'ost', 'gok', 'B3', 'end']
H_PTS = ['hstart', 'xland', 'lndone', 'wtpub', 'wtok', 'hkarg', 'wqiss', 'hB0', 'wqland', 'qpub', 'qp1', 'qok', 'B1', 'wodone', 'mlpub', 'mlok', 'hend']
def pts(P): return P['pts'].split('+') if isinstance(P['pts'], str) else P['pts']
def stamp(a, P, name):
    if P['diag'] and name in pts(P):
        reg = 88 + 2 * pts(P).index(name)
        a(f's_memrealtime s[{reg}:{reg+1}]\ns_waitcnt lgkmcnt(0)')
def stamp_items(P, lst): return [(i, 88 + 2 * i) for i, n in enumerate(pts(P)) if n in lst]
def stamp_init(a, P):
    if P['diag']:
        for i in range(7): a(f's_mov_b64 s[{88+2*i}:{89+2*i}], 0')

def stamp_store(a, P, items, hw=False):
    if not P['diag']: return
    a('s_waitcnt lgkmcnt(0)')
    a(f's_lshl_b32 s37, s2, 6\ns_add_u32 s37, s37, {STAMP_OFF}')
    srd(a, 40, 28, 's37', 64)
    a('s_mov_b64 exec, 1\nv_mov_b32 v1, 0')
    for idx, reg in items:
        a(f'v_mov_b32 v2, s{reg}\nv_mov_b32 v3, s{reg+1}\nbuffer_store_dwordx2 v[2:3], v1, s[40:43], 0 offen offset:{idx*8}')
    if hw:
        a('s_getreg_b32 s38, hwreg(HW_REG_XCC_ID)\ns_getreg_b32 s39, hwreg(HW_REG_HW_ID)')
        a('v_mov_b32 v2, s38\nv_mov_b32 v3, s39\nbuffer_store_dwordx2 v[2:3], v1, s[40:43], 0 offen offset:56')
    a('s_mov_b64 exec, -1')

def streamer(a, P):
    a('L_stream:\ns_sub_u32 s30, s30, 1')
    R, D, D0, pol = P['R'], P['D'], P['D0'], P['pol']
    Q, S, DT, RING = 8, 16, 48, 56
    slot = lambda i: RING + 4 * (i % R)
    sl = lambda i: f'v[{slot(i)}:{slot(i)+3}]'
    stamp(a, P, 'start')
    if P['hold']: a('s_memrealtime s[98:99]')
    a('v_and_b32 v1, 3, v0\nv_lshlrev_b32 v1, 4, v1\nv_bfe_u32 v3, v0, 2, 2\nv_lshl_add_u32 v1, v3, 9, v1')
    a('v_lshrrev_b32 v3, 4, v0\nv_lshl_add_u32 v1, v3, 6, v1')
    a('v_and_b32 v2, 15, v0\nv_lshlrev_b32 v2, 4, v2\nv_lshl_add_u32 v2, v3, 9, v2')
    a('s_lshl_b32 s38, s33, 5\ns_add_u32 s38, s38, s34')
    a('s_lshl_b32 s37, s38, 19\ns_lshl_b32 s39, s30, 16\ns_add_u32 s37, s37, s39')
    a('s_add_u32 s35, s30, s32\ns_and_b32 s35, s35, 7\ns_lshl_b32 s35, s35, 12')
    a('s_waitcnt lgkmcnt(0)')
    stamp(a, P, 'skarg')
    srd(a, 40, 6, 's37', 65536)
    srd(a, 44, 8, 's37', 65536)
    def issue(i):
        j = i % 64; G, t = j >> 1, j & 1
        if t == 0: a(f's_xor_b32 s36, s35, {G*2048}')
        r, va = ('s[40:43]', 'v1') if i < 64 else ('s[44:47]', 'v2')
        a(f'buffer_load_dwordx4 {sl(i)}, {va}, {r}, s36 offen offset:{t*256} {pol}')
    for i in range(D0): issue(i)
    stamp(a, P, 'siss0')
    srd(a, 52, 28, None, WS_USED)
    for e in range(2):
        for r in range(4):
            m16 = (0x11 << r) << (8 * e); m32 = m16 | (m16 << 16)
            a(f's_mov_b32 s{64+2*(4*e+r)}, {hex(m32)}\ns_mov_b32 s{65+2*(4*e+r)}, {hex(m32)}')
    a('s_mov_b32 s80, 0x05040100\ns_mov_b32 s81, 0x07060302')
    for i in range(D0, R):
        a(f's_waitcnt vmcnt({D-1})'); issue(i)
    a('v_bfe_u32 v3, v0, 2, 1\nv_lshlrev_b32 v3, 9, v3\nv_and_b32 v4, 3, v0\nv_lshl_add_u32 v3, v4, 4, v3')
    a(f'v_lshrrev_b32 v4, 4, v0\nv_lshl_add_u32 v3, v4, 6, v3\nv_add_u32 v3, {L_Q}, v3')
    stamp(a, P, 'sB1a')
    a(f's_barrier')
    stamp(a, P, 'sB1')
    a(f'ds_read_b128 v[{Q}:{Q+3}], v3\nds_read_b128 v[{Q+4}:{Q+7}], v3 offset:256')
    a(f'v_mov_b32 v4, 0xff800000\ns_mov_b32 s83, {hex(f2u(C_EXP))}\ns_waitcnt lgkmcnt(0)')
    chunks = []
    def kdpp(G):
        d = DT + 4 * (G & 1)
        a(f'v_mov_b32_dpp v{S+G}, v{d} quad_perm:[0,0,0,0] row_mask:0xf bank_mask:0xf')
        for r in range(1, 4):
            a(f'v_add_f32_dpp v{S+G}, v{d+r}, v{S+G} quad_perm:[{r},{r},{r},{r}] row_mask:0xf bank_mask:0xf')
        if G & 1:
            a(f'v_cvt_pk_bf16_f32 v5, v{S+G-1}, v{S+G}\nv_lshlrev_b32 v{S+G-1}, 16, v5\nv_and_b32 v{S+G}, 0xffff0000, v5')
            a(f'v_max3_f32 v4, v4, v{S+G-1}, v{S+G}')
    def kchunk(G):
        def fn():
            d = DT + 4 * (G & 1)
            a(f'v_mfma_f32_16x16x32_bf16 v[{d}:{d+3}], {sl(2*G)}, v[{Q}:{Q+3}], 0')
            a(f'v_mfma_f32_16x16x32_bf16 v[{d}:{d+3}], {sl(2*G+1)}, v[{Q+4}:{Q+7}], v[{d}:{d+3}]')
            if G: kdpp(G - 1)
        return fn
    for G in range(32): chunks.append((2 * G + 1, [2 * G, 2 * G + 1], kchunk(G)))
    def sm0():
        kdpp(31)
        xgroup(a, 'v_max_f32', 4, 5)
        a('v_mul_f32 v6, s83, v4\nv_mov_b32 v7, 0')
        stamp(a, P, 'Kdone')
    chunks.append((63, [], sm0))
    def sm(k):
        def fn():
            for g in range(8 * k, 8 * k + 8): a(f'v_fma_f32 v{S+g}, v{S+g}, s83, -v6')
            for g in range(8 * k, 8 * k + 8): a(f'v_exp_f32 v{S+g}, v{S+g}')
            for g in range(8 * k, 8 * k + 8): a(f'v_add_f32 v7, v7, v{S+g}')
            for i in range(4 * k, 4 * k + 4): a(f'v_cvt_pk_bf16_f32 v{S+i}, v{S+2*i}, v{S+2*i+1}')
        return fn
    for k in range(4): chunks.append((63, [], sm(k)))
    def sm_end():
        xgroup(a, 'v_add_f32', 7, 5)
        a(f'v_mov_b32 v5, v7\nv_bfe_u32 v3, v0, 2, 1\nv_lshlrev_b32 v3, 6, v3\ns_lshl_b32 s37, s30, 3\ns_add_u32 s37, s37, {L_ML}\nv_add_u32 v3, s37, v3')
        a('s_mov_b64 exec, 0x11\nds_write_b64 v3, v[4:5]\ns_mov_b64 exec, -1')
    chunks.append((63, [], sm_end))
    AT = [32, 36]; PT = [40, 44, 8, 12]; ACC = DT
    cnt = [0, 0]
    def vchunk(T, e, r):
        def fn():
            A = AT[cnt[0] & 1]; cnt[0] += 1
            mk = 64 + 2 * (4 * e + r)
            for p in range(4): a(f'v_cndmask_b32 v{A+p}, 0, v{S+4*T+p}, s[{mk}:{mk+1}]')
            for jj in range(2):
                j = 4 * jj + r; m, hh = j >> 1, j & 1
                B = PT[cnt[1] & 3]; cnt[1] += 1
                for p in range(4):
                    ev = 64 + 16 * T + 2 * (2 * p) + e; od = ev + 2
                    a(f'v_perm_b32 v{B+p}, v{slot(od)+m}, v{slot(ev)+m}, s{80+hh}')
                c = '0' if (T == 0 and e == 0 and r == 0) else f'v[{ACC+4*jj}:{ACC+4*jj+3}]'
                a(f'v_mfma_f32_16x16x32_bf16 v[{ACC+4*jj}:{ACC+4*jj+3}], v[{A}:{A+3}], v[{B}:{B+3}], {c}')
        return fn
    for T in range(4):
        for e in range(2):
            for r in range(4):
                fr = [64 + 16 * T + 2 * g + e for g in range(8)] if r == 3 else []
                chunks.append((64 + 16 * T + 14 + e, fr, vchunk(T, e, r)))
    freed = set(); ci = 0; landed = -1
    def run_chunk(issued):
        nonlocal ci, landed
        nd, fr, fn = chunks[ci]; ci += 1
        if nd > landed:
            a(f's_waitcnt vmcnt({issued-1-nd})'); landed = nd
        fn(); freed.update(fr)
    for i in range(R, 128):
        while (i - R) not in freed: run_chunk(i)
        if i - D > landed:
            a(f's_waitcnt vmcnt({D-1})'); landed = i - D
        issue(i)
        n = 0
        while ci < len(chunks) and chunks[ci][0] <= landed and n < P['budget']:
            run_chunk(i + 1); n += 1
    def tail_addr():
        a(f'v_lshrrev_b32 v3, 5, v0\nv_lshlrev_b32 v3, 9, v3\nv_bfe_u32 v4, v0, 4, 1\nv_lshl_add_u32 v3, v4, 10, v3')
        a(f'v_and_b32 v4, 15, v0\nv_lshl_add_u32 v3, v4, 5, v3\ns_lshl_b32 s37, s30, 11\ns_add_u32 s37, s37, {L_PART}\nv_add_u32 v3, s37, v3')
        a(f's_lshl_b32 s37, s30, 8\ns_add_u32 s37, s37, {L_PART}\nv_lshl_add_u32 v4, v0, 2, s37')
        a(f's_lshr_b32 s37, s30, 2\ns_lshl_b32 s37, s37, 5\ns_add_u32 s37, s37, {L_F}\nv_mov_b32 v5, s37')
        a(f'v_lshrrev_b32 v6, 1, v0\nv_lshlrev_b32 v6, 2, v6')
        a(f's_lshl_b32 s60, s38, 10\ns_lshl_b32 s37, s30, 7\ns_add_u32 s60, s60, s37\ns_add_u32 s60, s60, {OBUF}')
        a(f'v_bfe_u32 v7, v0, 2, 2\nv_lshlrev_b32 v7, 10, v7\nv_and_b32 v1, 3, v0\nv_lshl_add_u32 v7, v1, 6, v7\nv_lshrrev_b32 v1, 4, v0\nv_lshl_add_u32 v7, v1, 4, v7')
        a(f's_lshl_b32 s61, s33, 15\ns_lshl_b32 s37, s30, 12\ns_add_u32 s61, s61, s37\ns_add_u32 s61, s61, {OBUF}')
        a(f'v_and_b32 v2, 15, v0\nv_lshlrev_b32 v2, 3, v2\nv_lshl_add_u32 v2, v1, 8, v2\ns_lshl_b32 s37, s30, 14\nv_add_u32 v2, s37, v2')
    tail_addr()
    while ci < len(chunks): run_chunk(128)
    stamp(a, P, 'Vlast')
    a(f'ds_write_b128 v3, v[{ACC}:{ACC+3}]\nds_write_b128 v3, v[{ACC+4}:{ACC+7}] offset:16\ns_waitcnt lgkmcnt(0)\ns_barrier')
    stamp(a, P, 'B2')
    for w in range(4): a(f'ds_read2st64_b32 v[{16+2*w}:{17+2*w}], v4 offset0:{16*w} offset1:{16*w+8}')
    a('ds_read_b128 v[24:27], v5\nds_read_b128 v[28:31], v5 offset:16\ns_waitcnt lgkmcnt(0)')
    a('v_mul_f32 v32, v16, v24\nv_mul_f32 v33, v17, v25')
    for w in range(2, 8): a(f'v_fmac_f32 v{32+(w&1)}, v{16+w}, v{24+w}')
    a('v_add_f32 v32, v32, v33')
    a('v_mov_b32_dpp v33, v32 quad_perm:[1,0,3,2] row_mask:0xf bank_mask:0xf')
    a('v_cvt_pk_bf16_f32 v32, v32, v33\nv_min_u32 v32, -2, v32')
    a('s_mov_b32 exec_lo, 0x55555555\ns_mov_b32 exec_hi, 0x55555555')
    a('buffer_store_dword v32, v6, s[52:55], s60 offen sc1\ns_mov_b64 exec, -1')
    stamp(a, P, 'ost')
    a('s_cmp_lt_u32 s32, 28\ns_cbranch_scc1 L_final')
    if P['diag']:
        a('s_cmp_lg_u32 s30, 0\ns_cbranch_scc1 L_end')
        stamp(a, P, 'end')
        stamp_store(a, P, stamp_items(P, S_PTS), hw=True)
    a('s_endpgm')
    a('L_final:')
    BF, AF, DF = 56, 120, 136
    a(f's_mov_b32 s86, {P["spin"]}')
    for blk in range(4): a(f'buffer_load_dwordx4 v[{AF+4*blk}:{AF+4*blk+3}], v7, s[52:55], s61 offen offset:{blk*256} sc1')
    for blk in range(4):
        for jj in range(4):
            b = BF + 16 * blk + 4 * jj; o = blk * 4096 + jj * 1024
            a(f'ds_read_b64_tr_b16 v[{b}:{b+1}], v2 offset:{o}\nds_read_b64_tr_b16 v[{b+2}:{b+3}], v2 offset:{o+128}')
    a(f'v_and_b32 v3, 15, v0\nv_mul_u32_u24 v3, 144, v3\nv_lshl_add_u32 v3, v1, 2, v3\ns_lshl_b32 s37, s30, 4\ns_add_u32 s37, s37, {L_FIN}\nv_add_u32 v3, s37, v3')
    a('s_branch L_gchk')
    a('L_gpoll:')
    a('s_sleep 1')
    for blk in range(4): a(f'buffer_load_dwordx4 v[{AF+4*blk}:{AF+4*blk+3}], v7, s[52:55], s61 offen offset:{blk*256} sc1')
    a('L_gchk:')
    a('s_waitcnt vmcnt(0)')
    a(f'v_max3_u32 v16, v{AF}, v{AF+1}, v{AF+2}\nv_max3_u32 v17, v{AF+3}, v{AF+4}, v{AF+5}\nv_max3_u32 v18, v{AF+6}, v{AF+7}, v{AF+8}')
    a(f'v_max3_u32 v16, v16, v{AF+9}, v{AF+10}\nv_max3_u32 v17, v17, v{AF+11}, v{AF+12}\nv_max3_u32 v18, v18, v{AF+13}, v{AF+14}')
    a(f'v_max3_u32 v16, v16, v17, v{AF+15}\nv_max_u32 v16, v16, v18\nv_cmp_eq_u32 vcc, -1, v16')
    a('s_sub_u32 s86, s86, 1\ns_cbranch_scc1 L_gdone\ns_cbranch_vccnz L_gpoll')
    a('L_gdone:')
    stamp(a, P, 'gok')
    a('s_waitcnt lgkmcnt(0)')
    for blk in range(4):
        for jj in range(4):
            b = BF + 16 * blk + 4 * jj; d = DF + 4 * jj
            c = '0' if blk == 0 else f'v[{d}:{d+3}]'
            a(f'v_mfma_f32_16x16x32_bf16 v[{d}:{d+3}], v[{AF+4*blk}:{AF+4*blk+3}], v[{b}:{b+3}], {c}')
    a(f'v_add_f32 v16, v{DF}, v{DF+5}\nv_add_f32 v17, v{DF+10}, v{DF+15}\nv_add_f32 v16, v16, v17')
    a('ds_write_b32 v3, v16')
    a(f'v_lshrrev_b32 v4, 2, v0\nv_mul_u32_u24 v5, 144, v4\nv_and_b32 v6, 3, v0\nv_lshl_add_u32 v5, v6, 5, v5\nv_add_u32 v5, {L_FIN}, v5')
    a(f'v_lshlrev_b32 v6, 3, v4\nv_add_u32 v6, {L_XB}, v6')
    a('s_mul_i32 s37, s33, 896\ns_lshl_b32 s39, s34, 5\ns_add_u32 s37, s37, s39\nv_lshl_add_u32 v4, v4, 1, s37')
    srd(a, 44, 24, None, 7168)
    a('s_waitcnt lgkmcnt(0)\ns_barrier')
    stamp(a, P, 'B3')
    a('s_cmp_lg_u32 s30, 0\ns_cbranch_scc1 L_end')
    a('ds_read_b128 v[16:19], v5\nds_read_b128 v[20:23], v5 offset:16\nds_read_b64 v[24:25], v6\ns_waitcnt lgkmcnt(0)')
    a('v_add_f32 v16, v16, v17\nv_add_f32 v18, v18, v19\nv_add_f32 v20, v20, v21\nv_add_f32 v22, v22, v23')
    a('v_add_f32 v16, v16, v18\nv_add_f32 v20, v20, v22\nv_add_f32 v16, v16, v20')
    a('v_add_f32_dpp v16, v16, v16 quad_perm:[1,0,3,2] row_mask:0xf bank_mask:0xf')
    a('v_add_f32_dpp v16, v16, v16 quad_perm:[2,3,0,1] row_mask:0xf bank_mask:0xf')
    rnd_bf16(a, 16)
    a('v_add_f32 v16, v24, v16'); rnd_bf16(a, 16)
    a('v_add_f32 v16, v16, v25\nv_cvt_pk_bf16_f32 v16, v16, v16')
    a('s_mov_b32 exec_lo, 0x11111111\ns_mov_b32 exec_hi, 0x11111111')
    a('buffer_store_short v16, v4, s[44:47], 0 offen')
    if P['hold']:
        a(f'L_hold:\ns_memrealtime s[96:97]\ns_waitcnt lgkmcnt(0)\ns_sub_u32 s96, s96, s98\ns_cmp_lt_u32 s96, {P["hold"]}\ns_cbranch_scc1 L_hold')
    if P['diag']:
        a('s_mov_b64 exec, -1\ns_waitcnt vmcnt(0)')
        stamp(a, P, 'end')
        stamp_store(a, P, stamp_items(P, S_PTS), hw=True)
    a('s_endpgm')

def dma_loop(a, P, lab, n, vaddr, sstep, lds0, pol):
    a(f's_mov_b32 s36, 0\ns_mov_b32 s62, {lds0}\ns_mov_b32 s63, {n}')
    a(f'{lab}:')
    a(f's_mov_b32 m0, s62\ns_waitcnt vmcnt({P["DH"]-1})')
    a(f'buffer_load_dwordx4 v{vaddr}, s[56:59], s36 offen {pol} lds')
    a(f's_add_u32 s36, s36, {sstep}\ns_add_u32 s62, s62, 1024\ns_sub_u32 s63, s63, 1\ns_cmp_lg_u32 s63, 0\ns_cbranch_scc1 {lab}')

def helper(a, P):
    stamp(a, P, 'hstart')
    XF, FF, TT, WF, DQ = 16, 44, 100, 44, 108
    a('v_and_b32 v10, 15, v0\nv_lshrrev_b32 v9, 4, v0\nv_and_b32 v8, 7, v0\nv_mul_u32_u24 v8, 896, v8')
    a('v_bfe_u32 v3, v0, 3, 1\nv_mul_u32_u24 v3, 448, v3\nv_lshl_add_u32 v8, v9, 4, v8\nv_add_u32 v8, v8, v3')
    a('v_lshrrev_b32 v1, 1, v0\nv_lshlrev_b32 v1, 13, v1\nv_and_b32 v2, 1, v0\nv_lshl_add_u32 v1, v2, 4, v1')
    a('s_lshl_b32 s37, s31, 5\ns_add_u32 s37, s37, s32\ns_lshl_b32 s37, s37, 5')
    a(f's_sub_u32 s39, {448*8192}, s37')
    a('s_waitcnt lgkmcnt(0)')
    stamp(a, P, 'hkarg')
    a('s_load_dwordx2 s[84:85], s[28:29], 0')
    srd(a, 48, 4, None, 7168)
    for ks in range(7): a(f'buffer_load_dwordx4 v[{XF+4*ks}:{XF+4*ks+3}], v8, s[48:51], 0 offen offset:{ks*64} {P["xpol"]}')
    srd(a, 56, 10, 's37', 's39')
    for i in range(14):
        a(f's_mov_b32 m0, {L_WQ+i*1024}\ns_mov_b32 s36, {i*262144}')
        a(f'buffer_load_dwordx4 v1, s[56:59], s36 offen {P["wpol"]} lds')
    stamp(a, P, 'wqiss')
    a('s_lshl_b32 s38, s33, 5\ns_add_u32 s38, s38, s34')
    srd(a, 52, 28, None, WS_USED)
    a('v_mov_b32 v4, -1\nv_mov_b32 v5, -1\nv_mov_b32 v6, -1\nv_mov_b32 v7, -1\nv_lshlrev_b32 v2, 4, v0')
    a(f's_lshl_b32 s37, s38, 10\ns_add_u32 s37, s37, {OBUF}\nbuffer_store_dwordx4 v[4:7], v2, s[52:55], s37 offen sc1')
    a(f'v_lshlrev_b32 v3, 3, v0\nv_add_u32 v3, {L_ML}, v3\ns_mov_b64 exec, 0xffff\nds_write_b64 v3, v[4:5]\ns_mov_b64 exec, -1')
    a(f'v_lshlrev_b32 v12, 3, v10\nv_lshl_add_u32 v12, v9, 8, v12')
    a(f'v_lshlrev_b32 v13, 14, v10\nv_lshl_add_u32 v13, v9, 4, v13\nv_mov_b32 v14, {hex(OOB)}\nv_cmp_gt_u32 vcc, 8, v10\nv_cndmask_b32 v13, v14, v13, vcc')
    a(f's_lshl_b32 s60, s31, 11\ns_lshl_b32 s37, s32, 6\ns_add_u32 s60, s60, s37\ns_add_u32 s60, s60, {QBUF}')
    a(f's_lshl_b32 s61, s33, 3\ns_lshr_b32 s37, s34, 2\ns_add_u32 s61, s61, s37\ns_lshl_b32 s61, s61, 11\ns_add_u32 s61, s61, {QBUF}')
    a(f's_mov_b32 s83, {hex(f2u(C_EXP))}')
    a('s_waitcnt vmcnt(15)')
    stamp(a, P, 'xland')
    layernorm(a, XF, FF, TT)
    stamp(a, P, 'lndone')
    a('s_waitcnt vmcnt(1) lgkmcnt(0)')
    stamp(a, P, 'wqland')
    a('s_add_u32 s84, s84, 0x9E3779B9\ns_addc_u32 s85, s85, 0x7F4A7C15')
    order = [k for ks in range(7) for k in (ks, ks + 7)]
    def rd(k):
        a(f'ds_read_b64_tr_b16 v[{WF+4*k}:{WF+4*k+1}], v12 offset:{L_WQ+k*1024}')
        a(f'ds_read_b64_tr_b16 v[{WF+4*k+2}:{WF+4*k+3}], v12 offset:{L_WQ+k*1024+128}')
    for n in range(6): rd(order[n])
    for n, k in enumerate(order):
        if n + 6 < 14: rd(order[n + 6])
        a(f's_waitcnt lgkmcnt({2*min(6, 13-n)})')
        d = DQ + 4 * (k // 7); ks = k % 7
        c = '0' if ks == 0 else f'v[{d}:{d+3}]'
        a(f'v_mfma_f32_16x16x32_bf16 v[{d}:{d+3}], v[{WF+4*k}:{WF+4*k+3}], v[{XF+4*ks}:{XF+4*ks+3}], {c}')
    for r in range(4): a(f'v_add_f32_dpp v{DQ+r}, v{DQ+4+r}, v{DQ+r} row_ror:8 row_mask:0xf bank_mask:0xf')
    a(f'v_mov_b32 v6, s84\nv_mov_b32 v7, s85')
    a(f'v_cvt_pk_bf16_f32 v4, v{DQ}, v{DQ+1}\nv_cvt_pk_bf16_f32 v5, v{DQ+2}, v{DQ+3}')
    a('buffer_store_dwordx4 v[4:7], v13, s[52:55], s60 offen sc1')
    stamp(a, P, 'qpub')
    a(f's_mov_b32 s86, {P["spin"]}\nv_lshlrev_b32 v3, 3, v0\nv_add_u32 v3, {L_Q}, v3')
    a('L_qpoll:')
    a('buffer_load_dwordx4 v[44:47], v2, s[52:55], s61 offen sc1\nbuffer_load_dwordx4 v[48:51], v2, s[52:55], s61 offen offset:1024 sc1')
    a('s_waitcnt vmcnt(0)')
    a('v_cmp_ne_u64 vcc, s[84:85], v[46:47]\nv_cmp_ne_u64 s[62:63], s[84:85], v[50:51]\ns_or_b64 vcc, vcc, s[62:63]')
    a('s_sub_u32 s86, s86, 1\ns_cbranch_scc1 L_qdone\ns_cbranch_vccnz L_qpoll')
    a('L_qdone:')
    stamp(a, P, 'qok')
    a('ds_write_b64 v3, v[44:45]\nds_write_b64 v3, v[48:49] offset:512\ns_waitcnt lgkmcnt(0)\ns_barrier')
    stamp(a, P, 'B1')
    a('s_mul_i32 s37, s2, 14336')
    srd(a, 56, 12, 's37', 14336)
    a('v_bfe_u32 v1, v0, 1, 4\nv_mul_u32_u24 v1, 896, v1\nv_lshrrev_b32 v3, 5, v0\nv_lshl_add_u32 v1, v3, 5, v1\nv_and_b32 v4, 1, v0\nv_lshl_add_u32 v1, v4, 4, v1')
    for i in range(14): a(f'buffer_load_dwordx4 v[{FF+4*i}:{FF+4*i+3}], v1, s[56:59], 0 offen offset:{i*64} {P["wpol"]}')
    a(f'v_and_b32 v4, 31, v0\nv_lshlrev_b32 v4, 4, v4\nv_lshl_add_u32 v4, v3, 17, v4\ns_lshl_b32 s36, s2, 9\ns_add_u32 s36, s36, {WT}')
    for i in range(14):
        a(f's_waitcnt vmcnt(13)\nbuffer_store_dwordx4 v[{FF+4*i}:{FF+4*i+3}], v4, s[52:55], s36 offen sc1\ns_add_u32 s36, s36, 262144')
    a(f'v_mov_b32 v6, s84\nv_mov_b32 v7, s85\nv_mov_b32 v4, 0\ns_lshl_b32 s37, s2, 3\ns_add_u32 s37, s37, {WTF}')
    a('s_waitcnt vmcnt(0)\ns_mov_b64 exec, 1\nbuffer_store_dwordx2 v[6:7], v4, s[52:55], s37 offen sc1\ns_mov_b64 exec, -1')
    stamp(a, P, 'wtpub')
    a('s_cmp_lt_u32 s32, 28\ns_cbranch_scc0 L_mlp')
    a(f's_mov_b32 s86, {P["spin"]}\ns_mov_b32 s37, {WTF}')
    a('L_wtp:')
    a('buffer_load_dwordx4 v[44:47], v2, s[52:55], s37 offen sc1\nbuffer_load_dwordx4 v[48:51], v2, s[52:55], s37 offen offset:1024 sc1')
    a('s_waitcnt vmcnt(0)')
    a('v_cmp_ne_u64 vcc, s[84:85], v[44:45]\nv_cmp_ne_u64 s[62:63], s[84:85], v[46:47]\ns_or_b64 vcc, vcc, s[62:63]')
    a('v_cmp_ne_u64 s[56:57], s[84:85], v[48:49]\nv_cmp_ne_u64 s[62:63], s[84:85], v[50:51]\ns_or_b64 vcc, vcc, s[56:57]\ns_or_b64 vcc, vcc, s[62:63]')
    a('s_sub_u32 s86, s86, 1\ns_cbranch_scc1 L_wtd\ns_cbranch_vccz L_wtd\ns_sleep 8\ns_branch L_wtp')
    a('L_wtd:')
    stamp(a, P, 'wtok')
    a(f's_lshl_b32 s37, s34, 17\ns_add_u32 s37, s37, {WT}')
    srd(a, 56, 28, 's37', 131072)
    dma_loop(a, P, 'L_wo', 128, 2, 1024, L_WO, P['tpol'])
    a('s_branch L_ml')
    a('L_mlp:')
    a('s_sub_u32 s59, s32, 28\ns_lshl_b32 s87, s59, 3\ns_add_u32 s87, s87, s31')
    a('s_cmp_lt_u32 s87, 28\ns_cbranch_scc0 L_ml')
    YF = XF
    a('s_lshl_b32 s37, s87, 7')
    srd(a, 56, 18, 's37', 128)
    a('v_lshlrev_b32 v3, 3, v9')
    B1R = 116
    for t in range(4): a(f'buffer_load_dwordx2 v[{B1R+2*t}:{B1R+2*t+1}], v3, s[56:59], 0 offen offset:{t*32}')
    a(f's_sub_u32 s39, {448*3584}, s37')
    srd(a, 56, 16, 's37', 's39')
    a('v_lshrrev_b32 v1, 3, v0\nv_mul_u32_u24 v1, 3584, v1\nv_and_b32 v3, 7, v0\nv_lshl_add_u32 v1, v3, 4, v1')
    dma_loop(a, P, 'L_w1', 56, 1, 8 * 3584, L_W1, P['mpol'])
    a('s_mul_i32 s37, s87, 57344')
    srd(a, 56, 20, 's37', 57344)
    dma_loop(a, P, 'L_w2', 56, 2, 1024, L_W2, P['mpol'])
    layernorm(a, XF, FF, TT)
    a(f'v_bfe_u32 v3, v0, 2, 2\nv_lshl_add_u32 v4, v9, 3, v3\nv_lshlrev_b32 v4, 7, v4\nv_and_b32 v5, 3, v0\nv_lshl_add_u32 v4, v5, 3, v4\nv_add_u32 v4, {L_W1}, v4')
    a(f'v_lshl_add_u32 v6, v9, 2, v3\nv_mul_u32_u24 v6, 896, v6\nv_lshl_add_u32 v6, v5, 3, v6\nv_add_u32 v6, {L_W2}, v6')
    a(f'v_mul_u32_u24 v13, 1792, v10\nv_lshl_add_u32 v13, v9, 4, v13\nv_cmp_gt_u32 vcc, 8, v10\nv_cndmask_b32 v13, v14, v13, vcc')
    TA, D1, D1H = 44, 76, 92
    seq = [(t, ks) for t in range(4) for k7 in range(7) for ks in (k7, k7 + 7)]
    def rd1(n):
        t, ks = seq[n]; r = TA + 4 * (n % 8); o = ks * 4096 + t * 32
        a(f'ds_read_b64_tr_b16 v[{r}:{r+1}], v4 offset:{o}\nds_read_b64_tr_b16 v[{r+2}:{r+3}], v4 offset:{o+512}')
    a('s_waitcnt lgkmcnt(0)')
    for n in range(6): rd1(n)
    for n, (t, ks) in enumerate(seq):
        if n + 6 < len(seq): rd1(n + 6)
        a(f's_waitcnt lgkmcnt({2*min(6, len(seq)-1-n)})')
        r = TA + 4 * (n % 8); d = (D1H if ks >= 7 else D1) + 4 * t
        c = '0' if ks % 7 == 0 else f'v[{d}:{d+3}]'
        a(f'v_mfma_f32_16x16x32_bf16 v[{d}:{d+3}], v[{r}:{r+3}], v[{YF+4*(ks%7)}:{YF+4*(ks%7)+3}], {c}')
    for r in range(16): a(f'v_add_f32_dpp v{D1+r}, v{D1H+r}, v{D1+r} row_ror:8 row_mask:0xf bank_mask:0xf')
    BU = 16; HF = 108
    unpack(a, B1R, BU, 8)
    k0 = 2 * 0.7978845608028654 * math.log2(math.e); k1 = k0 * 0.044715
    a(f's_mov_b32 s62, {hex(f2u(-k1))}\nv_mov_b32 v15, {hex(f2u(-k0))}')
    for i in range(8): a(f'v_cvt_pk_bf16_f32 v{32+i}, v{D1+2*i}, v{D1+2*i+1}')
    unpack(a, 32, D1, 8)
    for i in range(16): a(f'v_add_f32 v{D1+i}, v{D1+i}, v{BU+i}')
    for i in range(8): a(f'v_cvt_pk_bf16_f32 v{32+i}, v{D1+2*i}, v{D1+2*i+1}')
    unpack(a, 32, D1, 8)
    for i in range(16): a(f'v_mul_f32 v{BU+i}, v{D1+i}, v{D1+i}')
    for i in range(16): a(f'v_fma_f32 v{BU+i}, v{BU+i}, s62, v15')
    for i in range(16): a(f'v_mul_f32 v{BU+i}, v{BU+i}, v{D1+i}')
    for i in range(16): a(f'v_exp_f32 v{BU+i}, v{BU+i}')
    for i in range(16): a(f'v_add_f32 v{BU+i}, 1.0, v{BU+i}')
    for i in range(16): a(f'v_rcp_f32 v{BU+i}, v{BU+i}')
    for i in range(16): a(f'v_mul_f32 v{D1+i}, v{D1+i}, v{BU+i}')
    for i in range(8): a(f'v_cvt_pk_bf16_f32 v{HF+i}, v{D1+2*i}, v{D1+2*i+1}')
    a(f's_mul_i32 s60, s87, 14336\ns_add_u32 s60, s60, {MBUF}\ns_waitcnt vmcnt(0)')
    seq2 = [(nt, k) for nt in range(28) for k in range(2)]
    def rd2(n):
        nt, k = seq2[n]; r = TA + 4 * (n % 8); o = k * 32 * 896 + nt * 32
        a(f'ds_read_b64_tr_b16 v[{r}:{r+1}], v6 offset:{o}\nds_read_b64_tr_b16 v[{r+2}:{r+3}], v6 offset:{o+14336}')
    for n in range(6): rd2(n)
    D2 = [76, 80, 84, 88]
    def st2(nt):
        d = D2[nt % 4]
        a(f'buffer_store_dwordx4 v[{d}:{d+3}], v13, s[52:55], s60 offen offset:{nt*64} sc1')
    for n, (nt, k) in enumerate(seq2):
        if n + 6 < len(seq2): rd2(n + 6)
        a(f's_waitcnt lgkmcnt({2*min(6, len(seq2)-1-n)})')
        r = TA + 4 * (n % 8); d = D2[nt % 4]
        c = '0' if k == 0 else f'v[{d}:{d+3}]'
        a(f'v_mfma_f32_16x16x32_bf16 v[{d}:{d+3}], v[{r}:{r+3}], v[{HF+4*k}:{HF+4*k+3}], {c}')
        if k == 1 and nt >= 2: st2(nt - 2)
    st2(26); st2(27)
    a(f'v_mov_b32 v6, s84\nv_mov_b32 v7, s85\nv_mov_b32 v4, 0\ns_lshl_b32 s37, s87, 4\ns_add_u32 s37, s37, {MFLAG}')
    a('s_waitcnt vmcnt(0)\ns_mov_b64 exec, 1\nbuffer_store_dwordx2 v[6:7], v4, s[52:55], s37 offen sc1\ns_mov_b64 exec, -1')
    a('L_ml:')
    stamp(a, P, 'wodone')
    a(f'v_and_b32 v3, 15, v0\nv_lshlrev_b32 v3, 3, v3\nv_add_u32 v3, {L_ML}, v3\ns_mov_b32 s86, {P["spin"]*16}')
    a('L_mlw:')
    a('s_sleep 4\nds_read_b64 v[16:17], v3\ns_waitcnt lgkmcnt(0)\nv_cmp_eq_u32 vcc, -1, v16')
    a('s_sub_u32 s86, s86, 1\ns_cbranch_scc1 L_mlwd\ns_cbranch_vccnz L_mlw')
    a('L_mlwd:')
    d8 = ('quad_perm:[1,0,3,2]', 'quad_perm:[2,3,0,1]', 'row_half_mirror')
    a('v_mov_b32 v18, v16')
    for m in d8: a(f'v_max_f32_dpp v18, v18, v18 {m} row_mask:0xf bank_mask:0xf')
    a('v_sub_f32 v19, v16, v18\nv_mul_f32 v19, s83, v19\nv_exp_f32 v19, v19\nv_mul_f32 v19, v19, v17')
    for m in d8: a(f'v_add_f32_dpp v19, v19, v19 {m} row_mask:0xf bank_mask:0xf')
    a('v_mov_b32 v20, s84\nv_mov_b32 v21, s85\nv_lshlrev_b32 v4, 6, v0')
    a(f's_lshl_b32 s61, s33, 10\ns_add_u32 s61, s61, {MLBUF}\ns_lshl_b32 s37, s34, 4\ns_add_u32 s37, s37, s61')
    a('s_waitcnt vmcnt(0)\ns_mov_b64 exec, 0x101\nbuffer_store_dwordx4 v[18:21], v4, s[52:55], s37 offen sc1\ns_mov_b64 exec, -1')
    a(f's_mov_b32 s86, {P["spin"]}')
    stamp(a, P, 'mlpub')
    a('L_mlp2:')
    a('s_sleep 2\nbuffer_load_dwordx4 v[24:27], v2, s[52:55], s61 offen sc1\ns_waitcnt vmcnt(0)')
    a('v_cmp_ne_u64 vcc, s[84:85], v[26:27]')
    a('s_sub_u32 s86, s86, 1\ns_cbranch_scc1 L_mlp2d\ns_cbranch_vccnz L_mlp2')
    a('L_mlp2d:')
    stamp(a, P, 'mlok')
    a('v_mov_b32 v28, v24')
    for m in d8[:2]: a(f'v_max_f32_dpp v28, v28, v28 {m} row_mask:0xf bank_mask:0xf')
    a('v_sub_f32 v29, v24, v28\nv_mul_f32 v29, s83, v29\nv_exp_f32 v29, v29\nv_mul_f32 v29, v29, v25')
    for m in d8[:2]: a(f'v_add_f32_dpp v29, v29, v29 {m} row_mask:0xf bank_mask:0xf')
    a('s_and_b32 s37, s34, 28\ns_add_u32 s39, s37, 32')
    a('v_readlane_b32 s62, v28, s37\nv_readlane_b32 s63, v29, s37\nv_readlane_b32 s60, v28, s39\nv_readlane_b32 s59, v29, s39')
    a('v_mov_b32 v30, s62\nv_mov_b32 v31, s63\nv_mov_b32 v32, s60\nv_mov_b32 v33, s59')
    a('s_mov_b32 s62, 0xff00ff00\ns_mov_b32 s63, 0xff00ff00')
    a('v_cndmask_b32 v30, v30, v32, s[62:63]\nv_cndmask_b32 v31, v31, v33, s[62:63]')
    a('v_sub_f32 v30, v16, v30\nv_mul_f32 v30, s83, v30\nv_exp_f32 v30, v30\nv_rcp_f32 v31, v31\nv_mul_f32 v30, v30, v31')
    a(f'v_lshlrev_b32 v3, 2, v0\nv_add_u32 v3, {L_F}, v3\ns_mov_b64 exec, 0xffff\nds_write_b32 v3, v30\ns_mov_b64 exec, -1')
    a('s_cmp_lg_u32 s2, 0\ns_cbranch_scc1 L_noep')
    a('v_mov_b32 v4, 0\ns_mov_b64 exec, 1\nbuffer_store_dwordx2 v[20:21], v4, s[52:55], 0 offen sc1\ns_mov_b64 exec, -1')
    a('L_noep:')
    a('s_cmp_lt_u32 s32, 28\ns_cbranch_scc0 L_hend')
    a(f'v_cmp_gt_u32 vcc, 28, v0\nv_mov_b32 v3, 0\nv_cndmask_b32 v3, v3, v2, vcc\ns_mov_b32 s86, {P["spin"]}\ns_mov_b32 s37, {MFLAG}')
    a('L_mf:')
    a('buffer_load_dwordx2 v[16:17], v3, s[52:55], s37 offen sc1\ns_waitcnt vmcnt(0)\nv_cmp_ne_u64 vcc, s[84:85], v[16:17]')
    a('s_sub_u32 s86, s86, 1\ns_cbranch_scc1 L_mfd\ns_cbranch_vccz L_mfd\ns_sleep 4\ns_branch L_mf')
    a('L_mfd:')
    a('v_lshrrev_b32 v3, 2, v0\nv_mul_u32_u24 v3, 14336, v3\nv_and_b32 v5, 3, v0\nv_lshl_add_u32 v3, v5, 4, v3')
    a(f'v_add_u32 v4, {16*14336}, v3\nv_cmp_gt_u32 vcc, 48, v0\nv_cndmask_b32 v4, v14, v4, vcc')
    a(f's_mul_i32 s37, s33, 1792\ns_lshl_b32 s39, s34, 6\ns_add_u32 s37, s37, s39\ns_add_u32 s37, s37, {MBUF}')
    a('buffer_load_dwordx4 v[16:19], v3, s[52:55], s37 offen sc1\nbuffer_load_dwordx4 v[20:23], v4, s[52:55], s37 offen sc1')
    a('v_lshlrev_b32 v6, 3, v5\ns_lshl_b32 s39, s34, 5')
    srd(a, 56, 22, None, 896)
    a('buffer_load_dwordx2 v[24:25], v6, s[56:59], s39 offen')
    srd(a, 48, 4, None, 7168)
    a('s_mul_i32 s37, s33, 896\ns_add_u32 s37, s37, s39\nbuffer_load_dwordx2 v[26:27], v6, s[48:51], s37 offen')
    a('s_waitcnt vmcnt(0)')
    for i in range(4): a(f'v_add_f32 v{16+i}, v{16+i}, v{20+i}')
    for m in ('row_ror:4', 'row_ror:8'):
        for i in range(4): a(f'v_add_f32_dpp v{16+i}, v{16+i}, v{16+i} {m} row_mask:0xf bank_mask:0xf')
    for i in range(4): xgroup(a, 'v_add_f32', 16 + i, 20 + i)
    unpack(a, 24, 28, 2)
    a('v_cvt_pk_bf16_f32 v20, v16, v17\nv_cvt_pk_bf16_f32 v21, v18, v19')
    unpack(a, 20, 16, 2)
    for i in range(4): a(f'v_add_f32 v{16+i}, v{16+i}, v{28+i}')
    a('v_cvt_pk_bf16_f32 v20, v16, v17\nv_cvt_pk_bf16_f32 v21, v18, v19')
    a('v_lshlrev_b32 v32, 16, v26\nv_lshlrev_b32 v33, 16, v20\nv_and_b32 v34, 0xffff0000, v26\nv_and_b32 v35, 0xffff0000, v20')
    a('v_lshlrev_b32 v36, 16, v27\nv_lshlrev_b32 v37, 16, v21\nv_and_b32 v38, 0xffff0000, v27\nv_and_b32 v39, 0xffff0000, v21')
    a(f'v_lshlrev_b32 v3, 5, v0\nv_add_u32 v3, {L_XB}, v3\ns_mov_b64 exec, 0xf')
    a('ds_write_b128 v3, v[32:35]\nds_write_b128 v3, v[36:39] offset:16\ns_mov_b64 exec, -1')
    a('L_hend:')
    a('s_waitcnt vmcnt(0) lgkmcnt(0)')
    stamp(a, P, 'hend')
    stamp_store(a, P, stamp_items(P, H_PTS))
    a('s_endpgm')

def body(P):
    a = Asm()
    a('s_cmp_ge_u32 s2, 256\ns_cbranch_scc1 L_end')
    a('s_load_dwordx16 s[4:19], s[0:1], 0\ns_load_dwordx8 s[20:27], s[0:1], 64\ns_load_dwordx2 s[28:29], s[0:1], 96')
    a('v_lshrrev_b32 v1, 6, v0\nv_and_b32 v0, 63, v0\nv_readfirstlane_b32 s30, v1')
    a('s_and_b32 s31, s2, 7\ns_lshr_b32 s32, s2, 3\ns_mul_i32 s37, s31, 28\ns_add_u32 s37, s37, s32')
    a('s_and_b32 s33, s37, 7\ns_lshr_b32 s34, s37, 3\ns_cmp_lt_u32 s32, 28\ns_cselect_b32 s33, s33, s31\ns_cselect_b32 s34, s34, s32')
    stamp_init(a, P)
    a('s_cmp_lg_u32 s30, 0\ns_cbranch_scc1 L_stream')
    helper(a, P)
    streamer(a, P)
    a('L_end:\ns_endpgm')
    txt, n = a.text()
    return txt, n

def vgprs(P): return max(56 + 4 * P['R'], 152)

def kernel(P):
    txt, n = body(P)
    nm = P['name']
    txt = txt.replace('L_', f'L{nm[-24:]}_') if P.get('uniq') else txt
    return txt

def final_file(P):
    ref = open(f'cdna_kernels/{NAME}.s.ref').read()
    head = ref[:ref.index('; Override launch')]
    nm = P['name']; vg = vgprs(P)
    return head + f'''; Single launch: 256 workgroups x (8 streaming waves + 1 helper wave). Generated by gen/gen.py.
; @launch grid=(256,1,1) block=(576,1,1) lds={LDS_BYTES}
.amdgcn_target "amdgcn-amd-amdhsa--gfx950"
.text
.globl {nm}
.p2align 8
.type {nm},@function
{nm}:
{kernel(P)}
.section .rodata,"a"
.p2align 6
.amdhsa_kernel {nm}
  .amdhsa_next_free_vgpr {vg}
  .amdhsa_next_free_sgpr 102
  .amdhsa_accum_offset {(vg+3)//4*4}
  .amdhsa_group_segment_fixed_size 0
  .amdhsa_kernarg_size 104
  .amdhsa_user_sgpr_count 2
  .amdhsa_user_sgpr_kernarg_segment_ptr 1
  .amdhsa_system_sgpr_workgroup_id_x 1
.end_amdhsa_kernel
'''

if __name__ == '__main__':
    P = dict(DEF)
    out = f'cdna_kernels/{NAME}.s'
    for kv in sys.argv[1:]:
        k, v = kv.split('=', 1)
        if k == 'out': out = v
        else: P[k] = type(DEF[k])(v) if not isinstance(DEF[k], bool) else v == '1'
    open(out, 'w').write(final_file(P))
    print('wrote', out)
```

```python
import sys, math, struct
from asmlib import Asm

NAME = 'parallel_sum__gqa_block_cached__mixer_channel_mlp__decode'
def f2u(x): return struct.unpack('<I', struct.pack('<f', x))[0]

QBUF, MLBUF, MFLAG, OBUF, PBUF, MBUF, WS_USED = 0x1000, 0x21000, 0x23000, 0x24000, 0x64000, 0xE4000, 0x1A8000
STAMP_OFF = 536870912 - (1 << 20)
WSTR = 912; NWO = 114
L_WO = 0; L_WQ = 0
L_PART = 128 * WSTR
L_MS = L_PART + 16384
L_Q = L_MS + 28672
L_ML = L_Q + 1024
L_F = L_ML + 128
L_XB = L_F + 64
LDS_BYTES = L_XB + 128
OOB = 0x7F000000
C_EXP = math.log2(math.e) / 16.0

DEF = dict(R=24, D=4, D0=4, DH=5, DM=8, n1=12, n1p=4, n1r=3, n2=76, pol='nt', wpol='', xpol='', opol='', mpol='nt', diag=False, budget=2,
           name=NAME + '_kernel', spin=1 << 16, hold=0, bmap=0, pts='start+qpub+B1+Kdone+hend+B2+end')
def block(P): return 640

def srd(a, n, base, off, size):
    if off is None:
        a(f's_mov_b32 s{n}, s{base}\ns_mov_b32 s{n+1}, s{base+1}')
    else:
        a(f's_add_u32 s{n}, s{base}, {off}\ns_addc_u32 s{n+1}, s{base+1}, 0')
    a(f's_mov_b32 s{n+2}, {size}\ns_mov_b32 s{n+3}, 0x20000')

def wave_sum(a, v, s):
    for m in ('row_shr:1', 'row_shr:2', 'row_shr:4', 'row_shr:8'):
        a(f'v_add_f32_dpp v{v}, v{v}, v{v} {m} row_mask:0xf bank_mask:0xf')
    a(f'v_add_f32_dpp v{v}, v{v}, v{v} row_bcast:15 row_mask:0xa bank_mask:0xf')
    a(f'v_add_f32_dpp v{v}, v{v}, v{v} row_bcast:31 row_mask:0xc bank_mask:0xf')
    a(f'v_readlane_b32 s{s}, v{v}, 63')

def rnd_bf16(a, v):
    a(f'v_cvt_pk_bf16_f32 v{v}, v{v}, v{v}\nv_and_b32 v{v}, 0xffff0000, v{v}')

def unpack(a, src, dst, n):
    for i in range(n):
        a(f'v_and_b32 v{dst+2*i+1}, 0xffff0000, v{src+i}\nv_lshlrev_b32 v{dst+2*i}, 16, v{src+i}')

def row_sum(a, v, t):
    a(f'v_add_f32_dpp v{v}, v{v}, v{v} row_ror:8 row_mask:0xf bank_mask:0xf')
    xgroup(a, 'v_add_f32', v, t)

def layernorm(a, X, F, T):
    pr = lambda r: f'v[{r}:{r+1}]'
    unpack(a, X, F, 28)
    a(f'v_pk_add_f32 {pr(T)}, {pr(F)}, {pr(F+2)}\nv_pk_add_f32 {pr(T+2)}, {pr(F+4)}, {pr(F+6)}')
    for i in range(4, 28): a(f'v_pk_add_f32 {pr(T+2*(i&1))}, {pr(T+2*(i&1))}, {pr(F+2*i)}')
    a(f'v_pk_add_f32 {pr(T)}, {pr(T)}, {pr(T+2)}\nv_add_f32 v{T}, v{T}, v{T+1}')
    row_sum(a, T, T + 1)
    a(f'v_mul_f32 v{T}, {hex(f2u(-1/448))}, v{T}\nv_mov_b32 v{T+1}, v{T}')
    for i in range(28):
        d = T + 4 + 2 * (i & 1)
        a(f'v_pk_add_f32 {pr(d)}, {pr(F+2*i)}, {pr(T)}')
        if i == 0: a(f'v_pk_mul_f32 {pr(T+2)}, {pr(d)}, {pr(d)}')
        else: a(f'v_pk_fma_f32 {pr(T+2)}, {pr(d)}, {pr(d)}, {pr(T+2)}')
    a(f'v_add_f32 v{T+2}, v{T+2}, v{T+3}')
    row_sum(a, T + 2, T + 3)
    rnd_bf16(a, T)
    a(f'v_mov_b32 v{T+1}, v{T}\nv_mul_f32 v{T+2}, {hex(f2u(1/448))}, v{T+2}')
    rnd_bf16(a, T + 2)
    a(f'v_add_f32 v{T+2}, {hex(f2u(1e-5))}, v{T+2}')
    rnd_bf16(a, T + 2)
    a(f'v_sqrt_f32 v{T+2}, v{T+2}')
    for i in range(28): a(f'v_pk_add_f32 {pr(F+2*i)}, {pr(F+2*i)}, {pr(T)}')
    rnd_bf16(a, T + 2)
    a(f'v_rcp_f32 v{T+2}, v{T+2}')
    for i in range(28): a(f'v_cvt_pk_bf16_f32 v{X+i}, v{F+2*i}, v{F+2*i+1}')
    a(f'v_mov_b32 v{T+3}, v{T+2}')
    unpack(a, X, F, 28)
    for i in range(28): a(f'v_pk_mul_f32 {pr(F+2*i)}, {pr(F+2*i)}, {pr(T+2)}')
    for i in range(28): a(f'v_cvt_pk_bf16_f32 v{X+i}, v{F+2*i}, v{F+2*i+1}')

def xgroup(a, op, v, t):
    a(f'v_mov_b32 v{t}, v{v}\nv_permlane16_swap_b32 v{v}, v{t}\n{op} v{v}, v{v}, v{t}')
    a(f'v_mov_b32 v{t}, v{v}\nv_permlane32_swap_b32 v{v}, v{t}\n{op} v{v}, v{v}, v{t}')

S_PTS = ['start', 'skarg', 'siss0', 'pst', 'g2ok', 'sB1a', 'sB1', 'Kdone', 'Vlast', 'B2', 'ost', 'gok', 'B3', 'end']
M_PTS = ['mstart', 'mw1', 'mw2', 'mend']
H_PTS = ['hstart', 'wob', 'qack', 'xland', 'lndone', 'wtpub', 'wtok', 'hkarg', 'wqiss', 'hB0', 'wqland', 'qpub', 'qp1', 'qok', 'B1', 'wodone', 'mlpub', 'mlok', 'hend']
def pts(P): return P['pts'].split('+') if isinstance(P['pts'], str) else P['pts']
def stamp(a, P, name):
    if P['diag'] and name in pts(P):
        reg = 88 + 2 * pts(P).index(name)
        a(f's_memrealtime s[{reg}:{reg+1}]\ns_waitcnt lgkmcnt(0)')
def stamp_items(P, lst): return [(i, 88 + 2 * i) for i, n in enumerate(pts(P)) if n in lst]
def stamp_init(a, P):
    if P['diag']:
        for i in range(7): a(f's_mov_b64 s[{88+2*i}:{89+2*i}], 0')

def stamp_store(a, P, items, hw=False):
    if not P['diag']: return
    a('s_waitcnt lgkmcnt(0)')
    a(f's_lshl_b32 s37, s2, 6\ns_add_u32 s37, s37, {STAMP_OFF}')
    srd(a, 40, 28, 's37', 64)
    a('s_mov_b64 exec, 1\nv_mov_b32 v1, 0')
    for idx, reg in items:
        a(f'v_mov_b32 v2, s{reg}\nv_mov_b32 v3, s{reg+1}\nbuffer_store_dwordx2 v[2:3], v1, s[40:43], 0 offen offset:{idx*8}')
    if hw:
        a('s_getreg_b32 s38, hwreg(HW_REG_XCC_ID)\ns_getreg_b32 s39, hwreg(HW_REG_HW_ID)')
        a('v_mov_b32 v2, s38\nv_mov_b32 v3, s39\nbuffer_store_dwordx2 v[2:3], v1, s[40:43], 0 offen offset:56')
    a('s_mov_b64 exec, -1')

def streamer(a, P):
    a('L_stream:\ns_cmp_eq_u32 s30, 9\ns_cbranch_scc1 L_mlp\ns_sub_u32 s30, s30, 1')
    R, D, D0, pol = P['R'], P['D'], P['D0'], P['pol']
    Q, S, DT, RING = 8, 16, 48, 56
    slot = lambda i: RING + 4 * (i % R)
    sl = lambda i: f'v[{slot(i)}:{slot(i)+3}]'
    stamp(a, P, 'start')
    if P['hold']: a('s_memrealtime s[98:99]')
    a('v_and_b32 v1, 3, v0\nv_lshlrev_b32 v1, 4, v1\nv_bfe_u32 v3, v0, 2, 2\nv_lshl_add_u32 v1, v3, 9, v1')
    a('v_lshrrev_b32 v3, 4, v0\nv_lshl_add_u32 v1, v3, 6, v1')
    a('v_and_b32 v2, 15, v0\nv_lshlrev_b32 v2, 4, v2\nv_lshl_add_u32 v2, v3, 9, v2')
    a('s_lshl_b32 s37, s38, 19\ns_lshl_b32 s39, s30, 16\ns_add_u32 s37, s37, s39')
    a('s_add_u32 s35, s30, s32\ns_and_b32 s35, s35, 7\ns_lshl_b32 s35, s35, 12')
    a('s_waitcnt lgkmcnt(0)')
    stamp(a, P, 'skarg')
    srd(a, 40, 6, 's37', 65536)
    srd(a, 44, 8, 's37', 65536)
    def issue(i):
        j = i % 64; G, t = j >> 1, j & 1
        if t == 0: a(f's_xor_b32 s36, s35, {G*2048}')
        r, va = ('s[40:43]', 'v1') if i < 64 else ('s[44:47]', 'v2')
        a(f'buffer_load_dwordx4 {sl(i)}, {va}, {r}, s36 offen offset:{t*256} {pol}')
    for i in range(D0): issue(i)
    stamp(a, P, 'siss0')
    srd(a, 52, 28, None, WS_USED)
    for e in range(2):
        for r in range(4):
            m16 = (0x11 << r) << (8 * e); m32 = m16 | (m16 << 16)
            a(f's_mov_b32 s{64+2*(4*e+r)}, {hex(m32)}\ns_mov_b32 s{65+2*(4*e+r)}, {hex(m32)}')
    a('s_mov_b32 s80, 0x05040100\ns_mov_b32 s81, 0x07060302')
    for i in range(D0, R):
        a(f's_waitcnt vmcnt({D-1})'); issue(i)
    a('v_bfe_u32 v3, v0, 2, 1\nv_lshlrev_b32 v3, 9, v3\nv_and_b32 v4, 3, v0\nv_lshl_add_u32 v3, v4, 4, v3')
    a(f'v_lshrrev_b32 v4, 4, v0\nv_lshl_add_u32 v3, v4, 6, v3\nv_add_u32 v3, {L_Q}, v3')
    stamp(a, P, 'sB1a')
    a(f's_barrier')
    stamp(a, P, 'sB1')
    a(f'ds_read_b128 v[{Q}:{Q+3}], v3\nds_read_b128 v[{Q+4}:{Q+7}], v3 offset:256')
    a(f'v_mov_b32 v4, 0xff800000\ns_mov_b32 s83, {hex(f2u(C_EXP))}\ns_waitcnt lgkmcnt(0)')
    chunks = []
    def kdpp(G):
        d = DT + 4 * (G & 1)
        a(f'v_mov_b32_dpp v{S+G}, v{d} quad_perm:[0,0,0,0] row_mask:0xf bank_mask:0xf')
        for r in range(1, 4):
            a(f'v_add_f32_dpp v{S+G}, v{d+r}, v{S+G} quad_perm:[{r},{r},{r},{r}] row_mask:0xf bank_mask:0xf')
        if G & 1:
            a(f'v_cvt_pk_bf16_f32 v5, v{S+G-1}, v{S+G}\nv_lshlrev_b32 v{S+G-1}, 16, v5\nv_and_b32 v{S+G}, 0xffff0000, v5')
            a(f'v_max3_f32 v4, v4, v{S+G-1}, v{S+G}')
    def kchunk(G):
        def fn():
            d = DT + 4 * (G & 1)
            a(f'v_mfma_f32_16x16x32_bf16 v[{d}:{d+3}], {sl(2*G)}, v[{Q}:{Q+3}], 0')
            a(f'v_mfma_f32_16x16x32_bf16 v[{d}:{d+3}], {sl(2*G+1)}, v[{Q+4}:{Q+7}], v[{d}:{d+3}]')
            if G: kdpp(G - 1)
        return fn
    for G in range(32): chunks.append((2 * G + 1, [2 * G, 2 * G + 1], kchunk(G)))
    def sm0():
        kdpp(31)
        xgroup(a, 'v_max_f32', 4, 5)
        a('v_mul_f32 v6, s83, v4\nv_mov_b32 v7, 0')
        stamp(a, P, 'Kdone')
    chunks.append((63, [], sm0))
    def sm(k):
        def fn():
            for g in range(8 * k, 8 * k + 8): a(f'v_fma_f32 v{S+g}, v{S+g}, s83, -v6')
            for g in range(8 * k, 8 * k + 8): a(f'v_exp_f32 v{S+g}, v{S+g}')
            for g in range(8 * k, 8 * k + 8): a(f'v_add_f32 v7, v7, v{S+g}')
            for i in range(4 * k, 4 * k + 4): a(f'v_cvt_pk_bf16_f32 v{S+i}, v{S+2*i}, v{S+2*i+1}')
        return fn
    for k in range(4): chunks.append((63, [], sm(k)))
    def sm_end():
        xgroup(a, 'v_add_f32', 7, 5)
        a(f'v_mov_b32 v5, v7\nv_bfe_u32 v3, v0, 2, 1\nv_lshlrev_b32 v3, 6, v3\ns_lshl_b32 s37, s30, 3\ns_add_u32 s37, s37, {L_ML}\nv_add_u32 v3, s37, v3')
        a('s_mov_b64 exec, 0x11\nds_write_b64 v3, v[4:5]\ns_mov_b64 exec, -1')
    chunks.append((63, [], sm_end))
    AT = [32, 36]; PT = [40, 44, 8, 12]; ACC = DT
    cnt = [0, 0]
    def vchunk(T, e, r):
        def fn():
            A = AT[cnt[0] & 1]; cnt[0] += 1
            mk = 64 + 2 * (4 * e + r)
            for p in range(4): a(f'v_cndmask_b32 v{A+p}, 0, v{S+4*T+p}, s[{mk}:{mk+1}]')
            for jj in range(2):
                j = 4 * jj + r; m, hh = j >> 1, j & 1
                B = PT[cnt[1] & 3]; cnt[1] += 1
                for p in range(4):
                    ev = 64 + 16 * T + 2 * (2 * p) + e; od = ev + 2
                    a(f'v_perm_b32 v{B+p}, v{slot(od)+m}, v{slot(ev)+m}, s{80+hh}')
                c = '0' if (T == 0 and e == 0 and r == 0) else f'v[{ACC+4*jj}:{ACC+4*jj+3}]'
                a(f'v_mfma_f32_16x16x32_bf16 v[{ACC+4*jj}:{ACC+4*jj+3}], v[{A}:{A+3}], v[{B}:{B+3}], {c}')
        return fn
    for T in range(4):
        for e in range(2):
            for r in range(4):
                fr = [64 + 16 * T + 2 * g + e for g in range(8)] if r == 3 else []
                chunks.append((64 + 16 * T + 14 + e, fr, vchunk(T, e, r)))
    freed = set(); ci = 0; landed = -1
    def run_chunk(issued):
        nonlocal ci, landed
        nd, fr, fn = chunks[ci]; ci += 1
        if nd > landed:
            a(f's_waitcnt vmcnt({issued-1-nd})'); landed = nd
        fn(); freed.update(fr)
    for i in range(R, 128):
        while (i - R) not in freed: run_chunk(i)
        if i - D > landed:
            a(f's_waitcnt vmcnt({D-1})'); landed = i - D
        issue(i)
        n = 0
        while ci < len(chunks) and chunks[ci][0] <= landed and n < P['budget']:
            run_chunk(i + 1); n += 1
    def tail_addr():
        a(f'v_lshrrev_b32 v3, 5, v0\nv_lshlrev_b32 v3, 9, v3\nv_bfe_u32 v4, v0, 4, 1\nv_lshl_add_u32 v3, v4, 10, v3')
        a(f'v_and_b32 v4, 15, v0\nv_lshl_add_u32 v3, v4, 5, v3\ns_lshl_b32 s37, s30, 11\ns_add_u32 s37, s37, {L_PART}\nv_add_u32 v3, s37, v3')
        a(f's_lshl_b32 s37, s30, 8\ns_add_u32 s37, s37, {L_PART}\nv_lshl_add_u32 v4, v0, 2, s37')
        a(f's_lshr_b32 s37, s30, 2\ns_lshl_b32 s37, s37, 5\ns_add_u32 s37, s37, {L_F}\nv_mov_b32 v5, s37')
        a('v_and_b32 v6, 35, v0\nv_bfe_u32 v7, v0, 2, 2\nv_lshl_add_u32 v6, v7, 3, v6\nv_bfe_u32 v1, v0, 4, 1\nv_lshl_add_u32 v6, v1, 2, v6\nv_lshlrev_b32 v6, 1, v6')
        a(f's_lshl_b32 s60, s38, 10\ns_lshl_b32 s37, s30, 7\ns_add_u32 s60, s60, s37\ns_add_u32 s60, s60, {OBUF}')
        a(f'v_lshlrev_b32 v2, 10, v7\nv_and_b32 v8, 3, v0\nv_lshl_add_u32 v2, v8, 6, v2\nv_lshrrev_b32 v1, 4, v0\nv_lshl_add_u32 v2, v1, 4, v2')
        a(f's_and_b32 s61, s38, 0xfc\ns_lshl_b32 s61, s61, 10\ns_and_b32 s37, s38, 3\ns_lshl_b32 s37, s37, 8\ns_add_u32 s61, s61, s37\ns_add_u32 s61, s61, {OBUF}')
        a(f'v_lshl_add_u32 v7, v1, 2, v7\nv_mul_u32_u24 v7, {WSTR}, v7\nv_lshl_add_u32 v7, v8, 3, v7\ns_lshl_b32 s37, s30, 7\nv_add_u32 v7, s37, v7')
    while ci < len(chunks) - 8: run_chunk(128)
    tail_addr()
    while ci < len(chunks): run_chunk(128)
    stamp(a, P, 'Vlast')
    a(f'ds_write_b128 v3, v[{ACC}:{ACC+3}]\nds_write_b128 v3, v[{ACC+4}:{ACC+7}] offset:16\ns_waitcnt lgkmcnt(0)\ns_barrier')
    stamp(a, P, 'B2')
    for w in range(4): a(f'ds_read2st64_b32 v[{16+2*w}:{17+2*w}], v4 offset0:{16*w} offset1:{16*w+8}')
    a('ds_read_b128 v[24:27], v5\nds_read_b128 v[28:31], v5 offset:16\ns_waitcnt lgkmcnt(0)')
    a('v_mul_f32 v32, v16, v24\nv_mul_f32 v33, v17, v25')
    for w in range(2, 8): a(f'v_fmac_f32 v{32+(w&1)}, v{16+w}, v{24+w}')
    a('v_add_f32 v32, v32, v33')
    a('v_mov_b32_dpp v33, v32 quad_perm:[1,0,3,2] row_mask:0xf bank_mask:0xf')
    a('v_cvt_pk_bf16_f32 v32, v32, v33\nv_min_u32 v32, -2, v32')
    a('s_mov_b32 exec_lo, 0x55555555\ns_mov_b32 exec_hi, 0x55555555')
    a('buffer_store_dword v32, v6, s[52:55], s60 offen sc1\ns_mov_b64 exec, -1')
    stamp(a, P, 'ost')
    a(f's_mov_b32 s86, {P["spin"]}')
    a('s_cmp_eq_u32 s30, 7\ns_cbranch_scc1 L_fin')
    BF, AF, DF = 56, 120, 16
    DR = [16, 32, 124, 140]
    a(f'buffer_load_dwordx4 v[{AF}:{AF+3}], v2, s[52:55], s61 offen sc1')
    a(f'v_add_u32 v8, {64*WSTR}, v7')
    for i in range(4):
        for jj in range(4):
            b = BF + 16 * i + 4 * jj; o = (jj & 1) * 32 * WSTR + i * 32; va = 'v8' if jj >= 2 else 'v7'
            a(f'ds_read_b64_tr_b16 v[{b}:{b+1}], {va} offset:{o}\nds_read_b64_tr_b16 v[{b+2}:{b+3}], {va} offset:{o+16*WSTR}')
    a(f'v_lshlrev_b32 v3, 2, v0\ns_lshl_b32 s60, s38, 11\ns_lshl_b32 s37, s30, 8\ns_add_u32 s60, s60, s37\ns_add_u32 s60, s60, {PBUF}')
    a('s_branch L_gchk')
    a('L_gpoll:')
    a(f'buffer_load_dwordx4 v[{AF}:{AF+3}], v2, s[52:55], s61 offen sc1')
    a('L_gchk:')
    a('s_waitcnt vmcnt(0)')
    a(f'v_max3_u32 v4, v{AF}, v{AF+1}, v{AF+2}\nv_max_u32 v4, v4, v{AF+3}\nv_cmp_eq_u32 vcc, -1, v4')
    a('s_sub_u32 s86, s86, 1\ns_cbranch_scc1 L_gdone\ns_cbranch_vccnz L_gpoll')
    a('L_gdone:')
    stamp(a, P, 'gok')
    a('s_waitcnt lgkmcnt(0)')
    for i in range(4):
        for jj in range(4):
            b = BF + 16 * i + 4 * jj; d = DR[i] + 4 * jj
            a(f'v_mfma_f32_16x16x32_bf16 v[{d}:{d+3}], v[{AF}:{AF+3}], v[{b}:{b+3}], 0')
    for i in range(4):
        d = DR[i]
        a(f'v_add_f32 v{8+i}, v{d}, v{d+5}\nv_add_f32 v{12+i}, v{d+10}, v{d+15}')
    for i in range(4): a(f'v_add_f32 v{8+i}, v{8+i}, v{12+i}')
    a('v_permlane16_swap_b32 v8, v9\nv_permlane16_swap_b32 v10, v11\nv_add_f32 v8, v8, v9\nv_add_f32 v10, v10, v11')
    a('v_permlane32_swap_b32 v8, v10\nv_add_f32 v8, v8, v10\nv_min_u32 v8, -2, v8')
    a('buffer_store_dword v8, v3, s[52:55], s60 offen sc1')
    stamp(a, P, 'pst')
    if P['diag']:
        a('s_cmp_lg_u32 s30, 0\ns_cbranch_scc1 L_end')
        stamp_store(a, P, stamp_items(P, [x for x in S_PTS if x not in ('g2ok', 'end')]), hw=True)
    a('s_endpgm')
    a('L_fin:')
    a('s_cmp_lt_u32 s34, 28\ns_cbranch_scc0 L_end')
    a(f'v_lshrrev_b32 v2, 2, v0\nv_lshlrev_b32 v2, 11, v2\nv_and_b32 v8, 3, v0\nv_lshl_add_u32 v2, v8, 4, v2\nv_add_u32 v3, 32768, v2')
    a(f's_lshl_b32 s61, s33, 16\ns_lshl_b32 s37, s34, 6\ns_add_u32 s61, s61, s37\ns_add_u32 s61, s61, {PBUF}')
    a(f'v_lshl_add_u32 v4, v8, 2, v1\nv_lshlrev_b32 v5, 3, v4\nv_add_u32 v5, {L_XB}, v5\nds_read_b64 v[24:25], v5')
    a('s_mul_i32 s37, s33, 896\ns_lshl_b32 s39, s34, 5\ns_add_u32 s37, s37, s39\nv_lshl_add_u32 v4, v4, 1, s37')
    srd(a, 44, 24, None, 7168)
    a('L_fpoll:')
    a('buffer_load_dwordx4 v[16:19], v2, s[52:55], s61 offen sc1\nbuffer_load_dwordx4 v[20:23], v3, s[52:55], s61 offen sc1')
    a('s_waitcnt vmcnt(0)')
    a('v_max3_u32 v8, v16, v17, v18\nv_max3_u32 v9, v19, v20, v21\nv_max3_u32 v8, v8, v22, v23\nv_max_u32 v8, v8, v9\nv_cmp_eq_u32 vcc, -1, v8')
    a('s_sub_u32 s86, s86, 1\ns_cbranch_scc1 L_fdone\ns_cbranch_vccnz L_fpoll')
    a('L_fdone:')
    stamp(a, P, 'g2ok')
    for i in range(4): a(f'v_add_f32 v{16+i}, v{16+i}, v{20+i}')
    a('v_permlane16_swap_b32 v16, v17\nv_permlane16_swap_b32 v18, v19\nv_add_f32 v16, v16, v17\nv_add_f32 v18, v18, v19')
    a('v_permlane32_swap_b32 v16, v18\nv_add_f32 v16, v16, v18')
    a('v_add_f32_dpp v16, v16, v16 row_ror:4 row_mask:0xf bank_mask:0xf')
    a('v_add_f32_dpp v16, v16, v16 row_ror:8 row_mask:0xf bank_mask:0xf')
    a('s_waitcnt lgkmcnt(0)')
    rnd_bf16(a, 16)
    a('v_add_f32 v16, v24, v16'); rnd_bf16(a, 16)
    a('v_add_f32 v16, v16, v25\nv_cvt_pk_bf16_f32 v16, v16, v16')
    a('s_mov_b32 exec_lo, 0x000f000f\ns_mov_b32 exec_hi, 0x000f000f')
    a('buffer_store_short v16, v4, s[44:47], 0 offen')
    if P['hold']:
        a(f'L_hold:\ns_memrealtime s[96:97]\ns_waitcnt lgkmcnt(0)\ns_sub_u32 s96, s96, s98\ns_cmp_lt_u32 s96, {P["hold"]}\ns_cbranch_scc1 L_hold')
    if P['diag']:
        a('s_mov_b64 exec, -1\ns_waitcnt vmcnt(0)')
        stamp(a, P, 'end')
        stamp_store(a, P, stamp_items(P, ['g2ok', 'end']))
    a('s_endpgm')

def dma_loop(a, lab, n, depth, vaddr, sstep, lds0, pol):
    a(f's_mov_b32 s36, 0\ns_mov_b32 s62, {lds0}\ns_mov_b32 s63, {n}')
    a(f'{lab}:')
    a(f's_mov_b32 m0, s62\ns_waitcnt vmcnt({depth-1})')
    a(f'buffer_load_dwordx4 v{vaddr}, s[56:59], s36 offen {pol} lds')
    a(f's_add_u32 s36, s36, {sstep}\ns_add_u32 s62, s62, 1024\ns_sub_u32 s63, s63, 1\ns_cmp_lg_u32 s63, 0\ns_cbranch_scc1 {lab}')

def wo_loop(a, P, lab):
    a(f's_min_u32 s63, s63, {NWO*1024}')
    a(f's_cmp_lt_u32 s62, s63\ns_cbranch_scc0 {lab}x')
    a(f'{lab}:')
    a(f's_mov_b32 m0, s62\ns_waitcnt vmcnt({P["DH"]-1})')
    a(f'buffer_load_dwordx4 v1, s[56:59], 0 offen {P["opol"]} lds')
    a('v_add_u32 v11, 7, v11\nv_cmp_le_u32 vcc, 57, v11\nv_add_u32 v1, 1008, v1\ns_add_u32 s62, s62, 1024')
    a('v_subrev_u32 v3, 57, v11\nv_add_u32 v15, -16, v1\nv_cndmask_b32 v11, v11, v3, vcc\nv_cndmask_b32 v1, v1, v15, vcc')
    a(f's_cmp_lt_u32 s62, s63\ns_cbranch_scc1 {lab}')
    a(f'{lab}x:')

XF, FF, TT = 16, 44, 100
def x_addr(a):
    a('v_and_b32 v10, 15, v0\nv_lshrrev_b32 v9, 4, v0\nv_and_b32 v8, 7, v0\nv_mul_u32_u24 v8, 896, v8')
    a('v_bfe_u32 v3, v0, 3, 1\nv_mul_u32_u24 v3, 448, v3\nv_lshl_add_u32 v8, v9, 4, v8\nv_add_u32 v8, v8, v3')
def x_load(a, P):
    srd(a, 48, 4, None, 7168)
    for ks in range(7): a(f'buffer_load_dwordx4 v[{XF+4*ks}:{XF+4*ks+3}], v8, s[48:51], 0 offen offset:{ks*64} {P["xpol"]}')
def tag_add(a): a('s_add_u32 s84, s84, 0x9E3779B9\ns_addc_u32 s85, s85, 0x7F4A7C15')

def gemm_x(a, ntile, va, kstep, second, TA, DL, DHI):
    seq = [(t, ks) for t in range(ntile) for k7 in range(7) for ks in (k7, k7 + 7)]
    def rd(n):
        t, ks = seq[n]; r = TA + 4 * (n % 8); o = ks * kstep + t * 32
        a(f'ds_read_b64_tr_b16 v[{r}:{r+1}], v{va} offset:{o}\nds_read_b64_tr_b16 v[{r+2}:{r+3}], v{va} offset:{o+second}')
    for n in range(6): rd(n)
    for n, (t, ks) in enumerate(seq):
        if n + 6 < len(seq): rd(n + 6)
        a(f's_waitcnt lgkmcnt({2*min(6, len(seq)-1-n)})')
        r = TA + 4 * (n % 8); d = (DHI if ks >= 7 else DL) + 4 * t
        c = '0' if ks % 7 == 0 else f'v[{d}:{d+3}]'
        a(f'v_mfma_f32_16x16x32_bf16 v[{d}:{d+3}], v[{r}:{r+3}], v[{XF+4*(ks%7)}:{XF+4*(ks%7)+3}], {c}')
    for r in range(4 * ntile): a(f'v_add_f32_dpp v{DL+r}, v{DHI+r}, v{DL+r} row_ror:8 row_mask:0xf bank_mask:0xf')

def helper(a, P):
    stamp(a, P, 'hstart')
    x_addr(a)
    a('v_lshrrev_b32 v1, 3, v0\nv_lshlrev_b32 v1, 13, v1\nv_and_b32 v2, 7, v0\nv_lshl_add_u32 v1, v2, 4, v1')
    a('s_lshl_b32 s37, s31, 3\ns_lshr_b32 s39, s32, 2\ns_add_u32 s37, s37, s39\ns_lshl_b32 s37, s37, 7')
    a(f's_sub_u32 s39, {448*8192}, s37\ns_and_b32 s63, s32, 3')
    a('s_waitcnt lgkmcnt(0)')
    stamp(a, P, 'hkarg')
    a('s_load_dwordx2 s[84:85], s[28:29], 0')
    srd(a, 52, 28, None, WS_USED)
    a(f'v_mov_b32 v14, {hex(OOB)}')
    a(f's_cmp_eq_u32 s63, 0\ns_mov_b32 s63, {P["n1"]*1024}\ns_cbranch_scc0 L_noq')
    x_load(a, P)
    srd(a, 56, 10, 's37', 's39')
    dma_loop(a, 'L_wq', 56, 64, 1, 65536, L_WQ, P['wpol'])
    stamp(a, P, 'wqiss')
    a(f'v_bfe_u32 v3, v0, 2, 2\nv_lshl_add_u32 v12, v9, 3, v3\nv_lshlrev_b32 v12, 7, v12\nv_and_b32 v5, 3, v0\nv_lshl_add_u32 v12, v5, 3, v12')
    a(f'v_lshlrev_b32 v13, 14, v10\nv_lshl_add_u32 v13, v9, 4, v13\nv_cmp_gt_u32 vcc, 8, v10\nv_cndmask_b32 v13, v14, v13, vcc')
    a(f's_lshl_b32 s60, s31, 11\ns_lshl_b32 s37, s32, 6\ns_add_u32 s60, s60, s37\ns_add_u32 s60, s60, {QBUF}')
    a('s_waitcnt vmcnt(56)')
    stamp(a, P, 'xland')
    layernorm(a, XF, FF, TT)
    stamp(a, P, 'lndone')
    a('s_waitcnt vmcnt(0) lgkmcnt(0)')
    stamp(a, P, 'wqland')
    gemm_x(a, 4, 12, 4096, 512, 44, 76, 92)
    a('s_add_u32 s62, s84, 0x9E3779B9\ns_addc_u32 s63, s85, 0x7F4A7C15')
    for t in range(4):
        a(f'v_cvt_pk_bf16_f32 v{44+4*t}, v{76+4*t}, v{77+4*t}\nv_cvt_pk_bf16_f32 v{45+4*t}, v{78+4*t}, v{79+4*t}\nv_mov_b32 v{46+4*t}, s62\nv_mov_b32 v{47+4*t}, s63')
        a(f'buffer_store_dwordx4 v[{44+4*t}:{47+4*t}], v13, s[52:55], s60 offen offset:{t*64} sc1')
    stamp(a, P, 'qpub')
    a(f's_mov_b32 s63, {P["n1p"]*1024}')
    a('L_noq:')
    a('s_mul_i32 s37, s34, 114688')
    srd(a, 56, 12, 's37', 114688)
    a('v_cmp_le_u32 vcc, 57, v0\nv_lshlrev_b32 v2, 4, v0\nv_subrev_u32 v3, 57, v0\nv_add_u32 v15, -16, v2\nv_cndmask_b32 v11, v0, v3, vcc\nv_cndmask_b32 v1, v2, v15, vcc')
    a(f's_mov_b32 s62, 0\ns_mov_b32 s83, {hex(f2u(C_EXP))}')
    a('v_mov_b32 v4, -1\nv_mov_b32 v5, -1\nv_mov_b32 v6, -1\nv_mov_b32 v7, -1')
    a(f'v_lshlrev_b32 v3, 3, v0\nv_add_u32 v3, {L_ML}, v3\ns_mov_b64 exec, 0xffff\nds_write_b64 v3, v[4:5]\ns_mov_b64 exec, -1')
    a(f's_lshl_b32 s61, s38, 9\ns_and_b32 s61, s61, 0xfffff800\ns_add_u32 s61, s61, {QBUF}')
    a(f's_mov_b32 s86, {P["spin"]}\ns_waitcnt lgkmcnt(0)')
    tag_add(a)
    a('L_qpoll:')
    wo_loop(a, P, 'L_woa')
    a('buffer_load_dwordx4 v[44:47], v2, s[52:55], s61 offen sc1\nbuffer_load_dwordx4 v[48:51], v2, s[52:55], s61 offen offset:1024 sc1')
    a(f's_add_u32 s63, s62, {P["n1r"]*1024}\ns_waitcnt vmcnt(0)')
    a('v_cmp_ne_u64 vcc, s[84:85], v[46:47]\nv_cmp_ne_u64 s[64:65], s[84:85], v[50:51]\ns_or_b64 vcc, vcc, s[64:65]')
    a('s_sub_u32 s86, s86, 1\ns_cbranch_scc1 L_qdone\ns_cbranch_vccnz L_qpoll')
    a('L_qdone:')
    stamp(a, P, 'qok')
    a(f'v_lshlrev_b32 v3, 3, v0\nv_add_u32 v3, {L_Q}, v3')
    a('ds_write_b64 v3, v[44:45]\nds_write_b64 v3, v[48:49] offset:512\ns_waitcnt lgkmcnt(0)\ns_barrier')
    stamp(a, P, 'B1')
    a(f's_lshl_b32 s37, s38, 10\ns_add_u32 s37, s37, {OBUF}\nbuffer_store_dwordx4 v[4:7], v2, s[52:55], s37 offen sc1')
    a(f's_lshl_b32 s37, s38, 11\ns_add_u32 s37, s37, {PBUF}\nbuffer_store_dwordx4 v[4:7], v2, s[52:55], s37 offen sc1\nbuffer_store_dwordx4 v[4:7], v2, s[52:55], s37 offen offset:1024 sc1')
    a(f's_mov_b32 s63, {P["n2"]*1024}')
    wo_loop(a, P, 'L_wob')
    stamp(a, P, 'wob')
    a(f'v_and_b32 v3, 15, v0\nv_lshlrev_b32 v3, 3, v3\nv_add_u32 v3, {L_ML}, v3\ns_mov_b32 s86, {P["spin"]*16}')
    a('L_mlw:')
    a('ds_read_b64 v[16:17], v3\ns_waitcnt lgkmcnt(0)\nv_cmp_eq_u32 vcc, -1, v16')
    a('s_sub_u32 s86, s86, 1\ns_cbranch_scc1 L_mlwd\ns_cbranch_vccz L_mlwd\ns_sleep 4\ns_branch L_mlw')
    a('L_mlwd:')
    d8 = ('quad_perm:[1,0,3,2]', 'quad_perm:[2,3,0,1]', 'row_half_mirror')
    a('v_mov_b32 v18, v16')
    for m in d8: a(f'v_max_f32_dpp v18, v18, v18 {m} row_mask:0xf bank_mask:0xf')
    a('v_sub_f32 v19, v16, v18\nv_mul_f32 v19, s83, v19\nv_exp_f32 v19, v19\nv_mul_f32 v19, v19, v17')
    for m in d8: a(f'v_add_f32_dpp v19, v19, v19 {m} row_mask:0xf bank_mask:0xf')
    a('v_mov_b32 v20, s84\nv_mov_b32 v21, s85\nv_lshlrev_b32 v4, 6, v0')
    a(f's_lshl_b32 s61, s33, 10\ns_add_u32 s61, s61, {MLBUF}\ns_lshl_b32 s37, s34, 4\ns_add_u32 s37, s37, s61')
    a('s_waitcnt vmcnt(0)\ns_mov_b64 exec, 0x101\nbuffer_store_dwordx4 v[18:21], v4, s[52:55], s37 offen sc1\ns_mov_b64 exec, -1')
    stamp(a, P, 'mlpub')
    a(f's_mov_b32 s63, {NWO*1024}')
    wo_loop(a, P, 'L_woc')
    stamp(a, P, 'wodone')
    a(f's_mov_b32 s86, {P["spin"]}')
    a('L_mlp2:')
    a('buffer_load_dwordx4 v[24:27], v2, s[52:55], s61 offen sc1\ns_waitcnt vmcnt(0)')
    a('v_cmp_ne_u64 vcc, s[84:85], v[26:27]')
    a('s_sub_u32 s86, s86, 1\ns_cbranch_scc1 L_mlp2d\ns_cbranch_vccz L_mlp2d\ns_sleep 16\ns_branch L_mlp2')
    a('L_mlp2d:')
    stamp(a, P, 'mlok')
    a('v_mov_b32 v28, v24')
    for m in d8[:2]: a(f'v_max_f32_dpp v28, v28, v28 {m} row_mask:0xf bank_mask:0xf')
    a('v_sub_f32 v29, v24, v28\nv_mul_f32 v29, s83, v29\nv_exp_f32 v29, v29\nv_mul_f32 v29, v29, v25')
    for m in d8[:2]: a(f'v_add_f32_dpp v29, v29, v29 {m} row_mask:0xf bank_mask:0xf')
    a('s_and_b32 s37, s34, 28\ns_add_u32 s39, s37, 32')
    a('v_readlane_b32 s62, v28, s37\nv_readlane_b32 s63, v29, s37\nv_readlane_b32 s60, v28, s39\nv_readlane_b32 s87, v29, s39')
    a('v_mov_b32 v30, s62\nv_mov_b32 v31, s63\nv_mov_b32 v32, s60\nv_mov_b32 v33, s87')
    a('s_mov_b32 s62, 0xff00ff00\ns_mov_b32 s63, 0xff00ff00')
    a('v_cndmask_b32 v30, v30, v32, s[62:63]\nv_cndmask_b32 v31, v31, v33, s[62:63]')
    a('v_sub_f32 v30, v16, v30\nv_mul_f32 v30, s83, v30\nv_exp_f32 v30, v30\nv_rcp_f32 v31, v31\nv_mul_f32 v30, v30, v31')
    a(f'v_lshlrev_b32 v3, 2, v0\nv_add_u32 v3, {L_F}, v3\ns_mov_b64 exec, 0xffff\nds_write_b32 v3, v30\ns_mov_b64 exec, -1')
    a('s_cmp_lt_u32 s34, 28\ns_cbranch_scc0 L_hend')
    a(f'v_cmp_gt_u32 vcc, 56, v0\nv_mov_b32 v3, 0\nv_cndmask_b32 v3, v3, v2, vcc\ns_mov_b32 s86, {P["spin"]}\ns_mov_b32 s37, {MFLAG}')
    a('L_mf:')
    a('buffer_load_dwordx2 v[16:17], v3, s[52:55], s37 offen sc1\ns_waitcnt vmcnt(0)\nv_cmp_ne_u64 vcc, s[84:85], v[16:17]')
    a('s_sub_u32 s86, s86, 1\ns_cbranch_scc1 L_mfd\ns_cbranch_vccz L_mfd\ns_sleep 16\ns_branch L_mf')
    a('L_mfd:')
    a('v_lshrrev_b32 v3, 2, v0\nv_mul_u32_u24 v3, 14336, v3\nv_and_b32 v5, 3, v0\nv_lshl_add_u32 v3, v5, 4, v3')
    a(f'v_cmp_gt_u32 vcc, 32, v0\nv_cndmask_b32 v4, v14, v3, vcc')
    a(f's_mul_i32 s37, s33, 1792\ns_lshl_b32 s39, s34, 6\ns_add_u32 s37, s37, s39\ns_add_u32 s37, s37, {MBUF}')
    for k in range(4):
        a(f'buffer_load_dwordx4 v[{32+4*k}:{35+4*k}], v{4 if k == 3 else 3}, s[52:55], s37 offen sc1\ns_add_u32 s37, s37, {16*14336}')
    a('v_lshlrev_b32 v6, 3, v5\ns_lshl_b32 s39, s34, 5')
    srd(a, 56, 22, None, 896)
    a('buffer_load_dwordx2 v[24:25], v6, s[56:59], s39 offen')
    srd(a, 48, 4, None, 7168)
    a('s_mul_i32 s37, s33, 896\ns_add_u32 s37, s37, s39\nbuffer_load_dwordx2 v[26:27], v6, s[48:51], s37 offen')
    a('s_waitcnt vmcnt(0)')
    for i in range(4): a(f'v_add_f32 v{16+i}, v{32+i}, v{36+i}\nv_add_f32 v{20+i}, v{40+i}, v{44+i}')
    for i in range(4): a(f'v_add_f32 v{16+i}, v{16+i}, v{20+i}')
    for m in ('row_ror:4', 'row_ror:8'):
        for i in range(4): a(f'v_add_f32_dpp v{16+i}, v{16+i}, v{16+i} {m} row_mask:0xf bank_mask:0xf')
    for i in range(4): xgroup(a, 'v_add_f32', 16 + i, 20 + i)
    unpack(a, 24, 28, 2)
    a('v_cvt_pk_bf16_f32 v22, v16, v17\nv_cvt_pk_bf16_f32 v23, v18, v19')
    unpack(a, 22, 16, 2)
    for i in range(4): a(f'v_add_f32 v{16+i}, v{16+i}, v{28+i}')
    a('v_cvt_pk_bf16_f32 v22, v16, v17\nv_cvt_pk_bf16_f32 v23, v18, v19')
    a('v_lshlrev_b32 v32, 16, v26\nv_lshlrev_b32 v33, 16, v22\nv_and_b32 v34, 0xffff0000, v26\nv_and_b32 v35, 0xffff0000, v22')
    a('v_lshlrev_b32 v36, 16, v27\nv_lshlrev_b32 v37, 16, v23\nv_and_b32 v38, 0xffff0000, v27\nv_and_b32 v39, 0xffff0000, v23')
    a(f'v_lshlrev_b32 v3, 5, v0\nv_add_u32 v3, {L_XB}, v3\ns_mov_b64 exec, 0xf')
    a('ds_write_b128 v3, v[32:35]\nds_write_b128 v3, v[36:39] offset:16\ns_mov_b64 exec, -1')
    a('s_cmp_lg_u32 s38, 0\ns_cbranch_scc1 L_hend')
    a(f's_mov_b32 s86, {P["spin"]}')
    a('L_ep:')
    a(f's_mov_b32 s37, {MLBUF}')
    for k in range(8):
        a(f'buffer_load_dwordx4 v[{32+4*k}:{35+4*k}], v2, s[52:55], s37 offen sc1\ns_add_u32 s37, s37, 1024')
    a('s_waitcnt vmcnt(0)\nv_cmp_ne_u64 vcc, s[84:85], v[34:35]')
    for k in range(1, 8): a(f'v_cmp_ne_u64 s[62:63], s[84:85], v[{34+4*k}:{35+4*k}]\ns_or_b64 vcc, vcc, s[62:63]')
    a('s_sub_u32 s86, s86, 1\ns_cbranch_scc1 L_epd\ns_cbranch_vccz L_epd\ns_sleep 16\ns_branch L_ep')
    a('L_epd:')
    a('v_mov_b32 v20, s84\nv_mov_b32 v21, s85\nv_mov_b32 v4, 0\ns_mov_b64 exec, 1\nbuffer_store_dwordx2 v[20:21], v4, s[52:55], 0 offen sc1\ns_mov_b64 exec, -1')
    a('L_hend:')
    a('s_waitcnt vmcnt(0) lgkmcnt(0)')
    stamp(a, P, 'hend')
    stamp_store(a, P, stamp_items(P, H_PTS))
    a('s_endpgm')

def mlp(a, P):
    a('L_mlp:')
    a('s_and_b32 s37, s32, 3\ns_cmp_eq_u32 s37, 2\ns_cbranch_scc0 L_end\ns_cmp_lt_u32 s32, 28\ns_cbranch_scc0 L_end')
    a('s_mul_i32 s87, s31, 7\ns_lshr_b32 s37, s32, 2\ns_add_u32 s87, s87, s37')
    x_addr(a)
    a('s_waitcnt lgkmcnt(0)\ns_load_dwordx2 s[84:85], s[28:29], 0')
    srd(a, 52, 28, None, WS_USED)
    a(f'v_mov_b32 v14, {hex(OOB)}\nv_lshlrev_b32 v2, 4, v0\ns_waitcnt lgkmcnt(0)\ns_barrier')
    stamp(a, P, 'mstart')
    tag_add(a)
    x_load(a, P)
    a('s_lshl_b32 s37, s87, 6')
    srd(a, 56, 18, 's37', 64)
    a('v_lshlrev_b32 v3, 3, v9')
    B1R = 116
    for t in range(2): a(f'buffer_load_dwordx2 v[{B1R+2*t}:{B1R+2*t+1}], v3, s[56:59], 0 offen offset:{t*32}')
    a(f's_sub_u32 s39, {448*3584}, s37')
    srd(a, 56, 16, 's37', 's39')
    a('v_lshrrev_b32 v1, 2, v0\nv_mul_u32_u24 v1, 3584, v1\nv_and_b32 v5, 3, v0\nv_lshl_add_u32 v1, v5, 4, v1')
    dma_loop(a, 'L_w1', 28, P['DM'], 1, 16 * 3584, L_MS, P['mpol'])
    layernorm(a, XF, FF, TT)
    layernorm(a, XF, FF, TT)
    a(f'v_bfe_u32 v3, v0, 2, 2\nv_lshl_add_u32 v4, v9, 3, v3\nv_lshlrev_b32 v4, 6, v4\nv_lshl_add_u32 v4, v5, 3, v4\nv_add_u32 v4, {L_MS}, v4')
    a(f'v_lshl_add_u32 v6, v9, 2, v3\nv_mul_u32_u24 v6, 896, v6\nv_lshl_add_u32 v6, v5, 3, v6\nv_add_u32 v6, {L_MS}, v6')
    a(f'v_mul_u32_u24 v13, 1792, v10\nv_lshl_add_u32 v13, v9, 4, v13\nv_cmp_gt_u32 vcc, 8, v10\nv_cndmask_b32 v13, v14, v13, vcc')
    a('s_waitcnt vmcnt(0)')
    stamp(a, P, 'mw1')
    TA, D1, D1H = 44, 76, 92
    gemm_x(a, 2, 4, 2048, 256, TA, D1, D1H)
    a('s_mul_i32 s37, s87, 28672')
    srd(a, 56, 20, 's37', 28672)
    dma_loop(a, 'L_w2', 28, P['DM'], 2, 1024, L_MS, P['mpol'])
    BU = 16; HF = 108
    unpack(a, B1R, BU, 4)
    k0 = 2 * 0.7978845608028654 * math.log2(math.e); k1 = k0 * 0.044715
    a(f's_mov_b32 s62, {hex(f2u(-k1))}\nv_mov_b32 v15, {hex(f2u(-k0))}')
    for i in range(4): a(f'v_cvt_pk_bf16_f32 v{32+i}, v{D1+2*i}, v{D1+2*i+1}')
    unpack(a, 32, D1, 4)
    for i in range(8): a(f'v_add_f32 v{D1+i}, v{D1+i}, v{BU+i}')
    for i in range(4): a(f'v_cvt_pk_bf16_f32 v{32+i}, v{D1+2*i}, v{D1+2*i+1}')
    unpack(a, 32, D1, 4)
    for i in range(8): a(f'v_mul_f32 v{BU+i}, v{D1+i}, v{D1+i}')
    for i in range(8): a(f'v_fma_f32 v{BU+i}, v{BU+i}, s62, v15')
    for i in range(8): a(f'v_mul_f32 v{BU+i}, v{BU+i}, v{D1+i}')
    for i in range(8): a(f'v_exp_f32 v{BU+i}, v{BU+i}')
    for i in range(8): a(f'v_add_f32 v{BU+i}, 1.0, v{BU+i}')
    for i in range(8): a(f'v_rcp_f32 v{BU+i}, v{BU+i}')
    for i in range(8): a(f'v_mul_f32 v{D1+i}, v{D1+i}, v{BU+i}')
    for i in range(4): a(f'v_cvt_pk_bf16_f32 v{HF+i}, v{D1+2*i}, v{D1+2*i+1}')
    a(f's_mul_i32 s60, s87, 14336\ns_add_u32 s60, s60, {MBUF}\ns_waitcnt vmcnt(0)')
    stamp(a, P, 'mw2')
    def rd2(n):
        r = TA + 4 * (n % 8); o = n * 32
        a(f'ds_read_b64_tr_b16 v[{r}:{r+1}], v6 offset:{o}\nds_read_b64_tr_b16 v[{r+2}:{r+3}], v6 offset:{o+14336}')
    for n in range(6): rd2(n)
    D2 = [76 + 4 * k for k in range(8)]
    def st2(nt):
        d = D2[nt % 8]
        a(f'buffer_store_dwordx4 v[{d}:{d+3}], v13, s[52:55], s60 offen offset:{nt*64} sc1')
    for n in range(28):
        if n + 6 < 28: rd2(n + 6)
        a(f's_waitcnt lgkmcnt({2*min(6, 27-n)})')
        r = TA + 4 * (n % 8); d = D2[n % 8]
        a(f'v_mfma_f32_16x16x32_bf16 v[{d}:{d+3}], v[{r}:{r+3}], v[{HF}:{HF+3}], 0')
        if n >= 3: st2(n - 3)
    for n in range(25, 28): st2(n)
    a(f'v_mov_b32 v6, s84\nv_mov_b32 v7, s85\nv_mov_b32 v4, 0\ns_lshl_b32 s37, s87, 4\ns_add_u32 s37, s37, {MFLAG}')
    a('s_waitcnt vmcnt(0)\ns_mov_b64 exec, 1\nbuffer_store_dwordx2 v[6:7], v4, s[52:55], s37 offen sc1\ns_mov_b64 exec, -1')
    stamp(a, P, 'mend')
    stamp_store(a, P, stamp_items(P, M_PTS))
    a('s_endpgm')

def body(P):
    a = Asm()
    a('s_cmp_ge_u32 s2, 256\ns_cbranch_scc1 L_end')
    a('s_load_dwordx16 s[4:19], s[0:1], 0\ns_load_dwordx8 s[20:27], s[0:1], 64\ns_load_dwordx2 s[28:29], s[0:1], 96')
    a('v_lshrrev_b32 v1, 6, v0\nv_and_b32 v0, 63, v0\nv_readfirstlane_b32 s30, v1')
    a('s_and_b32 s31, s2, 7\ns_lshr_b32 s32, s2, 3')
    if P['bmap'] == 0: a('s_lshr_b32 s33, s32, 2\ns_and_b32 s34, s32, 3')
    else: a('s_and_b32 s33, s32, 7\ns_lshr_b32 s34, s32, 3')
    a('s_lshl_b32 s37, s31, 2\ns_add_u32 s34, s34, s37\ns_lshl_b32 s38, s33, 5\ns_add_u32 s38, s38, s34')
    stamp_init(a, P)
    a('s_cmp_lg_u32 s30, 0\ns_cbranch_scc1 L_stream')
    helper(a, P)
    mlp(a, P)
    streamer(a, P)
    a('L_end:\ns_endpgm')
    txt, n = a.text()
    return txt, n

def vgprs(P): return max(56 + 4 * P['R'], 156)

def kernel(P):
    txt, n = body(P)
    nm = P['name']
    txt = txt.replace('L_', f'L{nm[-24:]}_') if P.get('uniq') else txt
    return txt

def final_file(P):
    ref = open(f'cdna_kernels/{NAME}.s.ref').read()
    head = ref[:ref.index('; Override launch')]
    nm = P['name']; vg = vgprs(P)
    return head + f'''; Single launch: 256 workgroups x (8 streaming waves + 2 helper waves). Generated by gen/gen.py.
; @launch grid=(256,1,1) block=({block(P)},1,1) lds={LDS_BYTES}
.amdgcn_target "amdgcn-amd-amdhsa--gfx950"
.text
.globl {nm}
.p2align 8
.type {nm},@function
{nm}:
{kernel(P)}
.section .rodata,"a"
.p2align 6
.amdhsa_kernel {nm}
  .amdhsa_next_free_vgpr {vg}
  .amdhsa_next_free_sgpr 102
  .amdhsa_accum_offset {(vg+3)//4*4}
  .amdhsa_group_segment_fixed_size 0
  .amdhsa_kernarg_size 104
  .amdhsa_user_sgpr_count 2
  .amdhsa_user_sgpr_kernarg_segment_ptr 1
  .amdhsa_system_sgpr_workgroup_id_x 1
.end_amdhsa_kernel
'''

if __name__ == '__main__':
    P = dict(DEF)
    out = f'cdna_kernels/{NAME}.s'
    for kv in sys.argv[1:]:
        k, v = kv.split('=', 1)
        if k == 'out': out = v
        else: P[k] = type(DEF[k])(v) if not isinstance(DEF[k], bool) else v == '1'
    open(out, 'w').write(final_file(P))
    print('wrote', out)
```

```python
import sys, math, struct
from asmlib import Asm

NAME = 'parallel_sum__gqa_block_cached__mixer_channel_mlp__decode'
def f2u(x): return struct.unpack('<I', struct.pack('<f', x))[0]

MLBUF, MFLAG, OBUF, PBUF, MBUF, QBUF, WS_USED = 0x21000, 0x23000, 0x24000, 0x64000, 0xE4000, 0x200000, 0x300000
STAMP_OFF = 536870912 - (1 << 20)
WSTR = 912; NWO = 114
L_WO = 0; L_WQ = 0
L_PART = 128 * WSTR
L_MS = L_PART + 16384
L_Q = L_MS + 28672
L_ML = L_Q + 1024
L_F = L_ML + 128
L_XB = L_F + 64
LDS_BYTES = L_XB + 128
OOB = 0x7F000000
C_EXP = math.log2(math.e) / 16.0

DEF = dict(R=24, D=3, D0=3, DH=5, DM=8, n1=5, n1r=2, nw2=20, n2=76, cpf=1, mpf=1, pol='nt', wpol='', xpol='', opol='', mpol='', diag=False, budget=2,
           name=NAME + '_kernel', spin=1 << 16, hold=0, bmap=0, pts='start+qpub+B1+Kdone+hend+B2+end')
def block(P): return 640

def srd(a, n, base, off, size):
    if off is None:
        a(f's_mov_b32 s{n}, s{base}\ns_mov_b32 s{n+1}, s{base+1}')
    else:
        a(f's_add_u32 s{n}, s{base}, {off}\ns_addc_u32 s{n+1}, s{base+1}, 0')
    a(f's_mov_b32 s{n+2}, {size}\ns_mov_b32 s{n+3}, 0x20000')

def wave_sum(a, v, s):
    for m in ('row_shr:1', 'row_shr:2', 'row_shr:4', 'row_shr:8'):
        a(f'v_add_f32_dpp v{v}, v{v}, v{v} {m} row_mask:0xf bank_mask:0xf')
    a(f'v_add_f32_dpp v{v}, v{v}, v{v} row_bcast:15 row_mask:0xa bank_mask:0xf')
    a(f'v_add_f32_dpp v{v}, v{v}, v{v} row_bcast:31 row_mask:0xc bank_mask:0xf')
    a(f'v_readlane_b32 s{s}, v{v}, 63')

def rnd_bf16(a, v):
    a(f'v_cvt_pk_bf16_f32 v{v}, v{v}, v{v}\nv_and_b32 v{v}, 0xffff0000, v{v}')

def unpack(a, src, dst, n):
    for i in range(n):
        a(f'v_and_b32 v{dst+2*i+1}, 0xffff0000, v{src+i}\nv_lshlrev_b32 v{dst+2*i}, 16, v{src+i}')

def row_sum(a, v, t):
    a(f'v_add_f32_dpp v{v}, v{v}, v{v} row_ror:8 row_mask:0xf bank_mask:0xf')
    xgroup(a, 'v_add_f32', v, t)

def layernorm(a, X, F, T, nq=28):
    pr = lambda r: f'v[{r}:{r+1}]'
    unpack(a, X, F, 28)
    a(f'v_pk_add_f32 {pr(T)}, {pr(F)}, {pr(F+2)}\nv_pk_add_f32 {pr(T+2)}, {pr(F+4)}, {pr(F+6)}')
    for i in range(4, 28): a(f'v_pk_add_f32 {pr(T+2*(i&1))}, {pr(T+2*(i&1))}, {pr(F+2*i)}')
    a(f'v_pk_add_f32 {pr(T)}, {pr(T)}, {pr(T+2)}\nv_add_f32 v{T}, v{T}, v{T+1}')
    row_sum(a, T, T + 1)
    a(f'v_mul_f32 v{T}, {hex(f2u(-1/448))}, v{T}\nv_mov_b32 v{T+1}, v{T}')
    for i in range(28):
        d = T + 4 + 2 * (i & 1)
        a(f'v_pk_add_f32 {pr(d)}, {pr(F+2*i)}, {pr(T)}')
        if i == 0: a(f'v_pk_mul_f32 {pr(T+2)}, {pr(d)}, {pr(d)}')
        else: a(f'v_pk_fma_f32 {pr(T+2)}, {pr(d)}, {pr(d)}, {pr(T+2)}')
    a(f'v_add_f32 v{T+2}, v{T+2}, v{T+3}')
    row_sum(a, T + 2, T + 3)
    rnd_bf16(a, T)
    a(f'v_mov_b32 v{T+1}, v{T}\nv_mul_f32 v{T+2}, {hex(f2u(1/448))}, v{T+2}')
    rnd_bf16(a, T + 2)
    a(f'v_add_f32 v{T+2}, {hex(f2u(1e-5))}, v{T+2}')
    rnd_bf16(a, T + 2)
    a(f'v_sqrt_f32 v{T+2}, v{T+2}')
    for i in range(nq): a(f'v_pk_add_f32 {pr(F+2*i)}, {pr(F+2*i)}, {pr(T)}')
    rnd_bf16(a, T + 2)
    a(f'v_rcp_f32 v{T+2}, v{T+2}')
    for i in range(nq): a(f'v_cvt_pk_bf16_f32 v{X+i}, v{F+2*i}, v{F+2*i+1}')
    a(f'v_mov_b32 v{T+3}, v{T+2}')
    unpack(a, X, F, nq)
    for i in range(nq): a(f'v_pk_mul_f32 {pr(F+2*i)}, {pr(F+2*i)}, {pr(T+2)}')
    for i in range(nq): a(f'v_cvt_pk_bf16_f32 v{X+i}, v{F+2*i}, v{F+2*i+1}')

def xgroup(a, op, v, t):
    a(f'v_mov_b32 v{t}, v{v}\nv_permlane16_swap_b32 v{v}, v{t}\n{op} v{v}, v{v}, v{t}')
    a(f'v_mov_b32 v{t}, v{v}\nv_permlane32_swap_b32 v{v}, v{t}\n{op} v{v}, v{v}, v{t}')

S_PTS = ['start', 'skarg', 'siss0', 'pst', 'g2ok', 'sB1a', 'sB1', 'Kdone', 'Vlast', 'B2', 'ost', 'gok', 'B3', 'end']
M_PTS = ['mstart', 'mw1', 'mw2', 'mend']
H_PTS = ['hstart', 'wob', 'qack', 'xland', 'lndone', 'wtpub', 'wtok', 'hkarg', 'wqiss', 'hB0', 'wqland', 'qpub', 'qp1', 'qok', 'B1', 'wodone', 'mlpub', 'mlok', 'hend']
def pts(P): return P['pts'].split('+') if isinstance(P['pts'], str) else P['pts']
def stamp(a, P, name):
    if P['diag'] and name in pts(P):
        reg = 88 + 2 * pts(P).index(name)
        a(f's_memrealtime s[{reg}:{reg+1}]\ns_waitcnt lgkmcnt(0)')
def stamp_items(P, lst): return [(i, 88 + 2 * i) for i, n in enumerate(pts(P)) if n in lst]
def stamp_init(a, P):
    if P['diag']:
        for i in range(7): a(f's_mov_b64 s[{88+2*i}:{89+2*i}], 0')

def stamp_store(a, P, items, hw=False):
    if not P['diag']: return
    a('s_waitcnt lgkmcnt(0)')
    a(f's_lshl_b32 s37, s2, 6\ns_add_u32 s37, s37, {STAMP_OFF}')
    srd(a, 40, 28, 's37', 64)
    a('s_mov_b64 exec, 1\nv_mov_b32 v1, 0')
    for idx, reg in items:
        a(f'v_mov_b32 v2, s{reg}\nv_mov_b32 v3, s{reg+1}\nbuffer_store_dwordx2 v[2:3], v1, s[40:43], 0 offen offset:{idx*8}')
    if hw:
        a('s_getreg_b32 s38, hwreg(HW_REG_XCC_ID)\ns_getreg_b32 s39, hwreg(HW_REG_HW_ID)')
        a('v_mov_b32 v2, s38\nv_mov_b32 v3, s39\nbuffer_store_dwordx2 v[2:3], v1, s[40:43], 0 offen offset:56')
    a('s_mov_b64 exec, -1')

def streamer(a, P):
    a('L_stream:\ns_cmp_eq_u32 s30, 9\ns_cbranch_scc1 L_mlp\ns_sub_u32 s30, s30, 1')
    R, D, D0, pol = P['R'], P['D'], P['D0'], P['pol']
    Q, S, DT, RING = 8, 16, 48, 56
    slot = lambda i: RING + 4 * (i % R)
    sl = lambda i: f'v[{slot(i)}:{slot(i)+3}]'
    stamp(a, P, 'start')
    if P['hold']: a('s_memrealtime s[98:99]')
    a('v_and_b32 v1, 3, v0\nv_lshlrev_b32 v1, 4, v1\nv_bfe_u32 v3, v0, 2, 2\nv_lshl_add_u32 v1, v3, 9, v1')
    a('v_lshrrev_b32 v3, 4, v0\nv_lshl_add_u32 v1, v3, 6, v1')
    a('v_and_b32 v2, 15, v0\nv_lshlrev_b32 v2, 4, v2\nv_lshl_add_u32 v2, v3, 9, v2')
    a('s_lshl_b32 s37, s38, 19\ns_lshl_b32 s39, s30, 16\ns_add_u32 s37, s37, s39')
    a('s_add_u32 s35, s30, s32\ns_and_b32 s35, s35, 7\ns_lshl_b32 s35, s35, 12')
    a('s_waitcnt lgkmcnt(0)')
    stamp(a, P, 'skarg')
    srd(a, 40, 6, 's37', 65536)
    srd(a, 44, 8, 's37', 65536)
    def issue(i):
        j = i % 64; G, t = j >> 1, j & 1
        if t == 0: a(f's_xor_b32 s36, s35, {G*2048}')
        r, va = ('s[40:43]', 'v1') if i < 64 else ('s[44:47]', 'v2')
        a(f'buffer_load_dwordx4 {sl(i)}, {va}, {r}, s36 offen offset:{t*256} {pol}')
    for i in range(D0): issue(i)
    stamp(a, P, 'siss0')
    srd(a, 52, 28, None, WS_USED)
    for e in range(2):
        for r in range(4):
            m16 = (0x11 << r) << (8 * e); m32 = m16 | (m16 << 16)
            a(f's_mov_b32 s{64+2*(4*e+r)}, {hex(m32)}\ns_mov_b32 s{65+2*(4*e+r)}, {hex(m32)}')
    a('s_mov_b32 s80, 0x05040100\ns_mov_b32 s81, 0x07060302')
    for i in range(D0, R):
        a(f's_waitcnt vmcnt({D-1})'); issue(i)
    a('v_bfe_u32 v3, v0, 2, 1\nv_lshlrev_b32 v3, 9, v3\nv_and_b32 v4, 3, v0\nv_lshl_add_u32 v3, v4, 4, v3')
    a(f'v_lshrrev_b32 v4, 4, v0\nv_lshl_add_u32 v3, v4, 6, v3\nv_add_u32 v3, {L_Q}, v3')
    stamp(a, P, 'sB1a')
    a(f's_barrier')
    stamp(a, P, 'sB1')
    a(f'ds_read_b128 v[{Q}:{Q+3}], v3\nds_read_b128 v[{Q+4}:{Q+7}], v3 offset:256')
    a(f'v_mov_b32 v4, 0xff800000\ns_mov_b32 s83, {hex(f2u(C_EXP))}\ns_waitcnt lgkmcnt(0)')
    chunks = []
    def kdpp(G):
        d = DT + 4 * (G & 1)
        a(f'v_mov_b32_dpp v{S+G}, v{d} quad_perm:[0,0,0,0] row_mask:0xf bank_mask:0xf')
        for r in range(1, 4):
            a(f'v_add_f32_dpp v{S+G}, v{d+r}, v{S+G} quad_perm:[{r},{r},{r},{r}] row_mask:0xf bank_mask:0xf')
        if G & 1:
            a(f'v_cvt_pk_bf16_f32 v5, v{S+G-1}, v{S+G}\nv_lshlrev_b32 v{S+G-1}, 16, v5\nv_and_b32 v{S+G}, 0xffff0000, v5')
            a(f'v_max3_f32 v4, v4, v{S+G-1}, v{S+G}')
    def kchunk(G):
        def fn():
            d = DT + 4 * (G & 1)
            a(f'v_mfma_f32_16x16x32_bf16 v[{d}:{d+3}], {sl(2*G)}, v[{Q}:{Q+3}], 0')
            a(f'v_mfma_f32_16x16x32_bf16 v[{d}:{d+3}], {sl(2*G+1)}, v[{Q+4}:{Q+7}], v[{d}:{d+3}]')
            if G: kdpp(G - 1)
        return fn
    for G in range(32): chunks.append((2 * G + 1, [2 * G, 2 * G + 1], kchunk(G)))
    def sm0():
        kdpp(31)
        xgroup(a, 'v_max_f32', 4, 5)
        a('v_mul_f32 v6, s83, v4\nv_mov_b32 v7, 0')
        stamp(a, P, 'Kdone')
    chunks.append((63, [], sm0))
    def sm(k):
        def fn():
            for g in range(8 * k, 8 * k + 8): a(f'v_fma_f32 v{S+g}, v{S+g}, s83, -v6')
            for g in range(8 * k, 8 * k + 8): a(f'v_exp_f32 v{S+g}, v{S+g}')
            for g in range(8 * k, 8 * k + 8): a(f'v_add_f32 v7, v7, v{S+g}')
            for i in range(4 * k, 4 * k + 4): a(f'v_cvt_pk_bf16_f32 v{S+i}, v{S+2*i}, v{S+2*i+1}')
        return fn
    for k in range(4): chunks.append((63, [], sm(k)))
    def sm_end():
        xgroup(a, 'v_add_f32', 7, 5)
        a(f'v_mov_b32 v5, v7\nv_bfe_u32 v3, v0, 2, 1\nv_lshlrev_b32 v3, 6, v3\ns_lshl_b32 s37, s30, 3\ns_add_u32 s37, s37, {L_ML}\nv_add_u32 v3, s37, v3')
        a('s_mov_b64 exec, 0x11\nds_write_b64 v3, v[4:5]\ns_mov_b64 exec, -1')
    chunks.append((63, [], sm_end))
    AT = [32, 36]; PT = [40, 44, 8, 12]; ACC = DT
    cnt = [0, 0]
    def vchunk(T, e, r):
        def fn():
            A = AT[cnt[0] & 1]; cnt[0] += 1
            mk = 64 + 2 * (4 * e + r)
            for p in range(4): a(f'v_cndmask_b32 v{A+p}, 0, v{S+4*T+p}, s[{mk}:{mk+1}]')
            for jj in range(2):
                j = 4 * jj + r; m, hh = j >> 1, j & 1
                B = PT[cnt[1] & 3]; cnt[1] += 1
                for p in range(4):
                    ev = 64 + 16 * T + 2 * (2 * p) + e; od = ev + 2
                    a(f'v_perm_b32 v{B+p}, v{slot(od)+m}, v{slot(ev)+m}, s{80+hh}')
                c = '0' if (T == 0 and e == 0 and r == 0) else f'v[{ACC+4*jj}:{ACC+4*jj+3}]'
                a(f'v_mfma_f32_16x16x32_bf16 v[{ACC+4*jj}:{ACC+4*jj+3}], v[{A}:{A+3}], v[{B}:{B+3}], {c}')
        return fn
    for T in range(4):
        for e in range(2):
            for r in range(4):
                fr = [64 + 16 * T + 2 * g + e for g in range(8)] if r == 3 else []
                chunks.append((64 + 16 * T + 14 + e, fr, vchunk(T, e, r)))
    freed = set(); ci = 0; landed = -1
    def run_chunk(issued):
        nonlocal ci, landed
        nd, fr, fn = chunks[ci]; ci += 1
        if nd > landed:
            a(f's_waitcnt vmcnt({issued-1-nd})'); landed = nd
        fn(); freed.update(fr)
    for i in range(R, 128):
        while (i - R) not in freed: run_chunk(i)
        if i - D > landed:
            a(f's_waitcnt vmcnt({D-1})'); landed = i - D
        issue(i)
        n = 0
        while ci < len(chunks) and chunks[ci][0] <= landed and n < P['budget']:
            run_chunk(i + 1); n += 1
    def tail_addr():
        a(f'v_lshrrev_b32 v3, 5, v0\nv_lshlrev_b32 v3, 9, v3\nv_bfe_u32 v4, v0, 4, 1\nv_lshl_add_u32 v3, v4, 10, v3')
        a(f'v_and_b32 v4, 15, v0\nv_lshl_add_u32 v3, v4, 5, v3\ns_lshl_b32 s37, s30, 11\ns_add_u32 s37, s37, {L_PART}\nv_add_u32 v3, s37, v3')
        a(f's_lshl_b32 s37, s30, 8\ns_add_u32 s37, s37, {L_PART}\nv_lshl_add_u32 v4, v0, 2, s37')
        a(f's_lshr_b32 s37, s30, 2\ns_lshl_b32 s37, s37, 5\ns_add_u32 s37, s37, {L_F}\nv_mov_b32 v5, s37')
        a('v_and_b32 v6, 35, v0\nv_bfe_u32 v7, v0, 2, 2\nv_lshl_add_u32 v6, v7, 3, v6\nv_bfe_u32 v1, v0, 4, 1\nv_lshl_add_u32 v6, v1, 2, v6\nv_lshlrev_b32 v6, 1, v6')
        a(f's_lshl_b32 s60, s38, 10\ns_lshl_b32 s37, s30, 7\ns_add_u32 s60, s60, s37\ns_add_u32 s60, s60, {OBUF}')
        a(f'v_lshlrev_b32 v2, 10, v7\nv_and_b32 v8, 3, v0\nv_lshl_add_u32 v2, v8, 6, v2\nv_lshrrev_b32 v1, 4, v0\nv_lshl_add_u32 v2, v1, 4, v2')
        a(f's_and_b32 s61, s38, 0xfc\ns_lshl_b32 s61, s61, 10\ns_and_b32 s37, s38, 3\ns_lshl_b32 s37, s37, 8\ns_add_u32 s61, s61, s37\ns_add_u32 s61, s61, {OBUF}')
        a(f'v_lshl_add_u32 v7, v1, 2, v7\nv_mul_u32_u24 v7, {WSTR}, v7\nv_lshl_add_u32 v7, v8, 3, v7\ns_lshl_b32 s37, s30, 7\nv_add_u32 v7, s37, v7')
    while ci < len(chunks) - 8: run_chunk(128)
    tail_addr()
    while ci < len(chunks): run_chunk(128)
    stamp(a, P, 'Vlast')
    a(f'ds_write_b128 v3, v[{ACC}:{ACC+3}]\nds_write_b128 v3, v[{ACC+4}:{ACC+7}] offset:16\ns_waitcnt lgkmcnt(0)\ns_barrier')
    stamp(a, P, 'B2')
    for w in range(4): a(f'ds_read2st64_b32 v[{16+2*w}:{17+2*w}], v4 offset0:{16*w} offset1:{16*w+8}')
    a('ds_read_b128 v[24:27], v5\nds_read_b128 v[28:31], v5 offset:16\ns_waitcnt lgkmcnt(0)')
    a('v_mul_f32 v32, v16, v24\nv_mul_f32 v33, v17, v25')
    for w in range(2, 8): a(f'v_fmac_f32 v{32+(w&1)}, v{16+w}, v{24+w}')
    a('v_add_f32 v32, v32, v33')
    a('v_mov_b32_dpp v33, v32 quad_perm:[1,0,3,2] row_mask:0xf bank_mask:0xf')
    a('v_cvt_pk_bf16_f32 v32, v32, v33\nv_min_u32 v32, -2, v32')
    a('s_mov_b32 exec_lo, 0x55555555\ns_mov_b32 exec_hi, 0x55555555')
    a('buffer_store_dword v32, v6, s[52:55], s60 offen sc1\ns_mov_b64 exec, -1')
    stamp(a, P, 'ost')
    a(f's_mov_b32 s86, {P["spin"]}')
    a('s_cmp_eq_u32 s30, 7\ns_cbranch_scc1 L_fin')
    BF, AF, DF = 56, 120, 16
    DR = [16, 32, 124, 140]
    a(f'buffer_load_dwordx4 v[{AF}:{AF+3}], v2, s[52:55], s61 offen sc1')
    a(f'v_add_u32 v8, {64*WSTR}, v7')
    for i in range(4):
        for jj in range(4):
            b = BF + 16 * i + 4 * jj; o = (jj & 1) * 32 * WSTR + i * 32; va = 'v8' if jj >= 2 else 'v7'
            a(f'ds_read_b64_tr_b16 v[{b}:{b+1}], {va} offset:{o}\nds_read_b64_tr_b16 v[{b+2}:{b+3}], {va} offset:{o+16*WSTR}')
    a(f'v_lshlrev_b32 v3, 2, v0\ns_lshl_b32 s60, s38, 11\ns_lshl_b32 s37, s30, 8\ns_add_u32 s60, s60, s37\ns_add_u32 s60, s60, {PBUF}')
    a('s_branch L_gchk')
    a('L_gpoll:')
    a(f'buffer_load_dwordx4 v[{AF}:{AF+3}], v2, s[52:55], s61 offen sc1')
    a('L_gchk:')
    a('s_waitcnt vmcnt(0)')
    a(f'v_max3_u32 v4, v{AF}, v{AF+1}, v{AF+2}\nv_max_u32 v4, v4, v{AF+3}\nv_cmp_eq_u32 vcc, -1, v4')
    a('s_sub_u32 s86, s86, 1\ns_cbranch_scc1 L_gdone\ns_cbranch_vccnz L_gpoll')
    a('L_gdone:')
    stamp(a, P, 'gok')
    a('s_waitcnt lgkmcnt(0)')
    for i in range(4):
        for jj in range(4):
            b = BF + 16 * i + 4 * jj; d = DR[i] + 4 * jj
            a(f'v_mfma_f32_16x16x32_bf16 v[{d}:{d+3}], v[{AF}:{AF+3}], v[{b}:{b+3}], 0')
    for i in range(4):
        d = DR[i]
        a(f'v_add_f32 v{8+i}, v{d}, v{d+5}\nv_add_f32 v{12+i}, v{d+10}, v{d+15}')
    for i in range(4): a(f'v_add_f32 v{8+i}, v{8+i}, v{12+i}')
    a('v_permlane16_swap_b32 v8, v9\nv_permlane16_swap_b32 v10, v11\nv_add_f32 v8, v8, v9\nv_add_f32 v10, v10, v11')
    a('v_permlane32_swap_b32 v8, v10\nv_add_f32 v8, v8, v10\nv_min_u32 v8, -2, v8')
    a('buffer_store_dword v8, v3, s[52:55], s60 offen sc1')
    stamp(a, P, 'pst')
    if P['diag']:
        a('s_cmp_lg_u32 s30, 0\ns_cbranch_scc1 L_end')
        stamp_store(a, P, stamp_items(P, [x for x in S_PTS if x not in ('g2ok', 'end')]), hw=True)
    a('s_endpgm')
    a('L_fin:')
    a('s_cmp_lt_u32 s34, 28\ns_cbranch_scc0 L_end')
    a(f'v_lshrrev_b32 v2, 2, v0\nv_lshlrev_b32 v2, 11, v2\nv_and_b32 v8, 3, v0\nv_lshl_add_u32 v2, v8, 4, v2\nv_add_u32 v3, 32768, v2')
    a(f's_lshl_b32 s61, s33, 16\ns_lshl_b32 s37, s34, 6\ns_add_u32 s61, s61, s37\ns_add_u32 s61, s61, {PBUF}')
    a(f'v_lshl_add_u32 v4, v8, 2, v1\nv_lshlrev_b32 v5, 3, v4\nv_add_u32 v5, {L_XB}, v5\nds_read_b64 v[24:25], v5')
    a('s_mul_i32 s37, s33, 896\ns_lshl_b32 s39, s34, 5\ns_add_u32 s37, s37, s39\nv_lshl_add_u32 v4, v4, 1, s37')
    srd(a, 44, 24, None, 7168)
    a('L_fpoll:')
    a('buffer_load_dwordx4 v[16:19], v2, s[52:55], s61 offen sc1\nbuffer_load_dwordx4 v[20:23], v3, s[52:55], s61 offen sc1')
    a('s_waitcnt vmcnt(0)')
    a('v_max3_u32 v8, v16, v17, v18\nv_max3_u32 v9, v19, v20, v21\nv_max3_u32 v8, v8, v22, v23\nv_max_u32 v8, v8, v9\nv_cmp_eq_u32 vcc, -1, v8')
    a('s_sub_u32 s86, s86, 1\ns_cbranch_scc1 L_fdone\ns_cbranch_vccnz L_fpoll')
    a('L_fdone:')
    stamp(a, P, 'g2ok')
    for i in range(4): a(f'v_add_f32 v{16+i}, v{16+i}, v{20+i}')
    a('v_permlane16_swap_b32 v16, v17\nv_permlane16_swap_b32 v18, v19\nv_add_f32 v16, v16, v17\nv_add_f32 v18, v18, v19')
    a('v_permlane32_swap_b32 v16, v18\nv_add_f32 v16, v16, v18')
    a('v_add_f32_dpp v16, v16, v16 row_ror:4 row_mask:0xf bank_mask:0xf')
    a('v_add_f32_dpp v16, v16, v16 row_ror:8 row_mask:0xf bank_mask:0xf')
    a('s_waitcnt lgkmcnt(0)')
    rnd_bf16(a, 16)
    a('v_add_f32 v16, v24, v16'); rnd_bf16(a, 16)
    a('v_add_f32 v16, v16, v25\nv_cvt_pk_bf16_f32 v16, v16, v16')
    a('s_mov_b32 exec_lo, 0x000f000f\ns_mov_b32 exec_hi, 0x000f000f')
    a('buffer_store_short v16, v4, s[44:47], 0 offen')
    if P['hold']:
        a(f'L_hold:\ns_memrealtime s[96:97]\ns_waitcnt lgkmcnt(0)\ns_sub_u32 s96, s96, s98\ns_cmp_lt_u32 s96, {P["hold"]}\ns_cbranch_scc1 L_hold')
    if P['diag']:
        a('s_mov_b64 exec, -1\ns_waitcnt vmcnt(0)')
        stamp(a, P, 'end')
        stamp_store(a, P, stamp_items(P, ['g2ok', 'end']))
    a('s_endpgm')

def dma_loop(a, lab, n, depth, vaddr, sstep, lds0, pol):
    a(f's_mov_b32 s36, 0\ns_mov_b32 s62, {lds0}\ns_mov_b32 s63, {n}')
    a(f'{lab}:')
    a(f's_mov_b32 m0, s62\ns_waitcnt vmcnt({depth-1})')
    a(f'buffer_load_dwordx4 v{vaddr}, s[56:59], s36 offen {pol} lds')
    a(f's_add_u32 s36, s36, {sstep}\ns_add_u32 s62, s62, 1024\ns_sub_u32 s63, s63, 1\ns_cmp_lg_u32 s63, 0\ns_cbranch_scc1 {lab}')

def wo_loop(a, P, lab):
    a(f's_min_u32 s63, s63, {NWO*1024}')
    a(f's_cmp_lt_u32 s62, s63\ns_cbranch_scc0 {lab}x')
    a(f'{lab}:')
    a(f's_mov_b32 m0, s62\ns_waitcnt vmcnt({P["DH"]-1})')
    a(f'buffer_load_dwordx4 v1, s[56:59], 0 offen {P["opol"]} lds')
    a('v_add_u32 v11, 7, v11\nv_cmp_le_u32 vcc, 57, v11\nv_add_u32 v1, 1008, v1\ns_add_u32 s62, s62, 1024')
    a('v_subrev_u32 v3, 57, v11\nv_add_u32 v15, -16, v1\nv_cndmask_b32 v11, v11, v3, vcc\nv_cndmask_b32 v1, v1, v15, vcc')
    a(f's_cmp_lt_u32 s62, s63\ns_cbranch_scc1 {lab}')
    a(f'{lab}x:')

XF, FF, TT = 16, 44, 100
def x_addr(a):
    a('v_and_b32 v10, 15, v0\nv_lshrrev_b32 v9, 4, v0\nv_and_b32 v8, 7, v0\nv_mul_u32_u24 v8, 896, v8')
    a('v_bfe_u32 v3, v0, 3, 1\nv_mul_u32_u24 v3, 448, v3\nv_lshl_add_u32 v8, v9, 4, v8\nv_add_u32 v8, v8, v3')
def x_load(a, P):
    srd(a, 48, 4, None, 7168)
    for ks in range(7): a(f'buffer_load_dwordx4 v[{XF+4*ks}:{XF+4*ks+3}], v8, s[48:51], 0 offen offset:{ks*64} {P["xpol"]}')
def tag_add(a): a('s_add_u32 s84, s84, 0x9E3779B9\ns_addc_u32 s85, s85, 0x7F4A7C15')

def gemm_x(a, ntile, va, kstep, second, TA, DL, DHI):
    seq = [(t, ks) for t in range(ntile) for k7 in range(7) for ks in (k7, k7 + 7)]
    def rd(n):
        t, ks = seq[n]; r = TA + 4 * (n % 8); o = ks * kstep + t * 32
        a(f'ds_read_b64_tr_b16 v[{r}:{r+1}], v{va} offset:{o}\nds_read_b64_tr_b16 v[{r+2}:{r+3}], v{va} offset:{o+second}')
    for n in range(6): rd(n)
    for n, (t, ks) in enumerate(seq):
        if n + 6 < len(seq): rd(n + 6)
        a(f's_waitcnt lgkmcnt({2*min(6, len(seq)-1-n)})')
        r = TA + 4 * (n % 8); d = (DHI if ks >= 7 else DL) + 4 * t
        c = '0' if ks % 7 == 0 else f'v[{d}:{d+3}]'
        a(f'v_mfma_f32_16x16x32_bf16 v[{d}:{d+3}], v[{r}:{r+3}], v[{XF+4*(ks%7)}:{XF+4*(ks%7)+3}], {c}')
    for r in range(4 * ntile): a(f'v_add_f32_dpp v{DL+r}, v{DHI+r}, v{DL+r} row_ror:8 row_mask:0xf bank_mask:0xf')

def helper(a, P):
    stamp(a, P, 'hstart')
    if P['cpf']:
        a('s_getpc_b64 s[56:57]\ns_mov_b32 s58, 4352\ns_mov_b32 s59, 0x20000\nv_lshlrev_b32 v1, 6, v0')
        a('buffer_load_dword v15, v1, s[56:59], 0 offen offset:256')
    x_addr(a)
    a('v_lshrrev_b32 v1, 3, v0\nv_lshlrev_b32 v1, 13, v1\nv_and_b32 v2, 7, v0\nv_lshl_add_u32 v1, v2, 4, v1')
    a('s_and_b32 s63, s32, 1\ns_bfe_u32 s62, s32, 0x10001\ns_mul_i32 s37, s62, 224\ns_lshl_b32 s36, s63, 7\ns_add_u32 s37, s37, s36\ns_lshl_b32 s37, s37, 13')
    a('s_lshl_b32 s39, s31, 3\ns_lshr_b32 s36, s32, 2\ns_add_u32 s39, s39, s36\ns_lshl_b32 s39, s39, 7\ns_add_u32 s37, s37, s39')
    a(f's_mul_i32 s39, s63, {32*8192}\ns_sub_u32 s39, {127*8192+128}, s39')
    a('s_lshl_b32 s60, s63, 8\ns_mul_i32 s61, s63, 192\ns_sub_u32 s61, 192, s61')
    a('s_waitcnt lgkmcnt(0)')
    stamp(a, P, 'hkarg')
    a('s_load_dwordx2 s[84:85], s[28:29], 0')
    srd(a, 48, 4, None, 7168)
    for ks in range(7):
        if ks < 3: a(f'buffer_load_dwordx4 v[{XF+4*ks}:{XF+4*ks+3}], v8, s[48:51], s60 offen offset:{ks*64} {P["xpol"]}')
        else: a(f'buffer_load_dwordx4 v[{XF+4*ks}:{XF+4*ks+3}], v8, s[48:51], s61 offen offset:{(ks-3)*64} {P["xpol"]}')
    srd(a, 56, 10, 's37', 's39')
    for i in range(16):
        a(f's_mov_b32 m0, {L_WQ+i*1024}\ns_mov_b32 s36, {i*65536}')
        a(f'buffer_load_dwordx4 v1, s[56:59], s36 offen {P["wpol"]} lds')
    stamp(a, P, 'wqiss')
    srd(a, 52, 28, None, WS_USED)
    a(f'v_mov_b32 v14, {hex(OOB)}')
    a(f'v_bfe_u32 v3, v0, 2, 2\nv_lshl_add_u32 v12, v9, 3, v3\nv_lshlrev_b32 v12, 7, v12\nv_and_b32 v5, 3, v0\nv_lshl_add_u32 v12, v5, 3, v12')
    a(f'v_and_b32 v13, 7, v0\nv_lshlrev_b32 v13, 17, v13\nv_lshl_add_u32 v13, v9, 4, v13\nv_bfe_u32 v3, v0, 3, 1\nv_cmp_eq_u32 vcc, s62, v3\nv_cndmask_b32 v13, v14, v13, vcc')
    a(f's_lshl_b32 s60, s31, 14\ns_and_b32 s37, s32, 3\ns_lshl_b32 s37, s37, 12\ns_add_u32 s60, s60, s37\ns_lshr_b32 s37, s32, 2\ns_lshl_b32 s37, s37, 9\ns_add_u32 s60, s60, s37\ns_add_u32 s60, s60, {QBUF}')
    a('s_waitcnt vmcnt(16)')
    stamp(a, P, 'xland')
    layernorm(a, XF, FF, TT, 16)
    stamp(a, P, 'lndone')
    a('s_waitcnt vmcnt(0) lgkmcnt(0)')
    stamp(a, P, 'wqland')
    tag_add(a)
    TA, DQ, PK = 44, 108, 32
    seq = [(t, ks) for t in range(4) for ks in range(4)]
    def rd(n):
        t, ks = seq[n]; r = TA + 4 * n; o = ks * 4096 + t * 32
        a(f'ds_read_b64_tr_b16 v[{r}:{r+1}], v12 offset:{o}\nds_read_b64_tr_b16 v[{r+2}:{r+3}], v12 offset:{o+512}')
    for n in range(6): rd(n)
    for u in range(2): a(f'v_mov_b32 v{PK+4*u+2}, s84\nv_mov_b32 v{PK+4*u+3}, s85\nv_mov_b32 v{124+4*u+2}, s84\nv_mov_b32 v{124+4*u+3}, s85')
    def pub(t):
        for u in range(2):
            r = (PK if t % 2 == 0 else 124) + 4 * u
            a(f'v_mov_b32 v{r}, v{DQ+4*t+2*u}\nv_mov_b32 v{r+1}, v{DQ+4*t+2*u+1}')
        for u in range(2):
            r = (PK if t % 2 == 0 else 124) + 4 * u
            a(f'buffer_store_dwordx4 v[{r}:{r+3}], v13, s[52:55], s60 offen offset:{t*128+u*64} sc1')
    for n, (t, ks) in enumerate(seq):
        if n + 6 < 16: rd(n + 6)
        a(f's_waitcnt lgkmcnt({2*min(6, 15-n)})')
        r = TA + 4 * n; d = DQ + 4 * t
        c = '0' if ks == 0 else f'v[{d}:{d+3}]'
        a(f'v_mfma_f32_16x16x32_bf16 v[{d}:{d+3}], v[{r}:{r+3}], v[{XF+4*ks}:{XF+4*ks+3}], {c}')
        if n in (7, 11, 15): pub(n // 4 - 1)
    pub(3)
    stamp(a, P, 'qpub')
    a(f's_mov_b32 s63, {P["n1"]*1024}')
    a('s_mul_i32 s37, s34, 114688')
    srd(a, 56, 12, 's37', 114688)
    a('v_cmp_le_u32 vcc, 57, v0\nv_lshlrev_b32 v2, 4, v0\nv_subrev_u32 v3, 57, v0\nv_add_u32 v15, -16, v2\nv_cndmask_b32 v11, v0, v3, vcc\nv_cndmask_b32 v1, v2, v15, vcc')
    a(f's_mov_b32 s62, 0\ns_mov_b32 s83, {hex(f2u(C_EXP))}\ns_mov_b32 s82, {L_Q}')
    a('v_mov_b32 v4, -1\nv_mov_b32 v5, -1\nv_mov_b32 v6, -1\nv_mov_b32 v7, -1')
    a(f'v_lshlrev_b32 v3, 3, v0\nv_add_u32 v3, {L_ML}, v3\ns_mov_b64 exec, 0xffff\nds_write_b64 v3, v[4:5]\ns_mov_b64 exec, -1')
    a(f's_lshr_b32 s61, s38, 2\ns_lshl_b32 s61, s61, 14\ns_add_u32 s61, s61, {QBUF}')
    a(f's_mov_b32 s86, {P["spin"]}')
    a('L_qpoll:')
    wo_loop(a, P, 'L_woa')
    a('s_mov_b32 s36, s61')
    for kq in range(4):
        for m in range(4): a(f'buffer_load_dwordx4 v[{44+16*kq+4*m}:{47+16*kq+4*m}], v2, s[52:55], s36 offen offset:{m*1024} sc1')
        if kq < 3: a('s_add_u32 s36, s36, 4096')
    a(f's_add_u32 s63, s62, {P["n1r"]*1024}\ns_mov_b64 vcc, 0')
    for n in range(16):
        if n % 4 == 0: a(f's_waitcnt vmcnt({12-n})')
        a(f'v_cmp_ne_u64 s[{64+2*(n%4)}:{65+2*(n%4)}], s[84:85], v[{46+4*n}:{47+4*n}]')
        if n % 4 == 3:
            for k in range(4): a(f's_or_b64 vcc, vcc, s[{64+2*k}:{65+2*k}]')
    a('s_sub_u32 s86, s86, 1\ns_cbranch_scc1 L_qdone\ns_cbranch_vccnz L_qpoll')
    a('L_qdone:')
    stamp(a, P, 'qok')
    for kq in range(1, 4):
        for m in range(4): a(f'v_pk_add_f32 v[{44+4*m}:{45+4*m}], v[{44+4*m}:{45+4*m}], v[{44+16*kq+4*m}:{45+16*kq+4*m}]')
    a(f'v_lshrrev_b32 v3, 3, v0\nv_lshlrev_b32 v3, 5, v3\nv_and_b32 v15, 3, v0\nv_lshl_add_u32 v3, v15, 3, v3\nv_and_b32 v15, 4, v0\nv_add3_u32 v3, v3, v15, s82')
    for m in range(4): a(f'v_cvt_pk_bf16_f32 v{44+4*m}, v{44+4*m}, v{45+4*m}\nds_write_b32 v3, v{44+4*m} offset:{m*256}')
    a('s_waitcnt lgkmcnt(0)\ns_barrier')
    stamp(a, P, 'B1')
    if P['mpf']:
        a(f's_mul_i32 s37, s32, {14*3584}\ns_mul_i32 s39, s31, 448\ns_add_u32 s37, s37, s39\ns_sub_u32 s39, {448*3584}, s37')
        srd(a, 48, 16, 's37', 's39')
        a('v_lshrrev_b32 v3, 3, v0\nv_mul_u32_u24 v3, 3584, v3\nv_and_b32 v15, 7, v0\nv_lshl_add_u32 v3, v15, 6, v3')
        a(f's_mov_b32 s37, {6*3584}\nbuffer_load_dword v12, v3, s[48:51], 0 offen\nbuffer_load_dword v13, v3, s[48:51], s37 offen')
    a(f's_lshl_b32 s37, s38, 10\ns_add_u32 s37, s37, {OBUF}\nbuffer_store_dwordx4 v[4:7], v2, s[52:55], s37 offen sc1')
    a(f's_lshl_b32 s37, s38, 11\ns_add_u32 s37, s37, {PBUF}\nbuffer_store_dwordx4 v[4:7], v2, s[52:55], s37 offen sc1\nbuffer_store_dwordx4 v[4:7], v2, s[52:55], s37 offen offset:1024 sc1')
    if P['mpf']:
        a(f's_add_u32 s63, s62, {P["nw2"]*1024}')
        wo_loop(a, P, 'L_wod')
        a('s_lshl_b32 s37, s31, 5\ns_add_u32 s37, s37, s32\ns_mul_i32 s37, s37, 6272')
        srd(a, 48, 20, 's37', 6272)
        a('v_lshlrev_b32 v3, 6, v0\ns_mov_b32 s37, 4096\nbuffer_load_dword v12, v3, s[48:51], 0 offen\nbuffer_load_dword v13, v3, s[48:51], s37 offen')
    a(f's_mov_b32 s63, {P["n2"]*1024}')
    wo_loop(a, P, 'L_wob')
    stamp(a, P, 'wob')
    a(f'v_and_b32 v3, 15, v0\nv_lshlrev_b32 v3, 3, v3\nv_add_u32 v3, {L_ML}, v3\ns_mov_b32 s86, {P["spin"]*16}')
    a('L_mlw:')
    a('ds_read_b64 v[16:17], v3\ns_waitcnt lgkmcnt(0)\nv_cmp_eq_u32 vcc, -1, v16')
    a('s_sub_u32 s86, s86, 1\ns_cbranch_scc1 L_mlwd\ns_cbranch_vccz L_mlwd\ns_sleep 4\ns_branch L_mlw')
    a('L_mlwd:')
    d8 = ('quad_perm:[1,0,3,2]', 'quad_perm:[2,3,0,1]', 'row_half_mirror')
    a('v_mov_b32 v18, v16')
    for m in d8: a(f'v_max_f32_dpp v18, v18, v18 {m} row_mask:0xf bank_mask:0xf')
    a('v_sub_f32 v19, v16, v18\nv_mul_f32 v19, s83, v19\nv_exp_f32 v19, v19\nv_mul_f32 v19, v19, v17')
    for m in d8: a(f'v_add_f32_dpp v19, v19, v19 {m} row_mask:0xf bank_mask:0xf')
    a('v_mov_b32 v20, s84\nv_mov_b32 v21, s85\nv_lshlrev_b32 v4, 6, v0')
    a(f's_lshl_b32 s61, s33, 10\ns_add_u32 s61, s61, {MLBUF}\ns_lshl_b32 s37, s34, 4\ns_add_u32 s37, s37, s61')
    a('s_waitcnt vmcnt(0)\ns_mov_b64 exec, 0x101\nbuffer_store_dwordx4 v[18:21], v4, s[52:55], s37 offen sc1\ns_mov_b64 exec, -1')
    stamp(a, P, 'mlpub')
    a(f's_mov_b32 s63, {NWO*1024}')
    wo_loop(a, P, 'L_woc')
    stamp(a, P, 'wodone')
    a(f's_mov_b32 s86, {P["spin"]}')
    a('L_mlp2:')
    a('buffer_load_dwordx4 v[24:27], v2, s[52:55], s61 offen sc1\ns_waitcnt vmcnt(0)')
    a('v_cmp_ne_u64 vcc, s[84:85], v[26:27]')
    a('s_sub_u32 s86, s86, 1\ns_cbranch_scc1 L_mlp2d\ns_cbranch_vccz L_mlp2d\ns_sleep 16\ns_branch L_mlp2')
    a('L_mlp2d:')
    stamp(a, P, 'mlok')
    a('v_mov_b32 v28, v24')
    for m in d8[:2]: a(f'v_max_f32_dpp v28, v28, v28 {m} row_mask:0xf bank_mask:0xf')
    a('v_sub_f32 v29, v24, v28\nv_mul_f32 v29, s83, v29\nv_exp_f32 v29, v29\nv_mul_f32 v29, v29, v25')
    for m in d8[:2]: a(f'v_add_f32_dpp v29, v29, v29 {m} row_mask:0xf bank_mask:0xf')
    a('s_and_b32 s37, s34, 28\ns_add_u32 s39, s37, 32')
    a('v_readlane_b32 s62, v28, s37\nv_readlane_b32 s63, v29, s37\nv_readlane_b32 s60, v28, s39\nv_readlane_b32 s87, v29, s39')
    a('v_mov_b32 v30, s62\nv_mov_b32 v31, s63\nv_mov_b32 v32, s60\nv_mov_b32 v33, s87')
    a('s_mov_b32 s62, 0xff00ff00\ns_mov_b32 s63, 0xff00ff00')
    a('v_cndmask_b32 v30, v30, v32, s[62:63]\nv_cndmask_b32 v31, v31, v33, s[62:63]')
    a('v_sub_f32 v30, v16, v30\nv_mul_f32 v30, s83, v30\nv_exp_f32 v30, v30\nv_rcp_f32 v31, v31\nv_mul_f32 v30, v30, v31')
    a(f'v_lshlrev_b32 v3, 2, v0\nv_add_u32 v3, {L_F}, v3\ns_mov_b64 exec, 0xffff\nds_write_b32 v3, v30\ns_mov_b64 exec, -1')
    a('s_cmp_lt_u32 s34, 28\ns_cbranch_scc0 L_hend')
    a(f'v_cmp_gt_u32 vcc, 56, v0\nv_mov_b32 v3, 0\nv_cndmask_b32 v3, v3, v2, vcc\ns_mov_b32 s86, {P["spin"]}\ns_mov_b32 s37, {MFLAG}')
    a('L_mf:')
    a('buffer_load_dwordx2 v[16:17], v3, s[52:55], s37 offen sc1\ns_waitcnt vmcnt(0)\nv_cmp_ne_u64 vcc, s[84:85], v[16:17]')
    a('s_sub_u32 s86, s86, 1\ns_cbranch_scc1 L_mfd\ns_cbranch_vccz L_mfd\ns_sleep 16\ns_branch L_mf')
    a('L_mfd:')
    a('v_lshrrev_b32 v3, 2, v0\nv_mul_u32_u24 v3, 14336, v3\nv_and_b32 v5, 3, v0\nv_lshl_add_u32 v3, v5, 4, v3')
    a(f'v_cmp_gt_u32 vcc, 32, v0\nv_cndmask_b32 v4, v14, v3, vcc')
    a(f's_mul_i32 s37, s33, 1792\ns_lshl_b32 s39, s34, 6\ns_add_u32 s37, s37, s39\ns_add_u32 s37, s37, {MBUF}')
    for k in range(4):
        a(f'buffer_load_dwordx4 v[{32+4*k}:{35+4*k}], v{4 if k == 3 else 3}, s[52:55], s37 offen sc1\ns_add_u32 s37, s37, {16*14336}')
    a('v_lshlrev_b32 v6, 3, v5\ns_lshl_b32 s39, s34, 5')
    srd(a, 56, 22, None, 896)
    a('buffer_load_dwordx2 v[24:25], v6, s[56:59], s39 offen')
    srd(a, 48, 4, None, 7168)
    a('s_mul_i32 s37, s33, 896\ns_add_u32 s37, s37, s39\nbuffer_load_dwordx2 v[26:27], v6, s[48:51], s37 offen')
    a('s_waitcnt vmcnt(0)')
    for i in range(4): a(f'v_add_f32 v{16+i}, v{32+i}, v{36+i}\nv_add_f32 v{20+i}, v{40+i}, v{44+i}')
    for i in range(4): a(f'v_add_f32 v{16+i}, v{16+i}, v{20+i}')
    for m in ('row_ror:4', 'row_ror:8'):
        for i in range(4): a(f'v_add_f32_dpp v{16+i}, v{16+i}, v{16+i} {m} row_mask:0xf bank_mask:0xf')
    for i in range(4): xgroup(a, 'v_add_f32', 16 + i, 20 + i)
    unpack(a, 24, 28, 2)
    a('v_cvt_pk_bf16_f32 v22, v16, v17\nv_cvt_pk_bf16_f32 v23, v18, v19')
    unpack(a, 22, 16, 2)
    for i in range(4): a(f'v_add_f32 v{16+i}, v{16+i}, v{28+i}')
    a('v_cvt_pk_bf16_f32 v22, v16, v17\nv_cvt_pk_bf16_f32 v23, v18, v19')
    a('v_lshlrev_b32 v32, 16, v26\nv_lshlrev_b32 v33, 16, v22\nv_and_b32 v34, 0xffff0000, v26\nv_and_b32 v35, 0xffff0000, v22')
    a('v_lshlrev_b32 v36, 16, v27\nv_lshlrev_b32 v37, 16, v23\nv_and_b32 v38, 0xffff0000, v27\nv_and_b32 v39, 0xffff0000, v23')
    a(f'v_lshlrev_b32 v3, 5, v0\nv_add_u32 v3, {L_XB}, v3\ns_mov_b64 exec, 0xf')
    a('ds_write_b128 v3, v[32:35]\nds_write_b128 v3, v[36:39] offset:16\ns_mov_b64 exec, -1')
    a('s_cmp_lg_u32 s38, 0\ns_cbranch_scc1 L_hend')
    a(f's_mov_b32 s86, {P["spin"]}')
    a('L_ep:')
    a(f's_mov_b32 s37, {MLBUF}')
    for k in range(8):
        a(f'buffer_load_dwordx4 v[{32+4*k}:{35+4*k}], v2, s[52:55], s37 offen sc1\ns_add_u32 s37, s37, 1024')
    a('s_waitcnt vmcnt(0)\nv_cmp_ne_u64 vcc, s[84:85], v[34:35]')
    for k in range(1, 8): a(f'v_cmp_ne_u64 s[62:63], s[84:85], v[{34+4*k}:{35+4*k}]\ns_or_b64 vcc, vcc, s[62:63]')
    a('s_sub_u32 s86, s86, 1\ns_cbranch_scc1 L_epd\ns_cbranch_vccz L_epd\ns_sleep 16\ns_branch L_ep')
    a('L_epd:')
    a('v_mov_b32 v20, s84\nv_mov_b32 v21, s85\nv_mov_b32 v4, 0\ns_mov_b64 exec, 1\nbuffer_store_dwordx2 v[20:21], v4, s[52:55], 0 offen sc1\ns_mov_b64 exec, -1')
    a('L_hend:')
    a('s_waitcnt vmcnt(0) lgkmcnt(0)')
    stamp(a, P, 'hend')
    stamp_store(a, P, stamp_items(P, H_PTS))
    a('s_endpgm')

def mlp(a, P):
    a('L_mlp:')
    a('s_and_b32 s37, s32, 3\ns_cmp_eq_u32 s37, 2\ns_cbranch_scc0 L_end\ns_cmp_lt_u32 s32, 28\ns_cbranch_scc0 L_end')
    a('s_mul_i32 s87, s31, 7\ns_lshr_b32 s37, s32, 2\ns_add_u32 s87, s87, s37')
    x_addr(a)
    a('s_waitcnt lgkmcnt(0)\ns_load_dwordx2 s[84:85], s[28:29], 0')
    srd(a, 52, 28, None, WS_USED)
    a(f'v_mov_b32 v14, {hex(OOB)}\nv_lshlrev_b32 v2, 4, v0\ns_waitcnt lgkmcnt(0)\ns_barrier')
    stamp(a, P, 'mstart')
    tag_add(a)
    x_load(a, P)
    a('s_lshl_b32 s37, s87, 6')
    srd(a, 56, 18, 's37', 64)
    a('v_lshlrev_b32 v3, 3, v9')
    B1R = 116
    for t in range(2): a(f'buffer_load_dwordx2 v[{B1R+2*t}:{B1R+2*t+1}], v3, s[56:59], 0 offen offset:{t*32}')
    a(f's_sub_u32 s39, {448*3584}, s37')
    srd(a, 56, 16, 's37', 's39')
    a('v_lshrrev_b32 v1, 2, v0\nv_mul_u32_u24 v1, 3584, v1\nv_and_b32 v5, 3, v0\nv_lshl_add_u32 v1, v5, 4, v1')
    dma_loop(a, 'L_w1', 28, P['DM'], 1, 16 * 3584, L_MS, P['mpol'])
    layernorm(a, XF, FF, TT)
    layernorm(a, XF, FF, TT)
    a(f'v_bfe_u32 v3, v0, 2, 2\nv_lshl_add_u32 v4, v9, 3, v3\nv_lshlrev_b32 v4, 6, v4\nv_lshl_add_u32 v4, v5, 3, v4\nv_add_u32 v4, {L_MS}, v4')
    a(f'v_lshl_add_u32 v6, v9, 2, v3\nv_mul_u32_u24 v6, 896, v6\nv_lshl_add_u32 v6, v5, 3, v6\nv_add_u32 v6, {L_MS}, v6')
    a(f'v_mul_u32_u24 v13, 1792, v10\nv_lshl_add_u32 v13, v9, 4, v13\nv_cmp_gt_u32 vcc, 8, v10\nv_cndmask_b32 v13, v14, v13, vcc')
    a('s_waitcnt vmcnt(0)')
    stamp(a, P, 'mw1')
    TA, D1, D1H = 44, 76, 92
    gemm_x(a, 2, 4, 2048, 256, TA, D1, D1H)
    a('s_mul_i32 s37, s87, 28672')
    srd(a, 56, 20, 's37', 28672)
    dma_loop(a, 'L_w2', 28, P['DM'], 2, 1024, L_MS, P['mpol'])
    BU = 16; HF = 108
    unpack(a, B1R, BU, 4)
    k0 = 2 * 0.7978845608028654 * math.log2(math.e); k1 = k0 * 0.044715
    a(f's_mov_b32 s62, {hex(f2u(-k1))}\nv_mov_b32 v15, {hex(f2u(-k0))}')
    for i in range(4): a(f'v_cvt_pk_bf16_f32 v{32+i}, v{D1+2*i}, v{D1+2*i+1}')
    unpack(a, 32, D1, 4)
    for i in range(8): a(f'v_add_f32 v{D1+i}, v{D1+i}, v{BU+i}')
    for i in range(4): a(f'v_cvt_pk_bf16_f32 v{32+i}, v{D1+2*i}, v{D1+2*i+1}')
    unpack(a, 32, D1, 4)
    for i in range(8): a(f'v_mul_f32 v{BU+i}, v{D1+i}, v{D1+i}')
    for i in range(8): a(f'v_fma_f32 v{BU+i}, v{BU+i}, s62, v15')
    for i in range(8): a(f'v_mul_f32 v{BU+i}, v{BU+i}, v{D1+i}')
    for i in range(8): a(f'v_exp_f32 v{BU+i}, v{BU+i}')
    for i in range(8): a(f'v_add_f32 v{BU+i}, 1.0, v{BU+i}')
    for i in range(8): a(f'v_rcp_f32 v{BU+i}, v{BU+i}')
    for i in range(8): a(f'v_mul_f32 v{D1+i}, v{D1+i}, v{BU+i}')
    for i in range(4): a(f'v_cvt_pk_bf16_f32 v{HF+i}, v{D1+2*i}, v{D1+2*i+1}')
    a(f's_mul_i32 s60, s87, 14336\ns_add_u32 s60, s60, {MBUF}\ns_waitcnt vmcnt(0)')
    stamp(a, P, 'mw2')
    def rd2(n):
        r = TA + 4 * (n % 8); o = n * 32
        a(f'ds_read_b64_tr_b16 v[{r}:{r+1}], v6 offset:{o}\nds_read_b64_tr_b16 v[{r+2}:{r+3}], v6 offset:{o+14336}')
    for n in range(6): rd2(n)
    D2 = [76 + 4 * k for k in range(8)]
    def st2(nt):
        d = D2[nt % 8]
        a(f'buffer_store_dwordx4 v[{d}:{d+3}], v13, s[52:55], s60 offen offset:{nt*64} sc1')
    for n in range(28):
        if n + 6 < 28: rd2(n + 6)
        a(f's_waitcnt lgkmcnt({2*min(6, 27-n)})')
        r = TA + 4 * (n % 8); d = D2[n % 8]
        a(f'v_mfma_f32_16x16x32_bf16 v[{d}:{d+3}], v[{r}:{r+3}], v[{HF}:{HF+3}], 0')
        if n >= 3: st2(n - 3)
    for n in range(25, 28): st2(n)
    a(f'v_mov_b32 v6, s84\nv_mov_b32 v7, s85\nv_mov_b32 v4, 0\ns_lshl_b32 s37, s87, 4\ns_add_u32 s37, s37, {MFLAG}')
    a('s_waitcnt vmcnt(0)\ns_mov_b64 exec, 1\nbuffer_store_dwordx2 v[6:7], v4, s[52:55], s37 offen sc1\ns_mov_b64 exec, -1')
    stamp(a, P, 'mend')
    stamp_store(a, P, stamp_items(P, M_PTS))
    a('s_endpgm')

def body(P):
    a = Asm()
    a('s_cmp_ge_u32 s2, 256\ns_cbranch_scc1 L_end')
    a('s_load_dwordx16 s[4:19], s[0:1], 0\ns_load_dwordx8 s[20:27], s[0:1], 64\ns_load_dwordx2 s[28:29], s[0:1], 96')
    a('v_lshrrev_b32 v1, 6, v0\nv_and_b32 v0, 63, v0\nv_readfirstlane_b32 s30, v1')
    a('s_and_b32 s31, s2, 7\ns_lshr_b32 s32, s2, 3')
    if P['bmap'] == 0: a('s_lshr_b32 s33, s32, 2\ns_and_b32 s34, s32, 3')
    else: a('s_and_b32 s33, s32, 7\ns_lshr_b32 s34, s32, 3')
    a('s_lshl_b32 s37, s31, 2\ns_add_u32 s34, s34, s37\ns_lshl_b32 s38, s33, 5\ns_add_u32 s38, s38, s34')
    stamp_init(a, P)
    a('s_cmp_lg_u32 s30, 0\ns_cbranch_scc1 L_stream')
    helper(a, P)
    mlp(a, P)
    streamer(a, P)
    a('L_end:\ns_endpgm')
    txt, n = a.text()
    return txt, n

def vgprs(P): return max(56 + 4 * P['R'], 156)

def kernel(P):
    txt, n = body(P)
    nm = P['name']
    txt = txt.replace('L_', f'L{nm[-24:]}_') if P.get('uniq') else txt
    return txt

def final_file(P):
    ref = open(f'cdna_kernels/{NAME}.s.ref').read()
    head = ref[:ref.index('; Override launch')]
    nm = P['name']; vg = vgprs(P)
    return head + f'''; Single launch: 256 workgroups x (8 streaming waves + 2 helper waves). Generated by gen/gen.py.
; @launch grid=(256,1,1) block=({block(P)},1,1) lds={LDS_BYTES}
.amdgcn_target "amdgcn-amd-amdhsa--gfx950"
.text
.globl {nm}
.p2align 8
.type {nm},@function
{nm}:
{kernel(P)}
.section .rodata,"a"
.p2align 6
.amdhsa_kernel {nm}
  .amdhsa_next_free_vgpr {vg}
  .amdhsa_next_free_sgpr 102
  .amdhsa_accum_offset {(vg+3)//4*4}
  .amdhsa_group_segment_fixed_size 0
  .amdhsa_kernarg_size 104
  .amdhsa_user_sgpr_count 2
  .amdhsa_user_sgpr_kernarg_segment_ptr 1
  .amdhsa_system_sgpr_workgroup_id_x 1
.end_amdhsa_kernel
'''

if __name__ == '__main__':
    P = dict(DEF)
    out = f'cdna_kernels/{NAME}.s'
    for kv in sys.argv[1:]:
        k, v = kv.split('=', 1)
        if k == 'out': out = v
        else: P[k] = type(DEF[k])(v) if not isinstance(DEF[k], bool) else v == '1'
    open(out, 'w').write(final_file(P))
    print('wrote', out)
```

```python
import sys
sys.path.insert(0,'bench')
import importlib, gen, common
def build(variants, out='k', iters=15, mode=42, reps=1):
    ks=[]; ls=[]
    for name, kw in variants:
        P=dict(gen.DEF); P.update(kw); P['name']=name; P['uniq']=True
        P.setdefault('diag',True)
        ks.append((name, gen.kernel(P), gen.vgprs(P), gen.block(P) if hasattr(gen,'block') else 576))
        ls.append((name,256,gen.block(P) if hasattr(gen,'block') else 576,gen.LDS_BYTES))
    common.build(out, ks)
    with open('run_k.sh','w') as f:
        f.write('rm -f dump.txt\n')
        for r in range(reps):
            f.write(f"timeout 200 ./bench k.co {iters} {mode if r==0 else mode&~40} " + " ".join(f"{n}:{g}:{bl}:{lds}" for (n,g,bl,lds) in ls) + "\n")
        f.write('python3 ana3.py\n')
    import json; json.dump({n:gen.pts(dict(gen.DEF,**kw)) for n,kw in variants}, open('pts.json','w'))
if __name__=='__main__':
    V=[]
    for arg in sys.argv[1:]:
        name,_,rest=arg.partition(':')
        kw={'diag':True}
        for kv in filter(None,rest.split(',')):
            k,v=kv.split('=')
            kw[k]= (v=='1') if isinstance(gen.DEF[k],bool) else (v if k=='pts' else type(gen.DEF[k])(v.replace('+',' ')))
        V.append((name,kw))
    build(V, mode=2+32+64+256, reps=2)
```

```python
import sys, math, struct
from asmlib import Asm

NAME = 'parallel_sum__gqa_block_cached__mixer_channel_mlp__decode'
def f2u(x): return struct.unpack('<I', struct.pack('<f', x))[0]

MLBUF, MFLAG, OBUF, PBUF, MBUF, QBUF, WS_USED = 0x21000, 0x23000, 0x24000, 0x64000, 0xE4000, 0x200000, 0x300000
STAMP_OFF = 536870912 - (1 << 20)
WSTR = 912; NWO = 114
L_WO = 0; L_WQ = 0
L_PART = 128 * WSTR
L_MS = L_PART + 16384
L_Q = L_MS + 28672
L_ML = L_Q + 1024
L_F = L_ML + 128
L_XB = L_F + 64
LDS_BYTES = L_XB + 128
OOB = 0x7F000000
C_EXP = math.log2(math.e) / 16.0

DEF = dict(R=24, D=3, D0=3, DH=5, DM=8, n1=5, n1r=2, nw2=20, n2=76, cpf=1, mpf=1, nornd=0, nom=0, pol='nt', wpol='', xpol='', opol='', mpol='', diag=False, budget=2,
           name=NAME + '_kernel', spin=1 << 16, hold=0, bmap=0, pts='start+qpub+B1+Kdone+hend+B2+end')
def block(P): return 640

def srd(a, n, base, off, size):
    if off is None:
        a(f's_mov_b32 s{n}, s{base}\ns_mov_b32 s{n+1}, s{base+1}')
    else:
        a(f's_add_u32 s{n}, s{base}, {off}\ns_addc_u32 s{n+1}, s{base+1}, 0')
    a(f's_mov_b32 s{n+2}, {size}\ns_mov_b32 s{n+3}, 0x20000')

def wave_sum(a, v, s):
    for m in ('row_shr:1', 'row_shr:2', 'row_shr:4', 'row_shr:8'):
        a(f'v_add_f32_dpp v{v}, v{v}, v{v} {m} row_mask:0xf bank_mask:0xf')
    a(f'v_add_f32_dpp v{v}, v{v}, v{v} row_bcast:15 row_mask:0xa bank_mask:0xf')
    a(f'v_add_f32_dpp v{v}, v{v}, v{v} row_bcast:31 row_mask:0xc bank_mask:0xf')
    a(f'v_readlane_b32 s{s}, v{v}, 63')

def rnd_bf16(a, v):
    a(f'v_cvt_pk_bf16_f32 v{v}, v{v}, v{v}\nv_and_b32 v{v}, 0xffff0000, v{v}')

def unpack(a, src, dst, n):
    for i in range(n):
        a(f'v_and_b32 v{dst+2*i+1}, 0xffff0000, v{src+i}\nv_lshlrev_b32 v{dst+2*i}, 16, v{src+i}')

def row_sum(a, v, t):
    a(f'v_add_f32_dpp v{v}, v{v}, v{v} row_ror:8 row_mask:0xf bank_mask:0xf')
    xgroup(a, 'v_add_f32', v, t)

def layernorm(a, X, F, T, nq=28):
    pr = lambda r: f'v[{r}:{r+1}]'
    unpack(a, X, F, 28)
    a(f'v_pk_add_f32 {pr(T)}, {pr(F)}, {pr(F+2)}\nv_pk_add_f32 {pr(T+2)}, {pr(F+4)}, {pr(F+6)}')
    for i in range(4, 28): a(f'v_pk_add_f32 {pr(T+2*(i&1))}, {pr(T+2*(i&1))}, {pr(F+2*i)}')
    a(f'v_pk_add_f32 {pr(T)}, {pr(T)}, {pr(T+2)}\nv_add_f32 v{T}, v{T}, v{T+1}')
    row_sum(a, T, T + 1)
    a(f'v_mul_f32 v{T}, {hex(f2u(-1/448))}, v{T}\nv_mov_b32 v{T+1}, v{T}')
    for i in range(28):
        d = T + 4 + 2 * (i & 1)
        a(f'v_pk_add_f32 {pr(d)}, {pr(F+2*i)}, {pr(T)}')
        if i == 0: a(f'v_pk_mul_f32 {pr(T+2)}, {pr(d)}, {pr(d)}')
        else: a(f'v_pk_fma_f32 {pr(T+2)}, {pr(d)}, {pr(d)}, {pr(T+2)}')
    a(f'v_add_f32 v{T+2}, v{T+2}, v{T+3}')
    row_sum(a, T + 2, T + 3)
    rnd_bf16(a, T)
    a(f'v_mov_b32 v{T+1}, v{T}\nv_mul_f32 v{T+2}, {hex(f2u(1/448))}, v{T+2}')
    rnd_bf16(a, T + 2)
    a(f'v_add_f32 v{T+2}, {hex(f2u(1e-5))}, v{T+2}')
    rnd_bf16(a, T + 2)
    a(f'v_sqrt_f32 v{T+2}, v{T+2}')
    for i in range(nq): a(f'v_pk_add_f32 {pr(F+2*i)}, {pr(F+2*i)}, {pr(T)}')
    rnd_bf16(a, T + 2)
    a(f'v_rcp_f32 v{T+2}, v{T+2}')
    for i in range(nq): a(f'v_cvt_pk_bf16_f32 v{X+i}, v{F+2*i}, v{F+2*i+1}')
    a(f'v_mov_b32 v{T+3}, v{T+2}')
    unpack(a, X, F, nq)
    for i in range(nq): a(f'v_pk_mul_f32 {pr(F+2*i)}, {pr(F+2*i)}, {pr(T+2)}')
    for i in range(nq): a(f'v_cvt_pk_bf16_f32 v{X+i}, v{F+2*i}, v{F+2*i+1}')

def xgroup(a, op, v, t):
    a(f'v_mov_b32 v{t}, v{v}\nv_permlane16_swap_b32 v{v}, v{t}\n{op} v{v}, v{v}, v{t}')
    a(f'v_mov_b32 v{t}, v{v}\nv_permlane32_swap_b32 v{v}, v{t}\n{op} v{v}, v{v}, v{t}')

S_PTS = ['start', 'skarg', 'siss0', 'pst', 'g2ok', 'sB1a', 'sB1', 'Kdone', 'Vlast', 'B2', 'ost', 'gok', 'B3', 'end']
M_PTS = ['mstart', 'mw1', 'mw2', 'mend']
H_PTS = ['hstart', 'wob', 'qack', 'xland', 'lndone', 'wtpub', 'wtok', 'hkarg', 'wqiss', 'hB0', 'wqland', 'qpub', 'qp1', 'qok', 'B1', 'wodone', 'mlpub', 'mlok', 'hend']
def pts(P): return P['pts'].split('+') if isinstance(P['pts'], str) else P['pts']
def stamp(a, P, name):
    if P['diag'] and name in pts(P):
        reg = 88 + 2 * pts(P).index(name)
        a(f's_memrealtime s[{reg}:{reg+1}]\ns_waitcnt lgkmcnt(0)')
def stamp_items(P, lst): return [(i, 88 + 2 * i) for i, n in enumerate(pts(P)) if n in lst]
def stamp_init(a, P):
    if P['diag']:
        for i in range(7): a(f's_mov_b64 s[{88+2*i}:{89+2*i}], 0')

def stamp_store(a, P, items, hw=False):
    if not P['diag']: return
    a('s_waitcnt lgkmcnt(0)')
    a(f's_lshl_b32 s37, s2, 6\ns_add_u32 s37, s37, {STAMP_OFF}')
    srd(a, 40, 28, 's37', 64)
    a('s_mov_b64 exec, 1\nv_mov_b32 v1, 0')
    for idx, reg in items:
        a(f'v_mov_b32 v2, s{reg}\nv_mov_b32 v3, s{reg+1}\nbuffer_store_dwordx2 v[2:3], v1, s[40:43], 0 offen offset:{idx*8}')
    if hw:
        a('s_getreg_b32 s38, hwreg(HW_REG_XCC_ID)\ns_getreg_b32 s39, hwreg(HW_REG_HW_ID)')
        a('v_mov_b32 v2, s38\nv_mov_b32 v3, s39\nbuffer_store_dwordx2 v[2:3], v1, s[40:43], 0 offen offset:56')
    a('s_mov_b64 exec, -1')

def streamer(a, P):
    a('L_stream:\ns_cmp_eq_u32 s30, 9\ns_cbranch_scc1 L_mlp\ns_sub_u32 s30, s30, 1')
    R, D, D0, pol = P['R'], P['D'], P['D0'], P['pol']
    Q, S, DT, RING = 8, 16, 48, 56
    slot = lambda i: RING + 4 * (i % R)
    sl = lambda i: f'v[{slot(i)}:{slot(i)+3}]'
    stamp(a, P, 'start')
    if P['hold']: a('s_memrealtime s[98:99]')
    a('v_and_b32 v1, 3, v0\nv_lshlrev_b32 v1, 4, v1\nv_bfe_u32 v3, v0, 2, 2\nv_lshl_add_u32 v1, v3, 9, v1')
    a('v_lshrrev_b32 v3, 4, v0\nv_lshl_add_u32 v1, v3, 6, v1')
    a('v_and_b32 v2, 15, v0\nv_lshlrev_b32 v2, 4, v2\nv_lshl_add_u32 v2, v3, 9, v2')
    a('s_lshl_b32 s37, s38, 19\ns_lshl_b32 s39, s30, 16\ns_add_u32 s37, s37, s39')
    a('s_add_u32 s35, s30, s32\ns_and_b32 s35, s35, 7\ns_lshl_b32 s35, s35, 12')
    a('s_waitcnt lgkmcnt(0)')
    stamp(a, P, 'skarg')
    srd(a, 40, 6, 's37', 65536)
    srd(a, 44, 8, 's37', 65536)
    def issue(i):
        j = i % 64; G, t = j >> 1, j & 1
        if t == 0: a(f's_xor_b32 s36, s35, {G*2048}')
        r, va = ('s[40:43]', 'v1') if i < 64 else ('s[44:47]', 'v2')
        a(f'buffer_load_dwordx4 {sl(i)}, {va}, {r}, s36 offen offset:{t*256} {pol}')
    for i in range(D0): issue(i)
    stamp(a, P, 'siss0')
    srd(a, 52, 28, None, WS_USED)
    for e in range(2):
        for r in range(4):
            m16 = (0x11 << r) << (8 * e); m32 = m16 | (m16 << 16)
            a(f's_mov_b32 s{64+2*(4*e+r)}, {hex(m32)}\ns_mov_b32 s{65+2*(4*e+r)}, {hex(m32)}')
    a('s_mov_b32 s80, 0x05040100\ns_mov_b32 s81, 0x07060302')
    for i in range(D0, R):
        a(f's_waitcnt vmcnt({D-1})'); issue(i)
    a('v_bfe_u32 v3, v0, 2, 1\nv_lshlrev_b32 v3, 9, v3\nv_and_b32 v4, 3, v0\nv_lshl_add_u32 v3, v4, 4, v3')
    a(f'v_lshrrev_b32 v4, 4, v0\nv_lshl_add_u32 v3, v4, 6, v3\nv_add_u32 v3, {L_Q}, v3')
    stamp(a, P, 'sB1a')
    a(f's_barrier')
    stamp(a, P, 'sB1')
    a(f'ds_read_b128 v[{Q}:{Q+3}], v3\nds_read_b128 v[{Q+4}:{Q+7}], v3 offset:256')
    a(f'v_mov_b32 v4, 0xff800000\ns_mov_b32 s83, {hex(f2u(C_EXP))}\ns_waitcnt lgkmcnt(0)')
    chunks = []
    def kdpp(G):
        d = DT + 4 * (G & 1)
        a(f'v_mov_b32_dpp v{S+G}, v{d} quad_perm:[0,0,0,0] row_mask:0xf bank_mask:0xf')
        for r in range(1, 4):
            a(f'v_add_f32_dpp v{S+G}, v{d+r}, v{S+G} quad_perm:[{r},{r},{r},{r}] row_mask:0xf bank_mask:0xf')
        if G & 1:
            if not P['nornd']: a(f'v_cvt_pk_bf16_f32 v5, v{S+G-1}, v{S+G}\nv_lshlrev_b32 v{S+G-1}, 16, v5\nv_and_b32 v{S+G}, 0xffff0000, v5')
            a(f'v_max3_f32 v4, v4, v{S+G-1}, v{S+G}')
    def kchunk(G):
        def fn():
            d = DT + 4 * (G & 1)
            a(f'v_mfma_f32_16x16x32_bf16 v[{d}:{d+3}], {sl(2*G)}, v[{Q}:{Q+3}], 0')
            a(f'v_mfma_f32_16x16x32_bf16 v[{d}:{d+3}], {sl(2*G+1)}, v[{Q+4}:{Q+7}], v[{d}:{d+3}]')
            if G: kdpp(G - 1)
        return fn
    for G in range(32): chunks.append((2 * G + 1, [2 * G, 2 * G + 1], kchunk(G)))
    def sm0():
        kdpp(31)
        xgroup(a, 'v_max_f32', 4, 5)
        a('v_mul_f32 v6, s83, v4\nv_mov_b32 v7, 0')
        stamp(a, P, 'Kdone')
    chunks.append((63, [], sm0))
    def sm(k):
        def fn():
            for g in range(8 * k, 8 * k + 8): a(f'v_fma_f32 v{S+g}, v{S+g}, s83, -v6')
            for g in range(8 * k, 8 * k + 8): a(f'v_exp_f32 v{S+g}, v{S+g}')
            for g in range(8 * k, 8 * k + 8): a(f'v_add_f32 v7, v7, v{S+g}')
            for i in range(4 * k, 4 * k + 4): a(f'v_cvt_pk_bf16_f32 v{S+i}, v{S+2*i}, v{S+2*i+1}')
        return fn
    for k in range(4): chunks.append((63, [], sm(k)))
    def sm_end():
        xgroup(a, 'v_add_f32', 7, 5)
        a(f'v_mov_b32 v5, v7\nv_bfe_u32 v3, v0, 2, 1\nv_lshlrev_b32 v3, 6, v3\ns_lshl_b32 s37, s30, 3\ns_add_u32 s37, s37, {L_ML}\nv_add_u32 v3, s37, v3')
        a('s_mov_b64 exec, 0x11\nds_write_b64 v3, v[4:5]\ns_mov_b64 exec, -1')
    chunks.append((63, [], sm_end))
    AT = [32, 36]; PT = [40, 44, 8, 12]; ACC = DT
    cnt = [0, 0]
    def vchunk(T, e, r):
        def fn():
            A = AT[cnt[0] & 1]; cnt[0] += 1
            mk = 64 + 2 * (4 * e + r)
            for p in range(4): a(f'v_cndmask_b32 v{A+p}, 0, v{S+4*T+p}, s[{mk}:{mk+1}]')
            for jj in range(2):
                j = 4 * jj + r; m, hh = j >> 1, j & 1
                B = PT[cnt[1] & 3]; cnt[1] += 1
                for p in range(4):
                    ev = 64 + 16 * T + 2 * (2 * p) + e; od = ev + 2
                    a(f'v_perm_b32 v{B+p}, v{slot(od)+m}, v{slot(ev)+m}, s{80+hh}')
                c = '0' if (T == 0 and e == 0 and r == 0) else f'v[{ACC+4*jj}:{ACC+4*jj+3}]'
                a(f'v_mfma_f32_16x16x32_bf16 v[{ACC+4*jj}:{ACC+4*jj+3}], v[{A}:{A+3}], v[{B}:{B+3}], {c}')
        return fn
    for T in range(4):
        for e in range(2):
            for r in range(4):
                fr = [64 + 16 * T + 2 * g + e for g in range(8)] if r == 3 else []
                chunks.append((64 + 16 * T + 14 + e, fr, vchunk(T, e, r)))
    freed = set(); ci = 0; landed = -1
    def run_chunk(issued):
        nonlocal ci, landed
        nd, fr, fn = chunks[ci]; ci += 1
        if nd > landed:
            a(f's_waitcnt vmcnt({issued-1-nd})'); landed = nd
        fn(); freed.update(fr)
    for i in range(R, 128):
        while (i - R) not in freed: run_chunk(i)
        if i - D > landed:
            a(f's_waitcnt vmcnt({D-1})'); landed = i - D
        issue(i)
        n = 0
        while ci < len(chunks) and chunks[ci][0] <= landed and n < P['budget']:
            run_chunk(i + 1); n += 1
    def tail_addr():
        a(f'v_lshrrev_b32 v3, 5, v0\nv_lshlrev_b32 v3, 9, v3\nv_bfe_u32 v4, v0, 4, 1\nv_lshl_add_u32 v3, v4, 10, v3')
        a(f'v_and_b32 v4, 15, v0\nv_lshl_add_u32 v3, v4, 5, v3\ns_lshl_b32 s37, s30, 11\ns_add_u32 s37, s37, {L_PART}\nv_add_u32 v3, s37, v3')
        a(f's_lshl_b32 s37, s30, 8\ns_add_u32 s37, s37, {L_PART}\nv_lshl_add_u32 v4, v0, 2, s37')
        a(f's_lshr_b32 s37, s30, 2\ns_lshl_b32 s37, s37, 5\ns_add_u32 s37, s37, {L_F}\nv_mov_b32 v5, s37')
        a('v_and_b32 v6, 35, v0\nv_bfe_u32 v7, v0, 2, 2\nv_lshl_add_u32 v6, v7, 3, v6\nv_bfe_u32 v1, v0, 4, 1\nv_lshl_add_u32 v6, v1, 2, v6\nv_lshlrev_b32 v6, 1, v6')
        a(f's_lshl_b32 s60, s38, 10\ns_lshl_b32 s37, s30, 7\ns_add_u32 s60, s60, s37\ns_add_u32 s60, s60, {OBUF}')
        a(f'v_lshlrev_b32 v2, 10, v7\nv_and_b32 v8, 3, v0\nv_lshl_add_u32 v2, v8, 6, v2\nv_lshrrev_b32 v1, 4, v0\nv_lshl_add_u32 v2, v1, 4, v2')
        a(f's_and_b32 s61, s38, 0xfc\ns_lshl_b32 s61, s61, 10\ns_and_b32 s37, s38, 3\ns_lshl_b32 s37, s37, 8\ns_add_u32 s61, s61, s37\ns_add_u32 s61, s61, {OBUF}')
        a(f'v_lshl_add_u32 v7, v1, 2, v7\nv_mul_u32_u24 v7, {WSTR}, v7\nv_lshl_add_u32 v7, v8, 3, v7\ns_lshl_b32 s37, s30, 7\nv_add_u32 v7, s37, v7')
    while ci < len(chunks) - 8: run_chunk(128)
    tail_addr()
    while ci < len(chunks): run_chunk(128)
    stamp(a, P, 'Vlast')
    a(f'ds_write_b128 v3, v[{ACC}:{ACC+3}]\nds_write_b128 v3, v[{ACC+4}:{ACC+7}] offset:16\ns_waitcnt lgkmcnt(0)\ns_barrier')
    stamp(a, P, 'B2')
    for w in range(4): a(f'ds_read2st64_b32 v[{16+2*w}:{17+2*w}], v4 offset0:{16*w} offset1:{16*w+8}')
    a('ds_read_b128 v[24:27], v5\nds_read_b128 v[28:31], v5 offset:16\ns_waitcnt lgkmcnt(0)')
    a('v_mul_f32 v32, v16, v24\nv_mul_f32 v33, v17, v25')
    for w in range(2, 8): a(f'v_fmac_f32 v{32+(w&1)}, v{16+w}, v{24+w}')
    a('v_add_f32 v32, v32, v33')
    a('v_mov_b32_dpp v33, v32 quad_perm:[1,0,3,2] row_mask:0xf bank_mask:0xf')
    a('v_cvt_pk_bf16_f32 v32, v32, v33\nv_min_u32 v32, -2, v32')
    a('s_mov_b32 exec_lo, 0x55555555\ns_mov_b32 exec_hi, 0x55555555')
    a('buffer_store_dword v32, v6, s[52:55], s60 offen sc1\ns_mov_b64 exec, -1')
    stamp(a, P, 'ost')
    a(f's_mov_b32 s86, {P["spin"]}')
    a('s_cmp_eq_u32 s30, 7\ns_cbranch_scc1 L_fin')
    BF, AF, DF = 56, 120, 16
    DR = [16, 32, 124, 140]
    a(f'buffer_load_dwordx4 v[{AF}:{AF+3}], v2, s[52:55], s61 offen sc1')
    a(f'v_add_u32 v8, {64*WSTR}, v7')
    for i in range(4):
        for jj in range(4):
            b = BF + 16 * i + 4 * jj; o = (jj & 1) * 32 * WSTR + i * 32; va = 'v8' if jj >= 2 else 'v7'
            a(f'ds_read_b64_tr_b16 v[{b}:{b+1}], {va} offset:{o}\nds_read_b64_tr_b16 v[{b+2}:{b+3}], {va} offset:{o+16*WSTR}')
    a(f'v_lshlrev_b32 v3, 2, v0\ns_lshl_b32 s60, s38, 11\ns_lshl_b32 s37, s30, 8\ns_add_u32 s60, s60, s37\ns_add_u32 s60, s60, {PBUF}')
    a('s_branch L_gchk')
    a('L_gpoll:')
    a(f'buffer_load_dwordx4 v[{AF}:{AF+3}], v2, s[52:55], s61 offen sc1')
    a('L_gchk:')
    a('s_waitcnt vmcnt(0)')
    a(f'v_max3_u32 v4, v{AF}, v{AF+1}, v{AF+2}\nv_max_u32 v4, v4, v{AF+3}\nv_cmp_eq_u32 vcc, -1, v4')
    a('s_sub_u32 s86, s86, 1\ns_cbranch_scc1 L_gdone\ns_cbranch_vccnz L_gpoll')
    a('L_gdone:')
    stamp(a, P, 'gok')
    a('s_waitcnt lgkmcnt(0)')
    for i in range(4):
        for jj in range(4):
            b = BF + 16 * i + 4 * jj; d = DR[i] + 4 * jj
            a(f'v_mfma_f32_16x16x32_bf16 v[{d}:{d+3}], v[{AF}:{AF+3}], v[{b}:{b+3}], 0')
    for i in range(4):
        d = DR[i]
        a(f'v_add_f32 v{8+i}, v{d}, v{d+5}\nv_add_f32 v{12+i}, v{d+10}, v{d+15}')
    for i in range(4): a(f'v_add_f32 v{8+i}, v{8+i}, v{12+i}')
    a('v_permlane16_swap_b32 v8, v9\nv_permlane16_swap_b32 v10, v11\nv_add_f32 v8, v8, v9\nv_add_f32 v10, v10, v11')
    a('v_permlane32_swap_b32 v8, v10\nv_add_f32 v8, v8, v10\nv_min_u32 v8, -2, v8')
    a('buffer_store_dword v8, v3, s[52:55], s60 offen sc1')
    stamp(a, P, 'pst')
    if P['diag']:
        a('s_cmp_lg_u32 s30, 0\ns_cbranch_scc1 L_end')
        stamp_store(a, P, stamp_items(P, [x for x in S_PTS if x not in ('g2ok', 'end')]), hw=True)
    a('s_endpgm')
    a('L_fin:')
    a('s_cmp_lt_u32 s34, 28\ns_cbranch_scc0 L_end')
    a(f'v_lshrrev_b32 v2, 2, v0\nv_lshlrev_b32 v2, 11, v2\nv_and_b32 v8, 3, v0\nv_lshl_add_u32 v2, v8, 4, v2\nv_add_u32 v3, 32768, v2')
    a(f's_lshl_b32 s61, s33, 16\ns_lshl_b32 s37, s34, 6\ns_add_u32 s61, s61, s37\ns_add_u32 s61, s61, {PBUF}')
    a(f'v_lshl_add_u32 v4, v8, 2, v1\nv_lshlrev_b32 v5, 3, v4\nv_add_u32 v5, {L_XB}, v5\nds_read_b64 v[24:25], v5')
    a('s_mul_i32 s37, s33, 896\ns_lshl_b32 s39, s34, 5\ns_add_u32 s37, s37, s39\nv_lshl_add_u32 v4, v4, 1, s37')
    srd(a, 44, 24, None, 7168)
    a('L_fpoll:')
    a('buffer_load_dwordx4 v[16:19], v2, s[52:55], s61 offen sc1\nbuffer_load_dwordx4 v[20:23], v3, s[52:55], s61 offen sc1')
    a('s_waitcnt vmcnt(0)')
    a('v_max3_u32 v8, v16, v17, v18\nv_max3_u32 v9, v19, v20, v21\nv_max3_u32 v8, v8, v22, v23\nv_max_u32 v8, v8, v9\nv_cmp_eq_u32 vcc, -1, v8')
    a('s_sub_u32 s86, s86, 1\ns_cbranch_scc1 L_fdone\ns_cbranch_vccnz L_fpoll')
    a('L_fdone:')
    stamp(a, P, 'g2ok')
    for i in range(4): a(f'v_add_f32 v{16+i}, v{16+i}, v{20+i}')
    a('v_permlane16_swap_b32 v16, v17\nv_permlane16_swap_b32 v18, v19\nv_add_f32 v16, v16, v17\nv_add_f32 v18, v18, v19')
    a('v_permlane32_swap_b32 v16, v18\nv_add_f32 v16, v16, v18')
    a('v_add_f32_dpp v16, v16, v16 row_ror:4 row_mask:0xf bank_mask:0xf')
    a('v_add_f32_dpp v16, v16, v16 row_ror:8 row_mask:0xf bank_mask:0xf')
    a('s_waitcnt lgkmcnt(0)')
    rnd_bf16(a, 16)
    a('v_add_f32 v16, v24, v16'); rnd_bf16(a, 16)
    a('v_add_f32 v16, v16, v25\nv_cvt_pk_bf16_f32 v16, v16, v16')
    a('s_mov_b32 exec_lo, 0x000f000f\ns_mov_b32 exec_hi, 0x000f000f')
    a('buffer_store_short v16, v4, s[44:47], 0 offen')
    if P['hold']:
        a(f'L_hold:\ns_memrealtime s[96:97]\ns_waitcnt lgkmcnt(0)\ns_sub_u32 s96, s96, s98\ns_cmp_lt_u32 s96, {P["hold"]}\ns_cbranch_scc1 L_hold')
    if P['diag']:
        a('s_mov_b64 exec, -1\ns_waitcnt vmcnt(0)')
        stamp(a, P, 'end')
        stamp_store(a, P, stamp_items(P, ['g2ok', 'end']))
    a('s_endpgm')

def dma_loop(a, lab, n, depth, vaddr, sstep, lds0, pol):
    a(f's_mov_b32 s36, 0\ns_mov_b32 s62, {lds0}\ns_mov_b32 s63, {n}')
    a(f'{lab}:')
    a(f's_mov_b32 m0, s62\ns_waitcnt vmcnt({depth-1})')
    a(f'buffer_load_dwordx4 v{vaddr}, s[56:59], s36 offen {pol} lds')
    a(f's_add_u32 s36, s36, {sstep}\ns_add_u32 s62, s62, 1024\ns_sub_u32 s63, s63, 1\ns_cmp_lg_u32 s63, 0\ns_cbranch_scc1 {lab}')

def wo_loop(a, P, lab):
    a(f's_min_u32 s63, s63, {NWO*1024}')
    a(f's_cmp_lt_u32 s62, s63\ns_cbranch_scc0 {lab}x')
    a(f'{lab}:')
    a(f's_mov_b32 m0, s62\ns_waitcnt vmcnt({P["DH"]-1})')
    a(f'buffer_load_dwordx4 v1, s[56:59], 0 offen {P["opol"]} lds')
    a('v_add_u32 v11, 7, v11\nv_cmp_le_u32 vcc, 57, v11\nv_add_u32 v1, 1008, v1\ns_add_u32 s62, s62, 1024')
    a('v_subrev_u32 v3, 57, v11\nv_add_u32 v15, -16, v1\nv_cndmask_b32 v11, v11, v3, vcc\nv_cndmask_b32 v1, v1, v15, vcc')
    a(f's_cmp_lt_u32 s62, s63\ns_cbranch_scc1 {lab}')
    a(f'{lab}x:')

XF, FF, TT = 16, 44, 100
def x_addr(a):
    a('v_and_b32 v10, 15, v0\nv_lshrrev_b32 v9, 4, v0\nv_and_b32 v8, 7, v0\nv_mul_u32_u24 v8, 896, v8')
    a('v_bfe_u32 v3, v0, 3, 1\nv_mul_u32_u24 v3, 448, v3\nv_lshl_add_u32 v8, v9, 4, v8\nv_add_u32 v8, v8, v3')
def x_load(a, P):
    srd(a, 48, 4, None, 7168)
    for ks in range(7): a(f'buffer_load_dwordx4 v[{XF+4*ks}:{XF+4*ks+3}], v8, s[48:51], 0 offen offset:{ks*64} {P["xpol"]}')
def tag_add(a): a('s_add_u32 s84, s84, 0x9E3779B9\ns_addc_u32 s85, s85, 0x7F4A7C15')

def gemm_x(a, ntile, va, kstep, second, TA, DL, DHI):
    seq = [(t, ks) for t in range(ntile) for k7 in range(7) for ks in (k7, k7 + 7)]
    def rd(n):
        t, ks = seq[n]; r = TA + 4 * (n % 8); o = ks * kstep + t * 32
        a(f'ds_read_b64_tr_b16 v[{r}:{r+1}], v{va} offset:{o}\nds_read_b64_tr_b16 v[{r+2}:{r+3}], v{va} offset:{o+second}')
    for n in range(6): rd(n)
    for n, (t, ks) in enumerate(seq):
        if n + 6 < len(seq): rd(n + 6)
        a(f's_waitcnt lgkmcnt({2*min(6, len(seq)-1-n)})')
        r = TA + 4 * (n % 8); d = (DHI if ks >= 7 else DL) + 4 * t
        c = '0' if ks % 7 == 0 else f'v[{d}:{d+3}]'
        a(f'v_mfma_f32_16x16x32_bf16 v[{d}:{d+3}], v[{r}:{r+3}], v[{XF+4*(ks%7)}:{XF+4*(ks%7)+3}], {c}')
    for r in range(4 * ntile): a(f'v_add_f32_dpp v{DL+r}, v{DHI+r}, v{DL+r} row_ror:8 row_mask:0xf bank_mask:0xf')

def helper(a, P):
    stamp(a, P, 'hstart')
    if P['cpf']:
        a('s_getpc_b64 s[56:57]\ns_mov_b32 s58, 4352\ns_mov_b32 s59, 0x20000\nv_lshlrev_b32 v1, 6, v0')
        a('buffer_load_dword v15, v1, s[56:59], 0 offen offset:256')
    x_addr(a)
    a('v_lshrrev_b32 v1, 3, v0\nv_lshlrev_b32 v1, 13, v1\nv_and_b32 v2, 7, v0\nv_lshl_add_u32 v1, v2, 4, v1')
    a('s_and_b32 s63, s32, 1\ns_bfe_u32 s62, s32, 0x10001\ns_mul_i32 s37, s62, 224\ns_lshl_b32 s36, s63, 7\ns_add_u32 s37, s37, s36\ns_lshl_b32 s37, s37, 13')
    a('s_lshl_b32 s39, s31, 3\ns_lshr_b32 s36, s32, 2\ns_add_u32 s39, s39, s36\ns_lshl_b32 s39, s39, 7\ns_add_u32 s37, s37, s39')
    a(f's_mul_i32 s39, s63, {32*8192}\ns_sub_u32 s39, {127*8192+128}, s39')
    a('s_lshl_b32 s60, s63, 8\ns_mul_i32 s61, s63, 192\ns_sub_u32 s61, 192, s61')
    a('s_waitcnt lgkmcnt(0)')
    stamp(a, P, 'hkarg')
    a('s_load_dwordx2 s[84:85], s[28:29], 0')
    srd(a, 48, 4, None, 7168)
    for ks in range(7):
        if ks < 3: a(f'buffer_load_dwordx4 v[{XF+4*ks}:{XF+4*ks+3}], v8, s[48:51], s60 offen offset:{ks*64} {P["xpol"]}')
        else: a(f'buffer_load_dwordx4 v[{XF+4*ks}:{XF+4*ks+3}], v8, s[48:51], s61 offen offset:{(ks-3)*64} {P["xpol"]}')
    srd(a, 56, 10, 's37', 's39')
    for i in range(16):
        a(f's_mov_b32 m0, {L_WQ+i*1024}\ns_mov_b32 s36, {i*65536}')
        a(f'buffer_load_dwordx4 v1, s[56:59], s36 offen {P["wpol"]} lds')
    stamp(a, P, 'wqiss')
    srd(a, 52, 28, None, WS_USED)
    a(f'v_mov_b32 v14, {hex(OOB)}')
    a(f'v_bfe_u32 v3, v0, 2, 2\nv_lshl_add_u32 v12, v9, 3, v3\nv_lshlrev_b32 v12, 7, v12\nv_and_b32 v5, 3, v0\nv_lshl_add_u32 v12, v5, 3, v12')
    a(f'v_and_b32 v13, 7, v0\nv_lshlrev_b32 v13, 17, v13\nv_lshl_add_u32 v13, v9, 4, v13\nv_bfe_u32 v3, v0, 3, 1\nv_cmp_eq_u32 vcc, s62, v3\nv_cndmask_b32 v13, v14, v13, vcc')
    a(f's_lshl_b32 s60, s31, 14\ns_and_b32 s37, s32, 3\ns_lshl_b32 s37, s37, 12\ns_add_u32 s60, s60, s37\ns_lshr_b32 s37, s32, 2\ns_lshl_b32 s37, s37, 9\ns_add_u32 s60, s60, s37\ns_add_u32 s60, s60, {QBUF}')
    a('s_waitcnt vmcnt(16)')
    stamp(a, P, 'xland')
    layernorm(a, XF, FF, TT, 16)
    stamp(a, P, 'lndone')
    a('s_waitcnt vmcnt(0) lgkmcnt(0)')
    stamp(a, P, 'wqland')
    tag_add(a)
    TA, DQ, PK = 44, 108, 32
    seq = [(t, ks) for t in range(4) for ks in range(4)]
    def rd(n):
        t, ks = seq[n]; r = TA + 4 * n; o = ks * 4096 + t * 32
        a(f'ds_read_b64_tr_b16 v[{r}:{r+1}], v12 offset:{o}\nds_read_b64_tr_b16 v[{r+2}:{r+3}], v12 offset:{o+512}')
    for n in range(6): rd(n)
    for u in range(2): a(f'v_mov_b32 v{PK+4*u+2}, s84\nv_mov_b32 v{PK+4*u+3}, s85\nv_mov_b32 v{124+4*u+2}, s84\nv_mov_b32 v{124+4*u+3}, s85')
    def pub(t):
        for u in range(2):
            r = (PK if t % 2 == 0 else 124) + 4 * u
            a(f'v_mov_b32 v{r}, v{DQ+4*t+2*u}\nv_mov_b32 v{r+1}, v{DQ+4*t+2*u+1}')
        for u in range(2):
            r = (PK if t % 2 == 0 else 124) + 4 * u
            a(f'buffer_store_dwordx4 v[{r}:{r+3}], v13, s[52:55], s60 offen offset:{t*128+u*64} sc1')
    for n, (t, ks) in enumerate(seq):
        if n + 6 < 16: rd(n + 6)
        a(f's_waitcnt lgkmcnt({2*min(6, 15-n)})')
        r = TA + 4 * n; d = DQ + 4 * t
        c = '0' if ks == 0 else f'v[{d}:{d+3}]'
        a(f'v_mfma_f32_16x16x32_bf16 v[{d}:{d+3}], v[{r}:{r+3}], v[{XF+4*ks}:{XF+4*ks+3}], {c}')
        if n in (7, 11, 15): pub(n // 4 - 1)
    pub(3)
    stamp(a, P, 'qpub')
    a(f's_mov_b32 s63, {P["n1"]*1024}')
    a('s_mul_i32 s37, s34, 114688')
    srd(a, 56, 12, 's37', 114688)
    a('v_cmp_le_u32 vcc, 57, v0\nv_lshlrev_b32 v2, 4, v0\nv_subrev_u32 v3, 57, v0\nv_add_u32 v15, -16, v2\nv_cndmask_b32 v11, v0, v3, vcc\nv_cndmask_b32 v1, v2, v15, vcc')
    a(f's_mov_b32 s62, 0\ns_mov_b32 s83, {hex(f2u(C_EXP))}\ns_mov_b32 s82, {L_Q}')
    a('v_mov_b32 v4, -1\nv_mov_b32 v5, -1\nv_mov_b32 v6, -1\nv_mov_b32 v7, -1')
    a(f'v_lshlrev_b32 v3, 3, v0\nv_add_u32 v3, {L_ML}, v3\ns_mov_b64 exec, 0xffff\nds_write_b64 v3, v[4:5]\ns_mov_b64 exec, -1')
    a(f's_lshr_b32 s61, s38, 2\ns_lshl_b32 s61, s61, 14\ns_add_u32 s61, s61, {QBUF}')
    a(f's_mov_b32 s86, {P["spin"]}')
    a('L_qpoll:')
    wo_loop(a, P, 'L_woa')
    a('s_mov_b32 s36, s61')
    for kq in range(4):
        for m in range(4): a(f'buffer_load_dwordx4 v[{44+16*kq+4*m}:{47+16*kq+4*m}], v2, s[52:55], s36 offen offset:{m*1024} sc1')
        if kq < 3: a('s_add_u32 s36, s36, 4096')
    a(f's_add_u32 s63, s62, {P["n1r"]*1024}\ns_mov_b64 vcc, 0')
    for n in range(16):
        if n % 4 == 0: a(f's_waitcnt vmcnt({12-n})')
        a(f'v_cmp_ne_u64 s[{64+2*(n%4)}:{65+2*(n%4)}], s[84:85], v[{46+4*n}:{47+4*n}]')
        if n % 4 == 3:
            for k in range(4): a(f's_or_b64 vcc, vcc, s[{64+2*k}:{65+2*k}]')
    a('s_sub_u32 s86, s86, 1\ns_cbranch_scc1 L_qdone\ns_cbranch_vccnz L_qpoll')
    a('L_qdone:')
    stamp(a, P, 'qok')
    for kq in range(1, 4):
        for m in range(4): a(f'v_pk_add_f32 v[{44+4*m}:{45+4*m}], v[{44+4*m}:{45+4*m}], v[{44+16*kq+4*m}:{45+16*kq+4*m}]')
    a(f'v_lshrrev_b32 v3, 3, v0\nv_lshlrev_b32 v3, 5, v3\nv_and_b32 v15, 3, v0\nv_lshl_add_u32 v3, v15, 3, v3\nv_and_b32 v15, 4, v0\nv_add3_u32 v3, v3, v15, s82')
    for m in range(4): a(f'v_cvt_pk_bf16_f32 v{44+4*m}, v{44+4*m}, v{45+4*m}\nds_write_b32 v3, v{44+4*m} offset:{m*256}')
    a('s_waitcnt lgkmcnt(0)\ns_barrier')
    stamp(a, P, 'B1')
    if P['mpf']:
        a(f's_mul_i32 s37, s32, {14*3584}\ns_mul_i32 s39, s31, 448\ns_add_u32 s37, s37, s39\ns_sub_u32 s39, {448*3584}, s37')
        srd(a, 48, 16, 's37', 's39')
        a('v_lshrrev_b32 v3, 3, v0\nv_mul_u32_u24 v3, 3584, v3\nv_and_b32 v15, 7, v0\nv_lshl_add_u32 v3, v15, 6, v3')
        a(f's_mov_b32 s37, {6*3584}\nbuffer_load_dword v12, v3, s[48:51], 0 offen\nbuffer_load_dword v13, v3, s[48:51], s37 offen')
    a(f's_lshl_b32 s37, s38, 10\ns_add_u32 s37, s37, {OBUF}\nbuffer_store_dwordx4 v[4:7], v2, s[52:55], s37 offen sc1')
    a(f's_lshl_b32 s37, s38, 11\ns_add_u32 s37, s37, {PBUF}\nbuffer_store_dwordx4 v[4:7], v2, s[52:55], s37 offen sc1\nbuffer_store_dwordx4 v[4:7], v2, s[52:55], s37 offen offset:1024 sc1')
    if P['mpf']:
        a(f's_add_u32 s63, s62, {P["nw2"]*1024}')
        wo_loop(a, P, 'L_wod')
        a('s_lshl_b32 s37, s31, 5\ns_add_u32 s37, s37, s32\ns_mul_i32 s37, s37, 6272')
        srd(a, 48, 20, 's37', 6272)
        a('v_lshlrev_b32 v3, 6, v0\ns_mov_b32 s37, 4096\nbuffer_load_dword v12, v3, s[48:51], 0 offen\nbuffer_load_dword v13, v3, s[48:51], s37 offen')
    a(f's_mov_b32 s63, {P["n2"]*1024}')
    wo_loop(a, P, 'L_wob')
    stamp(a, P, 'wob')
    a(f'v_and_b32 v3, 15, v0\nv_lshlrev_b32 v3, 3, v3\nv_add_u32 v3, {L_ML}, v3\ns_mov_b32 s86, {P["spin"]*16}')
    a('L_mlw:')
    a('ds_read_b64 v[16:17], v3\ns_waitcnt lgkmcnt(0)\nv_cmp_eq_u32 vcc, -1, v16')
    a('s_sub_u32 s86, s86, 1\ns_cbranch_scc1 L_mlwd\ns_cbranch_vccz L_mlwd\ns_sleep 4\ns_branch L_mlw')
    a('L_mlwd:')
    d8 = ('quad_perm:[1,0,3,2]', 'quad_perm:[2,3,0,1]', 'row_half_mirror')
    a('v_mov_b32 v18, v16')
    for m in d8: a(f'v_max_f32_dpp v18, v18, v18 {m} row_mask:0xf bank_mask:0xf')
    a('v_sub_f32 v19, v16, v18\nv_mul_f32 v19, s83, v19\nv_exp_f32 v19, v19\nv_mul_f32 v19, v19, v17')
    for m in d8: a(f'v_add_f32_dpp v19, v19, v19 {m} row_mask:0xf bank_mask:0xf')
    a('v_mov_b32 v20, s84\nv_mov_b32 v21, s85\nv_lshlrev_b32 v4, 6, v0')
    a(f's_lshl_b32 s61, s33, 10\ns_add_u32 s61, s61, {MLBUF}\ns_lshl_b32 s37, s34, 4\ns_add_u32 s37, s37, s61')
    a('s_waitcnt vmcnt(0)\ns_mov_b64 exec, 0x101\nbuffer_store_dwordx4 v[18:21], v4, s[52:55], s37 offen sc1\ns_mov_b64 exec, -1')
    stamp(a, P, 'mlpub')
    a(f's_mov_b32 s63, {NWO*1024}')
    wo_loop(a, P, 'L_woc')
    stamp(a, P, 'wodone')
    a(f's_mov_b32 s86, {P["spin"]}')
    a('L_mlp2:')
    a('buffer_load_dwordx4 v[24:27], v2, s[52:55], s61 offen sc1\ns_waitcnt vmcnt(0)')
    a('v_cmp_ne_u64 vcc, s[84:85], v[26:27]')
    a('s_sub_u32 s86, s86, 1\ns_cbranch_scc1 L_mlp2d\ns_cbranch_vccz L_mlp2d\ns_sleep 16\ns_branch L_mlp2')
    a('L_mlp2d:')
    stamp(a, P, 'mlok')
    a('v_mov_b32 v28, v24')
    for m in d8[:2]: a(f'v_max_f32_dpp v28, v28, v28 {m} row_mask:0xf bank_mask:0xf')
    a('v_sub_f32 v29, v24, v28\nv_mul_f32 v29, s83, v29\nv_exp_f32 v29, v29\nv_mul_f32 v29, v29, v25')
    for m in d8[:2]: a(f'v_add_f32_dpp v29, v29, v29 {m} row_mask:0xf bank_mask:0xf')
    a('s_and_b32 s37, s34, 28\ns_add_u32 s39, s37, 32')
    a('v_readlane_b32 s62, v28, s37\nv_readlane_b32 s63, v29, s37\nv_readlane_b32 s60, v28, s39\nv_readlane_b32 s87, v29, s39')
    a('v_mov_b32 v30, s62\nv_mov_b32 v31, s63\nv_mov_b32 v32, s60\nv_mov_b32 v33, s87')
    a('s_mov_b32 s62, 0xff00ff00\ns_mov_b32 s63, 0xff00ff00')
    a('v_cndmask_b32 v30, v30, v32, s[62:63]\nv_cndmask_b32 v31, v31, v33, s[62:63]')
    a('v_sub_f32 v30, v16, v30\nv_mul_f32 v30, s83, v30\nv_exp_f32 v30, v30\nv_rcp_f32 v31, v31\nv_mul_f32 v30, v30, v31')
    a(f'v_lshlrev_b32 v3, 2, v0\nv_add_u32 v3, {L_F}, v3\ns_mov_b64 exec, 0xffff\nds_write_b32 v3, v30\ns_mov_b64 exec, -1')
    a('s_cmp_lt_u32 s34, 28\ns_cbranch_scc0 L_hend')
    a(f'v_cmp_gt_u32 vcc, 56, v0\nv_mov_b32 v3, 0\nv_cndmask_b32 v3, v3, v2, vcc\ns_mov_b32 s86, {P["spin"]}\ns_mov_b32 s37, {MFLAG}')
    if P['nom']: a('s_branch L_mfd')
    a('L_mf:')
    a('buffer_load_dwordx2 v[16:17], v3, s[52:55], s37 offen sc1\ns_waitcnt vmcnt(0)\nv_cmp_ne_u64 vcc, s[84:85], v[16:17]')
    a('s_sub_u32 s86, s86, 1\ns_cbranch_scc1 L_mfd\ns_cbranch_vccz L_mfd\ns_sleep 16\ns_branch L_mf')
    a('L_mfd:')
    a('v_lshrrev_b32 v3, 2, v0\nv_mul_u32_u24 v3, 14336, v3\nv_and_b32 v5, 3, v0\nv_lshl_add_u32 v3, v5, 4, v3')
    a(f'v_cmp_gt_u32 vcc, 32, v0\nv_cndmask_b32 v4, v14, v3, vcc')
    a(f's_mul_i32 s37, s33, 1792\ns_lshl_b32 s39, s34, 6\ns_add_u32 s37, s37, s39\ns_add_u32 s37, s37, {MBUF}')
    for k in range(4):
        a(f'buffer_load_dwordx4 v[{32+4*k}:{35+4*k}], v{4 if k == 3 else 3}, s[52:55], s37 offen sc1\ns_add_u32 s37, s37, {16*14336}')
    a('v_lshlrev_b32 v6, 3, v5\ns_lshl_b32 s39, s34, 5')
    srd(a, 56, 22, None, 896)
    a('buffer_load_dwordx2 v[24:25], v6, s[56:59], s39 offen')
    srd(a, 48, 4, None, 7168)
    a('s_mul_i32 s37, s33, 896\ns_add_u32 s37, s37, s39\nbuffer_load_dwordx2 v[26:27], v6, s[48:51], s37 offen')
    a('s_waitcnt vmcnt(0)')
    for i in range(4): a(f'v_add_f32 v{16+i}, v{32+i}, v{36+i}\nv_add_f32 v{20+i}, v{40+i}, v{44+i}')
    for i in range(4): a(f'v_add_f32 v{16+i}, v{16+i}, v{20+i}')
    for m in ('row_ror:4', 'row_ror:8'):
        for i in range(4): a(f'v_add_f32_dpp v{16+i}, v{16+i}, v{16+i} {m} row_mask:0xf bank_mask:0xf')
    for i in range(4): xgroup(a, 'v_add_f32', 16 + i, 20 + i)
    unpack(a, 24, 28, 2)
    a('v_cvt_pk_bf16_f32 v22, v16, v17\nv_cvt_pk_bf16_f32 v23, v18, v19')
    unpack(a, 22, 16, 2)
    for i in range(4): a(f'v_add_f32 v{16+i}, v{16+i}, v{28+i}')
    a('v_cvt_pk_bf16_f32 v22, v16, v17\nv_cvt_pk_bf16_f32 v23, v18, v19')
    a('v_lshlrev_b32 v32, 16, v26\nv_lshlrev_b32 v33, 16, v22\nv_and_b32 v34, 0xffff0000, v26\nv_and_b32 v35, 0xffff0000, v22')
    a('v_lshlrev_b32 v36, 16, v27\nv_lshlrev_b32 v37, 16, v23\nv_and_b32 v38, 0xffff0000, v27\nv_and_b32 v39, 0xffff0000, v23')
    a(f'v_lshlrev_b32 v3, 5, v0\nv_add_u32 v3, {L_XB}, v3\ns_mov_b64 exec, 0xf')
    a('ds_write_b128 v3, v[32:35]\nds_write_b128 v3, v[36:39] offset:16\ns_mov_b64 exec, -1')
    a('s_cmp_lg_u32 s38, 0\ns_cbranch_scc1 L_hend')
    a(f's_mov_b32 s86, {P["spin"]}')
    a('L_ep:')
    a(f's_mov_b32 s37, {MLBUF}')
    for k in range(8):
        a(f'buffer_load_dwordx4 v[{32+4*k}:{35+4*k}], v2, s[52:55], s37 offen sc1\ns_add_u32 s37, s37, 1024')
    a('s_waitcnt vmcnt(0)\nv_cmp_ne_u64 vcc, s[84:85], v[34:35]')
    for k in range(1, 8): a(f'v_cmp_ne_u64 s[62:63], s[84:85], v[{34+4*k}:{35+4*k}]\ns_or_b64 vcc, vcc, s[62:63]')
    a('s_sub_u32 s86, s86, 1\ns_cbranch_scc1 L_epd\ns_cbranch_vccz L_epd\ns_sleep 16\ns_branch L_ep')
    a('L_epd:')
    a('v_mov_b32 v20, s84\nv_mov_b32 v21, s85\nv_mov_b32 v4, 0\ns_mov_b64 exec, 1\nbuffer_store_dwordx2 v[20:21], v4, s[52:55], 0 offen sc1\ns_mov_b64 exec, -1')
    a('L_hend:')
    a('s_waitcnt vmcnt(0) lgkmcnt(0)')
    stamp(a, P, 'hend')
    stamp_store(a, P, stamp_items(P, H_PTS))
    a('s_endpgm')

def mlp(a, P):
    a('L_mlp:')
    if P['nom']: a('s_endpgm')
    a('s_and_b32 s37, s32, 3\ns_cmp_eq_u32 s37, 2\ns_cbranch_scc0 L_end\ns_cmp_lt_u32 s32, 28\ns_cbranch_scc0 L_end')
    a('s_mul_i32 s87, s31, 7\ns_lshr_b32 s37, s32, 2\ns_add_u32 s87, s87, s37')
    x_addr(a)
    a('s_waitcnt lgkmcnt(0)\ns_load_dwordx2 s[84:85], s[28:29], 0')
    srd(a, 52, 28, None, WS_USED)
    a(f'v_mov_b32 v14, {hex(OOB)}\nv_lshlrev_b32 v2, 4, v0\ns_waitcnt lgkmcnt(0)\ns_barrier')
    stamp(a, P, 'mstart')
    tag_add(a)
    x_load(a, P)
    a('s_lshl_b32 s37, s87, 6')
    srd(a, 56, 18, 's37', 64)
    a('v_lshlrev_b32 v3, 3, v9')
    B1R = 116
    for t in range(2): a(f'buffer_load_dwordx2 v[{B1R+2*t}:{B1R+2*t+1}], v3, s[56:59], 0 offen offset:{t*32}')
    a(f's_sub_u32 s39, {448*3584}, s37')
    srd(a, 56, 16, 's37', 's39')
    a('v_lshrrev_b32 v1, 2, v0\nv_mul_u32_u24 v1, 3584, v1\nv_and_b32 v5, 3, v0\nv_lshl_add_u32 v1, v5, 4, v1')
    dma_loop(a, 'L_w1', 28, P['DM'], 1, 16 * 3584, L_MS, P['mpol'])
    layernorm(a, XF, FF, TT)
    layernorm(a, XF, FF, TT)
    a(f'v_bfe_u32 v3, v0, 2, 2\nv_lshl_add_u32 v4, v9, 3, v3\nv_lshlrev_b32 v4, 6, v4\nv_lshl_add_u32 v4, v5, 3, v4\nv_add_u32 v4, {L_MS}, v4')
    a(f'v_lshl_add_u32 v6, v9, 2, v3\nv_mul_u32_u24 v6, 896, v6\nv_lshl_add_u32 v6, v5, 3, v6\nv_add_u32 v6, {L_MS}, v6')
    a(f'v_mul_u32_u24 v13, 1792, v10\nv_lshl_add_u32 v13, v9, 4, v13\nv_cmp_gt_u32 vcc, 8, v10\nv_cndmask_b32 v13, v14, v13, vcc')
    a('s_waitcnt vmcnt(0)')
    stamp(a, P, 'mw1')
    TA, D1, D1H = 44, 76, 92
    gemm_x(a, 2, 4, 2048, 256, TA, D1, D1H)
    a('s_mul_i32 s37, s87, 28672')
    srd(a, 56, 20, 's37', 28672)
    dma_loop(a, 'L_w2', 28, P['DM'], 2, 1024, L_MS, P['mpol'])
    BU = 16; HF = 108
    unpack(a, B1R, BU, 4)
    k0 = 2 * 0.7978845608028654 * math.log2(math.e); k1 = k0 * 0.044715
    a(f's_mov_b32 s62, {hex(f2u(-k1))}\nv_mov_b32 v15, {hex(f2u(-k0))}')
    for i in range(4): a(f'v_cvt_pk_bf16_f32 v{32+i}, v{D1+2*i}, v{D1+2*i+1}')
    unpack(a, 32, D1, 4)
    for i in range(8): a(f'v_add_f32 v{D1+i}, v{D1+i}, v{BU+i}')
    for i in range(4): a(f'v_cvt_pk_bf16_f32 v{32+i}, v{D1+2*i}, v{D1+2*i+1}')
    unpack(a, 32, D1, 4)
    for i in range(8): a(f'v_mul_f32 v{BU+i}, v{D1+i}, v{D1+i}')
    for i in range(8): a(f'v_fma_f32 v{BU+i}, v{BU+i}, s62, v15')
    for i in range(8): a(f'v_mul_f32 v{BU+i}, v{BU+i}, v{D1+i}')
    for i in range(8): a(f'v_exp_f32 v{BU+i}, v{BU+i}')
    for i in range(8): a(f'v_add_f32 v{BU+i}, 1.0, v{BU+i}')
    for i in range(8): a(f'v_rcp_f32 v{BU+i}, v{BU+i}')
    for i in range(8): a(f'v_mul_f32 v{D1+i}, v{D1+i}, v{BU+i}')
    for i in range(4): a(f'v_cvt_pk_bf16_f32 v{HF+i}, v{D1+2*i}, v{D1+2*i+1}')
    a(f's_mul_i32 s60, s87, 14336\ns_add_u32 s60, s60, {MBUF}\ns_waitcnt vmcnt(0)')
    stamp(a, P, 'mw2')
    def rd2(n):
        r = TA + 4 * (n % 8); o = n * 32
        a(f'ds_read_b64_tr_b16 v[{r}:{r+1}], v6 offset:{o}\nds_read_b64_tr_b16 v[{r+2}:{r+3}], v6 offset:{o+14336}')
    for n in range(6): rd2(n)
    D2 = [76 + 4 * k for k in range(8)]
    def st2(nt):
        d = D2[nt % 8]
        a(f'buffer_store_dwordx4 v[{d}:{d+3}], v13, s[52:55], s60 offen offset:{nt*64} sc1')
    for n in range(28):
        if n + 6 < 28: rd2(n + 6)
        a(f's_waitcnt lgkmcnt({2*min(6, 27-n)})')
        r = TA + 4 * (n % 8); d = D2[n % 8]
        a(f'v_mfma_f32_16x16x32_bf16 v[{d}:{d+3}], v[{r}:{r+3}], v[{HF}:{HF+3}], 0')
        if n >= 3: st2(n - 3)
    for n in range(25, 28): st2(n)
    a(f'v_mov_b32 v6, s84\nv_mov_b32 v7, s85\nv_mov_b32 v4, 0\ns_lshl_b32 s37, s87, 4\ns_add_u32 s37, s37, {MFLAG}')
    a('s_waitcnt vmcnt(0)\ns_mov_b64 exec, 1\nbuffer_store_dwordx2 v[6:7], v4, s[52:55], s37 offen sc1\ns_mov_b64 exec, -1')
    stamp(a, P, 'mend')
    stamp_store(a, P, stamp_items(P, M_PTS))
    a('s_endpgm')

def body(P):
    a = Asm()
    a('s_cmp_ge_u32 s2, 256\ns_cbranch_scc1 L_end')
    a('s_load_dwordx16 s[4:19], s[0:1], 0\ns_load_dwordx8 s[20:27], s[0:1], 64\ns_load_dwordx2 s[28:29], s[0:1], 96')
    a('v_lshrrev_b32 v1, 6, v0\nv_and_b32 v0, 63, v0\nv_readfirstlane_b32 s30, v1')
    a('s_and_b32 s31, s2, 7\ns_lshr_b32 s32, s2, 3')
    if P['bmap'] == 0: a('s_lshr_b32 s33, s32, 2\ns_and_b32 s34, s32, 3')
    else: a('s_and_b32 s33, s32, 7\ns_lshr_b32 s34, s32, 3')
    a('s_lshl_b32 s37, s31, 2\ns_add_u32 s34, s34, s37\ns_lshl_b32 s38, s33, 5\ns_add_u32 s38, s38, s34')
    stamp_init(a, P)
    a('s_cmp_lg_u32 s30, 0\ns_cbranch_scc1 L_stream')
    helper(a, P)
    mlp(a, P)
    streamer(a, P)
    a('L_end:\ns_endpgm')
    txt, n = a.text()
    return txt, n

def vgprs(P): return max(56 + 4 * P['R'], 156)

def kernel(P):
    txt, n = body(P)
    nm = P['name']
    txt = txt.replace('L_', f'L{nm[-24:]}_') if P.get('uniq') else txt
    return txt

def final_file(P):
    ref = open(f'cdna_kernels/{NAME}.s.ref').read()
    head = ref[:ref.index('; Override launch')]
    nm = P['name']; vg = vgprs(P)
    return head + f'''; Single launch: 256 workgroups x (8 streaming waves + 2 helper waves). Generated by gen/gen.py.
; @launch grid=(256,1,1) block=({block(P)},1,1) lds={LDS_BYTES}
.amdgcn_target "amdgcn-amd-amdhsa--gfx950"
.text
.globl {nm}
.p2align 8
.type {nm},@function
{nm}:
{kernel(P)}
.section .rodata,"a"
.p2align 6
.amdhsa_kernel {nm}
  .amdhsa_next_free_vgpr {vg}
  .amdhsa_next_free_sgpr 102
  .amdhsa_accum_offset {(vg+3)//4*4}
  .amdhsa_group_segment_fixed_size 0
  .amdhsa_kernarg_size 104
  .amdhsa_user_sgpr_count 2
  .amdhsa_user_sgpr_kernarg_segment_ptr 1
  .amdhsa_system_sgpr_workgroup_id_x 1
.end_amdhsa_kernel
'''

if __name__ == '__main__':
    P = dict(DEF)
    out = f'cdna_kernels/{NAME}.s'
    for kv in sys.argv[1:]:
        k, v = kv.split('=', 1)
        if k == 'out': out = v
        else: P[k] = type(DEF[k])(v) if not isinstance(DEF[k], bool) else v == '1'
    open(out, 'w').write(final_file(P))
    print('wrote', out)
```

```python
import sys, math, struct
from asmlib import Asm

NAME = 'parallel_sum__gqa_block_cached__mixer_channel_mlp__decode'
def f2u(x): return struct.unpack('<I', struct.pack('<f', x))[0]

MLX, OBUF, PBUF, HBUF, QBUF, WS_USED = 0x1000, 0x24000, 0x64000, 0xE4000, 0x120000, 0x1A0000
TMASK = 0x3FF
STAMP_OFF = 536870912 - (1 << 20)
WSTR = 912; NWO = 114
L_WO = 0; L_WQ = 0
L_PART = 128 * WSTR
L_MS = L_PART + 16384
L_Q = L_MS + 28672
L_ML = L_Q + 1024
L_F = L_ML + 128
L_MW = L_F + 64
L_TAG = L_MW + 16
LDS_BYTES = L_TAG + 16
OOB = 0x7F000000
C_EXP = math.log2(math.e) / 16.0

DEF = dict(R=24, D=3, D0=3, DH=5, DM=4, n1=3, n1r=2, cpf=1, tpf=1, nornd=0, nom=0, pol='nt', wpol='', xpol='', opol='', mpol='', diag=False, budget=2,
           name=NAME + '_kernel', spin=1 << 16, hold=0, bmap=0, pts='start+qpub+B1+Kdone+hend+B2+end')
def block(P): return 640

def srd(a, n, base, off, size):
    if off is None:
        a(f's_mov_b32 s{n}, s{base}\ns_mov_b32 s{n+1}, s{base+1}')
    else:
        a(f's_add_u32 s{n}, s{base}, {off}\ns_addc_u32 s{n+1}, s{base+1}, 0')
    a(f's_mov_b32 s{n+2}, {size}\ns_mov_b32 s{n+3}, 0x20000')

def wave_sum(a, v, s):
    for m in ('row_shr:1', 'row_shr:2', 'row_shr:4', 'row_shr:8'):
        a(f'v_add_f32_dpp v{v}, v{v}, v{v} {m} row_mask:0xf bank_mask:0xf')
    a(f'v_add_f32_dpp v{v}, v{v}, v{v} row_bcast:15 row_mask:0xa bank_mask:0xf')
    a(f'v_add_f32_dpp v{v}, v{v}, v{v} row_bcast:31 row_mask:0xc bank_mask:0xf')
    a(f'v_readlane_b32 s{s}, v{v}, 63')

def rnd_bf16(a, v):
    a(f'v_cvt_pk_bf16_f32 v{v}, v{v}, v{v}\nv_and_b32 v{v}, 0xffff0000, v{v}')

def unpack(a, src, dst, n):
    for i in range(n):
        a(f'v_and_b32 v{dst+2*i+1}, 0xffff0000, v{src+i}\nv_lshlrev_b32 v{dst+2*i}, 16, v{src+i}')

def row_sum(a, v, t):
    a(f'v_add_f32_dpp v{v}, v{v}, v{v} row_ror:8 row_mask:0xf bank_mask:0xf')
    xgroup(a, 'v_add_f32', v, t)

def layernorm(a, X, F, T, nq=28):
    pr = lambda r: f'v[{r}:{r+1}]'
    unpack(a, X, F, 28)
    a(f'v_pk_add_f32 {pr(T)}, {pr(F)}, {pr(F+2)}\nv_pk_add_f32 {pr(T+2)}, {pr(F+4)}, {pr(F+6)}')
    for i in range(4, 28): a(f'v_pk_add_f32 {pr(T+2*(i&1))}, {pr(T+2*(i&1))}, {pr(F+2*i)}')
    a(f'v_pk_add_f32 {pr(T)}, {pr(T)}, {pr(T+2)}\nv_add_f32 v{T}, v{T}, v{T+1}')
    row_sum(a, T, T + 1)
    a(f'v_mul_f32 v{T}, {hex(f2u(-1/448))}, v{T}\nv_mov_b32 v{T+1}, v{T}')
    for i in range(28):
        d = T + 4 + 2 * (i & 1)
        a(f'v_pk_add_f32 {pr(d)}, {pr(F+2*i)}, {pr(T)}')
        if i == 0: a(f'v_pk_mul_f32 {pr(T+2)}, {pr(d)}, {pr(d)}')
        else: a(f'v_pk_fma_f32 {pr(T+2)}, {pr(d)}, {pr(d)}, {pr(T+2)}')
    a(f'v_add_f32 v{T+2}, v{T+2}, v{T+3}')
    row_sum(a, T + 2, T + 3)
    rnd_bf16(a, T)
    a(f'v_mov_b32 v{T+1}, v{T}\nv_mul_f32 v{T+2}, {hex(f2u(1/448))}, v{T+2}')
    rnd_bf16(a, T + 2)
    a(f'v_add_f32 v{T+2}, {hex(f2u(1e-5))}, v{T+2}')
    rnd_bf16(a, T + 2)
    a(f'v_sqrt_f32 v{T+2}, v{T+2}')
    for i in range(nq): a(f'v_pk_add_f32 {pr(F+2*i)}, {pr(F+2*i)}, {pr(T)}')
    rnd_bf16(a, T + 2)
    a(f'v_rcp_f32 v{T+2}, v{T+2}')
    for i in range(nq): a(f'v_cvt_pk_bf16_f32 v{X+i}, v{F+2*i}, v{F+2*i+1}')
    a(f'v_mov_b32 v{T+3}, v{T+2}')
    unpack(a, X, F, nq)
    for i in range(nq): a(f'v_pk_mul_f32 {pr(F+2*i)}, {pr(F+2*i)}, {pr(T+2)}')
    for i in range(nq): a(f'v_cvt_pk_bf16_f32 v{X+i}, v{F+2*i}, v{F+2*i+1}')

def xgroup(a, op, v, t):
    a(f'v_mov_b32 v{t}, v{v}\nv_permlane16_swap_b32 v{v}, v{t}\n{op} v{v}, v{v}, v{t}')
    a(f'v_mov_b32 v{t}, v{v}\nv_permlane32_swap_b32 v{v}, v{t}\n{op} v{v}, v{v}, v{t}')

S_PTS = ['start', 'skarg', 'siss0', 'pst', 'g2ok', 'sB1a', 'sB1', 'Kdone', 'Vlast', 'B2', 'ost', 'gok', 'B3', 'end']
M_PTS = ['mstart', 'mw1', 'mw2', 'mend']
H_PTS = ['hstart', 'hpub', 'wob', 'qack', 'xland', 'lndone', 'wtpub', 'wtok', 'hkarg', 'wqiss', 'hB0', 'wqland', 'qpub', 'qp1', 'qok', 'B1', 'wodone', 'mlpub', 'mlok', 'hend']
def pts(P): return P['pts'].split('+') if isinstance(P['pts'], str) else P['pts']
def stamp(a, P, name):
    if P['diag'] and name in pts(P):
        reg = 88 + 2 * pts(P).index(name)
        a(f's_memrealtime s[{reg}:{reg+1}]\ns_waitcnt lgkmcnt(0)')
def stamp_items(P, lst): return [(i, 88 + 2 * i) for i, n in enumerate(pts(P)) if n in lst]
def stamp_init(a, P):
    if P['diag']:
        for i in range(7): a(f's_mov_b64 s[{88+2*i}:{89+2*i}], 0')

def stamp_store(a, P, items, hw=False):
    if not P['diag']: return
    a('s_waitcnt lgkmcnt(0)')
    a(f's_lshl_b32 s37, s2, 6\ns_add_u32 s37, s37, {STAMP_OFF}')
    srd(a, 40, 28, 's37', 64)
    a('s_mov_b64 exec, 1\nv_mov_b32 v1, 0')
    for idx, reg in items:
        a(f'v_mov_b32 v2, s{reg}\nv_mov_b32 v3, s{reg+1}\nbuffer_store_dwordx2 v[2:3], v1, s[40:43], 0 offen offset:{idx*8}')
    if hw:
        a('s_getreg_b32 s38, hwreg(HW_REG_XCC_ID)\ns_getreg_b32 s39, hwreg(HW_REG_HW_ID)')
        a('v_mov_b32 v2, s38\nv_mov_b32 v3, s39\nbuffer_store_dwordx2 v[2:3], v1, s[40:43], 0 offen offset:56')
    a('s_mov_b64 exec, -1')

def streamer(a, P):
    a('L_stream:\ns_cmp_eq_u32 s30, 9\ns_cbranch_scc1 L_mlp\ns_sub_u32 s30, s30, 1')
    R, D, D0, pol = P['R'], P['D'], P['D0'], P['pol']
    Q, S, DT, RING = 8, 16, 48, 56
    slot = lambda i: RING + 4 * (i % R)
    sl = lambda i: f'v[{slot(i)}:{slot(i)+3}]'
    stamp(a, P, 'start')
    if P['hold']: a('s_memrealtime s[98:99]')
    a('v_and_b32 v1, 3, v0\nv_lshlrev_b32 v1, 4, v1\nv_bfe_u32 v3, v0, 2, 2\nv_lshl_add_u32 v1, v3, 9, v1')
    a('v_lshrrev_b32 v3, 4, v0\nv_lshl_add_u32 v1, v3, 6, v1')
    a('v_and_b32 v2, 15, v0\nv_lshlrev_b32 v2, 4, v2\nv_lshl_add_u32 v2, v3, 9, v2')
    a('s_lshl_b32 s37, s38, 19\ns_lshl_b32 s39, s30, 16\ns_add_u32 s37, s37, s39')
    a('s_add_u32 s35, s30, s32\ns_and_b32 s35, s35, 7\ns_lshl_b32 s35, s35, 12')
    a('s_waitcnt lgkmcnt(0)')
    stamp(a, P, 'skarg')
    srd(a, 40, 6, 's37', 65536)
    srd(a, 44, 8, 's37', 65536)
    def issue(i):
        j = i % 64; G, t = j >> 1, j & 1
        if t == 0: a(f's_xor_b32 s36, s35, {G*2048}')
        r, va = ('s[40:43]', 'v1') if i < 64 else ('s[44:47]', 'v2')
        a(f'buffer_load_dwordx4 {sl(i)}, {va}, {r}, s36 offen offset:{t*256} {pol}')
    for i in range(D0): issue(i)
    stamp(a, P, 'siss0')
    srd(a, 52, 28, None, WS_USED)
    for e in range(2):
        for r in range(4):
            m16 = (0x11 << r) << (8 * e); m32 = m16 | (m16 << 16)
            a(f's_mov_b32 s{64+2*(4*e+r)}, {hex(m32)}\ns_mov_b32 s{65+2*(4*e+r)}, {hex(m32)}')
    a('s_mov_b32 s80, 0x05040100\ns_mov_b32 s81, 0x07060302')
    for i in range(D0, R):
        a(f's_waitcnt vmcnt({D-1})'); issue(i)
    a('v_bfe_u32 v3, v0, 2, 1\nv_lshlrev_b32 v3, 9, v3\nv_and_b32 v4, 3, v0\nv_lshl_add_u32 v3, v4, 4, v3')
    a(f'v_lshrrev_b32 v4, 4, v0\nv_lshl_add_u32 v3, v4, 6, v3\nv_add_u32 v3, {L_Q}, v3')
    stamp(a, P, 'sB1a')
    a(f's_barrier')
    stamp(a, P, 'sB1')
    a(f'ds_read_b128 v[{Q}:{Q+3}], v3\nds_read_b128 v[{Q+4}:{Q+7}], v3 offset:256\nv_mov_b32 v5, {L_TAG}\nds_read_b32 v5, v5')
    a(f'v_mov_b32 v4, 0xff800000\ns_mov_b32 s83, {hex(f2u(C_EXP))}\ns_waitcnt lgkmcnt(0)')
    a(f'v_readfirstlane_b32 s84, v5\ns_mov_b32 s82, {TMASK}\ns_and_b32 s85, s84, {TMASK}')
    chunks = []
    def kdpp(G):
        d = DT + 4 * (G & 1)
        a(f'v_mov_b32_dpp v{S+G}, v{d} quad_perm:[0,0,0,0] row_mask:0xf bank_mask:0xf')
        for r in range(1, 4):
            a(f'v_add_f32_dpp v{S+G}, v{d+r}, v{S+G} quad_perm:[{r},{r},{r},{r}] row_mask:0xf bank_mask:0xf')
        if G & 1:
            if not P['nornd']: a(f'v_cvt_pk_bf16_f32 v5, v{S+G-1}, v{S+G}\nv_lshlrev_b32 v{S+G-1}, 16, v5\nv_and_b32 v{S+G}, 0xffff0000, v5')
            a(f'v_max3_f32 v4, v4, v{S+G-1}, v{S+G}')
    def kchunk(G):
        def fn():
            d = DT + 4 * (G & 1)
            a(f'v_mfma_f32_16x16x32_bf16 v[{d}:{d+3}], {sl(2*G)}, v[{Q}:{Q+3}], 0')
            a(f'v_mfma_f32_16x16x32_bf16 v[{d}:{d+3}], {sl(2*G+1)}, v[{Q+4}:{Q+7}], v[{d}:{d+3}]')
            if G: kdpp(G - 1)
        return fn
    for G in range(32): chunks.append((2 * G + 1, [2 * G, 2 * G + 1], kchunk(G)))
    def sm0():
        kdpp(31)
        xgroup(a, 'v_max_f32', 4, 5)
        a('v_mul_f32 v6, s83, v4\nv_mov_b32 v7, 0')
        stamp(a, P, 'Kdone')
    chunks.append((63, [], sm0))
    def sm(k):
        def fn():
            for g in range(8 * k, 8 * k + 8): a(f'v_fma_f32 v{S+g}, v{S+g}, s83, -v6')
            for g in range(8 * k, 8 * k + 8): a(f'v_exp_f32 v{S+g}, v{S+g}')
            for g in range(8 * k, 8 * k + 8): a(f'v_add_f32 v7, v7, v{S+g}')
            for i in range(4 * k, 4 * k + 4): a(f'v_cvt_pk_bf16_f32 v{S+i}, v{S+2*i}, v{S+2*i+1}')
        return fn
    for k in range(4): chunks.append((63, [], sm(k)))
    def sm_end():
        xgroup(a, 'v_add_f32', 7, 5)
        a(f'v_mov_b32 v5, v7\nv_bfe_u32 v3, v0, 2, 1\nv_lshlrev_b32 v3, 6, v3\ns_lshl_b32 s37, s30, 3\ns_add_u32 s37, s37, {L_ML}\nv_add_u32 v3, s37, v3')
        a('s_mov_b64 exec, 0x11\nds_write_b64 v3, v[4:5]\ns_mov_b64 exec, -1')
    chunks.append((63, [], sm_end))
    AT = [32, 36]; PT = [40, 44, 8, 12]; ACC = DT
    cnt = [0, 0]
    def vchunk(T, e, r):
        def fn():
            A = AT[cnt[0] & 1]; cnt[0] += 1
            mk = 64 + 2 * (4 * e + r)
            for p in range(4): a(f'v_cndmask_b32 v{A+p}, 0, v{S+4*T+p}, s[{mk}:{mk+1}]')
            for jj in range(2):
                j = 4 * jj + r; m, hh = j >> 1, j & 1
                B = PT[cnt[1] & 3]; cnt[1] += 1
                for p in range(4):
                    ev = 64 + 16 * T + 2 * (2 * p) + e; od = ev + 2
                    a(f'v_perm_b32 v{B+p}, v{slot(od)+m}, v{slot(ev)+m}, s{80+hh}')
                c = '0' if (T == 0 and e == 0 and r == 0) else f'v[{ACC+4*jj}:{ACC+4*jj+3}]'
                a(f'v_mfma_f32_16x16x32_bf16 v[{ACC+4*jj}:{ACC+4*jj+3}], v[{A}:{A+3}], v[{B}:{B+3}], {c}')
        return fn
    for T in range(4):
        for e in range(2):
            for r in range(4):
                fr = [64 + 16 * T + 2 * g + e for g in range(8)] if r == 3 else []
                chunks.append((64 + 16 * T + 14 + e, fr, vchunk(T, e, r)))
    freed = set(); ci = 0; landed = -1
    def run_chunk(issued):
        nonlocal ci, landed
        nd, fr, fn = chunks[ci]; ci += 1
        if nd > landed:
            a(f's_waitcnt vmcnt({issued-1-nd})'); landed = nd
        fn(); freed.update(fr)
    for i in range(R, 128):
        while (i - R) not in freed: run_chunk(i)
        if i - D > landed:
            a(f's_waitcnt vmcnt({D-1})'); landed = i - D
        issue(i)
        n = 0
        while ci < len(chunks) and chunks[ci][0] <= landed and n < P['budget']:
            run_chunk(i + 1); n += 1
    def tail_addr():
        a(f'v_lshrrev_b32 v3, 5, v0\nv_lshlrev_b32 v3, 9, v3\nv_bfe_u32 v4, v0, 4, 1\nv_lshl_add_u32 v3, v4, 10, v3')
        a(f'v_and_b32 v4, 15, v0\nv_lshl_add_u32 v3, v4, 5, v3\ns_lshl_b32 s37, s30, 11\ns_add_u32 s37, s37, {L_PART}\nv_add_u32 v3, s37, v3')
        a(f's_lshl_b32 s37, s30, 8\ns_add_u32 s37, s37, {L_PART}\nv_lshl_add_u32 v4, v0, 2, s37')
        a(f's_lshr_b32 s37, s30, 2\ns_lshl_b32 s37, s37, 5\ns_add_u32 s37, s37, {L_F}\nv_mov_b32 v5, s37')
        a('v_and_b32 v6, 35, v0\nv_bfe_u32 v7, v0, 2, 2\nv_lshl_add_u32 v6, v7, 3, v6\nv_bfe_u32 v1, v0, 4, 1\nv_lshl_add_u32 v6, v1, 2, v6\nv_lshlrev_b32 v6, 1, v6')
        a(f's_lshl_b32 s60, s38, 10\ns_lshl_b32 s37, s30, 7\ns_add_u32 s60, s60, s37\ns_add_u32 s60, s60, {OBUF}')
        a(f'v_lshlrev_b32 v2, 10, v7\nv_and_b32 v8, 3, v0\nv_lshl_add_u32 v2, v8, 6, v2\nv_lshrrev_b32 v1, 4, v0\nv_lshl_add_u32 v2, v1, 4, v2')
        a(f's_and_b32 s61, s38, 0xfc\ns_lshl_b32 s61, s61, 10\ns_and_b32 s37, s38, 3\ns_lshl_b32 s37, s37, 8\ns_add_u32 s61, s61, s37\ns_add_u32 s61, s61, {OBUF}')
        a(f'v_lshl_add_u32 v7, v1, 2, v7\nv_mul_u32_u24 v7, {WSTR}, v7\nv_lshl_add_u32 v7, v8, 3, v7\ns_lshl_b32 s37, s30, 7\nv_add_u32 v7, s37, v7')
    while ci < len(chunks) - 8: run_chunk(128)
    tail_addr()
    while ci < len(chunks): run_chunk(128)
    stamp(a, P, 'Vlast')
    a('L_tail:')
    a(f'ds_write_b128 v3, v[{ACC}:{ACC+3}]\nds_write_b128 v3, v[{ACC+4}:{ACC+7}] offset:16\ns_waitcnt lgkmcnt(0)\ns_barrier')
    stamp(a, P, 'B2')
    for w in range(4): a(f'ds_read2st64_b32 v[{16+2*w}:{17+2*w}], v4 offset0:{16*w} offset1:{16*w+8}')
    a(f'ds_read_b128 v[24:27], v5\nds_read_b128 v[28:31], v5 offset:16\nv_mov_b32 v8, {L_MW}\nds_read_b128 v[36:39], v8\ns_waitcnt lgkmcnt(1)')
    a('v_mul_f32 v32, v16, v24\nv_mul_f32 v33, v17, v25')
    for w in range(2, 8): a(f'v_fmac_f32 v{32+(w&1)}, v{16+w}, v{24+w}')
    a('v_add_f32 v32, v32, v33')
    a('v_mov_b32_dpp v33, v32 quad_perm:[1,0,3,2] row_mask:0xf bank_mask:0xf')
    a('v_cvt_pk_bf16_f32 v32, v32, v33\nv_min_u32 v32, -2, v32')
    a('s_mov_b32 exec_lo, 0x55555555\ns_mov_b32 exec_hi, 0x55555555')
    a('buffer_store_dword v32, v6, s[52:55], s60 offen sc1\ns_mov_b64 exec, -1')
    stamp(a, P, 'ost')
    a(f's_mov_b32 s86, {P["spin"]}')
    a('s_cmp_eq_u32 s30, 7\ns_cbranch_scc1 L_fin')
    BF, AF = 56, 120
    DR = [16, 32, 124, 140]
    a(f's_and_b32 s62, s38, 0xfc\ns_lshl_b32 s62, s62, 4\ns_and_b32 s37, s38, 2\ns_lshl_b32 s37, s37, 2\ns_add_u32 s62, s62, s37\ns_add_u32 s62, s62, {MLX}')
    a(f'buffer_load_dwordx4 v[{AF}:{AF+3}], v2, s[52:55], s61 offen sc1\nv_lshlrev_b32 v5, 4, v1\nbuffer_load_dwordx2 v[14:15], v5, s[52:55], s62 offen sc1')
    a(f'v_add_u32 v8, {64*WSTR}, v7')
    for i in range(4):
        for jj in range(4):
            b = BF + 16 * i + 4 * jj; o = (jj & 1) * 32 * WSTR + i * 32; va = 'v8' if jj >= 2 else 'v7'
            a(f'ds_read_b64_tr_b16 v[{b}:{b+1}], {va} offset:{o}\nds_read_b64_tr_b16 v[{b+2}:{b+3}], {va} offset:{o+16*WSTR}')
    a(f'v_lshlrev_b32 v3, 2, v0\ns_lshl_b32 s37, s30, 8\ns_add_u32 s39, s37, {L_MS}\nv_add_u32 v6, s39, v3\nds_read_b32 v6, v6')
    a(f's_lshl_b32 s60, s38, 11\ns_add_u32 s60, s60, s37\ns_add_u32 s60, s60, {PBUF}\nv_mov_b32 v7, s85')
    a('s_branch L_gchk')
    a('L_gpoll:')
    a(f'buffer_load_dwordx4 v[{AF}:{AF+3}], v2, s[52:55], s61 offen sc1\nbuffer_load_dwordx2 v[14:15], v5, s[52:55], s62 offen sc1')
    a('L_gchk:')
    a('s_waitcnt vmcnt(0)')
    a(f'v_max3_u32 v4, v{AF}, v{AF+1}, v{AF+2}\nv_max3_u32 v4, v4, v{AF+3}, v14\nv_cmp_eq_u32 vcc, -1, v4')
    a('s_sub_u32 s86, s86, 1\ns_cbranch_scc1 L_gdone\ns_cbranch_vccnz L_gpoll')
    a('L_gdone:')
    stamp(a, P, 'gok')
    a('s_waitcnt lgkmcnt(0)')
    side = ['v_mov_b32 v4, v14', 'v_mov_b32 v5, v14', 'v_permlane16_swap_b32 v4, v5', 'v_max_f32 v4, v4, v5', 'v_mov_b32 v5, v4',
            'v_permlane32_swap_b32 v4, v5', 'v_max_f32 v4, v4, v5', 'v_sub_f32 v14, v14, v4', 'v_mul_f32 v14, s83, v14', 'v_exp_f32 v14, v14',
            'v_mul_f32 v4, v14, v15', 'v_mov_b32 v5, v4', 'v_permlane16_swap_b32 v4, v5', 'v_add_f32 v4, v4, v5', 'v_mov_b32 v5, v4',
            'v_permlane32_swap_b32 v4, v5', 'v_add_f32 v4, v4, v5', 'v_rcp_f32 v4, v4', 'v_mul_f32 v14, v14, v4']
    k = 0
    for i in range(4):
        for jj in range(4):
            b = BF + 16 * i + 4 * jj; d = DR[i] + 4 * jj
            a(f'v_mfma_f32_16x16x32_bf16 v[{d}:{d+3}], v[{AF}:{AF+3}], v[{b}:{b+3}], 0')
            n = 2 if k < 6 else 1
            for x in side[k:k + n]: a(x)
            k += n
    for x in side[k:]: a(x)
    for i in range(4):
        d = DR[i]
        a(f'v_add_f32 v{8+i}, v{d}, v{d+5}\nv_add_f32 v{d}, v{d+10}, v{d+15}')
    for i in range(4): a(f'v_add_f32 v{8+i}, v{8+i}, v{DR[i]}')
    for i in range(4): a(f'v_mul_f32 v{8+i}, v{8+i}, v14')
    a('v_permlane16_swap_b32 v8, v9\nv_permlane16_swap_b32 v10, v11\nv_add_f32 v8, v8, v9\nv_add_f32 v10, v10, v11')
    a('v_permlane32_swap_b32 v8, v10\nv_add_f32 v8, v8, v6\nv_add_f32 v8, v8, v10\nv_bfi_b32 v8, s82, v7, v8')
    a('buffer_store_dword v8, v3, s[52:55], s60 offen sc1')
    stamp(a, P, 'pst')
    if P['diag']:
        a('s_cmp_lg_u32 s30, 0\ns_cbranch_scc1 L_end')
        stamp_store(a, P, stamp_items(P, [x for x in S_PTS if x not in ('g2ok', 'end')]), hw=True)
    a('s_endpgm')
    a('L_fin:')
    a(f's_lshl_b32 s37, s38, 4\ns_add_u32 s37, s37, {MLX}\nv_mov_b32 v8, 0\ns_waitcnt lgkmcnt(0)\nv_min_u32 v36, -2, v36\nv_min_u32 v38, -2, v38')
    a('s_mov_b64 exec, 1\nbuffer_store_dwordx4 v[36:39], v8, s[52:55], s37 offen sc1\ns_mov_b64 exec, -1')
    a('s_cmp_lt_u32 s34, 28\ns_cbranch_scc0 L_end')
    a(f'v_and_b32 v8, 3, v0\nv_lshl_add_u32 v4, v8, 2, v1\nv_lshlrev_b32 v4, 1, v4\ns_lshl_b32 s39, s34, 5')
    srd(a, 44, 22, None, 896)
    a('buffer_load_ushort v24, v4, s[44:47], s39 offen')
    srd(a, 40, 4, None, 7168)
    a('s_mul_i32 s37, s33, 896\ns_add_u32 s39, s37, s39\nbuffer_load_ushort v25, v4, s[40:43], s39 offen')
    a(f'v_lshrrev_b32 v2, 2, v0\nv_lshlrev_b32 v2, 11, v2\nv_lshl_add_u32 v2, v8, 4, v2\nv_add_u32 v3, 32768, v2\nv_mov_b32 v7, 0x200')
    a(f's_lshl_b32 s61, s33, 16\ns_lshl_b32 s37, s34, 6\ns_add_u32 s61, s61, s37\ns_add_u32 s61, s61, {PBUF}')
    srd(a, 44, 24, None, 7168)
    a('L_fpoll:')
    a('buffer_load_dwordx4 v[16:19], v2, s[52:55], s61 offen sc1\nbuffer_load_dwordx4 v[20:23], v3, s[52:55], s61 offen sc1')
    a('s_waitcnt vmcnt(0)')
    tag_check(a, range(16, 24), 8, 9, 10)
    a('s_sub_u32 s86, s86, 1\ns_cbranch_scc1 L_fdone\ns_cbranch_vccnz L_fpoll')
    a('L_fdone:')
    stamp(a, P, 'g2ok')
    tag_strip(a, range(16, 24), 7)
    for i in range(4): a(f'v_add_f32 v{16+i}, v{16+i}, v{20+i}')
    a('v_lshlrev_b32 v24, 16, v24\nv_lshlrev_b32 v25, 16, v25')
    a('v_permlane16_swap_b32 v16, v17\nv_permlane16_swap_b32 v18, v19\nv_add_f32 v16, v16, v17\nv_add_f32 v18, v18, v19')
    a('v_add_f32 v24, v24, v25\nv_permlane32_swap_b32 v16, v18\nv_add_f32 v16, v16, v18')
    a('v_add_f32_dpp v16, v16, v16 row_ror:4 row_mask:0xf bank_mask:0xf')
    a('v_add_f32_dpp v16, v16, v16 row_ror:8 row_mask:0xf bank_mask:0xf')
    a('v_add_f32 v16, v16, v24\nv_cvt_pk_bf16_f32 v16, v16, v16')
    a('s_mov_b32 exec_lo, 0x000f000f\ns_mov_b32 exec_hi, 0x000f000f')
    a('buffer_store_short v16, v4, s[44:47], s39 offen')
    a('s_cmp_lg_u32 s38, 0\ns_cbranch_scc1 L_noep')
    a('v_mov_b32 v8, 0\nv_mov_b32 v9, s84\ns_mov_b64 exec, 1\nbuffer_store_dword v9, v8, s[52:55], 0 offen sc1')
    a('L_noep:')
    if P['hold']:
        a(f'L_hold:\ns_memrealtime s[96:97]\ns_waitcnt lgkmcnt(0)\ns_sub_u32 s96, s96, s98\ns_cmp_lt_u32 s96, {P["hold"]}\ns_cbranch_scc1 L_hold')
    if P['diag']:
        a('s_mov_b64 exec, -1\ns_waitcnt vmcnt(0)')
        stamp(a, P, 'end')
        stamp_store(a, P, stamp_items(P, ['g2ok', 'end']))
    a('s_endpgm')

def dma_loop(a, lab, n, depth, vaddr, sstep, lds0, pol):
    a(f's_mov_b32 s36, 0\ns_mov_b32 s62, {lds0}\ns_mov_b32 s63, {n}')
    a(f'{lab}:')
    a(f's_mov_b32 m0, s62\ns_waitcnt vmcnt({depth-1})')
    a(f'buffer_load_dwordx4 v{vaddr}, s[56:59], s36 offen {pol} lds')
    a(f's_add_u32 s36, s36, {sstep}\ns_add_u32 s62, s62, 1024\ns_sub_u32 s63, s63, 1\ns_cmp_lg_u32 s63, 0\ns_cbranch_scc1 {lab}')

def wo_loop(a, P, lab):
    a(f's_min_u32 s63, s63, {NWO*1024}')
    a(f's_cmp_lt_u32 s62, s63\ns_cbranch_scc0 {lab}x')
    a(f'{lab}:')
    a(f's_mov_b32 m0, s62\ns_waitcnt vmcnt({P["DH"]-1})')
    a(f'buffer_load_dwordx4 v1, s[56:59], 0 offen {P["opol"]} lds')
    a('v_add_u32 v11, 7, v11\nv_cmp_le_u32 vcc, 57, v11\nv_add_u32 v1, 1008, v1\ns_add_u32 s62, s62, 1024')
    a('v_subrev_u32 v3, 57, v11\nv_add_u32 v15, -16, v1\nv_cndmask_b32 v11, v11, v3, vcc\nv_cndmask_b32 v1, v1, v15, vcc')
    a(f's_cmp_lt_u32 s62, s63\ns_cbranch_scc1 {lab}')
    a(f'{lab}x:')

XF, FF, TT = 16, 44, 100
def x_addr(a):
    a('v_and_b32 v10, 15, v0\nv_lshrrev_b32 v9, 4, v0\nv_and_b32 v8, 7, v0\nv_mul_u32_u24 v8, 896, v8')
    a('v_bfe_u32 v3, v0, 3, 1\nv_mul_u32_u24 v3, 448, v3\nv_lshl_add_u32 v8, v9, 4, v8\nv_add_u32 v8, v8, v3')
def x_load(a, P):
    srd(a, 48, 4, None, 7168)
    for ks in range(7): a(f'buffer_load_dwordx4 v[{XF+4*ks}:{XF+4*ks+3}], v8, s[48:51], 0 offen offset:{ks*64} {P["xpol"]}')
def tag_check(a, regs, t0, t1, acc):
    for i in range(0, len(regs), 2):
        a(f'v_xor_b32 v{t0}, s85, v{regs[i]}\nv_xor_b32 v{t1}, s85, v{regs[i+1]}')
        a(f'v_or_b32 v{acc}, v{t0}, v{t1}' if i == 0 else f'v_or3_b32 v{acc}, v{acc}, v{t0}, v{t1}')
    a(f'v_and_b32 v{acc}, {TMASK}, v{acc}\nv_cmp_ne_u32 vcc, 0, v{acc}')
def tag_strip(a, regs, half):
    for r in regs: a(f'v_bfi_b32 v{r}, s82, v{half}, v{r}')

def unit_gemm(a, lds, va, st_v, st_s, tagv):
    TA, DQ = 44, 108
    seq = [(t, ks) for t in range(4) for ks in range(4)]
    def rd(n):
        t, ks = seq[n]; r = TA + 4 * n; o = lds + ks * 4096 + t * 32
        a(f'ds_read_b64_tr_b16 v[{r}:{r+1}], v{va} offset:{o}\nds_read_b64_tr_b16 v[{r+2}:{r+3}], v{va} offset:{o+512}')
    def pub(t):
        for r in range(4): a(f'v_bfi_b32 v{DQ+4*t+r}, s82, v{tagv}, v{DQ+4*t+r}')
        a(f'buffer_store_dwordx4 v[{DQ+4*t}:{DQ+4*t+3}], v{st_v}, s[52:55], s{st_s} offen offset:{t*64} sc1')
    for n in range(6): rd(n)
    for n, (t, ks) in enumerate(seq):
        if n + 6 < 16: rd(n + 6)
        a(f's_waitcnt lgkmcnt({2*min(6, 15-n)})')
        r = TA + 4 * n; d = DQ + 4 * t
        c = '0' if ks == 0 else f'v[{d}:{d+3}]'
        a(f'v_mfma_f32_16x16x32_bf16 v[{d}:{d+3}], v[{r}:{r+3}], v[{XF+4*ks}:{XF+4*ks+3}], {c}')
        if n in (7, 11, 15): pub(n // 4 - 1)
    pub(3)

def helper(a, P):
    stamp(a, P, 'hstart')
    if P['cpf']:
        a('s_getpc_b64 s[56:57]\ns_mov_b32 s58, 4352\ns_mov_b32 s59, 0x20000\nv_lshlrev_b32 v1, 6, v0')
        a('buffer_load_dword v15, v1, s[56:59], 0 offen offset:256')
    x_addr(a)
    a('v_lshrrev_b32 v4, 3, v0\nv_lshlrev_b32 v1, 13, v4\nv_and_b32 v2, 7, v0\nv_lshl_add_u32 v1, v2, 4, v1')
    a('v_mul_u32_u24 v4, 3584, v4\nv_lshl_add_u32 v4, v2, 4, v4')
    a('s_and_b32 s63, s32, 1\ns_bfe_u32 s62, s32, 0x10001\ns_mul_i32 s64, s62, 224\ns_lshl_b32 s36, s63, 7\ns_add_u32 s64, s64, s36')
    a('s_lshl_b32 s65, s63, 5\ns_sub_u32 s65, 127, s65\ns_lshr_b32 s66, s32, 2')
    a('s_lshl_b32 s37, s64, 13\ns_lshl_b32 s39, s31, 3\ns_add_u32 s39, s39, s66\ns_lshl_b32 s39, s39, 7\ns_add_u32 s37, s37, s39')
    a('s_lshl_b32 s39, s65, 13\ns_add_u32 s39, s39, 128')
    a('s_lshl_b32 s60, s63, 8\ns_mul_i32 s61, s63, 192\ns_sub_u32 s61, 192, s61')
    a('s_waitcnt lgkmcnt(0)')
    stamp(a, P, 'hkarg')
    a('s_load_dword s84, s[28:29], 0')
    srd(a, 48, 4, None, 7168)
    for ks in range(7):
        if ks < 3: a(f'buffer_load_dwordx4 v[{XF+4*ks}:{XF+4*ks+3}], v8, s[48:51], s60 offen offset:{ks*64} {P["xpol"]}')
        else: a(f'buffer_load_dwordx4 v[{XF+4*ks}:{XF+4*ks+3}], v8, s[48:51], s61 offen offset:{(ks-3)*64} {P["xpol"]}')
    srd(a, 56, 10, 's37', 's39')
    for i in range(16):
        a(f's_mov_b32 m0, {L_WQ+i*1024}\ns_mov_b32 s36, {i*65536}')
        a(f'buffer_load_dwordx4 v1, s[56:59], s36 offen {P["wpol"]} lds')
    stamp(a, P, 'wqiss')
    srd(a, 52, 28, None, WS_USED)
    a('v_mov_b32 v124, -1\nv_mov_b32 v125, -1\nv_mov_b32 v126, -1\nv_mov_b32 v127, -1\nv_lshlrev_b32 v2, 4, v0')
    a(f's_lshl_b32 s37, s38, 10\ns_add_u32 s37, s37, {OBUF}\nbuffer_store_dwordx4 v[124:127], v2, s[52:55], s37 offen sc1')
    a(f's_lshl_b32 s37, s38, 4\ns_add_u32 s37, s37, {MLX}\ns_mov_b64 exec, 1\nbuffer_store_dwordx4 v[124:127], v2, s[52:55], s37 offen sc1\ns_mov_b64 exec, -1')
    a('s_lshl_b32 s67, s66, 3\ns_add_u32 s67, s67, s31\ns_mul_i32 s37, s64, 3584\ns_lshl_b32 s39, s67, 7\ns_add_u32 s37, s37, s39')
    a('s_mul_i32 s39, s65, 3584\ns_add_u32 s39, s39, 128\ns_cmp_lt_u32 s67, 28\ns_cselect_b32 s37, s37, 0\ns_cselect_b32 s39, s39, 0')
    srd(a, 56, 16, 's37', 's39')
    for i in range(16):
        a(f's_mov_b32 m0, {L_WQ+16384+i*1024}\ns_mov_b32 s36, {i*8*3584}')
        a(f'buffer_load_dwordx4 v4, s[56:59], s36 offen {P["wpol"]} lds')
    a(f'v_lshlrev_b32 v3, 3, v0\nv_add_u32 v3, {L_ML}, v3\ns_mov_b64 exec, 0xffff\nds_write_b64 v3, v[124:125]\ns_mov_b64 exec, -1')
    a(f'v_mov_b32 v14, {hex(OOB)}\ns_mov_b32 s82, {TMASK}\ns_mov_b32 s83, {hex(f2u(C_EXP))}')
    a(f'v_bfe_u32 v3, v0, 2, 2\nv_lshl_add_u32 v12, v9, 3, v3\nv_lshlrev_b32 v12, 7, v12\nv_and_b32 v5, 3, v0\nv_lshl_add_u32 v12, v5, 3, v12')
    a(f'v_and_b32 v5, 7, v0\nv_lshlrev_b32 v13, 16, v5\nv_lshl_add_u32 v13, v9, 4, v13\nv_bfe_u32 v3, v0, 3, 1\nv_cmp_eq_u32 vcc, s62, v3')
    a(f'v_mul_u32_u24 v5, 28672, v5\nv_lshl_add_u32 v5, v9, 4, v5\nv_cndmask_b32 v13, v14, v13, vcc\nv_cndmask_b32 v5, v14, v5, vcc')
    a(f's_and_b32 s37, s32, 3\ns_lshl_b32 s60, s37, 14\ns_lshl_b32 s39, s31, 11\ns_add_u32 s60, s60, s39\ns_lshl_b32 s39, s66, 8\ns_add_u32 s60, s60, s39\ns_add_u32 s60, s60, {QBUF}')
    a(f's_mul_i32 s61, s37, 7168\ns_lshl_b32 s39, s67, 8\ns_add_u32 s61, s61, s39\ns_add_u32 s61, s61, {HBUF}')
    a('s_waitcnt vmcnt(34)')
    stamp(a, P, 'xland')
    layernorm(a, XF, FF, TT)
    stamp(a, P, 'lndone')
    a('s_waitcnt vmcnt(16) lgkmcnt(0)')
    stamp(a, P, 'wqland')
    a(f's_add_u32 s84, s84, 0x9E3779B9\ns_and_b32 s85, s84, {TMASK}\nv_mov_b32 v6, s85')
    unit_gemm(a, L_WQ, 12, 13, 60, 6)
    stamp(a, P, 'qpub')
    a('s_cmp_lt_u32 s67, 28\ns_cbranch_scc0 L_noh')
    layernorm(a, XF, FF, TT, 16)
    a('s_waitcnt vmcnt(4)')
    unit_gemm(a, L_WQ + 16384, 12, 5, 61, 6)
    a('L_noh:')
    stamp(a, P, 'hpub')
    a('s_mul_i32 s37, s34, 114688')
    srd(a, 56, 12, 's37', 114688)
    a('v_cmp_le_u32 vcc, 57, v0\nv_subrev_u32 v3, 57, v0\nv_add_u32 v15, -16, v2\nv_cndmask_b32 v11, v0, v3, vcc\nv_cndmask_b32 v1, v2, v15, vcc')
    a(f's_mov_b32 s62, 0\ns_mov_b32 s63, {P["n1"]*1024}')
    a(f's_lshl_b32 s61, s33, 16\ns_lshl_b32 s37, s31, 11\ns_add_u32 s61, s61, s37\ns_add_u32 s61, s61, {QBUF}')
    a(f's_mov_b32 s86, {P["spin"]}\nv_mov_b32 v7, 0x200\ns_waitcnt vmcnt(4)')
    a('L_qpoll:')
    wo_loop(a, P, 'L_woa')
    a('s_mov_b32 s36, s61')
    for kq in range(4):
        for m in range(2): a(f'buffer_load_dwordx4 v[{44+8*kq+4*m}:{47+8*kq+4*m}], v2, s[52:55], s36 offen offset:{m*1024} sc1')
        if kq < 3: a('s_add_u32 s36, s36, 16384')
    a(f's_add_u32 s63, s62, {P["n1r"]*1024}\ns_waitcnt vmcnt(0)')
    tag_check(a, range(44, 76), 16, 17, 18)
    a('s_sub_u32 s86, s86, 1\ns_cbranch_scc1 L_qdone\ns_cbranch_vccnz L_qpoll')
    a('L_qdone:')
    stamp(a, P, 'qok')
    tag_strip(a, range(44, 76), 7)
    for kq in range(1, 4):
        for m in range(4): a(f'v_pk_add_f32 v[{44+2*m}:{45+2*m}], v[{44+2*m}:{45+2*m}], v[{44+8*kq+2*m}:{45+8*kq+2*m}]')
    a(f'v_lshlrev_b32 v3, 3, v0\nv_add_u32 v3, {L_Q}, v3\nv_mov_b32 v4, {L_TAG}\nv_mov_b32 v5, s84\nds_write_b32 v4, v5')
    for m in range(4): a(f'v_cvt_pk_bf16_f32 v{52+m}, v{44+2*m}, v{45+2*m}')
    a('ds_write_b64 v3, v[52:53]\nds_write_b64 v3, v[54:55] offset:512\ns_waitcnt lgkmcnt(0)\ns_barrier')
    stamp(a, P, 'B1')
    a(f's_mov_b32 s63, {NWO*1024}')
    wo_loop(a, P, 'L_wob')
    stamp(a, P, 'wodone')
    a(f'v_and_b32 v3, 15, v0\nv_lshlrev_b32 v3, 3, v3\nv_add_u32 v3, {L_ML}, v3\ns_mov_b32 s86, {P["spin"]*16}')
    a('L_mlw:')
    a('ds_read_b64 v[16:17], v3\ns_waitcnt lgkmcnt(0)\nv_cmp_eq_u32 vcc, -1, v16')
    a('s_sub_u32 s86, s86, 1\ns_cbranch_scc1 L_mlwd\ns_cbranch_vccz L_mlwd\ns_sleep 4\ns_branch L_mlw')
    a('L_mlwd:')
    d8 = ('quad_perm:[1,0,3,2]', 'quad_perm:[2,3,0,1]', 'row_half_mirror')
    a('v_mov_b32 v18, v16')
    for m in d8: a(f'v_max_f32_dpp v18, v18, v18 {m} row_mask:0xf bank_mask:0xf')
    a('v_sub_f32 v20, v16, v18\nv_mul_f32 v20, s83, v20\nv_exp_f32 v20, v20\nv_mul_f32 v19, v20, v17')
    for m in d8: a(f'v_add_f32_dpp v19, v19, v19 {m} row_mask:0xf bank_mask:0xf')
    a(f'v_lshlrev_b32 v3, 2, v0\nv_add_u32 v3, {L_F}, v3\nv_add_u32 v4, {L_MW}, v0')
    a('s_mov_b64 exec, 0xffff\nds_write_b32 v3, v20\ns_mov_b64 exec, 0x101\nds_write_b64 v4, v[18:19]\ns_mov_b64 exec, -1')
    if P['tpf']:
        a('s_getpc_b64 s[56:57]\nL_pc2:\ns_add_u32 s56, s56, L_tail-L_pc2\ns_addc_u32 s57, s57, 0\ns_mov_b32 s58, L_end-L_tail\ns_mov_b32 s59, 0x20000')
        a('v_lshlrev_b32 v1, 6, v0\nbuffer_load_dword v15, v1, s[56:59], 0 offen')
    a('s_waitcnt vmcnt(0) lgkmcnt(0)')
    stamp(a, P, 'hend')
    stamp_store(a, P, stamp_items(P, H_PTS))
    a('s_endpgm')

def mlp(a, P):
    a('L_mlp:')
    if P['nom']: a('s_endpgm')
    a('v_and_b32 v10, 15, v0\nv_lshrrev_b32 v9, 4, v0\nv_lshlrev_b32 v2, 4, v0\nv_min_u32 v3, 13, v10')
    a('v_mul_u32_u24 v4, 7168, v9\nv_lshl_add_u32 v4, v3, 4, v4\nv_lshlrev_b32 v5, 3, v3')
    a(f's_mul_i32 s61, s33, 28672\ns_mul_i32 s37, s34, 224\ns_add_u32 s61, s61, s37\ns_add_u32 s61, s61, {HBUF}')
    a(f'v_bfe_u32 v3, v0, 2, 2\nv_lshl_add_u32 v6, v9, 2, v3\nv_mul_u32_u24 v6, 896, v6\nv_and_b32 v3, 3, v0\nv_lshl_add_u32 v6, v3, 3, v6\nv_add_u32 v6, {L_MS}, v6')
    a(f's_mov_b32 s82, {TMASK}\nv_mov_b32 v7, 0x200\nv_mov_b32 v8, {L_TAG}\ns_mov_b32 s86, {P["spin"]}')
    a('s_waitcnt lgkmcnt(0)')
    srd(a, 52, 28, None, WS_USED)
    srd(a, 48, 18, None, 3584)
    a('s_mul_i32 s60, s34, 50176')
    srd(a, 56, 20, 's60', 28672)
    a('s_barrier')
    stamp(a, P, 'mstart')
    a(f'ds_read_b32 v8, v8\ns_mul_i32 s37, s34, 112\nbuffer_load_dwordx2 v[20:21], v5, s[48:51], s37 offen\ns_waitcnt lgkmcnt(0)')
    a(f'v_readfirstlane_b32 s85, v8\ns_and_b32 s85, s85, {TMASK}')
    dma_loop(a, 'L_w2a', 28, P['DM'], 2, 1024, L_MS, P['mpol'])
    a('L_hp:')
    a('buffer_load_dwordx4 v[16:19], v4, s[52:55], s61 offen sc1\ns_waitcnt vmcnt(0)')
    tag_check(a, range(16, 20), 22, 23, 24)
    a('s_sub_u32 s86, s86, 1\ns_cbranch_scc1 L_hpd\ns_cbranch_vccz L_hpd\ns_sleep 16\ns_branch L_hp')
    a('L_hpd:')
    stamp(a, P, 'mw1')
    tag_strip(a, range(16, 20), 7)
    for i in range(4): xgroup(a, 'v_add_f32', 16 + i, 24 + i)
    unpack(a, 20, 24, 2)
    a('v_cvt_pk_bf16_f32 v20, v16, v17\nv_cvt_pk_bf16_f32 v21, v18, v19')
    unpack(a, 20, 16, 2)
    for i in range(4): a(f'v_add_f32 v{16+i}, v{16+i}, v{24+i}')
    a('v_cvt_pk_bf16_f32 v20, v16, v17\nv_cvt_pk_bf16_f32 v21, v18, v19')
    unpack(a, 20, 16, 2)
    k0 = 2 * 0.7978845608028654 * math.log2(math.e); k1 = k0 * 0.044715
    a(f's_mov_b32 s62, {hex(f2u(-k1))}\nv_mov_b32 v15, {hex(f2u(-k0))}')
    for i in range(4): a(f'v_mul_f32 v{24+i}, v{16+i}, v{16+i}')
    for i in range(4): a(f'v_fma_f32 v{24+i}, v{24+i}, s62, v15')
    for i in range(4): a(f'v_mul_f32 v{24+i}, v{24+i}, v{16+i}')
    for i in range(4): a(f'v_exp_f32 v{24+i}, v{24+i}')
    for i in range(4): a(f'v_add_f32 v{24+i}, 1.0, v{24+i}')
    for i in range(4): a(f'v_rcp_f32 v{24+i}, v{24+i}')
    for i in range(4): a(f'v_mul_f32 v{16+i}, v{16+i}, v{24+i}')
    a('v_cvt_pk_bf16_f32 v20, v16, v17\nv_cvt_pk_bf16_f32 v21, v18, v19')
    a('v_lshlrev_b32 v3, 2, v9')
    for n, g0 in enumerate((0, 4, 6, 10)):
        a(f'v_add_u32 v22, {4*g0}, v3\nds_bpermute_b32 v{24+2*n}, v22, v20\nds_bpermute_b32 v{25+2*n}, v22, v21')
    a('s_mov_b32 s62, -1\ns_mov_b32 s63, 0\ns_waitcnt lgkmcnt(0)')
    a('v_cndmask_b32 v28, v28, 0, s[62:63]\nv_cndmask_b32 v29, v29, 0, s[62:63]')
    TA, D2 = 132, 20
    a('v_mov_b32 v12, v24\nv_mov_b32 v13, v25\nv_mov_b32 v14, v26\nv_mov_b32 v15, v27\nv_mov_b32 v16, v28\nv_mov_b32 v17, v29\nv_mov_b32 v18, v30\nv_mov_b32 v19, v31')
    def gemv(c):
        def rd(n):
            r = TA + 4 * (n % 6); o = n * 32
            a(f'ds_read_b64_tr_b16 v[{r}:{r+1}], v6 offset:{o}\nds_read_b64_tr_b16 v[{r+2}:{r+3}], v6 offset:{o+14336}')
        for n in range(4): rd(n)
        for n in range(28):
            if n + 4 < 28: rd(n + 4)
            a(f's_waitcnt lgkmcnt({2*min(4, 27-n)})')
            r = TA + 4 * (n % 6); d = D2 + 4 * n
            a(f'v_mfma_f32_16x16x32_bf16 v[{d}:{d+3}], v[{12+4*c}:{15+4*c}], v[{r}:{r+3}], ' + ('0' if c == 0 else f'v[{d}:{d+3}]'))
    gemv(0)
    a(f's_add_u32 s60, s60, {24*896}')
    srd(a, 56, 20, 's60', 28672)
    dma_loop(a, 'L_w2b', 28, P['DM'], 2, 1024, L_MS, P['mpol'])
    a('s_waitcnt vmcnt(0)')
    stamp(a, P, 'mw2')
    gemv(1)
    a(f'v_lshlrev_b32 v3, 2, v0\nv_add_u32 v3, {L_MS}, v3\ns_mov_b64 exec, 0xffff')
    for n in range(28): a(f'ds_write_b32 v3, v{D2+4*n} offset:{n*64}')
    a('s_mov_b64 exec, -1\ns_waitcnt lgkmcnt(0)')
    stamp(a, P, 'mend')
    stamp_store(a, P, stamp_items(P, M_PTS))
    a('s_endpgm')

def body(P):
    a = Asm()
    a('s_cmp_ge_u32 s2, 256\ns_cbranch_scc1 L_end')
    a('s_load_dwordx16 s[4:19], s[0:1], 0\ns_load_dwordx8 s[20:27], s[0:1], 64\ns_load_dwordx2 s[28:29], s[0:1], 96')
    a('v_lshrrev_b32 v1, 6, v0\nv_and_b32 v0, 63, v0\nv_readfirstlane_b32 s30, v1')
    a('s_and_b32 s31, s2, 7\ns_lshr_b32 s32, s2, 3')
    if P['bmap'] == 0: a('s_lshr_b32 s33, s32, 2\ns_and_b32 s34, s32, 3')
    else: a('s_and_b32 s33, s32, 7\ns_lshr_b32 s34, s32, 3')
    a('s_lshl_b32 s37, s31, 2\ns_add_u32 s34, s34, s37\ns_lshl_b32 s38, s33, 5\ns_add_u32 s38, s38, s34')
    stamp_init(a, P)
    a('s_cmp_lg_u32 s30, 0\ns_cbranch_scc1 L_stream')
    helper(a, P)
    mlp(a, P)
    streamer(a, P)
    a('L_end:\ns_endpgm')
    txt, n = a.text()
    return txt, n

def vgprs(P): return max(56 + 4 * P['R'], 156)

def kernel(P):
    txt, n = body(P)
    nm = P['name']
    txt = txt.replace('L_', f'L{nm[-24:]}_') if P.get('uniq') else txt
    return txt

def final_file(P):
    ref = open(f'cdna_kernels/{NAME}.s.ref').read()
    head = ref[:ref.index('; Override launch')]
    nm = P['name']; vg = vgprs(P)
    return head + f'''; Single launch: 256 workgroups x (8 streaming waves + 2 helper waves). Generated by gen/gen.py.
; @launch grid=(256,1,1) block=({block(P)},1,1) lds={LDS_BYTES}
.amdgcn_target "amdgcn-amd-amdhsa--gfx950"
.text
.globl {nm}
.p2align 8
.type {nm},@function
{nm}:
{kernel(P)}
.section .rodata,"a"
.p2align 6
.amdhsa_kernel {nm}
  .amdhsa_next_free_vgpr {vg}
  .amdhsa_next_free_sgpr 102
  .amdhsa_accum_offset {(vg+3)//4*4}
  .amdhsa_group_segment_fixed_size 0
  .amdhsa_kernarg_size 104
  .amdhsa_user_sgpr_count 2
  .amdhsa_user_sgpr_kernarg_segment_ptr 1
  .amdhsa_system_sgpr_workgroup_id_x 1
.end_amdhsa_kernel
'''

if __name__ == '__main__':
    P = dict(DEF)
    out = f'cdna_kernels/{NAME}.s'
    for kv in sys.argv[1:]:
        k, v = kv.split('=', 1)
        if k == 'out': out = v
        else: P[k] = type(DEF[k])(v) if not isinstance(DEF[k], bool) else v == '1'
    open(out, 'w').write(final_file(P))
    print('wrote', out)
```

```python
import sys, math, struct
from asmlib import Asm

NAME = 'parallel_sum__gqa_block_cached__mixer_channel_mlp__decode'
def f2u(x): return struct.unpack('<I', struct.pack('<f', x))[0]

XBUF, MLX, OBUF, PBUF, HBUF, QBUF, WS_USED = 0x1000, 0x10000, 0x20000, 0xA0000, 0x120000, 0x160000, 0x1E0000
TMASK = 0x3FF
QMASK = 0xFF
STAMP_OFF = 536870912 - (1 << 20)
WSTR = 912; NWO = 114
L_WO = 0; L_WQ = 0
L_PART = 128 * WSTR
L_MS = L_PART + 16384
L_Q = L_MS + 28672
L_ML = L_Q + 1024
L_F = L_ML + 128
L_MW = L_F + 64
L_TAG = L_MW + 16
LDS_BYTES = L_TAG + 16
OOB = 0x7F000000
C_EXP = math.log2(math.e) / 16.0

DEF = dict(R=24, D=3, D0=3, DH=5, DM=4, n1=3, n1r=2, cpf=1, tpf=1, loc=1, Dend=0, nend=16, gsl=0, fsl=0, fthr=0, fsl2=0, nornd=0, nom=0, pol='nt', wpol='', xpol='', opol='', mpol='', diag=False, budget=2,
           name=NAME + '_kernel', spin=1 << 16, hold=0, bmap=0, pts='start+qpub+B1+Kdone+hend+B2+end')
def block(P): return 640

def srd(a, n, base, off, size):
    if off is None:
        a(f's_mov_b32 s{n}, s{base}\ns_mov_b32 s{n+1}, s{base+1}')
    else:
        a(f's_add_u32 s{n}, s{base}, {off}\ns_addc_u32 s{n+1}, s{base+1}, 0')
    a(f's_mov_b32 s{n+2}, {size}\ns_mov_b32 s{n+3}, 0x20000')

def wave_sum(a, v, s):
    for m in ('row_shr:1', 'row_shr:2', 'row_shr:4', 'row_shr:8'):
        a(f'v_add_f32_dpp v{v}, v{v}, v{v} {m} row_mask:0xf bank_mask:0xf')
    a(f'v_add_f32_dpp v{v}, v{v}, v{v} row_bcast:15 row_mask:0xa bank_mask:0xf')
    a(f'v_add_f32_dpp v{v}, v{v}, v{v} row_bcast:31 row_mask:0xc bank_mask:0xf')
    a(f'v_readlane_b32 s{s}, v{v}, 63')

def rnd_bf16(a, v):
    a(f'v_cvt_pk_bf16_f32 v{v}, v{v}, v{v}\nv_and_b32 v{v}, 0xffff0000, v{v}')

def unpack(a, src, dst, n):
    for i in range(n):
        a(f'v_and_b32 v{dst+2*i+1}, 0xffff0000, v{src+i}\nv_lshlrev_b32 v{dst+2*i}, 16, v{src+i}')

def row_sum(a, v, t):
    a(f'v_add_f32_dpp v{v}, v{v}, v{v} row_ror:8 row_mask:0xf bank_mask:0xf')
    xgroup(a, 'v_add_f32', v, t)

def layernorm(a, X, F, T, nq=28):
    pr = lambda r: f'v[{r}:{r+1}]'
    unpack(a, X, F, 28)
    a(f'v_pk_add_f32 {pr(T)}, {pr(F)}, {pr(F+2)}\nv_pk_add_f32 {pr(T+2)}, {pr(F+4)}, {pr(F+6)}')
    for i in range(4, 28): a(f'v_pk_add_f32 {pr(T+2*(i&1))}, {pr(T+2*(i&1))}, {pr(F+2*i)}')
    a(f'v_pk_add_f32 {pr(T)}, {pr(T)}, {pr(T+2)}\nv_add_f32 v{T}, v{T}, v{T+1}')
    row_sum(a, T, T + 1)
    a(f'v_mul_f32 v{T}, {hex(f2u(-1/448))}, v{T}\nv_mov_b32 v{T+1}, v{T}')
    for i in range(28):
        d = T + 4 + 2 * (i & 1)
        a(f'v_pk_add_f32 {pr(d)}, {pr(F+2*i)}, {pr(T)}')
        if i == 0: a(f'v_pk_mul_f32 {pr(T+2)}, {pr(d)}, {pr(d)}')
        else: a(f'v_pk_fma_f32 {pr(T+2)}, {pr(d)}, {pr(d)}, {pr(T+2)}')
    a(f'v_add_f32 v{T+2}, v{T+2}, v{T+3}')
    row_sum(a, T + 2, T + 3)
    rnd_bf16(a, T)
    a(f'v_mov_b32 v{T+1}, v{T}\nv_mul_f32 v{T+2}, {hex(f2u(1/448))}, v{T+2}')
    rnd_bf16(a, T + 2)
    a(f'v_add_f32 v{T+2}, {hex(f2u(1e-5))}, v{T+2}')
    rnd_bf16(a, T + 2)
    a(f'v_sqrt_f32 v{T+2}, v{T+2}')
    for i in range(nq): a(f'v_pk_add_f32 {pr(F+2*i)}, {pr(F+2*i)}, {pr(T)}')
    rnd_bf16(a, T + 2)
    a(f'v_rcp_f32 v{T+2}, v{T+2}')
    for i in range(nq): a(f'v_cvt_pk_bf16_f32 v{X+i}, v{F+2*i}, v{F+2*i+1}')
    a(f'v_mov_b32 v{T+3}, v{T+2}')
    unpack(a, X, F, nq)
    for i in range(nq): a(f'v_pk_mul_f32 {pr(F+2*i)}, {pr(F+2*i)}, {pr(T+2)}')
    for i in range(nq): a(f'v_cvt_pk_bf16_f32 v{X+i}, v{F+2*i}, v{F+2*i+1}')

def xgroup(a, op, v, t):
    a(f'v_mov_b32 v{t}, v{v}\nv_permlane16_swap_b32 v{v}, v{t}\n{op} v{v}, v{v}, v{t}')
    a(f'v_mov_b32 v{t}, v{v}\nv_permlane32_swap_b32 v{v}, v{t}\n{op} v{v}, v{v}, v{t}')

S_PTS = ['start', 'skarg', 'siss0', 'pst', 'g2ok', 'sB1a', 'sB1', 'Kdone', 'Vlast', 'B2', 'ost', 'gok', 'B3', 'end']
M_PTS = ['mstart', 'mw1', 'mw2', 'mend']
H_PTS = ['hstart', 'xid', 'hpub', 'wob', 'qack', 'xland', 'lndone', 'wtpub', 'wtok', 'hkarg', 'wqiss', 'hB0', 'wqland', 'qpub', 'qp1', 'qok', 'B1', 'wodone', 'mlpub', 'mlok', 'hend']
def pts(P): return P['pts'].split('+') if isinstance(P['pts'], str) else P['pts']
def stamp(a, P, name):
    if P['diag'] and name in pts(P):
        reg = 88 + 2 * pts(P).index(name)
        a(f's_memrealtime s[{reg}:{reg+1}]\ns_waitcnt lgkmcnt(0)')
def stamp_items(P, lst): return [(i, 88 + 2 * i) for i, n in enumerate(pts(P)) if n in lst]
def stamp_init(a, P):
    if P['diag']:
        for i in range(7): a(f's_mov_b64 s[{88+2*i}:{89+2*i}], 0')

def stamp_store(a, P, items, hw=False):
    if not P['diag']: return
    a('s_waitcnt lgkmcnt(0)')
    a(f's_lshl_b32 s37, s2, 6\ns_add_u32 s37, s37, {STAMP_OFF}')
    srd(a, 40, 28, 's37', 64)
    a('s_mov_b64 exec, 1\nv_mov_b32 v1, 0')
    for idx, reg in items:
        a(f'v_mov_b32 v2, s{reg}\nv_mov_b32 v3, s{reg+1}\nbuffer_store_dwordx2 v[2:3], v1, s[40:43], 0 offen offset:{idx*8}')
    if hw:
        a('s_getreg_b32 s38, hwreg(HW_REG_XCC_ID)\ns_getreg_b32 s39, hwreg(HW_REG_HW_ID)')
        a('v_mov_b32 v2, s38\nv_mov_b32 v3, s39\nbuffer_store_dwordx2 v[2:3], v1, s[40:43], 0 offen offset:56')
    a('s_mov_b64 exec, -1')

def streamer(a, P):
    a('L_stream:\ns_cmp_eq_u32 s30, 9\ns_cbranch_scc1 L_mlp\ns_sub_u32 s30, s30, 1')
    R, D, D0, pol = P['R'], P['D'], P['D0'], P['pol']
    Q, S, DT, RING = 8, 16, 48, 56
    slot = lambda i: RING + 4 * (i % R)
    sl = lambda i: f'v[{slot(i)}:{slot(i)+3}]'
    stamp(a, P, 'start')
    if P['hold']: a('s_memrealtime s[98:99]')
    a('v_and_b32 v1, 3, v0\nv_lshlrev_b32 v1, 4, v1\nv_bfe_u32 v3, v0, 2, 2\nv_lshl_add_u32 v1, v3, 9, v1')
    a('v_lshrrev_b32 v3, 4, v0\nv_lshl_add_u32 v1, v3, 6, v1')
    a('v_and_b32 v2, 15, v0\nv_lshlrev_b32 v2, 4, v2\nv_lshl_add_u32 v2, v3, 9, v2')
    a('s_lshl_b32 s37, s38, 19\ns_lshl_b32 s39, s30, 16\ns_add_u32 s37, s37, s39')
    a('s_add_u32 s35, s30, s32\ns_and_b32 s35, s35, 7\ns_lshl_b32 s35, s35, 12')
    a('s_waitcnt lgkmcnt(0)')
    stamp(a, P, 'skarg')
    srd(a, 40, 6, 's37', 65536)
    srd(a, 44, 8, 's37', 65536)
    def issue(i):
        j = i % 64; G, t = j >> 1, j & 1
        if t == 0: a(f's_xor_b32 s36, s35, {G*2048}')
        r, va = ('s[40:43]', 'v1') if i < 64 else ('s[44:47]', 'v2')
        a(f'buffer_load_dwordx4 {sl(i)}, {va}, {r}, s36 offen offset:{t*256} {pol}')
    for i in range(D0): issue(i)
    stamp(a, P, 'siss0')
    srd(a, 52, 28, None, WS_USED)
    for e in range(2):
        for r in range(4):
            m16 = (0x11 << r) << (8 * e); m32 = m16 | (m16 << 16)
            a(f's_mov_b32 s{64+2*(4*e+r)}, {hex(m32)}\ns_mov_b32 s{65+2*(4*e+r)}, {hex(m32)}')
    a('s_mov_b32 s80, 0x05040100\ns_mov_b32 s81, 0x07060302')
    for i in range(D0, R):
        a(f's_waitcnt vmcnt({D-1})'); issue(i)
    a('v_bfe_u32 v3, v0, 2, 1\nv_lshlrev_b32 v3, 9, v3\nv_and_b32 v4, 3, v0\nv_lshl_add_u32 v3, v4, 4, v3')
    a(f'v_lshrrev_b32 v4, 4, v0\nv_lshl_add_u32 v3, v4, 6, v3\nv_add_u32 v3, {L_Q}, v3')
    stamp(a, P, 'sB1a')
    a(f's_barrier')
    stamp(a, P, 'sB1')
    a(f'ds_read_b128 v[{Q}:{Q+3}], v3\nds_read_b128 v[{Q+4}:{Q+7}], v3 offset:256\nv_mov_b32 v5, {L_TAG}\nds_read_b64 v[6:7], v5')
    a(f'v_mov_b32 v4, 0xff800000\ns_mov_b32 s83, {hex(f2u(C_EXP))}\ns_waitcnt lgkmcnt(0)')
    a(f'v_readfirstlane_b32 s84, v6\nv_readfirstlane_b32 s87, v7\ns_mov_b32 s82, {TMASK}\ns_and_b32 s85, s84, {TMASK}')
    chunks = []
    def kdpp(G):
        d = DT + 4 * (G & 1)
        a(f'v_mov_b32_dpp v{S+G}, v{d} quad_perm:[0,0,0,0] row_mask:0xf bank_mask:0xf')
        for r in range(1, 4):
            a(f'v_add_f32_dpp v{S+G}, v{d+r}, v{S+G} quad_perm:[{r},{r},{r},{r}] row_mask:0xf bank_mask:0xf')
        if G & 1:
            if not P['nornd']: a(f'v_cvt_pk_bf16_f32 v5, v{S+G-1}, v{S+G}\nv_lshlrev_b32 v{S+G-1}, 16, v5\nv_and_b32 v{S+G}, 0xffff0000, v5')
            a(f'v_max3_f32 v4, v4, v{S+G-1}, v{S+G}')
    def kchunk(G):
        def fn():
            d = DT + 4 * (G & 1)
            a(f'v_mfma_f32_16x16x32_bf16 v[{d}:{d+3}], {sl(2*G)}, v[{Q}:{Q+3}], 0')
            a(f'v_mfma_f32_16x16x32_bf16 v[{d}:{d+3}], {sl(2*G+1)}, v[{Q+4}:{Q+7}], v[{d}:{d+3}]')
            if G: kdpp(G - 1)
        return fn
    for G in range(32): chunks.append((2 * G + 1, [2 * G, 2 * G + 1], kchunk(G)))
    def sm0():
        kdpp(31)
        xgroup(a, 'v_max_f32', 4, 5)
        a('v_mul_f32 v6, s83, v4\nv_mov_b32 v7, 0')
        stamp(a, P, 'Kdone')
    chunks.append((63, [], sm0))
    def sm(k):
        def fn():
            for g in range(8 * k, 8 * k + 8): a(f'v_fma_f32 v{S+g}, v{S+g}, s83, -v6')
            for g in range(8 * k, 8 * k + 8): a(f'v_exp_f32 v{S+g}, v{S+g}')
            for g in range(8 * k, 8 * k + 8): a(f'v_add_f32 v7, v7, v{S+g}')
            for i in range(4 * k, 4 * k + 4): a(f'v_cvt_pk_bf16_f32 v{S+i}, v{S+2*i}, v{S+2*i+1}')
        return fn
    for k in range(4): chunks.append((63, [], sm(k)))
    def sm_end():
        xgroup(a, 'v_add_f32', 7, 5)
        a(f'v_mov_b32 v5, v7\nv_bfe_u32 v3, v0, 2, 1\nv_lshlrev_b32 v3, 6, v3\ns_lshl_b32 s37, s30, 3\ns_add_u32 s37, s37, {L_ML}\nv_add_u32 v3, s37, v3')
        a('s_mov_b64 exec, 0x11\nds_write_b64 v3, v[4:5]\ns_mov_b64 exec, -1')
    chunks.append((63, [], sm_end))
    AT = [32, 36]; PT = [40, 44, 8, 12]; ACC = DT
    cnt = [0, 0]
    def vchunk(T, e, r):
        def fn():
            A = AT[cnt[0] & 1]; cnt[0] += 1
            mk = 64 + 2 * (4 * e + r)
            for p in range(4): a(f'v_cndmask_b32 v{A+p}, 0, v{S+4*T+p}, s[{mk}:{mk+1}]')
            for jj in range(2):
                j = 4 * jj + r; m, hh = j >> 1, j & 1
                B = PT[cnt[1] & 3]; cnt[1] += 1
                for p in range(4):
                    ev = 64 + 16 * T + 2 * (2 * p) + e; od = ev + 2
                    a(f'v_perm_b32 v{B+p}, v{slot(od)+m}, v{slot(ev)+m}, s{80+hh}')
                c = '0' if (T == 0 and e == 0 and r == 0) else f'v[{ACC+4*jj}:{ACC+4*jj+3}]'
                a(f'v_mfma_f32_16x16x32_bf16 v[{ACC+4*jj}:{ACC+4*jj+3}], v[{A}:{A+3}], v[{B}:{B+3}], {c}')
        return fn
    for T in range(4):
        for e in range(2):
            for r in range(4):
                fr = [64 + 16 * T + 2 * g + e for g in range(8)] if r == 3 else []
                chunks.append((64 + 16 * T + 14 + e, fr, vchunk(T, e, r)))
    freed = set(); ci = 0; landed = -1
    def run_chunk(issued):
        nonlocal ci, landed
        nd, fr, fn = chunks[ci]; ci += 1
        if nd > landed:
            a(f's_waitcnt vmcnt({issued-1-nd})'); landed = nd
        fn(); freed.update(fr)
    for i in range(R, 128):
        while (i - R) not in freed: run_chunk(i)
        Di = P['Dend'] if (P['Dend'] and i >= 128 - P['nend']) else D
        if i - Di > landed:
            a(f's_waitcnt vmcnt({Di-1})'); landed = i - Di
        issue(i)
        n = 0
        while ci < len(chunks) and chunks[ci][0] <= landed and n < P['budget']:
            run_chunk(i + 1); n += 1
    def tail_addr():
        a(f'v_lshrrev_b32 v3, 5, v0\nv_lshlrev_b32 v3, 9, v3\nv_bfe_u32 v4, v0, 4, 1\nv_lshl_add_u32 v3, v4, 10, v3')
        a(f'v_and_b32 v4, 15, v0\nv_lshl_add_u32 v3, v4, 5, v3\ns_lshl_b32 s37, s30, 11\ns_add_u32 s37, s37, {L_PART}\nv_add_u32 v3, s37, v3')
        a(f's_lshl_b32 s37, s30, 8\ns_add_u32 s37, s37, {L_PART}\nv_lshl_add_u32 v4, v0, 2, s37')
        a(f's_lshr_b32 s37, s30, 2\ns_lshl_b32 s37, s37, 5\ns_add_u32 s37, s37, {L_F}\nv_mov_b32 v5, s37')
        a('v_and_b32 v6, 35, v0\nv_bfe_u32 v7, v0, 2, 2\nv_lshl_add_u32 v6, v7, 3, v6\nv_bfe_u32 v1, v0, 4, 1\nv_lshl_add_u32 v6, v1, 2, v6\nv_lshlrev_b32 v6, 2, v6')
        a(f's_lshl_b32 s60, s38, 11\ns_lshl_b32 s37, s30, 8\ns_add_u32 s60, s60, s37\ns_add_u32 s60, s60, {OBUF}')
        a(f'v_lshlrev_b32 v2, 11, v7\nv_and_b32 v8, 3, v0\nv_lshl_add_u32 v2, v8, 7, v2\nv_lshrrev_b32 v1, 4, v0\nv_lshl_add_u32 v2, v1, 5, v2')
        a(f's_and_b32 s61, s38, 0xfc\ns_lshl_b32 s61, s61, 11\ns_and_b32 s37, s38, 3\ns_lshl_b32 s37, s37, 9\ns_add_u32 s61, s61, s37\ns_add_u32 s61, s61, {OBUF}')
        a(f'v_lshl_add_u32 v7, v1, 2, v7\nv_mul_u32_u24 v7, {WSTR}, v7\nv_lshl_add_u32 v7, v8, 3, v7\ns_lshl_b32 s37, s30, 7\nv_add_u32 v7, s37, v7')
    while ci < len(chunks) - 8: run_chunk(128)
    tail_addr()
    while ci < len(chunks): run_chunk(128)
    stamp(a, P, 'Vlast')
    a('L_tail:')
    a(f'ds_write_b128 v3, v[{ACC}:{ACC+3}]\nds_write_b128 v3, v[{ACC+4}:{ACC+7}] offset:16\ns_waitcnt lgkmcnt(0)\ns_barrier')
    stamp(a, P, 'B2')
    for w in range(4): a(f'ds_read2st64_b32 v[{16+2*w}:{17+2*w}], v4 offset0:{16*w} offset1:{16*w+8}')
    a(f'ds_read_b128 v[24:27], v5\nds_read_b128 v[28:31], v5 offset:16\nv_mov_b32 v8, {L_MW}\nds_read_b128 v[36:39], v8\ns_waitcnt lgkmcnt(1)')
    a('v_mul_f32 v32, v16, v24\nv_mul_f32 v33, v17, v25')
    for w in range(2, 8): a(f'v_fmac_f32 v{32+(w&1)}, v{16+w}, v{24+w}')
    a('v_mov_b32 v9, s85\nv_add_f32 v32, v32, v33\nv_bfi_b32 v32, s82, v9, v32')
    hand_store(a, 'buffer_store_dword v32, v6, s[52:55], s60 offen')
    stamp(a, P, 'ost')
    a(f's_mov_b32 s86, {P["spin"]}')
    a('s_cmp_eq_u32 s30, 7\ns_cbranch_scc1 L_fin')
    BF, AF = 56, 120
    DR = [16, 32, 124, 140]
    a(f's_and_b32 s62, s38, 0xfc\ns_lshl_b32 s62, s62, 7\ns_and_b32 s37, s38, 2\ns_lshl_b32 s37, s37, 2\ns_add_u32 s62, s62, s37\ns_add_u32 s62, s62, {MLX}')
    GL = 'buffer_load_dwordx4 v[48:51], v2, s[52:55], s61 offen sc1\nbuffer_load_dwordx4 v[52:55], v2, s[52:55], s61 offen offset:16 sc1\nbuffer_load_dwordx2 v[14:15], v5, s[52:55], s62 offen sc1'
    a('v_lshlrev_b32 v5, 7, v1'); a(GL)
    a(f'v_add_u32 v8, {64*WSTR}, v7')
    for i in range(4):
        for jj in range(4):
            b = BF + 16 * i + 4 * jj; o = (jj & 1) * 32 * WSTR + i * 32; va = 'v8' if jj >= 2 else 'v7'
            a(f'ds_read_b64_tr_b16 v[{b}:{b+1}], {va} offset:{o}\nds_read_b64_tr_b16 v[{b+2}:{b+3}], {va} offset:{o+16*WSTR}')
    a(f'v_lshlrev_b32 v3, 2, v0\ns_lshl_b32 s37, s30, 8\ns_add_u32 s39, s37, {L_MS}\nv_add_u32 v6, s39, v3\nds_read_b32 v6, v6')
    a(f's_lshl_b32 s60, s38, 11\ns_add_u32 s60, s60, s37\ns_add_u32 s60, s60, {PBUF}\nv_mov_b32 v7, s85')
    a('s_branch L_gchk')
    a('L_gpoll:')
    if P['gsl']: a(f's_sleep {P["gsl"]}')
    a(GL)
    a('L_gchk:')
    a('s_waitcnt vmcnt(0)')
    tag_check(a, list(range(48, 56)) + [14, 15], 10, 11, 4)
    a('s_sub_u32 s86, s86, 1\ns_cbranch_scc1 L_gdone\ns_cbranch_vccnz L_gpoll')
    a('L_gdone:')
    stamp(a, P, 'gok')
    for i in range(8): a(f'v_and_b32 v{48+i}, {hex(0xffffffff ^ TMASK)}, v{48+i}')
    for i in range(4): a(f'v_cvt_pk_bf16_f32 v{AF+i}, v{48+2*i}, v{49+2*i}')
    a(f'v_and_b32 v14, 0xffff0000, v14\nv_and_b32 v15, {hex(0xffffffff ^ TMASK)}, v15')
    a('s_waitcnt lgkmcnt(0)')
    side = ['v_mov_b32 v4, v14', 'v_mov_b32 v5, v14', 'v_permlane16_swap_b32 v4, v5', 'v_max_f32 v4, v4, v5', 'v_mov_b32 v5, v4',
            'v_permlane32_swap_b32 v4, v5', 'v_max_f32 v4, v4, v5', 'v_sub_f32 v14, v14, v4', 'v_mul_f32 v14, s83, v14', 'v_exp_f32 v14, v14',
            'v_mul_f32 v4, v14, v15', 'v_mov_b32 v5, v4', 'v_permlane16_swap_b32 v4, v5', 'v_add_f32 v4, v4, v5', 'v_mov_b32 v5, v4',
            'v_permlane32_swap_b32 v4, v5', 'v_add_f32 v4, v4, v5', 'v_rcp_f32 v4, v4', 'v_mul_f32 v14, v14, v4']
    k = 0
    for i in range(4):
        for jj in range(4):
            b = BF + 16 * i + 4 * jj; d = DR[i] + 4 * jj
            a(f'v_mfma_f32_16x16x32_bf16 v[{d}:{d+3}], v[{AF}:{AF+3}], v[{b}:{b+3}], 0')
            n = 2 if k < 6 else 1
            for x in side[k:k + n]: a(x)
            k += n
    for x in side[k:]: a(x)
    for i in range(4):
        d = DR[i]
        a(f'v_add_f32 v{8+i}, v{d}, v{d+5}\nv_add_f32 v{d}, v{d+10}, v{d+15}')
    for i in range(4): a(f'v_add_f32 v{8+i}, v{8+i}, v{DR[i]}')
    for i in range(4): a(f'v_mul_f32 v{8+i}, v{8+i}, v14')
    a('v_permlane16_swap_b32 v8, v9\nv_permlane16_swap_b32 v10, v11\nv_add_f32 v8, v8, v9\nv_add_f32 v10, v10, v11')
    a('v_permlane32_swap_b32 v8, v10\nv_add_f32 v8, v8, v6\nv_add_f32 v8, v8, v10\nv_bfi_b32 v8, s82, v7, v8')
    a('buffer_store_dword v8, v3, s[52:55], s60 offen sc1')
    stamp(a, P, 'pst')
    if P['diag']:
        a('s_cmp_lg_u32 s30, 0\ns_cbranch_scc1 L_end')
        stamp_store(a, P, stamp_items(P, [x for x in S_PTS if x not in ('g2ok', 'end')]), hw=True)
    a('s_endpgm')
    a('L_fin:')
    a(f's_lshl_b32 s37, s38, 7\ns_add_u32 s37, s37, {MLX}\nv_mov_b32 v8, 0\ns_waitcnt lgkmcnt(0)')
    tag_strip(a, range(36, 40), 9)
    a('s_mov_b64 exec, 1')
    hand_store(a, 'buffer_store_dwordx4 v[36:39], v8, s[52:55], s37 offen')
    a('s_mov_b64 exec, -1')
    a('s_cmp_lt_u32 s34, 28\ns_cbranch_scc0 L_end')
    a(f'v_and_b32 v8, 3, v0\nv_lshl_add_u32 v4, v8, 2, v1\nv_lshlrev_b32 v4, 1, v4\ns_lshl_b32 s39, s34, 5')
    srd(a, 44, 22, None, 896)
    a('buffer_load_ushort v24, v4, s[44:47], s39 offen')
    srd(a, 40, 4, None, 7168)
    a('s_mul_i32 s37, s33, 896\ns_add_u32 s39, s37, s39\nbuffer_load_ushort v25, v4, s[40:43], s39 offen')
    a(f'v_lshrrev_b32 v2, 2, v0\nv_lshlrev_b32 v2, 11, v2\nv_lshl_add_u32 v2, v8, 4, v2\nv_add_u32 v3, 32768, v2\nv_mov_b32 v7, 0x200')
    a(f's_lshl_b32 s61, s33, 16\ns_lshl_b32 s37, s34, 6\ns_add_u32 s61, s61, s37\ns_add_u32 s61, s61, {PBUF}')
    srd(a, 44, 24, None, 7168)
    a('L_fpoll:')
    a('buffer_load_dwordx4 v[16:19], v2, s[52:55], s61 offen sc1\nbuffer_load_dwordx4 v[20:23], v3, s[52:55], s61 offen sc1')
    a('s_waitcnt vmcnt(0)')
    tag_check(a, range(16, 24), 8, 9, 10)
    a('s_sub_u32 s86, s86, 1\ns_cbranch_scc1 L_fdone\ns_cbranch_vccz L_fdone')
    if P['fthr']:
        a(f's_bcnt1_i32_b64 s37, vcc\ns_cmp_lt_u32 s37, {P["fthr"]}\ns_cbranch_scc1 L_fpoll\ns_sleep {P["fsl2"]}')
    if P['fsl']: a(f's_sleep {P["fsl"]}')
    a('s_branch L_fpoll')
    a('L_fdone:')
    stamp(a, P, 'g2ok')
    tag_strip(a, range(16, 24), 7)
    for i in range(4): a(f'v_add_f32 v{16+i}, v{16+i}, v{20+i}')
    a('v_lshlrev_b32 v24, 16, v24\nv_lshlrev_b32 v25, 16, v25')
    a('v_permlane16_swap_b32 v16, v17\nv_permlane16_swap_b32 v18, v19\nv_add_f32 v16, v16, v17\nv_add_f32 v18, v18, v19')
    a('v_add_f32 v24, v24, v25\nv_permlane32_swap_b32 v16, v18\nv_add_f32 v16, v16, v18')
    a('v_add_f32_dpp v16, v16, v16 row_ror:4 row_mask:0xf bank_mask:0xf')
    a('v_add_f32_dpp v16, v16, v16 row_ror:8 row_mask:0xf bank_mask:0xf')
    a('v_add_f32 v16, v16, v24\nv_cvt_pk_bf16_f32 v16, v16, v16')
    a('s_mov_b32 exec_lo, 0x000f000f\ns_mov_b32 exec_hi, 0x000f000f')
    a('buffer_store_short v16, v4, s[44:47], s39 offen')
    a('s_cmp_lg_u32 s38, 0\ns_cbranch_scc1 L_noep')
    a('v_mov_b32 v8, 0\nv_mov_b32 v9, s84\ns_mov_b64 exec, 1\nbuffer_store_dword v9, v8, s[52:55], 0 offen sc1')
    a('L_noep:')
    if P['hold']:
        a(f'L_hold:\ns_memrealtime s[96:97]\ns_waitcnt lgkmcnt(0)\ns_sub_u32 s96, s96, s98\ns_cmp_lt_u32 s96, {P["hold"]}\ns_cbranch_scc1 L_hold')
    if P['diag']:
        a('s_mov_b64 exec, -1\ns_waitcnt vmcnt(0)')
        stamp(a, P, 'end')
        stamp_store(a, P, stamp_items(P, ['g2ok', 'end']))
    a('s_endpgm')

def dma_loop(a, lab, n, depth, vaddr, sstep, lds0, pol):
    a(f's_mov_b32 s36, 0\ns_mov_b32 s62, {lds0}\ns_mov_b32 s63, {n}')
    a(f'{lab}:')
    a(f's_mov_b32 m0, s62\ns_waitcnt vmcnt({depth-1})')
    a(f'buffer_load_dwordx4 v{vaddr}, s[56:59], s36 offen {pol} lds')
    a(f's_add_u32 s36, s36, {sstep}\ns_add_u32 s62, s62, 1024\ns_sub_u32 s63, s63, 1\ns_cmp_lg_u32 s63, 0\ns_cbranch_scc1 {lab}')

def wo_loop(a, P, lab):
    a(f's_min_u32 s63, s63, {NWO*1024}')
    a(f's_cmp_lt_u32 s62, s63\ns_cbranch_scc0 {lab}x')
    a(f'{lab}:')
    a(f's_mov_b32 m0, s62\ns_waitcnt vmcnt({P["DH"]-1})')
    a(f'buffer_load_dwordx4 v1, s[56:59], 0 offen {P["opol"]} lds')
    a('v_add_u32 v11, 7, v11\nv_cmp_le_u32 vcc, 57, v11\nv_add_u32 v1, 1008, v1\ns_add_u32 s62, s62, 1024')
    a('v_subrev_u32 v3, 57, v11\nv_add_u32 v15, -16, v1\nv_cndmask_b32 v11, v11, v3, vcc\nv_cndmask_b32 v1, v1, v15, vcc')
    a(f's_cmp_lt_u32 s62, s63\ns_cbranch_scc1 {lab}')
    a(f'{lab}x:')

XF, FF, TT = 16, 44, 100
def x_addr(a):
    a('v_and_b32 v10, 15, v0\nv_lshrrev_b32 v9, 4, v0\nv_and_b32 v8, 7, v0\nv_mul_u32_u24 v8, 896, v8')
    a('v_bfe_u32 v3, v0, 3, 1\nv_mul_u32_u24 v3, 448, v3\nv_lshl_add_u32 v8, v9, 4, v8\nv_add_u32 v8, v8, v3')
def x_load(a, P):
    srd(a, 48, 4, None, 7168)
    for ks in range(7): a(f'buffer_load_dwordx4 v[{XF+4*ks}:{XF+4*ks+3}], v8, s[48:51], 0 offen offset:{ks*64} {P["xpol"]}')
def tag_check(a, regs, t0, t1, acc, mask=TMASK):
    for i in range(0, len(regs), 2):
        a(f'v_xor_b32 v{t0}, s85, v{regs[i]}\nv_xor_b32 v{t1}, s85, v{regs[i+1]}')
        a(f'v_or_b32 v{acc}, v{t0}, v{t1}' if i == 0 else f'v_or3_b32 v{acc}, v{acc}, v{t0}, v{t1}')
    a(f'v_and_b32 v{acc}, {mask}, v{acc}\nv_cmp_ne_u32 vcc, 0, v{acc}')
def tag_strip(a, regs, half, ms=82):
    for r in regs: a(f'v_bfi_b32 v{r}, s{ms}, v{half}, v{r}')
_st = [0]
def hand_store(a, ins):
    _st[0] += 1; n = _st[0]
    a(f's_cmp_eq_u32 s87, 0\ns_cbranch_scc1 L_wt{n}\n{ins}\ns_branch L_we{n}\nL_wt{n}:\n{ins} sc1\nL_we{n}:')

def unit_gemm(a, lds, va, st_v, st_s, tagv, ms, before_pub=None):
    TA, DQ = 44, 108
    seq = [(t, ks) for t in range(4) for ks in range(4)]
    def rd(n):
        t, ks = seq[n]; r = TA + 4 * n; o = lds + ks * 4096 + t * 32
        a(f'ds_read_b64_tr_b16 v[{r}:{r+1}], v{va} offset:{o}\nds_read_b64_tr_b16 v[{r+2}:{r+3}], v{va} offset:{o+512}')
    def pub(t):
        for r in range(4): a(f'v_bfi_b32 v{DQ+4*t+r}, s{ms}, v{tagv}, v{DQ+4*t+r}')
        hand_store(a, f'buffer_store_dwordx4 v[{DQ+4*t}:{DQ+4*t+3}], v{st_v}, s[52:55], s{st_s} offen offset:{t*64}')
    for n in range(6): rd(n)
    for n, (t, ks) in enumerate(seq):
        if n + 6 < 16: rd(n + 6)
        a(f's_waitcnt lgkmcnt({2*min(6, 15-n)})')
        r = TA + 4 * n; d = DQ + 4 * t
        c = '0' if ks == 0 else f'v[{d}:{d+3}]'
        a(f'v_mfma_f32_16x16x32_bf16 v[{d}:{d+3}], v[{r}:{r+3}], v[{XF+4*ks}:{XF+4*ks+3}], {c}')
        if before_pub is None and n in (7, 11, 15): pub(n // 4 - 1)
    if before_pub is not None:
        before_pub()
        for t in range(3): pub(t)
    pub(3)

def helper(a, P):
    stamp(a, P, 'hstart')
    if P['cpf']:
        a('s_getpc_b64 s[56:57]\ns_mov_b32 s58, 4352\ns_mov_b32 s59, 0x20000\nv_lshlrev_b32 v1, 6, v0')
        a('buffer_load_dword v15, v1, s[56:59], 0 offen offset:256')
    x_addr(a)
    a('v_lshrrev_b32 v4, 3, v0\nv_lshlrev_b32 v1, 13, v4\nv_and_b32 v2, 7, v0\nv_lshl_add_u32 v1, v2, 4, v1')
    a('v_mul_u32_u24 v4, 3584, v4\nv_lshl_add_u32 v4, v2, 4, v4')
    a('s_and_b32 s63, s32, 1\ns_bfe_u32 s62, s32, 0x10001\ns_mul_i32 s64, s62, 224\ns_lshl_b32 s36, s63, 7\ns_add_u32 s64, s64, s36')
    a('s_lshl_b32 s65, s63, 5\ns_sub_u32 s65, 127, s65\ns_lshr_b32 s66, s32, 2')
    a('s_lshl_b32 s37, s64, 13\ns_lshl_b32 s39, s31, 3\ns_add_u32 s39, s39, s66\ns_lshl_b32 s39, s39, 7\ns_add_u32 s37, s37, s39')
    a('s_lshl_b32 s39, s65, 13\ns_add_u32 s39, s39, 128')
    a('s_lshl_b32 s60, s63, 8\ns_mul_i32 s61, s63, 192\ns_sub_u32 s61, 192, s61')
    a('s_waitcnt lgkmcnt(0)')
    stamp(a, P, 'hkarg')
    a('s_load_dword s84, s[28:29], 0')
    srd(a, 48, 4, None, 7168)
    for ks in range(7):
        if ks < 3: a(f'buffer_load_dwordx4 v[{XF+4*ks}:{XF+4*ks+3}], v8, s[48:51], s60 offen offset:{ks*64} {P["xpol"]}')
        else: a(f'buffer_load_dwordx4 v[{XF+4*ks}:{XF+4*ks+3}], v8, s[48:51], s61 offen offset:{(ks-3)*64} {P["xpol"]}')
    srd(a, 56, 10, 's37', 's39')
    for i in range(16):
        a(f's_mov_b32 m0, {L_WQ+i*1024}\ns_mov_b32 s36, {i*65536}')
        a(f'buffer_load_dwordx4 v1, s[56:59], s36 offen {P["wpol"]} lds')
    stamp(a, P, 'wqiss')
    srd(a, 52, 28, None, WS_USED)
    a('v_lshlrev_b32 v2, 4, v0')
    a('s_mul_i32 s67, s31, 7\ns_lshr_b32 s67, s67, 1\ns_add_u32 s67, s67, s66\ns_mul_i32 s37, s64, 3584\ns_lshl_b32 s39, s67, 7\ns_add_u32 s37, s37, s39')
    a('s_mul_i32 s39, s65, 3584\ns_add_u32 s39, s39, 128\ns_cmp_lt_u32 s66, 4\ns_cselect_b32 s37, s37, 0\ns_cselect_b32 s39, s39, 0')
    srd(a, 56, 16, 's37', 's39')
    for i in range(16):
        a(f's_mov_b32 m0, {L_WQ+16384+i*1024}\ns_mov_b32 s36, {i*8*3584}')
        a(f'buffer_load_dwordx4 v4, s[56:59], s36 offen {P["wpol"]} lds')
    a(f's_getreg_b32 s68, hwreg(HW_REG_XCC_ID)\ns_and_b32 s68, s68, 15\ns_lshl_b32 s68, s68, 12\ns_waitcnt lgkmcnt(0)')
    a(f's_add_u32 s84, s84, 0x9E3779B9\ns_and_b32 s85, s84, {TMASK}\ns_or_b32 s68, s68, s85\nv_mov_b32 v6, s85\nv_mov_b32 v124, s68')
    a(f's_lshl_b32 s69, s31, 7\ns_add_u32 s69, s69, {XBUF}\ns_lshl_b32 s37, s32, 2\ns_add_u32 s37, s37, s69')
    a('s_mov_b64 exec, 1\nbuffer_store_dword v124, v2, s[52:55], s37 offen sc1\ns_mov_b64 exec, -1')
    a('v_mov_b32 v126, -1\nv_mov_b32 v127, -1\nv_and_b32 v125, 31, v0\nv_lshlrev_b32 v125, 2, v125')
    a(f'v_lshlrev_b32 v3, 3, v0\nv_add_u32 v3, {L_ML}, v3\ns_mov_b64 exec, 0xffff\nds_write_b64 v3, v[126:127]\ns_mov_b64 exec, -1')
    a(f'v_mov_b32 v14, {hex(OOB)}\ns_mov_b32 s82, {TMASK}\ns_mov_b32 s81, {QMASK}\ns_mov_b32 s83, {hex(f2u(C_EXP))}')
    a(f'v_bfe_u32 v3, v0, 2, 2\nv_lshl_add_u32 v12, v9, 3, v3\nv_lshlrev_b32 v12, 7, v12\nv_and_b32 v5, 3, v0\nv_lshl_add_u32 v12, v5, 3, v12')
    a(f'v_and_b32 v5, 7, v0\nv_lshlrev_b32 v13, 16, v5\nv_lshl_add_u32 v13, v9, 4, v13\nv_bfe_u32 v3, v0, 3, 1\nv_cmp_eq_u32 vcc, s62, v3')
    a(f'v_lshlrev_b32 v5, 12, v5\nv_lshl_add_u32 v5, v9, 4, v5\nv_cndmask_b32 v13, v14, v13, vcc\nv_cndmask_b32 v5, v14, v5, vcc')
    a(f's_and_b32 s37, s32, 3\ns_lshl_b32 s60, s37, 14\ns_lshl_b32 s39, s31, 11\ns_add_u32 s60, s60, s39\ns_lshl_b32 s39, s66, 8\ns_add_u32 s60, s60, s39\ns_add_u32 s60, s60, {QBUF}')
    a(f's_lshl_b32 s61, s37, 10\ns_lshl_b32 s39, s66, 8\ns_add_u32 s61, s61, s39\ns_lshl_b32 s39, s31, 15\ns_add_u32 s61, s61, s39\ns_add_u32 s61, s61, {HBUF}')
    a('s_waitcnt vmcnt(33)')
    stamp(a, P, 'xland')
    layernorm(a, XF, FF, TT)
    stamp(a, P, 'lndone')
    a('buffer_load_dword v124, v125, s[52:55], s69 offen sc1')
    a('s_waitcnt vmcnt(18) lgkmcnt(0)')
    stamp(a, P, 'wqland')
    def loc_check():
        a('s_waitcnt vmcnt(0)\nv_cmp_ne_u32 vcc, s68, v124\ns_cmp_eq_u64 vcc, 0')
        a('s_cselect_b32 s87, 1, 0' if P['loc'] else 's_mov_b32 s87, 0')
        stamp(a, P, 'xid')
    unit_gemm(a, L_WQ, 12, 13, 60, 6, 81, loc_check)
    stamp(a, P, 'qpub')
    a('s_cmp_lt_u32 s66, 4\ns_cbranch_scc0 L_noh')
    layernorm(a, XF, FF, TT, 16)
    unit_gemm(a, L_WQ + 16384, 12, 5, 61, 6, 82)
    a('L_noh:')
    stamp(a, P, 'hpub')
    a('s_mul_i32 s37, s34, 114688')
    srd(a, 56, 12, 's37', 114688)
    a('v_cmp_le_u32 vcc, 57, v0\nv_subrev_u32 v3, 57, v0\nv_add_u32 v15, -16, v2\nv_cndmask_b32 v11, v0, v3, vcc\nv_cndmask_b32 v1, v2, v15, vcc')
    a(f's_mov_b32 s62, 0\ns_mov_b32 s63, {P["n1"]*1024}')
    a(f's_lshl_b32 s61, s33, 16\ns_lshl_b32 s37, s31, 11\ns_add_u32 s61, s61, s37\ns_add_u32 s61, s61, {QBUF}')
    a(f's_mov_b32 s86, {P["spin"]}\nv_mov_b32 v7, 0x80')
    a('L_qpoll:')
    wo_loop(a, P, 'L_woa')
    a('s_mov_b32 s36, s61')
    for kq in range(4):
        for m in range(2): a(f'buffer_load_dwordx4 v[{44+8*kq+4*m}:{47+8*kq+4*m}], v2, s[52:55], s36 offen offset:{m*1024} sc1')
        if kq < 3: a('s_add_u32 s36, s36, 16384')
    a(f'buffer_load_dword v124, v125, s[52:55], s69 offen sc1\ns_add_u32 s63, s62, {P["n1r"]*1024}\ns_waitcnt vmcnt(0)')
    tag_check(a, range(44, 76), 16, 17, 18, QMASK)
    a('s_sub_u32 s86, s86, 1\ns_cbranch_scc1 L_qdone\ns_cbranch_vccnz L_qpoll')
    a('L_qdone:')
    stamp(a, P, 'qok')
    a('v_cmp_ne_u32 vcc, s68, v124\ns_cmp_eq_u64 vcc, 0')
    a('s_cselect_b32 s87, 1, 0' if P['loc'] else 's_mov_b32 s87, 0')
    tag_strip(a, range(44, 76), 7, 81)
    for kq in range(1, 4):
        for m in range(4): a(f'v_pk_add_f32 v[{44+2*m}:{45+2*m}], v[{44+2*m}:{45+2*m}], v[{44+8*kq+2*m}:{45+8*kq+2*m}]')
    a(f'v_lshlrev_b32 v3, 3, v0\nv_add_u32 v3, {L_Q}, v3\nv_mov_b32 v4, {L_TAG}\nv_mov_b32 v16, s84\nv_mov_b32 v17, s87\nds_write_b64 v4, v[16:17]')
    for m in range(4): a(f'v_cvt_pk_bf16_f32 v{52+m}, v{44+2*m}, v{45+2*m}')
    a('ds_write_b64 v3, v[52:53]\nds_write_b64 v3, v[54:55] offset:512\ns_waitcnt lgkmcnt(0)\ns_barrier')
    stamp(a, P, 'B1')
    a(f's_mov_b32 s63, {NWO*1024}')
    wo_loop(a, P, 'L_wob')
    stamp(a, P, 'wodone')
    a(f'v_and_b32 v3, 15, v0\nv_lshlrev_b32 v3, 3, v3\nv_add_u32 v3, {L_ML}, v3\ns_mov_b32 s86, {P["spin"]*16}')
    a('L_mlw:')
    a('ds_read_b64 v[16:17], v3\ns_waitcnt lgkmcnt(0)\nv_cmp_eq_u32 vcc, -1, v16')
    a('s_sub_u32 s86, s86, 1\ns_cbranch_scc1 L_mlwd\ns_cbranch_vccz L_mlwd\ns_sleep 4\ns_branch L_mlw')
    a('L_mlwd:')
    d8 = ('quad_perm:[1,0,3,2]', 'quad_perm:[2,3,0,1]', 'row_half_mirror')
    a('v_mov_b32 v18, v16')
    for m in d8: a(f'v_max_f32_dpp v18, v18, v18 {m} row_mask:0xf bank_mask:0xf')
    a('v_sub_f32 v20, v16, v18\nv_mul_f32 v20, s83, v20\nv_exp_f32 v20, v20\nv_mul_f32 v19, v20, v17')
    for m in d8: a(f'v_add_f32_dpp v19, v19, v19 {m} row_mask:0xf bank_mask:0xf')
    a(f'v_lshlrev_b32 v3, 2, v0\nv_add_u32 v3, {L_F}, v3\nv_add_u32 v4, {L_MW}, v0')
    a('s_mov_b64 exec, 0xffff\nds_write_b32 v3, v20\ns_mov_b64 exec, 0x101\nds_write_b64 v4, v[18:19]\ns_mov_b64 exec, -1')
    if P['tpf']:
        a('s_getpc_b64 s[56:57]\nL_pc2:\ns_add_u32 s56, s56, L_tail-L_pc2\ns_addc_u32 s57, s57, 0\ns_mov_b32 s58, L_end-L_tail\ns_mov_b32 s59, 0x20000')
        a('v_lshlrev_b32 v1, 6, v0\nbuffer_load_dword v15, v1, s[56:59], 0 offen')
    a('s_waitcnt vmcnt(0) lgkmcnt(0)')
    stamp(a, P, 'hend')
    stamp_store(a, P, stamp_items(P, H_PTS))
    a('s_endpgm')

def mlp(a, P):
    a('L_mlp:')
    if P['nom']: a('s_endpgm')
    a('v_and_b32 v10, 15, v0\nv_lshrrev_b32 v9, 4, v0\nv_lshlrev_b32 v2, 4, v0\nv_min_u32 v3, 13, v10')
    a('v_lshlrev_b32 v4, 10, v9\nv_lshl_add_u32 v4, v3, 4, v4\nv_lshlrev_b32 v5, 3, v3')
    a(f's_lshl_b32 s61, s31, 15\ns_lshl_b32 s37, s33, 12\ns_add_u32 s61, s61, s37\ns_and_b32 s37, s34, 3\ns_mul_i32 s37, s37, 224\ns_add_u32 s61, s61, s37\ns_and_b32 s37, s31, 1\ns_lshl_b32 s37, s37, 7\ns_add_u32 s61, s61, s37\ns_add_u32 s61, s61, {HBUF}')
    a(f'v_bfe_u32 v3, v0, 2, 2\nv_lshl_add_u32 v6, v9, 2, v3\nv_mul_u32_u24 v6, 896, v6\nv_and_b32 v3, 3, v0\nv_lshl_add_u32 v6, v3, 3, v6\nv_add_u32 v6, {L_MS}, v6')
    a(f's_mov_b32 s82, {TMASK}\nv_mov_b32 v7, 0x200\nv_mov_b32 v8, {L_TAG}\ns_mov_b32 s86, {P["spin"]}')
    a('s_waitcnt lgkmcnt(0)')
    srd(a, 52, 28, None, WS_USED)
    srd(a, 48, 18, None, 3584)
    a('s_mul_i32 s60, s34, 50176')
    srd(a, 56, 20, 's60', 28672)
    a('s_barrier')
    stamp(a, P, 'mstart')
    a(f'ds_read_b32 v8, v8\ns_mul_i32 s37, s34, 112\nbuffer_load_dwordx2 v[20:21], v5, s[48:51], s37 offen\ns_waitcnt lgkmcnt(0)')
    a(f'v_readfirstlane_b32 s85, v8\ns_and_b32 s85, s85, {TMASK}')
    dma_loop(a, 'L_w2a', 28, P['DM'], 2, 1024, L_MS, P['mpol'])
    a('L_hp:')
    a('buffer_load_dwordx4 v[16:19], v4, s[52:55], s61 offen sc1\ns_waitcnt vmcnt(0)')
    tag_check(a, range(16, 20), 22, 23, 24)
    a('s_sub_u32 s86, s86, 1\ns_cbranch_scc1 L_hpd\ns_cbranch_vccz L_hpd\ns_sleep 16\ns_branch L_hp')
    a('L_hpd:')
    stamp(a, P, 'mw1')
    tag_strip(a, range(16, 20), 7)
    for i in range(4): xgroup(a, 'v_add_f32', 16 + i, 24 + i)
    unpack(a, 20, 24, 2)
    a('v_cvt_pk_bf16_f32 v20, v16, v17\nv_cvt_pk_bf16_f32 v21, v18, v19')
    unpack(a, 20, 16, 2)
    for i in range(4): a(f'v_add_f32 v{16+i}, v{16+i}, v{24+i}')
    a('v_cvt_pk_bf16_f32 v20, v16, v17\nv_cvt_pk_bf16_f32 v21, v18, v19')
    unpack(a, 20, 16, 2)
    k0 = 2 * 0.7978845608028654 * math.log2(math.e); k1 = k0 * 0.044715
    a(f's_mov_b32 s62, {hex(f2u(-k1))}\nv_mov_b32 v15, {hex(f2u(-k0))}')
    for i in range(4): a(f'v_mul_f32 v{24+i}, v{16+i}, v{16+i}')
    for i in range(4): a(f'v_fma_f32 v{24+i}, v{24+i}, s62, v15')
    for i in range(4): a(f'v_mul_f32 v{24+i}, v{24+i}, v{16+i}')
    for i in range(4): a(f'v_exp_f32 v{24+i}, v{24+i}')
    for i in range(4): a(f'v_add_f32 v{24+i}, 1.0, v{24+i}')
    for i in range(4): a(f'v_rcp_f32 v{24+i}, v{24+i}')
    for i in range(4): a(f'v_mul_f32 v{16+i}, v{16+i}, v{24+i}')
    a('v_cvt_pk_bf16_f32 v20, v16, v17\nv_cvt_pk_bf16_f32 v21, v18, v19')
    a('v_lshlrev_b32 v3, 2, v9')
    for n, g0 in enumerate((0, 4, 6, 10)):
        a(f'v_add_u32 v22, {4*g0}, v3\nds_bpermute_b32 v{24+2*n}, v22, v20\nds_bpermute_b32 v{25+2*n}, v22, v21')
    a('s_mov_b32 s62, -1\ns_mov_b32 s63, 0\ns_waitcnt lgkmcnt(0)')
    a('v_cndmask_b32 v28, v28, 0, s[62:63]\nv_cndmask_b32 v29, v29, 0, s[62:63]')
    TA, D2 = 132, 20
    a('v_mov_b32 v12, v24\nv_mov_b32 v13, v25\nv_mov_b32 v14, v26\nv_mov_b32 v15, v27\nv_mov_b32 v16, v28\nv_mov_b32 v17, v29\nv_mov_b32 v18, v30\nv_mov_b32 v19, v31')
    def gemv(c):
        def rd(n):
            r = TA + 4 * (n % 6); o = n * 32
            a(f'ds_read_b64_tr_b16 v[{r}:{r+1}], v6 offset:{o}\nds_read_b64_tr_b16 v[{r+2}:{r+3}], v6 offset:{o+14336}')
        for n in range(4): rd(n)
        for n in range(28):
            if n + 4 < 28: rd(n + 4)
            a(f's_waitcnt lgkmcnt({2*min(4, 27-n)})')
            r = TA + 4 * (n % 6); d = D2 + 4 * n
            a(f'v_mfma_f32_16x16x32_bf16 v[{d}:{d+3}], v[{12+4*c}:{15+4*c}], v[{r}:{r+3}], ' + ('0' if c == 0 else f'v[{d}:{d+3}]'))
    gemv(0)
    a(f's_add_u32 s60, s60, {24*896}')
    srd(a, 56, 20, 's60', 28672)
    dma_loop(a, 'L_w2b', 28, P['DM'], 2, 1024, L_MS, P['mpol'])
    a('s_waitcnt vmcnt(0)')
    stamp(a, P, 'mw2')
    gemv(1)
    a(f'v_lshlrev_b32 v3, 2, v0\nv_add_u32 v3, {L_MS}, v3\ns_mov_b64 exec, 0xffff')
    for n in range(28): a(f'ds_write_b32 v3, v{D2+4*n} offset:{n*64}')
    a('s_mov_b64 exec, -1\ns_waitcnt lgkmcnt(0)')
    stamp(a, P, 'mend')
    stamp_store(a, P, stamp_items(P, M_PTS))
    a('s_endpgm')

def body(P):
    a = Asm()
    a('s_cmp_ge_u32 s2, 256\ns_cbranch_scc1 L_end')
    a('s_load_dwordx16 s[4:19], s[0:1], 0\ns_load_dwordx8 s[20:27], s[0:1], 64\ns_load_dwordx2 s[28:29], s[0:1], 96')
    a('v_lshrrev_b32 v1, 6, v0\nv_and_b32 v0, 63, v0\nv_readfirstlane_b32 s30, v1')
    a('s_and_b32 s31, s2, 7\ns_lshr_b32 s32, s2, 3')
    if P['bmap'] == 0: a('s_lshr_b32 s33, s32, 2\ns_and_b32 s34, s32, 3')
    else: a('s_and_b32 s33, s32, 7\ns_lshr_b32 s34, s32, 3')
    a('s_lshl_b32 s37, s31, 2\ns_add_u32 s34, s34, s37\ns_lshl_b32 s38, s33, 5\ns_add_u32 s38, s38, s34')
    stamp_init(a, P)
    a('s_cmp_lg_u32 s30, 0\ns_cbranch_scc1 L_stream')
    helper(a, P)
    mlp(a, P)
    streamer(a, P)
    a('L_end:\ns_endpgm')
    txt, n = a.text()
    return txt, n

def vgprs(P): return max(56 + 4 * P['R'], 156)

def kernel(P):
    txt, n = body(P)
    nm = P['name']
    txt = txt.replace('L_', f'L{nm[-24:]}_') if P.get('uniq') else txt
    return txt

def final_file(P):
    ref = open(f'cdna_kernels/{NAME}.s.ref').read()
    head = ref[:ref.index('; Override launch')]
    nm = P['name']; vg = vgprs(P)
    return head + f'''; Single launch: 256 workgroups x (8 streaming waves + 2 helper waves). Generated by gen/gen.py.
; @launch grid=(256,1,1) block=({block(P)},1,1) lds={LDS_BYTES}
.amdgcn_target "amdgcn-amd-amdhsa--gfx950"
.text
.globl {nm}
.p2align 8
.type {nm},@function
{nm}:
{kernel(P)}
.section .rodata,"a"
.p2align 6
.amdhsa_kernel {nm}
  .amdhsa_next_free_vgpr {vg}
  .amdhsa_next_free_sgpr 102
  .amdhsa_accum_offset {(vg+3)//4*4}
  .amdhsa_group_segment_fixed_size 0
  .amdhsa_kernarg_size 104
  .amdhsa_user_sgpr_count 2
  .amdhsa_user_sgpr_kernarg_segment_ptr 1
  .amdhsa_system_sgpr_workgroup_id_x 1
.end_amdhsa_kernel
'''

if __name__ == '__main__':
    P = dict(DEF)
    out = f'cdna_kernels/{NAME}.s'
    for kv in sys.argv[1:]:
        k, v = kv.split('=', 1)
        if k == 'out': out = v
        else: P[k] = type(DEF[k])(v) if not isinstance(DEF[k], bool) else v == '1'
    open(out, 'w').write(final_file(P))
    print('wrote', out)
```

```python
import sys, math, struct
from asmlib import Asm

NAME = 'parallel_sum__gqa_block_cached__mixer_channel_mlp__decode'
def f2u(x): return struct.unpack('<I', struct.pack('<f', x))[0]

XBUF, MLX, OBUF, PBUF, HBUF, QBUF, WS_USED = 0x8000, 0x10000, 0x20000, 0xA0000, 0x120000, 0x160000, 0x1E0000
TMASK = 0x3FF
QMASK = 0xFF
STAMP_OFF = 536870912 - (1 << 20)
WSTR = 912; NWO = 114
L_WO = 0; L_WQ = 0
L_PART = 128 * WSTR
L_MS = L_PART + 16384
L_Q = L_MS + 28672
L_ML = L_Q + 1024
L_F = L_ML + 128
L_O = L_F + 64
L_TAG = L_O + 256
LDS_BYTES = L_TAG + 16
OOB = 0x7F000000
C_EXP = math.log2(math.e) / 16.0

DEF = dict(R=24, D=3, D0=3, DH=5, DM=4, n1=3, n1r=2, cpf=1, tpf=1, loc=1, n2=80, xretry=0, Dend=0, nend=16, gsl=0, fsl=0, fthr=0, fsl2=0, nornd=0, nom=0, pol='nt', wpol='', xpol='', opol='', mpol='', diag=False, budget=2,
           name=NAME + '_kernel', spin=1 << 16, hold=0, bmap=0, pts='start+qpub+B1+Kdone+hend+B2+end')
def block(P): return 640

def srd(a, n, base, off, size):
    if off is None:
        a(f's_mov_b32 s{n}, s{base}\ns_mov_b32 s{n+1}, s{base+1}')
    else:
        a(f's_add_u32 s{n}, s{base}, {off}\ns_addc_u32 s{n+1}, s{base+1}, 0')
    a(f's_mov_b32 s{n+2}, {size}\ns_mov_b32 s{n+3}, 0x20000')

def wave_sum(a, v, s):
    for m in ('row_shr:1', 'row_shr:2', 'row_shr:4', 'row_shr:8'):
        a(f'v_add_f32_dpp v{v}, v{v}, v{v} {m} row_mask:0xf bank_mask:0xf')
    a(f'v_add_f32_dpp v{v}, v{v}, v{v} row_bcast:15 row_mask:0xa bank_mask:0xf')
    a(f'v_add_f32_dpp v{v}, v{v}, v{v} row_bcast:31 row_mask:0xc bank_mask:0xf')
    a(f'v_readlane_b32 s{s}, v{v}, 63')

def rnd_bf16(a, v):
    a(f'v_cvt_pk_bf16_f32 v{v}, v{v}, v{v}\nv_and_b32 v{v}, 0xffff0000, v{v}')

def unpack(a, src, dst, n):
    for i in range(n):
        a(f'v_and_b32 v{dst+2*i+1}, 0xffff0000, v{src+i}\nv_lshlrev_b32 v{dst+2*i}, 16, v{src+i}')

def row_sum(a, v, t):
    a(f'v_add_f32_dpp v{v}, v{v}, v{v} row_ror:8 row_mask:0xf bank_mask:0xf')
    xgroup(a, 'v_add_f32', v, t)

def layernorm(a, X, F, T, nq=28):
    pr = lambda r: f'v[{r}:{r+1}]'
    unpack(a, X, F, 28)
    a(f'v_pk_add_f32 {pr(T)}, {pr(F)}, {pr(F+2)}\nv_pk_add_f32 {pr(T+2)}, {pr(F+4)}, {pr(F+6)}')
    for i in range(4, 28): a(f'v_pk_add_f32 {pr(T+2*(i&1))}, {pr(T+2*(i&1))}, {pr(F+2*i)}')
    a(f'v_pk_add_f32 {pr(T)}, {pr(T)}, {pr(T+2)}\nv_add_f32 v{T}, v{T}, v{T+1}')
    row_sum(a, T, T + 1)
    a(f'v_mul_f32 v{T}, {hex(f2u(-1/448))}, v{T}\nv_mov_b32 v{T+1}, v{T}')
    for i in range(28):
        d = T + 4 + 2 * (i & 1)
        a(f'v_pk_add_f32 {pr(d)}, {pr(F+2*i)}, {pr(T)}')
        if i == 0: a(f'v_pk_mul_f32 {pr(T+2)}, {pr(d)}, {pr(d)}')
        else: a(f'v_pk_fma_f32 {pr(T+2)}, {pr(d)}, {pr(d)}, {pr(T+2)}')
    a(f'v_add_f32 v{T+2}, v{T+2}, v{T+3}')
    row_sum(a, T + 2, T + 3)
    rnd_bf16(a, T)
    a(f'v_mov_b32 v{T+1}, v{T}\nv_mul_f32 v{T+2}, {hex(f2u(1/448))}, v{T+2}')
    rnd_bf16(a, T + 2)
    a(f'v_add_f32 v{T+2}, {hex(f2u(1e-5))}, v{T+2}')
    rnd_bf16(a, T + 2)
    a(f'v_sqrt_f32 v{T+2}, v{T+2}')
    for i in range(nq): a(f'v_pk_add_f32 {pr(F+2*i)}, {pr(F+2*i)}, {pr(T)}')
    rnd_bf16(a, T + 2)
    a(f'v_rcp_f32 v{T+2}, v{T+2}')
    for i in range(nq): a(f'v_cvt_pk_bf16_f32 v{X+i}, v{F+2*i}, v{F+2*i+1}')
    a(f'v_mov_b32 v{T+3}, v{T+2}')
    unpack(a, X, F, nq)
    for i in range(nq): a(f'v_pk_mul_f32 {pr(F+2*i)}, {pr(F+2*i)}, {pr(T+2)}')
    for i in range(nq): a(f'v_cvt_pk_bf16_f32 v{X+i}, v{F+2*i}, v{F+2*i+1}')

def xgroup(a, op, v, t):
    a(f'v_mov_b32 v{t}, v{v}\nv_permlane16_swap_b32 v{v}, v{t}\n{op} v{v}, v{v}, v{t}')
    a(f'v_mov_b32 v{t}, v{v}\nv_permlane32_swap_b32 v{v}, v{t}\n{op} v{v}, v{v}, v{t}')

S_PTS = ['start', 'skarg', 'siss0', 'pst', 'g2ok', 'sB1a', 'sB1', 'Kdone', 'Vlast', 'B2', 'ost', 'gok', 'B3', 'end']
M_PTS = ['mstart', 'mw1', 'mw2', 'mend']
H_PTS = ['hstart', 'locv', 'xst', 'xid', 'hpub', 'wob', 'qack', 'xland', 'lndone', 'wtpub', 'wtok', 'hkarg', 'wqiss', 'hB0', 'wqland', 'qpub', 'qp1', 'qok', 'B1', 'wodone', 'mlpub', 'mlok', 'hend']
def pts(P): return P['pts'].split('+') if isinstance(P['pts'], str) else P['pts']
def stamp(a, P, name):
    if P['diag'] and name in pts(P):
        reg = 88 + 2 * pts(P).index(name)
        a(f's_memrealtime s[{reg}:{reg+1}]\ns_waitcnt lgkmcnt(0)')
def stamp_items(P, lst): return [(i, 88 + 2 * i) for i, n in enumerate(pts(P)) if n in lst]
def stamp_init(a, P):
    if P['diag']:
        for i in range(7): a(f's_mov_b64 s[{88+2*i}:{89+2*i}], 0')

def stamp_store(a, P, items, hw=False):
    if not P['diag']: return
    a('s_waitcnt lgkmcnt(0)')
    a(f's_lshl_b32 s37, s2, 6\ns_add_u32 s37, s37, {STAMP_OFF}')
    srd(a, 40, 28, 's37', 64)
    a('s_mov_b64 exec, 1\nv_mov_b32 v1, 0')
    for idx, reg in items:
        a(f'v_mov_b32 v2, s{reg}\nv_mov_b32 v3, s{reg+1}\nbuffer_store_dwordx2 v[2:3], v1, s[40:43], 0 offen offset:{idx*8}')
    if hw:
        a('s_getreg_b32 s38, hwreg(HW_REG_XCC_ID)\ns_getreg_b32 s39, hwreg(HW_REG_HW_ID)')
        a('v_mov_b32 v2, s38\nv_mov_b32 v3, s39\nbuffer_store_dwordx2 v[2:3], v1, s[40:43], 0 offen offset:56')
    a('s_mov_b64 exec, -1')

def streamer(a, P):
    a('L_stream:\ns_cmp_eq_u32 s30, 9\ns_cbranch_scc1 L_mlp\ns_sub_u32 s30, s30, 1')
    R, D, D0, pol = P['R'], P['D'], P['D0'], P['pol']
    Q, S, DT, RING = 8, 16, 48, 56
    slot = lambda i: RING + 4 * (i % R)
    sl = lambda i: f'v[{slot(i)}:{slot(i)+3}]'
    stamp(a, P, 'start')
    if P['hold']: a('s_memrealtime s[98:99]')
    a('v_and_b32 v1, 3, v0\nv_lshlrev_b32 v1, 4, v1\nv_bfe_u32 v3, v0, 2, 2\nv_lshl_add_u32 v1, v3, 9, v1')
    a('v_lshrrev_b32 v3, 4, v0\nv_lshl_add_u32 v1, v3, 6, v1')
    a('v_and_b32 v2, 15, v0\nv_lshlrev_b32 v2, 4, v2\nv_lshl_add_u32 v2, v3, 9, v2')
    a('s_lshl_b32 s37, s38, 19\ns_lshl_b32 s39, s30, 16\ns_add_u32 s37, s37, s39')
    a('s_add_u32 s35, s30, s32\ns_and_b32 s35, s35, 7\ns_lshl_b32 s35, s35, 12')
    a('s_waitcnt lgkmcnt(0)')
    stamp(a, P, 'skarg')
    srd(a, 40, 6, 's37', 65536)
    srd(a, 44, 8, 's37', 65536)
    def issue(i):
        j = i % 64; G, t = j >> 1, j & 1
        if t == 0: a(f's_xor_b32 s36, s35, {G*2048}')
        r, va = ('s[40:43]', 'v1') if i < 64 else ('s[44:47]', 'v2')
        a(f'buffer_load_dwordx4 {sl(i)}, {va}, {r}, s36 offen offset:{t*256} {pol}')
    for i in range(D0): issue(i)
    stamp(a, P, 'siss0')
    srd(a, 52, 28, None, WS_USED)
    for e in range(2):
        for r in range(4):
            m16 = (0x11 << r) << (8 * e); m32 = m16 | (m16 << 16)
            a(f's_mov_b32 s{64+2*(4*e+r)}, {hex(m32)}\ns_mov_b32 s{65+2*(4*e+r)}, {hex(m32)}')
    a('s_mov_b32 s80, 0x05040100\ns_mov_b32 s81, 0x07060302')
    for i in range(D0, R):
        a(f's_waitcnt vmcnt({D-1})'); issue(i)
    a('v_bfe_u32 v3, v0, 2, 1\nv_lshlrev_b32 v3, 9, v3\nv_and_b32 v4, 3, v0\nv_lshl_add_u32 v3, v4, 4, v3')
    a(f'v_lshrrev_b32 v4, 4, v0\nv_lshl_add_u32 v3, v4, 6, v3\nv_add_u32 v3, {L_Q}, v3')
    stamp(a, P, 'sB1a')
    a(f's_barrier')
    stamp(a, P, 'sB1')
    a(f'ds_read_b128 v[{Q}:{Q+3}], v3\nds_read_b128 v[{Q+4}:{Q+7}], v3 offset:256\nv_mov_b32 v5, {L_TAG}\nds_read_b64 v[6:7], v5')
    a(f'v_mov_b32 v4, 0xff800000\ns_mov_b32 s83, {hex(f2u(C_EXP))}\ns_waitcnt lgkmcnt(0)')
    a(f'v_readfirstlane_b32 s84, v6\nv_readfirstlane_b32 s87, v7\ns_mov_b32 s82, {TMASK}\ns_and_b32 s85, s84, {TMASK}')
    chunks = []
    def kdpp(G):
        d = DT + 4 * (G & 1)
        a(f'v_mov_b32_dpp v{S+G}, v{d} quad_perm:[0,0,0,0] row_mask:0xf bank_mask:0xf')
        for r in range(1, 4):
            a(f'v_add_f32_dpp v{S+G}, v{d+r}, v{S+G} quad_perm:[{r},{r},{r},{r}] row_mask:0xf bank_mask:0xf')
        if G & 1:
            if not P['nornd']: a(f'v_cvt_pk_bf16_f32 v5, v{S+G-1}, v{S+G}\nv_lshlrev_b32 v{S+G-1}, 16, v5\nv_and_b32 v{S+G}, 0xffff0000, v5')
            a(f'v_max3_f32 v4, v4, v{S+G-1}, v{S+G}')
    def kchunk(G):
        def fn():
            d = DT + 4 * (G & 1)
            a(f'v_mfma_f32_16x16x32_bf16 v[{d}:{d+3}], {sl(2*G)}, v[{Q}:{Q+3}], 0')
            a(f'v_mfma_f32_16x16x32_bf16 v[{d}:{d+3}], {sl(2*G+1)}, v[{Q+4}:{Q+7}], v[{d}:{d+3}]')
            if G: kdpp(G - 1)
        return fn
    for G in range(32): chunks.append((2 * G + 1, [2 * G, 2 * G + 1], kchunk(G)))
    def sm0():
        kdpp(31)
        xgroup(a, 'v_max_f32', 4, 5)
        a('v_mul_f32 v6, s83, v4\nv_mov_b32 v7, 0')
        stamp(a, P, 'Kdone')
    chunks.append((63, [], sm0))
    def sm(k):
        def fn():
            for g in range(8 * k, 8 * k + 8): a(f'v_fma_f32 v{S+g}, v{S+g}, s83, -v6')
            for g in range(8 * k, 8 * k + 8): a(f'v_exp_f32 v{S+g}, v{S+g}')
            for g in range(8 * k, 8 * k + 8): a(f'v_add_f32 v7, v7, v{S+g}')
            for i in range(4 * k, 4 * k + 4): a(f'v_cvt_pk_bf16_f32 v{S+i}, v{S+2*i}, v{S+2*i+1}')
        return fn
    for k in range(4): chunks.append((63, [], sm(k)))
    def sm_end():
        xgroup(a, 'v_add_f32', 7, 5)
        a(f'v_mov_b32 v5, v7\nv_bfe_u32 v3, v0, 2, 1\nv_lshlrev_b32 v3, 6, v3\ns_lshl_b32 s37, s30, 3\ns_add_u32 s37, s37, {L_ML}\nv_add_u32 v3, s37, v3')
        a('s_mov_b64 exec, 0x11\nds_write_b64 v3, v[4:5]\ns_mov_b64 exec, -1')
    chunks.append((63, [], sm_end))
    AT = [32, 36]; PT = [40, 44, 8, 12]; ACC = DT
    cnt = [0, 0]
    def vchunk(T, e, r):
        def fn():
            A = AT[cnt[0] & 1]; cnt[0] += 1
            mk = 64 + 2 * (4 * e + r)
            for p in range(4): a(f'v_cndmask_b32 v{A+p}, 0, v{S+4*T+p}, s[{mk}:{mk+1}]')
            for jj in range(2):
                j = 4 * jj + r; m, hh = j >> 1, j & 1
                B = PT[cnt[1] & 3]; cnt[1] += 1
                for p in range(4):
                    ev = 64 + 16 * T + 2 * (2 * p) + e; od = ev + 2
                    a(f'v_perm_b32 v{B+p}, v{slot(od)+m}, v{slot(ev)+m}, s{80+hh}')
                c = '0' if (T == 0 and e == 0 and r == 0) else f'v[{ACC+4*jj}:{ACC+4*jj+3}]'
                a(f'v_mfma_f32_16x16x32_bf16 v[{ACC+4*jj}:{ACC+4*jj+3}], v[{A}:{A+3}], v[{B}:{B+3}], {c}')
        return fn
    for T in range(4):
        for e in range(2):
            for r in range(4):
                fr = [64 + 16 * T + 2 * g + e for g in range(8)] if r == 3 else []
                chunks.append((64 + 16 * T + 14 + e, fr, vchunk(T, e, r)))
    freed = set(); ci = 0; landed = -1
    def run_chunk(issued):
        nonlocal ci, landed
        nd, fr, fn = chunks[ci]; ci += 1
        if nd > landed:
            a(f's_waitcnt vmcnt({issued-1-nd})'); landed = nd
        fn(); freed.update(fr)
    for i in range(R, 128):
        while (i - R) not in freed: run_chunk(i)
        Di = P['Dend'] if (P['Dend'] and i >= 128 - P['nend']) else D
        if i - Di > landed:
            a(f's_waitcnt vmcnt({Di-1})'); landed = i - Di
        issue(i)
        n = 0
        while ci < len(chunks) and chunks[ci][0] <= landed and n < P['budget']:
            run_chunk(i + 1); n += 1
    def tail_addr():
        a(f'v_lshrrev_b32 v3, 5, v0\nv_lshlrev_b32 v3, 9, v3\nv_bfe_u32 v4, v0, 4, 1\nv_lshl_add_u32 v3, v4, 10, v3')
        a(f'v_and_b32 v4, 15, v0\nv_lshl_add_u32 v3, v4, 5, v3\ns_lshl_b32 s37, s30, 11\ns_add_u32 s37, s37, {L_PART}\nv_add_u32 v3, s37, v3')
        a(f's_lshl_b32 s37, s30, 8\ns_add_u32 s37, s37, {L_PART}\nv_lshl_add_u32 v4, v0, 2, s37')
        a(f's_lshr_b32 s37, s30, 2\ns_lshl_b32 s37, s37, 5\ns_add_u32 s37, s37, {L_F}\nv_mov_b32 v5, s37')
        a(f'v_lshlrev_b32 v6, 2, v0\ns_lshl_b32 s60, s38, 11\ns_lshl_b32 s37, s30, 8\ns_add_u32 s60, s60, s37\ns_add_u32 s60, s60, {OBUF}')
        a(f'v_lshrrev_b32 v1, 4, v0\nv_bfe_u32 v7, v0, 2, 2\nv_and_b32 v8, 3, v0')
        a(f'v_lshl_add_u32 v7, v1, 2, v7\nv_mul_u32_u24 v7, {WSTR}, v7\nv_lshl_add_u32 v7, v8, 3, v7\ns_lshl_b32 s37, s30, 7\nv_add_u32 v7, s37, v7')
        a(f'v_and_b32 v2, 15, v0\nv_lshlrev_b32 v2, 4, v2\nv_lshl_add_u32 v2, v1, 11, v2')
        a(f's_and_b32 s61, s38, 0xfc\ns_lshl_b32 s61, s61, 11\ns_and_b32 s37, s38, 3\ns_lshl_b32 s37, s37, 9\ns_add_u32 s61, s61, s37\ns_add_u32 s61, s61, {OBUF}')
    while ci < len(chunks) - 8: run_chunk(128)
    tail_addr()
    XR = RING + 4 * R
    a(f'v_lshl_add_u32 v{XR+2}, v8, 2, v1\nv_lshlrev_b32 v{XR+2}, 1, v{XR+2}\ns_lshl_b32 s39, s34, 5')
    srd(a, 44, 22, None, 896)
    a(f'buffer_load_ushort v{XR}, v{XR+2}, s[44:47], s39 offen')
    srd(a, 40, 4, None, 7168)
    a(f's_mul_i32 s37, s33, 896\ns_add_u32 s63, s37, s39\nbuffer_load_ushort v{XR+1}, v{XR+2}, s[40:43], s63 offen')
    srd(a, 44, 24, None, 7168)
    while ci < len(chunks): run_chunk(130)
    stamp(a, P, 'Vlast')
    a('L_tail:')
    a(f'ds_write_b128 v3, v[{ACC}:{ACC+3}]\nds_write_b128 v3, v[{ACC+4}:{ACC+7}] offset:16\ns_waitcnt lgkmcnt(0)\ns_barrier')
    stamp(a, P, 'B2')
    for w in range(4): a(f'ds_read2st64_b32 v[{16+2*w}:{17+2*w}], v4 offset0:{16*w} offset1:{16*w+8}')
    a(f'ds_read_b128 v[24:27], v5\nds_read_b128 v[28:31], v5 offset:16\ns_waitcnt lgkmcnt(0)')
    a('v_mul_f32 v32, v16, v24\nv_mul_f32 v33, v17, v25')
    for w in range(2, 8): a(f'v_fmac_f32 v{32+(w&1)}, v{16+w}, v{24+w}')
    a('v_mov_b32 v9, s85\nv_add_f32 v32, v32, v33\nv_bfi_b32 v32, s82, v9, v32')
    hand_store(a, 'buffer_store_dword v32, v6, s[52:55], s60 offen')
    stamp(a, P, 'ost')
    a(f's_mov_b32 s86, {P["spin"]}')
    a('s_cmp_eq_u32 s30, 7\ns_cbranch_scc1 L_fin')
    BF, AF, DR = 56, 16, 32
    a(f'v_add_u32 v8, {64*WSTR}, v7')
    for i in range(4):
        for jj in range(4):
            b = BF + 16 * i + 4 * jj; o = (jj & 1) * 32 * WSTR + i * 32; va = 'v8' if jj >= 2 else 'v7'
            a(f'ds_read_b64_tr_b16 v[{b}:{b+1}], {va} offset:{o}\nds_read_b64_tr_b16 v[{b+2}:{b+3}], {va} offset:{o+16*WSTR}')
    a(f's_lshl_b32 s37, s30, 8\ns_add_u32 s39, s37, {L_MS}\nv_add_u32 v10, s39, v6\nds_read_b32 v10, v10')
    a(f's_lshl_b32 s60, s38, 11\ns_add_u32 s60, s60, s37\ns_add_u32 s60, s60, {PBUF}')
    a(f'v_lshlrev_b32 v5, 3, v1\nv_add_u32 v5, {L_O}, v5')
    a('s_mov_b32 s64, 0xffff0000\ns_mov_b32 s65, 0\ns_mov_b32 s66, 0\ns_mov_b32 s67, 0xffff\ns_mov_b32 s68, 0\ns_mov_b32 s69, 0xffff0000')
    a('s_waitcnt lgkmcnt(0)\ns_barrier')
    for jj in range(4): a(f'ds_read_b64 v[{AF+4*jj}:{AF+4*jj+1}], v5 offset:{jj*64}\nds_read_b64 v[{AF+4*jj+2}:{AF+4*jj+3}], v5 offset:{jj*64+32}')
    stamp(a, P, 'B3')
    for jj in range(4):
        a(f's_waitcnt lgkmcnt({6-2*jj})')
        for i in range(4):
            b = BF + 16 * i + 4 * jj; d = DR + 4 * i
            a(f'v_mfma_f32_16x16x32_bf16 v[{d}:{d+3}], v[{AF+4*jj}:{AF+4*jj+3}], v[{b}:{b+3}], ' + ('0' if jj == 0 else f'v[{d}:{d+3}]'))
    for i in range(1, 4): a(f'v_cndmask_b32 v{DR}, v{DR}, v{DR+4*i}, s[{62+2*i}:{63+2*i}]')
    a(f'v_add_f32 v8, v{DR}, v10\nv_bfi_b32 v8, s82, v9, v8')
    a('buffer_store_dword v8, v6, s[52:55], s60 offen sc1')
    stamp(a, P, 'pst')
    if P['diag']:
        a('s_cmp_lg_u32 s30, 0\ns_cbranch_scc1 L_end')
        stamp_store(a, P, stamp_items(P, [x for x in S_PTS if x not in ('gok', 'g2ok', 'end')]), hw=True)
    a('s_endpgm')
    a('L_fin:')
    a(f'v_and_b32 v4, 15, v0\nv_lshlrev_b32 v4, 3, v4\nv_and_b32 v5, 1, v1\nv_lshl_add_u32 v4, v5, 2, v4\nv_lshrrev_b32 v5, 1, v1\nv_lshl_add_u32 v4, v5, 7, v4\nv_add_u32 v5, {L_O}, v4')
    a('L_gpoll:')
    a('buffer_load_dwordx4 v[16:19], v2, s[52:55], s61 offen sc1\nbuffer_load_dwordx4 v[20:23], v2, s[52:55], s61 offen offset:256 sc1')
    a('s_waitcnt vmcnt(0)')
    tag_check(a, range(16, 24), 10, 11, 4)
    a('s_sub_u32 s86, s86, 1\ns_cbranch_scc1 L_gdone\ns_cbranch_vccnz L_gpoll')
    a('L_gdone:')
    stamp(a, P, 'gok')
    for i in range(8): a(f'v_and_b32 v{16+i}, {hex(0xffffffff ^ TMASK)}, v{16+i}')
    for p in (16, 17, 20, 21): a(f'v_permlane16_swap_b32 v{p}, v{p+2}')
    for p in (16, 17, 20, 21): a(f'v_add_f32 v{p}, v{p}, v{p+2}')
    a('v_permlane32_swap_b32 v16, v20\nv_permlane32_swap_b32 v17, v21\nv_add_f32 v16, v16, v20\nv_add_f32 v17, v17, v21')
    a('v_cvt_pk_bf16_f32 v16, v16, v17\nds_write_b32 v5, v16\ns_waitcnt lgkmcnt(0)\ns_barrier')
    a('s_cmp_lt_u32 s34, 28\ns_cbranch_scc0 L_end')
    a('v_and_b32 v8, 3, v0')
    a(f'v_lshrrev_b32 v2, 2, v0\nv_lshlrev_b32 v2, 11, v2\nv_lshl_add_u32 v2, v8, 4, v2\nv_add_u32 v3, 32768, v2\nv_mov_b32 v7, 0x200')
    a(f's_lshl_b32 s61, s33, 16\ns_lshl_b32 s37, s34, 6\ns_add_u32 s61, s61, s37\ns_add_u32 s61, s61, {PBUF}')
    a(f'v_lshlrev_b32 v24, 16, v{XR}\nv_lshlrev_b32 v25, 16, v{XR+1}\nv_add_f32 v24, v24, v25')
    a('L_fpoll:')
    a('buffer_load_dwordx4 v[16:19], v2, s[52:55], s61 offen sc1\nbuffer_load_dwordx4 v[20:23], v3, s[52:55], s61 offen sc1')
    a('s_waitcnt vmcnt(0)')
    tag_check(a, range(16, 24), 8, 9, 10)
    a('s_sub_u32 s86, s86, 1\ns_cbranch_scc1 L_fdone\ns_cbranch_vccz L_fdone')
    if P['fthr']:
        a(f's_bcnt1_i32_b64 s37, vcc\ns_cmp_lt_u32 s37, {P["fthr"]}\ns_cbranch_scc1 L_fpoll\ns_sleep {P["fsl2"]}')
    if P['fsl']: a(f's_sleep {P["fsl"]}')
    a('s_branch L_fpoll')
    a('L_fdone:')
    stamp(a, P, 'g2ok')
    tag_strip(a, range(16, 24), 7)
    for i in range(4): a(f'v_add_f32 v{16+i}, v{16+i}, v{20+i}')
    a('v_permlane16_swap_b32 v16, v17\nv_permlane16_swap_b32 v18, v19\nv_add_f32 v16, v16, v17\nv_add_f32 v18, v18, v19')
    a('v_permlane32_swap_b32 v16, v18\nv_add_f32 v16, v16, v18')
    a('v_add_f32_dpp v16, v16, v16 row_ror:4 row_mask:0xf bank_mask:0xf')
    a('v_add_f32_dpp v16, v16, v16 row_ror:8 row_mask:0xf bank_mask:0xf')
    a('v_add_f32 v16, v16, v24\nv_cvt_pk_bf16_f32 v16, v16, v16')
    a('s_mov_b32 exec_lo, 0x000f000f\ns_mov_b32 exec_hi, 0x000f000f')
    a(f'buffer_store_short v16, v{XR+2}, s[44:47], s63 offen')
    a('s_cmp_lg_u32 s38, 0\ns_cbranch_scc1 L_noep')
    a('v_mov_b32 v8, 0\nv_mov_b32 v9, s84\ns_mov_b64 exec, 1\nbuffer_store_dword v9, v8, s[52:55], 0 offen sc1')
    a('L_noep:')
    if P['hold']:
        a(f'L_hold:\ns_memrealtime s[96:97]\ns_waitcnt lgkmcnt(0)\ns_sub_u32 s96, s96, s98\ns_cmp_lt_u32 s96, {P["hold"]}\ns_cbranch_scc1 L_hold')
    if P['diag']:
        a('s_mov_b64 exec, -1\ns_waitcnt vmcnt(0)')
        stamp(a, P, 'end')
        stamp_store(a, P, stamp_items(P, ['gok', 'g2ok', 'end']))
    a('s_endpgm')

def dma_loop(a, lab, n, depth, vaddr, sstep, lds0, pol):
    a(f's_mov_b32 s36, 0\ns_mov_b32 s62, {lds0}\ns_mov_b32 s63, {n}')
    a(f'{lab}:')
    a(f's_mov_b32 m0, s62\ns_waitcnt vmcnt({depth-1})')
    a(f'buffer_load_dwordx4 v{vaddr}, s[56:59], s36 offen {pol} lds')
    a(f's_add_u32 s36, s36, {sstep}\ns_add_u32 s62, s62, 1024\ns_sub_u32 s63, s63, 1\ns_cmp_lg_u32 s63, 0\ns_cbranch_scc1 {lab}')

def wo_loop(a, P, lab):
    a(f's_min_u32 s63, s63, {NWO*1024}')
    a(f's_cmp_lt_u32 s62, s63\ns_cbranch_scc0 {lab}x')
    a(f'{lab}:')
    a(f's_mov_b32 m0, s62\ns_waitcnt vmcnt({P["DH"]-1})')
    a(f'buffer_load_dwordx4 v1, s[56:59], 0 offen {P["opol"]} lds')
    a('v_add_u32 v11, 7, v11\nv_cmp_le_u32 vcc, 57, v11\nv_add_u32 v1, 1008, v1\ns_add_u32 s62, s62, 1024')
    a('v_subrev_u32 v3, 57, v11\nv_add_u32 v15, -16, v1\nv_cndmask_b32 v11, v11, v3, vcc\nv_cndmask_b32 v1, v1, v15, vcc')
    a(f's_cmp_lt_u32 s62, s63\ns_cbranch_scc1 {lab}')
    a(f'{lab}x:')

XF, FF, TT = 16, 44, 100
def x_addr(a):
    a('v_and_b32 v10, 15, v0\nv_lshrrev_b32 v9, 4, v0\nv_and_b32 v8, 7, v0\nv_mul_u32_u24 v8, 896, v8')
    a('v_bfe_u32 v3, v0, 3, 1\nv_mul_u32_u24 v3, 448, v3\nv_lshl_add_u32 v8, v9, 4, v8\nv_add_u32 v8, v8, v3')
def x_load(a, P):
    srd(a, 48, 4, None, 7168)
    for ks in range(7): a(f'buffer_load_dwordx4 v[{XF+4*ks}:{XF+4*ks+3}], v8, s[48:51], 0 offen offset:{ks*64} {P["xpol"]}')
def tag_check(a, regs, t0, t1, acc, mask=TMASK):
    for i in range(0, len(regs), 2):
        a(f'v_xor_b32 v{t0}, s85, v{regs[i]}\nv_xor_b32 v{t1}, s85, v{regs[i+1]}')
        a(f'v_or_b32 v{acc}, v{t0}, v{t1}' if i == 0 else f'v_or3_b32 v{acc}, v{acc}, v{t0}, v{t1}')
    a(f'v_and_b32 v{acc}, {mask}, v{acc}\nv_cmp_ne_u32 vcc, 0, v{acc}')
def tag_strip(a, regs, half, ms=82):
    for r in regs: a(f'v_bfi_b32 v{r}, s{ms}, v{half}, v{r}')
_st = [0]
def hand_store(a, ins):
    _st[0] += 1; n = _st[0]
    a(f's_cmp_eq_u32 s87, 0\ns_cbranch_scc1 L_wt{n}\n{ins}\ns_branch L_we{n}\nL_wt{n}:\n{ins} sc1\nL_we{n}:')

def unit_gemm(a, lds, va, st_v, st_s, tagv, ms, before_pub=None):
    TA, DQ = 44, 108
    seq = [(t, ks) for t in range(4) for ks in range(4)]
    def rd(n):
        t, ks = seq[n]; r = TA + 4 * n; o = lds + ks * 4096 + t * 32
        a(f'ds_read_b64_tr_b16 v[{r}:{r+1}], v{va} offset:{o}\nds_read_b64_tr_b16 v[{r+2}:{r+3}], v{va} offset:{o+512}')
    def pub(t):
        for r in range(4): a(f'v_bfi_b32 v{DQ+4*t+r}, s{ms}, v{tagv}, v{DQ+4*t+r}')
        hand_store(a, f'buffer_store_dwordx4 v[{DQ+4*t}:{DQ+4*t+3}], v{st_v}, s[52:55], s{st_s} offen offset:{t*64}')
    for n in range(6): rd(n)
    for n, (t, ks) in enumerate(seq):
        if n + 6 < 16: rd(n + 6)
        a(f's_waitcnt lgkmcnt({2*min(6, 15-n)})')
        r = TA + 4 * n; d = DQ + 4 * t
        c = '0' if ks == 0 else f'v[{d}:{d+3}]'
        a(f'v_mfma_f32_16x16x32_bf16 v[{d}:{d+3}], v[{r}:{r+3}], v[{XF+4*ks}:{XF+4*ks+3}], {c}')
        if before_pub is None and n in (7, 11, 15): pub(n // 4 - 1)
    if before_pub is not None:
        before_pub()
        for t in range(3): pub(t)
    pub(3)

def helper(a, P):
    stamp(a, P, 'hstart')
    if P['cpf']:
        a('s_getpc_b64 s[56:57]\ns_mov_b32 s58, 4352\ns_mov_b32 s59, 0x20000\nv_lshlrev_b32 v1, 6, v0')
        a('buffer_load_dword v15, v1, s[56:59], 0 offen offset:256')
    x_addr(a)
    a('v_lshrrev_b32 v4, 3, v0\nv_lshlrev_b32 v1, 13, v4\nv_and_b32 v2, 7, v0\nv_lshl_add_u32 v1, v2, 4, v1')
    a('v_mul_u32_u24 v4, 3584, v4\nv_lshl_add_u32 v4, v2, 4, v4')
    a('s_and_b32 s63, s32, 1\ns_bfe_u32 s62, s32, 0x10001\ns_mul_i32 s64, s62, 224\ns_lshl_b32 s36, s63, 7\ns_add_u32 s64, s64, s36')
    a('s_lshl_b32 s65, s63, 5\ns_sub_u32 s65, 127, s65\ns_lshr_b32 s66, s32, 2')
    a('s_lshl_b32 s37, s64, 13\ns_lshl_b32 s39, s31, 3\ns_add_u32 s39, s39, s66\ns_lshl_b32 s39, s39, 7\ns_add_u32 s37, s37, s39')
    a('s_lshl_b32 s39, s65, 13\ns_add_u32 s39, s39, 128')
    a('s_lshl_b32 s60, s63, 8\ns_mul_i32 s61, s63, 192\ns_sub_u32 s61, 192, s61')
    a('s_waitcnt lgkmcnt(0)')
    stamp(a, P, 'hkarg')
    a('s_load_dword s84, s[28:29], 0')
    srd(a, 48, 4, None, 7168)
    for ks in range(7):
        if ks < 3: a(f'buffer_load_dwordx4 v[{XF+4*ks}:{XF+4*ks+3}], v8, s[48:51], s60 offen offset:{ks*64} {P["xpol"]}')
        else: a(f'buffer_load_dwordx4 v[{XF+4*ks}:{XF+4*ks+3}], v8, s[48:51], s61 offen offset:{(ks-3)*64} {P["xpol"]}')
    srd(a, 56, 10, 's37', 's39')
    for i in range(16):
        a(f's_mov_b32 m0, {L_WQ+i*1024}\ns_mov_b32 s36, {i*65536}')
        a(f'buffer_load_dwordx4 v1, s[56:59], s36 offen {P["wpol"]} lds')
    stamp(a, P, 'wqiss')
    srd(a, 52, 28, None, WS_USED)
    a(f'v_lshlrev_b32 v2, 4, v0\ns_getreg_b32 s68, hwreg(HW_REG_XCC_ID)\ns_and_b32 s68, s68, 15\ns_lshl_b32 s68, s68, 12')
    a(f's_lshl_b32 s69, s31, 12\ns_add_u32 s69, s69, {XBUF}\ns_lshl_b32 s37, s32, 7\ns_add_u32 s37, s37, s69\ns_waitcnt lgkmcnt(0)')
    a(f's_add_u32 s84, s84, 0x9E3779B9\ns_and_b32 s85, s84, {TMASK}\ns_or_b32 s68, s68, s85\nv_mov_b32 v6, s85\nv_mov_b32 v124, s68')
    a('s_mov_b64 exec, 1\nbuffer_store_dword v124, v2, s[52:55], s37 offen sc1\ns_mov_b64 exec, -1')
    stamp(a, P, 'xst')
    a('s_mul_i32 s67, s31, 7\ns_lshr_b32 s67, s67, 1\ns_add_u32 s67, s67, s66\ns_mul_i32 s37, s64, 3584\ns_lshl_b32 s39, s67, 7\ns_add_u32 s37, s37, s39')
    a('s_mul_i32 s39, s65, 3584\ns_add_u32 s39, s39, 128\ns_cmp_lt_u32 s66, 4\ns_cselect_b32 s37, s37, 0\ns_cselect_b32 s39, s39, 0')
    srd(a, 56, 16, 's37', 's39')
    a('v_mov_b32 v126, -1\nv_mov_b32 v127, -1\nv_and_b32 v125, 31, v0\nv_lshlrev_b32 v125, 7, v125')
    a(f'v_lshlrev_b32 v3, 3, v0\nv_add_u32 v3, {L_ML}, v3\ns_mov_b64 exec, 0xffff\nds_write_b64 v3, v[126:127]\ns_mov_b64 exec, -1')
    a(f'v_mov_b32 v14, {hex(OOB)}\ns_mov_b32 s82, {TMASK}\ns_mov_b32 s81, {QMASK}\ns_mov_b32 s83, {hex(f2u(C_EXP))}')
    a(f'v_bfe_u32 v3, v0, 2, 2\nv_lshl_add_u32 v12, v9, 3, v3\nv_lshlrev_b32 v12, 7, v12\nv_and_b32 v5, 3, v0\nv_lshl_add_u32 v12, v5, 3, v12')
    a(f'v_and_b32 v5, 7, v0\nv_lshlrev_b32 v13, 16, v5\nv_lshl_add_u32 v13, v9, 4, v13\nv_bfe_u32 v3, v0, 3, 1\nv_cmp_eq_u32 vcc, s62, v3')
    a(f'v_lshlrev_b32 v5, 12, v5\nv_lshl_add_u32 v5, v9, 4, v5\nv_cndmask_b32 v13, v14, v13, vcc\nv_cndmask_b32 v5, v14, v5, vcc')
    a(f's_and_b32 s37, s32, 3\ns_lshl_b32 s60, s37, 14\ns_lshl_b32 s39, s31, 11\ns_add_u32 s60, s60, s39\ns_lshl_b32 s39, s66, 8\ns_add_u32 s60, s60, s39\ns_add_u32 s60, s60, {QBUF}')
    a(f's_lshl_b32 s61, s37, 10\ns_lshl_b32 s39, s66, 8\ns_add_u32 s61, s61, s39\ns_lshl_b32 s39, s31, 15\ns_add_u32 s61, s61, s39\ns_add_u32 s61, s61, {HBUF}')
    a('s_waitcnt vmcnt(17)')
    stamp(a, P, 'xland')
    layernorm(a, XF, FF, TT)
    stamp(a, P, 'lndone')
    a('s_mov_b64 exec, 0xffffffff\nbuffer_load_dword v124, v125, s[52:55], s69 offen sc1\ns_mov_b64 exec, -1')
    for i in range(16):
        a(f's_mov_b32 m0, {L_WQ+16384+i*1024}\ns_mov_b32 s36, {i*8*3584}')
        a(f'buffer_load_dwordx4 v4, s[56:59], s36 offen {P["wpol"]} lds')
    a('s_waitcnt vmcnt(18) lgkmcnt(0)')
    stamp(a, P, 'wqland')
    def loc_check():
        a('s_waitcnt vmcnt(16)\nv_cmp_ne_u32 vcc, s68, v124\ns_cmp_eq_u32 vcc_lo, 0')
        a('s_cselect_b32 s87, 1, 0' if P['loc'] else 's_mov_b32 s87, 0')
        stamp(a, P, 'xid')
        if P['diag'] and 'locv' in pts(P):
            a('s_cmp_lg_u32 s87, 0\ns_cbranch_scc1 L_locv'); stamp(a, P, 'locv'); a('L_locv:')
    unit_gemm(a, L_WQ, 12, 13, 60, 6, 81, loc_check)
    stamp(a, P, 'qpub')
    a('s_cmp_lt_u32 s66, 4\ns_cbranch_scc0 L_noh')
    layernorm(a, XF, FF, TT, 16)
    a('s_waitcnt vmcnt(4)')
    unit_gemm(a, L_WQ + 16384, 12, 5, 61, 6, 82)
    a('L_noh:')
    stamp(a, P, 'hpub')
    a('s_mul_i32 s37, s34, 114688')
    srd(a, 56, 12, 's37', 114688)
    a('v_cmp_le_u32 vcc, 57, v0\nv_subrev_u32 v3, 57, v0\nv_add_u32 v15, -16, v2\nv_cndmask_b32 v11, v0, v3, vcc\nv_cndmask_b32 v1, v2, v15, vcc')
    a(f's_mov_b32 s62, 0\ns_mov_b32 s63, {P["n1"]*1024}')
    a(f's_lshl_b32 s61, s33, 16\ns_lshl_b32 s37, s31, 11\ns_add_u32 s61, s61, s37\ns_add_u32 s61, s61, {QBUF}')
    a(f's_mov_b32 s86, {P["spin"]}\nv_mov_b32 v7, 0x80\ns_waitcnt vmcnt(4)')
    a('L_qpoll:')
    wo_loop(a, P, 'L_woa')
    a('s_mov_b32 s36, s61')
    for kq in range(4):
        for m in range(2): a(f'buffer_load_dwordx4 v[{44+8*kq+4*m}:{47+8*kq+4*m}], v2, s[52:55], s36 offen offset:{m*1024} sc1')
        if kq < 3: a('s_add_u32 s36, s36, 16384')
    a(f's_mov_b64 exec, 0xffffffff\nbuffer_load_dword v124, v125, s[52:55], s69 offen sc1\ns_mov_b64 exec, -1\ns_add_u32 s63, s62, {P["n1r"]*1024}\ns_waitcnt vmcnt(0)')
    tag_check(a, range(44, 76), 16, 17, 18, QMASK)
    a('s_sub_u32 s86, s86, 1\ns_cbranch_scc1 L_qdone\ns_cbranch_vccnz L_qpoll')
    a('L_qdone:')
    stamp(a, P, 'qok')
    a('v_cmp_ne_u32 vcc, s68, v124\ns_cmp_eq_u32 vcc_lo, 0')
    a('s_cselect_b32 s87, 1, 0' if P['loc'] else 's_mov_b32 s87, 0')
    tag_strip(a, range(44, 76), 7, 81)
    for kq in range(1, 4):
        for m in range(4): a(f'v_pk_add_f32 v[{44+2*m}:{45+2*m}], v[{44+2*m}:{45+2*m}], v[{44+8*kq+2*m}:{45+8*kq+2*m}]')
    a(f'v_lshlrev_b32 v3, 3, v0\nv_add_u32 v3, {L_Q}, v3\nv_mov_b32 v4, {L_TAG}\nv_mov_b32 v16, s84\nv_mov_b32 v17, s87\nds_write_b64 v4, v[16:17]')
    for m in range(4): a(f'v_cvt_pk_bf16_f32 v{52+m}, v{44+2*m}, v{45+2*m}')
    a('ds_write_b64 v3, v[52:53]\nds_write_b64 v3, v[54:55] offset:512\ns_waitcnt lgkmcnt(0)\ns_barrier')
    stamp(a, P, 'B1')
    a(f's_mov_b32 s63, {P["n2"]*1024}')
    wo_loop(a, P, 'L_wob')
    a(f'v_and_b32 v3, 15, v0\nv_lshlrev_b32 v3, 3, v3\nv_add_u32 v3, {L_ML}, v3\ns_mov_b32 s86, {P["spin"]*16}')
    a('L_mlw:')
    a('ds_read_b64 v[16:17], v3\ns_waitcnt lgkmcnt(0)\nv_cmp_eq_u32 vcc, -1, v16')
    a('s_sub_u32 s86, s86, 1\ns_cbranch_scc1 L_mlwd\ns_cbranch_vccz L_mlwd\ns_sleep 4\ns_branch L_mlw')
    a('L_mlwd:')
    d8 = ('quad_perm:[1,0,3,2]', 'quad_perm:[2,3,0,1]', 'row_half_mirror')
    a('v_mov_b32 v18, v16')
    for m in d8: a(f'v_max_f32_dpp v18, v18, v18 {m} row_mask:0xf bank_mask:0xf')
    a('v_sub_f32 v20, v16, v18\nv_mul_f32 v20, s83, v20\nv_exp_f32 v20, v20\nv_mul_f32 v19, v20, v17')
    for m in d8: a(f'v_add_f32_dpp v19, v19, v19 {m} row_mask:0xf bank_mask:0xf')
    tag_strip(a, (18, 19), 6)
    a(f's_lshl_b32 s37, s38, 7\ns_add_u32 s37, s37, {MLX}\ns_mov_b64 exec, 0x101')
    hand_store(a, 'buffer_store_dwordx2 v[18:19], v0, s[52:55], s37 offen')
    a('s_mov_b64 exec, -1')
    stamp(a, P, 'mlpub')
    a(f's_mov_b32 s63, {NWO*1024}')
    wo_loop(a, P, 'L_woc')
    stamp(a, P, 'wodone')
    a(f's_and_b32 s61, s38, 0xfc\ns_lshl_b32 s61, s61, 7\ns_add_u32 s61, s61, {MLX}\ns_mov_b32 s86, {P["spin"]}')
    a('v_and_b32 v3, 3, v0\nv_lshlrev_b32 v3, 7, v3\nv_and_b32 v4, 8, v0\nv_add_u32 v3, v3, v4')
    a('L_mlp2:')
    a('buffer_load_dwordx2 v[24:25], v3, s[52:55], s61 offen sc1\ns_waitcnt vmcnt(0)')
    tag_check(a, (24, 25), 26, 27, 28)
    a('s_sub_u32 s86, s86, 1\ns_cbranch_scc1 L_mlp2d\ns_cbranch_vccz L_mlp2d\ns_sleep 16\ns_branch L_mlp2')
    a('L_mlp2d:')
    stamp(a, P, 'mlok')
    a(f'v_and_b32 v24, 0xffff0000, v24\nv_and_b32 v25, {hex(0xffffffff ^ TMASK)}, v25\nv_mov_b32 v28, v24')
    for m in d8[:2]: a(f'v_max_f32_dpp v28, v28, v28 {m} row_mask:0xf bank_mask:0xf')
    a('v_sub_f32 v29, v24, v28\nv_mul_f32 v29, s83, v29\nv_exp_f32 v29, v29\nv_mul_f32 v29, v29, v25')
    for m in d8[:2]: a(f'v_add_f32_dpp v29, v29, v29 {m} row_mask:0xf bank_mask:0xf')
    a('v_sub_f32 v30, v16, v28\nv_mul_f32 v30, s83, v30\nv_exp_f32 v30, v30\nv_rcp_f32 v29, v29\nv_mul_f32 v30, v30, v29')
    a(f'v_lshlrev_b32 v3, 2, v0\nv_add_u32 v3, {L_F}, v3\ns_mov_b64 exec, 0xffff\nds_write_b32 v3, v30\ns_mov_b64 exec, -1')
    if P['tpf']:
        a('s_getpc_b64 s[56:57]\nL_pc2:\ns_add_u32 s56, s56, L_tail-L_pc2\ns_addc_u32 s57, s57, 0\ns_mov_b32 s58, L_end-L_tail\ns_mov_b32 s59, 0x20000')
        a('v_lshlrev_b32 v1, 6, v0\nbuffer_load_dword v15, v1, s[56:59], 0 offen')
    a('s_waitcnt vmcnt(0) lgkmcnt(0)')
    stamp(a, P, 'hend')
    stamp_store(a, P, stamp_items(P, H_PTS))
    a('s_endpgm')

def mlp(a, P):
    a('L_mlp:')
    if P['nom']: a('s_endpgm')
    a('v_and_b32 v10, 15, v0\nv_lshrrev_b32 v9, 4, v0\nv_lshlrev_b32 v2, 4, v0\nv_min_u32 v3, 13, v10')
    a('v_lshlrev_b32 v4, 10, v9\nv_lshl_add_u32 v4, v3, 4, v4\nv_lshlrev_b32 v5, 3, v3')
    a(f's_lshl_b32 s61, s31, 15\ns_lshl_b32 s37, s33, 12\ns_add_u32 s61, s61, s37\ns_and_b32 s37, s34, 3\ns_mul_i32 s37, s37, 224\ns_add_u32 s61, s61, s37\ns_and_b32 s37, s31, 1\ns_lshl_b32 s37, s37, 7\ns_add_u32 s61, s61, s37\ns_add_u32 s61, s61, {HBUF}')
    a(f'v_bfe_u32 v3, v0, 2, 2\nv_lshl_add_u32 v6, v9, 2, v3\nv_mul_u32_u24 v6, 896, v6\nv_and_b32 v3, 3, v0\nv_lshl_add_u32 v6, v3, 3, v6\nv_add_u32 v6, {L_MS}, v6')
    a(f's_mov_b32 s82, {TMASK}\nv_mov_b32 v7, 0x200\nv_mov_b32 v8, {L_TAG}\ns_mov_b32 s86, {P["spin"]}')
    a('s_waitcnt lgkmcnt(0)')
    srd(a, 52, 28, None, WS_USED)
    srd(a, 48, 18, None, 3584)
    a('s_mul_i32 s60, s34, 50176')
    srd(a, 56, 20, 's60', 28672)
    a('s_barrier')
    stamp(a, P, 'mstart')
    a(f'ds_read_b32 v8, v8\ns_mul_i32 s37, s34, 112\nbuffer_load_dwordx2 v[20:21], v5, s[48:51], s37 offen\ns_waitcnt lgkmcnt(0)')
    a(f'v_readfirstlane_b32 s85, v8\ns_and_b32 s85, s85, {TMASK}')
    dma_loop(a, 'L_w2a', 28, P['DM'], 2, 1024, L_MS, P['mpol'])
    a('L_hp:')
    a('buffer_load_dwordx4 v[16:19], v4, s[52:55], s61 offen sc1\ns_waitcnt vmcnt(0)')
    tag_check(a, range(16, 20), 22, 23, 24)
    a('s_sub_u32 s86, s86, 1\ns_cbranch_scc1 L_hpd\ns_cbranch_vccz L_hpd\ns_sleep 16\ns_branch L_hp')
    a('L_hpd:')
    stamp(a, P, 'mw1')
    tag_strip(a, range(16, 20), 7)
    for i in range(4): xgroup(a, 'v_add_f32', 16 + i, 24 + i)
    unpack(a, 20, 24, 2)
    a('v_cvt_pk_bf16_f32 v20, v16, v17\nv_cvt_pk_bf16_f32 v21, v18, v19')
    unpack(a, 20, 16, 2)
    for i in range(4): a(f'v_add_f32 v{16+i}, v{16+i}, v{24+i}')
    a('v_cvt_pk_bf16_f32 v20, v16, v17\nv_cvt_pk_bf16_f32 v21, v18, v19')
    unpack(a, 20, 16, 2)
    k0 = 2 * 0.7978845608028654 * math.log2(math.e); k1 = k0 * 0.044715
    a(f's_mov_b32 s62, {hex(f2u(-k1))}\nv_mov_b32 v15, {hex(f2u(-k0))}')
    for i in range(4): a(f'v_mul_f32 v{24+i}, v{16+i}, v{16+i}')
    for i in range(4): a(f'v_fma_f32 v{24+i}, v{24+i}, s62, v15')
    for i in range(4): a(f'v_mul_f32 v{24+i}, v{24+i}, v{16+i}')
    for i in range(4): a(f'v_exp_f32 v{24+i}, v{24+i}')
    for i in range(4): a(f'v_add_f32 v{24+i}, 1.0, v{24+i}')
    for i in range(4): a(f'v_rcp_f32 v{24+i}, v{24+i}')
    for i in range(4): a(f'v_mul_f32 v{16+i}, v{16+i}, v{24+i}')
    a('v_cvt_pk_bf16_f32 v20, v16, v17\nv_cvt_pk_bf16_f32 v21, v18, v19')
    a('v_lshlrev_b32 v3, 2, v9')
    for n, g0 in enumerate((0, 4, 6, 10)):
        a(f'v_add_u32 v22, {4*g0}, v3\nds_bpermute_b32 v{24+2*n}, v22, v20\nds_bpermute_b32 v{25+2*n}, v22, v21')
    a('s_mov_b32 s62, -1\ns_mov_b32 s63, 0\ns_waitcnt lgkmcnt(0)')
    a('v_cndmask_b32 v28, v28, 0, s[62:63]\nv_cndmask_b32 v29, v29, 0, s[62:63]')
    TA, D2 = 132, 20
    a('v_mov_b32 v12, v24\nv_mov_b32 v13, v25\nv_mov_b32 v14, v26\nv_mov_b32 v15, v27\nv_mov_b32 v16, v28\nv_mov_b32 v17, v29\nv_mov_b32 v18, v30\nv_mov_b32 v19, v31')
    def gemv(c):
        def rd(n):
            r = TA + 4 * (n % 6); o = n * 32
            a(f'ds_read_b64_tr_b16 v[{r}:{r+1}], v6 offset:{o}\nds_read_b64_tr_b16 v[{r+2}:{r+3}], v6 offset:{o+14336}')
        for n in range(4): rd(n)
        for n in range(28):
            if n + 4 < 28: rd(n + 4)
            a(f's_waitcnt lgkmcnt({2*min(4, 27-n)})')
            r = TA + 4 * (n % 6); d = D2 + 4 * n
            a(f'v_mfma_f32_16x16x32_bf16 v[{d}:{d+3}], v[{12+4*c}:{15+4*c}], v[{r}:{r+3}], ' + ('0' if c == 0 else f'v[{d}:{d+3}]'))
    gemv(0)
    a(f's_add_u32 s60, s60, {24*896}')
    srd(a, 56, 20, 's60', 28672)
    dma_loop(a, 'L_w2b', 28, P['DM'], 2, 1024, L_MS, P['mpol'])
    a('s_waitcnt vmcnt(0)')
    stamp(a, P, 'mw2')
    gemv(1)
    a(f'v_lshlrev_b32 v3, 2, v0\nv_add_u32 v3, {L_MS}, v3\ns_mov_b64 exec, 0xffff')
    for n in range(28): a(f'ds_write_b32 v3, v{D2+4*n} offset:{n*64}')
    a('s_mov_b64 exec, -1\ns_waitcnt lgkmcnt(0)')
    stamp(a, P, 'mend')
    stamp_store(a, P, stamp_items(P, M_PTS))
    a('s_endpgm')

def body(P):
    a = Asm()
    a('s_cmp_ge_u32 s2, 256\ns_cbranch_scc1 L_end')
    a('s_load_dwordx16 s[4:19], s[0:1], 0\ns_load_dwordx8 s[20:27], s[0:1], 64\ns_load_dwordx2 s[28:29], s[0:1], 96')
    a('v_lshrrev_b32 v1, 6, v0\nv_and_b32 v0, 63, v0\nv_readfirstlane_b32 s30, v1')
    a('s_and_b32 s31, s2, 7\ns_lshr_b32 s32, s2, 3')
    if P['bmap'] == 0: a('s_lshr_b32 s33, s32, 2\ns_and_b32 s34, s32, 3')
    else: a('s_and_b32 s33, s32, 7\ns_lshr_b32 s34, s32, 3')
    a('s_lshl_b32 s37, s31, 2\ns_add_u32 s34, s34, s37\ns_lshl_b32 s38, s33, 5\ns_add_u32 s38, s38, s34')
    stamp_init(a, P)
    a('s_cmp_lg_u32 s30, 0\ns_cbranch_scc1 L_stream')
    helper(a, P)
    mlp(a, P)
    streamer(a, P)
    a('L_end:\ns_endpgm')
    txt, n = a.text()
    return txt, n

def vgprs(P): return max(56 + 4 * P['R'] + 3, 156)

def kernel(P):
    txt, n = body(P)
    nm = P['name']
    txt = txt.replace('L_', f'L{nm[-24:]}_') if P.get('uniq') else txt
    return txt

def final_file(P):
    ref = open(f'cdna_kernels/{NAME}.s.ref').read()
    head = ref[:ref.index('; Override launch')]
    nm = P['name']; vg = vgprs(P)
    return head + f'''; Single launch: 256 workgroups x (8 streaming waves + 2 helper waves). Generated by gen/gen.py.
; @launch grid=(256,1,1) block=({block(P)},1,1) lds={LDS_BYTES}
.amdgcn_target "amdgcn-amd-amdhsa--gfx950"
.text
.globl {nm}
.p2align 8
.type {nm},@function
{nm}:
{kernel(P)}
.section .rodata,"a"
.p2align 6
.amdhsa_kernel {nm}
  .amdhsa_next_free_vgpr {vg}
  .amdhsa_next_free_sgpr 102
  .amdhsa_accum_offset {(vg+3)//4*4}
  .amdhsa_group_segment_fixed_size 0
  .amdhsa_kernarg_size 104
  .amdhsa_user_sgpr_count 2
  .amdhsa_user_sgpr_kernarg_segment_ptr 1
  .amdhsa_system_sgpr_workgroup_id_x 1
.end_amdhsa_kernel
'''

if __name__ == '__main__':
    P = dict(DEF)
    out = f'cdna_kernels/{NAME}.s'
    for kv in sys.argv[1:]:
        k, v = kv.split('=', 1)
        if k == 'out': out = v
        else: P[k] = type(DEF[k])(v) if not isinstance(DEF[k], bool) else v == '1'
    open(out, 'w').write(final_file(P))
    print('wrote', out)
```

```python
import sys, math, struct
from asmlib import Asm

NAME = 'parallel_sum__gqa_block_cached__mixer_channel_mlp__decode'
def f2u(x): return struct.unpack('<I', struct.pack('<f', x))[0]

XBUF, MLX, OBUF, PBUF, HBUF, QBUF, WS_USED = 0x8000, 0x10000, 0x20000, 0xA0000, 0x120000, 0x160000, 0x1E0000
TMASK = 0x3FF
QMASK = 0xFF
STAMP_OFF = 536870912 - (1 << 20)
WSTR = 912; NWO = 114
L_WO = 0; L_WQ = 0
L_PART = 128 * WSTR
L_MS = L_PART + 16384
L_Q = L_MS + 28672
L_ML = L_Q + 1024
L_F = L_ML + 128
L_O = L_F + 64
L_TAG = L_O + 256
LDS_BYTES = L_TAG + 16
OOB = 0x7F000000
C_EXP = math.log2(math.e) / 16.0

DEF = dict(R=24, D=3, D0=3, DH=4, DM=3, n1=3, n1r=2, cpf=1, tpf=1, kpat='', vpat='', loc=1, n2=80, xretry=1, Dend=0, nend=16, gsl=0, fsl=0, fthr=24, fsl2=24, nornd=0, nom=0, pol='nt', wpol='', xpol='', opol='', mpol='', diag=False, budget=2,
           name=NAME + '_kernel', spin=1 << 16, hold=0, bmap=1, pts='start+qpub+B1+Kdone+hend+B2+end')
def block(P): return 640

def srd(a, n, base, off, size):
    if off is None:
        a(f's_mov_b32 s{n}, s{base}\ns_mov_b32 s{n+1}, s{base+1}')
    else:
        a(f's_add_u32 s{n}, s{base}, {off}\ns_addc_u32 s{n+1}, s{base+1}, 0')
    a(f's_mov_b32 s{n+2}, {size}\ns_mov_b32 s{n+3}, 0x20000')

def wave_sum(a, v, s):
    for m in ('row_shr:1', 'row_shr:2', 'row_shr:4', 'row_shr:8'):
        a(f'v_add_f32_dpp v{v}, v{v}, v{v} {m} row_mask:0xf bank_mask:0xf')
    a(f'v_add_f32_dpp v{v}, v{v}, v{v} row_bcast:15 row_mask:0xa bank_mask:0xf')
    a(f'v_add_f32_dpp v{v}, v{v}, v{v} row_bcast:31 row_mask:0xc bank_mask:0xf')
    a(f'v_readlane_b32 s{s}, v{v}, 63')

def rnd_bf16(a, v):
    a(f'v_cvt_pk_bf16_f32 v{v}, v{v}, v{v}\nv_and_b32 v{v}, 0xffff0000, v{v}')

def unpack(a, src, dst, n):
    for i in range(n):
        a(f'v_and_b32 v{dst+2*i+1}, 0xffff0000, v{src+i}\nv_lshlrev_b32 v{dst+2*i}, 16, v{src+i}')

def row_sum(a, v, t):
    a(f'v_add_f32_dpp v{v}, v{v}, v{v} row_ror:8 row_mask:0xf bank_mask:0xf')
    xgroup(a, 'v_add_f32', v, t)

def layernorm(a, X, F, T, nq=28):
    pr = lambda r: f'v[{r}:{r+1}]'
    unpack(a, X, F, 28)
    a(f'v_pk_add_f32 {pr(T)}, {pr(F)}, {pr(F+2)}\nv_pk_add_f32 {pr(T+2)}, {pr(F+4)}, {pr(F+6)}')
    for i in range(4, 28): a(f'v_pk_add_f32 {pr(T+2*(i&1))}, {pr(T+2*(i&1))}, {pr(F+2*i)}')
    a(f'v_pk_add_f32 {pr(T)}, {pr(T)}, {pr(T+2)}\nv_add_f32 v{T}, v{T}, v{T+1}')
    row_sum(a, T, T + 1)
    a(f'v_mul_f32 v{T}, {hex(f2u(-1/448))}, v{T}\nv_mov_b32 v{T+1}, v{T}')
    for i in range(28):
        d = T + 4 + 2 * (i & 1)
        a(f'v_pk_add_f32 {pr(d)}, {pr(F+2*i)}, {pr(T)}')
        if i == 0: a(f'v_pk_mul_f32 {pr(T+2)}, {pr(d)}, {pr(d)}')
        else: a(f'v_pk_fma_f32 {pr(T+2)}, {pr(d)}, {pr(d)}, {pr(T+2)}')
    a(f'v_add_f32 v{T+2}, v{T+2}, v{T+3}')
    row_sum(a, T + 2, T + 3)
    rnd_bf16(a, T)
    a(f'v_mov_b32 v{T+1}, v{T}\nv_mul_f32 v{T+2}, {hex(f2u(1/448))}, v{T+2}')
    rnd_bf16(a, T + 2)
    a(f'v_add_f32 v{T+2}, {hex(f2u(1e-5))}, v{T+2}')
    rnd_bf16(a, T + 2)
    a(f'v_sqrt_f32 v{T+2}, v{T+2}')
    for i in range(nq): a(f'v_pk_add_f32 {pr(F+2*i)}, {pr(F+2*i)}, {pr(T)}')
    rnd_bf16(a, T + 2)
    a(f'v_rcp_f32 v{T+2}, v{T+2}')
    for i in range(nq): a(f'v_cvt_pk_bf16_f32 v{X+i}, v{F+2*i}, v{F+2*i+1}')
    a(f'v_mov_b32 v{T+3}, v{T+2}')
    unpack(a, X, F, nq)
    for i in range(nq): a(f'v_pk_mul_f32 {pr(F+2*i)}, {pr(F+2*i)}, {pr(T+2)}')
    for i in range(nq): a(f'v_cvt_pk_bf16_f32 v{X+i}, v{F+2*i}, v{F+2*i+1}')

def xgroup(a, op, v, t):
    a(f'v_mov_b32 v{t}, v{v}\nv_permlane16_swap_b32 v{v}, v{t}\n{op} v{v}, v{v}, v{t}')
    a(f'v_mov_b32 v{t}, v{v}\nv_permlane32_swap_b32 v{v}, v{t}\n{op} v{v}, v{v}, v{t}')

S_PTS = ['start', 's8', 's44', 's96', 'skarg', 'siss0', 'pst', 'g2ok', 'sB1a', 'sB1', 'Kdone', 'Vlast', 'B2', 'ost', 'gok', 'B3', 'end']
M_PTS = ['mstart', 'mw1', 'mw2', 'mend']
H_PTS = ['hstart', 'locv', 'xst', 'xid', 'hpub', 'wob', 'qack', 'xland', 'lndone', 'wtpub', 'wtok', 'hkarg', 'wqiss', 'hB0', 'wqland', 'qpub', 'qp1', 'qok', 'B1', 'wodone', 'mlpub', 'mlok', 'hend']
def pts(P): return P['pts'].split('+') if isinstance(P['pts'], str) else P['pts']
def stamp(a, P, name):
    if P['diag'] and name in pts(P):
        reg = 88 + 2 * pts(P).index(name)
        a(f's_memrealtime s[{reg}:{reg+1}]\ns_waitcnt lgkmcnt(0)')
def stamp_items(P, lst): return [(i, 88 + 2 * i) for i, n in enumerate(pts(P)) if n in lst]
def stamp_init(a, P):
    if P['diag']:
        for i in range(7): a(f's_mov_b64 s[{88+2*i}:{89+2*i}], 0')

def stamp_store(a, P, items, hw=False):
    if not P['diag']: return
    a('s_waitcnt lgkmcnt(0)')
    a(f's_lshl_b32 s37, s2, 6\ns_add_u32 s37, s37, {STAMP_OFF}')
    srd(a, 40, 28, 's37', 64)
    a('s_mov_b64 exec, 1\nv_mov_b32 v1, 0')
    for idx, reg in items:
        a(f'v_mov_b32 v2, s{reg}\nv_mov_b32 v3, s{reg+1}\nbuffer_store_dwordx2 v[2:3], v1, s[40:43], 0 offen offset:{idx*8}')
    if hw:
        a('s_getreg_b32 s38, hwreg(HW_REG_XCC_ID)\ns_getreg_b32 s39, hwreg(HW_REG_HW_ID)')
        a('v_mov_b32 v2, s38\nv_mov_b32 v3, s39\nbuffer_store_dwordx2 v[2:3], v1, s[40:43], 0 offen offset:56')
    a('s_mov_b64 exec, -1')

def q_wait(a, P, lab):
    a(f's_mov_b32 s82, {TMASK}\nv_mov_b32 v5, {L_TAG}\ns_mov_b32 s86, {P["spin"]*16}')
    a(f'{lab}:\nds_read_b64 v[6:7], v5\ns_waitcnt lgkmcnt(0)\nv_cmp_eq_u32 vcc, -1, v7')
    a(f's_sub_u32 s86, s86, 1\ns_cbranch_scc1 {lab}d\ns_cbranch_vccz {lab}d\ns_sleep 2\ns_branch {lab}\n{lab}d:')
    a(f'v_readfirstlane_b32 s84, v6\nv_readfirstlane_b32 s87, v7\ns_and_b32 s85, s84, {TMASK}')

def streamer(a, P):
    a('L_stream:\ns_cmp_eq_u32 s30, 9\ns_cbranch_scc1 L_mlp\ns_sub_u32 s30, s30, 1')
    R, D, D0, pol = P['R'], P['D'], P['D0'], P['pol']
    Q, S, DT, RING = 8, 16, 48, 56
    slot = lambda i: RING + 4 * (i % R)
    sl = lambda i: f'v[{slot(i)}:{slot(i)+3}]'
    stamp(a, P, 'start')
    if P['hold']: a('s_memrealtime s[98:99]')
    a('v_and_b32 v1, 3, v0\nv_lshlrev_b32 v1, 4, v1\nv_bfe_u32 v3, v0, 2, 2\nv_lshl_add_u32 v1, v3, 9, v1')
    a('v_lshrrev_b32 v3, 4, v0\nv_lshl_add_u32 v1, v3, 6, v1')
    a('v_and_b32 v2, 15, v0\nv_lshlrev_b32 v2, 4, v2\nv_lshl_add_u32 v2, v3, 9, v2')
    a('s_lshl_b32 s37, s38, 19\ns_lshl_b32 s39, s30, 16\ns_add_u32 s37, s37, s39')
    a('s_add_u32 s35, s30, s32\ns_and_b32 s35, s35, 7\ns_lshl_b32 s35, s35, 12')
    a('s_waitcnt lgkmcnt(0)')
    stamp(a, P, 'skarg')
    srd(a, 40, 6, 's37', 65536)
    srd(a, 44, 8, 's37', 65536)
    def issue(i):
        j = i % 64; G, t = j >> 1, j & 1
        if t == 0: a(f's_xor_b32 s36, s35, {G*2048}')
        r, va = ('s[40:43]', 'v1') if i < 64 else ('s[44:47]', 'v2')
        a(f'buffer_load_dwordx4 {sl(i)}, {va}, {r}, s36 offen offset:{t*256} {pol}')
    for i in range(D0): issue(i)
    stamp(a, P, 'siss0')
    a('s_barrier')
    srd(a, 52, 28, None, WS_USED)
    for e in range(2):
        for r in range(4):
            m16 = (0x11 << r) << (8 * e); m32 = m16 | (m16 << 16)
            a(f's_mov_b32 s{64+2*(4*e+r)}, {hex(m32)}\ns_mov_b32 s{65+2*(4*e+r)}, {hex(m32)}')
    a('s_mov_b32 s80, 0x05040100\ns_mov_b32 s81, 0x07060302')
    for i in range(D0, R):
        a(f's_waitcnt vmcnt({D-1})'); issue(i)
        if i == 8 + D: stamp(a, P, 's8')
    a('v_bfe_u32 v3, v0, 2, 1\nv_lshlrev_b32 v3, 9, v3\nv_and_b32 v4, 3, v0\nv_lshl_add_u32 v3, v4, 4, v3')
    a(f'v_lshrrev_b32 v4, 4, v0\nv_lshl_add_u32 v3, v4, 6, v3\nv_add_u32 v3, {L_Q}, v3')
    stamp(a, P, 'sB1a')
    q_wait(a, P, 'L_sq')
    stamp(a, P, 'sB1')
    a(f'ds_read_b128 v[{Q}:{Q+3}], v3\nds_read_b128 v[{Q+4}:{Q+7}], v3 offset:256')
    a(f'v_mov_b32 v4, 0xff800000\ns_mov_b32 s83, {hex(f2u(C_EXP))}\ns_waitcnt lgkmcnt(0)')
    chunks = []
    def kdpp(G):
        d = DT + 4 * (G & 1)
        a(f'v_mov_b32_dpp v{S+G}, v{d} quad_perm:[0,0,0,0] row_mask:0xf bank_mask:0xf')
        for r in range(1, 4):
            a(f'v_add_f32_dpp v{S+G}, v{d+r}, v{S+G} quad_perm:[{r},{r},{r},{r}] row_mask:0xf bank_mask:0xf')
        if G & 1:
            if not P['nornd']: a(f'v_cvt_pk_bf16_f32 v5, v{S+G-1}, v{S+G}\nv_lshlrev_b32 v{S+G-1}, 16, v5\nv_and_b32 v{S+G}, 0xffff0000, v5')
            a(f'v_max3_f32 v4, v4, v{S+G-1}, v{S+G}')
    def kchunk(G):
        def fn():
            d = DT + 4 * (G & 1)
            a(f'v_mfma_f32_16x16x32_bf16 v[{d}:{d+3}], {sl(2*G)}, v[{Q}:{Q+3}], 0')
            a(f'v_mfma_f32_16x16x32_bf16 v[{d}:{d+3}], {sl(2*G+1)}, v[{Q+4}:{Q+7}], v[{d}:{d+3}]')
            if G: kdpp(G - 1)
        return fn
    for G in range(32): chunks.append((2 * G + 1, [2 * G, 2 * G + 1], kchunk(G)))
    def sm0():
        kdpp(31)
        xgroup(a, 'v_max_f32', 4, 5)
        a('v_mul_f32 v6, s83, v4\nv_mov_b32 v7, 0')
        stamp(a, P, 'Kdone')
    chunks.append((63, [], sm0))
    def sm(k):
        def fn():
            for g in range(8 * k, 8 * k + 8): a(f'v_fma_f32 v{S+g}, v{S+g}, s83, -v6')
            for g in range(8 * k, 8 * k + 8): a(f'v_exp_f32 v{S+g}, v{S+g}')
            for g in range(8 * k, 8 * k + 8): a(f'v_add_f32 v7, v7, v{S+g}')
            for i in range(4 * k, 4 * k + 4): a(f'v_cvt_pk_bf16_f32 v{S+i}, v{S+2*i}, v{S+2*i+1}')
        return fn
    for k in range(4): chunks.append((63, [], sm(k)))
    def sm_end():
        xgroup(a, 'v_add_f32', 7, 5)
        a(f'v_mov_b32 v5, v7\nv_bfe_u32 v3, v0, 2, 1\nv_lshlrev_b32 v3, 6, v3\ns_lshl_b32 s37, s30, 3\ns_add_u32 s37, s37, {L_ML}\nv_add_u32 v3, s37, v3')
        a('s_mov_b64 exec, 0x11\nds_write_b64 v3, v[4:5]\ns_mov_b64 exec, -1')
    chunks.append((63, [], sm_end))
    AT = [32, 36]; PT = [40, 44, 8, 12]; ACC = DT
    cnt = [0, 0]
    def vchunk(T, e, r):
        def fn():
            A = AT[cnt[0] & 1]; cnt[0] += 1
            mk = 64 + 2 * (4 * e + r)
            for p in range(4): a(f'v_cndmask_b32 v{A+p}, 0, v{S+4*T+p}, s[{mk}:{mk+1}]')
            for jj in range(2):
                j = 4 * jj + r; m, hh = j >> 1, j & 1
                B = PT[cnt[1] & 3]; cnt[1] += 1
                for p in range(4):
                    ev = 64 + 16 * T + 2 * (2 * p) + e; od = ev + 2
                    a(f'v_perm_b32 v{B+p}, v{slot(od)+m}, v{slot(ev)+m}, s{80+hh}')
                c = '0' if (T == 0 and e == 0 and r == 0) else f'v[{ACC+4*jj}:{ACC+4*jj+3}]'
                a(f'v_mfma_f32_16x16x32_bf16 v[{ACC+4*jj}:{ACC+4*jj+3}], v[{A}:{A+3}], v[{B}:{B+3}], {c}')
        return fn
    for T in range(4):
        for e in range(2):
            for r in range(4):
                fr = [64 + 16 * T + 2 * g + e for g in range(8)] if r == 3 else []
                chunks.append((64 + 16 * T + 14 + e, fr, vchunk(T, e, r)))
    freed = set(); ci = 0; landed = -1
    def run_chunk(issued):
        nonlocal ci, landed
        nd, fr, fn = chunks[ci]; ci += 1
        if nd > landed:
            a(f's_waitcnt vmcnt({issued-1-nd})'); landed = nd
        fn(); freed.update(fr)
    for i in range(R, 128):
        while (i - R) not in freed: run_chunk(i)
        Di = P['Dend'] if (P['Dend'] and i >= 128 - P['nend']) else D
        pat = P['kpat'] if i < 64 else P['vpat']
        if pat and not (P['Dend'] and i >= 128 - P['nend']): Di = int(pat[i % len(pat)])
        if i - Di > landed:
            a(f's_waitcnt vmcnt({Di-1})'); landed = i - Di
        issue(i)
        if i == 44 + D: stamp(a, P, 's44')
        if i == 96 + D: stamp(a, P, 's96')
        n = 0
        while ci < len(chunks) and chunks[ci][0] <= landed and n < P['budget']:
            run_chunk(i + 1); n += 1
    def tail_addr():
        a(f'v_lshrrev_b32 v3, 5, v0\nv_lshlrev_b32 v3, 9, v3\nv_bfe_u32 v4, v0, 4, 1\nv_lshl_add_u32 v3, v4, 10, v3')
        a(f'v_and_b32 v4, 15, v0\nv_lshl_add_u32 v3, v4, 5, v3\ns_lshl_b32 s37, s30, 11\ns_add_u32 s37, s37, {L_PART}\nv_add_u32 v3, s37, v3')
        a(f's_lshl_b32 s37, s30, 8\ns_add_u32 s37, s37, {L_PART}\nv_lshl_add_u32 v4, v0, 2, s37')
        a(f's_lshr_b32 s37, s30, 2\ns_lshl_b32 s37, s37, 5\ns_add_u32 s37, s37, {L_F}\nv_mov_b32 v5, s37')
        a(f'v_lshlrev_b32 v6, 2, v0\ns_lshl_b32 s60, s38, 11\ns_lshl_b32 s37, s30, 8\ns_add_u32 s60, s60, s37\ns_add_u32 s60, s60, {OBUF}')
        a(f'v_lshrrev_b32 v1, 4, v0\nv_bfe_u32 v7, v0, 2, 2\nv_and_b32 v8, 3, v0')
        a(f'v_lshl_add_u32 v7, v1, 2, v7\nv_mul_u32_u24 v7, {WSTR}, v7\nv_lshl_add_u32 v7, v8, 3, v7\ns_lshl_b32 s37, s30, 7\nv_add_u32 v7, s37, v7')
        a(f'v_and_b32 v2, 15, v0\nv_lshlrev_b32 v2, 4, v2\nv_lshl_add_u32 v2, v1, 11, v2')
        a(f's_and_b32 s61, s38, 0xfc\ns_lshl_b32 s61, s61, 11\ns_and_b32 s37, s38, 3\ns_lshl_b32 s37, s37, 9\ns_add_u32 s61, s61, s37\ns_add_u32 s61, s61, {OBUF}')
    while ci < len(chunks) - 8: run_chunk(128)
    tail_addr()
    XR = RING + 4 * R
    a(f'v_lshl_add_u32 v{XR+2}, v8, 2, v1\nv_lshlrev_b32 v{XR+2}, 1, v{XR+2}\ns_lshl_b32 s39, s34, 5')
    srd(a, 44, 22, None, 896)
    a(f'buffer_load_ushort v{XR}, v{XR+2}, s[44:47], s39 offen')
    srd(a, 40, 4, None, 7168)
    a(f's_mul_i32 s37, s33, 896\ns_add_u32 s63, s37, s39\nbuffer_load_ushort v{XR+1}, v{XR+2}, s[40:43], s63 offen')
    srd(a, 44, 24, None, 7168)
    while ci < len(chunks): run_chunk(130)
    stamp(a, P, 'Vlast')
    a('L_tail:')
    a(f'ds_write_b128 v3, v[{ACC}:{ACC+3}]\nds_write_b128 v3, v[{ACC+4}:{ACC+7}] offset:16\ns_waitcnt lgkmcnt(0)\ns_barrier')
    stamp(a, P, 'B2')
    for w in range(4): a(f'ds_read2st64_b32 v[{16+2*w}:{17+2*w}], v4 offset0:{16*w} offset1:{16*w+8}')
    a(f'ds_read_b128 v[24:27], v5\nds_read_b128 v[28:31], v5 offset:16\ns_waitcnt lgkmcnt(0)')
    a('v_mul_f32 v32, v16, v24\nv_mul_f32 v33, v17, v25')
    for w in range(2, 8): a(f'v_fmac_f32 v{32+(w&1)}, v{16+w}, v{24+w}')
    a('v_mov_b32 v9, s85\nv_add_f32 v32, v32, v33\nv_bfi_b32 v32, s82, v9, v32')
    hand_store(a, 'buffer_store_dword v32, v6, s[52:55], s60 offen')
    stamp(a, P, 'ost')
    a(f's_mov_b32 s86, {P["spin"]}')
    a('s_cmp_eq_u32 s30, 7\ns_cbranch_scc1 L_fin')
    BF, AF, DR = 56, 16, 32
    a(f'v_add_u32 v8, {64*WSTR}, v7')
    for i in range(4):
        for jj in range(4):
            b = BF + 16 * i + 4 * jj; o = (jj & 1) * 32 * WSTR + i * 32; va = 'v8' if jj >= 2 else 'v7'
            a(f'ds_read_b64_tr_b16 v[{b}:{b+1}], {va} offset:{o}\nds_read_b64_tr_b16 v[{b+2}:{b+3}], {va} offset:{o+16*WSTR}')
    a(f's_lshl_b32 s37, s30, 8\ns_add_u32 s39, s37, {L_MS}\nv_add_u32 v10, s39, v6\nds_read_b32 v10, v10')
    a(f's_lshl_b32 s60, s38, 11\ns_add_u32 s60, s60, s37\ns_add_u32 s60, s60, {PBUF}')
    a(f'v_lshlrev_b32 v5, 3, v1\nv_add_u32 v5, {L_O}, v5')
    a('s_mov_b32 s64, 0xffff0000\ns_mov_b32 s65, 0\ns_mov_b32 s66, 0\ns_mov_b32 s67, 0xffff\ns_mov_b32 s68, 0\ns_mov_b32 s69, 0xffff0000')
    a('s_waitcnt lgkmcnt(0)\ns_barrier')
    for jj in range(4): a(f'ds_read_b64 v[{AF+4*jj}:{AF+4*jj+1}], v5 offset:{jj*64}\nds_read_b64 v[{AF+4*jj+2}:{AF+4*jj+3}], v5 offset:{jj*64+32}')
    stamp(a, P, 'B3')
    for jj in range(4):
        a(f's_waitcnt lgkmcnt({6-2*jj})')
        for i in range(4):
            b = BF + 16 * i + 4 * jj; d = DR + 4 * i
            a(f'v_mfma_f32_16x16x32_bf16 v[{d}:{d+3}], v[{AF+4*jj}:{AF+4*jj+3}], v[{b}:{b+3}], ' + ('0' if jj == 0 else f'v[{d}:{d+3}]'))
    for i in range(1, 4): a(f'v_cndmask_b32 v{DR}, v{DR}, v{DR+4*i}, s[{62+2*i}:{63+2*i}]')
    a(f'v_add_f32 v8, v{DR}, v10\nv_bfi_b32 v8, s82, v9, v8')
    a('buffer_store_dword v8, v6, s[52:55], s60 offen sc1')
    stamp(a, P, 'pst')
    if P['diag']:
        a('s_cmp_lg_u32 s30, 0\ns_cbranch_scc1 L_end')
        stamp_store(a, P, stamp_items(P, [x for x in S_PTS if x not in ('gok', 'g2ok', 'end')]), hw=True)
    a('s_endpgm')
    a('L_fin:')
    a(f'v_and_b32 v4, 15, v0\nv_lshlrev_b32 v4, 3, v4\nv_and_b32 v5, 1, v1\nv_lshl_add_u32 v4, v5, 2, v4\nv_lshrrev_b32 v5, 1, v1\nv_lshl_add_u32 v4, v5, 7, v4\nv_add_u32 v5, {L_O}, v4')
    a('L_gpoll:')
    a('buffer_load_dwordx4 v[16:19], v2, s[52:55], s61 offen sc1\nbuffer_load_dwordx4 v[20:23], v2, s[52:55], s61 offen offset:256 sc1')
    a('s_waitcnt vmcnt(0)')
    tag_check(a, range(16, 24), 10, 11, 4)
    a('s_sub_u32 s86, s86, 1\ns_cbranch_scc1 L_gdone\ns_cbranch_vccnz L_gpoll')
    a('L_gdone:')
    stamp(a, P, 'gok')
    for i in range(8): a(f'v_and_b32 v{16+i}, {hex(0xffffffff ^ TMASK)}, v{16+i}')
    for p in (16, 17, 20, 21): a(f'v_permlane16_swap_b32 v{p}, v{p+2}')
    for p in (16, 17, 20, 21): a(f'v_add_f32 v{p}, v{p}, v{p+2}')
    a('v_permlane32_swap_b32 v16, v20\nv_permlane32_swap_b32 v17, v21\nv_add_f32 v16, v16, v20\nv_add_f32 v17, v17, v21')
    a('v_cvt_pk_bf16_f32 v16, v16, v17\nds_write_b32 v5, v16\ns_waitcnt lgkmcnt(0)\ns_barrier')
    a('s_cmp_lt_u32 s34, 28\ns_cbranch_scc0 L_end')
    a('v_and_b32 v8, 3, v0')
    a(f'v_lshrrev_b32 v2, 2, v0\nv_lshlrev_b32 v2, 11, v2\nv_lshl_add_u32 v2, v8, 4, v2\nv_add_u32 v3, 32768, v2\nv_mov_b32 v7, 0x200')
    a(f's_lshl_b32 s61, s33, 16\ns_lshl_b32 s37, s34, 6\ns_add_u32 s61, s61, s37\ns_add_u32 s61, s61, {PBUF}')
    a(f'v_lshlrev_b32 v24, 16, v{XR}\nv_lshlrev_b32 v25, 16, v{XR+1}\nv_add_f32 v24, v24, v25')
    a('L_fpoll:')
    a('buffer_load_dwordx4 v[16:19], v2, s[52:55], s61 offen sc1\nbuffer_load_dwordx4 v[20:23], v3, s[52:55], s61 offen sc1')
    a('s_waitcnt vmcnt(0)')
    tag_check(a, range(16, 24), 8, 9, 10)
    a('s_sub_u32 s86, s86, 1\ns_cbranch_scc1 L_fdone\ns_cbranch_vccz L_fdone')
    if P['fthr']:
        a(f's_bcnt1_i32_b64 s37, vcc\ns_cmp_lt_u32 s37, {P["fthr"]}\ns_cbranch_scc1 L_fpoll\ns_sleep {P["fsl2"]}')
    if P['fsl']: a(f's_sleep {P["fsl"]}')
    a('s_branch L_fpoll')
    a('L_fdone:')
    stamp(a, P, 'g2ok')
    tag_strip(a, range(16, 24), 7)
    for i in range(4): a(f'v_add_f32 v{16+i}, v{16+i}, v{20+i}')
    a('v_permlane16_swap_b32 v16, v17\nv_permlane16_swap_b32 v18, v19\nv_add_f32 v16, v16, v17\nv_add_f32 v18, v18, v19')
    a('v_permlane32_swap_b32 v16, v18\nv_add_f32 v16, v16, v18')
    a('v_add_f32_dpp v16, v16, v16 row_ror:4 row_mask:0xf bank_mask:0xf')
    a('v_add_f32_dpp v16, v16, v16 row_ror:8 row_mask:0xf bank_mask:0xf')
    a('v_add_f32 v16, v16, v24\nv_cvt_pk_bf16_f32 v16, v16, v16')
    a('s_mov_b32 exec_lo, 0x000f000f\ns_mov_b32 exec_hi, 0x000f000f')
    a(f'buffer_store_short v16, v{XR+2}, s[44:47], s63 offen')
    a('s_cmp_lg_u32 s38, 0\ns_cbranch_scc1 L_noep')
    a('v_mov_b32 v8, 0\nv_mov_b32 v9, s84\ns_mov_b64 exec, 1\nbuffer_store_dword v9, v8, s[52:55], 0 offen sc1')
    a('L_noep:')
    if P['hold']:
        a(f'L_hold:\ns_memrealtime s[96:97]\ns_waitcnt lgkmcnt(0)\ns_sub_u32 s96, s96, s98\ns_cmp_lt_u32 s96, {P["hold"]}\ns_cbranch_scc1 L_hold')
    if P['diag']:
        a('s_mov_b64 exec, -1\ns_waitcnt vmcnt(0)')
        stamp(a, P, 'end')
        stamp_store(a, P, stamp_items(P, ['gok', 'g2ok', 'end']))
    a('s_endpgm')

def dma_loop(a, lab, n, depth, vaddr, sstep, lds0, pol):
    a(f's_mov_b32 s36, 0\ns_mov_b32 s62, {lds0}\ns_mov_b32 s63, {n}')
    a(f'{lab}:')
    a(f's_mov_b32 m0, s62\ns_waitcnt vmcnt({depth-1})')
    a(f'buffer_load_dwordx4 v{vaddr}, s[56:59], s36 offen {pol} lds')
    a(f's_add_u32 s36, s36, {sstep}\ns_add_u32 s62, s62, 1024\ns_sub_u32 s63, s63, 1\ns_cmp_lg_u32 s63, 0\ns_cbranch_scc1 {lab}')

def wo_loop(a, P, lab):
    a(f's_min_u32 s63, s63, {NWO*1024}')
    a(f's_cmp_lt_u32 s62, s63\ns_cbranch_scc0 {lab}x')
    a(f'{lab}:')
    a(f's_mov_b32 m0, s62\ns_waitcnt vmcnt({P["DH"]-1})')
    a(f'buffer_load_dwordx4 v1, s[56:59], 0 offen {P["opol"]} lds')
    a('v_add_u32 v11, 7, v11\nv_cmp_le_u32 vcc, 57, v11\nv_add_u32 v1, 1008, v1\ns_add_u32 s62, s62, 1024')
    a('v_subrev_u32 v3, 57, v11\nv_add_u32 v15, -16, v1\nv_cndmask_b32 v11, v11, v3, vcc\nv_cndmask_b32 v1, v1, v15, vcc')
    a(f's_cmp_lt_u32 s62, s63\ns_cbranch_scc1 {lab}')
    a(f'{lab}x:')

XF, FF, TT = 16, 44, 100
def x_addr(a):
    a('v_and_b32 v10, 15, v0\nv_lshrrev_b32 v9, 4, v0\nv_and_b32 v8, 7, v0\nv_mul_u32_u24 v8, 896, v8')
    a('v_bfe_u32 v3, v0, 3, 1\nv_mul_u32_u24 v3, 448, v3\nv_lshl_add_u32 v8, v9, 4, v8\nv_add_u32 v8, v8, v3')
def x_load(a, P):
    srd(a, 48, 4, None, 7168)
    for ks in range(7): a(f'buffer_load_dwordx4 v[{XF+4*ks}:{XF+4*ks+3}], v8, s[48:51], 0 offen offset:{ks*64} {P["xpol"]}')
def tag_check(a, regs, t0, t1, acc, mask=TMASK):
    for i in range(0, len(regs), 2):
        a(f'v_xor_b32 v{t0}, s85, v{regs[i]}\nv_xor_b32 v{t1}, s85, v{regs[i+1]}')
        a(f'v_or_b32 v{acc}, v{t0}, v{t1}' if i == 0 else f'v_or3_b32 v{acc}, v{acc}, v{t0}, v{t1}')
    a(f'v_and_b32 v{acc}, {mask}, v{acc}\nv_cmp_ne_u32 vcc, 0, v{acc}')
def tag_strip(a, regs, half, ms=82):
    for r in regs: a(f'v_bfi_b32 v{r}, s{ms}, v{half}, v{r}')
_st = [0]
def hand_store(a, ins):
    _st[0] += 1; n = _st[0]
    a(f's_cmp_eq_u32 s87, 0\ns_cbranch_scc1 L_wt{n}\n{ins}\ns_branch L_we{n}\nL_wt{n}:\n{ins} sc1\nL_we{n}:')

def unit_gemm(a, lds, va, st_v, st_s, tagv, ms, before_pub=None):
    TA, DQ = 44, 108
    seq = [(t, ks) for t in range(4) for ks in range(4)]
    def rd(n):
        t, ks = seq[n]; r = TA + 4 * n; o = lds + ks * 4096 + t * 32
        a(f'ds_read_b64_tr_b16 v[{r}:{r+1}], v{va} offset:{o}\nds_read_b64_tr_b16 v[{r+2}:{r+3}], v{va} offset:{o+512}')
    def pub(t):
        for r in range(4): a(f'v_bfi_b32 v{DQ+4*t+r}, s{ms}, v{tagv}, v{DQ+4*t+r}')
        hand_store(a, f'buffer_store_dwordx4 v[{DQ+4*t}:{DQ+4*t+3}], v{st_v}, s[52:55], s{st_s} offen offset:{t*64}')
    for n in range(6): rd(n)
    for n, (t, ks) in enumerate(seq):
        if n + 6 < 16: rd(n + 6)
        a(f's_waitcnt lgkmcnt({2*min(6, 15-n)})')
        r = TA + 4 * n; d = DQ + 4 * t
        c = '0' if ks == 0 else f'v[{d}:{d+3}]'
        a(f'v_mfma_f32_16x16x32_bf16 v[{d}:{d+3}], v[{r}:{r+3}], v[{XF+4*ks}:{XF+4*ks+3}], {c}')
        if before_pub is None and n in (7, 11, 15): pub(n // 4 - 1)
    if before_pub is not None:
        before_pub()
        for t in range(3): pub(t)
    pub(3)

def helper(a, P):
    stamp(a, P, 'hstart')
    if P['cpf']:
        a('s_getpc_b64 s[56:57]\ns_mov_b32 s58, 4352\ns_mov_b32 s59, 0x20000\nv_lshlrev_b32 v1, 6, v0')
        a('buffer_load_dword v15, v1, s[56:59], 0 offen offset:256')
    x_addr(a)
    a('v_lshrrev_b32 v4, 3, v0\nv_lshlrev_b32 v1, 13, v4\nv_and_b32 v2, 7, v0\nv_lshl_add_u32 v1, v2, 4, v1')
    a('v_mul_u32_u24 v4, 3584, v4\nv_lshl_add_u32 v4, v2, 4, v4')
    a('s_and_b32 s63, s32, 1\ns_bfe_u32 s62, s32, 0x10001\ns_mul_i32 s64, s62, 224\ns_lshl_b32 s36, s63, 7\ns_add_u32 s64, s64, s36')
    a('s_lshl_b32 s65, s63, 5\ns_sub_u32 s65, 127, s65\ns_lshr_b32 s66, s32, 2')
    a('s_lshl_b32 s37, s64, 13\ns_lshl_b32 s39, s31, 3\ns_add_u32 s39, s39, s66\ns_lshl_b32 s39, s39, 7\ns_add_u32 s37, s37, s39')
    a('s_lshl_b32 s39, s65, 13\ns_add_u32 s39, s39, 128')
    a('s_lshl_b32 s60, s63, 8\ns_mul_i32 s61, s63, 192\ns_sub_u32 s61, 192, s61')
    a('s_waitcnt lgkmcnt(0)')
    stamp(a, P, 'hkarg')
    a('s_load_dword s84, s[28:29], 0')
    srd(a, 48, 4, None, 7168)
    for ks in range(7):
        if ks < 3: a(f'buffer_load_dwordx4 v[{XF+4*ks}:{XF+4*ks+3}], v8, s[48:51], s60 offen offset:{ks*64} {P["xpol"]}')
        else: a(f'buffer_load_dwordx4 v[{XF+4*ks}:{XF+4*ks+3}], v8, s[48:51], s61 offen offset:{(ks-3)*64} {P["xpol"]}')
    srd(a, 56, 10, 's37', 's39')
    for i in range(16):
        a(f's_mov_b32 m0, {L_WQ+i*1024}\ns_mov_b32 s36, {i*65536}')
        a(f'buffer_load_dwordx4 v1, s[56:59], s36 offen {P["wpol"]} lds')
    stamp(a, P, 'wqiss')
    a(f'v_mov_b32 v126, -1\nv_mov_b32 v127, -1\nv_lshlrev_b32 v3, 3, v0\nv_add_u32 v3, {L_ML}, v3\nv_mov_b32 v5, {L_TAG}')
    a('s_mov_b64 exec, 0xffff\nds_write_b64 v3, v[126:127]\nds_write_b64 v5, v[126:127]\ns_mov_b64 exec, -1')
    srd(a, 52, 28, None, WS_USED)
    a(f'v_lshlrev_b32 v2, 4, v0\ns_getreg_b32 s68, hwreg(HW_REG_XCC_ID)\ns_and_b32 s68, s68, 15\ns_lshl_b32 s68, s68, 12')
    a(f's_lshl_b32 s69, s31, 12\ns_add_u32 s69, s69, {XBUF}\ns_lshl_b32 s37, s32, 7\ns_add_u32 s37, s37, s69\ns_waitcnt lgkmcnt(0)')
    a(f's_add_u32 s84, s84, 0x9E3779B9\ns_and_b32 s85, s84, {TMASK}\ns_or_b32 s68, s68, s85\nv_mov_b32 v6, s85\nv_mov_b32 v124, s68')
    a('s_mov_b64 exec, 1\nbuffer_store_dword v124, v2, s[52:55], s37 offen sc1\ns_mov_b64 exec, -1')
    stamp(a, P, 'xst')
    a('s_barrier')
    a('s_mul_i32 s67, s31, 7\ns_lshr_b32 s67, s67, 1\ns_add_u32 s67, s67, s66\ns_mul_i32 s37, s64, 3584\ns_lshl_b32 s39, s67, 7\ns_add_u32 s37, s37, s39')
    a('s_mul_i32 s39, s65, 3584\ns_add_u32 s39, s39, 128\ns_cmp_lt_u32 s66, 4\ns_cselect_b32 s37, s37, 0\ns_cselect_b32 s39, s39, 0')
    srd(a, 56, 16, 's37', 's39')
    a('v_and_b32 v125, 31, v0\nv_lshlrev_b32 v125, 7, v125')
    a(f'v_mov_b32 v14, {hex(OOB)}\ns_mov_b32 s82, {TMASK}\ns_mov_b32 s81, {QMASK}\ns_mov_b32 s83, {hex(f2u(C_EXP))}')
    a(f'v_bfe_u32 v3, v0, 2, 2\nv_lshl_add_u32 v12, v9, 3, v3\nv_lshlrev_b32 v12, 7, v12\nv_and_b32 v5, 3, v0\nv_lshl_add_u32 v12, v5, 3, v12')
    a(f'v_and_b32 v5, 7, v0\nv_lshlrev_b32 v13, 16, v5\nv_lshl_add_u32 v13, v9, 4, v13\nv_bfe_u32 v3, v0, 3, 1\nv_cmp_eq_u32 vcc, s62, v3')
    a(f'v_lshlrev_b32 v5, 12, v5\nv_lshl_add_u32 v5, v9, 4, v5\nv_cndmask_b32 v13, v14, v13, vcc\nv_cndmask_b32 v5, v14, v5, vcc')
    a(f's_and_b32 s37, s32, 3\ns_lshl_b32 s60, s37, 14\ns_lshl_b32 s39, s31, 11\ns_add_u32 s60, s60, s39\ns_lshl_b32 s39, s66, 8\ns_add_u32 s60, s60, s39\ns_add_u32 s60, s60, {QBUF}')
    a(f's_lshl_b32 s61, s37, 10\ns_lshl_b32 s39, s66, 8\ns_add_u32 s61, s61, s39\ns_lshl_b32 s39, s31, 15\ns_add_u32 s61, s61, s39\ns_add_u32 s61, s61, {HBUF}')
    a('s_waitcnt vmcnt(17)')
    stamp(a, P, 'xland')
    layernorm(a, XF, FF, TT)
    stamp(a, P, 'lndone')
    a('s_mov_b64 exec, 0xffffffff\nbuffer_load_dword v124, v125, s[52:55], s69 offen sc1\ns_mov_b64 exec, -1')
    for i in range(16):
        a(f's_mov_b32 m0, {L_WQ+16384+i*1024}\ns_mov_b32 s36, {i*8*3584}')
        a(f'buffer_load_dwordx4 v4, s[56:59], s36 offen {P["wpol"]} lds')
    a('s_waitcnt vmcnt(18) lgkmcnt(0)')
    stamp(a, P, 'wqland')
    def loc_check():
        a('s_waitcnt vmcnt(16)\nv_cmp_ne_u32 vcc, s68, v124\ns_cmp_eq_u32 vcc_lo, 0')
        for k in range(P['xretry']):
            a('s_cbranch_scc1 L_xok\ns_mov_b64 exec, 0xffffffff\nbuffer_load_dword v124, v125, s[52:55], s69 offen sc1\ns_mov_b64 exec, -1')
            a('s_waitcnt vmcnt(0)\nv_cmp_ne_u32 vcc, s68, v124\ns_cmp_eq_u32 vcc_lo, 0')
        a('L_xok:')
        a('s_cselect_b32 s87, 1, 0' if P['loc'] else 's_mov_b32 s87, 0')
        stamp(a, P, 'xid')
        if P['diag'] and 'locv' in pts(P):
            a('s_cmp_lg_u32 s87, 0\ns_cbranch_scc1 L_locv'); stamp(a, P, 'locv'); a('L_locv:')
    unit_gemm(a, L_WQ, 12, 13, 60, 6, 81, loc_check)
    stamp(a, P, 'qpub')
    a('s_cmp_lt_u32 s66, 4\ns_cbranch_scc0 L_noh')
    layernorm(a, XF, FF, TT, 16)
    a('s_waitcnt vmcnt(4)')
    unit_gemm(a, L_WQ + 16384, 12, 5, 61, 6, 82)
    a('L_noh:')
    stamp(a, P, 'hpub')
    a('s_mul_i32 s37, s34, 114688')
    srd(a, 56, 12, 's37', 114688)
    a('v_cmp_le_u32 vcc, 57, v0\nv_subrev_u32 v3, 57, v0\nv_add_u32 v15, -16, v2\nv_cndmask_b32 v11, v0, v3, vcc\nv_cndmask_b32 v1, v2, v15, vcc')
    a(f's_mov_b32 s62, 0\ns_mov_b32 s63, {P["n1"]*1024}')
    a(f's_lshl_b32 s61, s33, 16\ns_lshl_b32 s37, s31, 11\ns_add_u32 s61, s61, s37\ns_add_u32 s61, s61, {QBUF}')
    a(f's_mov_b32 s86, {P["spin"]}\nv_mov_b32 v7, 0x80\ns_waitcnt vmcnt(4)')
    a('L_qpoll:')
    wo_loop(a, P, 'L_woa')
    a('s_mov_b32 s36, s61')
    for kq in range(4):
        for m in range(2): a(f'buffer_load_dwordx4 v[{44+8*kq+4*m}:{47+8*kq+4*m}], v2, s[52:55], s36 offen offset:{m*1024} sc1')
        if kq < 3: a('s_add_u32 s36, s36, 16384')
    a(f's_mov_b64 exec, 0xffffffff\nbuffer_load_dword v124, v125, s[52:55], s69 offen sc1\ns_mov_b64 exec, -1\ns_add_u32 s63, s62, {P["n1r"]*1024}\ns_waitcnt vmcnt(0)')
    tag_check(a, range(44, 76), 16, 17, 18, QMASK)
    a('s_sub_u32 s86, s86, 1\ns_cbranch_scc1 L_qdone\ns_cbranch_vccnz L_qpoll')
    a('L_qdone:')
    stamp(a, P, 'qok')
    a('v_cmp_ne_u32 vcc, s68, v124\ns_cmp_eq_u32 vcc_lo, 0')
    a('s_cselect_b32 s87, 1, 0' if P['loc'] else 's_mov_b32 s87, 0')
    tag_strip(a, range(44, 76), 7, 81)
    for kq in range(1, 4):
        for m in range(4): a(f'v_pk_add_f32 v[{44+2*m}:{45+2*m}], v[{44+2*m}:{45+2*m}], v[{44+8*kq+2*m}:{45+8*kq+2*m}]')
    a(f'v_lshlrev_b32 v3, 3, v0\nv_add_u32 v3, {L_Q}, v3\nv_mov_b32 v4, {L_TAG}\nv_mov_b32 v16, s84\nv_mov_b32 v17, s87')
    for m in range(4): a(f'v_cvt_pk_bf16_f32 v{52+m}, v{44+2*m}, v{45+2*m}')
    a('ds_write_b64 v3, v[52:53]\nds_write_b64 v3, v[54:55] offset:512\ns_waitcnt lgkmcnt(0)\nds_write_b64 v4, v[16:17]')
    stamp(a, P, 'B1')
    a(f's_mov_b32 s63, {P["n2"]*1024}')
    wo_loop(a, P, 'L_wob')
    a(f'v_and_b32 v3, 15, v0\nv_lshlrev_b32 v3, 3, v3\nv_add_u32 v3, {L_ML}, v3\ns_mov_b32 s86, {P["spin"]*16}')
    a('L_mlw:')
    a('ds_read_b64 v[16:17], v3\ns_waitcnt lgkmcnt(0)\nv_cmp_eq_u32 vcc, -1, v16')
    a('s_sub_u32 s86, s86, 1\ns_cbranch_scc1 L_mlwd\ns_cbranch_vccz L_mlwd\ns_sleep 4\ns_branch L_mlw')
    a('L_mlwd:')
    d8 = ('quad_perm:[1,0,3,2]', 'quad_perm:[2,3,0,1]', 'row_half_mirror')
    a('v_mov_b32 v18, v16')
    for m in d8: a(f'v_max_f32_dpp v18, v18, v18 {m} row_mask:0xf bank_mask:0xf')
    a('v_sub_f32 v20, v16, v18\nv_mul_f32 v20, s83, v20\nv_exp_f32 v20, v20\nv_mul_f32 v19, v20, v17')
    for m in d8: a(f'v_add_f32_dpp v19, v19, v19 {m} row_mask:0xf bank_mask:0xf')
    tag_strip(a, (18, 19), 6)
    a(f's_lshl_b32 s37, s38, 7\ns_add_u32 s37, s37, {MLX}\ns_mov_b64 exec, 0x101')
    hand_store(a, 'buffer_store_dwordx2 v[18:19], v0, s[52:55], s37 offen')
    a('s_mov_b64 exec, -1')
    stamp(a, P, 'mlpub')
    a(f's_mov_b32 s63, {NWO*1024}')
    wo_loop(a, P, 'L_woc')
    stamp(a, P, 'wodone')
    a(f's_and_b32 s61, s38, 0xfc\ns_lshl_b32 s61, s61, 7\ns_add_u32 s61, s61, {MLX}\ns_mov_b32 s86, {P["spin"]}')
    a('v_and_b32 v3, 3, v0\nv_lshlrev_b32 v3, 7, v3\nv_and_b32 v4, 8, v0\nv_add_u32 v3, v3, v4')
    a('L_mlp2:')
    a('buffer_load_dwordx2 v[24:25], v3, s[52:55], s61 offen sc1\ns_waitcnt vmcnt(0)')
    tag_check(a, (24, 25), 26, 27, 28)
    a('s_sub_u32 s86, s86, 1\ns_cbranch_scc1 L_mlp2d\ns_cbranch_vccz L_mlp2d\ns_sleep 16\ns_branch L_mlp2')
    a('L_mlp2d:')
    stamp(a, P, 'mlok')
    a(f'v_and_b32 v24, 0xffff0000, v24\nv_and_b32 v25, {hex(0xffffffff ^ TMASK)}, v25\nv_mov_b32 v28, v24')
    for m in d8[:2]: a(f'v_max_f32_dpp v28, v28, v28 {m} row_mask:0xf bank_mask:0xf')
    a('v_sub_f32 v29, v24, v28\nv_mul_f32 v29, s83, v29\nv_exp_f32 v29, v29\nv_mul_f32 v29, v29, v25')
    for m in d8[:2]: a(f'v_add_f32_dpp v29, v29, v29 {m} row_mask:0xf bank_mask:0xf')
    a('v_sub_f32 v30, v16, v28\nv_mul_f32 v30, s83, v30\nv_exp_f32 v30, v30\nv_rcp_f32 v29, v29\nv_mul_f32 v30, v30, v29')
    a(f'v_lshlrev_b32 v3, 2, v0\nv_add_u32 v3, {L_F}, v3\ns_mov_b64 exec, 0xffff\nds_write_b32 v3, v30\ns_mov_b64 exec, -1')
    if P['tpf']:
        a('s_getpc_b64 s[56:57]\nL_pc2:\ns_add_u32 s56, s56, L_tail-L_pc2\ns_addc_u32 s57, s57, 0\ns_mov_b32 s58, L_end-L_tail\ns_mov_b32 s59, 0x20000')
        a('v_lshlrev_b32 v1, 6, v0\nbuffer_load_dword v15, v1, s[56:59], 0 offen')
    a('s_waitcnt vmcnt(0) lgkmcnt(0)')
    stamp(a, P, 'hend')
    stamp_store(a, P, stamp_items(P, H_PTS))
    a('s_endpgm')

def mlp(a, P):
    a('L_mlp:')
    if P['nom']: a('s_endpgm')
    a('v_and_b32 v10, 15, v0\nv_lshrrev_b32 v9, 4, v0\nv_lshlrev_b32 v2, 4, v0\nv_min_u32 v3, 13, v10')
    a('v_lshlrev_b32 v4, 10, v9\nv_lshl_add_u32 v4, v3, 4, v4\nv_lshlrev_b32 v5, 3, v3')
    a(f's_lshl_b32 s61, s31, 15\ns_lshl_b32 s37, s33, 12\ns_add_u32 s61, s61, s37\ns_and_b32 s37, s34, 3\ns_mul_i32 s37, s37, 224\ns_add_u32 s61, s61, s37\ns_and_b32 s37, s31, 1\ns_lshl_b32 s37, s37, 7\ns_add_u32 s61, s61, s37\ns_add_u32 s61, s61, {HBUF}')
    a(f'v_bfe_u32 v3, v0, 2, 2\nv_lshl_add_u32 v6, v9, 2, v3\nv_mul_u32_u24 v6, 896, v6\nv_and_b32 v3, 3, v0\nv_lshl_add_u32 v6, v3, 3, v6\nv_add_u32 v6, {L_MS}, v6')
    a('v_mov_b32 v11, v5\nv_mov_b32 v12, v6\ns_waitcnt lgkmcnt(0)\ns_barrier')
    srd(a, 52, 28, None, WS_USED)
    srd(a, 48, 18, None, 3584)
    a('s_mul_i32 s60, s34, 50176')
    srd(a, 56, 20, 's60', 28672)
    q_wait(a, P, 'L_mq')
    stamp(a, P, 'mstart')
    a(f'v_mov_b32 v6, v12\nv_mov_b32 v7, 0x200\ns_mov_b32 s86, {P["spin"]}\ns_mul_i32 s37, s34, 112\nbuffer_load_dwordx2 v[20:21], v11, s[48:51], s37 offen')
    dma_loop(a, 'L_w2a', 28, P['DM'], 2, 1024, L_MS, P['mpol'])
    a('L_hp:')
    a('buffer_load_dwordx4 v[16:19], v4, s[52:55], s61 offen sc1\ns_waitcnt vmcnt(0)')
    tag_check(a, range(16, 20), 22, 23, 24)
    a('s_sub_u32 s86, s86, 1\ns_cbranch_scc1 L_hpd\ns_cbranch_vccz L_hpd\ns_sleep 16\ns_branch L_hp')
    a('L_hpd:')
    stamp(a, P, 'mw1')
    tag_strip(a, range(16, 20), 7)
    for i in range(4): xgroup(a, 'v_add_f32', 16 + i, 24 + i)
    unpack(a, 20, 24, 2)
    a('v_cvt_pk_bf16_f32 v20, v16, v17\nv_cvt_pk_bf16_f32 v21, v18, v19')
    unpack(a, 20, 16, 2)
    for i in range(4): a(f'v_add_f32 v{16+i}, v{16+i}, v{24+i}')
    a('v_cvt_pk_bf16_f32 v20, v16, v17\nv_cvt_pk_bf16_f32 v21, v18, v19')
    unpack(a, 20, 16, 2)
    k0 = 2 * 0.7978845608028654 * math.log2(math.e); k1 = k0 * 0.044715
    a(f's_mov_b32 s62, {hex(f2u(-k1))}\nv_mov_b32 v15, {hex(f2u(-k0))}')
    for i in range(4): a(f'v_mul_f32 v{24+i}, v{16+i}, v{16+i}')
    for i in range(4): a(f'v_fma_f32 v{24+i}, v{24+i}, s62, v15')
    for i in range(4): a(f'v_mul_f32 v{24+i}, v{24+i}, v{16+i}')
    for i in range(4): a(f'v_exp_f32 v{24+i}, v{24+i}')
    for i in range(4): a(f'v_add_f32 v{24+i}, 1.0, v{24+i}')
    for i in range(4): a(f'v_rcp_f32 v{24+i}, v{24+i}')
    for i in range(4): a(f'v_mul_f32 v{16+i}, v{16+i}, v{24+i}')
    a('v_cvt_pk_bf16_f32 v20, v16, v17\nv_cvt_pk_bf16_f32 v21, v18, v19')
    a('v_lshlrev_b32 v3, 2, v9')
    for n, g0 in enumerate((0, 4, 6, 10)):
        a(f'v_add_u32 v22, {4*g0}, v3\nds_bpermute_b32 v{24+2*n}, v22, v20\nds_bpermute_b32 v{25+2*n}, v22, v21')
    a('s_mov_b32 s62, -1\ns_mov_b32 s63, 0\ns_waitcnt lgkmcnt(0)')
    a('v_cndmask_b32 v28, v28, 0, s[62:63]\nv_cndmask_b32 v29, v29, 0, s[62:63]')
    TA, D2 = 132, 20
    a('v_mov_b32 v12, v24\nv_mov_b32 v13, v25\nv_mov_b32 v14, v26\nv_mov_b32 v15, v27\nv_mov_b32 v16, v28\nv_mov_b32 v17, v29\nv_mov_b32 v18, v30\nv_mov_b32 v19, v31')
    def gemv(c):
        def rd(n):
            r = TA + 4 * (n % 6); o = n * 32
            a(f'ds_read_b64_tr_b16 v[{r}:{r+1}], v6 offset:{o}\nds_read_b64_tr_b16 v[{r+2}:{r+3}], v6 offset:{o+14336}')
        for n in range(4): rd(n)
        for n in range(28):
            if n + 4 < 28: rd(n + 4)
            a(f's_waitcnt lgkmcnt({2*min(4, 27-n)})')
            r = TA + 4 * (n % 6); d = D2 + 4 * n
            a(f'v_mfma_f32_16x16x32_bf16 v[{d}:{d+3}], v[{12+4*c}:{15+4*c}], v[{r}:{r+3}], ' + ('0' if c == 0 else f'v[{d}:{d+3}]'))
    gemv(0)
    a(f's_add_u32 s60, s60, {24*896}')
    srd(a, 56, 20, 's60', 28672)
    dma_loop(a, 'L_w2b', 28, P['DM'], 2, 1024, L_MS, P['mpol'])
    a('s_waitcnt vmcnt(0)')
    stamp(a, P, 'mw2')
    gemv(1)
    a(f'v_lshlrev_b32 v3, 2, v0\nv_add_u32 v3, {L_MS}, v3\ns_mov_b64 exec, 0xffff')
    for n in range(28): a(f'ds_write_b32 v3, v{D2+4*n} offset:{n*64}')
    a('s_mov_b64 exec, -1\ns_waitcnt lgkmcnt(0)')
    stamp(a, P, 'mend')
    stamp_store(a, P, stamp_items(P, M_PTS))
    a('s_endpgm')

def body(P):
    a = Asm()
    a('s_cmp_ge_u32 s2, 256\ns_cbranch_scc1 L_end')
    a('s_load_dwordx16 s[4:19], s[0:1], 0\ns_load_dwordx8 s[20:27], s[0:1], 64\ns_load_dwordx2 s[28:29], s[0:1], 96')
    a('v_lshrrev_b32 v1, 6, v0\nv_and_b32 v0, 63, v0\nv_readfirstlane_b32 s30, v1')
    a('s_and_b32 s31, s2, 7\ns_lshr_b32 s32, s2, 3')
    if P['bmap'] == 0: a('s_lshr_b32 s33, s32, 2\ns_and_b32 s34, s32, 3')
    else: a('s_and_b32 s33, s32, 7\ns_lshr_b32 s34, s32, 3')
    a('s_lshl_b32 s37, s31, 2\ns_add_u32 s34, s34, s37\ns_lshl_b32 s38, s33, 5\ns_add_u32 s38, s38, s34')
    stamp_init(a, P)
    a('s_cmp_lg_u32 s30, 0\ns_cbranch_scc1 L_stream')
    helper(a, P)
    mlp(a, P)
    streamer(a, P)
    a('L_end:\ns_endpgm')
    txt, n = a.text()
    return txt, n

def vgprs(P): return max(56 + 4 * P['R'] + 3, 156)

def kernel(P):
    txt, n = body(P)
    nm = P['name']
    txt = txt.replace('L_', f'L{nm[-24:]}_') if P.get('uniq') else txt
    return txt

def final_file(P):
    ref = open(f'cdna_kernels/{NAME}.s.ref').read()
    head = ref[:ref.index('; Override launch')]
    nm = P['name']; vg = vgprs(P)
    return head + f'''; Single launch: 256 workgroups x (8 streaming waves + 2 helper waves). Generated by gen/gen.py.
; @launch grid=(256,1,1) block=({block(P)},1,1) lds={LDS_BYTES}
.amdgcn_target "amdgcn-amd-amdhsa--gfx950"
.text
.globl {nm}
.p2align 8
.type {nm},@function
{nm}:
{kernel(P)}
.section .rodata,"a"
.p2align 6
.amdhsa_kernel {nm}
  .amdhsa_next_free_vgpr {vg}
  .amdhsa_next_free_sgpr 102
  .amdhsa_accum_offset {(vg+3)//4*4}
  .amdhsa_group_segment_fixed_size 0
  .amdhsa_kernarg_size 104
  .amdhsa_user_sgpr_count 2
  .amdhsa_user_sgpr_kernarg_segment_ptr 1
  .amdhsa_system_sgpr_workgroup_id_x 1
.end_amdhsa_kernel
'''

if __name__ == '__main__':
    P = dict(DEF)
    out = f'cdna_kernels/{NAME}.s'
    for kv in sys.argv[1:]:
        k, v = kv.split('=', 1)
        if k == 'out': out = v
        else: P[k] = type(DEF[k])(v) if not isinstance(DEF[k], bool) else v == '1'
    open(out, 'w').write(final_file(P))
    print('wrote', out)
```

```python
import sys, math, struct
from asmlib import Asm

NAME = 'parallel_sum__gqa_block_cached__mixer_channel_mlp__decode'
def f2u(x): return struct.unpack('<I', struct.pack('<f', x))[0]

CBUF, XBUF, MLX, OBUF, PBUF, HBUF, QBUF, WS_USED = 0x4000, 0x8000, 0x10000, 0x20000, 0xA0000, 0x120000, 0x160000, 0x1E0000
TMASK = 0x3FF
QMASK = 0xFF
STAMP_OFF = 536870912 - (1 << 20)
L_WQ = 0; L_W1 = 16384; L_WO = 32768; L_W2 = 49152
L_PART = 57344
L_C = L_PART + 16384
OSTR = 264; HSTR = 136
L_O = L_C + 4096
L_H = L_O + 8 * OSTR
L_Q = L_H + 8 * HSTR
L_ML = L_Q + 1024
L_F = L_ML + 128
L_TAG = L_F + 64
LDS_BYTES = L_TAG + 16
assert L_Q % 16 == 0 and LDS_BYTES > 81920
OOB = 0x7F000000
C_EXP = math.log2(math.e) / 16.0

DEF = dict(R=24, D=3, D0=3, DH=2, qsl=16, qsl2=4, msl=32, cpf=1, tpf=1, nocomp=0, nowo=0, ctl=0, cks='28 44 60 76 92 104', t1=6, t2=10, cstr=256, m1=0x55, m2=0xff, kpat='', vpat='', loc=1, n2=80, xretry=1, Dend=0, nend=16, gsl=0, fsl=0, fthr=0, fsl2=24, nornd=0, nom=0, pol='nt', wpol='', xpol='', opol='', mpol='', diag=False, budget=2,
           name=NAME + '_kernel', spin=1 << 16, hold=0, bmap=1, pts='start+qpub+B1+Kdone+hend+B2+end')
def block(P): return 576

def srd(a, n, base, off, size):
    if off is None:
        a(f's_mov_b32 s{n}, s{base}\ns_mov_b32 s{n+1}, s{base+1}')
    else:
        a(f's_add_u32 s{n}, s{base}, {off}\ns_addc_u32 s{n+1}, s{base+1}, 0')
    a(f's_mov_b32 s{n+2}, {size}\ns_mov_b32 s{n+3}, 0x20000')

def wave_sum(a, v, s):
    for m in ('row_shr:1', 'row_shr:2', 'row_shr:4', 'row_shr:8'):
        a(f'v_add_f32_dpp v{v}, v{v}, v{v} {m} row_mask:0xf bank_mask:0xf')
    a(f'v_add_f32_dpp v{v}, v{v}, v{v} row_bcast:15 row_mask:0xa bank_mask:0xf')
    a(f'v_add_f32_dpp v{v}, v{v}, v{v} row_bcast:31 row_mask:0xc bank_mask:0xf')
    a(f'v_readlane_b32 s{s}, v{v}, 63')

def rnd_bf16(a, v):
    a(f'v_cvt_pk_bf16_f32 v{v}, v{v}, v{v}\nv_and_b32 v{v}, 0xffff0000, v{v}')

def unpack(a, src, dst, n):
    for i in range(n):
        a(f'v_and_b32 v{dst+2*i+1}, 0xffff0000, v{src+i}\nv_lshlrev_b32 v{dst+2*i}, 16, v{src+i}')

def row_sum(a, v, t):
    a(f'v_add_f32_dpp v{v}, v{v}, v{v} row_ror:8 row_mask:0xf bank_mask:0xf')
    xgroup(a, 'v_add_f32', v, t)

def layernorm(a, X, F, T, nq=28):
    pr = lambda r: f'v[{r}:{r+1}]'
    unpack(a, X, F, 28)
    a(f'v_pk_add_f32 {pr(T)}, {pr(F)}, {pr(F+2)}\nv_pk_add_f32 {pr(T+2)}, {pr(F+4)}, {pr(F+6)}')
    for i in range(4, 28): a(f'v_pk_add_f32 {pr(T+2*(i&1))}, {pr(T+2*(i&1))}, {pr(F+2*i)}')
    a(f'v_pk_add_f32 {pr(T)}, {pr(T)}, {pr(T+2)}\nv_add_f32 v{T}, v{T}, v{T+1}')
    row_sum(a, T, T + 1)
    a(f'v_mul_f32 v{T}, {hex(f2u(-1/448))}, v{T}\nv_mov_b32 v{T+1}, v{T}')
    for i in range(28):
        d = T + 4 + 2 * (i & 1)
        a(f'v_pk_add_f32 {pr(d)}, {pr(F+2*i)}, {pr(T)}')
        if i == 0: a(f'v_pk_mul_f32 {pr(T+2)}, {pr(d)}, {pr(d)}')
        else: a(f'v_pk_fma_f32 {pr(T+2)}, {pr(d)}, {pr(d)}, {pr(T+2)}')
    a(f'v_add_f32 v{T+2}, v{T+2}, v{T+3}')
    row_sum(a, T + 2, T + 3)
    rnd_bf16(a, T)
    a(f'v_mov_b32 v{T+1}, v{T}\nv_mul_f32 v{T+2}, {hex(f2u(1/448))}, v{T+2}')
    rnd_bf16(a, T + 2)
    a(f'v_add_f32 v{T+2}, {hex(f2u(1e-5))}, v{T+2}')
    rnd_bf16(a, T + 2)
    a(f'v_sqrt_f32 v{T+2}, v{T+2}')
    for i in range(nq): a(f'v_pk_add_f32 {pr(F+2*i)}, {pr(F+2*i)}, {pr(T)}')
    rnd_bf16(a, T + 2)
    a(f'v_rcp_f32 v{T+2}, v{T+2}')
    for i in range(nq): a(f'v_cvt_pk_bf16_f32 v{X+i}, v{F+2*i}, v{F+2*i+1}')
    a(f'v_mov_b32 v{T+3}, v{T+2}')
    unpack(a, X, F, nq)
    for i in range(nq): a(f'v_pk_mul_f32 {pr(F+2*i)}, {pr(F+2*i)}, {pr(T+2)}')
    for i in range(nq): a(f'v_cvt_pk_bf16_f32 v{X+i}, v{F+2*i}, v{F+2*i+1}')

def xgroup(a, op, v, t):
    a(f'v_mov_b32 v{t}, v{v}\nv_permlane16_swap_b32 v{v}, v{t}\n{op} v{v}, v{v}, v{t}')
    a(f'v_mov_b32 v{t}, v{v}\nv_permlane32_swap_b32 v{v}, v{t}\n{op} v{v}, v{v}, v{t}')

S_PTS = ['start', 's8', 's44', 's96', 'skarg', 'siss0', 'pst', 'g2ok', 'sB1a', 'sB1', 'Kdone', 'Vlast', 'B2', 'ost', 'gok', 'B3', 'end']
M_PTS = ['mstart', 'mw1', 'mw2', 'mend']
H_PTS = ['hstart', 'mend', 'locv', 'xst', 'xid', 'hpub', 'wob', 'qack', 'xland', 'lndone', 'wtpub', 'wtok', 'hkarg', 'wqiss', 'hB0', 'wqland', 'qpub', 'qp1', 'qok', 'B1', 'wodone', 'mlpub', 'mlok', 'hend']
def pts(P): return P['pts'].split('+') if isinstance(P['pts'], str) else P['pts']
def stamp(a, P, name):
    if P['diag'] and name in pts(P):
        reg = 88 + 2 * pts(P).index(name)
        a(f's_memrealtime s[{reg}:{reg+1}]\ns_waitcnt lgkmcnt(0)')
def stamp_items(P, lst): return [(i, 88 + 2 * i) for i, n in enumerate(pts(P)) if n in lst]
def stamp_init(a, P):
    if P['diag']:
        for i in range(7): a(f's_mov_b64 s[{88+2*i}:{89+2*i}], 0')

def stamp_store(a, P, items, hw=False):
    if not P['diag']: return
    a('s_waitcnt lgkmcnt(0)')
    a(f's_lshl_b32 s37, s2, 6\ns_add_u32 s37, s37, {STAMP_OFF}')
    srd(a, 40, 28, 's37', 64)
    a('s_mov_b64 exec, 1\nv_mov_b32 v1, 0')
    for idx, reg in items:
        a(f'v_mov_b32 v2, s{reg}\nv_mov_b32 v3, s{reg+1}\nbuffer_store_dwordx2 v[2:3], v1, s[40:43], 0 offen offset:{idx*8}')
    if hw:
        a('s_getreg_b32 s38, hwreg(HW_REG_XCC_ID)\ns_getreg_b32 s39, hwreg(HW_REG_HW_ID)')
        a('v_mov_b32 v2, s38\nv_mov_b32 v3, s39\nbuffer_store_dwordx2 v[2:3], v1, s[40:43], 0 offen offset:56')
    a('s_mov_b64 exec, -1')

def q_wait(a, P, lab):
    a(f's_mov_b32 s82, {TMASK}\nv_mov_b32 v5, {L_TAG}\ns_mov_b32 s86, {P["spin"]*16}')
    a(f'{lab}:\nds_read_b64 v[6:7], v5\ns_waitcnt lgkmcnt(0)\nv_cmp_eq_u32 vcc, -1, v7')
    a(f's_sub_u32 s86, s86, 1\ns_cbranch_scc1 {lab}d\ns_cbranch_vccz {lab}d\ns_sleep 2\ns_branch {lab}\n{lab}d:')
    a(f'v_readfirstlane_b32 s84, v6\nv_readfirstlane_b32 s87, v7\ns_and_b32 s85, s84, {TMASK}')

def streamer(a, P):
    a('L_stream:\ns_sub_u32 s30, s30, 1')
    R, D, D0, pol = P['R'], P['D'], P['D0'], P['pol']
    Q, S, DT, RING = 8, 16, 48, 56
    slot = lambda i: RING + 4 * (i % R)
    sl = lambda i: f'v[{slot(i)}:{slot(i)+3}]'
    stamp(a, P, 'start')
    if P['hold']: a('s_memrealtime s[98:99]')
    a('v_and_b32 v1, 3, v0\nv_lshlrev_b32 v1, 4, v1\nv_bfe_u32 v3, v0, 2, 2\nv_lshl_add_u32 v1, v3, 9, v1')
    a('v_lshrrev_b32 v3, 4, v0\nv_lshl_add_u32 v1, v3, 6, v1')
    a('v_and_b32 v2, 15, v0\nv_lshlrev_b32 v2, 4, v2\nv_lshl_add_u32 v2, v3, 9, v2')
    a('s_lshl_b32 s37, s38, 19\ns_lshl_b32 s39, s30, 16\ns_add_u32 s37, s37, s39')
    a('s_add_u32 s35, s30, s32\ns_and_b32 s35, s35, 7\ns_lshl_b32 s35, s35, 12')
    a('s_waitcnt lgkmcnt(0)')
    stamp(a, P, 'skarg')
    srd(a, 40, 6, 's37', 65536)
    srd(a, 44, 8, 's37', 65536)
    def issue(i):
        j = i % 64; G, t = j >> 1, j & 1
        if t == 0: a(f's_xor_b32 s36, s35, {G*2048}')
        r, va = ('s[40:43]', 'v1') if i < 64 else ('s[44:47]', 'v2')
        a(f'buffer_load_dwordx4 {sl(i)}, {va}, {r}, s36 offen offset:{t*256} {pol}')
    for i in range(D0): issue(i)
    stamp(a, P, 'siss0')
    a('s_barrier')
    srd(a, 52, 28, None, WS_USED)
    for e in range(2):
        for r in range(4):
            m16 = (0x11 << r) << (8 * e); m32 = m16 | (m16 << 16)
            a(f's_mov_b32 s{64+2*(4*e+r)}, {hex(m32)}\ns_mov_b32 s{65+2*(4*e+r)}, {hex(m32)}')
    a('s_mov_b32 s80, 0x05040100\ns_mov_b32 s81, 0x07060302')
    for i in range(D0, R):
        a(f's_waitcnt vmcnt({D-1})'); issue(i)
        if i == 8 + D: stamp(a, P, 's8')
    a('v_bfe_u32 v3, v0, 2, 1\nv_lshlrev_b32 v3, 9, v3\nv_and_b32 v4, 3, v0\nv_lshl_add_u32 v3, v4, 4, v3')
    a(f'v_lshrrev_b32 v4, 4, v0\nv_lshl_add_u32 v3, v4, 6, v3\nv_add_u32 v3, {L_Q}, v3')
    stamp(a, P, 'sB1a')
    q_wait(a, P, 'L_sq')
    stamp(a, P, 'sB1')
    a(f'ds_read_b128 v[{Q}:{Q+3}], v3\nds_read_b128 v[{Q+4}:{Q+7}], v3 offset:256')
    a(f'v_mov_b32 v4, 0xff800000\ns_mov_b32 s83, {hex(f2u(C_EXP))}\ns_waitcnt lgkmcnt(0)')
    chunks = []
    def kdpp(G):
        d = DT + 4 * (G & 1)
        a(f'v_mov_b32_dpp v{S+G}, v{d} quad_perm:[0,0,0,0] row_mask:0xf bank_mask:0xf')
        for r in range(1, 4):
            a(f'v_add_f32_dpp v{S+G}, v{d+r}, v{S+G} quad_perm:[{r},{r},{r},{r}] row_mask:0xf bank_mask:0xf')
        if G & 1:
            if not P['nornd']: a(f'v_cvt_pk_bf16_f32 v5, v{S+G-1}, v{S+G}\nv_lshlrev_b32 v{S+G-1}, 16, v5\nv_and_b32 v{S+G}, 0xffff0000, v5')
            a(f'v_max3_f32 v4, v4, v{S+G-1}, v{S+G}')
    def kchunk(G):
        def fn():
            d = DT + 4 * (G & 1)
            a(f'v_mfma_f32_16x16x32_bf16 v[{d}:{d+3}], {sl(2*G)}, v[{Q}:{Q+3}], 0')
            a(f'v_mfma_f32_16x16x32_bf16 v[{d}:{d+3}], {sl(2*G+1)}, v[{Q+4}:{Q+7}], v[{d}:{d+3}]')
            if G: kdpp(G - 1)
        return fn
    for G in range(32): chunks.append((2 * G + 1, [2 * G, 2 * G + 1], kchunk(G)))
    def sm0():
        kdpp(31)
        xgroup(a, 'v_max_f32', 4, 5)
        a('v_mul_f32 v6, s83, v4\nv_mov_b32 v7, 0')
        stamp(a, P, 'Kdone')
    chunks.append((63, [], sm0))
    def sm(k):
        def fn():
            for g in range(8 * k, 8 * k + 8): a(f'v_fma_f32 v{S+g}, v{S+g}, s83, -v6')
            for g in range(8 * k, 8 * k + 8): a(f'v_exp_f32 v{S+g}, v{S+g}')
            for g in range(8 * k, 8 * k + 8): a(f'v_add_f32 v7, v7, v{S+g}')
            for i in range(4 * k, 4 * k + 4): a(f'v_cvt_pk_bf16_f32 v{S+i}, v{S+2*i}, v{S+2*i+1}')
        return fn
    for k in range(4): chunks.append((63, [], sm(k)))
    def sm_end():
        xgroup(a, 'v_add_f32', 7, 5)
        a(f'v_mov_b32 v5, v7\nv_bfe_u32 v3, v0, 2, 1\nv_lshlrev_b32 v3, 6, v3\ns_lshl_b32 s37, s30, 3\ns_add_u32 s37, s37, {L_ML}\nv_add_u32 v3, s37, v3')
        a('s_mov_b64 exec, 0x11\nds_write_b64 v3, v[4:5]\ns_mov_b64 exec, -1')
    chunks.append((63, [], sm_end))
    AT = [32, 36]; PT = [40, 44, 8, 12]; ACC = DT
    cnt = [0, 0]
    def vchunk(T, e, r):
        def fn():
            A = AT[cnt[0] & 1]; cnt[0] += 1
            mk = 64 + 2 * (4 * e + r)
            for p in range(4): a(f'v_cndmask_b32 v{A+p}, 0, v{S+4*T+p}, s[{mk}:{mk+1}]')
            for jj in range(2):
                j = 4 * jj + r; m, hh = j >> 1, j & 1
                B = PT[cnt[1] & 3]; cnt[1] += 1
                for p in range(4):
                    ev = 64 + 16 * T + 2 * (2 * p) + e; od = ev + 2
                    a(f'v_perm_b32 v{B+p}, v{slot(od)+m}, v{slot(ev)+m}, s{80+hh}')
                c = '0' if (T == 0 and e == 0 and r == 0) else f'v[{ACC+4*jj}:{ACC+4*jj+3}]'
                a(f'v_mfma_f32_16x16x32_bf16 v[{ACC+4*jj}:{ACC+4*jj+3}], v[{A}:{A+3}], v[{B}:{B+3}], {c}')
        return fn
    for T in range(4):
        for e in range(2):
            for r in range(4):
                fr = [64 + 16 * T + 2 * g + e for g in range(8)] if r == 3 else []
                chunks.append((64 + 16 * T + 14 + e, fr, vchunk(T, e, r)))
    freed = set(); ci = 0; landed = -1
    XR = RING + 4 * R
    if P['ctl']: a(f's_mov_b32 s62, 0\nv_mov_b32 v{XR+3}, {L_PROG}')
    def run_chunk(issued):
        nonlocal ci, landed
        nd, fr, fn = chunks[ci]; ci += 1
        if nd > landed:
            a(f's_waitcnt vmcnt({issued-1-nd})'); landed = nd
        if not (P['nocomp'] and fr is not None and fn.__name__ == 'fn' and ci <= len(chunks) - 8): fn()
        freed.update(fr)
    for i in range(R, 128):
        while (i - R) not in freed: run_chunk(i)
        Di = P['Dend'] if (P['Dend'] and i >= 128 - P['nend']) else D
        pat = P['kpat'] if i < 64 else P['vpat']
        if pat and not (P['Dend'] and i >= 128 - P['nend']): Di = int(pat[i % len(pat)])
        cks = [int(x) for x in P['cks'].split()] if P['ctl'] else []
        if cks and i > cks[0] + D + 2:
            if i % 4 == 1: a(f's_waitcnt lgkmcnt(0)\nv_readfirstlane_b32 s62, v{XR+1}')
            a(f's_waitcnt vmcnt({Di})\ns_bitcmp1_b32 s62, {i % 8}\ns_cbranch_scc1 L_b{i}\ns_waitcnt vmcnt({Di-1})\nL_b{i}:')
            landed = max(landed, i - Di - 1)
        elif i - Di > landed:
            a(f's_waitcnt vmcnt({Di-1})'); landed = i - Di
        issue(i)
        if cks and i >= cks[0] and i % 4 == 0 and i < 124: a(f'ds_read_b32 v{XR+1}, v{XR+3} offset:4')
        if (i - D) in cks:
            a(f's_cmp_lg_u32 s30, 0\ns_cbranch_scc1 L_np{i}\nv_mov_b32 v{XR}, {cks.index(i - D) + 1}\nds_write_b32 v{XR+3}, v{XR}\nL_np{i}:')
        if i == 44 + D: stamp(a, P, 's44')
        if i == 96 + D: stamp(a, P, 's96')
        n = 0
        while ci < len(chunks) and chunks[ci][0] <= landed and n < P['budget']:
            run_chunk(i + 1); n += 1
    def tail_addr():
        a(f'v_lshrrev_b32 v3, 5, v0\nv_lshlrev_b32 v3, 9, v3\nv_bfe_u32 v4, v0, 4, 1\nv_lshl_add_u32 v3, v4, 10, v3')
        a(f'v_and_b32 v4, 15, v0\nv_lshl_add_u32 v3, v4, 5, v3\ns_lshl_b32 s37, s30, 11\ns_add_u32 s37, s37, {L_PART}\nv_add_u32 v3, s37, v3')
        a(f's_lshl_b32 s37, s30, 8\ns_add_u32 s37, s37, {L_PART}\nv_lshl_add_u32 v4, v0, 2, s37')
        a(f's_lshr_b32 s37, s30, 2\ns_lshl_b32 s37, s37, 5\ns_add_u32 s37, s37, {L_F}\nv_mov_b32 v5, s37')
        a(f'v_lshlrev_b32 v6, 2, v0\ns_lshl_b32 s60, s38, 11\ns_lshl_b32 s37, s30, 8\ns_add_u32 s60, s60, s37\ns_add_u32 s60, s60, {OBUF}')
        a(f'v_lshrrev_b32 v1, 4, v0\nv_bfe_u32 v7, v0, 2, 2\nv_and_b32 v8, 3, v0')
        a(f'v_lshl_add_u32 v7, v1, 2, v7\nv_lshlrev_b32 v7, 7, v7\nv_lshl_add_u32 v7, v8, 3, v7\ns_lshl_b32 s37, s30, 5\ns_add_u32 s37, s37, {L_WO}\nv_add_u32 v7, s37, v7')
        a(f'v_and_b32 v2, 15, v0\nv_lshlrev_b32 v2, 4, v2\nv_lshl_add_u32 v2, v1, 11, v2')
        a(f's_lshl_b32 s61, s30, 16\ns_lshl_b32 s37, s31, 13\ns_add_u32 s61, s61, s37\ns_and_b32 s37, s32, 3\ns_lshl_b32 s37, s37, 9\ns_add_u32 s61, s61, s37\ns_add_u32 s61, s61, {OBUF}')
    while ci < len(chunks) - 8: run_chunk(128)
    tail_addr()
    a(f'v_lshl_add_u32 v{XR+2}, v8, 2, v1\nv_lshlrev_b32 v{XR+2}, 1, v{XR+2}\ns_lshl_b32 s39, s32, 5')
    srd(a, 44, 22, None, 896)
    a(f'buffer_load_ushort v{XR}, v{XR+2}, s[44:47], s39 offen')
    srd(a, 40, 4, None, 7168)
    a(f's_mul_i32 s37, s31, 896\ns_add_u32 s63, s37, s39\nbuffer_load_ushort v{XR+1}, v{XR+2}, s[40:43], s63 offen')
    srd(a, 44, 24, None, 7168)
    while ci < len(chunks): run_chunk(130)
    stamp(a, P, 'Vlast')
    a('L_tail:')
    a(f'ds_write_b128 v3, v[{ACC}:{ACC+3}]\nds_write_b128 v3, v[{ACC+4}:{ACC+7}] offset:16\ns_waitcnt lgkmcnt(0)\ns_barrier')
    stamp(a, P, 'B2')
    for w in range(4): a(f'ds_read2st64_b32 v[{16+2*w}:{17+2*w}], v4 offset0:{16*w} offset1:{16*w+8}')
    a(f'ds_read_b128 v[24:27], v5\nds_read_b128 v[28:31], v5 offset:16\ns_waitcnt lgkmcnt(0)')
    a('v_mul_f32 v32, v16, v24\nv_mul_f32 v33, v17, v25')
    for w in range(2, 8): a(f'v_fmac_f32 v{32+(w&1)}, v{16+w}, v{24+w}')
    a('v_mov_b32 v9, s85\nv_add_f32 v32, v32, v33\nv_bfi_b32 v32, s82, v9, v32')
    hand_store(a, 'buffer_store_dword v32, v6, s[52:55], s60 offen')
    stamp(a, P, 'ost')
    a('s_cmp_lt_u32 s32, 28\ns_cbranch_scc0 L_end')
    GL = 'buffer_load_dwordx4 v[16:19], v2, s[52:55], s61 offen sc1\nbuffer_load_dwordx4 v[20:23], v2, s[52:55], s61 offen offset:256 sc1'
    a(GL)
    BF, AF, DR = 56, 72, 88
    a('s_cmp_lt_u32 s30, 4\ns_cbranch_scc0 L_nofr')
    for jj in range(4):
        b = BF + 4 * jj
        a(f'ds_read_b64_tr_b16 v[{b}:{b+1}], v7 offset:{jj*4096}\nds_read_b64_tr_b16 v[{b+2}:{b+3}], v7 offset:{jj*4096+2048}')
    a(f's_lshl_b32 s37, s30, 10\ns_add_u32 s37, s37, {L_C}\nv_lshl_add_u32 v10, v0, 4, s37\nds_read_b128 v[{DR}:{DR+3}], v10')
    a('L_nofr:')
    a(f'v_and_b32 v4, 15, v0\nv_lshlrev_b32 v4, 3, v4\nv_and_b32 v5, 1, v1\nv_lshl_add_u32 v4, v5, 2, v4\nv_lshrrev_b32 v5, 1, v1\nv_lshl_add_u32 v4, v5, 7, v4')
    a(f's_mul_i32 s37, s30, {OSTR}\ns_add_u32 s37, s37, {L_O}\nv_add_u32 v5, s37, v4')
    a(f'v_and_b32 v12, 7, v0\nv_mul_u32_u24 v12, {OSTR}, v12\nv_lshl_add_u32 v12, v1, 3, v12\nv_add_u32 v12, {L_O}, v12')
    a(f's_and_b32 s60, s32, 28\ns_add_u32 s60, s60, s30\ns_lshl_b32 s60, s60, 5\ns_lshl_b32 s37, s31, 2\ns_add_u32 s60, s60, s37\ns_and_b32 s37, s32, 3\ns_add_u32 s60, s60, s37')
    a(f's_lshl_b32 s60, s60, 9\ns_add_u32 s60, s60, {PBUF}\ns_mov_b32 s86, {P["spin"]}')
    a('s_branch L_gchk')
    a('L_gpoll:')
    if P['gsl']: a(f's_sleep {P["gsl"]}')
    a(GL)
    a('L_gchk:')
    a('s_waitcnt vmcnt(0)')
    tag_check(a, range(16, 24), 10, 11, 4)
    a('s_sub_u32 s86, s86, 1\ns_cbranch_scc1 L_gdone\ns_cbranch_vccnz L_gpoll')
    a('L_gdone:')
    stamp(a, P, 'gok')
    for i in range(8): a(f'v_and_b32 v{16+i}, {hex(0xffffffff ^ TMASK)}, v{16+i}')
    for p in (16, 17, 20, 21): a(f'v_permlane16_swap_b32 v{p}, v{p+2}')
    for p in (16, 17, 20, 21): a(f'v_add_f32 v{p}, v{p}, v{p+2}')
    a('v_permlane32_swap_b32 v16, v20\nv_permlane32_swap_b32 v17, v21\nv_add_f32 v16, v16, v20\nv_add_f32 v17, v17, v21')
    a('v_cvt_pk_bf16_f32 v16, v16, v17\nds_write_b32 v5, v16\ns_waitcnt lgkmcnt(0)\ns_barrier')
    stamp(a, P, 'B3')
    a('s_cmp_lt_u32 s30, 4\ns_cbranch_scc0 L_fin')
    for jj in range(4): a(f'ds_read_b64 v[{AF+4*jj}:{AF+4*jj+1}], v12 offset:{jj*64}\nds_read_b64 v[{AF+4*jj+2}:{AF+4*jj+3}], v12 offset:{jj*64+32}')
    for jj in range(4):
        a(f's_waitcnt lgkmcnt({6-2*jj})')
        a(f'v_mfma_f32_16x16x32_bf16 v[{DR}:{DR+3}], v[{AF+4*jj}:{AF+4*jj+3}], v[{BF+4*jj}:{BF+4*jj+3}], v[{DR}:{DR+3}]')
    a(f'v_permlane32_swap_b32 v{DR}, v{DR+1}\nv_permlane32_swap_b32 v{DR+2}, v{DR+3}')
    a(f'v_bfi_b32 v{DR}, s82, v9, v{DR}\nv_bfi_b32 v{DR+2}, s82, v9, v{DR+2}')
    a(f'buffer_store_dword v{DR}, v6, s[52:55], s60 offen sc1\nbuffer_store_dword v{DR+2}, v6, s[52:55], s60 offen offset:256 sc1')
    stamp(a, P, 'pst')
    if P['diag']:
        a('s_cmp_lg_u32 s30, 0\ns_cbranch_scc1 L_end')
        stamp_store(a, P, stamp_items(P, [x for x in S_PTS if x not in ('g2ok', 'end')]), hw=True)
    a('s_endpgm')
    a('L_fin:')
    a('s_cmp_eq_u32 s30, 7\ns_cbranch_scc0 L_end')
    a('v_and_b32 v8, 3, v0')
    a(f'v_lshrrev_b32 v2, 2, v0\nv_lshlrev_b32 v2, 9, v2\nv_lshl_add_u32 v2, v8, 4, v2\nv_add_u32 v3, 8192, v2\nv_mov_b32 v7, 0x200')
    a(f's_lshl_b32 s61, s32, 14\ns_and_b32 s37, s31, 3\ns_lshl_b32 s37, s37, 7\ns_add_u32 s61, s61, s37\ns_lshr_b32 s37, s31, 2\ns_lshl_b32 s37, s37, 6\ns_add_u32 s61, s61, s37\ns_add_u32 s61, s61, {PBUF}\ns_mov_b32 s86, {P["spin"]}')
    a(f'v_lshlrev_b32 v24, 16, v{XR}\nv_lshlrev_b32 v25, 16, v{XR+1}\nv_add_f32 v24, v24, v25')
    a('L_fpoll:')
    a('buffer_load_dwordx4 v[16:19], v2, s[52:55], s61 offen sc1\nbuffer_load_dwordx4 v[20:23], v3, s[52:55], s61 offen sc1')
    a('s_waitcnt vmcnt(0)')
    tag_check(a, range(16, 24), 8, 9, 10)
    a('s_sub_u32 s86, s86, 1\ns_cbranch_scc1 L_fdone\ns_cbranch_vccz L_fdone')
    if P['fthr']:
        a(f's_bcnt1_i32_b64 s37, vcc\ns_cmp_lt_u32 s37, {P["fthr"]}\ns_cbranch_scc1 L_fpoll\ns_sleep {P["fsl2"]}')
    if P['fsl']: a(f's_sleep {P["fsl"]}')
    a('s_branch L_fpoll')
    a('L_fdone:')
    stamp(a, P, 'g2ok')
    tag_strip(a, range(16, 24), 7)
    for i in range(4): a(f'v_add_f32 v{16+i}, v{16+i}, v{20+i}')
    a('v_permlane16_swap_b32 v16, v17\nv_permlane16_swap_b32 v18, v19\nv_add_f32 v16, v16, v17\nv_add_f32 v18, v18, v19')
    a('v_permlane32_swap_b32 v16, v18\nv_add_f32 v16, v16, v18')
    a('v_add_f32_dpp v16, v16, v16 row_ror:4 row_mask:0xf bank_mask:0xf')
    a('v_add_f32_dpp v16, v16, v16 row_ror:8 row_mask:0xf bank_mask:0xf')
    a('v_add_f32 v16, v16, v24\nv_cvt_pk_bf16_f32 v16, v16, v16')
    a('s_mov_b32 exec_lo, 0x000f000f\ns_mov_b32 exec_hi, 0x000f000f')
    a(f'buffer_store_short v16, v{XR+2}, s[44:47], s63 offen')
    a('s_cmp_lg_u32 s2, 0\ns_cbranch_scc1 L_noep')
    a('v_mov_b32 v8, 0\nv_mov_b32 v9, s84\ns_mov_b64 exec, 1\nbuffer_store_dword v9, v8, s[52:55], 0 offen sc1')
    a('L_noep:')
    if P['hold']:
        a(f'L_hold:\ns_memrealtime s[96:97]\ns_waitcnt lgkmcnt(0)\ns_sub_u32 s96, s96, s98\ns_cmp_lt_u32 s96, {P["hold"]}\ns_cbranch_scc1 L_hold')
    if P['diag']:
        a('s_mov_b64 exec, -1\ns_waitcnt vmcnt(0)')
        stamp(a, P, 'end')
        stamp_store(a, P, stamp_items(P, ['g2ok', 'end']))
    a('s_endpgm')

def dma_loop(a, lab, n, depth, vaddr, sstep, lds0, pol):
    a(f's_mov_b32 s36, 0\ns_mov_b32 s62, {lds0}\ns_mov_b32 s63, {n}')
    a(f'{lab}:')
    a(f's_mov_b32 m0, s62\ns_waitcnt vmcnt({depth-1})')
    a(f'buffer_load_dwordx4 v{vaddr}, s[56:59], s36 offen {pol} lds')
    a(f's_add_u32 s36, s36, {sstep}\ns_add_u32 s62, s62, 1024\ns_sub_u32 s63, s63, 1\ns_cmp_lg_u32 s63, 0\ns_cbranch_scc1 {lab}')

XF, FF, TT = 16, 44, 100
def x_addr(a):
    a('v_and_b32 v10, 15, v0\nv_lshrrev_b32 v9, 4, v0\nv_and_b32 v8, 7, v0\nv_mul_u32_u24 v8, 896, v8')
    a('v_bfe_u32 v3, v0, 3, 1\nv_mul_u32_u24 v3, 448, v3\nv_lshl_add_u32 v8, v9, 4, v8\nv_add_u32 v8, v8, v3')
def x_load(a, P):
    srd(a, 48, 4, None, 7168)
    for ks in range(7): a(f'buffer_load_dwordx4 v[{XF+4*ks}:{XF+4*ks+3}], v8, s[48:51], 0 offen offset:{ks*64} {P["xpol"]}')
def tag_check(a, regs, t0, t1, acc, mask=TMASK):
    for i in range(0, len(regs), 2):
        a(f'v_xor_b32 v{t0}, s85, v{regs[i]}\nv_xor_b32 v{t1}, s85, v{regs[i+1]}')
        a(f'v_or_b32 v{acc}, v{t0}, v{t1}' if i == 0 else f'v_or3_b32 v{acc}, v{acc}, v{t0}, v{t1}')
    a(f'v_and_b32 v{acc}, {mask}, v{acc}\nv_cmp_ne_u32 vcc, 0, v{acc}')
def tag_strip(a, regs, half, ms=82):
    for r in regs: a(f'v_bfi_b32 v{r}, s{ms}, v{half}, v{r}')
_st = [0]
def hand_store(a, ins):
    _st[0] += 1; n = _st[0]
    a(f's_cmp_eq_u32 s87, 0\ns_cbranch_scc1 L_wt{n}\n{ins}\ns_branch L_we{n}\nL_wt{n}:\n{ins} sc1\nL_we{n}:')

def unit_gemm(a, lds, va, st_v, st_s, tagv, ms, before_pub=None):
    TA, DQ = 44, 108
    seq = [(t, ks) for t in range(4) for ks in range(4)]
    def rd(n):
        t, ks = seq[n]; r = TA + 4 * n; o = lds + ks * 4096 + t * 32
        a(f'ds_read_b64_tr_b16 v[{r}:{r+1}], v{va} offset:{o}\nds_read_b64_tr_b16 v[{r+2}:{r+3}], v{va} offset:{o+512}')
    def pub(t):
        for r in range(4): a(f'v_bfi_b32 v{DQ+4*t+r}, s{ms}, v{tagv}, v{DQ+4*t+r}')
        hand_store(a, f'buffer_store_dwordx4 v[{DQ+4*t}:{DQ+4*t+3}], v{st_v}, s[52:55], s{st_s} offen offset:{t*64}')
    for n in range(6): rd(n)
    for n, (t, ks) in enumerate(seq):
        if n + 6 < 16: rd(n + 6)
        a(f's_waitcnt lgkmcnt({2*min(6, 15-n)})')
        r = TA + 4 * n; d = DQ + 4 * t
        c = '0' if ks == 0 else f'v[{d}:{d+3}]'
        a(f'v_mfma_f32_16x16x32_bf16 v[{d}:{d+3}], v[{r}:{r+3}], v[{XF+4*ks}:{XF+4*ks+3}], {c}')
        if before_pub is None and n in (7, 11, 15): pub(n // 4 - 1)
    if before_pub is not None:
        before_pub()
        for t in range(3): pub(t)
    pub(3)

def helper(a, P):
    stamp(a, P, 'hstart')
    if P['cpf']:
        a('s_getpc_b64 s[56:57]\ns_mov_b32 s58, 4352\ns_mov_b32 s59, 0x20000\nv_lshlrev_b32 v1, 6, v0')
        a('buffer_load_dword v15, v1, s[56:59], 0 offen offset:256')
    x_addr(a)
    a('v_lshrrev_b32 v4, 3, v0\nv_lshlrev_b32 v1, 13, v4\nv_and_b32 v2, 7, v0\nv_lshl_add_u32 v1, v2, 4, v1')
    a('v_mul_u32_u24 v4, 3584, v4\nv_lshl_add_u32 v4, v2, 4, v4')
    a('s_and_b32 s63, s32, 1\ns_bfe_u32 s62, s32, 0x10001\ns_mul_i32 s64, s62, 224\ns_lshl_b32 s36, s63, 7\ns_add_u32 s64, s64, s36')
    a('s_lshl_b32 s65, s63, 5\ns_sub_u32 s65, 127, s65\ns_lshr_b32 s66, s32, 2')
    a('s_lshl_b32 s37, s64, 13\ns_lshl_b32 s39, s31, 3\ns_add_u32 s39, s39, s66\ns_lshl_b32 s39, s39, 7\ns_add_u32 s37, s37, s39')
    a('s_lshl_b32 s39, s65, 13\ns_add_u32 s39, s39, 128')
    a('s_lshl_b32 s60, s63, 8\ns_mul_i32 s61, s63, 192\ns_sub_u32 s61, 192, s61')
    a('s_waitcnt lgkmcnt(0)')
    stamp(a, P, 'hkarg')
    a('s_load_dword s84, s[28:29], 0')
    srd(a, 48, 4, None, 7168)
    for ks in range(7):
        if ks < 3: a(f'buffer_load_dwordx4 v[{XF+4*ks}:{XF+4*ks+3}], v8, s[48:51], s60 offen offset:{ks*64} {P["xpol"]}')
        else: a(f'buffer_load_dwordx4 v[{XF+4*ks}:{XF+4*ks+3}], v8, s[48:51], s61 offen offset:{(ks-3)*64} {P["xpol"]}')
    srd(a, 56, 10, 's37', 's39')
    for i in range(16):
        a(f's_mov_b32 m0, {L_WQ+i*1024}\ns_mov_b32 s36, {i*65536}')
        a(f'buffer_load_dwordx4 v1, s[56:59], s36 offen {P["wpol"]} lds')
    stamp(a, P, 'wqiss')
    a(f'v_mov_b32 v126, -1\nv_mov_b32 v127, -1\nv_lshlrev_b32 v3, 3, v0\nv_add_u32 v3, {L_ML}, v3\nv_mov_b32 v5, {L_TAG}')
    a('s_mov_b64 exec, 0xffff\nds_write_b64 v3, v[126:127]\nds_write_b64 v5, v[126:127]\ns_mov_b64 exec, -1')
    srd(a, 52, 28, None, WS_USED)
    a(f'v_lshlrev_b32 v2, 4, v0\ns_getreg_b32 s68, hwreg(HW_REG_XCC_ID)\ns_and_b32 s68, s68, 15\ns_lshl_b32 s68, s68, 12')
    a(f's_lshl_b32 s69, s31, 12\ns_add_u32 s69, s69, {XBUF}\ns_lshl_b32 s37, s32, 7\ns_add_u32 s37, s37, s69\ns_waitcnt lgkmcnt(0)')
    a(f's_add_u32 s84, s84, 0x9E3779B9\ns_and_b32 s85, s84, {TMASK}\ns_or_b32 s68, s68, s85\nv_mov_b32 v6, s85\nv_mov_b32 v124, s68')
    a('s_mov_b64 exec, 1\nbuffer_store_dword v124, v2, s[52:55], s37 offen sc1\ns_mov_b64 exec, -1')
    stamp(a, P, 'xst')
    a('s_barrier')
    a('s_mul_i32 s67, s31, 7\ns_lshr_b32 s67, s67, 1\ns_add_u32 s67, s67, s66\ns_mul_i32 s37, s64, 3584\ns_lshl_b32 s39, s67, 7\ns_add_u32 s37, s37, s39')
    a('s_mul_i32 s39, s65, 3584\ns_add_u32 s39, s39, 128\ns_cmp_lt_u32 s66, 4\ns_cselect_b32 s37, s37, 0\ns_cselect_b32 s39, s39, 0')
    srd(a, 56, 16, 's37', 's39')
    a('v_and_b32 v125, 31, v0\nv_lshlrev_b32 v125, 7, v125')
    a(f'v_mov_b32 v14, {hex(OOB)}\ns_mov_b32 s82, {TMASK}\ns_mov_b32 s81, {QMASK}\ns_mov_b32 s83, {hex(f2u(C_EXP))}')
    a(f'v_bfe_u32 v3, v0, 2, 2\nv_lshl_add_u32 v12, v9, 3, v3\nv_lshlrev_b32 v12, 7, v12\nv_and_b32 v5, 3, v0\nv_lshl_add_u32 v12, v5, 3, v12')
    a(f'v_and_b32 v5, 7, v0\nv_lshlrev_b32 v13, 16, v5\nv_lshl_add_u32 v13, v9, 4, v13\nv_bfe_u32 v3, v0, 3, 1\nv_cmp_eq_u32 vcc, s62, v3')
    a(f'v_lshlrev_b32 v5, 12, v5\nv_lshl_add_u32 v5, v9, 4, v5\nv_cndmask_b32 v13, v14, v13, vcc\nv_cndmask_b32 v5, v14, v5, vcc')
    a(f's_and_b32 s37, s32, 3\ns_lshl_b32 s60, s37, 14\ns_lshl_b32 s39, s31, 11\ns_add_u32 s60, s60, s39\ns_lshl_b32 s39, s66, 8\ns_add_u32 s60, s60, s39\ns_add_u32 s60, s60, {QBUF}')
    a(f's_lshl_b32 s61, s37, 10\ns_lshl_b32 s39, s66, 8\ns_add_u32 s61, s61, s39\ns_lshl_b32 s39, s31, 15\ns_add_u32 s61, s61, s39\ns_add_u32 s61, s61, {HBUF}')
    a('s_waitcnt vmcnt(17)')
    stamp(a, P, 'xland')
    layernorm(a, XF, FF, TT)
    stamp(a, P, 'lndone')
    a('s_mov_b64 exec, 0xffffffff\nbuffer_load_dword v124, v125, s[52:55], s69 offen sc1\ns_mov_b64 exec, -1')
    for i in range(16):
        a(f's_mov_b32 m0, {L_W1+i*1024}\ns_mov_b32 s36, {i*8*3584}')
        a(f'buffer_load_dwordx4 v4, s[56:59], s36 offen {P["wpol"]} lds')
    a('s_waitcnt vmcnt(18) lgkmcnt(0)')
    stamp(a, P, 'wqland')
    def loc_check():
        a('s_waitcnt vmcnt(16)\nv_cmp_ne_u32 vcc, s68, v124\ns_cmp_eq_u32 vcc_lo, 0')
        for k in range(P['xretry']):
            a('s_cbranch_scc1 L_xok\ns_mov_b64 exec, 0xffffffff\nbuffer_load_dword v124, v125, s[52:55], s69 offen sc1\ns_mov_b64 exec, -1')
            a('s_waitcnt vmcnt(0)\nv_cmp_ne_u32 vcc, s68, v124\ns_cmp_eq_u32 vcc_lo, 0')
        a('L_xok:')
        a('s_cselect_b32 s87, 1, 0' if P['loc'] else 's_mov_b32 s87, 0')
        stamp(a, P, 'xid')
        if P['diag'] and 'locv' in pts(P):
            a('s_cmp_lg_u32 s87, 0\ns_cbranch_scc1 L_locv'); stamp(a, P, 'locv'); a('L_locv:')
    unit_gemm(a, L_WQ, 12, 13, 60, 6, 81, loc_check)
    stamp(a, P, 'qpub')
    a('s_cmp_lt_u32 s66, 4\ns_cbranch_scc0 L_noh')
    layernorm(a, XF, FF, TT, 16)
    a('s_waitcnt vmcnt(4)')
    unit_gemm(a, L_W1, 12, 5, 61, 6, 82)
    a('L_noh:')
    stamp(a, P, 'hpub')
    a(f's_lshl_b32 s61, s33, 16\ns_lshl_b32 s37, s31, 11\ns_add_u32 s61, s61, s37\ns_add_u32 s61, s61, {QBUF}')
    a(f's_mov_b32 s86, {P["spin"]}\nv_mov_b32 v7, 0x80')
    a('s_cmp_lt_u32 s66, 4\ns_cbranch_scc1 L_qpoll')
    if P['qsl']: a(f's_sleep {P["qsl"]}')
    a('L_qpoll:')
    a('s_mov_b32 s36, s61')
    for kq in range(4):
        for m in range(2): a(f'buffer_load_dwordx4 v[{44+8*kq+4*m}:{47+8*kq+4*m}], v2, s[52:55], s36 offen offset:{m*1024} sc1')
        if kq < 3: a('s_add_u32 s36, s36, 16384')
    a(f's_mov_b64 exec, 0xffffffff\nbuffer_load_dword v124, v125, s[52:55], s69 offen sc1\ns_mov_b64 exec, -1\ns_waitcnt vmcnt(0)')
    tag_check(a, range(44, 76), 16, 17, 18, QMASK)
    a(f's_sub_u32 s86, s86, 1\ns_cbranch_scc1 L_qdone\ns_cbranch_vccz L_qdone\ns_sleep {P["qsl2"]}\ns_branch L_qpoll')
    a('L_qdone:')
    stamp(a, P, 'qok')
    a('v_cmp_ne_u32 vcc, s68, v124\ns_cmp_eq_u32 vcc_lo, 0')
    a('s_cselect_b32 s87, 1, 0' if P['loc'] else 's_mov_b32 s87, 0')
    tag_strip(a, range(44, 76), 7, 81)
    for kq in range(1, 4):
        for m in range(4): a(f'v_pk_add_f32 v[{44+2*m}:{45+2*m}], v[{44+2*m}:{45+2*m}], v[{44+8*kq+2*m}:{45+8*kq+2*m}]')
    a(f'v_lshlrev_b32 v3, 3, v0\nv_add_u32 v3, {L_Q}, v3\nv_mov_b32 v4, {L_TAG}\nv_mov_b32 v16, s84\nv_mov_b32 v17, s87')
    for m in range(4): a(f'v_cvt_pk_bf16_f32 v{52+m}, v{44+2*m}, v{45+2*m}')
    a('ds_write_b64 v3, v[52:53]\nds_write_b64 v3, v[54:55] offset:512\ns_waitcnt lgkmcnt(0)\nds_write_b64 v4, v[16:17]')
    stamp(a, P, 'B1')
    a('s_cmp_lt_u32 s32, 28\ns_cbranch_scc0 L_now')
    a('v_lshrrev_b32 v1, 3, v0\nv_mul_u32_u24 v1, 896, v1\nv_and_b32 v3, 7, v0\nv_lshl_add_u32 v1, v3, 4, v1')
    a('s_and_b32 s64, s32, 3\ns_lshl_b32 s65, s31, 2\ns_add_u32 s65, s65, s64')
    a(f's_mul_i32 s37, s65, 50176\ns_lshl_b32 s39, s66, 7\ns_add_u32 s37, s37, s39\ns_sub_u32 s39, {1792*896}, s37')
    srd(a, 56, 20, 's37', 's39')
    dma_loop(a, 'L_w2', 8, P['DH'], 1, 8 * 896, L_W2, P['mpol'])
    if not P['nowo']:
        a(f's_mul_i32 s37, s65, 114688\ns_lshl_b32 s39, s66, 7\ns_add_u32 s37, s37, s39\ns_sub_u32 s39, {4096*896}, s37')
        srd(a, 56, 12, 's37', 's39')
        dma_loop(a, 'L_wo', 16, P['DH'], 1, 8 * 896, L_WO, P['opol'])
    stamp(a, P, 'wodone')
    a('v_min_u32 v3, 13, v10\nv_lshlrev_b32 v4, 12, v9\nv_lshl_add_u32 v4, v3, 4, v4\nv_lshlrev_b32 v5, 3, v3')
    a(f's_lshl_b32 s61, s31, 15\ns_mul_i32 s37, s64, 224\ns_add_u32 s61, s61, s37\ns_and_b32 s37, s31, 1\ns_lshl_b32 s37, s37, 7\ns_add_u32 s61, s61, s37\ns_add_u32 s61, s61, {HBUF}')
    srd(a, 48, 18, None, 3584)
    a(f's_mul_i32 s37, s65, 112\nbuffer_load_dwordx2 v[20:21], v5, s[48:51], s37 offen\ns_add_u32 s60, s61, 16384\ns_mov_b32 s86, {P["spin"]}\nv_mov_b32 v7, 0x200')
    a('L_hp:')
    for ps in range(2):
        for kq in range(4): a(f'buffer_load_dwordx4 v[{44+16*ps+4*kq}:{47+16*ps+4*kq}], v4, s[52:55], s{61-ps} offen offset:{kq*1024} sc1')
    a('s_waitcnt vmcnt(0)')
    tag_check(a, range(44, 76), 16, 17, 18)
    a('s_sub_u32 s86, s86, 1\ns_cbranch_scc1 L_hpd\ns_cbranch_vccz L_hpd\ns_sleep 16\ns_branch L_hp')
    a('L_hpd:')
    tag_strip(a, range(44, 76), 7)
    for ps in range(2):
        for kq in range(1, 4):
            for m in range(2): a(f'v_pk_add_f32 v[{44+16*ps+2*m}:{45+16*ps+2*m}], v[{44+16*ps+2*m}:{45+16*ps+2*m}], v[{44+16*ps+4*kq+2*m}:{45+16*ps+4*kq+2*m}]')
    unpack(a, 20, 24, 2)
    a('v_cvt_pk_bf16_f32 v16, v44, v45\nv_cvt_pk_bf16_f32 v17, v46, v47\nv_cvt_pk_bf16_f32 v18, v60, v61\nv_cvt_pk_bf16_f32 v19, v62, v63')
    unpack(a, 16, 32, 4)
    for i in range(8): a(f'v_add_f32 v{32+i}, v{32+i}, v{24+(i&3)}')
    for i in range(4): a(f'v_cvt_pk_bf16_f32 v{16+i}, v{32+2*i}, v{33+2*i}')
    unpack(a, 16, 32, 4)
    k0 = 2 * 0.7978845608028654 * math.log2(math.e); k1 = k0 * 0.044715
    a(f's_mov_b32 s62, {hex(f2u(-k1))}\nv_mov_b32 v15, {hex(f2u(-k0))}')
    for i in range(8): a(f'v_mul_f32 v{44+i}, v{32+i}, v{32+i}')
    for i in range(8): a(f'v_fma_f32 v{44+i}, v{44+i}, s62, v15')
    for i in range(8): a(f'v_mul_f32 v{44+i}, v{44+i}, v{32+i}')
    for i in range(8): a(f'v_exp_f32 v{44+i}, v{44+i}')
    for i in range(8): a(f'v_add_f32 v{44+i}, 1.0, v{44+i}')
    for i in range(8): a(f'v_rcp_f32 v{44+i}, v{44+i}')
    for i in range(8): a(f'v_mul_f32 v{32+i}, v{32+i}, v{44+i}')
    a('v_cmp_gt_u32 vcc, 14, v10')
    for i in range(4): a(f'v_cvt_pk_bf16_f32 v{16+i}, v{32+2*i}, v{33+2*i}')
    for i in range(4): a(f'v_cndmask_b32 v{16+i}, 0, v{16+i}, vcc')
    a(f'v_mul_u32_u24 v3, {HSTR}, v9\nv_lshl_add_u32 v3, v10, 3, v3\nv_add_u32 v3, {L_H}, v3')
    a(f'ds_write_b64 v3, v[16:17]\nds_write_b64 v3, v[18:19] offset:{4*HSTR}')
    a(f'v_and_b32 v3, 7, v0\nv_mul_u32_u24 v3, {HSTR}, v3\nv_lshl_add_u32 v3, v9, 3, v3\nv_add_u32 v3, {L_H}, v3')
    a(f'v_bfe_u32 v4, v0, 2, 2\nv_lshl_add_u32 v4, v9, 2, v4\nv_lshlrev_b32 v4, 7, v4\nv_and_b32 v5, 3, v0\nv_lshl_add_u32 v4, v5, 3, v4\nv_add_u32 v4, {L_W2}, v4')
    a('s_waitcnt lgkmcnt(0)')
    for k in range(2): a(f'ds_read_b64 v[{16+4*k}:{17+4*k}], v3 offset:{k*64}\nds_read_b64 v[{18+4*k}:{19+4*k}], v3 offset:{k*64+32}')
    for t in range(4):
        for k in range(2):
            r = 44 + 8 * t + 4 * k
            a(f'ds_read_b64_tr_b16 v[{r}:{r+1}], v4 offset:{k*4096+t*32}\nds_read_b64_tr_b16 v[{r+2}:{r+3}], v4 offset:{k*4096+2048+t*32}')
    a(f'v_add_u32 v3, {L_C}, v2\ns_waitcnt lgkmcnt(0)')
    for k in range(2):
        for t in range(4):
            r = 44 + 8 * t + 4 * k; d = 76 + 4 * t
            a(f'v_mfma_f32_16x16x32_bf16 v[{d}:{d+3}], v[{16+4*k}:{19+4*k}], v[{r}:{r+3}], ' + ('0' if k == 0 else f'v[{d}:{d+3}]'))
    for t in range(4): a(f'ds_write_b128 v3, v[{76+4*t}:{79+4*t}] offset:{t*1024}')
    a('L_now:')
    stamp(a, P, 'mend')
    a(f'v_and_b32 v3, 15, v0\nv_lshlrev_b32 v3, 3, v3\nv_add_u32 v3, {L_ML}, v3\ns_mov_b32 s86, {P["spin"]*16}')
    a('L_mlw:')
    a('ds_read_b64 v[16:17], v3\ns_waitcnt lgkmcnt(0)\nv_cmp_eq_u32 vcc, -1, v16')
    a('s_sub_u32 s86, s86, 1\ns_cbranch_scc1 L_mlwd\ns_cbranch_vccz L_mlwd\ns_sleep 4\ns_branch L_mlw')
    a('L_mlwd:')
    d8 = ('quad_perm:[1,0,3,2]', 'quad_perm:[2,3,0,1]', 'row_half_mirror')
    a('v_mov_b32 v18, v16')
    for m in d8: a(f'v_max_f32_dpp v18, v18, v18 {m} row_mask:0xf bank_mask:0xf')
    a('v_sub_f32 v20, v16, v18\nv_mul_f32 v20, s83, v20\nv_exp_f32 v20, v20\nv_mul_f32 v19, v20, v17')
    for m in d8: a(f'v_add_f32_dpp v19, v19, v19 {m} row_mask:0xf bank_mask:0xf')
    tag_strip(a, (18, 19), 6)
    a(f's_lshl_b32 s37, s38, 7\ns_add_u32 s37, s37, {MLX}\ns_mov_b64 exec, 0x101')
    hand_store(a, 'buffer_store_dwordx2 v[18:19], v0, s[52:55], s37 offen')
    a('s_mov_b64 exec, -1')
    stamp(a, P, 'mlpub')
    a(f's_sleep {P["msl"]}')
    a(f's_and_b32 s61, s38, 0xfc\ns_lshl_b32 s61, s61, 7\ns_add_u32 s61, s61, {MLX}\ns_mov_b32 s86, {P["spin"]}')
    a('v_and_b32 v3, 3, v0\nv_lshlrev_b32 v3, 7, v3\nv_and_b32 v4, 8, v0\nv_add_u32 v3, v3, v4')
    a('L_mlp2:')
    a('buffer_load_dwordx2 v[24:25], v3, s[52:55], s61 offen sc1\ns_waitcnt vmcnt(0)')
    tag_check(a, (24, 25), 26, 27, 28)
    a('s_sub_u32 s86, s86, 1\ns_cbranch_scc1 L_mlp2d\ns_cbranch_vccz L_mlp2d\ns_sleep 16\ns_branch L_mlp2')
    a('L_mlp2d:')
    stamp(a, P, 'mlok')
    a(f'v_and_b32 v24, 0xffff0000, v24\nv_and_b32 v25, {hex(0xffffffff ^ TMASK)}, v25\nv_mov_b32 v28, v24')
    for m in d8[:2]: a(f'v_max_f32_dpp v28, v28, v28 {m} row_mask:0xf bank_mask:0xf')
    a('v_sub_f32 v29, v24, v28\nv_mul_f32 v29, s83, v29\nv_exp_f32 v29, v29\nv_mul_f32 v29, v29, v25')
    for m in d8[:2]: a(f'v_add_f32_dpp v29, v29, v29 {m} row_mask:0xf bank_mask:0xf')
    a('v_sub_f32 v30, v16, v28\nv_mul_f32 v30, s83, v30\nv_exp_f32 v30, v30\nv_rcp_f32 v29, v29\nv_mul_f32 v30, v30, v29')
    a(f'v_lshlrev_b32 v3, 2, v0\nv_add_u32 v3, {L_F}, v3\ns_mov_b64 exec, 0xffff\nds_write_b32 v3, v30\ns_mov_b64 exec, -1')
    if P['tpf']:
        a('s_getpc_b64 s[56:57]\nL_pc2:\ns_add_u32 s56, s56, L_tail-L_pc2\ns_addc_u32 s57, s57, 0\ns_mov_b32 s58, L_end-L_tail\ns_mov_b32 s59, 0x20000')
        a('v_lshlrev_b32 v1, 6, v0\nbuffer_load_dword v15, v1, s[56:59], 0 offen')
    a('s_waitcnt vmcnt(0) lgkmcnt(0)')
    stamp(a, P, 'hend')
    stamp_store(a, P, stamp_items(P, H_PTS))
    a('s_endpgm')

def body(P):
    a = Asm()
    a('s_cmp_ge_u32 s2, 256\ns_cbranch_scc1 L_end')
    a('s_load_dwordx16 s[4:19], s[0:1], 0\ns_load_dwordx8 s[20:27], s[0:1], 64\ns_load_dwordx2 s[28:29], s[0:1], 96')
    a('v_lshrrev_b32 v1, 6, v0\nv_and_b32 v0, 63, v0\nv_readfirstlane_b32 s30, v1')
    a('s_and_b32 s31, s2, 7\ns_lshr_b32 s32, s2, 3')
    if P['bmap'] == 0: a('s_lshr_b32 s33, s32, 2\ns_and_b32 s34, s32, 3')
    else: a('s_and_b32 s33, s32, 7\ns_lshr_b32 s34, s32, 3')
    a('s_lshl_b32 s37, s31, 2\ns_add_u32 s34, s34, s37\ns_lshl_b32 s38, s33, 5\ns_add_u32 s38, s38, s34')
    stamp_init(a, P)
    a('s_cmp_lg_u32 s30, 0\ns_cbranch_scc1 L_stream')
    helper(a, P)
    streamer(a, P)
    a('L_end:\ns_endpgm')
    txt, n = a.text()
    return txt, n

def vgprs(P): return max(56 + 4 * P['R'] + 4, 156)

def kernel(P):
    txt, n = body(P)
    nm = P['name']
    txt = txt.replace('L_', f'L{nm[-24:]}_') if P.get('uniq') else txt
    return txt

def final_file(P):
    ref = open(f'cdna_kernels/{NAME}.s.ref').read()
    head = ref[:ref.index('; Override launch')]
    nm = P['name']; vg = vgprs(P)
    return head + f'''; Single launch: 256 workgroups x (8 streaming waves + 1 helper wave). Generated by gen/gen.py.
; @launch grid=(256,1,1) block=({block(P)},1,1) lds={LDS_BYTES}
.amdgcn_target "amdgcn-amd-amdhsa--gfx950"
.text
.globl {nm}
.p2align 8
.type {nm},@function
{nm}:
{kernel(P)}
.section .rodata,"a"
.p2align 6
.amdhsa_kernel {nm}
  .amdhsa_next_free_vgpr {vg}
  .amdhsa_next_free_sgpr 102
  .amdhsa_accum_offset {(vg+3)//4*4}
  .amdhsa_group_segment_fixed_size 0
  .amdhsa_kernarg_size 104
  .amdhsa_user_sgpr_count 2
  .amdhsa_user_sgpr_kernarg_segment_ptr 1
  .amdhsa_system_sgpr_workgroup_id_x 1
.end_amdhsa_kernel
'''

if __name__ == '__main__':
    P = dict(DEF)
    out = f'cdna_kernels/{NAME}.s'
    for kv in sys.argv[1:]:
        k, v = kv.split('=', 1)
        if k == 'out': out = v
        else: P[k] = type(DEF[k])(v) if not isinstance(DEF[k], bool) else v == '1'
    open(out, 'w').write(final_file(P))
    print('wrote', out)
```

```python
import sys, math, struct
from asmlib import Asm

NAME = 'parallel_sum__gqa_block_cached__mixer_channel_mlp__decode'
def f2u(x): return struct.unpack('<I', struct.pack('<f', x))[0]

CBUF, XBUF, MLX, OBUF, PBUF, HBUF, QBUF, WS_USED = 0x4000, 0x8000, 0x10000, 0x20000, 0xA0000, 0x120000, 0x160000, 0x1E0000
TMASK = 0x3FF
QMASK = 0xFF
STAMP_OFF = 536870912 - (1 << 20)
L_WQ = 0; L_W1 = 16384; L_WO = 32768; L_W2 = 49152
L_PART = 57344
L_C = L_PART + 16384
OSTR = 264; HSTR = 136
L_O = L_C + 4096
L_H = L_O + 8 * OSTR
L_Q = L_H + 8 * HSTR
L_ML = L_Q + 1024
L_F = L_ML + 128
L_TAG = L_F + 64
LDS_BYTES = L_TAG + 16
assert L_Q % 16 == 0 and LDS_BYTES > 81920
OOB = 0x7F000000
C_EXP = math.log2(math.e) / 16.0

DEF = dict(R=24, D=3, D0=3, DH=2, qsl=16, qsl2=4, msl=32, cpf=1, tpf=1, vt=0, wb=0, amap='13 14 9 10 12 17 18 16 15 11 1024 8 513 0 128', hpat='', swz=0, ppol='sc1', lpol='sc1', nocomp=0, nowo=0, ctl=0, cks='28 44 60 76 92 104', t1=6, t2=10, cstr=256, m1=0x55, m2=0xff, kpat='', vpat='', loc=1, n2=80, xretry=1, Dend=0, nend=16, gsl=0, fsl=0, fthr=0, fsl2=24, nornd=0, nom=0, pol='nt', wpol='nt', xpol='', opol='nt', mpol='nt', diag=False, budget=2,
           name=NAME + '_kernel', spin=1 << 16, hold=0, bmap=0, pts='start+qpub+B1+Kdone+hend+B2+end')
def block(P): return 576

def srd(a, n, base, off, size):
    if off is None:
        a(f's_mov_b32 s{n}, s{base}\ns_mov_b32 s{n+1}, s{base+1}')
    else:
        a(f's_add_u32 s{n}, s{base}, {off}\ns_addc_u32 s{n+1}, s{base+1}, 0')
    a(f's_mov_b32 s{n+2}, {size}\ns_mov_b32 s{n+3}, 0x20000')

def wave_sum(a, v, s):
    for m in ('row_shr:1', 'row_shr:2', 'row_shr:4', 'row_shr:8'):
        a(f'v_add_f32_dpp v{v}, v{v}, v{v} {m} row_mask:0xf bank_mask:0xf')
    a(f'v_add_f32_dpp v{v}, v{v}, v{v} row_bcast:15 row_mask:0xa bank_mask:0xf')
    a(f'v_add_f32_dpp v{v}, v{v}, v{v} row_bcast:31 row_mask:0xc bank_mask:0xf')
    a(f'v_readlane_b32 s{s}, v{v}, 63')

def rnd_bf16(a, v):
    a(f'v_cvt_pk_bf16_f32 v{v}, v{v}, v{v}\nv_and_b32 v{v}, 0xffff0000, v{v}')

def unpack(a, src, dst, n):
    for i in range(n):
        a(f'v_and_b32 v{dst+2*i+1}, 0xffff0000, v{src+i}\nv_lshlrev_b32 v{dst+2*i}, 16, v{src+i}')

def row_sum(a, v, t):
    a(f'v_add_f32_dpp v{v}, v{v}, v{v} row_ror:8 row_mask:0xf bank_mask:0xf')
    xgroup(a, 'v_add_f32', v, t)

def layernorm(a, X, F, T, nq=28):
    pr = lambda r: f'v[{r}:{r+1}]'
    unpack(a, X, F, 28)
    a(f'v_pk_add_f32 {pr(T)}, {pr(F)}, {pr(F+2)}\nv_pk_add_f32 {pr(T+2)}, {pr(F+4)}, {pr(F+6)}')
    for i in range(4, 28): a(f'v_pk_add_f32 {pr(T+2*(i&1))}, {pr(T+2*(i&1))}, {pr(F+2*i)}')
    a(f'v_pk_add_f32 {pr(T)}, {pr(T)}, {pr(T+2)}\nv_add_f32 v{T}, v{T}, v{T+1}')
    row_sum(a, T, T + 1)
    a(f'v_mul_f32 v{T}, {hex(f2u(-1/448))}, v{T}\nv_mov_b32 v{T+1}, v{T}')
    for i in range(28):
        d = T + 4 + 2 * (i & 1)
        a(f'v_pk_add_f32 {pr(d)}, {pr(F+2*i)}, {pr(T)}')
        if i == 0: a(f'v_pk_mul_f32 {pr(T+2)}, {pr(d)}, {pr(d)}')
        else: a(f'v_pk_fma_f32 {pr(T+2)}, {pr(d)}, {pr(d)}, {pr(T+2)}')
    a(f'v_add_f32 v{T+2}, v{T+2}, v{T+3}')
    row_sum(a, T + 2, T + 3)
    rnd_bf16(a, T)
    a(f'v_mov_b32 v{T+1}, v{T}\nv_mul_f32 v{T+2}, {hex(f2u(1/448))}, v{T+2}')
    rnd_bf16(a, T + 2)
    a(f'v_add_f32 v{T+2}, {hex(f2u(1e-5))}, v{T+2}')
    rnd_bf16(a, T + 2)
    a(f'v_sqrt_f32 v{T+2}, v{T+2}')
    for i in range(nq): a(f'v_pk_add_f32 {pr(F+2*i)}, {pr(F+2*i)}, {pr(T)}')
    rnd_bf16(a, T + 2)
    a(f'v_rcp_f32 v{T+2}, v{T+2}')
    for i in range(nq): a(f'v_cvt_pk_bf16_f32 v{X+i}, v{F+2*i}, v{F+2*i+1}')
    a(f'v_mov_b32 v{T+3}, v{T+2}')
    unpack(a, X, F, nq)
    for i in range(nq): a(f'v_pk_mul_f32 {pr(F+2*i)}, {pr(F+2*i)}, {pr(T+2)}')
    for i in range(nq): a(f'v_cvt_pk_bf16_f32 v{X+i}, v{F+2*i}, v{F+2*i+1}')

def xgroup(a, op, v, t):
    a(f'v_mov_b32 v{t}, v{v}\nv_permlane16_swap_b32 v{v}, v{t}\n{op} v{v}, v{v}, v{t}')
    a(f'v_mov_b32 v{t}, v{v}\nv_permlane32_swap_b32 v{v}, v{t}\n{op} v{v}, v{v}, v{t}')

S_PTS = ['start', 'fst', 'fcnt', 's8', 's44', 's96', 'skarg', 'siss0', 'pst', 'g2ok', 'sB1a', 'sB1', 'Kdone', 'Vlast', 'B2', 'ost', 'gok', 'B3', 'end']
M_PTS = ['mstart', 'mw1', 'mw2', 'mend']
H_PTS = ['hstart', 'mend', 'locv', 'xst', 'xid', 'hpub', 'wob', 'qack', 'xland', 'lndone', 'wtpub', 'wtok', 'hkarg', 'wqiss', 'hB0', 'wqland', 'qpub', 'qp1', 'qok', 'B1', 'wodone', 'mlpub', 'mlok', 'hend']
def pts(P): return P['pts'].split('+') if isinstance(P['pts'], str) else P['pts']
def stamp(a, P, name):
    if P['diag'] and name in pts(P):
        reg = 88 + 2 * pts(P).index(name)
        a(f's_memrealtime s[{reg}:{reg+1}]\ns_waitcnt lgkmcnt(0)')
def stamp_items(P, lst): return [(i, 88 + 2 * i) for i, n in enumerate(pts(P)) if n in lst]
def stamp_init(a, P):
    if P['diag']:
        for i in range(7): a(f's_mov_b64 s[{88+2*i}:{89+2*i}], 0')

def stamp_store(a, P, items, hw=False):
    if not P['diag']: return
    a('s_waitcnt lgkmcnt(0)')
    a(f's_lshl_b32 s37, s2, 6\ns_add_u32 s37, s37, {STAMP_OFF}')
    srd(a, 40, 28, 's37', 64)
    a('s_mov_b64 exec, 1\nv_mov_b32 v1, 0')
    for idx, reg in items:
        a(f'v_mov_b32 v2, s{reg}\nv_mov_b32 v3, s{reg+1}\nbuffer_store_dwordx2 v[2:3], v1, s[40:43], 0 offen offset:{idx*8}')
    if hw:
        a('s_getreg_b32 s38, hwreg(HW_REG_XCC_ID)\ns_getreg_b32 s39, hwreg(HW_REG_HW_ID)')
        a('v_mov_b32 v2, s38\nv_mov_b32 v3, s39\nbuffer_store_dwordx2 v[2:3], v1, s[40:43], 0 offen offset:56')
    a('s_mov_b64 exec, -1')

def q_wait(a, P, lab):
    a(f's_mov_b32 s82, {TMASK}\nv_mov_b32 v5, {L_TAG}\ns_mov_b32 s86, {P["spin"]*16}')
    a(f'{lab}:\nds_read_b64 v[6:7], v5\ns_waitcnt lgkmcnt(0)\nv_cmp_eq_u32 vcc, -1, v7')
    a(f's_sub_u32 s86, s86, 1\ns_cbranch_scc1 {lab}d\ns_cbranch_vccz {lab}d\ns_sleep 2\ns_branch {lab}\n{lab}d:')
    a(f'v_readfirstlane_b32 s84, v6\nv_readfirstlane_b32 s87, v7\ns_and_b32 s85, s84, {TMASK}')

def streamer(a, P):
    a('L_stream:\ns_sub_u32 s30, s30, 1')
    R, D, D0, pol = P['R'], P['D'], P['D0'], P['pol']
    Q, S, DT, RING = 8, 16, 48, 56
    slot = lambda i: RING + 4 * (i % R)
    sl = lambda i: f'v[{slot(i)}:{slot(i)+3}]'
    stamp(a, P, 'start')
    if P['hold']: a('s_memrealtime s[98:99]')
    am = [int(x) for x in P['amap'].split()]
    ab, gb, wb, xm = am[0:2], am[2:7], am[7:10], am[10:15]
    a(f'v_and_b32 v1, 3, v0\nv_lshlrev_b32 v1, 4, v1\nv_lshrrev_b32 v3, 4, v0\nv_lshl_add_u32 v1, v3, 6, v1')
    a(f'v_bfe_u32 v3, v0, 2, 1\nv_lshl_add_u32 v1, v3, {ab[0]}, v1\nv_bfe_u32 v3, v0, 3, 1\nv_lshl_add_u32 v1, v3, {ab[1]}, v1')
    a(f'v_and_b32 v2, 15, v0\nv_lshlrev_b32 v2, 4, v2\nv_bfe_u32 v3, v0, 4, 1\nv_lshl_add_u32 v2, v3, {ab[0]}, v2\nv_lshrrev_b32 v3, 5, v0\nv_lshl_add_u32 v2, v3, {ab[1]}, v2')
    a('s_lshl_b32 s37, s38, 19\ns_mov_b32 s35, 0')
    use = 0
    for m in xm: use |= m
    a('s_mov_b32 s36, 0')
    if use & 7: a('s_add_u32 s36, s30, s32\ns_and_b32 s36, s36, 7')
    if use & 0xf8: a('s_lshl_b32 s39, s32, 3\ns_or_b32 s36, s36, s39')
    if use & 0x700: a('s_lshl_b32 s39, s31, 8\ns_or_b32 s36, s36, s39')
    if use & 0x3800: a('s_lshl_b32 s39, s30, 11\ns_or_b32 s36, s36, s39')
    for k in range(5):
        if xm[k] and xm[k] & (xm[k] - 1) == 0:
            a(f's_bfe_u32 s39, s36, {0x10000 + xm[k].bit_length() - 1}\ns_lshl_b32 s39, s39, {gb[k]}\ns_or_b32 s35, s35, s39')
        elif xm[k]:
            a(f's_and_b32 s39, s36, {xm[k]}\ns_bcnt1_i32_b32 s39, s39\ns_and_b32 s39, s39, 1\ns_lshl_b32 s39, s39, {gb[k]}\ns_or_b32 s35, s35, s39')
    for k in range(3): a(f's_bfe_u32 s39, s30, {0x10000 + k}\ns_lshl_b32 s39, s39, {wb[k]}\ns_or_b32 s35, s35, s39')
    goff = lambda G: sum(((G >> k) & 1) << gb[k] for k in range(5))
    a('s_waitcnt lgkmcnt(0)')
    stamp(a, P, 'skarg')
    srd(a, 40, 6, 's37', 524288)
    srd(a, 44, 8, 's37', 524288)
    def issue(i):
        j = i % 64; G, t = j >> 1, j & 1
        if t == 0: a(f's_xor_b32 s36, s35, {goff(G)}')
        r, va = ('s[40:43]', 'v1') if i < 64 else ('s[44:47]', 'v2')
        a(f'buffer_load_dwordx4 {sl(i)}, {va}, {r}, s36 offen offset:{t*256} {pol}')
    for i in range(D0): issue(i)
    stamp(a, P, 'siss0')
    if P['vt']:
        a(f'v_mov_b32 v3, 0\nbuffer_load_dword v4, v3, s[44:47], s35 offen {pol}')
    a('s_barrier')
    srd(a, 52, 28, None, WS_USED)
    for e in range(2):
        for r in range(4):
            m16 = (0x11 << r) << (8 * e); m32 = m16 | (m16 << 16)
            a(f's_mov_b32 s{64+2*(4*e+r)}, {hex(m32)}\ns_mov_b32 s{65+2*(4*e+r)}, {hex(m32)}')
    a('s_mov_b32 s80, 0x05040100\ns_mov_b32 s81, 0x07060302')
    for i in range(D0, R):
        dh = int(P['hpat'][i - D0]) if i - D0 < len(P['hpat']) else D
        if P['vt'] and i < D0 + D: dh += 1
        a(f's_waitcnt vmcnt({dh-1})'); issue(i)
        if i == 8 + D: stamp(a, P, 's8')
    a('v_bfe_u32 v3, v0, 2, 1\nv_lshlrev_b32 v3, 9, v3\nv_and_b32 v4, 3, v0\nv_lshl_add_u32 v3, v4, 4, v3')
    a(f'v_lshrrev_b32 v4, 4, v0\nv_lshl_add_u32 v3, v4, 6, v3\nv_add_u32 v3, {L_Q}, v3')
    stamp(a, P, 'sB1a')
    q_wait(a, P, 'L_sq')
    stamp(a, P, 'sB1')
    a(f'ds_read_b128 v[{Q}:{Q+3}], v3\nds_read_b128 v[{Q+4}:{Q+7}], v3 offset:256')
    a(f'v_mov_b32 v4, 0xff800000\ns_mov_b32 s83, {hex(f2u(C_EXP))}\ns_waitcnt lgkmcnt(0)')
    chunks = []
    def kdpp(G):
        d = DT + 4 * (G & 1)
        a(f'v_mov_b32_dpp v{S+G}, v{d} quad_perm:[0,0,0,0] row_mask:0xf bank_mask:0xf')
        for r in range(1, 4):
            a(f'v_add_f32_dpp v{S+G}, v{d+r}, v{S+G} quad_perm:[{r},{r},{r},{r}] row_mask:0xf bank_mask:0xf')
        if G & 1:
            if not P['nornd']: a(f'v_cvt_pk_bf16_f32 v5, v{S+G-1}, v{S+G}\nv_lshlrev_b32 v{S+G-1}, 16, v5\nv_and_b32 v{S+G}, 0xffff0000, v5')
            a(f'v_max3_f32 v4, v4, v{S+G-1}, v{S+G}')
    def kchunk(G):
        def fn():
            d = DT + 4 * (G & 1)
            a(f'v_mfma_f32_16x16x32_bf16 v[{d}:{d+3}], {sl(2*G)}, v[{Q}:{Q+3}], 0')
            a(f'v_mfma_f32_16x16x32_bf16 v[{d}:{d+3}], {sl(2*G+1)}, v[{Q+4}:{Q+7}], v[{d}:{d+3}]')
            if G: kdpp(G - 1)
        return fn
    for G in range(32): chunks.append((2 * G + 1, [2 * G, 2 * G + 1], kchunk(G)))
    def sm0():
        kdpp(31)
        xgroup(a, 'v_max_f32', 4, 5)
        a('v_mul_f32 v6, s83, v4\nv_mov_b32 v7, 0')
        stamp(a, P, 'Kdone')
    chunks.append((63, [], sm0))
    def sm(k):
        def fn():
            for g in range(8 * k, 8 * k + 8): a(f'v_fma_f32 v{S+g}, v{S+g}, s83, -v6')
            for g in range(8 * k, 8 * k + 8): a(f'v_exp_f32 v{S+g}, v{S+g}')
            for g in range(8 * k, 8 * k + 8): a(f'v_add_f32 v7, v7, v{S+g}')
            for i in range(4 * k, 4 * k + 4): a(f'v_cvt_pk_bf16_f32 v{S+i}, v{S+2*i}, v{S+2*i+1}')
        return fn
    for k in range(4): chunks.append((63, [], sm(k)))
    def sm_end():
        xgroup(a, 'v_add_f32', 7, 5)
        a(f'v_mov_b32 v5, v7\nv_bfe_u32 v3, v0, 2, 1\nv_lshlrev_b32 v3, 6, v3\ns_lshl_b32 s37, s30, 3\ns_add_u32 s37, s37, {L_ML}\nv_add_u32 v3, s37, v3')
        a('s_mov_b64 exec, 0x11\nds_write_b64 v3, v[4:5]\ns_mov_b64 exec, -1')
    chunks.append((63, [], sm_end))
    AT = [32, 36]; PT = [40, 44, 8, 12]; ACC = DT
    cnt = [0, 0]
    def vchunk(T, e, r):
        def fn():
            A = AT[cnt[0] & 1]; cnt[0] += 1
            mk = 64 + 2 * (4 * e + r)
            for p in range(4): a(f'v_cndmask_b32 v{A+p}, 0, v{S+4*T+p}, s[{mk}:{mk+1}]')
            for jj in range(2):
                j = 4 * jj + r; m, hh = j >> 1, j & 1
                B = PT[cnt[1] & 3]; cnt[1] += 1
                for p in range(4):
                    ev = 64 + 16 * T + 2 * (2 * p) + e; od = ev + 2
                    a(f'v_perm_b32 v{B+p}, v{slot(od)+m}, v{slot(ev)+m}, s{80+hh}')
                c = '0' if (T == 0 and e == 0 and r == 0) else f'v[{ACC+4*jj}:{ACC+4*jj+3}]'
                a(f'v_mfma_f32_16x16x32_bf16 v[{ACC+4*jj}:{ACC+4*jj+3}], v[{A}:{A+3}], v[{B}:{B+3}], {c}')
        return fn
    for T in range(4):
        for e in range(2):
            for r in range(4):
                fr = [64 + 16 * T + 2 * g + e for g in range(8)] if r == 3 else []
                chunks.append((64 + 16 * T + 14 + e, fr, vchunk(T, e, r)))
    freed = set(); ci = 0; landed = -1
    XR = RING + 4 * R
    if P['ctl']: a(f's_mov_b32 s62, 0\nv_mov_b32 v{XR+3}, {L_PROG}')
    def run_chunk(issued):
        nonlocal ci, landed
        nd, fr, fn = chunks[ci]; ci += 1
        if nd > landed:
            a(f's_waitcnt vmcnt({issued-1-nd})'); landed = nd
        if not (P['nocomp'] and fr is not None and fn.__name__ == 'fn' and ci <= len(chunks) - 8): fn()
        freed.update(fr)
    for i in range(R, 128):
        while (i - R) not in freed: run_chunk(i)
        Di = P['Dend'] if (P['Dend'] and i >= 128 - P['nend']) else D
        pat = P['kpat'] if i < 64 else P['vpat']
        if pat and not (P['Dend'] and i >= 128 - P['nend']): Di = int(pat[i % len(pat)])
        cks = [int(x) for x in P['cks'].split()] if P['ctl'] else []
        if cks and i > cks[0] + D + 2:
            if i % 4 == 1: a(f's_waitcnt lgkmcnt(0)\nv_readfirstlane_b32 s62, v{XR+1}')
            a(f's_waitcnt vmcnt({Di})\ns_bitcmp1_b32 s62, {i % 8}\ns_cbranch_scc1 L_b{i}\ns_waitcnt vmcnt({Di-1})\nL_b{i}:')
            landed = max(landed, i - Di - 1)
        elif i - Di > landed:
            a(f's_waitcnt vmcnt({Di-1})'); landed = i - Di
        issue(i)
        if cks and i >= cks[0] and i % 4 == 0 and i < 124: a(f'ds_read_b32 v{XR+1}, v{XR+3} offset:4')
        if (i - D) in cks:
            a(f's_cmp_lg_u32 s30, 0\ns_cbranch_scc1 L_np{i}\nv_mov_b32 v{XR}, {cks.index(i - D) + 1}\nds_write_b32 v{XR+3}, v{XR}\nL_np{i}:')
        if i == 44 + D: stamp(a, P, 's44')
        if i == 96 + D: stamp(a, P, 's96')
        n = 0
        while ci < len(chunks) and chunks[ci][0] <= landed and n < P['budget']:
            run_chunk(i + 1); n += 1
    def tail_addr():
        a(f'v_lshrrev_b32 v3, 5, v0\nv_lshlrev_b32 v3, 9, v3\nv_bfe_u32 v4, v0, 4, 1\nv_lshl_add_u32 v3, v4, 10, v3')
        a(f'v_and_b32 v4, 15, v0\nv_lshl_add_u32 v3, v4, 5, v3\ns_lshl_b32 s37, s30, 11\ns_add_u32 s37, s37, {L_PART}\nv_add_u32 v3, s37, v3')
        a(f's_lshl_b32 s37, s30, 8\ns_add_u32 s37, s37, {L_PART}\nv_lshl_add_u32 v4, v0, 2, s37')
        a(f's_lshr_b32 s37, s30, 2\ns_lshl_b32 s37, s37, 5\ns_add_u32 s37, s37, {L_F}\nv_mov_b32 v5, s37')
        a(f'v_lshlrev_b32 v6, 2, v0\ns_lshl_b32 s60, s38, 11\ns_lshl_b32 s37, s30, 8\ns_add_u32 s60, s60, s37\ns_add_u32 s60, s60, {OBUF}')
        a(f'v_lshrrev_b32 v1, 4, v0\nv_bfe_u32 v7, v0, 2, 2\nv_and_b32 v8, 3, v0')
        a(f'v_lshl_add_u32 v7, v1, 2, v7\nv_lshlrev_b32 v7, 7, v7\nv_lshl_add_u32 v7, v8, 3, v7\ns_lshl_b32 s37, s30, 5\ns_add_u32 s37, s37, {L_WO}\nv_add_u32 v7, s37, v7')
        a(f'v_and_b32 v2, 15, v0\nv_lshlrev_b32 v2, 4, v2\nv_lshl_add_u32 v2, v1, 11, v2')
        a(f's_lshl_b32 s61, s30, 16\ns_lshl_b32 s37, s31, 13\ns_add_u32 s61, s61, s37\ns_and_b32 s37, s32, 3\ns_lshl_b32 s37, s37, 9\ns_add_u32 s61, s61, s37\ns_add_u32 s61, s61, {OBUF}')
    while ci < len(chunks) - 8: run_chunk(128)
    tail_addr()
    a(f'v_lshl_add_u32 v{XR+2}, v8, 2, v1\nv_lshlrev_b32 v{XR+2}, 1, v{XR+2}\ns_lshl_b32 s39, s32, 5')
    srd(a, 44, 22, None, 896)
    a(f'buffer_load_ushort v{XR}, v{XR+2}, s[44:47], s39 offen')
    srd(a, 40, 4, None, 7168)
    a(f's_mul_i32 s37, s31, 896\ns_add_u32 s63, s37, s39\nbuffer_load_ushort v{XR+1}, v{XR+2}, s[40:43], s63 offen')
    srd(a, 44, 24, None, 7168)
    while ci < len(chunks): run_chunk(130)
    stamp(a, P, 'Vlast')
    a('L_tail:')
    a(f'ds_write_b128 v3, v[{ACC}:{ACC+3}]\nds_write_b128 v3, v[{ACC+4}:{ACC+7}] offset:16\ns_waitcnt lgkmcnt(0)\ns_barrier')
    stamp(a, P, 'B2')
    for w in range(4): a(f'ds_read2st64_b32 v[{16+2*w}:{17+2*w}], v4 offset0:{16*w} offset1:{16*w+8}')
    a(f'ds_read_b128 v[24:27], v5\nds_read_b128 v[28:31], v5 offset:16\ns_waitcnt lgkmcnt(0)')
    a('v_mul_f32 v32, v16, v24\nv_mul_f32 v33, v17, v25')
    for w in range(2, 8): a(f'v_fmac_f32 v{32+(w&1)}, v{16+w}, v{24+w}')
    a('v_mov_b32 v9, s85\nv_add_f32 v32, v32, v33\nv_bfi_b32 v32, s82, v9, v32')
    hand_store(a, 'buffer_store_dword v32, v6, s[52:55], s60 offen')
    stamp(a, P, 'ost')
    a('s_cmp_lt_u32 s32, 28\ns_cbranch_scc0 L_end')
    GL = 'buffer_load_dwordx4 v[16:19], v2, s[52:55], s61 offen sc1\nbuffer_load_dwordx4 v[20:23], v2, s[52:55], s61 offen offset:256 sc1'
    a(GL)
    BF, AF, DR = 56, 72, 88
    a('s_cmp_lt_u32 s30, 4\ns_cbranch_scc0 L_nofr')
    for jj in range(4):
        b = BF + 4 * jj
        a(f'ds_read_b64_tr_b16 v[{b}:{b+1}], v7 offset:{jj*4096}\nds_read_b64_tr_b16 v[{b+2}:{b+3}], v7 offset:{jj*4096+2048}')
    a(f's_lshl_b32 s37, s30, 10\ns_add_u32 s37, s37, {L_C}\nv_lshl_add_u32 v10, v0, 4, s37\nds_read_b128 v[{DR}:{DR+3}], v10')
    a('L_nofr:')
    a(f'v_and_b32 v4, 15, v0\nv_lshlrev_b32 v4, 3, v4\nv_and_b32 v5, 1, v1\nv_lshl_add_u32 v4, v5, 2, v4\nv_lshrrev_b32 v5, 1, v1\nv_lshl_add_u32 v4, v5, 7, v4')
    a(f's_mul_i32 s37, s30, {OSTR}\ns_add_u32 s37, s37, {L_O}\nv_add_u32 v5, s37, v4')
    a(f'v_and_b32 v12, 7, v0\nv_mul_u32_u24 v12, {OSTR}, v12\nv_lshl_add_u32 v12, v1, 3, v12\nv_add_u32 v12, {L_O}, v12')
    a(f's_and_b32 s60, s32, 28\ns_add_u32 s60, s60, s30\ns_lshl_b32 s60, s60, 5\ns_lshl_b32 s37, s31, 2\ns_add_u32 s60, s60, s37\ns_and_b32 s37, s32, 3\ns_add_u32 s60, s60, s37')
    a(f's_lshl_b32 s60, s60, 9\ns_add_u32 s60, s60, {PBUF}\ns_mov_b32 s86, {P["spin"]}')
    a('s_branch L_gchk')
    a('L_gpoll:')
    if P['gsl']: a(f's_sleep {P["gsl"]}')
    a(GL)
    a('L_gchk:')
    a('s_waitcnt vmcnt(0)')
    tag_check(a, range(16, 24), 10, 11, 4)
    a('s_sub_u32 s86, s86, 1\ns_cbranch_scc1 L_gdone\ns_cbranch_vccnz L_gpoll')
    a('L_gdone:')
    stamp(a, P, 'gok')
    for i in range(8): a(f'v_and_b32 v{16+i}, {hex(0xffffffff ^ TMASK)}, v{16+i}')
    for p in (16, 17, 20, 21): a(f'v_permlane16_swap_b32 v{p}, v{p+2}')
    for p in (16, 17, 20, 21): a(f'v_add_f32 v{p}, v{p}, v{p+2}')
    a('v_permlane32_swap_b32 v16, v20\nv_permlane32_swap_b32 v17, v21\nv_add_f32 v16, v16, v20\nv_add_f32 v17, v17, v21')
    a('v_cvt_pk_bf16_f32 v16, v16, v17\nds_write_b32 v5, v16\ns_waitcnt lgkmcnt(0)\ns_barrier')
    stamp(a, P, 'B3')
    a('s_cmp_lt_u32 s30, 4\ns_cbranch_scc0 L_fin')
    for jj in range(4): a(f'ds_read_b64 v[{AF+4*jj}:{AF+4*jj+1}], v12 offset:{jj*64}\nds_read_b64 v[{AF+4*jj+2}:{AF+4*jj+3}], v12 offset:{jj*64+32}')
    for jj in range(4):
        a(f's_waitcnt lgkmcnt({6-2*jj})')
        a(f'v_mfma_f32_16x16x32_bf16 v[{DR}:{DR+3}], v[{AF+4*jj}:{AF+4*jj+3}], v[{BF+4*jj}:{BF+4*jj+3}], v[{DR}:{DR+3}]')
    a(f'v_permlane32_swap_b32 v{DR}, v{DR+1}\nv_permlane32_swap_b32 v{DR+2}, v{DR+3}')
    a(f'v_bfi_b32 v{DR}, s82, v9, v{DR}\nv_bfi_b32 v{DR+2}, s82, v9, v{DR+2}')
    a(f'buffer_store_dword v{DR}, v6, s[52:55], s60 offen {P["ppol"]}\nbuffer_store_dword v{DR+2}, v6, s[52:55], s60 offen offset:256 {P["ppol"]}')
    stamp(a, P, 'pst')
    if P['diag']:
        a('s_cmp_lg_u32 s30, 0\ns_cbranch_scc1 L_end')
        stamp_store(a, P, stamp_items(P, [x for x in S_PTS if x not in ('g2ok', 'end', 'fst', 'fcnt')]), hw=True)
    a('s_endpgm')
    a('L_fin:')
    if P['wb']:
        a('s_cmp_eq_u32 s30, 5\ns_cbranch_scc0 L_nowb\ns_cmp_eq_u32 s32, 0\ns_cbranch_scc0 L_end\nbuffer_wbl2 sc1\ns_waitcnt vmcnt(0)\ns_endpgm\nL_nowb:')
    a('s_cmp_eq_u32 s30, 7\ns_cbranch_scc0 L_end')
    a('v_and_b32 v8, 3, v0')
    a(f'v_lshrrev_b32 v2, 2, v0\nv_lshlrev_b32 v2, 9, v2\nv_lshl_add_u32 v2, v8, 4, v2\nv_add_u32 v3, 8192, v2\nv_mov_b32 v7, 0x200')
    a(f's_lshl_b32 s61, s32, 14\ns_and_b32 s37, s31, 3\ns_lshl_b32 s37, s37, 7\ns_add_u32 s61, s61, s37\ns_lshr_b32 s37, s31, 2\ns_lshl_b32 s37, s37, 6\ns_add_u32 s61, s61, s37\ns_add_u32 s61, s61, {PBUF}\ns_mov_b32 s86, {P["spin"]}')
    a(f'v_lshlrev_b32 v24, 16, v{XR}\nv_lshlrev_b32 v25, 16, v{XR+1}\nv_add_f32 v24, v24, v25')
    stamp(a, P, 'fst')
    a('L_fpoll:')
    a(f'buffer_load_dwordx4 v[16:19], v2, s[52:55], s61 offen {P["lpol"]}\nbuffer_load_dwordx4 v[20:23], v3, s[52:55], s61 offen {P["lpol"]}')
    a('s_waitcnt vmcnt(0)')
    tag_check(a, range(16, 24), 8, 9, 10)
    a('s_sub_u32 s86, s86, 1\ns_cbranch_scc1 L_fdone\ns_cbranch_vccz L_fdone')
    if P['fthr']:
        a(f's_bcnt1_i32_b64 s37, vcc\ns_cmp_lt_u32 s37, {P["fthr"]}\ns_cbranch_scc1 L_fpoll\ns_sleep {P["fsl2"]}')
    if P['fsl']: a(f's_sleep {P["fsl"]}')
    a('s_branch L_fpoll')
    a('L_fdone:')
    stamp(a, P, 'g2ok')
    if P['diag'] and 'fcnt' in pts(P):
        r = 88 + 2 * pts(P).index('fcnt'); r0 = 88 + 2 * pts(P).index('fst')
        a(f's_sub_u32 s37, {P["spin"]}, s86\ns_mul_i32 s37, s37, 100\ns_add_u32 s{r}, s{r0}, s37\ns_addc_u32 s{r+1}, s{r0+1}, 0')
    tag_strip(a, range(16, 24), 7)
    for i in range(4): a(f'v_add_f32 v{16+i}, v{16+i}, v{20+i}')
    a('v_permlane16_swap_b32 v16, v17\nv_permlane16_swap_b32 v18, v19\nv_add_f32 v16, v16, v17\nv_add_f32 v18, v18, v19')
    a('v_permlane32_swap_b32 v16, v18\nv_add_f32 v16, v16, v18')
    a('v_add_f32_dpp v16, v16, v16 row_ror:4 row_mask:0xf bank_mask:0xf')
    a('v_add_f32_dpp v16, v16, v16 row_ror:8 row_mask:0xf bank_mask:0xf')
    a('v_add_f32 v16, v16, v24\nv_cvt_pk_bf16_f32 v16, v16, v16')
    a('s_mov_b32 exec_lo, 0x000f000f\ns_mov_b32 exec_hi, 0x000f000f')
    a(f'buffer_store_short v16, v{XR+2}, s[44:47], s63 offen')
    a('s_cmp_lg_u32 s2, 0\ns_cbranch_scc1 L_noep')
    a('v_mov_b32 v8, 0\nv_mov_b32 v9, s84\ns_mov_b64 exec, 1\nbuffer_store_dword v9, v8, s[52:55], 0 offen sc1')
    a('L_noep:')
    if P['hold']:
        a(f'L_hold:\ns_memrealtime s[96:97]\ns_waitcnt lgkmcnt(0)\ns_sub_u32 s96, s96, s98\ns_cmp_lt_u32 s96, {P["hold"]}\ns_cbranch_scc1 L_hold')
    if P['diag']:
        a('s_mov_b64 exec, -1\ns_waitcnt vmcnt(0)')
        stamp(a, P, 'end')
        stamp_store(a, P, stamp_items(P, ['g2ok', 'end', 'fst', 'fcnt']))
    a('s_endpgm')

def dma_loop(a, lab, n, depth, vaddr, sstep, lds0, pol):
    a(f's_mov_b32 s36, 0\ns_mov_b32 s62, {lds0}\ns_mov_b32 s63, {n}')
    a(f'{lab}:')
    a(f's_mov_b32 m0, s62\ns_waitcnt vmcnt({depth-1})')
    a(f'buffer_load_dwordx4 v{vaddr}, s[56:59], s36 offen {pol} lds')
    a(f's_add_u32 s36, s36, {sstep}\ns_add_u32 s62, s62, 1024\ns_sub_u32 s63, s63, 1\ns_cmp_lg_u32 s63, 0\ns_cbranch_scc1 {lab}')

XF, FF, TT = 16, 44, 100
def x_addr(a):
    a('v_and_b32 v10, 15, v0\nv_lshrrev_b32 v9, 4, v0\nv_and_b32 v8, 7, v0\nv_mul_u32_u24 v8, 896, v8')
    a('v_bfe_u32 v3, v0, 3, 1\nv_mul_u32_u24 v3, 448, v3\nv_lshl_add_u32 v8, v9, 4, v8\nv_add_u32 v8, v8, v3')
def x_load(a, P):
    srd(a, 48, 4, None, 7168)
    for ks in range(7): a(f'buffer_load_dwordx4 v[{XF+4*ks}:{XF+4*ks+3}], v8, s[48:51], 0 offen offset:{ks*64} {P["xpol"]}')
def tag_check(a, regs, t0, t1, acc, mask=TMASK):
    for i in range(0, len(regs), 2):
        a(f'v_xor_b32 v{t0}, s85, v{regs[i]}\nv_xor_b32 v{t1}, s85, v{regs[i+1]}')
        a(f'v_or_b32 v{acc}, v{t0}, v{t1}' if i == 0 else f'v_or3_b32 v{acc}, v{acc}, v{t0}, v{t1}')
    a(f'v_and_b32 v{acc}, {mask}, v{acc}\nv_cmp_ne_u32 vcc, 0, v{acc}')
def tag_strip(a, regs, half, ms=82):
    for r in regs: a(f'v_bfi_b32 v{r}, s{ms}, v{half}, v{r}')
_st = [0]
def hand_store(a, ins):
    _st[0] += 1; n = _st[0]
    a(f's_cmp_eq_u32 s87, 0\ns_cbranch_scc1 L_wt{n}\n{ins}\ns_branch L_we{n}\nL_wt{n}:\n{ins} sc1\nL_we{n}:')

def unit_gemm(a, lds, va, st_v, st_s, tagv, ms, before_pub=None):
    TA, DQ = 44, 108
    seq = [(t, ks) for t in range(4) for ks in range(4)]
    def rd(n):
        t, ks = seq[n]; r = TA + 4 * n; o = lds + ks * 4096 + t * 32
        a(f'ds_read_b64_tr_b16 v[{r}:{r+1}], v{va} offset:{o}\nds_read_b64_tr_b16 v[{r+2}:{r+3}], v{va} offset:{o+512}')
    def pub(t):
        for r in range(4): a(f'v_bfi_b32 v{DQ+4*t+r}, s{ms}, v{tagv}, v{DQ+4*t+r}')
        hand_store(a, f'buffer_store_dwordx4 v[{DQ+4*t}:{DQ+4*t+3}], v{st_v}, s[52:55], s{st_s} offen offset:{t*64}')
    for n in range(6): rd(n)
    for n, (t, ks) in enumerate(seq):
        if n + 6 < 16: rd(n + 6)
        a(f's_waitcnt lgkmcnt({2*min(6, 15-n)})')
        r = TA + 4 * n; d = DQ + 4 * t
        c = '0' if ks == 0 else f'v[{d}:{d+3}]'
        a(f'v_mfma_f32_16x16x32_bf16 v[{d}:{d+3}], v[{r}:{r+3}], v[{XF+4*ks}:{XF+4*ks+3}], {c}')
        if before_pub is None and n in (7, 11, 15): pub(n // 4 - 1)
    if before_pub is not None:
        before_pub()
        for t in range(3): pub(t)
    pub(3)

def helper(a, P):
    stamp(a, P, 'hstart')
    if P['cpf']:
        a('s_getpc_b64 s[56:57]\ns_mov_b32 s58, 4352\ns_mov_b32 s59, 0x20000\nv_lshlrev_b32 v1, 6, v0')
        a('buffer_load_dword v15, v1, s[56:59], 0 offen offset:256')
    x_addr(a)
    a('v_lshrrev_b32 v4, 3, v0\nv_lshlrev_b32 v1, 13, v4\nv_and_b32 v2, 7, v0\nv_lshl_add_u32 v1, v2, 4, v1')
    a('v_mul_u32_u24 v4, 3584, v4\nv_lshl_add_u32 v4, v2, 4, v4')
    a('s_and_b32 s63, s32, 1\ns_bfe_u32 s62, s32, 0x10001\ns_mul_i32 s64, s62, 224\ns_lshl_b32 s36, s63, 7\ns_add_u32 s64, s64, s36')
    a('s_lshl_b32 s65, s63, 5\ns_sub_u32 s65, 127, s65\ns_lshr_b32 s66, s32, 2')
    a('s_lshl_b32 s37, s64, 13\ns_lshl_b32 s39, s31, 3\ns_add_u32 s39, s39, s66\ns_lshl_b32 s39, s39, 7\ns_add_u32 s37, s37, s39')
    a('s_lshl_b32 s39, s65, 13\ns_add_u32 s39, s39, 128')
    a('s_lshl_b32 s60, s63, 8\ns_mul_i32 s61, s63, 192\ns_sub_u32 s61, 192, s61')
    a('s_waitcnt lgkmcnt(0)')
    stamp(a, P, 'hkarg')
    a('s_load_dword s84, s[28:29], 0')
    srd(a, 48, 4, None, 7168)
    for ks in range(7):
        if ks < 3: a(f'buffer_load_dwordx4 v[{XF+4*ks}:{XF+4*ks+3}], v8, s[48:51], s60 offen offset:{ks*64} {P["xpol"]}')
        else: a(f'buffer_load_dwordx4 v[{XF+4*ks}:{XF+4*ks+3}], v8, s[48:51], s61 offen offset:{(ks-3)*64} {P["xpol"]}')
    srd(a, 56, 10, 's37', 's39')
    for i in range(16):
        a(f's_mov_b32 m0, {L_WQ+i*1024}\ns_mov_b32 s36, {i*65536}')
        a(f'buffer_load_dwordx4 v1, s[56:59], s36 offen {P["wpol"]} lds')
    stamp(a, P, 'wqiss')
    a(f'v_mov_b32 v126, -1\nv_mov_b32 v127, -1\nv_lshlrev_b32 v3, 3, v0\nv_add_u32 v3, {L_ML}, v3\nv_mov_b32 v5, {L_TAG}')
    a('s_mov_b64 exec, 0xffff\nds_write_b64 v3, v[126:127]\nds_write_b64 v5, v[126:127]\ns_mov_b64 exec, -1')
    srd(a, 52, 28, None, WS_USED)
    a(f'v_lshlrev_b32 v2, 4, v0\ns_getreg_b32 s68, hwreg(HW_REG_XCC_ID)\ns_and_b32 s68, s68, 15\ns_lshl_b32 s68, s68, 12')
    a(f's_lshl_b32 s69, s31, 12\ns_add_u32 s69, s69, {XBUF}\ns_lshl_b32 s37, s32, 7\ns_add_u32 s37, s37, s69\ns_waitcnt lgkmcnt(0)')
    a(f's_add_u32 s84, s84, 0x9E3779B9\ns_and_b32 s85, s84, {TMASK}\ns_or_b32 s68, s68, s85\nv_mov_b32 v6, s85\nv_mov_b32 v124, s68')
    a('s_mov_b64 exec, 1\nbuffer_store_dword v124, v2, s[52:55], s37 offen sc1\ns_mov_b64 exec, -1')
    stamp(a, P, 'xst')
    a('s_barrier')
    a('s_mul_i32 s67, s31, 7\ns_lshr_b32 s67, s67, 1\ns_add_u32 s67, s67, s66\ns_mul_i32 s37, s64, 3584\ns_lshl_b32 s39, s67, 7\ns_add_u32 s37, s37, s39')
    a('s_mul_i32 s39, s65, 3584\ns_add_u32 s39, s39, 128\ns_cmp_lt_u32 s66, 4\ns_cselect_b32 s37, s37, 0\ns_cselect_b32 s39, s39, 0')
    srd(a, 56, 16, 's37', 's39')
    a('v_and_b32 v125, 31, v0\nv_lshlrev_b32 v125, 7, v125')
    a(f'v_mov_b32 v14, {hex(OOB)}\ns_mov_b32 s82, {TMASK}\ns_mov_b32 s81, {QMASK}\ns_mov_b32 s83, {hex(f2u(C_EXP))}')
    a(f'v_bfe_u32 v3, v0, 2, 2\nv_lshl_add_u32 v12, v9, 3, v3\nv_lshlrev_b32 v12, 7, v12\nv_and_b32 v5, 3, v0\nv_lshl_add_u32 v12, v5, 3, v12')
    a(f'v_and_b32 v5, 7, v0\nv_lshlrev_b32 v13, 16, v5\nv_lshl_add_u32 v13, v9, 4, v13\nv_bfe_u32 v3, v0, 3, 1\nv_cmp_eq_u32 vcc, s62, v3')
    a(f'v_lshlrev_b32 v5, 12, v5\nv_lshl_add_u32 v5, v9, 4, v5\nv_cndmask_b32 v13, v14, v13, vcc\nv_cndmask_b32 v5, v14, v5, vcc')
    a(f's_and_b32 s37, s32, 3\ns_lshl_b32 s60, s37, 14\ns_lshl_b32 s39, s31, 11\ns_add_u32 s60, s60, s39\ns_lshl_b32 s39, s66, 8\ns_add_u32 s60, s60, s39\ns_add_u32 s60, s60, {QBUF}')
    a(f's_lshl_b32 s61, s37, 10\ns_lshl_b32 s39, s66, 8\ns_add_u32 s61, s61, s39\ns_lshl_b32 s39, s31, 15\ns_add_u32 s61, s61, s39\ns_add_u32 s61, s61, {HBUF}')
    a('s_waitcnt vmcnt(17)')
    stamp(a, P, 'xland')
    layernorm(a, XF, FF, TT)
    stamp(a, P, 'lndone')
    a('s_mov_b64 exec, 0xffffffff\nbuffer_load_dword v124, v125, s[52:55], s69 offen sc1\ns_mov_b64 exec, -1')
    for i in range(16):
        a(f's_mov_b32 m0, {L_W1+i*1024}\ns_mov_b32 s36, {i*8*3584}')
        a(f'buffer_load_dwordx4 v4, s[56:59], s36 offen {P["wpol"]} lds')
    a('s_waitcnt vmcnt(18) lgkmcnt(0)')
    stamp(a, P, 'wqland')
    def loc_check():
        a('s_waitcnt vmcnt(16)\nv_cmp_ne_u32 vcc, s68, v124\ns_cmp_eq_u32 vcc_lo, 0')
        for k in range(P['xretry']):
            a('s_cbranch_scc1 L_xok\ns_mov_b64 exec, 0xffffffff\nbuffer_load_dword v124, v125, s[52:55], s69 offen sc1\ns_mov_b64 exec, -1')
            a('s_waitcnt vmcnt(0)\nv_cmp_ne_u32 vcc, s68, v124\ns_cmp_eq_u32 vcc_lo, 0')
        a('L_xok:')
        a('s_cselect_b32 s87, 1, 0' if P['loc'] else 's_mov_b32 s87, 0')
        stamp(a, P, 'xid')
        if P['diag'] and 'locv' in pts(P):
            a('s_cmp_lg_u32 s87, 0\ns_cbranch_scc1 L_locv'); stamp(a, P, 'locv'); a('L_locv:')
    unit_gemm(a, L_WQ, 12, 13, 60, 6, 81, loc_check)
    stamp(a, P, 'qpub')
    a('s_cmp_lt_u32 s66, 4\ns_cbranch_scc0 L_noh')
    layernorm(a, XF, FF, TT, 16)
    a('s_waitcnt vmcnt(4)')
    unit_gemm(a, L_W1, 12, 5, 61, 6, 82)
    a('L_noh:')
    stamp(a, P, 'hpub')
    a(f's_lshl_b32 s61, s33, 16\ns_lshl_b32 s37, s31, 11\ns_add_u32 s61, s61, s37\ns_add_u32 s61, s61, {QBUF}')
    a(f's_mov_b32 s86, {P["spin"]}\nv_mov_b32 v7, 0x80')
    a('s_cmp_lt_u32 s66, 4\ns_cbranch_scc1 L_qpoll')
    if P['qsl']: a(f's_sleep {P["qsl"]}')
    a('L_qpoll:')
    a('s_mov_b32 s36, s61')
    for kq in range(4):
        for m in range(2): a(f'buffer_load_dwordx4 v[{44+8*kq+4*m}:{47+8*kq+4*m}], v2, s[52:55], s36 offen offset:{m*1024} sc1')
        if kq < 3: a('s_add_u32 s36, s36, 16384')
    a(f's_mov_b64 exec, 0xffffffff\nbuffer_load_dword v124, v125, s[52:55], s69 offen sc1\ns_mov_b64 exec, -1\ns_waitcnt vmcnt(0)')
    tag_check(a, range(44, 76), 16, 17, 18, QMASK)
    a(f's_sub_u32 s86, s86, 1\ns_cbranch_scc1 L_qdone\ns_cbranch_vccz L_qdone\ns_sleep {P["qsl2"]}\ns_branch L_qpoll')
    a('L_qdone:')
    stamp(a, P, 'qok')
    a('v_cmp_ne_u32 vcc, s68, v124\ns_cmp_eq_u32 vcc_lo, 0')
    a('s_cselect_b32 s87, 1, 0' if P['loc'] else 's_mov_b32 s87, 0')
    tag_strip(a, range(44, 76), 7, 81)
    for kq in range(1, 4):
        for m in range(4): a(f'v_pk_add_f32 v[{44+2*m}:{45+2*m}], v[{44+2*m}:{45+2*m}], v[{44+8*kq+2*m}:{45+8*kq+2*m}]')
    a(f'v_lshlrev_b32 v3, 3, v0\nv_add_u32 v3, {L_Q}, v3\nv_mov_b32 v4, {L_TAG}\nv_mov_b32 v16, s84\nv_mov_b32 v17, s87')
    for m in range(4): a(f'v_cvt_pk_bf16_f32 v{52+m}, v{44+2*m}, v{45+2*m}')
    a('ds_write_b64 v3, v[52:53]\nds_write_b64 v3, v[54:55] offset:512\ns_waitcnt lgkmcnt(0)\nds_write_b64 v4, v[16:17]')
    stamp(a, P, 'B1')
    a('s_cmp_lt_u32 s32, 28\ns_cbranch_scc0 L_now')
    a('v_lshrrev_b32 v1, 3, v0\nv_mul_u32_u24 v1, 896, v1\nv_and_b32 v3, 7, v0\nv_lshl_add_u32 v1, v3, 4, v1')
    a('s_and_b32 s64, s32, 3\ns_lshl_b32 s65, s31, 2\ns_add_u32 s65, s65, s64')
    a(f's_mul_i32 s37, s65, 50176\ns_lshl_b32 s39, s66, 7\ns_add_u32 s37, s37, s39\ns_sub_u32 s39, {1792*896}, s37')
    srd(a, 56, 20, 's37', 's39')
    dma_loop(a, 'L_w2', 8, P['DH'], 1, 8 * 896, L_W2, P['mpol'])
    if not P['nowo']:
        a(f's_mul_i32 s37, s65, 114688\ns_lshl_b32 s39, s66, 7\ns_add_u32 s37, s37, s39\ns_sub_u32 s39, {4096*896}, s37')
        srd(a, 56, 12, 's37', 's39')
        dma_loop(a, 'L_wo', 16, P['DH'], 1, 8 * 896, L_WO, P['opol'])
    stamp(a, P, 'wodone')
    a('v_min_u32 v3, 13, v10\nv_lshlrev_b32 v4, 12, v9\nv_lshl_add_u32 v4, v3, 4, v4\nv_lshlrev_b32 v5, 3, v3')
    a(f's_lshl_b32 s61, s31, 15\ns_mul_i32 s37, s64, 224\ns_add_u32 s61, s61, s37\ns_and_b32 s37, s31, 1\ns_lshl_b32 s37, s37, 7\ns_add_u32 s61, s61, s37\ns_add_u32 s61, s61, {HBUF}')
    srd(a, 48, 18, None, 3584)
    a(f's_mul_i32 s37, s65, 112\nbuffer_load_dwordx2 v[20:21], v5, s[48:51], s37 offen\ns_add_u32 s60, s61, 16384\ns_mov_b32 s86, {P["spin"]}\nv_mov_b32 v7, 0x200')
    a('L_hp:')
    for ps in range(2):
        for kq in range(4): a(f'buffer_load_dwordx4 v[{44+16*ps+4*kq}:{47+16*ps+4*kq}], v4, s[52:55], s{61-ps} offen offset:{kq*1024} sc1')
    a('s_waitcnt vmcnt(0)')
    tag_check(a, range(44, 76), 16, 17, 18)
    a('s_sub_u32 s86, s86, 1\ns_cbranch_scc1 L_hpd\ns_cbranch_vccz L_hpd\ns_sleep 16\ns_branch L_hp')
    a('L_hpd:')
    tag_strip(a, range(44, 76), 7)
    for ps in range(2):
        for kq in range(1, 4):
            for m in range(2): a(f'v_pk_add_f32 v[{44+16*ps+2*m}:{45+16*ps+2*m}], v[{44+16*ps+2*m}:{45+16*ps+2*m}], v[{44+16*ps+4*kq+2*m}:{45+16*ps+4*kq+2*m}]')
    unpack(a, 20, 24, 2)
    a('v_cvt_pk_bf16_f32 v16, v44, v45\nv_cvt_pk_bf16_f32 v17, v46, v47\nv_cvt_pk_bf16_f32 v18, v60, v61\nv_cvt_pk_bf16_f32 v19, v62, v63')
    unpack(a, 16, 32, 4)
    for i in range(8): a(f'v_add_f32 v{32+i}, v{32+i}, v{24+(i&3)}')
    for i in range(4): a(f'v_cvt_pk_bf16_f32 v{16+i}, v{32+2*i}, v{33+2*i}')
    unpack(a, 16, 32, 4)
    k0 = 2 * 0.7978845608028654 * math.log2(math.e); k1 = k0 * 0.044715
    a(f's_mov_b32 s62, {hex(f2u(-k1))}\nv_mov_b32 v15, {hex(f2u(-k0))}')
    for i in range(8): a(f'v_mul_f32 v{44+i}, v{32+i}, v{32+i}')
    for i in range(8): a(f'v_fma_f32 v{44+i}, v{44+i}, s62, v15')
    for i in range(8): a(f'v_mul_f32 v{44+i}, v{44+i}, v{32+i}')
    for i in range(8): a(f'v_exp_f32 v{44+i}, v{44+i}')
    for i in range(8): a(f'v_add_f32 v{44+i}, 1.0, v{44+i}')
    for i in range(8): a(f'v_rcp_f32 v{44+i}, v{44+i}')
    for i in range(8): a(f'v_mul_f32 v{32+i}, v{32+i}, v{44+i}')
    a('v_cmp_gt_u32 vcc, 14, v10')
    for i in range(4): a(f'v_cvt_pk_bf16_f32 v{16+i}, v{32+2*i}, v{33+2*i}')
    for i in range(4): a(f'v_cndmask_b32 v{16+i}, 0, v{16+i}, vcc')
    a(f'v_mul_u32_u24 v3, {HSTR}, v9\nv_lshl_add_u32 v3, v10, 3, v3\nv_add_u32 v3, {L_H}, v3')
    a(f'ds_write_b64 v3, v[16:17]\nds_write_b64 v3, v[18:19] offset:{4*HSTR}')
    a(f'v_and_b32 v3, 7, v0\nv_mul_u32_u24 v3, {HSTR}, v3\nv_lshl_add_u32 v3, v9, 3, v3\nv_add_u32 v3, {L_H}, v3')
    a(f'v_bfe_u32 v4, v0, 2, 2\nv_lshl_add_u32 v4, v9, 2, v4\nv_lshlrev_b32 v4, 7, v4\nv_and_b32 v5, 3, v0\nv_lshl_add_u32 v4, v5, 3, v4\nv_add_u32 v4, {L_W2}, v4')
    a('s_waitcnt lgkmcnt(0)')
    for k in range(2): a(f'ds_read_b64 v[{16+4*k}:{17+4*k}], v3 offset:{k*64}\nds_read_b64 v[{18+4*k}:{19+4*k}], v3 offset:{k*64+32}')
    for t in range(4):
        for k in range(2):
            r = 44 + 8 * t + 4 * k
            a(f'ds_read_b64_tr_b16 v[{r}:{r+1}], v4 offset:{k*4096+t*32}\nds_read_b64_tr_b16 v[{r+2}:{r+3}], v4 offset:{k*4096+2048+t*32}')
    a(f'v_add_u32 v3, {L_C}, v2\ns_waitcnt lgkmcnt(0)')
    for k in range(2):
        for t in range(4):
            r = 44 + 8 * t + 4 * k; d = 76 + 4 * t
            a(f'v_mfma_f32_16x16x32_bf16 v[{d}:{d+3}], v[{16+4*k}:{19+4*k}], v[{r}:{r+3}], ' + ('0' if k == 0 else f'v[{d}:{d+3}]'))
    for t in range(4): a(f'ds_write_b128 v3, v[{76+4*t}:{79+4*t}] offset:{t*1024}')
    a('L_now:')
    stamp(a, P, 'mend')
    a(f'v_and_b32 v3, 15, v0\nv_lshlrev_b32 v3, 3, v3\nv_add_u32 v3, {L_ML}, v3\ns_mov_b32 s86, {P["spin"]*16}')
    a('L_mlw:')
    a('ds_read_b64 v[16:17], v3\ns_waitcnt lgkmcnt(0)\nv_cmp_eq_u32 vcc, -1, v16')
    a('s_sub_u32 s86, s86, 1\ns_cbranch_scc1 L_mlwd\ns_cbranch_vccz L_mlwd\ns_sleep 4\ns_branch L_mlw')
    a('L_mlwd:')
    d8 = ('quad_perm:[1,0,3,2]', 'quad_perm:[2,3,0,1]', 'row_half_mirror')
    a('v_mov_b32 v18, v16')
    for m in d8: a(f'v_max_f32_dpp v18, v18, v18 {m} row_mask:0xf bank_mask:0xf')
    a('v_sub_f32 v20, v16, v18\nv_mul_f32 v20, s83, v20\nv_exp_f32 v20, v20\nv_mul_f32 v19, v20, v17')
    for m in d8: a(f'v_add_f32_dpp v19, v19, v19 {m} row_mask:0xf bank_mask:0xf')
    tag_strip(a, (18, 19), 6)
    a(f's_lshl_b32 s37, s38, 7\ns_add_u32 s37, s37, {MLX}\ns_mov_b64 exec, 0x101')
    hand_store(a, 'buffer_store_dwordx2 v[18:19], v0, s[52:55], s37 offen')
    a('s_mov_b64 exec, -1')
    stamp(a, P, 'mlpub')
    a(f's_sleep {P["msl"]}')
    a(f's_and_b32 s61, s38, 0xfc\ns_lshl_b32 s61, s61, 7\ns_add_u32 s61, s61, {MLX}\ns_mov_b32 s86, {P["spin"]}')
    a('v_and_b32 v3, 3, v0\nv_lshlrev_b32 v3, 7, v3\nv_and_b32 v4, 8, v0\nv_add_u32 v3, v3, v4')
    a('L_mlp2:')
    a('buffer_load_dwordx2 v[24:25], v3, s[52:55], s61 offen sc1\ns_waitcnt vmcnt(0)')
    tag_check(a, (24, 25), 26, 27, 28)
    a('s_sub_u32 s86, s86, 1\ns_cbranch_scc1 L_mlp2d\ns_cbranch_vccz L_mlp2d\ns_sleep 16\ns_branch L_mlp2')
    a('L_mlp2d:')
    stamp(a, P, 'mlok')
    a(f'v_and_b32 v24, 0xffff0000, v24\nv_and_b32 v25, {hex(0xffffffff ^ TMASK)}, v25\nv_mov_b32 v28, v24')
    for m in d8[:2]: a(f'v_max_f32_dpp v28, v28, v28 {m} row_mask:0xf bank_mask:0xf')
    a('v_sub_f32 v29, v24, v28\nv_mul_f32 v29, s83, v29\nv_exp_f32 v29, v29\nv_mul_f32 v29, v29, v25')
    for m in d8[:2]: a(f'v_add_f32_dpp v29, v29, v29 {m} row_mask:0xf bank_mask:0xf')
    a('v_sub_f32 v30, v16, v28\nv_mul_f32 v30, s83, v30\nv_exp_f32 v30, v30\nv_rcp_f32 v29, v29\nv_mul_f32 v30, v30, v29')
    a(f'v_lshlrev_b32 v3, 2, v0\nv_add_u32 v3, {L_F}, v3\ns_mov_b64 exec, 0xffff\nds_write_b32 v3, v30\ns_mov_b64 exec, -1')
    if P['tpf']:
        a('s_getpc_b64 s[56:57]\nL_pc2:\ns_add_u32 s56, s56, L_tail-L_pc2\ns_addc_u32 s57, s57, 0\ns_mov_b32 s58, L_end-L_tail\ns_mov_b32 s59, 0x20000')
        a('v_lshlrev_b32 v1, 6, v0\nbuffer_load_dword v15, v1, s[56:59], 0 offen')
    a('s_waitcnt vmcnt(0) lgkmcnt(0)')
    stamp(a, P, 'hend')
    stamp_store(a, P, stamp_items(P, H_PTS))
    a('s_endpgm')

def body(P):
    a = Asm()
    a('s_cmp_ge_u32 s2, 256\ns_cbranch_scc1 L_end')
    a('s_load_dwordx16 s[4:19], s[0:1], 0\ns_load_dwordx8 s[20:27], s[0:1], 64\ns_load_dwordx2 s[28:29], s[0:1], 96')
    a('v_lshrrev_b32 v1, 6, v0\nv_and_b32 v0, 63, v0\nv_readfirstlane_b32 s30, v1')
    a('s_and_b32 s31, s2, 7\ns_lshr_b32 s32, s2, 3')
    if P['bmap'] == 0: a('s_lshr_b32 s33, s32, 2\ns_and_b32 s34, s32, 3')
    else: a('s_and_b32 s33, s32, 7\ns_lshr_b32 s34, s32, 3')
    a('s_lshl_b32 s37, s31, 2\ns_add_u32 s34, s34, s37\ns_lshl_b32 s38, s33, 5\ns_add_u32 s38, s38, s34')
    stamp_init(a, P)
    a('s_cmp_lg_u32 s30, 0\ns_cbranch_scc1 L_stream')
    helper(a, P)
    streamer(a, P)
    a('L_end:\ns_endpgm')
    txt, n = a.text()
    return txt, n

def vgprs(P): return max(56 + 4 * P['R'] + 4, 156)

def kernel(P):
    txt, n = body(P)
    nm = P['name']
    txt = txt.replace('L_', f'L{nm[-24:]}_') if P.get('uniq') else txt
    return txt

def final_file(P):
    ref = open(f'cdna_kernels/{NAME}.s.ref').read()
    head = ref[:ref.index('; Override launch')]
    nm = P['name']; vg = vgprs(P)
    return head + f'''; Single launch: 256 workgroups x (8 streaming waves + 1 helper wave). Generated by gen/gen.py.
; @launch grid=(256,1,1) block=({block(P)},1,1) lds={LDS_BYTES}
.amdgcn_target "amdgcn-amd-amdhsa--gfx950"
.text
.globl {nm}
.p2align 8
.type {nm},@function
{nm}:
{kernel(P)}
.section .rodata,"a"
.p2align 6
.amdhsa_kernel {nm}
  .amdhsa_next_free_vgpr {vg}
  .amdhsa_next_free_sgpr 102
  .amdhsa_accum_offset {(vg+3)//4*4}
  .amdhsa_group_segment_fixed_size 0
  .amdhsa_kernarg_size 104
  .amdhsa_user_sgpr_count 2
  .amdhsa_user_sgpr_kernarg_segment_ptr 1
  .amdhsa_system_sgpr_workgroup_id_x 1
.end_amdhsa_kernel
'''

if __name__ == '__main__':
    P = dict(DEF)
    out = f'cdna_kernels/{NAME}.s'
    for kv in sys.argv[1:]:
        k, v = kv.split('=', 1)
        if k == 'out': out = v
        else: P[k] = type(DEF[k])(v) if not isinstance(DEF[k], bool) else v == '1'
    open(out, 'w').write(final_file(P))
    print('wrote', out)
```

```python
import sys, math, struct
from asmlib import Asm

NAME = 'parallel_sum__gqa_block_cached__mixer_channel_mlp__decode'
def f2u(x): return struct.unpack('<I', struct.pack('<f', x))[0]

CBUF, XBUF, MLX, OBUF, PBUF, HBUF, QBUF, WS_USED = 0x4000, 0x8000, 0x10000, 0x20000, 0xA0000, 0x120000, 0x160000, 0x1E0000
TMASK = 0x3FF
QMASK = 0xFF
STAMP_OFF = 536870912 - (1 << 20)
L_WQ = 0; L_W1 = 16384; L_WO = 32768; L_W2 = 49152
L_PART = 57344
L_C = L_PART + 16384
OSTR = 264; HSTR = 136
L_O = L_C + 4096
L_H = L_O + 8 * OSTR
L_Q = L_H + 8 * HSTR
L_ML = L_Q + 1024
L_F = L_ML + 128
L_TAG = L_F + 64
LDS_BYTES = L_TAG + 16
assert L_Q % 16 == 0 and LDS_BYTES > 81920
OOB = 0x7F000000
C_EXP = math.log2(math.e) / 16.0

DEF = dict(R=26, D=3, D0=3, DH=2, qsl=8, msl=24, cpf=1, tpf=1, hpol='', hw=8, abl=0, lt=1, ov=0, podd=0, peven=0, p0=0, vt=0, wb=0, amap='13 14 9 10 12 17 18 16 15 11 1024 8 513 0 128', hpat='', swz=0, ppol='sc1', lpol='sc1', nocomp=0, nowo=0, ctl=0, cks='28 44 60 76 92 104', t1=6, t2=10, cstr=256, m1=0x55, m2=0xff, kpat='3323', vpat='3323', loc=1, n2=80, xretry=1, Dend=0, nend=16, gsl=0, fsl=0, fthr=0, fsl2=24, nornd=0, nom=0, pol='nt', wpol='nt', xpol='', opol='nt', mpol='nt', diag=False, budget=2,
           name=NAME + '_kernel', spin=1 << 16, hold=0, bmap=0, pts='start+qpub+B1+Kdone+hend+B2+end')
def block(P): return 576

def srd(a, n, base, off, size):
    if off is None:
        a(f's_mov_b32 s{n}, s{base}\ns_mov_b32 s{n+1}, s{base+1}')
    else:
        a(f's_add_u32 s{n}, s{base}, {off}\ns_addc_u32 s{n+1}, s{base+1}, 0')
    a(f's_mov_b32 s{n+2}, {size}\ns_mov_b32 s{n+3}, 0x20000')

def wave_sum(a, v, s):
    for m in ('row_shr:1', 'row_shr:2', 'row_shr:4', 'row_shr:8'):
        a(f'v_add_f32_dpp v{v}, v{v}, v{v} {m} row_mask:0xf bank_mask:0xf')
    a(f'v_add_f32_dpp v{v}, v{v}, v{v} row_bcast:15 row_mask:0xa bank_mask:0xf')
    a(f'v_add_f32_dpp v{v}, v{v}, v{v} row_bcast:31 row_mask:0xc bank_mask:0xf')
    a(f'v_readlane_b32 s{s}, v{v}, 63')

def rnd_bf16(a, v):
    a(f'v_cvt_pk_bf16_f32 v{v}, v{v}, v{v}\nv_and_b32 v{v}, 0xffff0000, v{v}')

def unpack(a, src, dst, n):
    for i in range(n):
        a(f'v_and_b32 v{dst+2*i+1}, 0xffff0000, v{src+i}\nv_lshlrev_b32 v{dst+2*i}, 16, v{src+i}')

def row_sum(a, v, t):
    a(f'v_add_f32_dpp v{v}, v{v}, v{v} row_ror:8 row_mask:0xf bank_mask:0xf')
    xgroup(a, 'v_add_f32', v, t)

def layernorm(a, X, F, T, nq=28):
    pr = lambda r: f'v[{r}:{r+1}]'
    unpack(a, X, F, 28)
    a(f'v_pk_add_f32 {pr(T)}, {pr(F)}, {pr(F+2)}\nv_pk_add_f32 {pr(T+2)}, {pr(F+4)}, {pr(F+6)}')
    for i in range(4, 28): a(f'v_pk_add_f32 {pr(T+2*(i&1))}, {pr(T+2*(i&1))}, {pr(F+2*i)}')
    a(f'v_pk_add_f32 {pr(T)}, {pr(T)}, {pr(T+2)}\nv_add_f32 v{T}, v{T}, v{T+1}')
    row_sum(a, T, T + 1)
    a(f'v_mul_f32 v{T}, {hex(f2u(-1/448))}, v{T}\nv_mov_b32 v{T+1}, v{T}')
    for i in range(28):
        d = T + 4 + 2 * (i & 1)
        a(f'v_pk_add_f32 {pr(d)}, {pr(F+2*i)}, {pr(T)}')
        if i == 0: a(f'v_pk_mul_f32 {pr(T+2)}, {pr(d)}, {pr(d)}')
        else: a(f'v_pk_fma_f32 {pr(T+2)}, {pr(d)}, {pr(d)}, {pr(T+2)}')
    a(f'v_add_f32 v{T+2}, v{T+2}, v{T+3}')
    row_sum(a, T + 2, T + 3)
    rnd_bf16(a, T)
    a(f'v_mov_b32 v{T+1}, v{T}\nv_mul_f32 v{T+2}, {hex(f2u(1/448))}, v{T+2}')
    rnd_bf16(a, T + 2)
    a(f'v_add_f32 v{T+2}, {hex(f2u(1e-5))}, v{T+2}')
    rnd_bf16(a, T + 2)
    a(f'v_sqrt_f32 v{T+2}, v{T+2}')
    for i in range(nq): a(f'v_pk_add_f32 {pr(F+2*i)}, {pr(F+2*i)}, {pr(T)}')
    rnd_bf16(a, T + 2)
    a(f'v_rcp_f32 v{T+2}, v{T+2}')
    for i in range(nq): a(f'v_cvt_pk_bf16_f32 v{X+i}, v{F+2*i}, v{F+2*i+1}')
    a(f'v_mov_b32 v{T+3}, v{T+2}')
    unpack(a, X, F, nq)
    for i in range(nq): a(f'v_pk_mul_f32 {pr(F+2*i)}, {pr(F+2*i)}, {pr(T+2)}')
    for i in range(nq): a(f'v_cvt_pk_bf16_f32 v{X+i}, v{F+2*i}, v{F+2*i+1}')

def xgroup(a, op, v, t):
    a(f'v_mov_b32 v{t}, v{v}\nv_permlane16_swap_b32 v{v}, v{t}\n{op} v{v}, v{v}, v{t}')
    a(f'v_mov_b32 v{t}, v{v}\nv_permlane32_swap_b32 v{v}, v{t}\n{op} v{v}, v{v}, v{t}')

S_PTS = ['start', 'k0', 'fst', 'fcnt', 's8', 's44', 's96', 'skarg', 'siss0', 'pst', 'g2ok', 'sB1a', 'sB1', 'Kdone', 'Vlast', 'B2', 'ost', 'gok', 'B3', 'end']
M_PTS = ['mstart', 'mw1', 'mw2', 'mend']
H_PTS = ['entry', 'hstart', 'mend', 'locv', 'xst', 'xid', 'hpub', 'wob', 'qack', 'xland', 'lndone', 'wtpub', 'wtok', 'hkarg', 'wqiss', 'hB0', 'wqland', 'qpub', 'qp1', 'qok', 'B1', 'wodone', 'mlpub', 'mlok', 'hend']
def pts(P): return P['pts'].split('+') if isinstance(P['pts'], str) else P['pts']
def stamp(a, P, name):
    if P['diag'] and name in pts(P):
        reg = 88 + 2 * pts(P).index(name)
        a(f's_memrealtime s[{reg}:{reg+1}]\ns_waitcnt lgkmcnt(0)')
def stamp_items(P, lst): return [(i, 88 + 2 * i) for i, n in enumerate(pts(P)) if n in lst]
def stamp_init(a, P):
    if P['diag']:
        for i in range(7): a(f's_mov_b64 s[{88+2*i}:{89+2*i}], 0')

def stamp_store(a, P, items, hw=False):
    if not P['diag']: return
    a('s_waitcnt lgkmcnt(0)')
    a(f's_lshl_b32 s37, s2, 6\ns_add_u32 s37, s37, {STAMP_OFF}')
    srd(a, 40, 28, 's37', 64)
    a('s_mov_b64 exec, 1\nv_mov_b32 v1, 0')
    for idx, reg in items:
        a(f'v_mov_b32 v2, s{reg}\nv_mov_b32 v3, s{reg+1}\nbuffer_store_dwordx2 v[2:3], v1, s[40:43], 0 offen offset:{idx*8}')
    if hw:
        a('s_getreg_b32 s38, hwreg(HW_REG_XCC_ID)\ns_getreg_b32 s39, hwreg(HW_REG_HW_ID)')
        a('v_mov_b32 v2, s38\nv_mov_b32 v3, s39\nbuffer_store_dwordx2 v[2:3], v1, s[40:43], 0 offen offset:56')
    a('s_mov_b64 exec, -1')

def q_wait(a, P, lab):
    a(f's_mov_b32 s82, {TMASK}\nv_mov_b32 v5, {L_TAG}\ns_mov_b32 s86, {P["spin"]*16}')
    a(f'{lab}:\nds_read_b64 v[6:7], v5\ns_waitcnt lgkmcnt(0)\nv_cmp_eq_u32 vcc, -1, v7')
    a(f's_sub_u32 s86, s86, 1\ns_cbranch_scc1 {lab}d\ns_cbranch_vccz {lab}d\ns_sleep 2\ns_branch {lab}\n{lab}d:')
    a(f'v_readfirstlane_b32 s84, v6\nv_readfirstlane_b32 s87, v7\ns_and_b32 s85, s84, {TMASK}')

def streamer(a, P, mid):
    if P['hw'] == 0: a('s_sub_u32 s30, s30, 1')
    R, D, D0, pol = P['R'], P['D'], P['D0'], P['pol']
    Q, S, DT, RING = 8, 16, 48, 56
    slot = lambda i: RING + 4 * (i % R)
    sl = lambda i: f'v[{slot(i)}:{slot(i)+3}]'
    stamp(a, P, 'start')
    if P['hold']: a('s_memrealtime s[98:99]')
    am = [int(x) for x in P['amap'].split()]
    ab, gb, wb, xm = am[0:2], am[2:7], am[7:10], am[10:15]
    a(f'v_and_b32 v1, 3, v0\nv_lshlrev_b32 v1, 4, v1\nv_lshrrev_b32 v3, 4, v0\nv_lshl_add_u32 v1, v3, 6, v1')
    a(f'v_bfe_u32 v3, v0, 2, 1\nv_lshl_add_u32 v1, v3, {ab[0]}, v1\nv_bfe_u32 v3, v0, 3, 1\nv_lshl_add_u32 v1, v3, {ab[1]}, v1')
    a('s_lshl_b32 s37, s38, 19\ns_mov_b32 s35, 0')
    use = 0
    for m in xm: use |= m
    a('s_add_u32 s36, s30, s32\ns_and_b32 s36, s36, 7' if use & 7 else 's_mov_b32 s36, 0')
    if use & 0xf8: a('s_lshl_b32 s39, s32, 3\ns_or_b32 s36, s36, s39')
    if use & 0x700: a('s_lshl_b32 s39, s31, 8\ns_or_b32 s36, s36, s39')
    if use & 0x3800: a('s_lshl_b32 s39, s30, 11\ns_or_b32 s36, s36, s39')
    for k in range(5):
        if xm[k] and xm[k] & (xm[k] - 1) == 0:
            a(f's_bfe_u32 s39, s36, {0x10000 + xm[k].bit_length() - 1}\ns_lshl_b32 s39, s39, {gb[k]}\ns_or_b32 s35, s35, s39')
        elif xm[k]:
            a(f's_and_b32 s39, s36, {xm[k]}\ns_bcnt1_i32_b32 s39, s39\ns_and_b32 s39, s39, 1\ns_lshl_b32 s39, s39, {gb[k]}\ns_or_b32 s35, s35, s39')
    for k in range(3): a(f's_bfe_u32 s39, s30, {0x10000 + k}\ns_lshl_b32 s39, s39, {wb[k]}\ns_or_b32 s35, s35, s39')
    goff = lambda G: sum(((G >> k) & 1) << gb[k] for k in range(5))
    a('s_waitcnt lgkmcnt(0)')
    stamp(a, P, 'skarg')
    srd(a, 40, 6, 's37', 524288)
    lt = P['lt']
    def lg(i):
        j = i % 64
        if lt and i >= 112: return 24 + ((i - 112) & 7), (i - 112) >> 3
        return j >> 1, j & 1
    vidx = lambda T, g, e: (112 + 8 * e + g) if (lt and T == 3) else (64 + 16 * T + 2 * g + e)
    def issue(i):
        G, t = lg(i)
        if t == 0 or (lt and i >= 112): a(f's_xor_b32 s36, s35, {goff(G)}')
        r, va = ('s[40:43]', 'v1') if i < 64 else ('s[44:47]', 'v2')
        a(f'buffer_load_dwordx4 {sl(i)}, {va}, {r}, s36 offen offset:{t*256} {pol}')
    for i in range(D0): issue(i)
    stamp(a, P, 'siss0')
    a('s_branch L_s2')
    mid()
    a('L_s2:')
    a(f'v_and_b32 v2, 15, v0\nv_lshlrev_b32 v2, 4, v2\nv_bfe_u32 v3, v0, 4, 1\nv_lshl_add_u32 v2, v3, {ab[0]}, v2\nv_lshrrev_b32 v3, 5, v0\nv_lshl_add_u32 v2, v3, {ab[1]}, v2')
    srd(a, 44, 8, 's37', 524288)
    if P['vt']:
        a(f'v_mov_b32 v3, 0\nbuffer_load_dword v4, v3, s[44:47], s35 offen {pol}')
    a('s_barrier')
    srd(a, 52, 28, None, WS_USED)
    for e in range(2):
        for r in range(4):
            m16 = (0x11 << r) << (8 * e); m32 = m16 | (m16 << 16)
            a(f's_mov_b32 s{64+2*(4*e+r)}, {hex(m32)}\ns_mov_b32 s{65+2*(4*e+r)}, {hex(m32)}')
    a('s_mov_b32 s80, 0x05040100\ns_mov_b32 s81, 0x07060302')
    for i in range(D0, R):
        if i == D0 + 1: stamp(a, P, 'k0')
        dh = int(P['hpat'][i - D0]) if i - D0 < len(P['hpat']) else D0
        if P['vt'] and i < D0 + D: dh += 1
        a(f's_waitcnt vmcnt({dh-1})'); issue(i)
        if i == 8 + D: stamp(a, P, 's8')
    a('v_bfe_u32 v3, v0, 2, 1\nv_lshlrev_b32 v3, 9, v3\nv_and_b32 v4, 3, v0\nv_lshl_add_u32 v3, v4, 4, v3')
    a(f'v_lshrrev_b32 v4, 4, v0\nv_lshl_add_u32 v3, v4, 6, v3\nv_add_u32 v3, {L_Q}, v3')
    stamp(a, P, 'sB1a')
    q_wait(a, P, 'L_sq')
    stamp(a, P, 'sB1')
    a(f'ds_read_b128 v[{Q}:{Q+3}], v3\nds_read_b128 v[{Q+4}:{Q+7}], v3 offset:256')
    a(f'v_mov_b32 v4, 0xff800000\ns_mov_b32 s83, {hex(f2u(C_EXP))}\ns_waitcnt lgkmcnt(0)')
    chunks = []
    def kdpp(G):
        d = DT + 4 * (G & 1)
        a(f'v_mov_b32_dpp v{S+G}, v{d} quad_perm:[0,0,0,0] row_mask:0xf bank_mask:0xf')
        for r in range(1, 4):
            a(f'v_add_f32_dpp v{S+G}, v{d+r}, v{S+G} quad_perm:[{r},{r},{r},{r}] row_mask:0xf bank_mask:0xf')
        if G & 1:
            if not P['nornd']: a(f'v_cvt_pk_bf16_f32 v5, v{S+G-1}, v{S+G}\nv_lshlrev_b32 v{S+G-1}, 16, v5\nv_and_b32 v{S+G}, 0xffff0000, v5')
            a(f'v_max3_f32 v4, v4, v{S+G-1}, v{S+G}')
    def kchunk(G):
        def fn():
            d = DT + 4 * (G & 1)
            a(f'v_mfma_f32_16x16x32_bf16 v[{d}:{d+3}], {sl(2*G)}, v[{Q}:{Q+3}], 0')
            a(f'v_mfma_f32_16x16x32_bf16 v[{d}:{d+3}], {sl(2*G+1)}, v[{Q+4}:{Q+7}], v[{d}:{d+3}]')
            if G: kdpp(G - 1)
        return fn
    for G in range(32): chunks.append((2 * G + 1, [2 * G, 2 * G + 1], kchunk(G)))
    def sm0():
        kdpp(31)
        xgroup(a, 'v_max_f32', 4, 5)
        a('v_mul_f32 v6, s83, v4\nv_mov_b32 v7, 0')
        stamp(a, P, 'Kdone')
    chunks.append((63, [], sm0))
    def sm(k):
        def fn():
            for g in range(8 * k, 8 * k + 8): a(f'v_fma_f32 v{S+g}, v{S+g}, s83, -v6')
            for g in range(8 * k, 8 * k + 8): a(f'v_exp_f32 v{S+g}, v{S+g}')
            for g in range(8 * k, 8 * k + 8): a(f'v_add_f32 v7, v7, v{S+g}')
            for i in range(4 * k, 4 * k + 4): a(f'v_cvt_pk_bf16_f32 v{S+i}, v{S+2*i}, v{S+2*i+1}')
        return fn
    for k in range(4): chunks.append((63, [], sm(k)))
    def sm_end():
        xgroup(a, 'v_add_f32', 7, 5)
        a(f'v_mov_b32 v5, v7\nv_bfe_u32 v3, v0, 2, 1\nv_lshlrev_b32 v3, 6, v3\ns_lshl_b32 s37, s30, 3\ns_add_u32 s37, s37, {L_ML}\nv_add_u32 v3, s37, v3')
        a('s_mov_b64 exec, 0x11\nds_write_b64 v3, v[4:5]\ns_mov_b64 exec, -1')
    chunks.append((63, [], sm_end))
    AT = [32, 36]; PT = [40, 44, 8, 12]; ACC = DT
    cnt = [0, 0]
    def vchunk(T, e, r):
        def fn():
            A = AT[cnt[0] & 1]; cnt[0] += 1
            mk = 64 + 2 * (4 * e + r)
            for p in range(4): a(f'v_cndmask_b32 v{A+p}, 0, v{S+4*T+p}, s[{mk}:{mk+1}]')
            for jj in range(2):
                j = 4 * jj + r; m, hh = j >> 1, j & 1
                B = PT[cnt[1] & 3]; cnt[1] += 1
                for p in range(4):
                    ev = vidx(T, 2 * p, e); od = vidx(T, 2 * p + 1, e)
                    a(f'v_perm_b32 v{B+p}, v{slot(od)+m}, v{slot(ev)+m}, s{80+hh}')
                c = '0' if (T == 0 and e == 0 and r == 0) else f'v[{ACC+4*jj}:{ACC+4*jj+3}]'
                a(f'v_mfma_f32_16x16x32_bf16 v[{ACC+4*jj}:{ACC+4*jj+3}], v[{A}:{A+3}], v[{B}:{B+3}], {c}')
        return fn
    for T in range(4):
        for e in range(2):
            for r in range(4):
                if lt and T == 3 and e == 1: continue
                fr = [vidx(T, g, e) for g in range(8)] if r == 3 else []
                chunks.append((vidx(T, 7, e), fr, vchunk(T, e, r)))
    if lt:
        FRG = lambda j: slot(112 + j)
        AM = [32, 36, 40, 44]
        def pre(p):
            def fn2():
                if p == 0:
                    for r in range(4):
                        for q in range(4): a(f'v_cndmask_b32 v{AM[r]+q}, 0, v{S+12+q}, s[{72+2*r}:{73+2*r}]')
                for j in range(8):
                    jj = (j & 1) * 4 + (j >> 1); m, hh = jj >> 1, jj & 1
                    a(f'v_perm_b32 v{FRG(jj)+p}, v{slot(vidx(3, 2*p+1, 1))+m}, v{slot(vidx(3, 2*p, 1))+m}, s{80+hh}')
                if p == 3:
                    for j in range(8):
                        jj = (j & 1) * 4 + (j >> 1); r = jj & 3; d = ACC + 4 * (jj >> 2)
                        a(f'v_mfma_f32_16x16x32_bf16 v[{d}:{d+3}], v[{AM[r]}:{AM[r]+3}], v[{FRG(jj)}:{FRG(jj)+3}], v[{d}:{d+3}]')
            return fn2
        for p in range(4): chunks.append((vidx(3, 2 * p + 1, 1), [], pre(p)))
    freed = set(); ci = 0; landed = -1
    XR = RING + 4 * R
    if P['podd'] or P['peven']:
        a(f's_getreg_b32 s62, hwreg(HW_REG_XCC_ID)\ns_bitcmp1_b32 s62, 0\ns_mov_b32 s62, {P["peven"]}\ns_cselect_b32 s62, {P["podd"]}, s62')
    if P['ctl']: a(f's_mov_b32 s62, 0\nv_mov_b32 v{XR+3}, {L_PROG}')
    def run_chunk(issued):
        nonlocal ci, landed
        nd, fr, fn = chunks[ci]; ci += 1
        if nd > landed:
            a(f's_waitcnt vmcnt({issued-1-nd})'); landed = nd
        if not (P['nocomp'] and fr is not None and fn.__name__ == 'fn' and ci <= len(chunks) - 8): fn()
        freed.update(fr)
    for i in range(R, 128):
        while (i - R) not in freed: run_chunk(i)
        Di = P['Dend'] if (P['Dend'] and i >= 128 - P['nend']) else D
        pat = P['kpat'] if i < 64 else P['vpat']
        if pat and not (P['Dend'] and i >= 128 - P['nend']): Di = int(pat[i % len(pat)])
        cks = [int(x) for x in P['cks'].split()] if P['ctl'] else []
        if cks and i > cks[0] + D + 2:
            if i % 4 == 1: a(f's_waitcnt lgkmcnt(0)\nv_readfirstlane_b32 s62, v{XR+1}')
            a(f's_waitcnt vmcnt({Di})\ns_bitcmp1_b32 s62, {i % 8}\ns_cbranch_scc1 L_b{i}\ns_waitcnt vmcnt({Di-1})\nL_b{i}:')
            landed = max(landed, i - Di - 1)
        elif (P['podd'] or P['peven']) and i >= P['p0'] and ((P['podd'] | P['peven']) >> (i % 16) & 1):
            if (P['podd'] & P['peven']) >> (i % 16) & 1: a(f's_waitcnt vmcnt({Di})')
            else: a(f's_waitcnt vmcnt({Di})\ns_bitcmp1_b32 s62, {i % 16}\ns_cbranch_scc1 L_b{i}\ns_waitcnt vmcnt({Di-1})\nL_b{i}:')
            landed = max(landed, i - Di - 1)
        elif i - Di > landed:
            a(f's_waitcnt vmcnt({Di-1})'); landed = i - Di
        issue(i)
        if cks and i >= cks[0] and i % 4 == 0 and i < 124: a(f'ds_read_b32 v{XR+1}, v{XR+3} offset:4')
        if (i - D) in cks:
            a(f's_cmp_lg_u32 s30, 0\ns_cbranch_scc1 L_np{i}\nv_mov_b32 v{XR}, {cks.index(i - D) + 1}\nds_write_b32 v{XR+3}, v{XR}\nL_np{i}:')
        if i == 44 + D: stamp(a, P, 's44')
        if i == 96 + D: stamp(a, P, 's96')
        n = 0
        while ci < len(chunks) and chunks[ci][0] <= landed and n < P['budget']:
            run_chunk(i + 1); n += 1
    def tail_addr():
        a(f'v_lshrrev_b32 v3, 5, v0\nv_lshlrev_b32 v3, 9, v3\nv_bfe_u32 v4, v0, 4, 1\nv_lshl_add_u32 v3, v4, 10, v3')
        a(f'v_and_b32 v4, 15, v0\nv_lshl_add_u32 v3, v4, 5, v3\ns_lshl_b32 s37, s30, 11\ns_add_u32 s37, s37, {L_PART}\nv_add_u32 v3, s37, v3')
        a(f's_lshl_b32 s37, s30, 8\ns_add_u32 s37, s37, {L_PART}\nv_lshl_add_u32 v4, v0, 2, s37')
        a(f's_lshr_b32 s37, s30, 2\ns_lshl_b32 s37, s37, 5\ns_add_u32 s37, s37, {L_F}\nv_mov_b32 v5, s37')
        if P['ov']:
            a(f'v_lshlrev_b32 v6, 2, v0\ns_lshl_b32 s60, s33, 16\ns_and_b32 s37, s34, 3\ns_lshl_b32 s37, s37, 14\ns_add_u32 s60, s60, s37\ns_lshl_b32 s37, s31, 11\ns_add_u32 s60, s60, s37')
            a(f's_lshl_b32 s37, s30, 8\ns_add_u32 s60, s60, s37\ns_add_u32 s60, s60, {QBUF}\ns_xor_b32 s85, s85, 0x55')
        else:
            a(f'v_lshlrev_b32 v6, 2, v0\ns_lshl_b32 s60, s38, 11\ns_lshl_b32 s37, s30, 8\ns_add_u32 s60, s60, s37\ns_add_u32 s60, s60, {OBUF}')
        a(f'v_lshrrev_b32 v1, 4, v0\nv_bfe_u32 v7, v0, 2, 2\nv_and_b32 v8, 3, v0')
        a(f'v_lshl_add_u32 v7, v1, 2, v7\nv_lshlrev_b32 v7, 7, v7\nv_lshl_add_u32 v7, v8, 3, v7\ns_lshl_b32 s37, s30, 5\ns_add_u32 s37, s37, {L_WO}\nv_add_u32 v7, s37, v7')
        a(f'v_and_b32 v2, 15, v0\nv_lshlrev_b32 v2, 4, v2\nv_lshl_add_u32 v2, v1, {14 if P["ov"] else 11}, v2')
        a(f's_lshl_b32 s61, s30, 16\ns_lshl_b32 s37, s31, {11 if P["ov"] else 13}\ns_add_u32 s61, s61, s37\ns_and_b32 s37, s32, 3\ns_lshl_b32 s37, s37, 9\ns_add_u32 s61, s61, s37\ns_add_u32 s61, s61, {QBUF if P["ov"] else OBUF}')
    while ci < len(chunks) - 8: run_chunk(128)
    tail_addr()
    a(f'v_lshl_add_u32 v{XR+2}, v8, 2, v1\nv_lshlrev_b32 v{XR+2}, 1, v{XR+2}\ns_lshl_b32 s39, s32, 5')
    srd(a, 44, 22, None, 896)
    a(f'buffer_load_ushort v{XR}, v{XR+2}, s[44:47], s39 offen')
    srd(a, 40, 4, None, 7168)
    a(f's_mul_i32 s37, s31, 896\ns_add_u32 s63, s37, s39\nbuffer_load_ushort v{XR+1}, v{XR+2}, s[40:43], s63 offen')
    srd(a, 44, 24, None, 7168)
    while ci < len(chunks): run_chunk(130)
    stamp(a, P, 'Vlast')
    a('L_tail:')
    a(f'ds_write_b128 v3, v[{ACC}:{ACC+3}]\nds_write_b128 v3, v[{ACC+4}:{ACC+7}] offset:16\ns_waitcnt lgkmcnt(0)\ns_barrier')
    stamp(a, P, 'B2')
    for w in range(4): a(f'ds_read2st64_b32 v[{16+2*w}:{17+2*w}], v4 offset0:{16*w} offset1:{16*w+8}')
    a(f'ds_read_b128 v[24:27], v5\nds_read_b128 v[28:31], v5 offset:16\ns_waitcnt lgkmcnt(0)')
    a('v_mul_f32 v32, v16, v24\nv_mul_f32 v33, v17, v25')
    for w in range(2, 8): a(f'v_fmac_f32 v{32+(w&1)}, v{16+w}, v{24+w}')
    a('v_mov_b32 v9, s85\nv_add_f32 v32, v32, v33\nv_bfi_b32 v32, s82, v9, v32')
    hand_store(a, 'buffer_store_dword v32, v6, s[52:55], s60 offen')
    stamp(a, P, 'ost')
    a('s_cmp_lt_u32 s32, 28\ns_cbranch_scc0 L_end')
    GL = 'buffer_load_dwordx4 v[16:19], v2, s[52:55], s61 offen sc1\nbuffer_load_dwordx4 v[20:23], v2, s[52:55], s61 offen offset:256 sc1'
    a(GL)
    BF, AF, DR = 56, 72, 88
    a('s_cmp_lt_u32 s30, 4\ns_cbranch_scc0 L_nofr')
    for jj in range(4):
        b = BF + 4 * jj
        a(f'ds_read_b64_tr_b16 v[{b}:{b+1}], v7 offset:{jj*4096}\nds_read_b64_tr_b16 v[{b+2}:{b+3}], v7 offset:{jj*4096+2048}')
    a(f's_lshl_b32 s37, s30, 10\ns_add_u32 s37, s37, {L_C}\nv_lshl_add_u32 v10, v0, 4, s37\nds_read_b128 v[{DR}:{DR+3}], v10')
    a('L_nofr:')
    a(f'v_and_b32 v4, 15, v0\nv_lshlrev_b32 v4, 3, v4\nv_and_b32 v5, 1, v1\nv_lshl_add_u32 v4, v5, 2, v4\nv_lshrrev_b32 v5, 1, v1\nv_lshl_add_u32 v4, v5, 7, v4')
    a(f's_mul_i32 s37, s30, {OSTR}\ns_add_u32 s37, s37, {L_O}\nv_add_u32 v5, s37, v4')
    a(f'v_and_b32 v12, 7, v0\nv_mul_u32_u24 v12, {OSTR}, v12\nv_lshl_add_u32 v12, v1, 3, v12\nv_add_u32 v12, {L_O}, v12')
    a(f's_and_b32 s60, s32, 28\ns_add_u32 s60, s60, s30\ns_lshl_b32 s60, s60, 5\ns_lshl_b32 s37, s31, 2\ns_add_u32 s60, s60, s37\ns_and_b32 s37, s32, 3\ns_add_u32 s60, s60, s37')
    a(f's_lshl_b32 s60, s60, 9\ns_add_u32 s60, s60, {PBUF}\ns_mov_b32 s86, {P["spin"]}')
    a('s_branch L_gchk')
    a('L_gpoll:')
    if P['gsl']: a(f's_sleep {P["gsl"]}')
    a(GL)
    a('L_gchk:')
    a('s_waitcnt vmcnt(0)')
    tag_check(a, range(16, 24), 10, 11, 4)
    a('s_sub_u32 s86, s86, 1\ns_cbranch_scc1 L_gdone\ns_cbranch_vccnz L_gpoll')
    a('L_gdone:')
    stamp(a, P, 'gok')
    for i in range(8): a(f'v_and_b32 v{16+i}, {hex(0xffffffff ^ TMASK)}, v{16+i}')
    for p in (16, 17, 20, 21): a(f'v_permlane16_swap_b32 v{p}, v{p+2}')
    for p in (16, 17, 20, 21): a(f'v_add_f32 v{p}, v{p}, v{p+2}')
    a('v_permlane32_swap_b32 v16, v20\nv_permlane32_swap_b32 v17, v21\nv_add_f32 v16, v16, v20\nv_add_f32 v17, v17, v21')
    a('v_cvt_pk_bf16_f32 v16, v16, v17\nds_write_b32 v5, v16\ns_waitcnt lgkmcnt(0)\ns_barrier')
    stamp(a, P, 'B3')
    a('s_cmp_lt_u32 s30, 4\ns_cbranch_scc0 L_fin')
    for jj in range(4): a(f'ds_read_b64 v[{AF+4*jj}:{AF+4*jj+1}], v12 offset:{jj*64}\nds_read_b64 v[{AF+4*jj+2}:{AF+4*jj+3}], v12 offset:{jj*64+32}')
    for jj in range(4):
        a(f's_waitcnt lgkmcnt({6-2*jj})')
        a(f'v_mfma_f32_16x16x32_bf16 v[{DR}:{DR+3}], v[{AF+4*jj}:{AF+4*jj+3}], v[{BF+4*jj}:{BF+4*jj+3}], v[{DR}:{DR+3}]')
    a(f'v_permlane32_swap_b32 v{DR}, v{DR+1}\nv_permlane32_swap_b32 v{DR+2}, v{DR+3}')
    a(f'v_bfi_b32 v{DR}, s82, v9, v{DR}\nv_bfi_b32 v{DR+2}, s82, v9, v{DR+2}')
    a(f'buffer_store_dword v{DR}, v6, s[52:55], s60 offen {P["ppol"]}\nbuffer_store_dword v{DR+2}, v6, s[52:55], s60 offen offset:256 {P["ppol"]}')
    stamp(a, P, 'pst')
    if P['diag']:
        a('s_cmp_lg_u32 s30, 0\ns_cbranch_scc1 L_end')
        stamp_store(a, P, stamp_items(P, [x for x in S_PTS if x not in ('g2ok', 'end', 'fst', 'fcnt')]), hw=True)
    a('s_endpgm')
    a('L_fin:')
    if P['wb']:
        a('s_cmp_eq_u32 s30, 5\ns_cbranch_scc0 L_nowb\ns_cmp_eq_u32 s32, 0\ns_cbranch_scc0 L_end\nbuffer_wbl2 sc1\ns_waitcnt vmcnt(0)\ns_endpgm\nL_nowb:')
    a('s_cmp_eq_u32 s30, 7\ns_cbranch_scc0 L_end')
    a('v_and_b32 v8, 3, v0')
    a(f'v_lshrrev_b32 v2, 2, v0\nv_lshlrev_b32 v2, 9, v2\nv_lshl_add_u32 v2, v8, 4, v2\nv_add_u32 v3, 8192, v2\nv_mov_b32 v7, 0x200')
    a(f's_lshl_b32 s61, s32, 14\ns_and_b32 s37, s31, 3\ns_lshl_b32 s37, s37, 7\ns_add_u32 s61, s61, s37\ns_lshr_b32 s37, s31, 2\ns_lshl_b32 s37, s37, 6\ns_add_u32 s61, s61, s37\ns_add_u32 s61, s61, {PBUF}\ns_mov_b32 s86, {P["spin"]}')
    a(f'v_lshlrev_b32 v24, 16, v{XR}\nv_lshlrev_b32 v25, 16, v{XR+1}\nv_add_f32 v24, v24, v25')
    stamp(a, P, 'fst')
    a('L_fpoll:')
    a(f'buffer_load_dwordx4 v[16:19], v2, s[52:55], s61 offen {P["lpol"]}\nbuffer_load_dwordx4 v[20:23], v3, s[52:55], s61 offen {P["lpol"]}')
    a('s_waitcnt vmcnt(0)')
    tag_check(a, range(16, 24), 8, 9, 10)
    a('s_sub_u32 s86, s86, 1\ns_cbranch_scc1 L_fdone\ns_cbranch_vccz L_fdone')
    if P['fthr']:
        a(f's_bcnt1_i32_b64 s37, vcc\ns_cmp_lt_u32 s37, {P["fthr"]}\ns_cbranch_scc1 L_fpoll\ns_sleep {P["fsl2"]}')
    if P['fsl']: a(f's_sleep {P["fsl"]}')
    a('s_branch L_fpoll')
    a('L_fdone:')
    stamp(a, P, 'g2ok')
    if P['diag'] and 'fcnt' in pts(P):
        r = 88 + 2 * pts(P).index('fcnt'); r0 = 88 + 2 * pts(P).index('fst')
        a(f's_sub_u32 s37, {P["spin"]}, s86\ns_mul_i32 s37, s37, 100\ns_add_u32 s{r}, s{r0}, s37\ns_addc_u32 s{r+1}, s{r0+1}, 0')
    tag_strip(a, range(16, 24), 7)
    for i in range(4): a(f'v_add_f32 v{16+i}, v{16+i}, v{20+i}')
    a('v_permlane16_swap_b32 v16, v17\nv_permlane16_swap_b32 v18, v19\nv_add_f32 v16, v16, v17\nv_add_f32 v18, v18, v19')
    a('v_permlane32_swap_b32 v16, v18\nv_add_f32 v16, v16, v18')
    a('v_add_f32_dpp v16, v16, v16 row_ror:4 row_mask:0xf bank_mask:0xf')
    a('v_add_f32_dpp v16, v16, v16 row_ror:8 row_mask:0xf bank_mask:0xf')
    a('v_add_f32 v16, v16, v24\nv_cvt_pk_bf16_f32 v16, v16, v16')
    a('s_mov_b32 exec_lo, 0x000f000f\ns_mov_b32 exec_hi, 0x000f000f')
    a(f'buffer_store_short v16, v{XR+2}, s[44:47], s63 offen')
    a('s_cmp_lg_u32 s2, 0\ns_cbranch_scc1 L_noep')
    a('v_mov_b32 v8, 0\nv_mov_b32 v9, s84\ns_mov_b64 exec, 1\nbuffer_store_dword v9, v8, s[52:55], 0 offen sc1')
    a('L_noep:')
    if P['hold']:
        a(f'L_hold:\ns_memrealtime s[96:97]\ns_waitcnt lgkmcnt(0)\ns_sub_u32 s96, s96, s98\ns_cmp_lt_u32 s96, {P["hold"]}\ns_cbranch_scc1 L_hold')
    if P['diag']:
        a('s_mov_b64 exec, -1\ns_waitcnt vmcnt(0)')
        stamp(a, P, 'end')
        stamp_store(a, P, stamp_items(P, ['g2ok', 'end', 'fst', 'fcnt']))
    a('s_endpgm')

def dma_loop(a, lab, n, depth, vaddr, sstep, lds0, pol):
    a(f's_mov_b32 s36, 0\ns_mov_b32 s62, {lds0}\ns_mov_b32 s63, {n}')
    a(f'{lab}:')
    a(f's_mov_b32 m0, s62\ns_waitcnt vmcnt({depth-1})')
    a(f'buffer_load_dwordx4 v{vaddr}, s[56:59], s36 offen {pol} lds')
    a(f's_add_u32 s36, s36, {sstep}\ns_add_u32 s62, s62, 1024\ns_sub_u32 s63, s63, 1\ns_cmp_lg_u32 s63, 0\ns_cbranch_scc1 {lab}')

XF, FF, TT = 16, 44, 100
def x_addr(a):
    a('v_and_b32 v10, 15, v0\nv_lshrrev_b32 v9, 4, v0\nv_and_b32 v8, 7, v0\nv_mul_u32_u24 v8, 896, v8')
    a('v_bfe_u32 v3, v0, 3, 1\nv_mul_u32_u24 v3, 448, v3\nv_lshl_add_u32 v8, v9, 4, v8\nv_add_u32 v8, v8, v3')
def x_load(a, P):
    srd(a, 48, 4, None, 7168)
    for ks in range(7): a(f'buffer_load_dwordx4 v[{XF+4*ks}:{XF+4*ks+3}], v8, s[48:51], 0 offen offset:{ks*64} {P["xpol"]}')
def tag_check(a, regs, t0, t1, acc, mask=TMASK):
    for i in range(0, len(regs), 2):
        a(f'v_xor_b32 v{t0}, s85, v{regs[i]}\nv_xor_b32 v{t1}, s85, v{regs[i+1]}')
        a(f'v_or_b32 v{acc}, v{t0}, v{t1}' if i == 0 else f'v_or3_b32 v{acc}, v{acc}, v{t0}, v{t1}')
    a(f'v_and_b32 v{acc}, {mask}, v{acc}\nv_cmp_ne_u32 vcc, 0, v{acc}')
def tag_strip(a, regs, half, ms=82):
    for r in regs: a(f'v_bfi_b32 v{r}, s{ms}, v{half}, v{r}')
_st = [0]; HPOL = ['']
def hand_store(a, ins):
    _st[0] += 1; n = _st[0]
    a(f's_cmp_eq_u32 s87, 0\ns_cbranch_scc1 L_wt{n}\n{ins} {HPOL[0]}\ns_branch L_we{n}\nL_wt{n}:\n{ins} sc1\nL_we{n}:')

def unit_gemm(a, lds, va, st_v, st_s, tagv, ms, before_pub=None):
    TA, DQ = 44, 108
    seq = [(t, ks) for t in range(4) for ks in range(4)]
    def rd(n):
        t, ks = seq[n]; r = TA + 4 * n; o = lds + ks * 4096 + t * 32
        a(f'ds_read_b64_tr_b16 v[{r}:{r+1}], v{va} offset:{o}\nds_read_b64_tr_b16 v[{r+2}:{r+3}], v{va} offset:{o+512}')
    def pub(t):
        for r in range(4): a(f'v_bfi_b32 v{DQ+4*t+r}, s{ms}, v{tagv}, v{DQ+4*t+r}')
        hand_store(a, f'buffer_store_dwordx4 v[{DQ+4*t}:{DQ+4*t+3}], v{st_v}, s[52:55], s{st_s} offen offset:{t*64}')
    for n in range(6): rd(n)
    for n, (t, ks) in enumerate(seq):
        if n + 6 < 16: rd(n + 6)
        a(f's_waitcnt lgkmcnt({2*min(6, 15-n)})')
        r = TA + 4 * n; d = DQ + 4 * t
        c = '0' if ks == 0 else f'v[{d}:{d+3}]'
        a(f'v_mfma_f32_16x16x32_bf16 v[{d}:{d+3}], v[{r}:{r+3}], v[{XF+4*ks}:{XF+4*ks+3}], {c}')
        if before_pub is None and n in (7, 11, 15): pub(n // 4 - 1)
    if before_pub is not None:
        before_pub()
        for t in range(3): pub(t)
    pub(3)

def helper(a, P):
    a('L_helper:')
    stamp(a, P, 'hstart')
    if P['cpf']:
        a('s_getpc_b64 s[56:57]\ns_mov_b32 s58, 4352\ns_mov_b32 s59, 0x20000\nv_lshlrev_b32 v1, 6, v0')
        a('buffer_load_dword v15, v1, s[56:59], 0 offen offset:256')
    x_addr(a)
    a('v_lshrrev_b32 v4, 3, v0\nv_lshlrev_b32 v1, 13, v4\nv_and_b32 v2, 7, v0\nv_lshl_add_u32 v1, v2, 4, v1')
    a('v_mul_u32_u24 v4, 3584, v4\nv_lshl_add_u32 v4, v2, 4, v4')
    a('s_and_b32 s63, s32, 1\ns_bfe_u32 s62, s32, 0x10001\ns_mul_i32 s64, s62, 224\ns_lshl_b32 s36, s63, 7\ns_add_u32 s64, s64, s36')
    a('s_lshl_b32 s65, s63, 5\ns_sub_u32 s65, 127, s65\ns_lshr_b32 s66, s32, 2')
    a('s_lshl_b32 s37, s64, 13\ns_lshl_b32 s39, s31, 3\ns_add_u32 s39, s39, s66\ns_lshl_b32 s39, s39, 7\ns_add_u32 s37, s37, s39')
    a('s_lshl_b32 s39, s65, 13\ns_add_u32 s39, s39, 128')
    a('s_lshl_b32 s60, s63, 8\ns_mul_i32 s61, s63, 192\ns_sub_u32 s61, 192, s61')
    a('s_waitcnt lgkmcnt(0)')
    stamp(a, P, 'hkarg')
    a('s_load_dword s84, s[28:29], 0')
    srd(a, 48, 4, None, 7168)
    for ks in range(7):
        if ks < 3: a(f'buffer_load_dwordx4 v[{XF+4*ks}:{XF+4*ks+3}], v8, s[48:51], s60 offen offset:{ks*64} {P["xpol"]}')
        else: a(f'buffer_load_dwordx4 v[{XF+4*ks}:{XF+4*ks+3}], v8, s[48:51], s61 offen offset:{(ks-3)*64} {P["xpol"]}')
    if P['abl'] & 2: a('s_mov_b32 s39, 0')
    srd(a, 56, 10, 's37', 's39')
    for i in range(16):
        a(f's_mov_b32 m0, {L_WQ+i*1024}\ns_mov_b32 s36, {i*65536}')
        a(f'buffer_load_dwordx4 v1, s[56:59], s36 offen {P["wpol"]} lds')
    stamp(a, P, 'wqiss')
    a(f'v_mov_b32 v126, -1\nv_mov_b32 v127, -1\nv_lshlrev_b32 v3, 3, v0\nv_add_u32 v3, {L_ML}, v3\nv_mov_b32 v5, {L_TAG}')
    a('s_mov_b64 exec, 0xffff\nds_write_b64 v3, v[126:127]\nds_write_b64 v5, v[126:127]\ns_mov_b64 exec, -1')
    srd(a, 52, 28, None, WS_USED)
    a(f'v_lshlrev_b32 v2, 4, v0\ns_getreg_b32 s68, hwreg(HW_REG_XCC_ID)\ns_and_b32 s68, s68, 15\ns_lshl_b32 s68, s68, 12')
    a(f's_lshl_b32 s69, s31, 12\ns_add_u32 s69, s69, {XBUF}\ns_lshl_b32 s37, s32, 7\ns_add_u32 s37, s37, s69\ns_waitcnt lgkmcnt(0)')
    a(f's_add_u32 s84, s84, 0x9E3779B9\ns_and_b32 s85, s84, {TMASK}\ns_or_b32 s68, s68, s85\nv_mov_b32 v6, s85\nv_mov_b32 v124, s68')
    a('s_mov_b64 exec, 1\nbuffer_store_dword v124, v2, s[52:55], s37 offen sc1\ns_mov_b64 exec, -1')
    stamp(a, P, 'xst')
    a('s_barrier')
    a('v_and_b32 v125, 31, v0\nv_lshlrev_b32 v125, 7, v125')
    a(f'v_mov_b32 v14, {hex(OOB)}\ns_mov_b32 s82, {TMASK}\ns_mov_b32 s81, {QMASK}\ns_mov_b32 s83, {hex(f2u(C_EXP))}')
    a(f'v_bfe_u32 v3, v0, 2, 2\nv_lshl_add_u32 v12, v9, 3, v3\nv_lshlrev_b32 v12, 7, v12\nv_and_b32 v5, 3, v0\nv_lshl_add_u32 v12, v5, 3, v12')
    a(f'v_and_b32 v5, 7, v0\nv_lshlrev_b32 v13, 16, v5\nv_lshl_add_u32 v13, v9, 4, v13\nv_bfe_u32 v3, v0, 3, 1\nv_cmp_eq_u32 vcc, s62, v3')
    a(f'v_lshlrev_b32 v5, 12, v5\nv_lshl_add_u32 v5, v9, 4, v5\nv_cndmask_b32 v13, v14, v13, vcc\nv_cndmask_b32 v5, v14, v5, vcc')
    a(f's_and_b32 s37, s32, 3\ns_lshl_b32 s60, s37, 14\ns_lshl_b32 s39, s31, 11\ns_add_u32 s60, s60, s39\ns_lshl_b32 s39, s66, 8\ns_add_u32 s60, s60, s39\ns_add_u32 s60, s60, {QBUF}')
    a(f's_lshl_b32 s70, s37, 10\ns_and_b32 s39, s66, 3\ns_lshl_b32 s39, s39, 8\ns_add_u32 s70, s70, s39\ns_lshl_b32 s39, s31, 15\ns_add_u32 s70, s70, s39\ns_add_u32 s70, s70, {HBUF}')
    a('s_waitcnt vmcnt(17)')
    stamp(a, P, 'xland')
    layernorm(a, XF, FF, TT)
    stamp(a, P, 'lndone')
    a('s_mov_b64 exec, 0xffffffff\nbuffer_load_dword v124, v125, s[52:55], s69 offen sc1\ns_mov_b64 exec, -1')
    a('s_waitcnt vmcnt(2) lgkmcnt(0)')
    stamp(a, P, 'wqland')
    def loc_check():
        a('s_waitcnt vmcnt(0)\nv_cmp_ne_u32 vcc, s68, v124\ns_cmp_eq_u32 vcc_lo, 0')
        for k in range(P['xretry']):
            a('s_cbranch_scc1 L_xok\ns_mov_b64 exec, 0xffffffff\nbuffer_load_dword v124, v125, s[52:55], s69 offen sc1\ns_mov_b64 exec, -1')
            a('s_waitcnt vmcnt(0)\nv_cmp_ne_u32 vcc, s68, v124\ns_cmp_eq_u32 vcc_lo, 0')
        a('L_xok:')
        a('s_cselect_b32 s87, 1, 0' if P['loc'] else 's_mov_b32 s87, 0')
        stamp(a, P, 'xid')
        if P['diag'] and 'locv' in pts(P):
            a('s_cmp_lg_u32 s87, 0\ns_cbranch_scc1 L_locv'); stamp(a, P, 'locv'); a('L_locv:')
    if P['abl'] & 4: loc_check(); a('s_branch L_qdone')
    unit_gemm(a, L_WQ, 12, 13, 60, 6, 81, None if P['abl'] & 4 else loc_check)
    stamp(a, P, 'qpub')
    a(f's_lshl_b32 s61, s33, 16\ns_lshl_b32 s37, s31, 11\ns_add_u32 s61, s61, s37\ns_add_u32 s61, s61, {QBUF}')
    a(f's_mov_b32 s86, {P["spin"]}\nv_mov_b32 v7, 0x80')
    a('L_qpoll:')
    a(f's_sleep {P["qsl"]}')
    a('s_mov_b32 s36, s61')
    for kq in range(4):
        for m in range(2): a(f'buffer_load_dwordx4 v[{44+8*kq+4*m}:{47+8*kq+4*m}], v2, s[52:55], s36 offen offset:{m*1024} sc1')
        if kq < 3: a('s_add_u32 s36, s36, 16384')
    a(f's_mov_b64 exec, 0xffffffff\nbuffer_load_dword v124, v125, s[52:55], s69 offen sc1\ns_mov_b64 exec, -1\ns_waitcnt vmcnt(0)')
    tag_check(a, range(44, 76), 100, 101, 102, QMASK)
    a('s_sub_u32 s86, s86, 1\ns_cbranch_scc1 L_qdone\ns_cbranch_vccnz L_qpoll')
    a('L_qdone:')
    stamp(a, P, 'qok')
    a('v_cmp_ne_u32 vcc, s68, v124\ns_cmp_eq_u32 vcc_lo, 0')
    a('s_cselect_b32 s87, 1, 0' if P['loc'] else 's_mov_b32 s87, 0')
    tag_strip(a, range(44, 76), 7, 81)
    for kq in range(1, 4):
        for m in range(4): a(f'v_pk_add_f32 v[{44+2*m}:{45+2*m}], v[{44+2*m}:{45+2*m}], v[{44+8*kq+2*m}:{45+8*kq+2*m}]')
    a(f'v_lshlrev_b32 v3, 3, v0\nv_add_u32 v3, {L_Q}, v3\nv_mov_b32 v13, {L_TAG}\nv_mov_b32 v100, s84\nv_mov_b32 v101, s87')
    for m in range(4): a(f'v_cvt_pk_bf16_f32 v{52+m}, v{44+2*m}, v{45+2*m}')
    a('ds_write_b64 v3, v[52:53]\nds_write_b64 v3, v[54:55] offset:512\ns_waitcnt lgkmcnt(0)\nds_write_b64 v13, v[100:101]')
    stamp(a, P, 'B1')
    if P['abl'] & 1: a('s_branch L_now')
    a('s_cmp_ge_u32 s66, 4\ns_cbranch_scc0 L_noh')
    a('s_mul_i32 s67, s31, 7\ns_lshr_b32 s67, s67, 1\ns_and_b32 s39, s66, 3\ns_add_u32 s67, s67, s39\ns_mul_i32 s37, s64, 3584\ns_lshl_b32 s39, s67, 7\ns_add_u32 s37, s37, s39')
    a('s_mul_i32 s39, s65, 3584\ns_add_u32 s39, s39, 128')
    srd(a, 56, 16, 's37', 's39')
    dma_loop(a, 'L_w1', 16, P['DH'], 4, 8 * 3584, L_W1, P['wpol'])
    layernorm(a, XF, FF, TT, 16)
    a('s_waitcnt vmcnt(0)')
    unit_gemm(a, L_W1, 12, 5, 70, 6, 82)
    a('L_noh:')
    stamp(a, P, 'hpub')
    a('s_cmp_lt_u32 s32, 28\ns_cbranch_scc0 L_now')
    a('v_lshrrev_b32 v1, 3, v0\nv_mul_u32_u24 v1, 896, v1\nv_and_b32 v3, 7, v0\nv_lshl_add_u32 v1, v3, 4, v1')
    a('s_and_b32 s64, s32, 3\ns_lshl_b32 s65, s31, 2\ns_add_u32 s65, s65, s64')
    a(f's_mul_i32 s37, s65, 50176\ns_lshl_b32 s39, s66, 7\ns_add_u32 s37, s37, s39')
    srd(a, 56, 20, 's37', 55 * 896 + 128)
    dma_loop(a, 'L_w2', 8, P['DH'], 1, 8 * 896, L_W2, P['mpol'])
    if not P['nowo']:
        a(f's_mul_i32 s37, s65, 114688\ns_lshl_b32 s39, s66, 7\ns_add_u32 s37, s37, s39\ns_sub_u32 s39, {4096*896}, s37')
        srd(a, 56, 12, 's37', 's39')
        dma_loop(a, 'L_wo', 16, P['DH'], 1, 8 * 896, L_WO, P['opol'])
    stamp(a, P, 'wodone')
    a('v_min_u32 v3, 13, v10\nv_lshlrev_b32 v4, 12, v9\nv_lshl_add_u32 v4, v3, 4, v4\nv_lshlrev_b32 v5, 3, v3')
    a(f's_lshl_b32 s61, s31, 15\ns_mul_i32 s37, s64, 224\ns_add_u32 s61, s61, s37\ns_and_b32 s37, s31, 1\ns_lshl_b32 s37, s37, 7\ns_add_u32 s61, s61, s37\ns_add_u32 s61, s61, {HBUF}')
    srd(a, 48, 18, None, 3584)
    a(f's_mul_i32 s37, s65, 112\nbuffer_load_dwordx2 v[20:21], v5, s[48:51], s37 offen\ns_add_u32 s60, s61, 16384\ns_mov_b32 s86, {P["spin"]}\nv_mov_b32 v7, 0x200')
    a('L_hp:')
    for ps in range(2):
        for kq in range(4): a(f'buffer_load_dwordx4 v[{44+16*ps+4*kq}:{47+16*ps+4*kq}], v4, s[52:55], s{61-ps} offen offset:{kq*1024} sc1')
    a('s_waitcnt vmcnt(0)')
    tag_check(a, range(44, 76), 16, 17, 18)
    a('s_sub_u32 s86, s86, 1\ns_cbranch_scc1 L_hpd\ns_cbranch_vccz L_hpd\ns_sleep 16\ns_branch L_hp')
    a('L_hpd:')
    tag_strip(a, range(44, 76), 7)
    for ps in range(2):
        for kq in range(1, 4):
            for m in range(2): a(f'v_pk_add_f32 v[{44+16*ps+2*m}:{45+16*ps+2*m}], v[{44+16*ps+2*m}:{45+16*ps+2*m}], v[{44+16*ps+4*kq+2*m}:{45+16*ps+4*kq+2*m}]')
    unpack(a, 20, 24, 2)
    a('v_cvt_pk_bf16_f32 v16, v44, v45\nv_cvt_pk_bf16_f32 v17, v46, v47\nv_cvt_pk_bf16_f32 v18, v60, v61\nv_cvt_pk_bf16_f32 v19, v62, v63')
    unpack(a, 16, 32, 4)
    for i in range(8): a(f'v_add_f32 v{32+i}, v{32+i}, v{24+(i&3)}')
    for i in range(4): a(f'v_cvt_pk_bf16_f32 v{16+i}, v{32+2*i}, v{33+2*i}')
    unpack(a, 16, 32, 4)
    k0 = 2 * 0.7978845608028654 * math.log2(math.e); k1 = k0 * 0.044715
    a(f's_mov_b32 s62, {hex(f2u(-k1))}\nv_mov_b32 v15, {hex(f2u(-k0))}')
    for i in range(8): a(f'v_mul_f32 v{44+i}, v{32+i}, v{32+i}')
    for i in range(8): a(f'v_fma_f32 v{44+i}, v{44+i}, s62, v15')
    for i in range(8): a(f'v_mul_f32 v{44+i}, v{44+i}, v{32+i}')
    for i in range(8): a(f'v_exp_f32 v{44+i}, v{44+i}')
    for i in range(8): a(f'v_add_f32 v{44+i}, 1.0, v{44+i}')
    for i in range(8): a(f'v_rcp_f32 v{44+i}, v{44+i}')
    for i in range(8): a(f'v_mul_f32 v{32+i}, v{32+i}, v{44+i}')
    a('v_cmp_gt_u32 vcc, 14, v10')
    for i in range(4): a(f'v_cvt_pk_bf16_f32 v{16+i}, v{32+2*i}, v{33+2*i}')
    for i in range(4): a(f'v_cndmask_b32 v{16+i}, 0, v{16+i}, vcc')
    a(f'v_mul_u32_u24 v3, {HSTR}, v9\nv_lshl_add_u32 v3, v10, 3, v3\nv_add_u32 v3, {L_H}, v3')
    a(f'ds_write_b64 v3, v[16:17]\nds_write_b64 v3, v[18:19] offset:{4*HSTR}')
    a(f'v_and_b32 v3, 7, v0\nv_mul_u32_u24 v3, {HSTR}, v3\nv_lshl_add_u32 v3, v9, 3, v3\nv_add_u32 v3, {L_H}, v3')
    a(f'v_bfe_u32 v4, v0, 2, 2\nv_lshl_add_u32 v4, v9, 2, v4\nv_lshlrev_b32 v4, 7, v4\nv_and_b32 v5, 3, v0\nv_lshl_add_u32 v4, v5, 3, v4\nv_add_u32 v4, {L_W2}, v4')
    a('s_waitcnt lgkmcnt(0)')
    for k in range(2): a(f'ds_read_b64 v[{16+4*k}:{17+4*k}], v3 offset:{k*64}\nds_read_b64 v[{18+4*k}:{19+4*k}], v3 offset:{k*64+32}')
    for t in range(4):
        for k in range(2):
            r = 44 + 8 * t + 4 * k
            a(f'ds_read_b64_tr_b16 v[{r}:{r+1}], v4 offset:{k*4096+t*32}\nds_read_b64_tr_b16 v[{r+2}:{r+3}], v4 offset:{k*4096+2048+t*32}')
    a(f'v_add_u32 v3, {L_C}, v2\ns_waitcnt lgkmcnt(0)')
    for k in range(2):
        for t in range(4):
            r = 44 + 8 * t + 4 * k; d = 76 + 4 * t
            a(f'v_mfma_f32_16x16x32_bf16 v[{d}:{d+3}], v[{16+4*k}:{19+4*k}], v[{r}:{r+3}], ' + ('0' if k == 0 else f'v[{d}:{d+3}]'))
    for t in range(4): a(f'ds_write_b128 v3, v[{76+4*t}:{79+4*t}] offset:{t*1024}')
    a('L_now:')
    stamp(a, P, 'mend')
    a(f'v_and_b32 v3, 15, v0\nv_lshlrev_b32 v3, 3, v3\nv_add_u32 v3, {L_ML}, v3\ns_mov_b32 s86, {P["spin"]*16}')
    a('L_mlw:')
    a('ds_read_b64 v[16:17], v3\ns_waitcnt lgkmcnt(0)\nv_cmp_eq_u32 vcc, -1, v16')
    a('s_sub_u32 s86, s86, 1\ns_cbranch_scc1 L_mlwd\ns_cbranch_vccz L_mlwd\ns_sleep 4\ns_branch L_mlw')
    a('L_mlwd:')
    d8 = ('quad_perm:[1,0,3,2]', 'quad_perm:[2,3,0,1]', 'row_half_mirror')
    a('v_mov_b32 v18, v16')
    for m in d8: a(f'v_max_f32_dpp v18, v18, v18 {m} row_mask:0xf bank_mask:0xf')
    a('v_sub_f32 v20, v16, v18\nv_mul_f32 v20, s83, v20\nv_exp_f32 v20, v20\nv_mul_f32 v19, v20, v17')
    for m in d8: a(f'v_add_f32_dpp v19, v19, v19 {m} row_mask:0xf bank_mask:0xf')
    tag_strip(a, (18, 19), 6)
    a(f's_lshl_b32 s37, s38, 7\ns_add_u32 s37, s37, {MLX}\ns_mov_b64 exec, 0x101')
    hand_store(a, 'buffer_store_dwordx2 v[18:19], v0, s[52:55], s37 offen')
    a('s_mov_b64 exec, -1')
    stamp(a, P, 'mlpub')
    a(f's_and_b32 s61, s38, 0xfc\ns_lshl_b32 s61, s61, 7\ns_add_u32 s61, s61, {MLX}\ns_mov_b32 s86, {P["spin"]}')
    a('v_and_b32 v3, 3, v0\nv_lshlrev_b32 v3, 7, v3\nv_and_b32 v4, 8, v0\nv_add_u32 v3, v3, v4')
    a('L_mlp2:')
    a(f's_sleep {P["msl"]}')
    a('buffer_load_dwordx2 v[24:25], v3, s[52:55], s61 offen sc1\ns_waitcnt vmcnt(0)')
    tag_check(a, (24, 25), 26, 27, 28)
    a('s_sub_u32 s86, s86, 1\ns_cbranch_scc1 L_mlp2d\ns_cbranch_vccnz L_mlp2')
    a('L_mlp2d:')
    stamp(a, P, 'mlok')
    a(f'v_and_b32 v24, 0xffff0000, v24\nv_and_b32 v25, {hex(0xffffffff ^ TMASK)}, v25\nv_mov_b32 v28, v24')
    for m in d8[:2]: a(f'v_max_f32_dpp v28, v28, v28 {m} row_mask:0xf bank_mask:0xf')
    a('v_sub_f32 v29, v24, v28\nv_mul_f32 v29, s83, v29\nv_exp_f32 v29, v29\nv_mul_f32 v29, v29, v25')
    for m in d8[:2]: a(f'v_add_f32_dpp v29, v29, v29 {m} row_mask:0xf bank_mask:0xf')
    a('v_sub_f32 v30, v16, v28\nv_mul_f32 v30, s83, v30\nv_exp_f32 v30, v30\nv_rcp_f32 v29, v29\nv_mul_f32 v30, v30, v29')
    a(f'v_lshlrev_b32 v3, 2, v0\nv_add_u32 v3, {L_F}, v3\ns_mov_b64 exec, 0xffff\nds_write_b32 v3, v30\ns_mov_b64 exec, -1')
    if P['tpf']:
        a('s_getpc_b64 s[56:57]\nL_pc2:\ns_add_u32 s56, s56, L_tail-L_pc2\ns_addc_u32 s57, s57, 0\ns_mov_b32 s58, L_end-L_tail\ns_mov_b32 s59, 0x20000')
        a('v_lshlrev_b32 v1, 6, v0\nbuffer_load_dword v15, v1, s[56:59], 0 offen')
    a('s_waitcnt vmcnt(0) lgkmcnt(0)')
    stamp(a, P, 'hend')
    stamp_store(a, P, stamp_items(P, H_PTS))
    a('s_endpgm')

def body(P):
    a = Asm(); HPOL[0] = P['hpol']
    a('s_cmp_ge_u32 s2, 256\ns_cbranch_scc1 L_end')
    a('s_load_dwordx16 s[4:19], s[0:1], 0\ns_load_dwordx8 s[20:27], s[0:1], 64\ns_load_dwordx2 s[28:29], s[0:1], 96')
    a('v_lshrrev_b32 v1, 6, v0\nv_and_b32 v0, 63, v0\nv_readfirstlane_b32 s30, v1')
    a('s_and_b32 s31, s2, 7\ns_lshr_b32 s32, s2, 3')
    if P['bmap'] == 0: a('s_lshr_b32 s33, s32, 2\ns_and_b32 s34, s32, 3')
    else: a('s_and_b32 s33, s32, 7\ns_lshr_b32 s34, s32, 3')
    a('s_lshl_b32 s37, s31, 2\ns_add_u32 s34, s34, s37\ns_lshl_b32 s38, s33, 5\ns_add_u32 s38, s38, s34')
    stamp_init(a, P)
    stamp(a, P, 'entry')
    a(f's_cmp_eq_u32 s30, {P["hw"]}\ns_cbranch_scc1 L_helper')
    streamer(a, P, lambda: helper(a, P))
    a('L_end:\ns_endpgm')
    txt, n = a.text()
    return txt, n

def vgprs(P): return max(56 + 4 * P['R'] + 4, 156)

def kernel(P):
    txt, n = body(P)
    nm = P['name']
    txt = txt.replace('L_', f'L{nm[-24:]}_') if P.get('uniq') else txt
    return txt

def final_file(P):
    ref = open(f'cdna_kernels/{NAME}.s.ref').read()
    head = ref[:ref.index('; Override launch')]
    nm = P['name']; vg = vgprs(P)
    return head + f'''; Single launch: 256 workgroups x (8 streaming waves + 1 helper wave). Generated by gen/gen.py.
; @launch grid=(256,1,1) block=({block(P)},1,1) lds={LDS_BYTES}
.amdgcn_target "amdgcn-amd-amdhsa--gfx950"
.text
.globl {nm}
.p2align 8
.type {nm},@function
{nm}:
{kernel(P)}
.section .rodata,"a"
.p2align 6
.amdhsa_kernel {nm}
  .amdhsa_next_free_vgpr {vg}
  .amdhsa_next_free_sgpr 102
  .amdhsa_accum_offset {(vg+3)//4*4}
  .amdhsa_group_segment_fixed_size 0
  .amdhsa_kernarg_size 104
  .amdhsa_user_sgpr_count 2
  .amdhsa_user_sgpr_kernarg_segment_ptr 1
  .amdhsa_system_sgpr_workgroup_id_x 1
.end_amdhsa_kernel
'''

if __name__ == '__main__':
    P = dict(DEF)
    out = f'cdna_kernels/{NAME}.s'
    for kv in sys.argv[1:]:
        k, v = kv.split('=', 1)
        if k == 'out': out = v
        else: P[k] = type(DEF[k])(v) if not isinstance(DEF[k], bool) else v == '1'
    open(out, 'w').write(final_file(P))
    print('wrote', out)
```

```python
import sys, math, struct
from asmlib import Asm

NAME = 'parallel_sum__gqa_block_cached__mixer_channel_mlp__decode'
def f2u(x): return struct.unpack('<I', struct.pack('<f', x))[0]

CBUF, XBUF, MLX, OBUF, PBUF, HBUF, QBUF, WS_USED = 0x4000, 0x8000, 0x10000, 0x20000, 0xA0000, 0x120000, 0x160000, 0x1E0000
TMASK = 0x3FF
QMASK = 0xFF
STAMP_OFF = 536870912 - (1 << 20)
L_WQ = 0; L_W1 = 16384; L_WO = 32768; L_W2 = 49152
L_PART = 57344
L_C = L_PART + 16384
OSTR = 264; HSTR = 136
L_O = L_C + 4096
L_H = L_O + 8 * OSTR
L_Q = L_H + 8 * HSTR
L_ML = L_Q + 1024
L_F = L_ML + 128
L_TAG = L_F + 64
LDS_BYTES = L_TAG + 16
assert L_Q % 16 == 0 and LDS_BYTES > 81920
OOB = 0x7F000000
C_EXP = math.log2(math.e) / 16.0

DEF = dict(R=26, D=3, D0=3, DH=2, qsl=8, msl=24, cpf=1, tpf=1, late=1, hpol='', hw=8, abl=0, lt=1, ov=0, podd=0, peven=0, p0=0, vt=0, wb=0, amap='13 14 9 10 12 17 18 16 15 11 1024 8 513 0 128', hpat='', swz=0, ppol='sc1', lpol='sc1', nocomp=0, nowo=0, ctl=0, cks='28 44 60 76 92 104', t1=6, t2=10, cstr=256, m1=0x55, m2=0xff, kpat='3323', vpat='3323', loc=1, n2=80, xretry=1, Dend=0, nend=16, gsl=0, fsl=0, fthr=0, fsl2=24, nornd=0, nom=0, pol='nt', wpol='nt', xpol='', opol='nt', mpol='nt', diag=False, budget=2,
           name=NAME + '_kernel', spin=1 << 16, hold=0, bmap=0, pts='start+qpub+B1+Kdone+hend+B2+end')
def block(P): return 576

def srd(a, n, base, off, size):
    if off is None:
        a(f's_mov_b32 s{n}, s{base}\ns_mov_b32 s{n+1}, s{base+1}')
    else:
        a(f's_add_u32 s{n}, s{base}, {off}\ns_addc_u32 s{n+1}, s{base+1}, 0')
    a(f's_mov_b32 s{n+2}, {size}\ns_mov_b32 s{n+3}, 0x20000')

def wave_sum(a, v, s):
    for m in ('row_shr:1', 'row_shr:2', 'row_shr:4', 'row_shr:8'):
        a(f'v_add_f32_dpp v{v}, v{v}, v{v} {m} row_mask:0xf bank_mask:0xf')
    a(f'v_add_f32_dpp v{v}, v{v}, v{v} row_bcast:15 row_mask:0xa bank_mask:0xf')
    a(f'v_add_f32_dpp v{v}, v{v}, v{v} row_bcast:31 row_mask:0xc bank_mask:0xf')
    a(f'v_readlane_b32 s{s}, v{v}, 63')

def rnd_bf16(a, v):
    a(f'v_cvt_pk_bf16_f32 v{v}, v{v}, v{v}\nv_and_b32 v{v}, 0xffff0000, v{v}')

def unpack(a, src, dst, n):
    for i in range(n):
        a(f'v_and_b32 v{dst+2*i+1}, 0xffff0000, v{src+i}\nv_lshlrev_b32 v{dst+2*i}, 16, v{src+i}')

def row_sum(a, v, t):
    a(f'v_add_f32_dpp v{v}, v{v}, v{v} row_ror:8 row_mask:0xf bank_mask:0xf')
    xgroup(a, 'v_add_f32', v, t)

def layernorm(a, X, F, T, nq=28):
    pr = lambda r: f'v[{r}:{r+1}]'
    unpack(a, X, F, 28)
    a(f'v_pk_add_f32 {pr(T)}, {pr(F)}, {pr(F+2)}\nv_pk_add_f32 {pr(T+2)}, {pr(F+4)}, {pr(F+6)}')
    for i in range(4, 28): a(f'v_pk_add_f32 {pr(T+2*(i&1))}, {pr(T+2*(i&1))}, {pr(F+2*i)}')
    a(f'v_pk_add_f32 {pr(T)}, {pr(T)}, {pr(T+2)}\nv_add_f32 v{T}, v{T}, v{T+1}')
    row_sum(a, T, T + 1)
    a(f'v_mul_f32 v{T}, {hex(f2u(-1/448))}, v{T}\nv_mov_b32 v{T+1}, v{T}')
    for i in range(28):
        d = T + 4 + 2 * (i & 1)
        a(f'v_pk_add_f32 {pr(d)}, {pr(F+2*i)}, {pr(T)}')
        if i == 0: a(f'v_pk_mul_f32 {pr(T+2)}, {pr(d)}, {pr(d)}')
        else: a(f'v_pk_fma_f32 {pr(T+2)}, {pr(d)}, {pr(d)}, {pr(T+2)}')
    a(f'v_add_f32 v{T+2}, v{T+2}, v{T+3}')
    row_sum(a, T + 2, T + 3)
    rnd_bf16(a, T)
    a(f'v_mov_b32 v{T+1}, v{T}\nv_mul_f32 v{T+2}, {hex(f2u(1/448))}, v{T+2}')
    rnd_bf16(a, T + 2)
    a(f'v_add_f32 v{T+2}, {hex(f2u(1e-5))}, v{T+2}')
    rnd_bf16(a, T + 2)
    a(f'v_sqrt_f32 v{T+2}, v{T+2}')
    for i in range(nq): a(f'v_pk_add_f32 {pr(F+2*i)}, {pr(F+2*i)}, {pr(T)}')
    rnd_bf16(a, T + 2)
    a(f'v_rcp_f32 v{T+2}, v{T+2}')
    for i in range(nq): a(f'v_cvt_pk_bf16_f32 v{X+i}, v{F+2*i}, v{F+2*i+1}')
    a(f'v_mov_b32 v{T+3}, v{T+2}')
    unpack(a, X, F, nq)
    for i in range(nq): a(f'v_pk_mul_f32 {pr(F+2*i)}, {pr(F+2*i)}, {pr(T+2)}')
    for i in range(nq): a(f'v_cvt_pk_bf16_f32 v{X+i}, v{F+2*i}, v{F+2*i+1}')

def xgroup(a, op, v, t):
    a(f'v_mov_b32 v{t}, v{v}\nv_permlane16_swap_b32 v{v}, v{t}\n{op} v{v}, v{v}, v{t}')
    a(f'v_mov_b32 v{t}, v{v}\nv_permlane32_swap_b32 v{v}, v{t}\n{op} v{v}, v{v}, v{t}')

S_PTS = ['start', 'k0', 'fst', 'fcnt', 's8', 's44', 's96', 'skarg', 'siss0', 'pst', 'g2ok', 'sB1a', 'sB1', 'Kdone', 'Vlast', 'B2', 'ost', 'gok', 'B3', 'end']
M_PTS = ['mstart', 'mw1', 'mw2', 'mend']
H_PTS = ['entry', 'hstart', 'mend', 'locv', 'xst', 'xid', 'hpub', 'wob', 'qack', 'xland', 'lndone', 'wtpub', 'wtok', 'hkarg', 'wqiss', 'hB0', 'wqland', 'qpub', 'qp1', 'qok', 'B1', 'wodone', 'mlpub', 'mlok', 'hend']
def pts(P): return P['pts'].split('+') if isinstance(P['pts'], str) else P['pts']
def stamp(a, P, name):
    if P['diag'] and name in pts(P):
        reg = 88 + 2 * pts(P).index(name)
        a(f's_memrealtime s[{reg}:{reg+1}]\ns_waitcnt lgkmcnt(0)')
def stamp_items(P, lst): return [(i, 88 + 2 * i) for i, n in enumerate(pts(P)) if n in lst]
def stamp_init(a, P):
    if P['diag']:
        for i in range(7): a(f's_mov_b64 s[{88+2*i}:{89+2*i}], 0')

def stamp_store(a, P, items, hw=False):
    if not P['diag']: return
    a('s_waitcnt lgkmcnt(0)')
    a(f's_lshl_b32 s37, s2, 6\ns_add_u32 s37, s37, {STAMP_OFF}')
    srd(a, 40, 28, 's37', 64)
    a('s_mov_b64 exec, 1\nv_mov_b32 v1, 0')
    for idx, reg in items:
        a(f'v_mov_b32 v2, s{reg}\nv_mov_b32 v3, s{reg+1}\nbuffer_store_dwordx2 v[2:3], v1, s[40:43], 0 offen offset:{idx*8}')
    if hw:
        a('s_getreg_b32 s38, hwreg(HW_REG_XCC_ID)\ns_getreg_b32 s39, hwreg(HW_REG_HW_ID)')
        a('v_mov_b32 v2, s38\nv_mov_b32 v3, s39\nbuffer_store_dwordx2 v[2:3], v1, s[40:43], 0 offen offset:56')
    a('s_mov_b64 exec, -1')

def q_wait(a, P, lab):
    a(f's_mov_b32 s82, {TMASK}\nv_mov_b32 v5, {L_TAG}\ns_mov_b32 s86, {P["spin"]*16}')
    a(f'{lab}:\nds_read_b64 v[6:7], v5\ns_waitcnt lgkmcnt(0)\nv_cmp_eq_u32 vcc, -1, v7')
    a(f's_sub_u32 s86, s86, 1\ns_cbranch_scc1 {lab}d\ns_cbranch_vccz {lab}d\ns_sleep 2\ns_branch {lab}\n{lab}d:')
    a(f'v_readfirstlane_b32 s84, v6\nv_readfirstlane_b32 s87, v7\ns_and_b32 s85, s84, {TMASK}')

def streamer(a, P, mid):
    if P['hw'] == 0: a('s_sub_u32 s30, s30, 1')
    R, D, D0, pol = P['R'], P['D'], P['D0'], P['pol']
    Q, S, DT, RING = 8, 16, 48, 56
    slot = lambda i: RING + 4 * (i % R)
    sl = lambda i: f'v[{slot(i)}:{slot(i)+3}]'
    stamp(a, P, 'start')
    if P['hold']: a('s_memrealtime s[98:99]')
    am = [int(x) for x in P['amap'].split()]
    ab, gb, wb, xm = am[0:2], am[2:7], am[7:10], am[10:15]
    a(f'v_and_b32 v1, 3, v0\nv_lshlrev_b32 v1, 4, v1\nv_lshrrev_b32 v3, 4, v0\nv_lshl_add_u32 v1, v3, 6, v1')
    a(f'v_bfe_u32 v3, v0, 2, 1\nv_lshl_add_u32 v1, v3, {ab[0]}, v1\nv_bfe_u32 v3, v0, 3, 1\nv_lshl_add_u32 v1, v3, {ab[1]}, v1')
    a('s_lshl_b32 s37, s38, 19\ns_mov_b32 s35, 0')
    use = 0
    for m in xm: use |= m
    a('s_add_u32 s36, s30, s32\ns_and_b32 s36, s36, 7' if use & 7 else 's_mov_b32 s36, 0')
    if use & 0xf8: a('s_lshl_b32 s39, s32, 3\ns_or_b32 s36, s36, s39')
    if use & 0x700: a('s_lshl_b32 s39, s31, 8\ns_or_b32 s36, s36, s39')
    if use & 0x3800: a('s_lshl_b32 s39, s30, 11\ns_or_b32 s36, s36, s39')
    for k in range(5):
        if xm[k] and xm[k] & (xm[k] - 1) == 0:
            a(f's_bfe_u32 s39, s36, {0x10000 + xm[k].bit_length() - 1}\ns_lshl_b32 s39, s39, {gb[k]}\ns_or_b32 s35, s35, s39')
        elif xm[k]:
            a(f's_and_b32 s39, s36, {xm[k]}\ns_bcnt1_i32_b32 s39, s39\ns_and_b32 s39, s39, 1\ns_lshl_b32 s39, s39, {gb[k]}\ns_or_b32 s35, s35, s39')
    for k in range(3): a(f's_bfe_u32 s39, s30, {0x10000 + k}\ns_lshl_b32 s39, s39, {wb[k]}\ns_or_b32 s35, s35, s39')
    goff = lambda G: sum(((G >> k) & 1) << gb[k] for k in range(5))
    a('s_waitcnt lgkmcnt(0)')
    stamp(a, P, 'skarg')
    srd(a, 40, 6, 's37', 524288)
    lt = P['lt']
    def lg(i):
        j = i % 64
        if lt and i >= 112: return 24 + ((i - 112) & 7), (i - 112) >> 3
        return j >> 1, j & 1
    vidx = lambda T, g, e: (112 + 8 * e + g) if (lt and T == 3) else (64 + 16 * T + 2 * g + e)
    def issue(i):
        G, t = lg(i)
        if t == 0 or (lt and i >= 112): a(f's_xor_b32 s36, s35, {goff(G)}')
        r, va = ('s[40:43]', 'v1') if i < 64 else ('s[44:47]', 'v2')
        a(f'buffer_load_dwordx4 {sl(i)}, {va}, {r}, s36 offen offset:{t*256} {pol}')
    for i in range(D0): issue(i)
    stamp(a, P, 'siss0')
    a('s_branch L_s2')
    mid()
    a('L_s2:')
    a(f'v_and_b32 v2, 15, v0\nv_lshlrev_b32 v2, 4, v2\nv_bfe_u32 v3, v0, 4, 1\nv_lshl_add_u32 v2, v3, {ab[0]}, v2\nv_lshrrev_b32 v3, 5, v0\nv_lshl_add_u32 v2, v3, {ab[1]}, v2')
    srd(a, 44, 8, 's37', 524288)
    if P['vt']:
        a(f'v_mov_b32 v3, 0\nbuffer_load_dword v4, v3, s[44:47], s35 offen {pol}')
    a('s_barrier')
    srd(a, 52, 28, None, WS_USED)
    for e in range(2):
        for r in range(4):
            m16 = (0x11 << r) << (8 * e); m32 = m16 | (m16 << 16)
            a(f's_mov_b32 s{64+2*(4*e+r)}, {hex(m32)}\ns_mov_b32 s{65+2*(4*e+r)}, {hex(m32)}')
    a('s_mov_b32 s80, 0x05040100\ns_mov_b32 s81, 0x07060302')
    for i in range(D0, R):
        if i == D0 + 1: stamp(a, P, 'k0')
        dh = int(P['hpat'][i - D0]) if i - D0 < len(P['hpat']) else D0
        if P['vt'] and i < D0 + D: dh += 1
        a(f's_waitcnt vmcnt({dh-1})'); issue(i)
        if i == 8 + D: stamp(a, P, 's8')
    a('v_bfe_u32 v3, v0, 2, 1\nv_lshlrev_b32 v3, 9, v3\nv_and_b32 v4, 3, v0\nv_lshl_add_u32 v3, v4, 4, v3')
    a(f'v_lshrrev_b32 v4, 4, v0\nv_lshl_add_u32 v3, v4, 6, v3\nv_add_u32 v3, {L_Q}, v3')
    stamp(a, P, 'sB1a')
    q_wait(a, P, 'L_sq')
    stamp(a, P, 'sB1')
    a(f'ds_read_b128 v[{Q}:{Q+3}], v3\nds_read_b128 v[{Q+4}:{Q+7}], v3 offset:256')
    a(f'v_mov_b32 v4, 0xff800000\ns_mov_b32 s83, {hex(f2u(C_EXP))}\ns_waitcnt lgkmcnt(0)')
    chunks = []
    def kdpp(G):
        d = DT + 4 * (G & 1)
        a(f'v_mov_b32_dpp v{S+G}, v{d} quad_perm:[0,0,0,0] row_mask:0xf bank_mask:0xf')
        for r in range(1, 4):
            a(f'v_add_f32_dpp v{S+G}, v{d+r}, v{S+G} quad_perm:[{r},{r},{r},{r}] row_mask:0xf bank_mask:0xf')
        if G & 1:
            if not P['nornd']: a(f'v_cvt_pk_bf16_f32 v5, v{S+G-1}, v{S+G}\nv_lshlrev_b32 v{S+G-1}, 16, v5\nv_and_b32 v{S+G}, 0xffff0000, v5')
            a(f'v_max3_f32 v4, v4, v{S+G-1}, v{S+G}')
    def kchunk(G):
        def fn():
            d = DT + 4 * (G & 1)
            a(f'v_mfma_f32_16x16x32_bf16 v[{d}:{d+3}], {sl(2*G)}, v[{Q}:{Q+3}], 0')
            a(f'v_mfma_f32_16x16x32_bf16 v[{d}:{d+3}], {sl(2*G+1)}, v[{Q+4}:{Q+7}], v[{d}:{d+3}]')
            if G: kdpp(G - 1)
        return fn
    for G in range(32): chunks.append((2 * G + 1, [2 * G, 2 * G + 1], kchunk(G)))
    def sm0():
        kdpp(31)
        xgroup(a, 'v_max_f32', 4, 5)
        a('v_mul_f32 v6, s83, v4\nv_mov_b32 v7, 0')
        stamp(a, P, 'Kdone')
    chunks.append((63, [], sm0))
    def sm(k):
        def fn():
            for g in range(8 * k, 8 * k + 8): a(f'v_fma_f32 v{S+g}, v{S+g}, s83, -v6')
            for g in range(8 * k, 8 * k + 8): a(f'v_exp_f32 v{S+g}, v{S+g}')
            for g in range(8 * k, 8 * k + 8): a(f'v_add_f32 v7, v7, v{S+g}')
            for i in range(4 * k, 4 * k + 4): a(f'v_cvt_pk_bf16_f32 v{S+i}, v{S+2*i}, v{S+2*i+1}')
        return fn
    for k in range(4): chunks.append((63, [], sm(k)))
    def sm_end():
        xgroup(a, 'v_add_f32', 7, 5)
        a(f'v_mov_b32 v5, v7\nv_bfe_u32 v3, v0, 2, 1\nv_lshlrev_b32 v3, 6, v3\ns_lshl_b32 s37, s30, 3\ns_add_u32 s37, s37, {L_ML}\nv_add_u32 v3, s37, v3')
        a('s_mov_b64 exec, 0x11\nds_write_b64 v3, v[4:5]\ns_mov_b64 exec, -1')
    chunks.append((63, [], sm_end))
    AT = [32, 36]; PT = [40, 44, 8, 12]; ACC = DT
    cnt = [0, 0]
    def vchunk(T, e, r):
        def fn():
            A = AT[cnt[0] & 1]; cnt[0] += 1
            mk = 64 + 2 * (4 * e + r)
            for p in range(4): a(f'v_cndmask_b32 v{A+p}, 0, v{S+4*T+p}, s[{mk}:{mk+1}]')
            for jj in range(2):
                j = 4 * jj + r; m, hh = j >> 1, j & 1
                B = PT[cnt[1] & 3]; cnt[1] += 1
                for p in range(4):
                    ev = vidx(T, 2 * p, e); od = vidx(T, 2 * p + 1, e)
                    a(f'v_perm_b32 v{B+p}, v{slot(od)+m}, v{slot(ev)+m}, s{80+hh}')
                c = '0' if (T == 0 and e == 0 and r == 0) else f'v[{ACC+4*jj}:{ACC+4*jj+3}]'
                a(f'v_mfma_f32_16x16x32_bf16 v[{ACC+4*jj}:{ACC+4*jj+3}], v[{A}:{A+3}], v[{B}:{B+3}], {c}')
        return fn
    for T in range(4):
        for e in range(2):
            for r in range(4):
                if lt and T == 3 and e == 1: continue
                fr = [vidx(T, g, e) for g in range(8)] if r == 3 else []
                chunks.append((vidx(T, 7, e), fr, vchunk(T, e, r)))
    if lt:
        FRG = lambda j: slot(112 + j)
        AM = [32, 36, 40, 44]
        def pre(p):
            def fn2():
                if p == 0:
                    for r in range(4):
                        for q in range(4): a(f'v_cndmask_b32 v{AM[r]+q}, 0, v{S+12+q}, s[{72+2*r}:{73+2*r}]')
                for j in range(8):
                    jj = (j & 1) * 4 + (j >> 1); m, hh = jj >> 1, jj & 1
                    a(f'v_perm_b32 v{FRG(jj)+p}, v{slot(vidx(3, 2*p+1, 1))+m}, v{slot(vidx(3, 2*p, 1))+m}, s{80+hh}')
                if p == 3:
                    for j in range(8):
                        jj = (j & 1) * 4 + (j >> 1); r = jj & 3; d = ACC + 4 * (jj >> 2)
                        a(f'v_mfma_f32_16x16x32_bf16 v[{d}:{d+3}], v[{AM[r]}:{AM[r]+3}], v[{FRG(jj)}:{FRG(jj)+3}], v[{d}:{d+3}]')
            return fn2
        for p in range(4): chunks.append((vidx(3, 2 * p + 1, 1), [], pre(p)))
    freed = set(); ci = 0; landed = -1
    XR = RING + 4 * R
    if P['podd'] or P['peven']:
        a(f's_getreg_b32 s62, hwreg(HW_REG_XCC_ID)\ns_bitcmp1_b32 s62, 0\ns_mov_b32 s62, {P["peven"]}\ns_cselect_b32 s62, {P["podd"]}, s62')
    if P['ctl']: a(f's_mov_b32 s62, 0\nv_mov_b32 v{XR+3}, {L_PROG}')
    def run_chunk(issued):
        nonlocal ci, landed
        nd, fr, fn = chunks[ci]; ci += 1
        if nd > landed:
            a(f's_waitcnt vmcnt({issued-1-nd})'); landed = nd
        if not (P['nocomp'] and fr is not None and fn.__name__ == 'fn' and ci <= len(chunks) - 8): fn()
        freed.update(fr)
    for i in range(R, 128):
        while (i - R) not in freed: run_chunk(i)
        Di = P['Dend'] if (P['Dend'] and i >= 128 - P['nend']) else D
        pat = P['kpat'] if i < 64 else P['vpat']
        if pat and not (P['Dend'] and i >= 128 - P['nend']): Di = int(pat[i % len(pat)])
        cks = [int(x) for x in P['cks'].split()] if P['ctl'] else []
        if cks and i > cks[0] + D + 2:
            if i % 4 == 1: a(f's_waitcnt lgkmcnt(0)\nv_readfirstlane_b32 s62, v{XR+1}')
            a(f's_waitcnt vmcnt({Di})\ns_bitcmp1_b32 s62, {i % 8}\ns_cbranch_scc1 L_b{i}\ns_waitcnt vmcnt({Di-1})\nL_b{i}:')
            landed = max(landed, i - Di - 1)
        elif (P['podd'] or P['peven']) and i >= P['p0'] and ((P['podd'] | P['peven']) >> (i % 16) & 1):
            if (P['podd'] & P['peven']) >> (i % 16) & 1: a(f's_waitcnt vmcnt({Di})')
            else: a(f's_waitcnt vmcnt({Di})\ns_bitcmp1_b32 s62, {i % 16}\ns_cbranch_scc1 L_b{i}\ns_waitcnt vmcnt({Di-1})\nL_b{i}:')
            landed = max(landed, i - Di - 1)
        elif i - Di > landed:
            a(f's_waitcnt vmcnt({Di-1})'); landed = i - Di
        issue(i)
        if cks and i >= cks[0] and i % 4 == 0 and i < 124: a(f'ds_read_b32 v{XR+1}, v{XR+3} offset:4')
        if (i - D) in cks:
            a(f's_cmp_lg_u32 s30, 0\ns_cbranch_scc1 L_np{i}\nv_mov_b32 v{XR}, {cks.index(i - D) + 1}\nds_write_b32 v{XR+3}, v{XR}\nL_np{i}:')
        if i == 44 + D: stamp(a, P, 's44')
        if i == 96 + D: stamp(a, P, 's96')
        n = 0
        while ci < len(chunks) and chunks[ci][0] <= landed and n < P['budget']:
            run_chunk(i + 1); n += 1
    def tail_addr():
        a(f'v_lshrrev_b32 v3, 5, v0\nv_lshlrev_b32 v3, 9, v3\nv_bfe_u32 v4, v0, 4, 1\nv_lshl_add_u32 v3, v4, 10, v3')
        a(f'v_and_b32 v4, 15, v0\nv_lshl_add_u32 v3, v4, 5, v3\ns_lshl_b32 s37, s30, 11\ns_add_u32 s37, s37, {L_PART}\nv_add_u32 v3, s37, v3')
        a(f's_lshl_b32 s37, s30, 8\ns_add_u32 s37, s37, {L_PART}\nv_lshl_add_u32 v4, v0, 2, s37')
        a(f's_lshr_b32 s37, s30, 2\ns_lshl_b32 s37, s37, 5\ns_add_u32 s37, s37, {L_F}\nv_mov_b32 v5, s37')
        if P['ov']:
            a(f'v_lshlrev_b32 v6, 2, v0\ns_lshl_b32 s60, s33, 16\ns_and_b32 s37, s34, 3\ns_lshl_b32 s37, s37, 14\ns_add_u32 s60, s60, s37\ns_lshl_b32 s37, s31, 11\ns_add_u32 s60, s60, s37')
            a(f's_lshl_b32 s37, s30, 8\ns_add_u32 s60, s60, s37\ns_add_u32 s60, s60, {QBUF}\ns_xor_b32 s85, s85, 0x55')
        else:
            a(f'v_lshlrev_b32 v6, 2, v0\ns_lshl_b32 s60, s38, 11\ns_lshl_b32 s37, s30, 8\ns_add_u32 s60, s60, s37\ns_add_u32 s60, s60, {OBUF}')
        a(f'v_lshrrev_b32 v1, 4, v0\nv_bfe_u32 v7, v0, 2, 2\nv_and_b32 v8, 3, v0')
        if P['late']:
            a(f'v_lshl_add_u32 v7, v1, 2, v7\nv_bfe_u32 v2, v7, 1, 2\nv_xor_b32 v2, s30, v2\nv_and_b32 v2, 3, v2\nv_lshlrev_b32 v7, 7, v7\nv_lshl_add_u32 v7, v8, 3, v7\nv_lshl_add_u32 v7, v2, 5, v7\nv_add_u32 v7, {L_WO}, v7')
        else:
            a(f'v_lshl_add_u32 v7, v1, 2, v7\nv_lshlrev_b32 v7, 7, v7\nv_lshl_add_u32 v7, v8, 3, v7\ns_lshl_b32 s37, s30, 5\ns_add_u32 s37, s37, {L_WO}\nv_add_u32 v7, s37, v7')
        a(f'v_and_b32 v2, 15, v0\nv_lshlrev_b32 v2, 4, v2\nv_lshl_add_u32 v2, v1, {14 if P["ov"] else 11}, v2')
        a(f's_lshl_b32 s61, s30, 16\ns_lshl_b32 s37, s31, {11 if P["ov"] else 13}\ns_add_u32 s61, s61, s37\ns_and_b32 s37, s32, 3\ns_lshl_b32 s37, s37, 9\ns_add_u32 s61, s61, s37\ns_add_u32 s61, s61, {QBUF if P["ov"] else OBUF}')
    late_pending = [0]
    nlate = 0
    if P['late']:
        a('v_lshrrev_b32 v3, 3, v0\nv_mul_u32_u24 v4, 896, v3\nv_and_b32 v3, 6, v3\nv_xor_b32 v3, v3, v0\nv_and_b32 v3, 7, v3\nv_lshl_add_u32 v4, v3, 4, v4')
        a('s_and_b32 s36, s32, 3\ns_lshl_b32 s37, s31, 2\ns_add_u32 s36, s36, s37\ns_lshr_b32 s39, s32, 2\ns_lshl_b32 s39, s39, 7')
        a(f's_mul_i32 s37, s36, 114688\ns_add_u32 s37, s37, s39\ns_cmp_lt_u32 s32, 28\ns_cselect_b32 s37, s37, 0\ns_cselect_b32 s62, {127*896+128}, 0')
        srd(a, 56, 12, 's37', 's62')
        a(f's_mul_i32 s63, s30, {16*896}\ns_lshl_b32 s37, s30, 11\ns_add_u32 m0, s37, {L_WO}')
        a(f'buffer_load_dwordx4 v4, s[56:59], s63 offen {P["opol"]} lds\ns_add_u32 s63, s63, {8*896}\ns_add_u32 m0, s37, {L_WO+1024}')
        a(f'buffer_load_dwordx4 v4, s[56:59], s63 offen {P["opol"]} lds')
        a(f's_mul_i32 s37, s36, 50176\ns_add_u32 s37, s37, s39\ns_cmp_lt_u32 s32, 28\ns_cselect_b32 s37, s37, 0\ns_cselect_b32 s62, {55*896+128}, 0')
        srd(a, 56, 20, 's37', 's62')
        a(f's_mul_i32 s63, s30, {8*896}\ns_lshl_b32 s37, s30, 10\ns_add_u32 m0, s37, {L_W2}')
        a(f'buffer_load_dwordx4 v4, s[56:59], s63 offen {P["mpol"]} lds')
        nlate = 3
    if P['late']: late_pending[0] = 3
    tail_addr()
    a(f'v_lshl_add_u32 v{XR+2}, v8, 2, v1\nv_lshlrev_b32 v{XR+2}, 1, v{XR+2}\ns_lshl_b32 s39, s32, 5')
    srd(a, 44, 22, None, 896)
    a(f'buffer_load_ushort v{XR}, v{XR+2}, s[44:47], s39 offen')
    srd(a, 40, 4, None, 7168)
    a(f's_mul_i32 s37, s31, 896\ns_add_u32 s63, s37, s39\nbuffer_load_ushort v{XR+1}, v{XR+2}, s[40:43], s63 offen')
    srd(a, 44, 24, None, 7168)
    while ci < len(chunks): run_chunk(130 + nlate)
    stamp(a, P, 'Vlast')
    a('L_tail:')
    a(f'ds_write_b128 v3, v[{ACC}:{ACC+3}]\nds_write_b128 v3, v[{ACC+4}:{ACC+7}] offset:16\ns_waitcnt lgkmcnt(0)\ns_barrier')
    stamp(a, P, 'B2')
    for w in range(4): a(f'ds_read2st64_b32 v[{16+2*w}:{17+2*w}], v4 offset0:{16*w} offset1:{16*w+8}')
    a(f'ds_read_b128 v[24:27], v5\nds_read_b128 v[28:31], v5 offset:16\ns_waitcnt lgkmcnt(0)')
    a('v_mul_f32 v32, v16, v24\nv_mul_f32 v33, v17, v25')
    for w in range(2, 8): a(f'v_fmac_f32 v{32+(w&1)}, v{16+w}, v{24+w}')
    a('v_mov_b32 v9, s85\nv_add_f32 v32, v32, v33\nv_bfi_b32 v32, s82, v9, v32')
    hand_store(a, 'buffer_store_dword v32, v6, s[52:55], s60 offen')
    stamp(a, P, 'ost')
    a('s_cmp_lt_u32 s32, 28\ns_cbranch_scc0 L_end')
    GL = 'buffer_load_dwordx4 v[16:19], v2, s[52:55], s61 offen sc1\nbuffer_load_dwordx4 v[20:23], v2, s[52:55], s61 offen offset:256 sc1'
    a(GL)
    BF, AF, DR = 56, 72, 88
    HA, B2F = 92, 100
    if P['late']:
        a(f'v_and_b32 v10, 7, v0\nv_mul_u32_u24 v10, {HSTR}, v10\nv_lshl_add_u32 v10, v1, 3, v10\nv_add_u32 v10, {L_H}, v10')
        for k in range(2): a(f'ds_read_b64 v[{HA+4*k}:{HA+4*k+1}], v10 offset:{k*64}\nds_read_b64 v[{HA+4*k+2}:{HA+4*k+3}], v10 offset:{k*64+32}')
    else:
        a('s_cmp_lt_u32 s30, 4\ns_cbranch_scc0 L_nofr')
        for jj in range(4):
            b = BF + 4 * jj
            a(f'ds_read_b64_tr_b16 v[{b}:{b+1}], v7 offset:{jj*4096}\nds_read_b64_tr_b16 v[{b+2}:{b+3}], v7 offset:{jj*4096+2048}')
        a(f's_lshl_b32 s37, s30, 10\ns_add_u32 s37, s37, {L_C}\nv_lshl_add_u32 v10, v0, 4, s37\nds_read_b128 v[{DR}:{DR+3}], v10')
        a('L_nofr:')
    a(f'v_and_b32 v4, 15, v0\nv_lshlrev_b32 v4, 3, v4\nv_and_b32 v5, 1, v1\nv_lshl_add_u32 v4, v5, 2, v4\nv_lshrrev_b32 v5, 1, v1\nv_lshl_add_u32 v4, v5, 7, v4')
    a(f's_mul_i32 s37, s30, {OSTR}\ns_add_u32 s37, s37, {L_O}\nv_add_u32 v5, s37, v4')
    a(f'v_and_b32 v12, 7, v0\nv_mul_u32_u24 v12, {OSTR}, v12\nv_lshl_add_u32 v12, v1, 3, v12\nv_add_u32 v12, {L_O}, v12')
    a(f's_and_b32 s60, s32, 28\ns_add_u32 s60, s60, s30\ns_lshl_b32 s60, s60, 5\ns_lshl_b32 s37, s31, 2\ns_add_u32 s60, s60, s37\ns_and_b32 s37, s32, 3\ns_add_u32 s60, s60, s37')
    a(f's_lshl_b32 s60, s60, 9\ns_add_u32 s60, s60, {PBUF}\ns_mov_b32 s86, {P["spin"]}')
    a('s_branch L_gchk')
    a('L_gpoll:')
    if P['gsl']: a(f's_sleep {P["gsl"]}')
    a(GL)
    a('L_gchk:')
    a('s_waitcnt vmcnt(0)')
    tag_check(a, range(16, 24), 10, 11, 4)
    a('s_sub_u32 s86, s86, 1\ns_cbranch_scc1 L_gdone\ns_cbranch_vccnz L_gpoll')
    a('L_gdone:')
    stamp(a, P, 'gok')
    for i in range(8): a(f'v_and_b32 v{16+i}, {hex(0xffffffff ^ TMASK)}, v{16+i}')
    for p in (16, 17, 20, 21): a(f'v_permlane16_swap_b32 v{p}, v{p+2}')
    for p in (16, 17, 20, 21): a(f'v_add_f32 v{p}, v{p}, v{p+2}')
    a('v_permlane32_swap_b32 v16, v20\nv_permlane32_swap_b32 v17, v21\nv_add_f32 v16, v16, v20\nv_add_f32 v17, v17, v21')
    a('v_cvt_pk_bf16_f32 v16, v16, v17\nds_write_b32 v5, v16\ns_waitcnt lgkmcnt(0)\ns_barrier')
    stamp(a, P, 'B3')
    a('s_cmp_lt_u32 s30, 4\ns_cbranch_scc0 L_fin')
    if P['late']:
        d2 = L_W2 - L_WO
        for k in range(2): a(f'ds_read_b64_tr_b16 v[{B2F+4*k}:{B2F+4*k+1}], v7 offset:{d2+k*4096}\nds_read_b64_tr_b16 v[{B2F+4*k+2}:{B2F+4*k+3}], v7 offset:{d2+k*4096+2048}')
        for jj in range(4):
            b = BF + 4 * jj
            a(f'ds_read_b64 v[{AF+4*jj}:{AF+4*jj+1}], v12 offset:{jj*64}\nds_read_b64 v[{AF+4*jj+2}:{AF+4*jj+3}], v12 offset:{jj*64+32}')
            a(f'ds_read_b64_tr_b16 v[{b}:{b+1}], v7 offset:{jj*4096}\nds_read_b64_tr_b16 v[{b+2}:{b+3}], v7 offset:{jj*4096+2048}')
            if jj == 1:
                for k in range(2):
                    a(f's_waitcnt lgkmcnt({10-2*k})')
                    a(f'v_mfma_f32_16x16x32_bf16 v[{DR}:{DR+3}], v[{HA+4*k}:{HA+4*k+3}], v[{B2F+4*k}:{B2F+4*k+3}], ' + ('0' if k == 0 else f'v[{DR}:{DR+3}]'))
        for jj in range(4):
            a(f's_waitcnt lgkmcnt({12-4*jj})')
            a(f'v_mfma_f32_16x16x32_bf16 v[{DR}:{DR+3}], v[{AF+4*jj}:{AF+4*jj+3}], v[{BF+4*jj}:{BF+4*jj+3}], v[{DR}:{DR+3}]')
    else:
        for jj in range(4): a(f'ds_read_b64 v[{AF+4*jj}:{AF+4*jj+1}], v12 offset:{jj*64}\nds_read_b64 v[{AF+4*jj+2}:{AF+4*jj+3}], v12 offset:{jj*64+32}')
        for jj in range(4):
            a(f's_waitcnt lgkmcnt({6-2*jj})')
            a(f'v_mfma_f32_16x16x32_bf16 v[{DR}:{DR+3}], v[{AF+4*jj}:{AF+4*jj+3}], v[{BF+4*jj}:{BF+4*jj+3}], v[{DR}:{DR+3}]')
    a(f'v_permlane32_swap_b32 v{DR}, v{DR+1}\nv_permlane32_swap_b32 v{DR+2}, v{DR+3}')
    a(f'v_bfi_b32 v{DR}, s82, v9, v{DR}\nv_bfi_b32 v{DR+2}, s82, v9, v{DR+2}')
    a(f'buffer_store_dword v{DR}, v6, s[52:55], s60 offen {P["ppol"]}\nbuffer_store_dword v{DR+2}, v6, s[52:55], s60 offen offset:256 {P["ppol"]}')
    stamp(a, P, 'pst')
    if P['diag']:
        a('s_cmp_lg_u32 s30, 0\ns_cbranch_scc1 L_end')
        stamp_store(a, P, stamp_items(P, [x for x in S_PTS if x not in ('g2ok', 'end', 'fst', 'fcnt')]), hw=True)
    a('s_endpgm')
    a('L_fin:')
    if P['wb']:
        a('s_cmp_eq_u32 s30, 5\ns_cbranch_scc0 L_nowb\ns_cmp_eq_u32 s32, 0\ns_cbranch_scc0 L_end\nbuffer_wbl2 sc1\ns_waitcnt vmcnt(0)\ns_endpgm\nL_nowb:')
    a('s_cmp_eq_u32 s30, 7\ns_cbranch_scc0 L_end')
    a('v_and_b32 v8, 3, v0')
    a(f'v_lshrrev_b32 v2, 2, v0\nv_lshlrev_b32 v2, 9, v2\nv_lshl_add_u32 v2, v8, 4, v2\nv_add_u32 v3, 8192, v2\nv_mov_b32 v7, 0x200')
    a(f's_lshl_b32 s61, s32, 14\ns_and_b32 s37, s31, 3\ns_lshl_b32 s37, s37, 7\ns_add_u32 s61, s61, s37\ns_lshr_b32 s37, s31, 2\ns_lshl_b32 s37, s37, 6\ns_add_u32 s61, s61, s37\ns_add_u32 s61, s61, {PBUF}\ns_mov_b32 s86, {P["spin"]}')
    a(f'v_lshlrev_b32 v24, 16, v{XR}\nv_lshlrev_b32 v25, 16, v{XR+1}\nv_add_f32 v24, v24, v25')
    stamp(a, P, 'fst')
    a('L_fpoll:')
    a(f'buffer_load_dwordx4 v[16:19], v2, s[52:55], s61 offen {P["lpol"]}\nbuffer_load_dwordx4 v[20:23], v3, s[52:55], s61 offen {P["lpol"]}')
    a('s_waitcnt vmcnt(0)')
    tag_check(a, range(16, 24), 8, 9, 10)
    a('s_sub_u32 s86, s86, 1\ns_cbranch_scc1 L_fdone\ns_cbranch_vccz L_fdone')
    if P['fthr']:
        a(f's_bcnt1_i32_b64 s37, vcc\ns_cmp_lt_u32 s37, {P["fthr"]}\ns_cbranch_scc1 L_fpoll\ns_sleep {P["fsl2"]}')
    if P['fsl']: a(f's_sleep {P["fsl"]}')
    a('s_branch L_fpoll')
    a('L_fdone:')
    stamp(a, P, 'g2ok')
    if P['diag'] and 'fcnt' in pts(P):
        r = 88 + 2 * pts(P).index('fcnt'); r0 = 88 + 2 * pts(P).index('fst')
        a(f's_sub_u32 s37, {P["spin"]}, s86\ns_mul_i32 s37, s37, 100\ns_add_u32 s{r}, s{r0}, s37\ns_addc_u32 s{r+1}, s{r0+1}, 0')
    tag_strip(a, range(16, 24), 7)
    for i in range(4): a(f'v_add_f32 v{16+i}, v{16+i}, v{20+i}')
    a('v_permlane16_swap_b32 v16, v17\nv_permlane16_swap_b32 v18, v19\nv_add_f32 v16, v16, v17\nv_add_f32 v18, v18, v19')
    a('v_permlane32_swap_b32 v16, v18\nv_add_f32 v16, v16, v18')
    a('v_add_f32_dpp v16, v16, v16 row_ror:4 row_mask:0xf bank_mask:0xf')
    a('v_add_f32_dpp v16, v16, v16 row_ror:8 row_mask:0xf bank_mask:0xf')
    a('v_add_f32 v16, v16, v24\nv_cvt_pk_bf16_f32 v16, v16, v16')
    a('s_mov_b32 exec_lo, 0x000f000f\ns_mov_b32 exec_hi, 0x000f000f')
    a(f'buffer_store_short v16, v{XR+2}, s[44:47], s63 offen')
    a('s_cmp_lg_u32 s2, 0\ns_cbranch_scc1 L_noep')
    a('v_mov_b32 v8, 0\nv_mov_b32 v9, s84\ns_mov_b64 exec, 1\nbuffer_store_dword v9, v8, s[52:55], 0 offen sc1')
    a('L_noep:')
    if P['hold']:
        a(f'L_hold:\ns_memrealtime s[96:97]\ns_waitcnt lgkmcnt(0)\ns_sub_u32 s96, s96, s98\ns_cmp_lt_u32 s96, {P["hold"]}\ns_cbranch_scc1 L_hold')
    if P['diag']:
        a('s_mov_b64 exec, -1\ns_waitcnt vmcnt(0)')
        stamp(a, P, 'end')
        stamp_store(a, P, stamp_items(P, ['g2ok', 'end', 'fst', 'fcnt']))
    a('s_endpgm')

def dma_loop(a, lab, n, depth, vaddr, sstep, lds0, pol):
    a(f's_mov_b32 s36, 0\ns_mov_b32 s62, {lds0}\ns_mov_b32 s63, {n}')
    a(f'{lab}:')
    a(f's_mov_b32 m0, s62\ns_waitcnt vmcnt({depth-1})')
    a(f'buffer_load_dwordx4 v{vaddr}, s[56:59], s36 offen {pol} lds')
    a(f's_add_u32 s36, s36, {sstep}\ns_add_u32 s62, s62, 1024\ns_sub_u32 s63, s63, 1\ns_cmp_lg_u32 s63, 0\ns_cbranch_scc1 {lab}')

XF, FF, TT = 16, 44, 100
def x_addr(a):
    a('v_and_b32 v10, 15, v0\nv_lshrrev_b32 v9, 4, v0\nv_and_b32 v8, 7, v0\nv_mul_u32_u24 v8, 896, v8')
    a('v_bfe_u32 v3, v0, 3, 1\nv_mul_u32_u24 v3, 448, v3\nv_lshl_add_u32 v8, v9, 4, v8\nv_add_u32 v8, v8, v3')
def x_load(a, P):
    srd(a, 48, 4, None, 7168)
    for ks in range(7): a(f'buffer_load_dwordx4 v[{XF+4*ks}:{XF+4*ks+3}], v8, s[48:51], 0 offen offset:{ks*64} {P["xpol"]}')
def tag_check(a, regs, t0, t1, acc, mask=TMASK):
    for i in range(0, len(regs), 2):
        a(f'v_xor_b32 v{t0}, s85, v{regs[i]}\nv_xor_b32 v{t1}, s85, v{regs[i+1]}')
        a(f'v_or_b32 v{acc}, v{t0}, v{t1}' if i == 0 else f'v_or3_b32 v{acc}, v{acc}, v{t0}, v{t1}')
    a(f'v_and_b32 v{acc}, {mask}, v{acc}\nv_cmp_ne_u32 vcc, 0, v{acc}')
def tag_strip(a, regs, half, ms=82):
    for r in regs: a(f'v_bfi_b32 v{r}, s{ms}, v{half}, v{r}')
_st = [0]; HPOL = ['']
def hand_store(a, ins):
    _st[0] += 1; n = _st[0]
    a(f's_cmp_eq_u32 s87, 0\ns_cbranch_scc1 L_wt{n}\n{ins} {HPOL[0]}\ns_branch L_we{n}\nL_wt{n}:\n{ins} sc1\nL_we{n}:')

def unit_gemm(a, lds, va, st_v, st_s, tagv, ms, before_pub=None):
    TA, DQ = 44, 108
    seq = [(t, ks) for t in range(4) for ks in range(4)]
    def rd(n):
        t, ks = seq[n]; r = TA + 4 * n; o = lds + ks * 4096 + t * 32
        a(f'ds_read_b64_tr_b16 v[{r}:{r+1}], v{va} offset:{o}\nds_read_b64_tr_b16 v[{r+2}:{r+3}], v{va} offset:{o+512}')
    def pub(t):
        for r in range(4): a(f'v_bfi_b32 v{DQ+4*t+r}, s{ms}, v{tagv}, v{DQ+4*t+r}')
        hand_store(a, f'buffer_store_dwordx4 v[{DQ+4*t}:{DQ+4*t+3}], v{st_v}, s[52:55], s{st_s} offen offset:{t*64}')
    for n in range(6): rd(n)
    for n, (t, ks) in enumerate(seq):
        if n + 6 < 16: rd(n + 6)
        a(f's_waitcnt lgkmcnt({2*min(6, 15-n)})')
        r = TA + 4 * n; d = DQ + 4 * t
        c = '0' if ks == 0 else f'v[{d}:{d+3}]'
        a(f'v_mfma_f32_16x16x32_bf16 v[{d}:{d+3}], v[{r}:{r+3}], v[{XF+4*ks}:{XF+4*ks+3}], {c}')
        if before_pub is None and n in (7, 11, 15): pub(n // 4 - 1)
    if before_pub is not None:
        before_pub()
        for t in range(3): pub(t)
    pub(3)

def helper(a, P):
    a('L_helper:')
    stamp(a, P, 'hstart')
    if P['cpf']:
        a('s_getpc_b64 s[56:57]\ns_mov_b32 s58, 4352\ns_mov_b32 s59, 0x20000\nv_lshlrev_b32 v1, 6, v0')
        a('buffer_load_dword v15, v1, s[56:59], 0 offen offset:256')
    x_addr(a)
    a('v_lshrrev_b32 v4, 3, v0\nv_lshlrev_b32 v1, 13, v4\nv_and_b32 v2, 7, v0\nv_lshl_add_u32 v1, v2, 4, v1')
    a('v_mul_u32_u24 v4, 3584, v4\nv_lshl_add_u32 v4, v2, 4, v4')
    a('s_and_b32 s63, s32, 1\ns_bfe_u32 s62, s32, 0x10001\ns_mul_i32 s64, s62, 224\ns_lshl_b32 s36, s63, 7\ns_add_u32 s64, s64, s36')
    a('s_lshl_b32 s65, s63, 5\ns_sub_u32 s65, 127, s65\ns_lshr_b32 s66, s32, 2')
    a('s_lshl_b32 s37, s64, 13\ns_lshl_b32 s39, s31, 3\ns_add_u32 s39, s39, s66\ns_lshl_b32 s39, s39, 7\ns_add_u32 s37, s37, s39')
    a('s_lshl_b32 s39, s65, 13\ns_add_u32 s39, s39, 128')
    a('s_lshl_b32 s60, s63, 8\ns_mul_i32 s61, s63, 192\ns_sub_u32 s61, 192, s61')
    a('s_waitcnt lgkmcnt(0)')
    stamp(a, P, 'hkarg')
    a('s_load_dword s84, s[28:29], 0')
    srd(a, 48, 4, None, 7168)
    for ks in range(7):
        if ks < 3: a(f'buffer_load_dwordx4 v[{XF+4*ks}:{XF+4*ks+3}], v8, s[48:51], s60 offen offset:{ks*64} {P["xpol"]}')
        else: a(f'buffer_load_dwordx4 v[{XF+4*ks}:{XF+4*ks+3}], v8, s[48:51], s61 offen offset:{(ks-3)*64} {P["xpol"]}')
    if P['abl'] & 2: a('s_mov_b32 s39, 0')
    srd(a, 56, 10, 's37', 's39')
    for i in range(16):
        a(f's_mov_b32 m0, {L_WQ+i*1024}\ns_mov_b32 s36, {i*65536}')
        a(f'buffer_load_dwordx4 v1, s[56:59], s36 offen {P["wpol"]} lds')
    stamp(a, P, 'wqiss')
    a(f'v_mov_b32 v126, -1\nv_mov_b32 v127, -1\nv_lshlrev_b32 v3, 3, v0\nv_add_u32 v3, {L_ML}, v3\nv_mov_b32 v5, {L_TAG}')
    a('s_mov_b64 exec, 0xffff\nds_write_b64 v3, v[126:127]\nds_write_b64 v5, v[126:127]\ns_mov_b64 exec, -1')
    srd(a, 52, 28, None, WS_USED)
    a(f'v_lshlrev_b32 v2, 4, v0\ns_getreg_b32 s68, hwreg(HW_REG_XCC_ID)\ns_and_b32 s68, s68, 15\ns_lshl_b32 s68, s68, 12')
    a(f's_lshl_b32 s69, s31, 12\ns_add_u32 s69, s69, {XBUF}\ns_lshl_b32 s37, s32, 7\ns_add_u32 s37, s37, s69\ns_waitcnt lgkmcnt(0)')
    a(f's_add_u32 s84, s84, 0x9E3779B9\ns_and_b32 s85, s84, {TMASK}\ns_or_b32 s68, s68, s85\nv_mov_b32 v6, s85\nv_mov_b32 v124, s68')
    a('s_mov_b64 exec, 1\nbuffer_store_dword v124, v2, s[52:55], s37 offen sc1\ns_mov_b64 exec, -1')
    stamp(a, P, 'xst')
    a('s_barrier')
    a('v_and_b32 v125, 31, v0\nv_lshlrev_b32 v125, 7, v125')
    a(f'v_mov_b32 v14, {hex(OOB)}\ns_mov_b32 s82, {TMASK}\ns_mov_b32 s81, {QMASK}\ns_mov_b32 s83, {hex(f2u(C_EXP))}')
    a(f'v_bfe_u32 v3, v0, 2, 2\nv_lshl_add_u32 v12, v9, 3, v3\nv_lshlrev_b32 v12, 7, v12\nv_and_b32 v5, 3, v0\nv_lshl_add_u32 v12, v5, 3, v12')
    a(f'v_and_b32 v5, 7, v0\nv_lshlrev_b32 v13, 16, v5\nv_lshl_add_u32 v13, v9, 4, v13\nv_bfe_u32 v3, v0, 3, 1\nv_cmp_eq_u32 vcc, s62, v3')
    a(f'v_lshlrev_b32 v5, 12, v5\nv_lshl_add_u32 v5, v9, 4, v5\nv_cndmask_b32 v13, v14, v13, vcc\nv_cndmask_b32 v5, v14, v5, vcc')
    a(f's_and_b32 s37, s32, 3\ns_lshl_b32 s60, s37, 14\ns_lshl_b32 s39, s31, 11\ns_add_u32 s60, s60, s39\ns_lshl_b32 s39, s66, 8\ns_add_u32 s60, s60, s39\ns_add_u32 s60, s60, {QBUF}')
    a(f's_lshl_b32 s70, s37, 10\ns_and_b32 s39, s66, 3\ns_lshl_b32 s39, s39, 8\ns_add_u32 s70, s70, s39\ns_lshl_b32 s39, s31, 15\ns_add_u32 s70, s70, s39\ns_add_u32 s70, s70, {HBUF}')
    a('s_waitcnt vmcnt(17)')
    stamp(a, P, 'xland')
    layernorm(a, XF, FF, TT)
    stamp(a, P, 'lndone')
    a('s_mov_b64 exec, 0xffffffff\nbuffer_load_dword v124, v125, s[52:55], s69 offen sc1\ns_mov_b64 exec, -1')
    a('s_waitcnt vmcnt(2) lgkmcnt(0)')
    stamp(a, P, 'wqland')
    def loc_check():
        a('s_waitcnt vmcnt(0)\nv_cmp_ne_u32 vcc, s68, v124\ns_cmp_eq_u32 vcc_lo, 0')
        for k in range(P['xretry']):
            a('s_cbranch_scc1 L_xok\ns_mov_b64 exec, 0xffffffff\nbuffer_load_dword v124, v125, s[52:55], s69 offen sc1\ns_mov_b64 exec, -1')
            a('s_waitcnt vmcnt(0)\nv_cmp_ne_u32 vcc, s68, v124\ns_cmp_eq_u32 vcc_lo, 0')
        a('L_xok:')
        a('s_cselect_b32 s87, 1, 0' if P['loc'] else 's_mov_b32 s87, 0')
        stamp(a, P, 'xid')
        if P['diag'] and 'locv' in pts(P):
            a('s_cmp_lg_u32 s87, 0\ns_cbranch_scc1 L_locv'); stamp(a, P, 'locv'); a('L_locv:')
    if P['abl'] & 4: loc_check(); a('s_branch L_qdone')
    unit_gemm(a, L_WQ, 12, 13, 60, 6, 81, None if P['abl'] & 4 else loc_check)
    stamp(a, P, 'qpub')
    a(f's_lshl_b32 s61, s33, 16\ns_lshl_b32 s37, s31, 11\ns_add_u32 s61, s61, s37\ns_add_u32 s61, s61, {QBUF}')
    a(f's_mov_b32 s86, {P["spin"]}\nv_mov_b32 v7, 0x80')
    a('L_qpoll:')
    a(f's_sleep {P["qsl"]}')
    a('s_mov_b32 s36, s61')
    for kq in range(4):
        for m in range(2): a(f'buffer_load_dwordx4 v[{44+8*kq+4*m}:{47+8*kq+4*m}], v2, s[52:55], s36 offen offset:{m*1024} sc1')
        if kq < 3: a('s_add_u32 s36, s36, 16384')
    a(f's_mov_b64 exec, 0xffffffff\nbuffer_load_dword v124, v125, s[52:55], s69 offen sc1\ns_mov_b64 exec, -1\ns_waitcnt vmcnt(0)')
    tag_check(a, range(44, 76), 100, 101, 102, QMASK)
    a('s_sub_u32 s86, s86, 1\ns_cbranch_scc1 L_qdone\ns_cbranch_vccnz L_qpoll')
    a('L_qdone:')
    stamp(a, P, 'qok')
    a('v_cmp_ne_u32 vcc, s68, v124\ns_cmp_eq_u32 vcc_lo, 0')
    a('s_cselect_b32 s87, 1, 0' if P['loc'] else 's_mov_b32 s87, 0')
    tag_strip(a, range(44, 76), 7, 81)
    for kq in range(1, 4):
        for m in range(4): a(f'v_pk_add_f32 v[{44+2*m}:{45+2*m}], v[{44+2*m}:{45+2*m}], v[{44+8*kq+2*m}:{45+8*kq+2*m}]')
    a(f'v_lshlrev_b32 v3, 3, v0\nv_add_u32 v3, {L_Q}, v3\nv_mov_b32 v13, {L_TAG}\nv_mov_b32 v100, s84\nv_mov_b32 v101, s87')
    for m in range(4): a(f'v_cvt_pk_bf16_f32 v{52+m}, v{44+2*m}, v{45+2*m}')
    a('ds_write_b64 v3, v[52:53]\nds_write_b64 v3, v[54:55] offset:512\ns_waitcnt lgkmcnt(0)\nds_write_b64 v13, v[100:101]')
    stamp(a, P, 'B1')
    if P['abl'] & 1: a('s_branch L_now')
    a('s_cmp_ge_u32 s66, 4\ns_cbranch_scc0 L_noh')
    a('s_mul_i32 s67, s31, 7\ns_lshr_b32 s67, s67, 1\ns_and_b32 s39, s66, 3\ns_add_u32 s67, s67, s39\ns_mul_i32 s37, s64, 3584\ns_lshl_b32 s39, s67, 7\ns_add_u32 s37, s37, s39')
    a('s_mul_i32 s39, s65, 3584\ns_add_u32 s39, s39, 128')
    srd(a, 56, 16, 's37', 's39')
    dma_loop(a, 'L_w1', 16, P['DH'], 4, 8 * 3584, L_W1, P['wpol'])
    layernorm(a, XF, FF, TT, 16)
    a('s_waitcnt vmcnt(0)')
    unit_gemm(a, L_W1, 12, 5, 70, 6, 82)
    a('L_noh:')
    stamp(a, P, 'hpub')
    a('s_cmp_lt_u32 s32, 28\ns_cbranch_scc0 L_now')
    a('v_lshrrev_b32 v1, 3, v0\nv_mul_u32_u24 v1, 896, v1\nv_and_b32 v3, 7, v0\nv_lshl_add_u32 v1, v3, 4, v1')
    a('s_and_b32 s64, s32, 3\ns_lshl_b32 s65, s31, 2\ns_add_u32 s65, s65, s64')
    if not P['late']:
        a(f's_mul_i32 s37, s65, 50176\ns_lshl_b32 s39, s66, 7\ns_add_u32 s37, s37, s39')
        srd(a, 56, 20, 's37', 55 * 896 + 128)
        dma_loop(a, 'L_w2', 8, P['DH'], 1, 8 * 896, L_W2, P['mpol'])
        if not P['nowo']:
            a(f's_mul_i32 s37, s65, 114688\ns_lshl_b32 s39, s66, 7\ns_add_u32 s37, s37, s39\ns_sub_u32 s39, {4096*896}, s37')
            srd(a, 56, 12, 's37', 's39')
            dma_loop(a, 'L_wo', 16, P['DH'], 1, 8 * 896, L_WO, P['opol'])
    stamp(a, P, 'wodone')
    a('v_min_u32 v3, 13, v10\nv_lshlrev_b32 v4, 12, v9\nv_lshl_add_u32 v4, v3, 4, v4\nv_lshlrev_b32 v5, 3, v3')
    a(f's_lshl_b32 s61, s31, 15\ns_mul_i32 s37, s64, 224\ns_add_u32 s61, s61, s37\ns_and_b32 s37, s31, 1\ns_lshl_b32 s37, s37, 7\ns_add_u32 s61, s61, s37\ns_add_u32 s61, s61, {HBUF}')
    srd(a, 48, 18, None, 3584)
    a(f's_mul_i32 s37, s65, 112\nbuffer_load_dwordx2 v[20:21], v5, s[48:51], s37 offen\ns_add_u32 s60, s61, 16384\ns_mov_b32 s86, {P["spin"]}\nv_mov_b32 v7, 0x200')
    a('L_hp:')
    for ps in range(2):
        for kq in range(4): a(f'buffer_load_dwordx4 v[{44+16*ps+4*kq}:{47+16*ps+4*kq}], v4, s[52:55], s{61-ps} offen offset:{kq*1024} sc1')
    a('s_waitcnt vmcnt(0)')
    tag_check(a, range(44, 76), 16, 17, 18)
    a('s_sub_u32 s86, s86, 1\ns_cbranch_scc1 L_hpd\ns_cbranch_vccz L_hpd\ns_sleep 16\ns_branch L_hp')
    a('L_hpd:')
    tag_strip(a, range(44, 76), 7)
    for ps in range(2):
        for kq in range(1, 4):
            for m in range(2): a(f'v_pk_add_f32 v[{44+16*ps+2*m}:{45+16*ps+2*m}], v[{44+16*ps+2*m}:{45+16*ps+2*m}], v[{44+16*ps+4*kq+2*m}:{45+16*ps+4*kq+2*m}]')
    unpack(a, 20, 24, 2)
    a('v_cvt_pk_bf16_f32 v16, v44, v45\nv_cvt_pk_bf16_f32 v17, v46, v47\nv_cvt_pk_bf16_f32 v18, v60, v61\nv_cvt_pk_bf16_f32 v19, v62, v63')
    unpack(a, 16, 32, 4)
    for i in range(8): a(f'v_add_f32 v{32+i}, v{32+i}, v{24+(i&3)}')
    for i in range(4): a(f'v_cvt_pk_bf16_f32 v{16+i}, v{32+2*i}, v{33+2*i}')
    unpack(a, 16, 32, 4)
    k0 = 2 * 0.7978845608028654 * math.log2(math.e); k1 = k0 * 0.044715
    a(f's_mov_b32 s62, {hex(f2u(-k1))}\nv_mov_b32 v15, {hex(f2u(-k0))}')
    for i in range(8): a(f'v_mul_f32 v{44+i}, v{32+i}, v{32+i}')
    for i in range(8): a(f'v_fma_f32 v{44+i}, v{44+i}, s62, v15')
    for i in range(8): a(f'v_mul_f32 v{44+i}, v{44+i}, v{32+i}')
    for i in range(8): a(f'v_exp_f32 v{44+i}, v{44+i}')
    for i in range(8): a(f'v_add_f32 v{44+i}, 1.0, v{44+i}')
    for i in range(8): a(f'v_rcp_f32 v{44+i}, v{44+i}')
    for i in range(8): a(f'v_mul_f32 v{32+i}, v{32+i}, v{44+i}')
    a('v_cmp_gt_u32 vcc, 14, v10')
    for i in range(4): a(f'v_cvt_pk_bf16_f32 v{16+i}, v{32+2*i}, v{33+2*i}')
    for i in range(4): a(f'v_cndmask_b32 v{16+i}, 0, v{16+i}, vcc')
    a(f'v_mul_u32_u24 v3, {HSTR}, v9\nv_lshl_add_u32 v3, v10, 3, v3\nv_add_u32 v3, {L_H}, v3')
    a(f'ds_write_b64 v3, v[16:17]\nds_write_b64 v3, v[18:19] offset:{4*HSTR}')
    if not P['late']:
        a(f'v_and_b32 v3, 7, v0\nv_mul_u32_u24 v3, {HSTR}, v3\nv_lshl_add_u32 v3, v9, 3, v3\nv_add_u32 v3, {L_H}, v3')
        a(f'v_bfe_u32 v4, v0, 2, 2\nv_lshl_add_u32 v4, v9, 2, v4\nv_lshlrev_b32 v4, 7, v4\nv_and_b32 v5, 3, v0\nv_lshl_add_u32 v4, v5, 3, v4\nv_add_u32 v4, {L_W2}, v4')
        a('s_waitcnt lgkmcnt(0)')
        for k in range(2): a(f'ds_read_b64 v[{16+4*k}:{17+4*k}], v3 offset:{k*64}\nds_read_b64 v[{18+4*k}:{19+4*k}], v3 offset:{k*64+32}')
        for t in range(4):
            for k in range(2):
                r = 44 + 8 * t + 4 * k
                a(f'ds_read_b64_tr_b16 v[{r}:{r+1}], v4 offset:{k*4096+t*32}\nds_read_b64_tr_b16 v[{r+2}:{r+3}], v4 offset:{k*4096+2048+t*32}')
        a(f'v_add_u32 v3, {L_C}, v2\ns_waitcnt lgkmcnt(0)')
        for k in range(2):
            for t in range(4):
                r = 44 + 8 * t + 4 * k; d = 76 + 4 * t
                a(f'v_mfma_f32_16x16x32_bf16 v[{d}:{d+3}], v[{16+4*k}:{19+4*k}], v[{r}:{r+3}], ' + ('0' if k == 0 else f'v[{d}:{d+3}]'))
        for t in range(4): a(f'ds_write_b128 v3, v[{76+4*t}:{79+4*t}] offset:{t*1024}')
    a('L_now:')
    stamp(a, P, 'mend')
    a(f'v_and_b32 v3, 15, v0\nv_lshlrev_b32 v3, 3, v3\nv_add_u32 v3, {L_ML}, v3\ns_mov_b32 s86, {P["spin"]*16}')
    a('L_mlw:')
    a('ds_read_b64 v[16:17], v3\ns_waitcnt lgkmcnt(0)\nv_cmp_eq_u32 vcc, -1, v16')
    a('s_sub_u32 s86, s86, 1\ns_cbranch_scc1 L_mlwd\ns_cbranch_vccz L_mlwd\ns_sleep 4\ns_branch L_mlw')
    a('L_mlwd:')
    d8 = ('quad_perm:[1,0,3,2]', 'quad_perm:[2,3,0,1]', 'row_half_mirror')
    a('v_mov_b32 v18, v16')
    for m in d8: a(f'v_max_f32_dpp v18, v18, v18 {m} row_mask:0xf bank_mask:0xf')
    a('v_sub_f32 v20, v16, v18\nv_mul_f32 v20, s83, v20\nv_exp_f32 v20, v20\nv_mul_f32 v19, v20, v17')
    for m in d8: a(f'v_add_f32_dpp v19, v19, v19 {m} row_mask:0xf bank_mask:0xf')
    tag_strip(a, (18, 19), 6)
    a(f's_lshl_b32 s37, s38, 7\ns_add_u32 s37, s37, {MLX}\ns_mov_b64 exec, 0x101')
    hand_store(a, 'buffer_store_dwordx2 v[18:19], v0, s[52:55], s37 offen')
    a('s_mov_b64 exec, -1')
    stamp(a, P, 'mlpub')
    a(f's_and_b32 s61, s38, 0xfc\ns_lshl_b32 s61, s61, 7\ns_add_u32 s61, s61, {MLX}\ns_mov_b32 s86, {P["spin"]}')
    a('v_and_b32 v3, 3, v0\nv_lshlrev_b32 v3, 7, v3\nv_and_b32 v4, 8, v0\nv_add_u32 v3, v3, v4')
    a('L_mlp2:')
    a(f's_sleep {P["msl"]}')
    a('buffer_load_dwordx2 v[24:25], v3, s[52:55], s61 offen sc1\ns_waitcnt vmcnt(0)')
    tag_check(a, (24, 25), 26, 27, 28)
    a('s_sub_u32 s86, s86, 1\ns_cbranch_scc1 L_mlp2d\ns_cbranch_vccnz L_mlp2')
    a('L_mlp2d:')
    stamp(a, P, 'mlok')
    a(f'v_and_b32 v24, 0xffff0000, v24\nv_and_b32 v25, {hex(0xffffffff ^ TMASK)}, v25\nv_mov_b32 v28, v24')
    for m in d8[:2]: a(f'v_max_f32_dpp v28, v28, v28 {m} row_mask:0xf bank_mask:0xf')
    a('v_sub_f32 v29, v24, v28\nv_mul_f32 v29, s83, v29\nv_exp_f32 v29, v29\nv_mul_f32 v29, v29, v25')
    for m in d8[:2]: a(f'v_add_f32_dpp v29, v29, v29 {m} row_mask:0xf bank_mask:0xf')
    a('v_sub_f32 v30, v16, v28\nv_mul_f32 v30, s83, v30\nv_exp_f32 v30, v30\nv_rcp_f32 v29, v29\nv_mul_f32 v30, v30, v29')
    a(f'v_lshlrev_b32 v3, 2, v0\nv_add_u32 v3, {L_F}, v3\ns_mov_b64 exec, 0xffff\nds_write_b32 v3, v30\ns_mov_b64 exec, -1')
    if P['tpf']:
        a('s_getpc_b64 s[56:57]\nL_pc2:\ns_add_u32 s56, s56, L_tail-L_pc2\ns_addc_u32 s57, s57, 0\ns_mov_b32 s58, L_end-L_tail\ns_mov_b32 s59, 0x20000')
        a('v_lshlrev_b32 v1, 6, v0\nbuffer_load_dword v15, v1, s[56:59], 0 offen')
    a('s_waitcnt vmcnt(0) lgkmcnt(0)')
    stamp(a, P, 'hend')
    stamp_store(a, P, stamp_items(P, H_PTS))
    a('s_endpgm')

def body(P):
    a = Asm(); HPOL[0] = P['hpol']
    a('s_cmp_ge_u32 s2, 256\ns_cbranch_scc1 L_end')
    a('s_load_dwordx16 s[4:19], s[0:1], 0\ns_load_dwordx8 s[20:27], s[0:1], 64\ns_load_dwordx2 s[28:29], s[0:1], 96')
    a('v_lshrrev_b32 v1, 6, v0\nv_and_b32 v0, 63, v0\nv_readfirstlane_b32 s30, v1')
    a('s_and_b32 s31, s2, 7\ns_lshr_b32 s32, s2, 3')
    if P['bmap'] == 0: a('s_lshr_b32 s33, s32, 2\ns_and_b32 s34, s32, 3')
    else: a('s_and_b32 s33, s32, 7\ns_lshr_b32 s34, s32, 3')
    a('s_lshl_b32 s37, s31, 2\ns_add_u32 s34, s34, s37\ns_lshl_b32 s38, s33, 5\ns_add_u32 s38, s38, s34')
    stamp_init(a, P)
    stamp(a, P, 'entry')
    a(f's_cmp_eq_u32 s30, {P["hw"]}\ns_cbranch_scc1 L_helper')
    streamer(a, P, lambda: helper(a, P))
    a('L_end:\ns_endpgm')
    txt, n = a.text()
    return txt, n

def vgprs(P): return max(56 + 4 * P['R'] + 4, 156)

def kernel(P):
    txt, n = body(P)
    nm = P['name']
    txt = txt.replace('L_', f'L{nm[-24:]}_') if P.get('uniq') else txt
    return txt

def final_file(P):
    ref = open(f'cdna_kernels/{NAME}.s.ref').read()
    head = ref[:ref.index('; Override launch')]
    nm = P['name']; vg = vgprs(P)
    return head + f'''; Single launch: 256 workgroups x (8 streaming waves + 1 helper wave). Generated by gen/gen.py.
; @launch grid=(256,1,1) block=({block(P)},1,1) lds={LDS_BYTES}
.amdgcn_target "amdgcn-amd-amdhsa--gfx950"
.text
.globl {nm}
.p2align 8
.type {nm},@function
{nm}:
{kernel(P)}
.section .rodata,"a"
.p2align 6
.amdhsa_kernel {nm}
  .amdhsa_next_free_vgpr {vg}
  .amdhsa_next_free_sgpr 102
  .amdhsa_accum_offset {(vg+3)//4*4}
  .amdhsa_group_segment_fixed_size 0
  .amdhsa_kernarg_size 104
  .amdhsa_user_sgpr_count 2
  .amdhsa_user_sgpr_kernarg_segment_ptr 1
  .amdhsa_system_sgpr_workgroup_id_x 1
.end_amdhsa_kernel
'''

if __name__ == '__main__':
    P = dict(DEF)
    out = f'cdna_kernels/{NAME}.s'
    for kv in sys.argv[1:]:
        k, v = kv.split('=', 1)
        if k == 'out': out = v
        else: P[k] = type(DEF[k])(v) if not isinstance(DEF[k], bool) else v == '1'
    open(out, 'w').write(final_file(P))
    print('wrote', out)
```

```python
import sys, math, struct
from asmlib import Asm

NAME = 'parallel_sum__gqa_block_cached__mixer_channel_mlp__decode'
def f2u(x): return struct.unpack('<I', struct.pack('<f', x))[0]

CBUF, XBUF, MLX, OBUF, PBUF, HBUF, QBUF, WS_USED = 0x4000, 0x8000, 0x10000, 0x20000, 0xA0000, 0x120000, 0x160000, 0x1E0000
TMASK = 0x3FF
QMASK = 0xFF
STAMP_OFF = 536870912 - (1 << 20)
L_WQ = 0; L_W1 = 16384; L_WO = 32768; L_W2 = 49152
L_PART = 57344
L_C = L_PART + 16384
OSTR = 264; HSTR = 136
L_O = L_C + 4096
L_H = L_O + 8 * OSTR
L_Q = L_H + 8 * HSTR
L_ML = L_Q + 1024
L_F = L_ML + 128
L_TAG = L_F + 64
LDS_BYTES = L_TAG + 16
assert L_Q % 16 == 0 and LDS_BYTES > 81920
OOB = 0x7F000000
C_EXP = math.log2(math.e) / 16.0

DEF = dict(R=26, D=3, D0=3, DH=2, qsl=8, msl=24, cpf=1, tpf=1, late=2, hpol='', hw=8, abl=0, lt=1, ov=0, podd=0, peven=0, p0=0, vt=0, wb=0, amap='13 14 9 10 12 17 18 16 15 11 1024 8 513 0 128', hpat='', swz=0, ppol='sc1', lpol='sc1', nocomp=0, nowo=0, ctl=0, cks='28 44 60 76 92 104', t1=6, t2=10, cstr=256, m1=0x55, m2=0xff, kpat='3323', vpat='3323', loc=1, n2=80, xretry=1, Dend=0, nend=16, gsl=0, fsl=0, fthr=0, fsl2=24, nornd=0, nom=0, pol='nt', wpol='nt', xpol='', opol='nt', mpol='nt', diag=False, budget=2,
           name=NAME + '_kernel', spin=1 << 16, hold=0, bmap=0, pts='start+qpub+B1+Kdone+hend+B2+end')
def block(P): return 576

def srd(a, n, base, off, size):
    if off is None:
        a(f's_mov_b32 s{n}, s{base}\ns_mov_b32 s{n+1}, s{base+1}')
    else:
        a(f's_add_u32 s{n}, s{base}, {off}\ns_addc_u32 s{n+1}, s{base+1}, 0')
    a(f's_mov_b32 s{n+2}, {size}\ns_mov_b32 s{n+3}, 0x20000')

def wave_sum(a, v, s):
    for m in ('row_shr:1', 'row_shr:2', 'row_shr:4', 'row_shr:8'):
        a(f'v_add_f32_dpp v{v}, v{v}, v{v} {m} row_mask:0xf bank_mask:0xf')
    a(f'v_add_f32_dpp v{v}, v{v}, v{v} row_bcast:15 row_mask:0xa bank_mask:0xf')
    a(f'v_add_f32_dpp v{v}, v{v}, v{v} row_bcast:31 row_mask:0xc bank_mask:0xf')
    a(f'v_readlane_b32 s{s}, v{v}, 63')

def rnd_bf16(a, v):
    a(f'v_cvt_pk_bf16_f32 v{v}, v{v}, v{v}\nv_and_b32 v{v}, 0xffff0000, v{v}')

def unpack(a, src, dst, n):
    for i in range(n):
        a(f'v_and_b32 v{dst+2*i+1}, 0xffff0000, v{src+i}\nv_lshlrev_b32 v{dst+2*i}, 16, v{src+i}')

def row_sum(a, v, t):
    a(f'v_add_f32_dpp v{v}, v{v}, v{v} row_ror:8 row_mask:0xf bank_mask:0xf')
    xgroup(a, 'v_add_f32', v, t)

def layernorm(a, X, F, T, nq=28):
    pr = lambda r: f'v[{r}:{r+1}]'
    unpack(a, X, F, 28)
    a(f'v_pk_add_f32 {pr(T)}, {pr(F)}, {pr(F+2)}\nv_pk_add_f32 {pr(T+2)}, {pr(F+4)}, {pr(F+6)}')
    for i in range(4, 28): a(f'v_pk_add_f32 {pr(T+2*(i&1))}, {pr(T+2*(i&1))}, {pr(F+2*i)}')
    a(f'v_pk_add_f32 {pr(T)}, {pr(T)}, {pr(T+2)}\nv_add_f32 v{T}, v{T}, v{T+1}')
    row_sum(a, T, T + 1)
    a(f'v_mul_f32 v{T}, {hex(f2u(-1/448))}, v{T}\nv_mov_b32 v{T+1}, v{T}')
    for i in range(28):
        d = T + 4 + 2 * (i & 1)
        a(f'v_pk_add_f32 {pr(d)}, {pr(F+2*i)}, {pr(T)}')
        if i == 0: a(f'v_pk_mul_f32 {pr(T+2)}, {pr(d)}, {pr(d)}')
        else: a(f'v_pk_fma_f32 {pr(T+2)}, {pr(d)}, {pr(d)}, {pr(T+2)}')
    a(f'v_add_f32 v{T+2}, v{T+2}, v{T+3}')
    row_sum(a, T + 2, T + 3)
    rnd_bf16(a, T)
    a(f'v_mov_b32 v{T+1}, v{T}\nv_mul_f32 v{T+2}, {hex(f2u(1/448))}, v{T+2}')
    rnd_bf16(a, T + 2)
    a(f'v_add_f32 v{T+2}, {hex(f2u(1e-5))}, v{T+2}')
    rnd_bf16(a, T + 2)
    a(f'v_sqrt_f32 v{T+2}, v{T+2}')
    for i in range(nq): a(f'v_pk_add_f32 {pr(F+2*i)}, {pr(F+2*i)}, {pr(T)}')
    rnd_bf16(a, T + 2)
    a(f'v_rcp_f32 v{T+2}, v{T+2}')
    for i in range(nq): a(f'v_cvt_pk_bf16_f32 v{X+i}, v{F+2*i}, v{F+2*i+1}')
    a(f'v_mov_b32 v{T+3}, v{T+2}')
    unpack(a, X, F, nq)
    for i in range(nq): a(f'v_pk_mul_f32 {pr(F+2*i)}, {pr(F+2*i)}, {pr(T+2)}')
    for i in range(nq): a(f'v_cvt_pk_bf16_f32 v{X+i}, v{F+2*i}, v{F+2*i+1}')

def xgroup(a, op, v, t):
    a(f'v_mov_b32 v{t}, v{v}\nv_permlane16_swap_b32 v{v}, v{t}\n{op} v{v}, v{v}, v{t}')
    a(f'v_mov_b32 v{t}, v{v}\nv_permlane32_swap_b32 v{v}, v{t}\n{op} v{v}, v{v}, v{t}')

S_PTS = ['start', 'k0', 'fst', 'fcnt', 's8', 's44', 's96', 'skarg', 'siss0', 'pst', 'g2ok', 'sB1a', 'sB1', 'Kdone', 'Vlast', 'B2', 'ost', 'gok', 'B3', 'end']
M_PTS = ['mstart', 'mw1', 'mw2', 'mend']
H_PTS = ['entry', 'hstart', 'mend', 'locv', 'xst', 'xid', 'hpub', 'wob', 'qack', 'xland', 'lndone', 'wtpub', 'wtok', 'hkarg', 'wqiss', 'hB0', 'wqland', 'qpub', 'qp1', 'qok', 'B1', 'wodone', 'mlpub', 'mlok', 'hend']
def pts(P): return P['pts'].split('+') if isinstance(P['pts'], str) else P['pts']
def stamp(a, P, name):
    if P['diag'] and name in pts(P):
        reg = 88 + 2 * pts(P).index(name)
        a(f's_memrealtime s[{reg}:{reg+1}]\ns_waitcnt lgkmcnt(0)')
def stamp_items(P, lst): return [(i, 88 + 2 * i) for i, n in enumerate(pts(P)) if n in lst]
def stamp_init(a, P):
    if P['diag']:
        for i in range(7): a(f's_mov_b64 s[{88+2*i}:{89+2*i}], 0')

def stamp_store(a, P, items, hw=False):
    if not P['diag']: return
    a('s_waitcnt lgkmcnt(0)')
    a(f's_lshl_b32 s37, s2, 6\ns_add_u32 s37, s37, {STAMP_OFF}')
    srd(a, 40, 28, 's37', 64)
    a('s_mov_b64 exec, 1\nv_mov_b32 v1, 0')
    for idx, reg in items:
        a(f'v_mov_b32 v2, s{reg}\nv_mov_b32 v3, s{reg+1}\nbuffer_store_dwordx2 v[2:3], v1, s[40:43], 0 offen offset:{idx*8}')
    if hw:
        a('s_getreg_b32 s38, hwreg(HW_REG_XCC_ID)\ns_getreg_b32 s39, hwreg(HW_REG_HW_ID)')
        a('v_mov_b32 v2, s38\nv_mov_b32 v3, s39\nbuffer_store_dwordx2 v[2:3], v1, s[40:43], 0 offen offset:56')
    a('s_mov_b64 exec, -1')

def q_wait(a, P, lab):
    a(f's_mov_b32 s82, {TMASK}\nv_mov_b32 v5, {L_TAG}\ns_mov_b32 s86, {P["spin"]*16}')
    a(f'{lab}:\nds_read_b64 v[6:7], v5\ns_waitcnt lgkmcnt(0)\nv_cmp_eq_u32 vcc, -1, v7')
    a(f's_sub_u32 s86, s86, 1\ns_cbranch_scc1 {lab}d\ns_cbranch_vccz {lab}d\ns_sleep 2\ns_branch {lab}\n{lab}d:')
    a(f'v_readfirstlane_b32 s84, v6\nv_readfirstlane_b32 s87, v7\ns_and_b32 s85, s84, {TMASK}')

def streamer(a, P, mid):
    if P['hw'] == 0: a('s_sub_u32 s30, s30, 1')
    R, D, D0, pol = P['R'], P['D'], P['D0'], P['pol']
    Q, S, DT, RING = 8, 16, 48, 56
    slot = lambda i: RING + 4 * (i % R)
    sl = lambda i: f'v[{slot(i)}:{slot(i)+3}]'
    stamp(a, P, 'start')
    if P['hold']: a('s_memrealtime s[98:99]')
    am = [int(x) for x in P['amap'].split()]
    ab, gb, wb, xm = am[0:2], am[2:7], am[7:10], am[10:15]
    a(f'v_and_b32 v1, 3, v0\nv_lshlrev_b32 v1, 4, v1\nv_lshrrev_b32 v3, 4, v0\nv_lshl_add_u32 v1, v3, 6, v1')
    a(f'v_bfe_u32 v3, v0, 2, 1\nv_lshl_add_u32 v1, v3, {ab[0]}, v1\nv_bfe_u32 v3, v0, 3, 1\nv_lshl_add_u32 v1, v3, {ab[1]}, v1')
    a('s_lshl_b32 s37, s38, 19\ns_mov_b32 s35, 0')
    use = 0
    for m in xm: use |= m
    a('s_add_u32 s36, s30, s32\ns_and_b32 s36, s36, 7' if use & 7 else 's_mov_b32 s36, 0')
    if use & 0xf8: a('s_lshl_b32 s39, s32, 3\ns_or_b32 s36, s36, s39')
    if use & 0x700: a('s_lshl_b32 s39, s31, 8\ns_or_b32 s36, s36, s39')
    if use & 0x3800: a('s_lshl_b32 s39, s30, 11\ns_or_b32 s36, s36, s39')
    for k in range(5):
        if xm[k] and xm[k] & (xm[k] - 1) == 0:
            a(f's_bfe_u32 s39, s36, {0x10000 + xm[k].bit_length() - 1}\ns_lshl_b32 s39, s39, {gb[k]}\ns_or_b32 s35, s35, s39')
        elif xm[k]:
            a(f's_and_b32 s39, s36, {xm[k]}\ns_bcnt1_i32_b32 s39, s39\ns_and_b32 s39, s39, 1\ns_lshl_b32 s39, s39, {gb[k]}\ns_or_b32 s35, s35, s39')
    for k in range(3): a(f's_bfe_u32 s39, s30, {0x10000 + k}\ns_lshl_b32 s39, s39, {wb[k]}\ns_or_b32 s35, s35, s39')
    goff = lambda G: sum(((G >> k) & 1) << gb[k] for k in range(5))
    a('s_waitcnt lgkmcnt(0)')
    stamp(a, P, 'skarg')
    srd(a, 40, 6, 's37', 524288)
    lt = P['lt']
    def lg(i):
        j = i % 64
        if lt and i >= 112: return 24 + ((i - 112) & 7), (i - 112) >> 3
        return j >> 1, j & 1
    vidx = lambda T, g, e: (112 + 8 * e + g) if (lt and T == 3) else (64 + 16 * T + 2 * g + e)
    def issue(i):
        G, t = lg(i)
        if t == 0 or (lt and i >= 112): a(f's_xor_b32 s36, s35, {goff(G)}')
        r, va = ('s[40:43]', 'v1') if i < 64 else ('s[44:47]', 'v2')
        a(f'buffer_load_dwordx4 {sl(i)}, {va}, {r}, s36 offen offset:{t*256} {pol}')
    for i in range(D0): issue(i)
    stamp(a, P, 'siss0')
    a('s_branch L_s2')
    mid()
    a('L_s2:')
    a(f'v_and_b32 v2, 15, v0\nv_lshlrev_b32 v2, 4, v2\nv_bfe_u32 v3, v0, 4, 1\nv_lshl_add_u32 v2, v3, {ab[0]}, v2\nv_lshrrev_b32 v3, 5, v0\nv_lshl_add_u32 v2, v3, {ab[1]}, v2')
    srd(a, 44, 8, 's37', 524288)
    if P['vt']:
        a(f'v_mov_b32 v3, 0\nbuffer_load_dword v4, v3, s[44:47], s35 offen {pol}')
    a('s_barrier')
    srd(a, 52, 28, None, WS_USED)
    for e in range(2):
        for r in range(4):
            m16 = (0x11 << r) << (8 * e); m32 = m16 | (m16 << 16)
            a(f's_mov_b32 s{64+2*(4*e+r)}, {hex(m32)}\ns_mov_b32 s{65+2*(4*e+r)}, {hex(m32)}')
    a('s_mov_b32 s80, 0x05040100\ns_mov_b32 s81, 0x07060302')
    for i in range(D0, R):
        if i == D0 + 1: stamp(a, P, 'k0')
        dh = int(P['hpat'][i - D0]) if i - D0 < len(P['hpat']) else D0
        if P['vt'] and i < D0 + D: dh += 1
        a(f's_waitcnt vmcnt({dh-1})'); issue(i)
        if i == 8 + D: stamp(a, P, 's8')
    a('v_bfe_u32 v3, v0, 2, 1\nv_lshlrev_b32 v3, 9, v3\nv_and_b32 v4, 3, v0\nv_lshl_add_u32 v3, v4, 4, v3')
    a(f'v_lshrrev_b32 v4, 4, v0\nv_lshl_add_u32 v3, v4, 6, v3\nv_add_u32 v3, {L_Q}, v3')
    stamp(a, P, 'sB1a')
    q_wait(a, P, 'L_sq')
    stamp(a, P, 'sB1')
    a(f'ds_read_b128 v[{Q}:{Q+3}], v3\nds_read_b128 v[{Q+4}:{Q+7}], v3 offset:256')
    a(f'v_mov_b32 v4, 0xff800000\ns_mov_b32 s83, {hex(f2u(C_EXP))}\ns_waitcnt lgkmcnt(0)')
    chunks = []
    def kdpp(G):
        d = DT + 4 * (G & 1)
        a(f'v_mov_b32_dpp v{S+G}, v{d} quad_perm:[0,0,0,0] row_mask:0xf bank_mask:0xf')
        for r in range(1, 4):
            a(f'v_add_f32_dpp v{S+G}, v{d+r}, v{S+G} quad_perm:[{r},{r},{r},{r}] row_mask:0xf bank_mask:0xf')
        if G & 1:
            if not P['nornd']: a(f'v_cvt_pk_bf16_f32 v5, v{S+G-1}, v{S+G}\nv_lshlrev_b32 v{S+G-1}, 16, v5\nv_and_b32 v{S+G}, 0xffff0000, v5')
            a(f'v_max3_f32 v4, v4, v{S+G-1}, v{S+G}')
    def kchunk(G):
        def fn():
            d = DT + 4 * (G & 1)
            a(f'v_mfma_f32_16x16x32_bf16 v[{d}:{d+3}], {sl(2*G)}, v[{Q}:{Q+3}], 0')
            a(f'v_mfma_f32_16x16x32_bf16 v[{d}:{d+3}], {sl(2*G+1)}, v[{Q+4}:{Q+7}], v[{d}:{d+3}]')
            if G: kdpp(G - 1)
        return fn
    for G in range(32): chunks.append((2 * G + 1, [2 * G, 2 * G + 1], kchunk(G)))
    def sm0():
        kdpp(31)
        xgroup(a, 'v_max_f32', 4, 5)
        a('v_mul_f32 v6, s83, v4\nv_mov_b32 v7, 0')
        stamp(a, P, 'Kdone')
    chunks.append((63, [], sm0))
    def sm(k):
        def fn():
            for g in range(8 * k, 8 * k + 8): a(f'v_fma_f32 v{S+g}, v{S+g}, s83, -v6')
            for g in range(8 * k, 8 * k + 8): a(f'v_exp_f32 v{S+g}, v{S+g}')
            for g in range(8 * k, 8 * k + 8): a(f'v_add_f32 v7, v7, v{S+g}')
            for i in range(4 * k, 4 * k + 4): a(f'v_cvt_pk_bf16_f32 v{S+i}, v{S+2*i}, v{S+2*i+1}')
        return fn
    for k in range(4): chunks.append((63, [], sm(k)))
    def sm_end():
        xgroup(a, 'v_add_f32', 7, 5)
        a(f'v_mov_b32 v5, v7\nv_bfe_u32 v3, v0, 2, 1\nv_lshlrev_b32 v3, 6, v3\ns_lshl_b32 s37, s30, 3\ns_add_u32 s37, s37, {L_ML}\nv_add_u32 v3, s37, v3')
        a('s_mov_b64 exec, 0x11\nds_write_b64 v3, v[4:5]\ns_mov_b64 exec, -1')
    chunks.append((63, [], sm_end))
    AT = [32, 36]; PT = [40, 44, 8, 12]; ACC = DT
    late_ops = []; extra = [0]
    cnt = [0, 0]
    def vchunk(T, e, r):
        def fn():
            A = AT[cnt[0] & 1]; cnt[0] += 1
            mk = 64 + 2 * (4 * e + r)
            for p in range(4): a(f'v_cndmask_b32 v{A+p}, 0, v{S+4*T+p}, s[{mk}:{mk+1}]')
            for jj in range(2):
                j = 4 * jj + r; m, hh = j >> 1, j & 1
                B = PT[cnt[1] & 3]; cnt[1] += 1
                for p in range(4):
                    ev = vidx(T, 2 * p, e); od = vidx(T, 2 * p + 1, e)
                    a(f'v_perm_b32 v{B+p}, v{slot(od)+m}, v{slot(ev)+m}, s{80+hh}')
                c = '0' if (T == 0 and e == 0 and r == 0) else f'v[{ACC+4*jj}:{ACC+4*jj+3}]'
                a(f'v_mfma_f32_16x16x32_bf16 v[{ACC+4*jj}:{ACC+4*jj+3}], v[{A}:{A+3}], v[{B}:{B+3}], {c}')
        return fn
    for T in range(4):
        for e in range(2):
            for r in range(4):
                if lt and T == 3 and e == 1: continue
                fr = [vidx(T, g, e) for g in range(8)] if r == 3 else []
                chunks.append((vidx(T, 7, e), fr, vchunk(T, e, r)))
    if lt:
        FRG = lambda j: slot(112 + j)
        AM = [32, 36, 40, 44]
        def pre(p):
            def fn2():
                if p == 0:
                    for r in range(4):
                        for q in range(4): a(f'v_cndmask_b32 v{AM[r]+q}, 0, v{S+12+q}, s[{72+2*r}:{73+2*r}]')
                for j in range(8):
                    jj = (j & 1) * 4 + (j >> 1); m, hh = jj >> 1, jj & 1
                    a(f'v_perm_b32 v{FRG(jj)+p}, v{slot(vidx(3, 2*p+1, 1))+m}, v{slot(vidx(3, 2*p, 1))+m}, s{80+hh}')
                if p == 3:
                    for j in range(8):
                        jj = (j & 1) * 4 + (j >> 1); r = jj & 3; d = ACC + 4 * (jj >> 2)
                        a(f'v_mfma_f32_16x16x32_bf16 v[{d}:{d+3}], v[{AM[r]}:{AM[r]+3}], v[{FRG(jj)}:{FRG(jj)+3}], v[{d}:{d+3}]')
                        if P['late'] == 2 and j in (1, 3, 5): a(late_ops[j // 2])
                if P['late'] == 3 and p == 2:
                    for x in late_ops: a(x)
                    extra[0] = 3
            return fn2
        for p in range(4): chunks.append((vidx(3, 2 * p + 1, 1), [], pre(p)))
    freed = set(); ci = 0; landed = -1
    XR = RING + 4 * R
    if P['podd'] or P['peven']:
        a(f's_getreg_b32 s62, hwreg(HW_REG_XCC_ID)\ns_bitcmp1_b32 s62, 0\ns_mov_b32 s62, {P["peven"]}\ns_cselect_b32 s62, {P["podd"]}, s62')
    if P['ctl']: a(f's_mov_b32 s62, 0\nv_mov_b32 v{XR+3}, {L_PROG}')
    def run_chunk(issued):
        nonlocal ci, landed
        nd, fr, fn = chunks[ci]; ci += 1
        if nd > landed:
            a(f's_waitcnt vmcnt({issued-1-nd})'); landed = nd
        if not (P['nocomp'] and fr is not None and fn.__name__ == 'fn' and ci <= len(chunks) - 8): fn()
        freed.update(fr)
    for i in range(R, 128):
        while (i - R) not in freed: run_chunk(i)
        Di = P['Dend'] if (P['Dend'] and i >= 128 - P['nend']) else D
        pat = P['kpat'] if i < 64 else P['vpat']
        if pat and not (P['Dend'] and i >= 128 - P['nend']): Di = int(pat[i % len(pat)])
        cks = [int(x) for x in P['cks'].split()] if P['ctl'] else []
        if cks and i > cks[0] + D + 2:
            if i % 4 == 1: a(f's_waitcnt lgkmcnt(0)\nv_readfirstlane_b32 s62, v{XR+1}')
            a(f's_waitcnt vmcnt({Di})\ns_bitcmp1_b32 s62, {i % 8}\ns_cbranch_scc1 L_b{i}\ns_waitcnt vmcnt({Di-1})\nL_b{i}:')
            landed = max(landed, i - Di - 1)
        elif (P['podd'] or P['peven']) and i >= P['p0'] and ((P['podd'] | P['peven']) >> (i % 16) & 1):
            if (P['podd'] & P['peven']) >> (i % 16) & 1: a(f's_waitcnt vmcnt({Di})')
            else: a(f's_waitcnt vmcnt({Di})\ns_bitcmp1_b32 s62, {i % 16}\ns_cbranch_scc1 L_b{i}\ns_waitcnt vmcnt({Di-1})\nL_b{i}:')
            landed = max(landed, i - Di - 1)
        elif i - Di > landed:
            a(f's_waitcnt vmcnt({Di-1})'); landed = i - Di
        issue(i)
        if cks and i >= cks[0] and i % 4 == 0 and i < 124: a(f'ds_read_b32 v{XR+1}, v{XR+3} offset:4')
        if (i - D) in cks:
            a(f's_cmp_lg_u32 s30, 0\ns_cbranch_scc1 L_np{i}\nv_mov_b32 v{XR}, {cks.index(i - D) + 1}\nds_write_b32 v{XR+3}, v{XR}\nL_np{i}:')
        if i == 44 + D: stamp(a, P, 's44')
        if i == 96 + D: stamp(a, P, 's96')
        n = 0
        while ci < len(chunks) and chunks[ci][0] <= landed and n < P['budget']:
            run_chunk(i + 1); n += 1
    def tail_addr():
        a(f'v_lshrrev_b32 v3, 5, v0\nv_lshlrev_b32 v3, 9, v3\nv_bfe_u32 v4, v0, 4, 1\nv_lshl_add_u32 v3, v4, 10, v3')
        a(f'v_and_b32 v4, 15, v0\nv_lshl_add_u32 v3, v4, 5, v3\ns_lshl_b32 s37, s30, 11\ns_add_u32 s37, s37, {L_PART}\nv_add_u32 v3, s37, v3')
        a(f's_lshl_b32 s37, s30, 8\ns_add_u32 s37, s37, {L_PART}\nv_lshl_add_u32 v4, v0, 2, s37')
        a(f's_lshr_b32 s37, s30, 2\ns_lshl_b32 s37, s37, 5\ns_add_u32 s37, s37, {L_F}\nv_mov_b32 v5, s37')
        if P['ov']:
            a(f'v_lshlrev_b32 v6, 2, v0\ns_lshl_b32 s60, s33, 16\ns_and_b32 s37, s34, 3\ns_lshl_b32 s37, s37, 14\ns_add_u32 s60, s60, s37\ns_lshl_b32 s37, s31, 11\ns_add_u32 s60, s60, s37')
            a(f's_lshl_b32 s37, s30, 8\ns_add_u32 s60, s60, s37\ns_add_u32 s60, s60, {QBUF}\ns_xor_b32 s85, s85, 0x55')
        else:
            a(f'v_lshlrev_b32 v6, 2, v0\ns_lshl_b32 s60, s38, 11\ns_lshl_b32 s37, s30, 8\ns_add_u32 s60, s60, s37\ns_add_u32 s60, s60, {OBUF}')
        a(f'v_lshrrev_b32 v1, 4, v0\nv_bfe_u32 v7, v0, 2, 2\nv_and_b32 v8, 3, v0')
        if P['late']:
            a(f'v_lshl_add_u32 v7, v1, 2, v7\nv_bfe_u32 v2, v7, 1, 2\nv_xor_b32 v2, s30, v2\nv_and_b32 v2, 3, v2\nv_lshlrev_b32 v7, 7, v7\nv_lshl_add_u32 v7, v8, 3, v7\nv_lshl_add_u32 v7, v2, 5, v7\nv_add_u32 v7, {L_WO}, v7')
        else:
            a(f'v_lshl_add_u32 v7, v1, 2, v7\nv_lshlrev_b32 v7, 7, v7\nv_lshl_add_u32 v7, v8, 3, v7\ns_lshl_b32 s37, s30, 5\ns_add_u32 s37, s37, {L_WO}\nv_add_u32 v7, s37, v7')
        a(f'v_and_b32 v2, 15, v0\nv_lshlrev_b32 v2, 4, v2\nv_lshl_add_u32 v2, v1, {14 if P["ov"] else 11}, v2')
        a(f's_lshl_b32 s61, s30, 16\ns_lshl_b32 s37, s31, {11 if P["ov"] else 13}\ns_add_u32 s61, s61, s37\ns_and_b32 s37, s32, 3\ns_lshl_b32 s37, s37, 9\ns_add_u32 s61, s61, s37\ns_add_u32 s61, s61, {QBUF if P["ov"] else OBUF}')
    nlate = 0
    while lt and ci < len(chunks) - 4: run_chunk(128)
    if P['late']:
        assert lt
        a('v_lshrrev_b32 v3, 3, v0\nv_mul_u32_u24 v4, 896, v3\nv_and_b32 v3, 6, v3\nv_xor_b32 v3, v3, v0\nv_and_b32 v3, 7, v3\nv_lshl_add_u32 v4, v3, 4, v4')
        a(f'v_mov_b32 v{XR+3}, v4')
        a('s_and_b32 s36, s32, 3\ns_lshl_b32 s37, s31, 2\ns_add_u32 s36, s36, s37\ns_lshr_b32 s39, s32, 2\ns_lshl_b32 s39, s39, 7')
        a(f's_mul_i32 s37, s36, 114688\ns_add_u32 s37, s37, s39\ns_cmp_lt_u32 s32, 28\ns_cselect_b32 s37, s37, 0\ns_cselect_b32 s62, {127*896+128}, 0')
        srd(a, 56, 12, 's37', 's62')
        a(f's_mul_i32 s37, s36, 50176\ns_add_u32 s37, s37, s39\ns_cmp_lt_u32 s32, 28\ns_cselect_b32 s37, s37, 0\ns_cselect_b32 s62, {55*896+128}, 0')
        srd(a, 48, 20, 's37', 's62')
        a(f's_mul_i32 s64, s30, {16*896}\ns_add_u32 s65, s64, {8*896}\ns_lshr_b32 s66, s64, 1\ns_lshl_b32 s67, s30, 11\ns_add_u32 s67, s67, {L_WO}\ns_lshl_b32 s68, s30, 10\ns_add_u32 s68, s68, {L_W2}')
        late_ops.extend([f's_mov_b32 m0, s67\nbuffer_load_dwordx4 v{XR+3}, s[56:59], s64 offen {P["opol"]} lds',
                         f's_add_u32 m0, s67, 1024\nbuffer_load_dwordx4 v{XR+3}, s[56:59], s65 offen {P["opol"]} lds',
                         f's_mov_b32 m0, s68\nbuffer_load_dwordx4 v{XR+3}, s[48:51], s66 offen {P["mpol"]} lds'])
        if P['late'] == 1:
            for x in late_ops: a(x)
            nlate = 3
    tail_addr()
    a(f'v_lshl_add_u32 v{XR+2}, v8, 2, v1\nv_lshlrev_b32 v{XR+2}, 1, v{XR+2}\ns_lshl_b32 s39, s32, 5')
    srd(a, 44, 22, None, 896)
    a(f'buffer_load_ushort v{XR}, v{XR+2}, s[44:47], s39 offen')
    srd(a, 40, 4, None, 7168)
    a(f's_mul_i32 s37, s31, 896\ns_add_u32 s63, s37, s39\nbuffer_load_ushort v{XR+1}, v{XR+2}, s[40:43], s63 offen')
    srd(a, 44, 24, None, 7168)
    while ci < len(chunks): run_chunk(130 + nlate + extra[0])
    stamp(a, P, 'Vlast')
    a('L_tail:')
    a(f'ds_write_b128 v3, v[{ACC}:{ACC+3}]\nds_write_b128 v3, v[{ACC+4}:{ACC+7}] offset:16\ns_waitcnt lgkmcnt(0)\ns_barrier')
    stamp(a, P, 'B2')
    for w in range(4): a(f'ds_read2st64_b32 v[{16+2*w}:{17+2*w}], v4 offset0:{16*w} offset1:{16*w+8}')
    a(f'ds_read_b128 v[24:27], v5\nds_read_b128 v[28:31], v5 offset:16\ns_waitcnt lgkmcnt(0)')
    a('v_mul_f32 v32, v16, v24\nv_mul_f32 v33, v17, v25')
    for w in range(2, 8): a(f'v_fmac_f32 v{32+(w&1)}, v{16+w}, v{24+w}')
    a('v_mov_b32 v9, s85\nv_add_f32 v32, v32, v33\nv_bfi_b32 v32, s82, v9, v32')
    hand_store(a, 'buffer_store_dword v32, v6, s[52:55], s60 offen')
    stamp(a, P, 'ost')
    a('s_cmp_lt_u32 s32, 28\ns_cbranch_scc0 L_end')
    GL = 'buffer_load_dwordx4 v[16:19], v2, s[52:55], s61 offen sc1\nbuffer_load_dwordx4 v[20:23], v2, s[52:55], s61 offen offset:256 sc1'
    a(GL)
    BF, AF, DR = 56, 72, 88
    HA, B2F = 92, 100
    if P['late']:
        a(f'v_and_b32 v10, 7, v0\nv_mul_u32_u24 v10, {HSTR}, v10\nv_lshl_add_u32 v10, v1, 3, v10\nv_add_u32 v10, {L_H}, v10')
        for k in range(2): a(f'ds_read_b64 v[{HA+4*k}:{HA+4*k+1}], v10 offset:{k*64}\nds_read_b64 v[{HA+4*k+2}:{HA+4*k+3}], v10 offset:{k*64+32}')
    else:
        a('s_cmp_lt_u32 s30, 4\ns_cbranch_scc0 L_nofr')
        for jj in range(4):
            b = BF + 4 * jj
            a(f'ds_read_b64_tr_b16 v[{b}:{b+1}], v7 offset:{jj*4096}\nds_read_b64_tr_b16 v[{b+2}:{b+3}], v7 offset:{jj*4096+2048}')
        a(f's_lshl_b32 s37, s30, 10\ns_add_u32 s37, s37, {L_C}\nv_lshl_add_u32 v10, v0, 4, s37\nds_read_b128 v[{DR}:{DR+3}], v10')
        a('L_nofr:')
    a(f'v_and_b32 v4, 15, v0\nv_lshlrev_b32 v4, 3, v4\nv_and_b32 v5, 1, v1\nv_lshl_add_u32 v4, v5, 2, v4\nv_lshrrev_b32 v5, 1, v1\nv_lshl_add_u32 v4, v5, 7, v4')
    a(f's_mul_i32 s37, s30, {OSTR}\ns_add_u32 s37, s37, {L_O}\nv_add_u32 v5, s37, v4')
    a(f'v_and_b32 v12, 7, v0\nv_mul_u32_u24 v12, {OSTR}, v12\nv_lshl_add_u32 v12, v1, 3, v12\nv_add_u32 v12, {L_O}, v12')
    a(f's_and_b32 s60, s32, 28\ns_add_u32 s60, s60, s30\ns_lshl_b32 s60, s60, 5\ns_lshl_b32 s37, s31, 2\ns_add_u32 s60, s60, s37\ns_and_b32 s37, s32, 3\ns_add_u32 s60, s60, s37')
    a(f's_lshl_b32 s60, s60, 9\ns_add_u32 s60, s60, {PBUF}\ns_mov_b32 s86, {P["spin"]}')
    a('s_branch L_gchk')
    a('L_gpoll:')
    if P['gsl']: a(f's_sleep {P["gsl"]}')
    a(GL)
    a('L_gchk:')
    a('s_waitcnt vmcnt(0)')
    tag_check(a, range(16, 24), 10, 11, 4)
    a('s_sub_u32 s86, s86, 1\ns_cbranch_scc1 L_gdone\ns_cbranch_vccnz L_gpoll')
    a('L_gdone:')
    stamp(a, P, 'gok')
    for i in range(8): a(f'v_and_b32 v{16+i}, {hex(0xffffffff ^ TMASK)}, v{16+i}')
    for p in (16, 17, 20, 21): a(f'v_permlane16_swap_b32 v{p}, v{p+2}')
    for p in (16, 17, 20, 21): a(f'v_add_f32 v{p}, v{p}, v{p+2}')
    a('v_permlane32_swap_b32 v16, v20\nv_permlane32_swap_b32 v17, v21\nv_add_f32 v16, v16, v20\nv_add_f32 v17, v17, v21')
    a('v_cvt_pk_bf16_f32 v16, v16, v17\nds_write_b32 v5, v16\ns_waitcnt lgkmcnt(0)\ns_barrier')
    stamp(a, P, 'B3')
    a('s_cmp_lt_u32 s30, 4\ns_cbranch_scc0 L_fin')
    if P['late']:
        d2 = L_W2 - L_WO
        for k in range(2): a(f'ds_read_b64_tr_b16 v[{B2F+4*k}:{B2F+4*k+1}], v7 offset:{d2+k*4096}\nds_read_b64_tr_b16 v[{B2F+4*k+2}:{B2F+4*k+3}], v7 offset:{d2+k*4096+2048}')
        for jj in range(4):
            b = BF + 4 * jj
            a(f'ds_read_b64 v[{AF+4*jj}:{AF+4*jj+1}], v12 offset:{jj*64}\nds_read_b64 v[{AF+4*jj+2}:{AF+4*jj+3}], v12 offset:{jj*64+32}')
            a(f'ds_read_b64_tr_b16 v[{b}:{b+1}], v7 offset:{jj*4096}\nds_read_b64_tr_b16 v[{b+2}:{b+3}], v7 offset:{jj*4096+2048}')
            if jj == 1:
                for k in range(2):
                    a(f's_waitcnt lgkmcnt({10-2*k})')
                    a(f'v_mfma_f32_16x16x32_bf16 v[{DR}:{DR+3}], v[{HA+4*k}:{HA+4*k+3}], v[{B2F+4*k}:{B2F+4*k+3}], ' + ('0' if k == 0 else f'v[{DR}:{DR+3}]'))
        for jj in range(4):
            a(f's_waitcnt lgkmcnt({12-4*jj})')
            a(f'v_mfma_f32_16x16x32_bf16 v[{DR}:{DR+3}], v[{AF+4*jj}:{AF+4*jj+3}], v[{BF+4*jj}:{BF+4*jj+3}], v[{DR}:{DR+3}]')
    else:
        for jj in range(4): a(f'ds_read_b64 v[{AF+4*jj}:{AF+4*jj+1}], v12 offset:{jj*64}\nds_read_b64 v[{AF+4*jj+2}:{AF+4*jj+3}], v12 offset:{jj*64+32}')
        for jj in range(4):
            a(f's_waitcnt lgkmcnt({6-2*jj})')
            a(f'v_mfma_f32_16x16x32_bf16 v[{DR}:{DR+3}], v[{AF+4*jj}:{AF+4*jj+3}], v[{BF+4*jj}:{BF+4*jj+3}], v[{DR}:{DR+3}]')
    a(f'v_permlane32_swap_b32 v{DR}, v{DR+1}\nv_permlane32_swap_b32 v{DR+2}, v{DR+3}')
    a(f'v_bfi_b32 v{DR}, s82, v9, v{DR}\nv_bfi_b32 v{DR+2}, s82, v9, v{DR+2}')
    a(f'buffer_store_dword v{DR}, v6, s[52:55], s60 offen {P["ppol"]}\nbuffer_store_dword v{DR+2}, v6, s[52:55], s60 offen offset:256 {P["ppol"]}')
    stamp(a, P, 'pst')
    if P['diag']:
        a('s_cmp_lg_u32 s30, 0\ns_cbranch_scc1 L_end')
        stamp_store(a, P, stamp_items(P, [x for x in S_PTS if x not in ('g2ok', 'end', 'fst', 'fcnt')]), hw=True)
    a('s_endpgm')
    a('L_fin:')
    if P['wb']:
        a('s_cmp_eq_u32 s30, 5\ns_cbranch_scc0 L_nowb\ns_cmp_eq_u32 s32, 0\ns_cbranch_scc0 L_end\nbuffer_wbl2 sc1\ns_waitcnt vmcnt(0)\ns_endpgm\nL_nowb:')
    a('s_cmp_eq_u32 s30, 7\ns_cbranch_scc0 L_end')
    a('v_and_b32 v8, 3, v0')
    a(f'v_lshrrev_b32 v2, 2, v0\nv_lshlrev_b32 v2, 9, v2\nv_lshl_add_u32 v2, v8, 4, v2\nv_add_u32 v3, 8192, v2\nv_mov_b32 v7, 0x200')
    a(f's_lshl_b32 s61, s32, 14\ns_and_b32 s37, s31, 3\ns_lshl_b32 s37, s37, 7\ns_add_u32 s61, s61, s37\ns_lshr_b32 s37, s31, 2\ns_lshl_b32 s37, s37, 6\ns_add_u32 s61, s61, s37\ns_add_u32 s61, s61, {PBUF}\ns_mov_b32 s86, {P["spin"]}')
    a(f'v_lshlrev_b32 v24, 16, v{XR}\nv_lshlrev_b32 v25, 16, v{XR+1}\nv_add_f32 v24, v24, v25')
    stamp(a, P, 'fst')
    a('L_fpoll:')
    a(f'buffer_load_dwordx4 v[16:19], v2, s[52:55], s61 offen {P["lpol"]}\nbuffer_load_dwordx4 v[20:23], v3, s[52:55], s61 offen {P["lpol"]}')
    a('s_waitcnt vmcnt(0)')
    tag_check(a, range(16, 24), 8, 9, 10)
    a('s_sub_u32 s86, s86, 1\ns_cbranch_scc1 L_fdone\ns_cbranch_vccz L_fdone')
    if P['fthr']:
        a(f's_bcnt1_i32_b64 s37, vcc\ns_cmp_lt_u32 s37, {P["fthr"]}\ns_cbranch_scc1 L_fpoll\ns_sleep {P["fsl2"]}')
    if P['fsl']: a(f's_sleep {P["fsl"]}')
    a('s_branch L_fpoll')
    a('L_fdone:')
    stamp(a, P, 'g2ok')
    if P['diag'] and 'fcnt' in pts(P):
        r = 88 + 2 * pts(P).index('fcnt'); r0 = 88 + 2 * pts(P).index('fst')
        a(f's_sub_u32 s37, {P["spin"]}, s86\ns_mul_i32 s37, s37, 100\ns_add_u32 s{r}, s{r0}, s37\ns_addc_u32 s{r+1}, s{r0+1}, 0')
    tag_strip(a, range(16, 24), 7)
    for i in range(4): a(f'v_add_f32 v{16+i}, v{16+i}, v{20+i}')
    a('v_permlane16_swap_b32 v16, v17\nv_permlane16_swap_b32 v18, v19\nv_add_f32 v16, v16, v17\nv_add_f32 v18, v18, v19')
    a('v_permlane32_swap_b32 v16, v18\nv_add_f32 v16, v16, v18')
    a('v_add_f32_dpp v16, v16, v16 row_ror:4 row_mask:0xf bank_mask:0xf')
    a('v_add_f32_dpp v16, v16, v16 row_ror:8 row_mask:0xf bank_mask:0xf')
    a('v_add_f32 v16, v16, v24\nv_cvt_pk_bf16_f32 v16, v16, v16')
    a('s_mov_b32 exec_lo, 0x000f000f\ns_mov_b32 exec_hi, 0x000f000f')
    a(f'buffer_store_short v16, v{XR+2}, s[44:47], s63 offen')
    a('s_cmp_lg_u32 s2, 0\ns_cbranch_scc1 L_noep')
    a('v_mov_b32 v8, 0\nv_mov_b32 v9, s84\ns_mov_b64 exec, 1\nbuffer_store_dword v9, v8, s[52:55], 0 offen sc1')
    a('L_noep:')
    if P['hold']:
        a(f'L_hold:\ns_memrealtime s[96:97]\ns_waitcnt lgkmcnt(0)\ns_sub_u32 s96, s96, s98\ns_cmp_lt_u32 s96, {P["hold"]}\ns_cbranch_scc1 L_hold')
    if P['diag']:
        a('s_mov_b64 exec, -1\ns_waitcnt vmcnt(0)')
        stamp(a, P, 'end')
        stamp_store(a, P, stamp_items(P, ['g2ok', 'end', 'fst', 'fcnt']))
    a('s_endpgm')

def dma_loop(a, lab, n, depth, vaddr, sstep, lds0, pol):
    a(f's_mov_b32 s36, 0\ns_mov_b32 s62, {lds0}\ns_mov_b32 s63, {n}')
    a(f'{lab}:')
    a(f's_mov_b32 m0, s62\ns_waitcnt vmcnt({depth-1})')
    a(f'buffer_load_dwordx4 v{vaddr}, s[56:59], s36 offen {pol} lds')
    a(f's_add_u32 s36, s36, {sstep}\ns_add_u32 s62, s62, 1024\ns_sub_u32 s63, s63, 1\ns_cmp_lg_u32 s63, 0\ns_cbranch_scc1 {lab}')

XF, FF, TT = 16, 44, 100
def x_addr(a):
    a('v_and_b32 v10, 15, v0\nv_lshrrev_b32 v9, 4, v0\nv_and_b32 v8, 7, v0\nv_mul_u32_u24 v8, 896, v8')
    a('v_bfe_u32 v3, v0, 3, 1\nv_mul_u32_u24 v3, 448, v3\nv_lshl_add_u32 v8, v9, 4, v8\nv_add_u32 v8, v8, v3')
def x_load(a, P):
    srd(a, 48, 4, None, 7168)
    for ks in range(7): a(f'buffer_load_dwordx4 v[{XF+4*ks}:{XF+4*ks+3}], v8, s[48:51], 0 offen offset:{ks*64} {P["xpol"]}')
def tag_check(a, regs, t0, t1, acc, mask=TMASK):
    for i in range(0, len(regs), 2):
        a(f'v_xor_b32 v{t0}, s85, v{regs[i]}\nv_xor_b32 v{t1}, s85, v{regs[i+1]}')
        a(f'v_or_b32 v{acc}, v{t0}, v{t1}' if i == 0 else f'v_or3_b32 v{acc}, v{acc}, v{t0}, v{t1}')
    a(f'v_and_b32 v{acc}, {mask}, v{acc}\nv_cmp_ne_u32 vcc, 0, v{acc}')
def tag_strip(a, regs, half, ms=82):
    for r in regs: a(f'v_bfi_b32 v{r}, s{ms}, v{half}, v{r}')
_st = [0]; HPOL = ['']
def hand_store(a, ins):
    _st[0] += 1; n = _st[0]
    a(f's_cmp_eq_u32 s87, 0\ns_cbranch_scc1 L_wt{n}\n{ins} {HPOL[0]}\ns_branch L_we{n}\nL_wt{n}:\n{ins} sc1\nL_we{n}:')

def unit_gemm(a, lds, va, st_v, st_s, tagv, ms, before_pub=None):
    TA, DQ = 44, 108
    seq = [(t, ks) for t in range(4) for ks in range(4)]
    def rd(n):
        t, ks = seq[n]; r = TA + 4 * n; o = lds + ks * 4096 + t * 32
        a(f'ds_read_b64_tr_b16 v[{r}:{r+1}], v{va} offset:{o}\nds_read_b64_tr_b16 v[{r+2}:{r+3}], v{va} offset:{o+512}')
    def pub(t):
        for r in range(4): a(f'v_bfi_b32 v{DQ+4*t+r}, s{ms}, v{tagv}, v{DQ+4*t+r}')
        hand_store(a, f'buffer_store_dwordx4 v[{DQ+4*t}:{DQ+4*t+3}], v{st_v}, s[52:55], s{st_s} offen offset:{t*64}')
    for n in range(6): rd(n)
    for n, (t, ks) in enumerate(seq):
        if n + 6 < 16: rd(n + 6)
        a(f's_waitcnt lgkmcnt({2*min(6, 15-n)})')
        r = TA + 4 * n; d = DQ + 4 * t
        c = '0' if ks == 0 else f'v[{d}:{d+3}]'
        a(f'v_mfma_f32_16x16x32_bf16 v[{d}:{d+3}], v[{r}:{r+3}], v[{XF+4*ks}:{XF+4*ks+3}], {c}')
        if before_pub is None and n in (7, 11, 15): pub(n // 4 - 1)
    if before_pub is not None:
        before_pub()
        for t in range(3): pub(t)
    pub(3)

def helper(a, P):
    a('L_helper:')
    stamp(a, P, 'hstart')
    if P['cpf']:
        a('s_getpc_b64 s[56:57]\ns_mov_b32 s58, 4352\ns_mov_b32 s59, 0x20000\nv_lshlrev_b32 v1, 6, v0')
        a('buffer_load_dword v15, v1, s[56:59], 0 offen offset:256')
    x_addr(a)
    a('v_lshrrev_b32 v4, 3, v0\nv_lshlrev_b32 v1, 13, v4\nv_and_b32 v2, 7, v0\nv_lshl_add_u32 v1, v2, 4, v1')
    a('v_mul_u32_u24 v4, 3584, v4\nv_lshl_add_u32 v4, v2, 4, v4')
    a('s_and_b32 s63, s32, 1\ns_bfe_u32 s62, s32, 0x10001\ns_mul_i32 s64, s62, 224\ns_lshl_b32 s36, s63, 7\ns_add_u32 s64, s64, s36')
    a('s_lshl_b32 s65, s63, 5\ns_sub_u32 s65, 127, s65\ns_lshr_b32 s66, s32, 2')
    a('s_lshl_b32 s37, s64, 13\ns_lshl_b32 s39, s31, 3\ns_add_u32 s39, s39, s66\ns_lshl_b32 s39, s39, 7\ns_add_u32 s37, s37, s39')
    a('s_lshl_b32 s39, s65, 13\ns_add_u32 s39, s39, 128')
    a('s_lshl_b32 s60, s63, 8\ns_mul_i32 s61, s63, 192\ns_sub_u32 s61, 192, s61')
    a('s_waitcnt lgkmcnt(0)')
    stamp(a, P, 'hkarg')
    a('s_load_dword s84, s[28:29], 0')
    srd(a, 48, 4, None, 7168)
    for ks in range(7):
        if ks < 3: a(f'buffer_load_dwordx4 v[{XF+4*ks}:{XF+4*ks+3}], v8, s[48:51], s60 offen offset:{ks*64} {P["xpol"]}')
        else: a(f'buffer_load_dwordx4 v[{XF+4*ks}:{XF+4*ks+3}], v8, s[48:51], s61 offen offset:{(ks-3)*64} {P["xpol"]}')
    if P['abl'] & 2: a('s_mov_b32 s39, 0')
    srd(a, 56, 10, 's37', 's39')
    for i in range(16):
        a(f's_mov_b32 m0, {L_WQ+i*1024}\ns_mov_b32 s36, {i*65536}')
        a(f'buffer_load_dwordx4 v1, s[56:59], s36 offen {P["wpol"]} lds')
    stamp(a, P, 'wqiss')
    a(f'v_mov_b32 v126, -1\nv_mov_b32 v127, -1\nv_lshlrev_b32 v3, 3, v0\nv_add_u32 v3, {L_ML}, v3\nv_mov_b32 v5, {L_TAG}')
    a('s_mov_b64 exec, 0xffff\nds_write_b64 v3, v[126:127]\nds_write_b64 v5, v[126:127]\ns_mov_b64 exec, -1')
    srd(a, 52, 28, None, WS_USED)
    a(f'v_lshlrev_b32 v2, 4, v0\ns_getreg_b32 s68, hwreg(HW_REG_XCC_ID)\ns_and_b32 s68, s68, 15\ns_lshl_b32 s68, s68, 12')
    a(f's_lshl_b32 s69, s31, 12\ns_add_u32 s69, s69, {XBUF}\ns_lshl_b32 s37, s32, 7\ns_add_u32 s37, s37, s69\ns_waitcnt lgkmcnt(0)')
    a(f's_add_u32 s84, s84, 0x9E3779B9\ns_and_b32 s85, s84, {TMASK}\ns_or_b32 s68, s68, s85\nv_mov_b32 v6, s85\nv_mov_b32 v124, s68')
    a('s_mov_b64 exec, 1\nbuffer_store_dword v124, v2, s[52:55], s37 offen sc1\ns_mov_b64 exec, -1')
    stamp(a, P, 'xst')
    a('s_barrier')
    a('v_and_b32 v125, 31, v0\nv_lshlrev_b32 v125, 7, v125')
    a(f'v_mov_b32 v14, {hex(OOB)}\ns_mov_b32 s82, {TMASK}\ns_mov_b32 s81, {QMASK}\ns_mov_b32 s83, {hex(f2u(C_EXP))}')
    a(f'v_bfe_u32 v3, v0, 2, 2\nv_lshl_add_u32 v12, v9, 3, v3\nv_lshlrev_b32 v12, 7, v12\nv_and_b32 v5, 3, v0\nv_lshl_add_u32 v12, v5, 3, v12')
    a(f'v_and_b32 v5, 7, v0\nv_lshlrev_b32 v13, 16, v5\nv_lshl_add_u32 v13, v9, 4, v13\nv_bfe_u32 v3, v0, 3, 1\nv_cmp_eq_u32 vcc, s62, v3')
    a(f'v_lshlrev_b32 v5, 12, v5\nv_lshl_add_u32 v5, v9, 4, v5\nv_cndmask_b32 v13, v14, v13, vcc\nv_cndmask_b32 v5, v14, v5, vcc')
    a(f's_and_b32 s37, s32, 3\ns_lshl_b32 s60, s37, 14\ns_lshl_b32 s39, s31, 11\ns_add_u32 s60, s60, s39\ns_lshl_b32 s39, s66, 8\ns_add_u32 s60, s60, s39\ns_add_u32 s60, s60, {QBUF}')
    a(f's_lshl_b32 s70, s37, 10\ns_and_b32 s39, s66, 3\ns_lshl_b32 s39, s39, 8\ns_add_u32 s70, s70, s39\ns_lshl_b32 s39, s31, 15\ns_add_u32 s70, s70, s39\ns_add_u32 s70, s70, {HBUF}')
    a('s_waitcnt vmcnt(17)')
    stamp(a, P, 'xland')
    layernorm(a, XF, FF, TT)
    stamp(a, P, 'lndone')
    a('s_mov_b64 exec, 0xffffffff\nbuffer_load_dword v124, v125, s[52:55], s69 offen sc1\ns_mov_b64 exec, -1')
    a('s_waitcnt vmcnt(2) lgkmcnt(0)')
    stamp(a, P, 'wqland')
    def loc_check():
        a('s_waitcnt vmcnt(0)\nv_cmp_ne_u32 vcc, s68, v124\ns_cmp_eq_u32 vcc_lo, 0')
        for k in range(P['xretry']):
            a('s_cbranch_scc1 L_xok\ns_mov_b64 exec, 0xffffffff\nbuffer_load_dword v124, v125, s[52:55], s69 offen sc1\ns_mov_b64 exec, -1')
            a('s_waitcnt vmcnt(0)\nv_cmp_ne_u32 vcc, s68, v124\ns_cmp_eq_u32 vcc_lo, 0')
        a('L_xok:')
        a('s_cselect_b32 s87, 1, 0' if P['loc'] else 's_mov_b32 s87, 0')
        stamp(a, P, 'xid')
        if P['diag'] and 'locv' in pts(P):
            a('s_cmp_lg_u32 s87, 0\ns_cbranch_scc1 L_locv'); stamp(a, P, 'locv'); a('L_locv:')
    if P['abl'] & 4: loc_check(); a('s_branch L_qdone')
    unit_gemm(a, L_WQ, 12, 13, 60, 6, 81, None if P['abl'] & 4 else loc_check)
    stamp(a, P, 'qpub')
    a(f's_lshl_b32 s61, s33, 16\ns_lshl_b32 s37, s31, 11\ns_add_u32 s61, s61, s37\ns_add_u32 s61, s61, {QBUF}')
    a(f's_mov_b32 s86, {P["spin"]}\nv_mov_b32 v7, 0x80')
    a('L_qpoll:')
    a(f's_sleep {P["qsl"]}')
    a('s_mov_b32 s36, s61')
    for kq in range(4):
        for m in range(2): a(f'buffer_load_dwordx4 v[{44+8*kq+4*m}:{47+8*kq+4*m}], v2, s[52:55], s36 offen offset:{m*1024} sc1')
        if kq < 3: a('s_add_u32 s36, s36, 16384')
    a(f's_mov_b64 exec, 0xffffffff\nbuffer_load_dword v124, v125, s[52:55], s69 offen sc1\ns_mov_b64 exec, -1\ns_waitcnt vmcnt(0)')
    tag_check(a, range(44, 76), 100, 101, 102, QMASK)
    a('s_sub_u32 s86, s86, 1\ns_cbranch_scc1 L_qdone\ns_cbranch_vccnz L_qpoll')
    a('L_qdone:')
    stamp(a, P, 'qok')
    a('v_cmp_ne_u32 vcc, s68, v124\ns_cmp_eq_u32 vcc_lo, 0')
    a('s_cselect_b32 s87, 1, 0' if P['loc'] else 's_mov_b32 s87, 0')
    tag_strip(a, range(44, 76), 7, 81)
    for kq in range(1, 4):
        for m in range(4): a(f'v_pk_add_f32 v[{44+2*m}:{45+2*m}], v[{44+2*m}:{45+2*m}], v[{44+8*kq+2*m}:{45+8*kq+2*m}]')
    a(f'v_lshlrev_b32 v3, 3, v0\nv_add_u32 v3, {L_Q}, v3\nv_mov_b32 v13, {L_TAG}\nv_mov_b32 v100, s84\nv_mov_b32 v101, s87')
    for m in range(4): a(f'v_cvt_pk_bf16_f32 v{52+m}, v{44+2*m}, v{45+2*m}')
    a('ds_write_b64 v3, v[52:53]\nds_write_b64 v3, v[54:55] offset:512\ns_waitcnt lgkmcnt(0)\nds_write_b64 v13, v[100:101]')
    stamp(a, P, 'B1')
    if P['abl'] & 1: a('s_branch L_now')
    a('s_cmp_ge_u32 s66, 4\ns_cbranch_scc0 L_noh')
    a('s_mul_i32 s67, s31, 7\ns_lshr_b32 s67, s67, 1\ns_and_b32 s39, s66, 3\ns_add_u32 s67, s67, s39\ns_mul_i32 s37, s64, 3584\ns_lshl_b32 s39, s67, 7\ns_add_u32 s37, s37, s39')
    a('s_mul_i32 s39, s65, 3584\ns_add_u32 s39, s39, 128')
    srd(a, 56, 16, 's37', 's39')
    dma_loop(a, 'L_w1', 16, P['DH'], 4, 8 * 3584, L_W1, P['wpol'])
    layernorm(a, XF, FF, TT, 16)
    a('s_waitcnt vmcnt(0)')
    unit_gemm(a, L_W1, 12, 5, 70, 6, 82)
    a('L_noh:')
    stamp(a, P, 'hpub')
    a('s_cmp_lt_u32 s32, 28\ns_cbranch_scc0 L_now')
    a('v_lshrrev_b32 v1, 3, v0\nv_mul_u32_u24 v1, 896, v1\nv_and_b32 v3, 7, v0\nv_lshl_add_u32 v1, v3, 4, v1')
    a('s_and_b32 s64, s32, 3\ns_lshl_b32 s65, s31, 2\ns_add_u32 s65, s65, s64')
    if not P['late']:
        a(f's_mul_i32 s37, s65, 50176\ns_lshl_b32 s39, s66, 7\ns_add_u32 s37, s37, s39')
        srd(a, 56, 20, 's37', 55 * 896 + 128)
        dma_loop(a, 'L_w2', 8, P['DH'], 1, 8 * 896, L_W2, P['mpol'])
        if not P['nowo']:
            a(f's_mul_i32 s37, s65, 114688\ns_lshl_b32 s39, s66, 7\ns_add_u32 s37, s37, s39\ns_sub_u32 s39, {4096*896}, s37')
            srd(a, 56, 12, 's37', 's39')
            dma_loop(a, 'L_wo', 16, P['DH'], 1, 8 * 896, L_WO, P['opol'])
    stamp(a, P, 'wodone')
    a('v_min_u32 v3, 13, v10\nv_lshlrev_b32 v4, 12, v9\nv_lshl_add_u32 v4, v3, 4, v4\nv_lshlrev_b32 v5, 3, v3')
    a(f's_lshl_b32 s61, s31, 15\ns_mul_i32 s37, s64, 224\ns_add_u32 s61, s61, s37\ns_and_b32 s37, s31, 1\ns_lshl_b32 s37, s37, 7\ns_add_u32 s61, s61, s37\ns_add_u32 s61, s61, {HBUF}')
    srd(a, 48, 18, None, 3584)
    a(f's_mul_i32 s37, s65, 112\nbuffer_load_dwordx2 v[20:21], v5, s[48:51], s37 offen\ns_add_u32 s60, s61, 16384\ns_mov_b32 s86, {P["spin"]}\nv_mov_b32 v7, 0x200')
    a('L_hp:')
    for ps in range(2):
        for kq in range(4): a(f'buffer_load_dwordx4 v[{44+16*ps+4*kq}:{47+16*ps+4*kq}], v4, s[52:55], s{61-ps} offen offset:{kq*1024} sc1')
    a('s_waitcnt vmcnt(0)')
    tag_check(a, range(44, 76), 16, 17, 18)
    a('s_sub_u32 s86, s86, 1\ns_cbranch_scc1 L_hpd\ns_cbranch_vccz L_hpd\ns_sleep 16\ns_branch L_hp')
    a('L_hpd:')
    tag_strip(a, range(44, 76), 7)
    for ps in range(2):
        for kq in range(1, 4):
            for m in range(2): a(f'v_pk_add_f32 v[{44+16*ps+2*m}:{45+16*ps+2*m}], v[{44+16*ps+2*m}:{45+16*ps+2*m}], v[{44+16*ps+4*kq+2*m}:{45+16*ps+4*kq+2*m}]')
    unpack(a, 20, 24, 2)
    a('v_cvt_pk_bf16_f32 v16, v44, v45\nv_cvt_pk_bf16_f32 v17, v46, v47\nv_cvt_pk_bf16_f32 v18, v60, v61\nv_cvt_pk_bf16_f32 v19, v62, v63')
    unpack(a, 16, 32, 4)
    for i in range(8): a(f'v_add_f32 v{32+i}, v{32+i}, v{24+(i&3)}')
    for i in range(4): a(f'v_cvt_pk_bf16_f32 v{16+i}, v{32+2*i}, v{33+2*i}')
    unpack(a, 16, 32, 4)
    k0 = 2 * 0.7978845608028654 * math.log2(math.e); k1 = k0 * 0.044715
    a(f's_mov_b32 s62, {hex(f2u(-k1))}\nv_mov_b32 v15, {hex(f2u(-k0))}')
    for i in range(8): a(f'v_mul_f32 v{44+i}, v{32+i}, v{32+i}')
    for i in range(8): a(f'v_fma_f32 v{44+i}, v{44+i}, s62, v15')
    for i in range(8): a(f'v_mul_f32 v{44+i}, v{44+i}, v{32+i}')
    for i in range(8): a(f'v_exp_f32 v{44+i}, v{44+i}')
    for i in range(8): a(f'v_add_f32 v{44+i}, 1.0, v{44+i}')
    for i in range(8): a(f'v_rcp_f32 v{44+i}, v{44+i}')
    for i in range(8): a(f'v_mul_f32 v{32+i}, v{32+i}, v{44+i}')
    a('v_cmp_gt_u32 vcc, 14, v10')
    for i in range(4): a(f'v_cvt_pk_bf16_f32 v{16+i}, v{32+2*i}, v{33+2*i}')
    for i in range(4): a(f'v_cndmask_b32 v{16+i}, 0, v{16+i}, vcc')
    a(f'v_mul_u32_u24 v3, {HSTR}, v9\nv_lshl_add_u32 v3, v10, 3, v3\nv_add_u32 v3, {L_H}, v3')
    a(f'ds_write_b64 v3, v[16:17]\nds_write_b64 v3, v[18:19] offset:{4*HSTR}')
    if not P['late']:
        a(f'v_and_b32 v3, 7, v0\nv_mul_u32_u24 v3, {HSTR}, v3\nv_lshl_add_u32 v3, v9, 3, v3\nv_add_u32 v3, {L_H}, v3')
        a(f'v_bfe_u32 v4, v0, 2, 2\nv_lshl_add_u32 v4, v9, 2, v4\nv_lshlrev_b32 v4, 7, v4\nv_and_b32 v5, 3, v0\nv_lshl_add_u32 v4, v5, 3, v4\nv_add_u32 v4, {L_W2}, v4')
        a('s_waitcnt lgkmcnt(0)')
        for k in range(2): a(f'ds_read_b64 v[{16+4*k}:{17+4*k}], v3 offset:{k*64}\nds_read_b64 v[{18+4*k}:{19+4*k}], v3 offset:{k*64+32}')
        for t in range(4):
            for k in range(2):
                r = 44 + 8 * t + 4 * k
                a(f'ds_read_b64_tr_b16 v[{r}:{r+1}], v4 offset:{k*4096+t*32}\nds_read_b64_tr_b16 v[{r+2}:{r+3}], v4 offset:{k*4096+2048+t*32}')
        a(f'v_add_u32 v3, {L_C}, v2\ns_waitcnt lgkmcnt(0)')
        for k in range(2):
            for t in range(4):
                r = 44 + 8 * t + 4 * k; d = 76 + 4 * t
                a(f'v_mfma_f32_16x16x32_bf16 v[{d}:{d+3}], v[{16+4*k}:{19+4*k}], v[{r}:{r+3}], ' + ('0' if k == 0 else f'v[{d}:{d+3}]'))
        for t in range(4): a(f'ds_write_b128 v3, v[{76+4*t}:{79+4*t}] offset:{t*1024}')
    a('L_now:')
    stamp(a, P, 'mend')
    a(f'v_and_b32 v3, 15, v0\nv_lshlrev_b32 v3, 3, v3\nv_add_u32 v3, {L_ML}, v3\ns_mov_b32 s86, {P["spin"]*16}')
    a('L_mlw:')
    a('ds_read_b64 v[16:17], v3\ns_waitcnt lgkmcnt(0)\nv_cmp_eq_u32 vcc, -1, v16')
    a('s_sub_u32 s86, s86, 1\ns_cbranch_scc1 L_mlwd\ns_cbranch_vccz L_mlwd\ns_sleep 4\ns_branch L_mlw')
    a('L_mlwd:')
    d8 = ('quad_perm:[1,0,3,2]', 'quad_perm:[2,3,0,1]', 'row_half_mirror')
    a('v_mov_b32 v18, v16')
    for m in d8: a(f'v_max_f32_dpp v18, v18, v18 {m} row_mask:0xf bank_mask:0xf')
    a('v_sub_f32 v20, v16, v18\nv_mul_f32 v20, s83, v20\nv_exp_f32 v20, v20\nv_mul_f32 v19, v20, v17')
    for m in d8: a(f'v_add_f32_dpp v19, v19, v19 {m} row_mask:0xf bank_mask:0xf')
    tag_strip(a, (18, 19), 6)
    a(f's_lshl_b32 s37, s38, 7\ns_add_u32 s37, s37, {MLX}\ns_mov_b64 exec, 0x101')
    hand_store(a, 'buffer_store_dwordx2 v[18:19], v0, s[52:55], s37 offen')
    a('s_mov_b64 exec, -1')
    stamp(a, P, 'mlpub')
    a(f's_and_b32 s61, s38, 0xfc\ns_lshl_b32 s61, s61, 7\ns_add_u32 s61, s61, {MLX}\ns_mov_b32 s86, {P["spin"]}')
    a('v_and_b32 v3, 3, v0\nv_lshlrev_b32 v3, 7, v3\nv_and_b32 v4, 8, v0\nv_add_u32 v3, v3, v4')
    a('L_mlp2:')
    a(f's_sleep {P["msl"]}')
    a('buffer_load_dwordx2 v[24:25], v3, s[52:55], s61 offen sc1\ns_waitcnt vmcnt(0)')
    tag_check(a, (24, 25), 26, 27, 28)
    a('s_sub_u32 s86, s86, 1\ns_cbranch_scc1 L_mlp2d\ns_cbranch_vccnz L_mlp2')
    a('L_mlp2d:')
    stamp(a, P, 'mlok')
    a(f'v_and_b32 v24, 0xffff0000, v24\nv_and_b32 v25, {hex(0xffffffff ^ TMASK)}, v25\nv_mov_b32 v28, v24')
    for m in d8[:2]: a(f'v_max_f32_dpp v28, v28, v28 {m} row_mask:0xf bank_mask:0xf')
    a('v_sub_f32 v29, v24, v28\nv_mul_f32 v29, s83, v29\nv_exp_f32 v29, v29\nv_mul_f32 v29, v29, v25')
    for m in d8[:2]: a(f'v_add_f32_dpp v29, v29, v29 {m} row_mask:0xf bank_mask:0xf')
    a('v_sub_f32 v30, v16, v28\nv_mul_f32 v30, s83, v30\nv_exp_f32 v30, v30\nv_rcp_f32 v29, v29\nv_mul_f32 v30, v30, v29')
    a(f'v_lshlrev_b32 v3, 2, v0\nv_add_u32 v3, {L_F}, v3\ns_mov_b64 exec, 0xffff\nds_write_b32 v3, v30\ns_mov_b64 exec, -1')
    if P['tpf']:
        a('s_getpc_b64 s[56:57]\nL_pc2:\ns_add_u32 s56, s56, L_tail-L_pc2\ns_addc_u32 s57, s57, 0\ns_mov_b32 s58, L_end-L_tail\ns_mov_b32 s59, 0x20000')
        a('v_lshlrev_b32 v1, 6, v0\nbuffer_load_dword v15, v1, s[56:59], 0 offen')
    a('s_waitcnt vmcnt(0) lgkmcnt(0)')
    stamp(a, P, 'hend')
    stamp_store(a, P, stamp_items(P, H_PTS))
    a('s_endpgm')

def body(P):
    a = Asm(); HPOL[0] = P['hpol']
    a('s_cmp_ge_u32 s2, 256\ns_cbranch_scc1 L_end')
    a('s_load_dwordx16 s[4:19], s[0:1], 0\ns_load_dwordx8 s[20:27], s[0:1], 64\ns_load_dwordx2 s[28:29], s[0:1], 96')
    a('v_lshrrev_b32 v1, 6, v0\nv_and_b32 v0, 63, v0\nv_readfirstlane_b32 s30, v1')
    a('s_and_b32 s31, s2, 7\ns_lshr_b32 s32, s2, 3')
    if P['bmap'] == 0: a('s_lshr_b32 s33, s32, 2\ns_and_b32 s34, s32, 3')
    else: a('s_and_b32 s33, s32, 7\ns_lshr_b32 s34, s32, 3')
    a('s_lshl_b32 s37, s31, 2\ns_add_u32 s34, s34, s37\ns_lshl_b32 s38, s33, 5\ns_add_u32 s38, s38, s34')
    stamp_init(a, P)
    stamp(a, P, 'entry')
    a(f's_cmp_eq_u32 s30, {P["hw"]}\ns_cbranch_scc1 L_helper')
    streamer(a, P, lambda: helper(a, P))
    a('L_end:\ns_endpgm')
    txt, n = a.text()
    return txt, n

def vgprs(P): return max(56 + 4 * P['R'] + 4, 156)

def kernel(P):
    txt, n = body(P)
    nm = P['name']
    txt = txt.replace('L_', f'L{nm[-24:]}_') if P.get('uniq') else txt
    return txt

def final_file(P):
    ref = open(f'cdna_kernels/{NAME}.s.ref').read()
    head = ref[:ref.index('; Override launch')]
    nm = P['name']; vg = vgprs(P)
    return head + f'''; Single launch: 256 workgroups x (8 streaming waves + 1 helper wave). Generated by gen/gen.py.
; @launch grid=(256,1,1) block=({block(P)},1,1) lds={LDS_BYTES}
.amdgcn_target "amdgcn-amd-amdhsa--gfx950"
.text
.globl {nm}
.p2align 8
.type {nm},@function
{nm}:
{kernel(P)}
.section .rodata,"a"
.p2align 6
.amdhsa_kernel {nm}
  .amdhsa_next_free_vgpr {vg}
  .amdhsa_next_free_sgpr 102
  .amdhsa_accum_offset {(vg+3)//4*4}
  .amdhsa_group_segment_fixed_size 0
  .amdhsa_kernarg_size 104
  .amdhsa_user_sgpr_count 2
  .amdhsa_user_sgpr_kernarg_segment_ptr 1
  .amdhsa_system_sgpr_workgroup_id_x 1
.end_amdhsa_kernel
'''

if __name__ == '__main__':
    P = dict(DEF)
    out = f'cdna_kernels/{NAME}.s'
    for kv in sys.argv[1:]:
        k, v = kv.split('=', 1)
        if k == 'out': out = v
        else: P[k] = type(DEF[k])(v) if not isinstance(DEF[k], bool) else v == '1'
    open(out, 'w').write(final_file(P))
    print('wrote', out)
```

```python
import sys, math, struct
from asmlib import Asm

NAME = 'parallel_sum__gqa_block_cached__mixer_channel_mlp__decode'
def f2u(x): return struct.unpack('<I', struct.pack('<f', x))[0]

CBUF, XBUF, MLX, OBUF, PBUF, HBUF, QBUF, WS_USED = 0x4000, 0x8000, 0x10000, 0x20000, 0xA0000, 0x120000, 0x160000, 0x1E0000
TMASK = 0x3FF
QMASK = 0xFF
STAMP_OFF = 536870912 - (1 << 20)
L_WQ = 0; L_W1 = 16384; L_WO = 32768; L_W2 = 49152
L_PART = 57344
L_C = L_PART + 16384
OSTR = 264; HSTR = 136
L_O = L_C + 4096
L_H = L_O + 8 * OSTR
L_Q = L_H + 8 * HSTR
L_ML = L_Q + 1024
L_F = L_ML + 128
L_TAG = L_F + 64
LDS_BYTES = L_TAG + 16
assert L_Q % 16 == 0 and LDS_BYTES > 81920
OOB = 0x7F000000
C_EXP = math.log2(math.e) / 16.0

DEF = dict(R=26, D=3, D0=3, DH=8, qsl=8, msl=24, cpf=1, tpf=0, perm=0, outpol='', late=2, hpol='', hw=8, abl=0, lt=1, ov=0, podd=0, peven=0, p0=0, vt=0, wb=0, amap='13 14 9 10 12 17 18 16 15 11 1024 8 513 0 128', hpat='', swz=0, ppol='sc1', lpol='sc1', nocomp=0, nowo=0, ctl=0, cks='28 44 60 76 92 104', t1=6, t2=10, cstr=256, m1=0x55, m2=0xff, kpat='3323', vpat='3323', loc=1, n2=80, xretry=1, Dend=4, nend=8, gsl=0, fsl=0, fthr=0, fsl2=24, nornd=0, nom=0, pol='nt', wpol='nt', xpol='', opol='nt', mpol='nt', diag=False, budget=2,
           name=NAME + '_kernel', spin=1 << 16, hold=0, bmap=0, pts='start+qpub+B1+Kdone+hend+B2+end')
def block(P): return 576

def srd(a, n, base, off, size):
    if off is None:
        a(f's_mov_b32 s{n}, s{base}\ns_mov_b32 s{n+1}, s{base+1}')
    else:
        a(f's_add_u32 s{n}, s{base}, {off}\ns_addc_u32 s{n+1}, s{base+1}, 0')
    a(f's_mov_b32 s{n+2}, {size}\ns_mov_b32 s{n+3}, 0x20000')

def wave_sum(a, v, s):
    for m in ('row_shr:1', 'row_shr:2', 'row_shr:4', 'row_shr:8'):
        a(f'v_add_f32_dpp v{v}, v{v}, v{v} {m} row_mask:0xf bank_mask:0xf')
    a(f'v_add_f32_dpp v{v}, v{v}, v{v} row_bcast:15 row_mask:0xa bank_mask:0xf')
    a(f'v_add_f32_dpp v{v}, v{v}, v{v} row_bcast:31 row_mask:0xc bank_mask:0xf')
    a(f'v_readlane_b32 s{s}, v{v}, 63')

def rnd_bf16(a, v):
    a(f'v_cvt_pk_bf16_f32 v{v}, v{v}, v{v}\nv_and_b32 v{v}, 0xffff0000, v{v}')

def unpack(a, src, dst, n):
    for i in range(n):
        a(f'v_and_b32 v{dst+2*i+1}, 0xffff0000, v{src+i}\nv_lshlrev_b32 v{dst+2*i}, 16, v{src+i}')

def row_sum(a, v, t):
    a(f'v_add_f32_dpp v{v}, v{v}, v{v} row_ror:8 row_mask:0xf bank_mask:0xf')
    xgroup(a, 'v_add_f32', v, t)

def layernorm(a, X, F, T, nq=28):
    pr = lambda r: f'v[{r}:{r+1}]'
    unpack(a, X, F, 28)
    a(f'v_pk_add_f32 {pr(T)}, {pr(F)}, {pr(F+2)}\nv_pk_add_f32 {pr(T+2)}, {pr(F+4)}, {pr(F+6)}')
    for i in range(4, 28): a(f'v_pk_add_f32 {pr(T+2*(i&1))}, {pr(T+2*(i&1))}, {pr(F+2*i)}')
    a(f'v_pk_add_f32 {pr(T)}, {pr(T)}, {pr(T+2)}\nv_add_f32 v{T}, v{T}, v{T+1}')
    row_sum(a, T, T + 1)
    a(f'v_mul_f32 v{T}, {hex(f2u(-1/448))}, v{T}\nv_mov_b32 v{T+1}, v{T}')
    for i in range(28):
        d = T + 4 + 2 * (i & 1)
        a(f'v_pk_add_f32 {pr(d)}, {pr(F+2*i)}, {pr(T)}')
        if i == 0: a(f'v_pk_mul_f32 {pr(T+2)}, {pr(d)}, {pr(d)}')
        else: a(f'v_pk_fma_f32 {pr(T+2)}, {pr(d)}, {pr(d)}, {pr(T+2)}')
    a(f'v_add_f32 v{T+2}, v{T+2}, v{T+3}')
    row_sum(a, T + 2, T + 3)
    rnd_bf16(a, T)
    a(f'v_mov_b32 v{T+1}, v{T}\nv_mul_f32 v{T+2}, {hex(f2u(1/448))}, v{T+2}')
    rnd_bf16(a, T + 2)
    a(f'v_add_f32 v{T+2}, {hex(f2u(1e-5))}, v{T+2}')
    rnd_bf16(a, T + 2)
    a(f'v_sqrt_f32 v{T+2}, v{T+2}')
    for i in range(nq): a(f'v_pk_add_f32 {pr(F+2*i)}, {pr(F+2*i)}, {pr(T)}')
    rnd_bf16(a, T + 2)
    a(f'v_rcp_f32 v{T+2}, v{T+2}')
    for i in range(nq): a(f'v_cvt_pk_bf16_f32 v{X+i}, v{F+2*i}, v{F+2*i+1}')
    a(f'v_mov_b32 v{T+3}, v{T+2}')
    unpack(a, X, F, nq)
    for i in range(nq): a(f'v_pk_mul_f32 {pr(F+2*i)}, {pr(F+2*i)}, {pr(T+2)}')
    for i in range(nq): a(f'v_cvt_pk_bf16_f32 v{X+i}, v{F+2*i}, v{F+2*i+1}')

def xgroup(a, op, v, t):
    a(f'v_mov_b32 v{t}, v{v}\nv_permlane16_swap_b32 v{v}, v{t}\n{op} v{v}, v{v}, v{t}')
    a(f'v_mov_b32 v{t}, v{v}\nv_permlane32_swap_b32 v{v}, v{t}\n{op} v{v}, v{v}, v{t}')

S_PTS = ['start', 'k0', 'fst', 'fcnt', 's8', 's44', 's96', 'skarg', 'siss0', 'pst', 'g2ok', 'sB1a', 'sB1', 'Kdone', 'Vlast', 'B2', 'ost', 'gok', 'B3', 'end']
M_PTS = ['mstart', 'mw1', 'mw2', 'mend']
H_PTS = ['entry', 'hstart', 'mend', 'locv', 'xst', 'xid', 'hpub', 'wob', 'qack', 'xland', 'lndone', 'wtpub', 'wtok', 'hkarg', 'wqiss', 'hB0', 'wqland', 'qpub', 'qp1', 'qok', 'B1', 'wodone', 'mlpub', 'mlok', 'hend']
def pts(P): return P['pts'].split('+') if isinstance(P['pts'], str) else P['pts']
def stamp(a, P, name):
    if P['diag'] and name in pts(P):
        reg = 88 + 2 * pts(P).index(name)
        a(f's_memrealtime s[{reg}:{reg+1}]\ns_waitcnt lgkmcnt(0)')
def stamp_items(P, lst): return [(i, 88 + 2 * i) for i, n in enumerate(pts(P)) if n in lst]
def stamp_init(a, P):
    if P['diag']:
        for i in range(7): a(f's_mov_b64 s[{88+2*i}:{89+2*i}], 0')

def stamp_store(a, P, items, hw=False):
    if not P['diag']: return
    a('s_waitcnt lgkmcnt(0)')
    a(f's_lshl_b32 s37, s2, 6\ns_add_u32 s37, s37, {STAMP_OFF}')
    srd(a, 40, 28, 's37', 64)
    a('s_mov_b64 exec, 1\nv_mov_b32 v1, 0')
    for idx, reg in items:
        a(f'v_mov_b32 v2, s{reg}\nv_mov_b32 v3, s{reg+1}\nbuffer_store_dwordx2 v[2:3], v1, s[40:43], 0 offen offset:{idx*8}')
    if hw:
        a('s_getreg_b32 s38, hwreg(HW_REG_XCC_ID)\ns_getreg_b32 s39, hwreg(HW_REG_HW_ID)')
        a('v_mov_b32 v2, s38\nv_mov_b32 v3, s39\nbuffer_store_dwordx2 v[2:3], v1, s[40:43], 0 offen offset:56')
    a('s_mov_b64 exec, -1')

def q_wait(a, P, lab):
    a(f's_mov_b32 s82, {TMASK}\nv_mov_b32 v5, {L_TAG}\ns_mov_b32 s86, {P["spin"]*16}')
    a(f'{lab}:\nds_read_b64 v[6:7], v5\ns_waitcnt lgkmcnt(0)\nv_cmp_eq_u32 vcc, -1, v7')
    a(f's_sub_u32 s86, s86, 1\ns_cbranch_scc1 {lab}d\ns_cbranch_vccz {lab}d\ns_sleep 2\ns_branch {lab}\n{lab}d:')
    a(f'v_readfirstlane_b32 s84, v6\nv_readfirstlane_b32 s87, v7\ns_and_b32 s85, s84, {TMASK}')

def streamer(a, P, mid):
    if P['hw'] == 0: a('s_sub_u32 s30, s30, 1')
    R, D, D0, pol = P['R'], P['D'], P['D0'], P['pol']
    Q, S, DT, RING = 8, 16, 48, 56
    slot = lambda i: RING + 4 * (i % R)
    sl = lambda i: f'v[{slot(i)}:{slot(i)+3}]'
    stamp(a, P, 'start')
    if P['hold']: a('s_memrealtime s[98:99]')
    am = [int(x) for x in P['amap'].split()]
    ab, gb, wb, xm = am[0:2], am[2:7], am[7:10], am[10:15]
    a(f'v_and_b32 v1, 3, v0\nv_lshlrev_b32 v1, 4, v1\nv_lshrrev_b32 v3, 4, v0\nv_lshl_add_u32 v1, v3, 6, v1')
    a(f'v_bfe_u32 v3, v0, 2, 1\nv_lshl_add_u32 v1, v3, {ab[0]}, v1\nv_bfe_u32 v3, v0, 3, 1\nv_lshl_add_u32 v1, v3, {ab[1]}, v1')
    a('s_lshl_b32 s37, s38, 19\ns_mov_b32 s35, 0')
    use = 0
    for m in xm: use |= m
    a('s_add_u32 s36, s30, s32\ns_and_b32 s36, s36, 7' if use & 7 else 's_mov_b32 s36, 0')
    if use & 0xf8: a('s_lshl_b32 s39, s32, 3\ns_or_b32 s36, s36, s39')
    if use & 0x700: a('s_lshl_b32 s39, s31, 8\ns_or_b32 s36, s36, s39')
    if use & 0x3800: a('s_lshl_b32 s39, s30, 11\ns_or_b32 s36, s36, s39')
    for k in range(5):
        if xm[k] and xm[k] & (xm[k] - 1) == 0:
            a(f's_bfe_u32 s39, s36, {0x10000 + xm[k].bit_length() - 1}\ns_lshl_b32 s39, s39, {gb[k]}\ns_or_b32 s35, s35, s39')
        elif xm[k]:
            a(f's_and_b32 s39, s36, {xm[k]}\ns_bcnt1_i32_b32 s39, s39\ns_and_b32 s39, s39, 1\ns_lshl_b32 s39, s39, {gb[k]}\ns_or_b32 s35, s35, s39')
    for k in range(3): a(f's_bfe_u32 s39, s30, {0x10000 + k}\ns_lshl_b32 s39, s39, {wb[k]}\ns_or_b32 s35, s35, s39')
    goff = lambda G: sum(((G >> k) & 1) << gb[k] for k in range(5))
    a('s_waitcnt lgkmcnt(0)')
    stamp(a, P, 'skarg')
    srd(a, 40, 6, 's37', 524288)
    lt = P['lt']
    def lg(i):
        j = i % 64
        if lt and i >= 112: return 24 + ((i - 112) & 7), (i - 112) >> 3
        return j >> 1, j & 1
    vidx = lambda T, g, e: (112 + 8 * e + g) if (lt and T == 3) else (64 + 16 * T + 2 * g + e)
    def issue(i):
        G, t = lg(i)
        if t == 0 or (lt and i >= 112): a(f's_xor_b32 s36, s35, {goff(G)}')
        r, va = ('s[40:43]', 'v1') if i < 64 else ('s[44:47]', 'v2')
        a(f'buffer_load_dwordx4 {sl(i)}, {va}, {r}, s36 offen offset:{t*256} {pol}')
    for i in range(D0): issue(i)
    stamp(a, P, 'siss0')
    a('s_branch L_s2')
    mid()
    a('L_s2:')
    a(f'v_and_b32 v2, 15, v0\nv_lshlrev_b32 v2, 4, v2\nv_bfe_u32 v3, v0, 4, 1\nv_lshl_add_u32 v2, v3, {ab[0]}, v2\nv_lshrrev_b32 v3, 5, v0\nv_lshl_add_u32 v2, v3, {ab[1]}, v2')
    srd(a, 44, 8, 's37', 524288)
    if P['vt']:
        a(f'v_mov_b32 v3, 0\nbuffer_load_dword v4, v3, s[44:47], s35 offen {pol}')
    a('s_barrier')
    srd(a, 52, 28, None, WS_USED)
    for e in range(2):
        for r in range(4):
            m16 = (0x11 << r) << (8 * e); m32 = m16 | (m16 << 16)
            a(f's_mov_b32 s{64+2*(4*e+r)}, {hex(m32)}\ns_mov_b32 s{65+2*(4*e+r)}, {hex(m32)}')
    a('s_mov_b32 s80, 0x05040100\ns_mov_b32 s81, 0x07060302')
    for i in range(D0, R):
        if i == D0 + 1: stamp(a, P, 'k0')
        dh = int(P['hpat'][i - D0]) if i - D0 < len(P['hpat']) else D0
        if P['vt'] and i < D0 + D: dh += 1
        a(f's_waitcnt vmcnt({dh-1})'); issue(i)
        if i == 8 + D: stamp(a, P, 's8')
    a('v_bfe_u32 v3, v0, 2, 1\nv_lshlrev_b32 v3, 9, v3\nv_and_b32 v4, 3, v0\nv_lshl_add_u32 v3, v4, 4, v3')
    a(f'v_lshrrev_b32 v4, 4, v0\nv_lshl_add_u32 v3, v4, 6, v3\nv_add_u32 v3, {L_Q}, v3')
    stamp(a, P, 'sB1a')
    q_wait(a, P, 'L_sq')
    stamp(a, P, 'sB1')
    a(f'ds_read_b128 v[{Q}:{Q+3}], v3\nds_read_b128 v[{Q+4}:{Q+7}], v3 offset:256')
    a(f'v_mov_b32 v4, 0xff800000\ns_mov_b32 s83, {hex(f2u(C_EXP))}\ns_waitcnt lgkmcnt(0)')
    chunks = []
    def kdpp(G):
        d = DT + 4 * (G & 1)
        a(f'v_mov_b32_dpp v{S+G}, v{d} quad_perm:[0,0,0,0] row_mask:0xf bank_mask:0xf')
        for r in range(1, 4):
            a(f'v_add_f32_dpp v{S+G}, v{d+r}, v{S+G} quad_perm:[{r},{r},{r},{r}] row_mask:0xf bank_mask:0xf')
        if G & 1:
            if not P['nornd']: a(f'v_cvt_pk_bf16_f32 v5, v{S+G-1}, v{S+G}\nv_lshlrev_b32 v{S+G-1}, 16, v5\nv_and_b32 v{S+G}, 0xffff0000, v5')
            a(f'v_max3_f32 v4, v4, v{S+G-1}, v{S+G}')
    def kchunk(G):
        def fn():
            d = DT + 4 * (G & 1)
            a(f'v_mfma_f32_16x16x32_bf16 v[{d}:{d+3}], {sl(2*G)}, v[{Q}:{Q+3}], 0')
            a(f'v_mfma_f32_16x16x32_bf16 v[{d}:{d+3}], {sl(2*G+1)}, v[{Q+4}:{Q+7}], v[{d}:{d+3}]')
            if G: kdpp(G - 1)
        return fn
    for G in range(32): chunks.append((2 * G + 1, [2 * G, 2 * G + 1], kchunk(G)))
    def sm0():
        kdpp(31)
        xgroup(a, 'v_max_f32', 4, 5)
        a('v_mul_f32 v6, s83, v4\nv_mov_b32 v7, 0')
        stamp(a, P, 'Kdone')
    chunks.append((63, [], sm0))
    def sm(k):
        def fn():
            for g in range(8 * k, 8 * k + 8): a(f'v_fma_f32 v{S+g}, v{S+g}, s83, -v6')
            for g in range(8 * k, 8 * k + 8): a(f'v_exp_f32 v{S+g}, v{S+g}')
            for g in range(8 * k, 8 * k + 8): a(f'v_add_f32 v7, v7, v{S+g}')
            for i in range(4 * k, 4 * k + 4): a(f'v_cvt_pk_bf16_f32 v{S+i}, v{S+2*i}, v{S+2*i+1}')
        return fn
    for k in range(4): chunks.append((63, [], sm(k)))
    def sm_end():
        xgroup(a, 'v_add_f32', 7, 5)
        a(f'v_mov_b32 v5, v7\nv_bfe_u32 v3, v0, 2, 1\nv_lshlrev_b32 v3, 6, v3\ns_lshl_b32 s37, s30, 3\ns_add_u32 s37, s37, {L_ML}\nv_add_u32 v3, s37, v3')
        a('s_mov_b64 exec, 0x11\nds_write_b64 v3, v[4:5]\ns_mov_b64 exec, -1')
    chunks.append((63, [], sm_end))
    AT = [32, 36]; PT = [40, 44, 8, 12]; ACC = DT
    late_ops = []; extra = [0]
    cnt = [0, 0]
    def vchunk(T, e, r):
        def fn():
            A = AT[cnt[0] & 1]; cnt[0] += 1
            mk = 64 + 2 * (4 * e + r)
            for p in range(4): a(f'v_cndmask_b32 v{A+p}, 0, v{S+4*T+p}, s[{mk}:{mk+1}]')
            for jj in range(2):
                j = 4 * jj + r; m, hh = j >> 1, j & 1
                B = PT[cnt[1] & 3]; cnt[1] += 1
                for p in range(4):
                    ev = vidx(T, 2 * p, e); od = vidx(T, 2 * p + 1, e)
                    a(f'v_perm_b32 v{B+p}, v{slot(od)+m}, v{slot(ev)+m}, s{80+hh}')
                c = '0' if (T == 0 and e == 0 and r == 0) else f'v[{ACC+4*jj}:{ACC+4*jj+3}]'
                a(f'v_mfma_f32_16x16x32_bf16 v[{ACC+4*jj}:{ACC+4*jj+3}], v[{A}:{A+3}], v[{B}:{B+3}], {c}')
        return fn
    for T in range(4):
        for e in range(2):
            for r in range(4):
                if lt and T == 3 and e == 1: continue
                fr = [vidx(T, g, e) for g in range(8)] if r == 3 else []
                chunks.append((vidx(T, 7, e), fr, vchunk(T, e, r)))
    if lt:
        FRG = lambda j: slot(112 + j)
        AM = [32, 36, 40, 44]
        def pre(p):
            def fn2():
                if p == 0:
                    for r in range(4):
                        for q in range(4): a(f'v_cndmask_b32 v{AM[r]+q}, 0, v{S+12+q}, s[{72+2*r}:{73+2*r}]')
                for j in range(8):
                    jj = (j & 1) * 4 + (j >> 1); m, hh = jj >> 1, jj & 1
                    a(f'v_perm_b32 v{FRG(jj)+p}, v{slot(vidx(3, 2*p+1, 1))+m}, v{slot(vidx(3, 2*p, 1))+m}, s{80+hh}')
                if p == 3:
                    for j in range(8):
                        jj = (j & 1) * 4 + (j >> 1); r = jj & 3; d = ACC + 4 * (jj >> 2)
                        a(f'v_mfma_f32_16x16x32_bf16 v[{d}:{d+3}], v[{AM[r]}:{AM[r]+3}], v[{FRG(jj)}:{FRG(jj)+3}], v[{d}:{d+3}]')
                        if P['late'] == 2 and j in (1, 3, 5): a(late_ops[j // 2])
                if P['late'] == 3 and p == 2:
                    for x in late_ops: a(x)
                    extra[0] = 3
            return fn2
        for p in range(4): chunks.append((vidx(3, 2 * p + 1, 1), [], pre(p)))
    freed = set(); ci = 0; landed = -1
    XR = RING + 4 * R
    if P['podd'] or P['peven']:
        a(f's_getreg_b32 s62, hwreg(HW_REG_XCC_ID)\ns_bitcmp1_b32 s62, 0\ns_mov_b32 s62, {P["peven"]}\ns_cselect_b32 s62, {P["podd"]}, s62')
    if P['ctl']: a(f's_mov_b32 s62, 0\nv_mov_b32 v{XR+3}, {L_PROG}')
    def run_chunk(issued):
        nonlocal ci, landed
        nd, fr, fn = chunks[ci]; ci += 1
        if nd > landed:
            a(f's_waitcnt vmcnt({issued-1-nd})'); landed = nd
        if not (P['nocomp'] and fr is not None and fn.__name__ == 'fn' and ci <= len(chunks) - 8): fn()
        freed.update(fr)
    for i in range(R, 128):
        while (i - R) not in freed: run_chunk(i)
        Di = P['Dend'] if (P['Dend'] and i >= 128 - P['nend']) else D
        pat = P['kpat'] if i < 64 else P['vpat']
        if pat and not (P['Dend'] and i >= 128 - P['nend']): Di = int(pat[i % len(pat)])
        cks = [int(x) for x in P['cks'].split()] if P['ctl'] else []
        if cks and i > cks[0] + D + 2:
            if i % 4 == 1: a(f's_waitcnt lgkmcnt(0)\nv_readfirstlane_b32 s62, v{XR+1}')
            a(f's_waitcnt vmcnt({Di})\ns_bitcmp1_b32 s62, {i % 8}\ns_cbranch_scc1 L_b{i}\ns_waitcnt vmcnt({Di-1})\nL_b{i}:')
            landed = max(landed, i - Di - 1)
        elif (P['podd'] or P['peven']) and i >= P['p0'] and ((P['podd'] | P['peven']) >> (i % 16) & 1):
            if (P['podd'] & P['peven']) >> (i % 16) & 1: a(f's_waitcnt vmcnt({Di})')
            else: a(f's_waitcnt vmcnt({Di})\ns_bitcmp1_b32 s62, {i % 16}\ns_cbranch_scc1 L_b{i}\ns_waitcnt vmcnt({Di-1})\nL_b{i}:')
            landed = max(landed, i - Di - 1)
        elif i - Di > landed:
            a(f's_waitcnt vmcnt({Di-1})'); landed = i - Di
        issue(i)
        if cks and i >= cks[0] and i % 4 == 0 and i < 124: a(f'ds_read_b32 v{XR+1}, v{XR+3} offset:4')
        if (i - D) in cks:
            a(f's_cmp_lg_u32 s30, 0\ns_cbranch_scc1 L_np{i}\nv_mov_b32 v{XR}, {cks.index(i - D) + 1}\nds_write_b32 v{XR+3}, v{XR}\nL_np{i}:')
        if i == 44 + D: stamp(a, P, 's44')
        if i == 96 + D: stamp(a, P, 's96')
        n = 0
        while ci < len(chunks) and chunks[ci][0] <= landed and n < P['budget']:
            run_chunk(i + 1); n += 1
    def tail_addr():
        a(f'v_lshrrev_b32 v3, 5, v0\nv_lshlrev_b32 v3, 9, v3\nv_bfe_u32 v4, v0, 4, 1\nv_lshl_add_u32 v3, v4, 10, v3')
        a(f'v_and_b32 v4, 15, v0\nv_lshl_add_u32 v3, v4, 5, v3\ns_lshl_b32 s37, s30, 11\ns_add_u32 s37, s37, {L_PART}\nv_add_u32 v3, s37, v3')
        a(f's_lshl_b32 s37, s30, 8\ns_add_u32 s37, s37, {L_PART}\nv_lshl_add_u32 v4, v0, 2, s37')
        a(f's_lshr_b32 s37, s30, 2\ns_lshl_b32 s37, s37, 5\ns_add_u32 s37, s37, {L_F}\nv_mov_b32 v5, s37')
        if P['ov']:
            a(f'v_lshlrev_b32 v6, 2, v0\ns_lshl_b32 s60, s33, 16\ns_and_b32 s37, s34, 3\ns_lshl_b32 s37, s37, 14\ns_add_u32 s60, s60, s37\ns_lshl_b32 s37, s31, 11\ns_add_u32 s60, s60, s37')
            a(f's_lshl_b32 s37, s30, 8\ns_add_u32 s60, s60, s37\ns_add_u32 s60, s60, {QBUF}\ns_xor_b32 s85, s85, 0x55')
        else:
            a(f'v_lshlrev_b32 v6, 2, v0\ns_lshl_b32 s60, s38, 11\ns_lshl_b32 s37, s30, 8\ns_add_u32 s60, s60, s37\ns_add_u32 s60, s60, {OBUF}')
        a(f'v_lshrrev_b32 v1, 4, v0\nv_bfe_u32 v7, v0, 2, 2\nv_and_b32 v8, 3, v0')
        if P['late']:
            a(f'v_lshl_add_u32 v7, v1, 2, v7\nv_bfe_u32 v2, v7, 1, 2\nv_xor_b32 v2, s30, v2\nv_and_b32 v2, 3, v2\nv_lshlrev_b32 v7, 7, v7\nv_lshl_add_u32 v7, v8, 3, v7\nv_lshl_add_u32 v7, v2, 5, v7\nv_add_u32 v7, {L_WO}, v7')
        else:
            a(f'v_lshl_add_u32 v7, v1, 2, v7\nv_lshlrev_b32 v7, 7, v7\nv_lshl_add_u32 v7, v8, 3, v7\ns_lshl_b32 s37, s30, 5\ns_add_u32 s37, s37, {L_WO}\nv_add_u32 v7, s37, v7')
        a(f'v_and_b32 v2, 15, v0\nv_lshlrev_b32 v2, 4, v2\nv_lshl_add_u32 v2, v1, {14 if P["ov"] else 11}, v2')
        a(f's_lshl_b32 s61, s30, 16\ns_lshl_b32 s37, s31, {11 if P["ov"] else 13}\ns_add_u32 s61, s61, s37\ns_and_b32 s37, s32, 3\ns_lshl_b32 s37, s37, 9\ns_add_u32 s61, s61, s37\ns_add_u32 s61, s61, {QBUF if P["ov"] else OBUF}')
    nlate = 0
    while lt and ci < len(chunks) - 4: run_chunk(128)
    if P['late']:
        assert lt
        a('v_lshrrev_b32 v3, 3, v0\nv_mul_u32_u24 v4, 896, v3\nv_and_b32 v3, 6, v3\nv_xor_b32 v3, v3, v0\nv_and_b32 v3, 7, v3\nv_lshl_add_u32 v4, v3, 4, v4')
        a(f'v_mov_b32 v{XR+3}, v4')
        a('s_and_b32 s36, s32, 3\ns_lshl_b32 s37, s31, 2\ns_add_u32 s36, s36, s37\ns_lshr_b32 s39, s32, 2\ns_lshl_b32 s39, s39, 7')
        a(f's_mul_i32 s37, s36, 114688\ns_add_u32 s37, s37, s39\ns_cmp_lt_u32 s32, 28\ns_cselect_b32 s37, s37, 0\ns_cselect_b32 s62, {127*896+128}, 0')
        srd(a, 56, 12, 's37', 's62')
        a(f's_mul_i32 s37, s36, 50176\ns_add_u32 s37, s37, s39\ns_cmp_lt_u32 s32, 28\ns_cselect_b32 s37, s37, 0\ns_cselect_b32 s62, {55*896+128}, 0')
        srd(a, 48, 20, 's37', 's62')
        a(f's_mul_i32 s64, s30, {16*896}\ns_add_u32 s65, s64, {8*896}\ns_lshr_b32 s66, s64, 1\ns_lshl_b32 s67, s30, 11\ns_add_u32 s67, s67, {L_WO}\ns_lshl_b32 s68, s30, 10\ns_add_u32 s68, s68, {L_W2}')
        late_ops.extend([f's_mov_b32 m0, s67\nbuffer_load_dwordx4 v{XR+3}, s[56:59], s64 offen {P["opol"]} lds',
                         f's_add_u32 m0, s67, 1024\nbuffer_load_dwordx4 v{XR+3}, s[56:59], s65 offen {P["opol"]} lds',
                         f's_mov_b32 m0, s68\nbuffer_load_dwordx4 v{XR+3}, s[48:51], s66 offen {P["mpol"]} lds'])
        if P['late'] == 1:
            for x in late_ops: a(x)
            nlate = 3
    tail_addr()
    a(f'v_lshl_add_u32 v{XR+2}, v8, 2, v1\nv_lshlrev_b32 v{XR+2}, 1, v{XR+2}\ns_lshl_b32 s39, s32, 5')
    srd(a, 44, 22, None, 896)
    a(f'buffer_load_ushort v{XR}, v{XR+2}, s[44:47], s39 offen')
    srd(a, 40, 4, None, 7168)
    a(f's_mul_i32 s37, s31, 896\ns_add_u32 s63, s37, s39\nbuffer_load_ushort v{XR+1}, v{XR+2}, s[40:43], s63 offen')
    srd(a, 44, 24, None, 7168)
    while ci < len(chunks): run_chunk(130 + nlate + extra[0])
    stamp(a, P, 'Vlast')
    a('L_tail:')
    a(f'ds_write_b128 v3, v[{ACC}:{ACC+3}]\nds_write_b128 v3, v[{ACC+4}:{ACC+7}] offset:16\ns_waitcnt lgkmcnt(0)\ns_barrier')
    stamp(a, P, 'B2')
    for w in range(4): a(f'ds_read2st64_b32 v[{16+2*w}:{17+2*w}], v4 offset0:{16*w} offset1:{16*w+8}')
    a(f'ds_read_b128 v[24:27], v5\nds_read_b128 v[28:31], v5 offset:16\ns_waitcnt lgkmcnt(0)')
    a('v_mul_f32 v32, v16, v24\nv_mul_f32 v33, v17, v25')
    for w in range(2, 8): a(f'v_fmac_f32 v{32+(w&1)}, v{16+w}, v{24+w}')
    a('v_mov_b32 v9, s85\nv_add_f32 v32, v32, v33\nv_bfi_b32 v32, s82, v9, v32')
    hand_store(a, 'buffer_store_dword v32, v6, s[52:55], s60 offen')
    stamp(a, P, 'ost')
    a('s_cmp_lt_u32 s32, 28\ns_cbranch_scc0 L_end')
    GL = 'buffer_load_dwordx4 v[16:19], v2, s[52:55], s61 offen sc1\nbuffer_load_dwordx4 v[20:23], v2, s[52:55], s61 offen offset:256 sc1'
    a(GL)
    BF, AF, DR = 56, 72, 88
    HA, B2F = 92, 100
    if P['late']:
        a(f'v_and_b32 v10, 7, v0\nv_mul_u32_u24 v10, {HSTR}, v10\nv_lshl_add_u32 v10, v1, 3, v10\nv_add_u32 v10, {L_H}, v10')
        for k in range(2): a(f'ds_read_b64 v[{HA+4*k}:{HA+4*k+1}], v10 offset:{k*64}\nds_read_b64 v[{HA+4*k+2}:{HA+4*k+3}], v10 offset:{k*64+32}')
    else:
        a('s_cmp_lt_u32 s30, 4\ns_cbranch_scc0 L_nofr')
        for jj in range(4):
            b = BF + 4 * jj
            a(f'ds_read_b64_tr_b16 v[{b}:{b+1}], v7 offset:{jj*4096}\nds_read_b64_tr_b16 v[{b+2}:{b+3}], v7 offset:{jj*4096+2048}')
        a(f's_lshl_b32 s37, s30, 10\ns_add_u32 s37, s37, {L_C}\nv_lshl_add_u32 v10, v0, 4, s37\nds_read_b128 v[{DR}:{DR+3}], v10')
        a('L_nofr:')
    a(f'v_and_b32 v4, 15, v0\nv_lshlrev_b32 v4, 3, v4\nv_and_b32 v5, 1, v1\nv_lshl_add_u32 v4, v5, 2, v4\nv_lshrrev_b32 v5, 1, v1\nv_lshl_add_u32 v4, v5, 7, v4')
    a(f's_mul_i32 s37, s30, {OSTR}\ns_add_u32 s37, s37, {L_O}\nv_add_u32 v5, s37, v4')
    a(f'v_and_b32 v12, 7, v0\nv_mul_u32_u24 v12, {OSTR}, v12\nv_lshl_add_u32 v12, v1, 3, v12\nv_add_u32 v12, {L_O}, v12')
    a(f's_and_b32 s60, s32, 28\ns_add_u32 s60, s60, s30\ns_lshl_b32 s60, s60, 5\ns_lshl_b32 s37, s31, 2\ns_add_u32 s60, s60, s37\ns_and_b32 s37, s32, 3\ns_add_u32 s60, s60, s37')
    a(f's_lshl_b32 s60, s60, 9\ns_add_u32 s60, s60, {PBUF}\ns_mov_b32 s86, {P["spin"]}')
    a('s_branch L_gchk')
    a('L_gpoll:')
    if P['gsl']: a(f's_sleep {P["gsl"]}')
    a(GL)
    a('L_gchk:')
    a('s_waitcnt vmcnt(0)')
    tag_check(a, range(16, 24), 10, 11, 4)
    a('s_sub_u32 s86, s86, 1\ns_cbranch_scc1 L_gdone\ns_cbranch_vccnz L_gpoll')
    a('L_gdone:')
    stamp(a, P, 'gok')
    for p in (16, 17, 20, 21): a(f'v_permlane16_swap_b32 v{p}, v{p+2}')
    for p in (16, 17, 20, 21): a(f'v_add_f32 v{p}, v{p}, v{p+2}')
    a('v_permlane32_swap_b32 v16, v20\nv_permlane32_swap_b32 v17, v21\nv_add_f32 v16, v16, v20\nv_add_f32 v17, v17, v21')
    a('v_cvt_pk_bf16_f32 v16, v16, v17\nds_write_b32 v5, v16\ns_waitcnt lgkmcnt(0)\ns_barrier')
    stamp(a, P, 'B3')
    a('s_cmp_lt_u32 s30, 4\ns_cbranch_scc0 L_fin')
    if P['late']:
        d2 = L_W2 - L_WO
        for k in range(2): a(f'ds_read_b64_tr_b16 v[{B2F+4*k}:{B2F+4*k+1}], v7 offset:{d2+k*4096}\nds_read_b64_tr_b16 v[{B2F+4*k+2}:{B2F+4*k+3}], v7 offset:{d2+k*4096+2048}')
        for jj in range(4):
            b = BF + 4 * jj
            a(f'ds_read_b64 v[{AF+4*jj}:{AF+4*jj+1}], v12 offset:{jj*64}\nds_read_b64 v[{AF+4*jj+2}:{AF+4*jj+3}], v12 offset:{jj*64+32}')
            a(f'ds_read_b64_tr_b16 v[{b}:{b+1}], v7 offset:{jj*4096}\nds_read_b64_tr_b16 v[{b+2}:{b+3}], v7 offset:{jj*4096+2048}')
            if jj == 1:
                for k in range(2):
                    a(f's_waitcnt lgkmcnt({10-2*k})')
                    a(f'v_mfma_f32_16x16x32_bf16 v[{DR}:{DR+3}], v[{HA+4*k}:{HA+4*k+3}], v[{B2F+4*k}:{B2F+4*k+3}], ' + ('0' if k == 0 else f'v[{DR}:{DR+3}]'))
        for jj in range(4):
            a(f's_waitcnt lgkmcnt({12-4*jj})')
            a(f'v_mfma_f32_16x16x32_bf16 v[{DR}:{DR+3}], v[{AF+4*jj}:{AF+4*jj+3}], v[{BF+4*jj}:{BF+4*jj+3}], v[{DR}:{DR+3}]')
    else:
        for jj in range(4): a(f'ds_read_b64 v[{AF+4*jj}:{AF+4*jj+1}], v12 offset:{jj*64}\nds_read_b64 v[{AF+4*jj+2}:{AF+4*jj+3}], v12 offset:{jj*64+32}')
        for jj in range(4):
            a(f's_waitcnt lgkmcnt({6-2*jj})')
            a(f'v_mfma_f32_16x16x32_bf16 v[{DR}:{DR+3}], v[{AF+4*jj}:{AF+4*jj+3}], v[{BF+4*jj}:{BF+4*jj+3}], v[{DR}:{DR+3}]')
    a(f'v_permlane32_swap_b32 v{DR}, v{DR+1}\nv_permlane32_swap_b32 v{DR+2}, v{DR+3}')
    tag_put(a, (DR, DR + 2), 9, 82, 0x200)
    a(f'buffer_store_dword v{DR}, v6, s[52:55], s60 offen {P["ppol"]}\nbuffer_store_dword v{DR+2}, v6, s[52:55], s60 offen offset:256 {P["ppol"]}')
    stamp(a, P, 'pst')
    if P['diag']:
        a('s_cmp_lg_u32 s30, 0\ns_cbranch_scc1 L_end')
        stamp_store(a, P, stamp_items(P, [x for x in S_PTS if x not in ('g2ok', 'end', 'fst', 'fcnt')]), hw=True)
    a('s_endpgm')
    a('L_fin:')
    if P['wb']:
        a('s_cmp_eq_u32 s30, 5\ns_cbranch_scc0 L_nowb\ns_cmp_eq_u32 s32, 0\ns_cbranch_scc0 L_end\nbuffer_wbl2 sc1\ns_waitcnt vmcnt(0)\ns_endpgm\nL_nowb:')
    a('s_cmp_eq_u32 s30, 7\ns_cbranch_scc0 L_end')
    a('v_and_b32 v8, 3, v0')
    a(f'v_lshrrev_b32 v2, 2, v0\nv_lshlrev_b32 v2, 9, v2\nv_lshl_add_u32 v2, v8, 4, v2\nv_add_u32 v3, 8192, v2')
    a(f's_lshl_b32 s61, s32, 14\ns_and_b32 s37, s31, 3\ns_lshl_b32 s37, s37, 7\ns_add_u32 s61, s61, s37\ns_lshr_b32 s37, s31, 2\ns_lshl_b32 s37, s37, 6\ns_add_u32 s61, s61, s37\ns_add_u32 s61, s61, {PBUF}\ns_mov_b32 s86, {P["spin"]}')
    a(f'v_lshlrev_b32 v24, 16, v{XR}\nv_lshlrev_b32 v25, 16, v{XR+1}\nv_add_f32 v24, v24, v25')
    stamp(a, P, 'fst')
    a('L_fpoll:')
    a(f'buffer_load_dwordx4 v[16:19], v2, s[52:55], s61 offen {P["lpol"]}\nbuffer_load_dwordx4 v[20:23], v3, s[52:55], s61 offen {P["lpol"]}')
    a('s_waitcnt vmcnt(0)')
    tag_check(a, range(16, 24), 8, 9, 10)
    a('s_sub_u32 s86, s86, 1\ns_cbranch_scc1 L_fdone\ns_cbranch_vccz L_fdone')
    if P['fthr']:
        a(f's_bcnt1_i32_b64 s37, vcc\ns_cmp_lt_u32 s37, {P["fthr"]}\ns_cbranch_scc1 L_fpoll\ns_sleep {P["fsl2"]}')
    if P['fsl']: a(f's_sleep {P["fsl"]}')
    a('s_branch L_fpoll')
    a('L_fdone:')
    stamp(a, P, 'g2ok')
    if P['diag'] and 'fcnt' in pts(P):
        r = 88 + 2 * pts(P).index('fcnt'); r0 = 88 + 2 * pts(P).index('fst')
        a(f's_sub_u32 s37, {P["spin"]}, s86\ns_mul_i32 s37, s37, 100\ns_add_u32 s{r}, s{r0}, s37\ns_addc_u32 s{r+1}, s{r0+1}, 0')
    for i in range(4): a(f'v_add_f32 v{16+i}, v{16+i}, v{20+i}')
    a('v_permlane16_swap_b32 v16, v17\nv_permlane16_swap_b32 v18, v19\nv_add_f32 v16, v16, v17\nv_add_f32 v18, v18, v19')
    a('v_permlane32_swap_b32 v16, v18\nv_add_f32 v16, v16, v18')
    a('v_add_f32_dpp v16, v16, v16 row_ror:4 row_mask:0xf bank_mask:0xf')
    a('v_add_f32_dpp v16, v16, v16 row_ror:8 row_mask:0xf bank_mask:0xf')
    a('v_add_f32 v16, v16, v24\nv_cvt_pk_bf16_f32 v16, v16, v16')
    a('s_mov_b32 exec_lo, 0x000f000f\ns_mov_b32 exec_hi, 0x000f000f')
    a(f'buffer_store_short v16, v{XR+2}, s[44:47], s63 offen {P["outpol"]}')
    a('s_cmp_lg_u32 s2, 0\ns_cbranch_scc1 L_noep')
    a('v_mov_b32 v8, 0\nv_mov_b32 v9, s84\ns_mov_b64 exec, 1\nbuffer_store_dword v9, v8, s[52:55], 0 offen')
    a('L_noep:')
    if P['hold']:
        a(f'L_hold:\ns_memrealtime s[96:97]\ns_waitcnt lgkmcnt(0)\ns_sub_u32 s96, s96, s98\ns_cmp_lt_u32 s96, {P["hold"]}\ns_cbranch_scc1 L_hold')
    if P['diag']:
        a('s_mov_b64 exec, -1\ns_waitcnt vmcnt(0)')
        stamp(a, P, 'end')
        stamp_store(a, P, stamp_items(P, ['g2ok', 'end', 'fst', 'fcnt']))
    a('s_endpgm')

def dma_loop(a, lab, n, depth, vaddr, sstep, lds0, pol):
    a(f's_mov_b32 s36, 0\ns_mov_b32 s62, {lds0}\ns_mov_b32 s63, {n}')
    a(f'{lab}:')
    a(f's_mov_b32 m0, s62\ns_waitcnt vmcnt({depth-1})')
    a(f'buffer_load_dwordx4 v{vaddr}, s[56:59], s36 offen {pol} lds')
    a(f's_add_u32 s36, s36, {sstep}\ns_add_u32 s62, s62, 1024\ns_sub_u32 s63, s63, 1\ns_cmp_lg_u32 s63, 0\ns_cbranch_scc1 {lab}')

XF, FF, TT = 16, 44, 100
def x_addr(a):
    a('v_and_b32 v10, 15, v0\nv_lshrrev_b32 v9, 4, v0\nv_and_b32 v8, 7, v0\nv_mul_u32_u24 v8, 896, v8')
    a('v_bfe_u32 v3, v0, 3, 1\nv_mul_u32_u24 v3, 448, v3\nv_lshl_add_u32 v8, v9, 4, v8\nv_add_u32 v8, v8, v3')
def x_load(a, P):
    srd(a, 48, 4, None, 7168)
    for ks in range(7): a(f'buffer_load_dwordx4 v[{XF+4*ks}:{XF+4*ks+3}], v8, s[48:51], 0 offen offset:{ks*64} {P["xpol"]}')
def tag_check(a, regs, t0, t1, acc, mask=TMASK):
    regs = list(regs)
    ts = 's85' if mask == TMASK else 's80'
    for r in regs: a(f'v_xor_b32 v{r}, {ts}, v{r}')
    two = len(regs) >= 6
    a(f'v_or_b32 v{acc}, v{regs[0]}, v{regs[1]}')
    rest = regs[2:]
    if two: a(f'v_or3_b32 v{t0}, v{rest[0]}, v{rest[1]}, v{rest[2]}'); rest = rest[3:]
    k = 0
    while len(rest) >= 2:
        d = t0 if (two and k & 1) else acc
        a(f'v_or3_b32 v{d}, v{d}, v{rest[0]}, v{rest[1]}'); rest = rest[2:]; k += 1
    if two and rest: a(f'v_or3_b32 v{acc}, v{acc}, v{t0}, v{rest[0]}')
    elif two: a(f'v_or_b32 v{acc}, v{acc}, v{t0}')
    elif rest: a(f'v_or_b32 v{acc}, v{acc}, v{rest[0]}')
    a(f'v_and_b32 v{acc}, {mask}, v{acc}\nv_cmp_ne_u32 vcc, 0, v{acc}')
def tag_put(a, regs, tagv, ms, half):
    for r in regs: a(f'v_add_u32 v{r}, {half}, v{r}')
    for r in regs: a(f'v_bfi_b32 v{r}, s{ms}, v{tagv}, v{r}')
def tag_strip(a, regs, half, ms=82):
    for r in regs: a(f'v_bfi_b32 v{r}, s{ms}, v{half}, v{r}')
_st = [0]; HPOL = ['']
def hand_store(a, ins):
    _st[0] += 1; n = _st[0]
    a(f's_cmp_eq_u32 s87, 0\ns_cbranch_scc1 L_wt{n}\n{ins} {HPOL[0]}\ns_branch L_we{n}\nL_wt{n}:\n{ins} sc1\nL_we{n}:')

def unit_gemm(a, lds, va, st_v, st_s, tagv, ms, before_pub=None):
    TA, DQ = 44, 108
    seq = [(t, ks) for t in range(4) for ks in range(4)]
    def rd(n):
        t, ks = seq[n]; r = TA + 4 * n; o = lds + ks * 4096 + t * 32
        a(f'ds_read_b64_tr_b16 v[{r}:{r+1}], v{va} offset:{o}\nds_read_b64_tr_b16 v[{r+2}:{r+3}], v{va} offset:{o+512}')
    def pub(t):
        tag_put(a, range(DQ + 4 * t, DQ + 4 * t + 4), tagv, ms, 0x80 if ms == 81 else 0x200)
        hand_store(a, f'buffer_store_dwordx4 v[{DQ+4*t}:{DQ+4*t+3}], v{st_v}, s[52:55], s{st_s} offen offset:{t*64}')
    for n in range(6): rd(n)
    for n, (t, ks) in enumerate(seq):
        if n + 6 < 16: rd(n + 6)
        a(f's_waitcnt lgkmcnt({2*min(6, 15-n)})')
        r = TA + 4 * n; d = DQ + 4 * t
        c = '0' if ks == 0 else f'v[{d}:{d+3}]'
        a(f'v_mfma_f32_16x16x32_bf16 v[{d}:{d+3}], v[{r}:{r+3}], v[{XF+4*ks}:{XF+4*ks+3}], {c}')
        if before_pub is None and n in (7, 11, 15): pub(n // 4 - 1)
    if before_pub is not None:
        before_pub()
        for t in range(3): pub(t)
    pub(3)

def helper(a, P):
    a('L_helper:')
    stamp(a, P, 'hstart')
    if P['cpf']:
        a('s_getpc_b64 s[56:57]\ns_mov_b32 s58, 4352\ns_mov_b32 s59, 0x20000\nv_lshlrev_b32 v1, 6, v0')
        a('buffer_load_dword v15, v1, s[56:59], 0 offen offset:256')
    x_addr(a)
    a('v_lshrrev_b32 v4, 3, v0\nv_lshlrev_b32 v1, 13, v4\nv_and_b32 v2, 7, v0\nv_lshl_add_u32 v1, v2, 4, v1')
    a('v_mul_u32_u24 v4, 3584, v4\nv_lshl_add_u32 v4, v2, 4, v4')
    a('s_and_b32 s63, s32, 1\ns_bfe_u32 s62, s32, 0x10001\ns_mul_i32 s64, s62, 224\ns_lshl_b32 s36, s63, 7\ns_add_u32 s64, s64, s36')
    a('s_lshl_b32 s65, s63, 5\ns_sub_u32 s65, 127, s65\ns_lshr_b32 s66, s32, 2')
    a('s_lshl_b32 s37, s64, 13\ns_lshl_b32 s39, s31, 3\ns_add_u32 s39, s39, s66\ns_lshl_b32 s39, s39, 7\ns_add_u32 s37, s37, s39')
    a('s_lshl_b32 s39, s65, 13\ns_add_u32 s39, s39, 128')
    a('s_lshl_b32 s60, s63, 8\ns_mul_i32 s61, s63, 192\ns_sub_u32 s61, 192, s61')
    a('s_waitcnt lgkmcnt(0)')
    stamp(a, P, 'hkarg')
    a('s_load_dword s84, s[28:29], 0')
    srd(a, 48, 4, None, 7168)
    for ks in range(7):
        if ks < 3: a(f'buffer_load_dwordx4 v[{XF+4*ks}:{XF+4*ks+3}], v8, s[48:51], s60 offen offset:{ks*64} {P["xpol"]}')
        else: a(f'buffer_load_dwordx4 v[{XF+4*ks}:{XF+4*ks+3}], v8, s[48:51], s61 offen offset:{(ks-3)*64} {P["xpol"]}')
    if P['abl'] & 2: a('s_mov_b32 s39, 0')
    srd(a, 56, 10, 's37', 's39')
    for i in range(16):
        a(f's_mov_b32 m0, {L_WQ+i*1024}\ns_mov_b32 s36, {i*65536}')
        a(f'buffer_load_dwordx4 v1, s[56:59], s36 offen {P["wpol"]} lds')
    stamp(a, P, 'wqiss')
    a(f'v_mov_b32 v126, -1\nv_mov_b32 v127, -1\nv_lshlrev_b32 v3, 3, v0\nv_add_u32 v3, {L_ML}, v3\nv_mov_b32 v5, {L_TAG}')
    a('s_mov_b64 exec, 0xffff\nds_write_b64 v3, v[126:127]\nds_write_b64 v5, v[126:127]\ns_mov_b64 exec, -1')
    srd(a, 52, 28, None, WS_USED)
    a(f'v_lshlrev_b32 v2, 4, v0\ns_getreg_b32 s68, hwreg(HW_REG_XCC_ID)\ns_and_b32 s68, s68, 15\ns_lshl_b32 s68, s68, 12')
    a(f's_lshl_b32 s69, s31, 12\ns_add_u32 s69, s69, {XBUF}\ns_lshl_b32 s37, s32, 7\ns_add_u32 s37, s37, s69\ns_waitcnt lgkmcnt(0)')
    a(f's_add_u32 s84, s84, 0x9E3779B9\ns_and_b32 s85, s84, {TMASK}\ns_and_b32 s80, s84, {QMASK}\ns_or_b32 s68, s68, s85\nv_mov_b32 v6, s85\nv_mov_b32 v124, s68')
    a('s_mov_b64 exec, 1\nbuffer_store_dword v124, v2, s[52:55], s37 offen sc1\ns_mov_b64 exec, -1')
    stamp(a, P, 'xst')
    a('s_barrier')
    a('v_and_b32 v125, 31, v0\nv_lshlrev_b32 v125, 7, v125')
    a(f'v_mov_b32 v14, {hex(OOB)}\ns_mov_b32 s82, {TMASK}\ns_mov_b32 s81, {QMASK}\ns_mov_b32 s83, {hex(f2u(C_EXP))}')
    a(f'v_bfe_u32 v3, v0, 2, 2\nv_lshl_add_u32 v12, v9, 3, v3\nv_lshlrev_b32 v12, 7, v12\nv_and_b32 v5, 3, v0\nv_lshl_add_u32 v12, v5, 3, v12')
    a(f'v_and_b32 v5, 7, v0\nv_lshlrev_b32 v13, 16, v5\nv_lshl_add_u32 v13, v9, 4, v13\nv_bfe_u32 v3, v0, 3, 1\nv_cmp_eq_u32 vcc, s62, v3')
    a(f'v_lshlrev_b32 v5, 12, v5\nv_lshl_add_u32 v5, v9, 4, v5\nv_cndmask_b32 v13, v14, v13, vcc\nv_cndmask_b32 v5, v14, v5, vcc')
    a(f's_and_b32 s37, s32, 3\ns_lshl_b32 s60, s37, 14\ns_lshl_b32 s39, s31, 11\ns_add_u32 s60, s60, s39\ns_lshl_b32 s39, s66, 8\ns_add_u32 s60, s60, s39\ns_add_u32 s60, s60, {QBUF}')
    a(f's_lshl_b32 s70, s37, 10\ns_and_b32 s39, s66, 3\ns_lshl_b32 s39, s39, 8\ns_add_u32 s70, s70, s39\ns_lshl_b32 s39, s31, 15\ns_add_u32 s70, s70, s39\ns_add_u32 s70, s70, {HBUF}')
    a('s_waitcnt vmcnt(17)')
    stamp(a, P, 'xland')
    layernorm(a, XF, FF, TT)
    stamp(a, P, 'lndone')
    a('s_mov_b64 exec, 0xffffffff\nbuffer_load_dword v124, v125, s[52:55], s69 offen sc1\ns_mov_b64 exec, -1')
    a('s_waitcnt vmcnt(2) lgkmcnt(0)')
    stamp(a, P, 'wqland')
    def loc_check():
        a('s_waitcnt vmcnt(0)\nv_cmp_ne_u32 vcc, s68, v124\ns_cmp_eq_u32 vcc_lo, 0')
        for k in range(P['xretry']):
            a('s_cbranch_scc1 L_xok\ns_mov_b64 exec, 0xffffffff\nbuffer_load_dword v124, v125, s[52:55], s69 offen sc1\ns_mov_b64 exec, -1')
            a('s_waitcnt vmcnt(0)\nv_cmp_ne_u32 vcc, s68, v124\ns_cmp_eq_u32 vcc_lo, 0')
        a('L_xok:')
        a('s_cselect_b32 s87, 1, 0' if P['loc'] else 's_mov_b32 s87, 0')
        stamp(a, P, 'xid')
        if P['diag'] and 'locv' in pts(P):
            a('s_cmp_lg_u32 s87, 0\ns_cbranch_scc1 L_locv'); stamp(a, P, 'locv'); a('L_locv:')
    if P['abl'] & 4: loc_check(); a('s_branch L_qdone')
    unit_gemm(a, L_WQ, 12, 13, 60, 6, 81, None if P['abl'] & 4 else loc_check)
    stamp(a, P, 'qpub')
    a(f's_lshl_b32 s61, s33, 16\ns_lshl_b32 s37, s31, 11\ns_add_u32 s61, s61, s37\ns_add_u32 s61, s61, {QBUF}')
    a(f's_mov_b32 s86, {P["spin"]}')
    a('L_qpoll:')
    a(f's_sleep {P["qsl"]}')
    a('s_mov_b32 s36, s61')
    for kq in range(4):
        for m in range(2): a(f'buffer_load_dwordx4 v[{44+8*kq+4*m}:{47+8*kq+4*m}], v2, s[52:55], s36 offen offset:{m*1024} sc1')
        if kq < 3: a('s_add_u32 s36, s36, 16384')
    a(f's_mov_b64 exec, 0xffffffff\nbuffer_load_dword v124, v125, s[52:55], s69 offen sc1\ns_mov_b64 exec, -1\ns_waitcnt vmcnt(0)')
    tag_check(a, range(44, 76), 100, 101, 102, QMASK)
    a('s_sub_u32 s86, s86, 1\ns_cbranch_scc1 L_qdone\ns_cbranch_vccnz L_qpoll')
    a('L_qdone:')
    stamp(a, P, 'qok')
    a('v_cmp_ne_u32 vcc, s68, v124\ns_cmp_eq_u32 vcc_lo, 0')
    a('s_cselect_b32 s87, 1, 0' if P['loc'] else 's_mov_b32 s87, 0')
    for kq in range(1, 4):
        for m in range(4): a(f'v_pk_add_f32 v[{44+2*m}:{45+2*m}], v[{44+2*m}:{45+2*m}], v[{44+8*kq+2*m}:{45+8*kq+2*m}]')
    a(f'v_lshlrev_b32 v3, 3, v0\nv_add_u32 v3, {L_Q}, v3\nv_mov_b32 v13, {L_TAG}\nv_mov_b32 v100, s84\nv_mov_b32 v101, s87')
    for m in range(4): a(f'v_cvt_pk_bf16_f32 v{52+m}, v{44+2*m}, v{45+2*m}')
    a('ds_write_b64 v3, v[52:53]\nds_write_b64 v3, v[54:55] offset:512\ns_waitcnt lgkmcnt(0)\nds_write_b64 v13, v[100:101]')
    stamp(a, P, 'B1')
    if P['abl'] & 1: a('s_branch L_now')
    a('s_cmp_ge_u32 s66, 4\ns_cbranch_scc0 L_noh')
    a('s_mul_i32 s67, s31, 7\ns_lshr_b32 s67, s67, 1\ns_and_b32 s39, s66, 3\ns_add_u32 s67, s67, s39\ns_mul_i32 s37, s64, 3584\ns_lshl_b32 s39, s67, 7\ns_add_u32 s37, s37, s39')
    a('s_mul_i32 s39, s65, 3584\ns_add_u32 s39, s39, 128')
    srd(a, 56, 16, 's37', 's39')
    dma_loop(a, 'L_w1', 16, P['DH'], 4, 8 * 3584, L_W1, P['wpol'])
    layernorm(a, XF, FF, TT, 16)
    a('s_waitcnt vmcnt(0)')
    unit_gemm(a, L_W1, 12, 5, 70, 6, 82)
    a('L_noh:')
    stamp(a, P, 'hpub')
    a('s_cmp_lt_u32 s32, 28\ns_cbranch_scc0 L_now')
    a('v_lshrrev_b32 v1, 3, v0\nv_mul_u32_u24 v1, 896, v1\nv_and_b32 v3, 7, v0\nv_lshl_add_u32 v1, v3, 4, v1')
    a('s_and_b32 s64, s32, 3\ns_lshl_b32 s65, s31, 2\ns_add_u32 s65, s65, s64')
    if not P['late']:
        a(f's_mul_i32 s37, s65, 50176\ns_lshl_b32 s39, s66, 7\ns_add_u32 s37, s37, s39')
        srd(a, 56, 20, 's37', 55 * 896 + 128)
        dma_loop(a, 'L_w2', 8, P['DH'], 1, 8 * 896, L_W2, P['mpol'])
        if not P['nowo']:
            a(f's_mul_i32 s37, s65, 114688\ns_lshl_b32 s39, s66, 7\ns_add_u32 s37, s37, s39\ns_sub_u32 s39, {4096*896}, s37')
            srd(a, 56, 12, 's37', 's39')
            dma_loop(a, 'L_wo', 16, P['DH'], 1, 8 * 896, L_WO, P['opol'])
    stamp(a, P, 'wodone')
    a('v_min_u32 v3, 13, v10\nv_lshlrev_b32 v4, 12, v9\nv_lshl_add_u32 v4, v3, 4, v4\nv_lshlrev_b32 v5, 3, v3')
    a(f's_lshl_b32 s61, s31, 15\ns_mul_i32 s37, s64, 224\ns_add_u32 s61, s61, s37\ns_and_b32 s37, s31, 1\ns_lshl_b32 s37, s37, 7\ns_add_u32 s61, s61, s37\ns_add_u32 s61, s61, {HBUF}')
    srd(a, 48, 18, None, 3584)
    a(f's_mul_i32 s37, s65, 112\nbuffer_load_dwordx2 v[20:21], v5, s[48:51], s37 offen\ns_add_u32 s60, s61, 16384\ns_mov_b32 s86, {P["spin"]}')
    a('L_hp:')
    for ps in range(2):
        for kq in range(4): a(f'buffer_load_dwordx4 v[{44+16*ps+4*kq}:{47+16*ps+4*kq}], v4, s[52:55], s{61-ps} offen offset:{kq*1024} sc1')
    a('s_waitcnt vmcnt(0)')
    tag_check(a, range(44, 76), 16, 17, 18)
    a('s_sub_u32 s86, s86, 1\ns_cbranch_scc1 L_hpd\ns_cbranch_vccz L_hpd\ns_sleep 16\ns_branch L_hp')
    a('L_hpd:')
    for ps in range(2):
        for kq in range(1, 4):
            for m in range(2): a(f'v_pk_add_f32 v[{44+16*ps+2*m}:{45+16*ps+2*m}], v[{44+16*ps+2*m}:{45+16*ps+2*m}], v[{44+16*ps+4*kq+2*m}:{45+16*ps+4*kq+2*m}]')
    unpack(a, 20, 24, 2)
    a('v_cvt_pk_bf16_f32 v16, v44, v45\nv_cvt_pk_bf16_f32 v17, v46, v47\nv_cvt_pk_bf16_f32 v18, v60, v61\nv_cvt_pk_bf16_f32 v19, v62, v63')
    unpack(a, 16, 32, 4)
    for i in range(8): a(f'v_add_f32 v{32+i}, v{32+i}, v{24+(i&3)}')
    for i in range(4): a(f'v_cvt_pk_bf16_f32 v{16+i}, v{32+2*i}, v{33+2*i}')
    unpack(a, 16, 32, 4)
    k0 = 2 * 0.7978845608028654 * math.log2(math.e); k1 = k0 * 0.044715
    a(f's_mov_b32 s62, {hex(f2u(-k1))}\nv_mov_b32 v15, {hex(f2u(-k0))}')
    for i in range(8): a(f'v_mul_f32 v{44+i}, v{32+i}, v{32+i}')
    for i in range(8): a(f'v_fma_f32 v{44+i}, v{44+i}, s62, v15')
    for i in range(8): a(f'v_mul_f32 v{44+i}, v{44+i}, v{32+i}')
    for i in range(8): a(f'v_exp_f32 v{44+i}, v{44+i}')
    for i in range(8): a(f'v_add_f32 v{44+i}, 1.0, v{44+i}')
    for i in range(8): a(f'v_rcp_f32 v{44+i}, v{44+i}')
    for i in range(8): a(f'v_mul_f32 v{32+i}, v{32+i}, v{44+i}')
    a('v_cmp_gt_u32 vcc, 14, v10')
    for i in range(4): a(f'v_cvt_pk_bf16_f32 v{16+i}, v{32+2*i}, v{33+2*i}')
    for i in range(4): a(f'v_cndmask_b32 v{16+i}, 0, v{16+i}, vcc')
    a(f'v_mul_u32_u24 v3, {HSTR}, v9\nv_lshl_add_u32 v3, v10, 3, v3\nv_add_u32 v3, {L_H}, v3')
    a(f'ds_write_b64 v3, v[16:17]\nds_write_b64 v3, v[18:19] offset:{4*HSTR}')
    if not P['late']:
        a(f'v_and_b32 v3, 7, v0\nv_mul_u32_u24 v3, {HSTR}, v3\nv_lshl_add_u32 v3, v9, 3, v3\nv_add_u32 v3, {L_H}, v3')
        a(f'v_bfe_u32 v4, v0, 2, 2\nv_lshl_add_u32 v4, v9, 2, v4\nv_lshlrev_b32 v4, 7, v4\nv_and_b32 v5, 3, v0\nv_lshl_add_u32 v4, v5, 3, v4\nv_add_u32 v4, {L_W2}, v4')
        a('s_waitcnt lgkmcnt(0)')
        for k in range(2): a(f'ds_read_b64 v[{16+4*k}:{17+4*k}], v3 offset:{k*64}\nds_read_b64 v[{18+4*k}:{19+4*k}], v3 offset:{k*64+32}')
        for t in range(4):
            for k in range(2):
                r = 44 + 8 * t + 4 * k
                a(f'ds_read_b64_tr_b16 v[{r}:{r+1}], v4 offset:{k*4096+t*32}\nds_read_b64_tr_b16 v[{r+2}:{r+3}], v4 offset:{k*4096+2048+t*32}')
        a(f'v_add_u32 v3, {L_C}, v2\ns_waitcnt lgkmcnt(0)')
        for k in range(2):
            for t in range(4):
                r = 44 + 8 * t + 4 * k; d = 76 + 4 * t
                a(f'v_mfma_f32_16x16x32_bf16 v[{d}:{d+3}], v[{16+4*k}:{19+4*k}], v[{r}:{r+3}], ' + ('0' if k == 0 else f'v[{d}:{d+3}]'))
        for t in range(4): a(f'ds_write_b128 v3, v[{76+4*t}:{79+4*t}] offset:{t*1024}')
    a('L_now:')
    stamp(a, P, 'mend')
    a(f'v_and_b32 v3, 15, v0\nv_lshlrev_b32 v3, 3, v3\nv_add_u32 v3, {L_ML}, v3\ns_mov_b32 s86, {P["spin"]*16}')
    a('L_mlw:')
    a('ds_read_b64 v[16:17], v3\ns_waitcnt lgkmcnt(0)\nv_cmp_eq_u32 vcc, -1, v16')
    a('s_sub_u32 s86, s86, 1\ns_cbranch_scc1 L_mlwd\ns_cbranch_vccz L_mlwd\ns_sleep 4\ns_branch L_mlw')
    a('L_mlwd:')
    d8 = ('quad_perm:[1,0,3,2]', 'quad_perm:[2,3,0,1]', 'row_half_mirror')
    a('v_mov_b32 v18, v16')
    for m in d8: a(f'v_max_f32_dpp v18, v18, v18 {m} row_mask:0xf bank_mask:0xf')
    a('v_sub_f32 v20, v16, v18\nv_mul_f32 v20, s83, v20\nv_exp_f32 v20, v20\nv_mul_f32 v19, v20, v17')
    for m in d8: a(f'v_add_f32_dpp v19, v19, v19 {m} row_mask:0xf bank_mask:0xf')
    tag_strip(a, (18, 19), 6)
    a(f's_lshl_b32 s37, s38, 7\ns_add_u32 s37, s37, {MLX}\ns_mov_b64 exec, 0x101')
    hand_store(a, 'buffer_store_dwordx2 v[18:19], v0, s[52:55], s37 offen')
    a('s_mov_b64 exec, -1')
    stamp(a, P, 'mlpub')
    a(f's_and_b32 s61, s38, 0xfc\ns_lshl_b32 s61, s61, 7\ns_add_u32 s61, s61, {MLX}\ns_mov_b32 s86, {P["spin"]}')
    a('v_and_b32 v3, 3, v0\nv_lshlrev_b32 v3, 7, v3\nv_and_b32 v4, 8, v0\nv_add_u32 v3, v3, v4')
    a('L_mlp2:')
    a(f's_sleep {P["msl"]}')
    a('buffer_load_dwordx2 v[24:25], v3, s[52:55], s61 offen sc1\ns_waitcnt vmcnt(0)')
    tag_check(a, (24, 25), 26, 27, 28)
    a('s_sub_u32 s86, s86, 1\ns_cbranch_scc1 L_mlp2d\ns_cbranch_vccnz L_mlp2')
    a('L_mlp2d:')
    stamp(a, P, 'mlok')
    a('v_mov_b32 v28, v24')
    for m in d8[:2]: a(f'v_max_f32_dpp v28, v28, v28 {m} row_mask:0xf bank_mask:0xf')
    a('v_sub_f32 v29, v24, v28\nv_mul_f32 v29, s83, v29\nv_exp_f32 v29, v29\nv_mul_f32 v29, v29, v25')
    for m in d8[:2]: a(f'v_add_f32_dpp v29, v29, v29 {m} row_mask:0xf bank_mask:0xf')
    a('v_sub_f32 v30, v16, v28\nv_mul_f32 v30, s83, v30\nv_exp_f32 v30, v30\nv_rcp_f32 v29, v29\nv_mul_f32 v30, v30, v29')
    a(f'v_lshlrev_b32 v3, 2, v0\nv_add_u32 v3, {L_F}, v3\ns_mov_b64 exec, 0xffff\nds_write_b32 v3, v30\ns_mov_b64 exec, -1')
    if P['tpf']:
        a('s_getpc_b64 s[56:57]\nL_pc2:\ns_add_u32 s56, s56, L_tail-L_pc2\ns_addc_u32 s57, s57, 0\ns_mov_b32 s58, L_end-L_tail\ns_mov_b32 s59, 0x20000')
        a('v_lshlrev_b32 v1, 6, v0\nbuffer_load_dword v15, v1, s[56:59], 0 offen')
    a('s_waitcnt vmcnt(0) lgkmcnt(0)')
    stamp(a, P, 'hend')
    stamp_store(a, P, stamp_items(P, H_PTS))
    a('s_endpgm')

def body(P):
    a = Asm(); HPOL[0] = P['hpol']
    a('s_cmp_ge_u32 s2, 256\ns_cbranch_scc1 L_end')
    if P['perm'] == 1: a('s_lshr_b32 s3, s2, 5\ns_lshl_b32 s2, s2, 3\ns_or_b32 s2, s2, s3\ns_and_b32 s2, s2, 255')
    if P['perm'] == 2: a('s_lshr_b32 s3, s2, 7\ns_xor_b32 s2, s2, s3')
    a('s_load_dwordx16 s[4:19], s[0:1], 0\ns_load_dwordx8 s[20:27], s[0:1], 64\ns_load_dwordx2 s[28:29], s[0:1], 96')
    a('v_lshrrev_b32 v1, 6, v0\nv_and_b32 v0, 63, v0\nv_readfirstlane_b32 s30, v1')
    a('s_and_b32 s31, s2, 7\ns_lshr_b32 s32, s2, 3')
    if P['bmap'] == 0: a('s_lshr_b32 s33, s32, 2\ns_and_b32 s34, s32, 3')
    else: a('s_and_b32 s33, s32, 7\ns_lshr_b32 s34, s32, 3')
    a('s_lshl_b32 s37, s31, 2\ns_add_u32 s34, s34, s37\ns_lshl_b32 s38, s33, 5\ns_add_u32 s38, s38, s34')
    stamp_init(a, P)
    stamp(a, P, 'entry')
    a(f's_cmp_eq_u32 s30, {P["hw"]}\ns_cbranch_scc1 L_helper')
    streamer(a, P, lambda: helper(a, P))
    a('L_end:\ns_endpgm')
    txt, n = a.text()
    return txt, n

def vgprs(P): return max(56 + 4 * P['R'] + 4, 156)

def kernel(P):
    txt, n = body(P)
    nm = P['name']
    txt = txt.replace('L_', f'L{nm[-24:]}_') if P.get('uniq') else txt
    return txt

def final_file(P):
    ref = open(f'cdna_kernels/{NAME}.s.ref').read()
    head = ref[:ref.index('; Override launch')]
    nm = P['name']; vg = vgprs(P)
    return head + f'''; Single launch: 256 workgroups x (8 streaming waves + 1 helper wave). Generated by gen/gen.py.
; @launch grid=(256,1,1) block=({block(P)},1,1) lds={LDS_BYTES}
.amdgcn_target "amdgcn-amd-amdhsa--gfx950"
.text
.globl {nm}
.p2align 8
.type {nm},@function
{nm}:
{kernel(P)}
.section .rodata,"a"
.p2align 6
.amdhsa_kernel {nm}
  .amdhsa_next_free_vgpr {vg}
  .amdhsa_next_free_sgpr 102
  .amdhsa_accum_offset {(vg+3)//4*4}
  .amdhsa_group_segment_fixed_size 0
  .amdhsa_kernarg_size 104
  .amdhsa_user_sgpr_count 2
  .amdhsa_user_sgpr_kernarg_segment_ptr 1
  .amdhsa_system_sgpr_workgroup_id_x 1
.end_amdhsa_kernel
'''

if __name__ == '__main__':
    P = dict(DEF)
    out = f'cdna_kernels/{NAME}.s'
    for kv in sys.argv[1:]:
        k, v = kv.split('=', 1)
        if k == 'out': out = v
        else: P[k] = type(DEF[k])(v) if not isinstance(DEF[k], bool) else v == '1'
    open(out, 'w').write(final_file(P))
    print('wrote', out)
```

```python
import sys, math, struct
from asmlib import Asm

NAME = 'parallel_sum__gqa_block_cached__mixer_channel_mlp__decode'
def f2u(x): return struct.unpack('<I', struct.pack('<f', x))[0]

CBUF, XBUF, MLX, PBUF, HBUF, QBUF, OBUF, WS_USED = 0x1E0000, 0x8000, 0x10000, 0x20000, 0x90000, 0xD0000, 0x200000, 0x280000
TMASK = 0x3FF
QMASK = 0xFF
STAMP_OFF = 536870912 - (1 << 20)
L_WQ = 0; L_W1 = 16384; L_WO = 32768; L_W2 = 49152
L_PART = 57344
L_C = L_PART + 16384
OSTR = 264; HSTR = 136
L_O = L_C + 4096
L_H = L_O + 8 * OSTR
L_Q = L_H + 8 * HSTR
L_ML = L_Q + 1024
L_F = L_ML + 128
L_TAG = L_F + 64
L_PROG = L_TAG + 16
LDS_BYTES = L_PROG + 48
assert L_Q % 16 == 0 and LDS_BYTES > 81920
OOB = 0x7F000000
C_EXP = math.log2(math.e) / 16.0

DEF = dict(R=26, D=3, D0=3, DH=8, qsl=16, msl=24, cpf=1, tpf=0, orc=0, orc0=60, omask=15, perm=0, outpol='', late=2, hpol='', hw=8, abl=0, lt=1, ov=1, pt=0, podd=0, peven=0, p0=0, vt=0, wb=0, amap='13 14 9 10 12 17 18 16 15 11 1024 8 513 0 128', hpat='', swz=0, ppol='sc1', lpol='sc1', nocomp=0, nowo=0, ctl=0, lag=6, thr=3, c0=28, c1=112, cmask=5, cver=2, nrep=8, qx=1, fast=0, stag=0, stp=4, cdbg=0, th1=8, th2=999, cm1=5, cm2=5, nsh=2, crd=2, iw=0, iwd=3, iwp=2, cstr=128, cper=4, kpat='3323', vpat='3323', loc=1, n2=80, xretry=1, Dend=4, nend=8, gsl=0, fsl=0, fthr=0, fsl2=24, nornd=0, nom=0, pol='nt', wpol='nt', xpol='', opol='nt', mpol='nt', diag=False, budget=2,
           name=NAME + '_kernel', spin=1 << 16, hold=0, bmap=0, pts='start+qpub+B1+Kdone+hend+B2+end')
def block(P): return 640 if P['ctl'] else 576

def srd(a, n, base, off, size):
    if off is None:
        a(f's_mov_b32 s{n}, s{base}\ns_mov_b32 s{n+1}, s{base+1}')
    else:
        a(f's_add_u32 s{n}, s{base}, {off}\ns_addc_u32 s{n+1}, s{base+1}, 0')
    a(f's_mov_b32 s{n+2}, {size}\ns_mov_b32 s{n+3}, 0x20000')

def wave_sum(a, v, s):
    for m in ('row_shr:1', 'row_shr:2', 'row_shr:4', 'row_shr:8'):
        a(f'v_add_f32_dpp v{v}, v{v}, v{v} {m} row_mask:0xf bank_mask:0xf')
    a(f'v_add_f32_dpp v{v}, v{v}, v{v} row_bcast:15 row_mask:0xa bank_mask:0xf')
    a(f'v_add_f32_dpp v{v}, v{v}, v{v} row_bcast:31 row_mask:0xc bank_mask:0xf')
    a(f'v_readlane_b32 s{s}, v{v}, 63')

def rnd_bf16(a, v):
    a(f'v_cvt_pk_bf16_f32 v{v}, v{v}, v{v}\nv_and_b32 v{v}, 0xffff0000, v{v}')

def unpack(a, src, dst, n):
    for i in range(n):
        a(f'v_and_b32 v{dst+2*i+1}, 0xffff0000, v{src+i}\nv_lshlrev_b32 v{dst+2*i}, 16, v{src+i}')

def row_sum(a, v, t):
    a(f'v_add_f32_dpp v{v}, v{v}, v{v} row_ror:8 row_mask:0xf bank_mask:0xf')
    xgroup(a, 'v_add_f32', v, t)

def layernorm(a, X, F, T, nq=28):
    pr = lambda r: f'v[{r}:{r+1}]'
    unpack(a, X, F, 28)
    a(f'v_pk_add_f32 {pr(T)}, {pr(F)}, {pr(F+2)}\nv_pk_add_f32 {pr(T+2)}, {pr(F+4)}, {pr(F+6)}')
    for i in range(4, 28): a(f'v_pk_add_f32 {pr(T+2*(i&1))}, {pr(T+2*(i&1))}, {pr(F+2*i)}')
    a(f'v_pk_add_f32 {pr(T)}, {pr(T)}, {pr(T+2)}\nv_add_f32 v{T}, v{T}, v{T+1}')
    row_sum(a, T, T + 1)
    a(f'v_mul_f32 v{T}, {hex(f2u(-1/448))}, v{T}\nv_mov_b32 v{T+1}, v{T}')
    for i in range(28):
        d = T + 4 + 2 * (i & 1)
        a(f'v_pk_add_f32 {pr(d)}, {pr(F+2*i)}, {pr(T)}')
        if i == 0: a(f'v_pk_mul_f32 {pr(T+2)}, {pr(d)}, {pr(d)}')
        else: a(f'v_pk_fma_f32 {pr(T+2)}, {pr(d)}, {pr(d)}, {pr(T+2)}')
    a(f'v_add_f32 v{T+2}, v{T+2}, v{T+3}')
    row_sum(a, T + 2, T + 3)
    rnd_bf16(a, T)
    a(f'v_mov_b32 v{T+1}, v{T}\nv_mul_f32 v{T+2}, {hex(f2u(1/448))}, v{T+2}')
    rnd_bf16(a, T + 2)
    a(f'v_add_f32 v{T+2}, {hex(f2u(1e-5))}, v{T+2}')
    rnd_bf16(a, T + 2)
    a(f'v_sqrt_f32 v{T+2}, v{T+2}')
    for i in range(nq): a(f'v_pk_add_f32 {pr(F+2*i)}, {pr(F+2*i)}, {pr(T)}')
    rnd_bf16(a, T + 2)
    a(f'v_rcp_f32 v{T+2}, v{T+2}')
    for i in range(nq): a(f'v_cvt_pk_bf16_f32 v{X+i}, v{F+2*i}, v{F+2*i+1}')
    a(f'v_mov_b32 v{T+3}, v{T+2}')
    unpack(a, X, F, nq)
    for i in range(nq): a(f'v_pk_mul_f32 {pr(F+2*i)}, {pr(F+2*i)}, {pr(T+2)}')
    for i in range(nq): a(f'v_cvt_pk_bf16_f32 v{X+i}, v{F+2*i}, v{F+2*i+1}')

def xgroup(a, op, v, t):
    a(f'v_mov_b32 v{t}, v{v}\nv_permlane16_swap_b32 v{v}, v{t}\n{op} v{v}, v{v}, v{t}')
    a(f'v_mov_b32 v{t}, v{v}\nv_permlane32_swap_b32 v{v}, v{t}\n{op} v{v}, v{v}, v{t}')

S_PTS = ['start', 'k0', 'fst', 'fcnt', 's8', 's44', 's96', 'skarg', 'siss0', 'pst', 'g2ok', 'sB1a', 'sB1', 'Kdone', 'Vlast', 'B2', 'ost', 'gok', 'B3', 'end']
M_PTS = ['mstart', 'mw1', 'mw2', 'mend']
H_PTS = ['entry', 'hstart', 'mend', 'locv', 'xst', 'xid', 'hpub', 'wob', 'qack', 'xland', 'lndone', 'wtpub', 'wtok', 'hkarg', 'wqiss', 'hB0', 'wqland', 'qpub', 'qp1', 'qok', 'B1', 'wodone', 'mlpub', 'mlok', 'hend']
def pts(P): return P['pts'].split('+') if isinstance(P['pts'], str) else P['pts']
def stamp(a, P, name):
    if P['diag'] and name in pts(P):
        reg = 88 + 2 * pts(P).index(name)
        a(f's_memrealtime s[{reg}:{reg+1}]\ns_waitcnt lgkmcnt(0)')
def stamp_items(P, lst): return [(i, 88 + 2 * i) for i, n in enumerate(pts(P)) if n in lst]
def stamp_init(a, P):
    if P['diag']:
        for i in range(7): a(f's_mov_b64 s[{88+2*i}:{89+2*i}], 0')

def stamp_store(a, P, items, hw=False):
    if not P['diag']: return
    a('s_waitcnt lgkmcnt(0)')
    a(f's_lshl_b32 s37, s2, 6\ns_add_u32 s37, s37, {STAMP_OFF}')
    srd(a, 40, 28, 's37', 64)
    a('s_mov_b64 exec, 1\nv_mov_b32 v1, 0')
    for idx, reg in items:
        a(f'v_mov_b32 v2, s{reg}\nv_mov_b32 v3, s{reg+1}\nbuffer_store_dwordx2 v[2:3], v1, s[40:43], 0 offen offset:{idx*8}')
    if hw:
        a('s_getreg_b32 s38, hwreg(HW_REG_XCC_ID)\ns_getreg_b32 s39, hwreg(HW_REG_HW_ID)')
        a('v_mov_b32 v2, s38\nv_mov_b32 v3, s39\nbuffer_store_dwordx2 v[2:3], v1, s[40:43], 0 offen offset:56')
    a('s_mov_b64 exec, -1')

def q_wait(a, P, lab):
    a(f's_mov_b32 s82, {TMASK}\nv_mov_b32 v5, {L_TAG}\ns_mov_b32 s86, {P["spin"]*16}')
    a(f'{lab}:\nds_read_b64 v[6:7], v5\ns_waitcnt lgkmcnt(0)\nv_cmp_eq_u32 vcc, -1, v7')
    a(f's_sub_u32 s86, s86, 1\ns_cbranch_scc1 {lab}d\ns_cbranch_vccz {lab}d\ns_sleep 2\ns_branch {lab}\n{lab}d:')
    a(f'v_readfirstlane_b32 s84, v6\nv_readfirstlane_b32 s87, v7\ns_and_b32 s85, s84, {TMASK}')

def streamer(a, P, mid):
    R, D, D0, pol = P['R'], P['D'], P['D0'], P['pol']
    Q, S, DT, RING = 8, 16, 48, 56
    slot = lambda i: RING + 4 * (i % R)
    sl = lambda i: f'v[{slot(i)}:{slot(i)+3}]'
    stamp(a, P, 'start')
    if P['hold'] or P['orc']: a('s_memrealtime s[98:99]')
    am = [int(x) for x in P['amap'].split()]
    ab, gb, wb, xm = am[0:2], am[2:7], am[7:10], am[10:15]
    a(f'v_and_b32 v1, 3, v0\nv_lshlrev_b32 v1, 4, v1\nv_lshrrev_b32 v3, 4, v0\nv_lshl_add_u32 v1, v3, 6, v1')
    a(f'v_bfe_u32 v3, v0, 2, 1\nv_lshl_add_u32 v1, v3, {ab[0]}, v1\nv_bfe_u32 v3, v0, 3, 1\nv_lshl_add_u32 v1, v3, {ab[1]}, v1')
    if P['fast'] and am == [13, 14, 9, 10, 12, 17, 18, 16, 15, 11, 1024, 8, 513, 0, 128]:
        a('s_lshl_b32 s37, s38, 19\ns_lshl_b32 s35, s2, 7\ns_and_b32 s35, s35, 0x600\ns_lshr_b32 s36, s32, 4\ns_lshl_b32 s36, s36, 18\ns_or_b32 s35, s35, s36')
        a('s_lshr_b32 s36, s2, 1\ns_xor_b32 s36, s36, s32\ns_xor_b32 s36, s36, s30\ns_and_b32 s36, s36, 1\ns_lshl_b32 s36, s36, 12\ns_or_b32 s35, s35, s36')
        a('s_brev_b32 s36, s30\ns_lshr_b32 s36, s36, 30\ns_lshl_b32 s36, s36, 15\ns_or_b32 s35, s35, s36\ns_lshr_b32 s36, s30, 2\ns_lshl_b32 s36, s36, 11\ns_or_b32 s35, s35, s36')
    else:
        a('s_lshl_b32 s37, s38, 19\ns_mov_b32 s35, 0')
        use = 0
        for m in xm: use |= m
        a('s_add_u32 s36, s30, s32\ns_and_b32 s36, s36, 7' if use & 7 else 's_mov_b32 s36, 0')
        if use & 0xf8: a('s_lshl_b32 s39, s32, 3\ns_or_b32 s36, s36, s39')
        if use & 0x700: a('s_lshl_b32 s39, s31, 8\ns_or_b32 s36, s36, s39')
        if use & 0x3800: a('s_lshl_b32 s39, s30, 11\ns_or_b32 s36, s36, s39')
        for k in range(5):
            if xm[k] and xm[k] & (xm[k] - 1) == 0:
                a(f's_bfe_u32 s39, s36, {0x10000 + xm[k].bit_length() - 1}\ns_lshl_b32 s39, s39, {gb[k]}\ns_or_b32 s35, s35, s39')
            elif xm[k]:
                a(f's_and_b32 s39, s36, {xm[k]}\ns_bcnt1_i32_b32 s39, s39\ns_and_b32 s39, s39, 1\ns_lshl_b32 s39, s39, {gb[k]}\ns_or_b32 s35, s35, s39')
        for k in range(3): a(f's_bfe_u32 s39, s30, {0x10000 + k}\ns_lshl_b32 s39, s39, {wb[k]}\ns_or_b32 s35, s35, s39')
    goff = lambda G: sum(((G >> k) & 1) << gb[k] for k in range(5))
    a('s_waitcnt lgkmcnt(0)')
    stamp(a, P, 'skarg')
    srd(a, 40, 6, 's37', 524288)
    lt = P['lt']
    def lg(i):
        j = i % 64
        if lt and i >= 112: return 24 + ((i - 112) & 7), (i - 112) >> 3
        return j >> 1, j & 1
    vidx = lambda T, g, e: (112 + 8 * e + g) if (lt and T == 3) else (64 + 16 * T + 2 * g + e)
    def issue(i):
        G, t = lg(i)
        if t == 0 or (lt and i >= 112): a(f's_xor_b32 s36, s35, {goff(G)}')
        r, va = ('s[40:43]', 'v1') if i < 64 else ('s[44:47]', 'v2')
        a(f'buffer_load_dwordx4 {sl(i)}, {va}, {r}, s36 offen offset:{t*256} {pol}')
    for i in range(D0): issue(i)
    stamp(a, P, 'siss0')
    a('s_branch L_s2')
    mid()
    a('L_s2:')
    a(f'v_and_b32 v2, 15, v0\nv_lshlrev_b32 v2, 4, v2\nv_bfe_u32 v3, v0, 4, 1\nv_lshl_add_u32 v2, v3, {ab[0]}, v2\nv_lshrrev_b32 v3, 5, v0\nv_lshl_add_u32 v2, v3, {ab[1]}, v2')
    srd(a, 44, 8, 's37', 524288)
    if P['vt']:
        a(f'v_mov_b32 v3, 0\nbuffer_load_dword v4, v3, s[44:47], s35 offen {pol}')
    a('s_barrier')
    srd(a, 52, 28, None, WS_USED)
    for e in range(2):
        for r in range(4):
            m16 = (0x11 << r) << (8 * e); m32 = m16 | (m16 << 16)
            a(f's_mov_b32 s{64+2*(4*e+r)}, {hex(m32)}\ns_mov_b32 s{65+2*(4*e+r)}, {hex(m32)}')
    a('s_mov_b32 s80, 0x05040100\ns_mov_b32 s81, 0x07060302')
    for i in range(D0, R):
        if i == D0 + 1: stamp(a, P, 'k0')
        dh = int(P['hpat'][i - D0]) if i - D0 < len(P['hpat']) else D0
        if P['vt'] and i < D0 + D: dh += 1
        a(f's_waitcnt vmcnt({dh-1})'); issue(i)
        if i == 8 + D: stamp(a, P, 's8')
    a('v_bfe_u32 v3, v0, 2, 1\nv_lshlrev_b32 v3, 9, v3\nv_and_b32 v4, 3, v0\nv_lshl_add_u32 v3, v4, 4, v3')
    a(f'v_lshrrev_b32 v4, 4, v0\nv_lshl_add_u32 v3, v4, 6, v3\nv_add_u32 v3, {L_Q}, v3')
    stamp(a, P, 'sB1a')
    q_wait(a, P, 'L_sq')
    stamp(a, P, 'sB1')
    a(f'ds_read_b128 v[{Q}:{Q+3}], v3\nds_read_b128 v[{Q+4}:{Q+7}], v3 offset:256')
    a(f'v_mov_b32 v4, 0xff800000\ns_mov_b32 s83, {hex(f2u(C_EXP))}\ns_waitcnt lgkmcnt(0)')
    chunks = []
    def kdpp(G):
        d = DT + 4 * (G & 1)
        a(f'v_mov_b32_dpp v{S+G}, v{d} quad_perm:[0,0,0,0] row_mask:0xf bank_mask:0xf')
        for r in range(1, 4):
            a(f'v_add_f32_dpp v{S+G}, v{d+r}, v{S+G} quad_perm:[{r},{r},{r},{r}] row_mask:0xf bank_mask:0xf')
        if G & 1:
            if not P['nornd']: a(f'v_cvt_pk_bf16_f32 v5, v{S+G-1}, v{S+G}\nv_lshlrev_b32 v{S+G-1}, 16, v5\nv_and_b32 v{S+G}, 0xffff0000, v5')
            a(f'v_max3_f32 v4, v4, v{S+G-1}, v{S+G}')
    def kchunk(G):
        def fn():
            d = DT + 4 * (G & 1)
            a(f'v_mfma_f32_16x16x32_bf16 v[{d}:{d+3}], {sl(2*G)}, v[{Q}:{Q+3}], 0')
            a(f'v_mfma_f32_16x16x32_bf16 v[{d}:{d+3}], {sl(2*G+1)}, v[{Q+4}:{Q+7}], v[{d}:{d+3}]')
            if G: kdpp(G - 1)
        return fn
    for G in range(32): chunks.append((2 * G + 1, [2 * G, 2 * G + 1], kchunk(G)))
    def sm0():
        kdpp(31)
        xgroup(a, 'v_max_f32', 4, 5)
        a('v_mul_f32 v6, s83, v4\nv_mov_b32 v7, 0')
        stamp(a, P, 'Kdone')
    chunks.append((63, [], sm0))
    def sm(k):
        def fn():
            for g in range(8 * k, 8 * k + 8): a(f'v_fma_f32 v{S+g}, v{S+g}, s83, -v6')
            for g in range(8 * k, 8 * k + 8): a(f'v_exp_f32 v{S+g}, v{S+g}')
            for g in range(8 * k, 8 * k + 8): a(f'v_add_f32 v7, v7, v{S+g}')
            for i in range(4 * k, 4 * k + 4): a(f'v_cvt_pk_bf16_f32 v{S+i}, v{S+2*i}, v{S+2*i+1}')
        return fn
    for k in range(4): chunks.append((63, [], sm(k)))
    def sm_end():
        xgroup(a, 'v_add_f32', 7, 5)
        a(f'v_mov_b32 v5, v7\nv_bfe_u32 v3, v0, 2, 1\nv_lshlrev_b32 v3, 6, v3\ns_lshl_b32 s37, s30, 3\ns_add_u32 s37, s37, {L_ML}\nv_add_u32 v3, s37, v3')
        a('s_mov_b64 exec, 0x11\nds_write_b64 v3, v[4:5]\ns_mov_b64 exec, -1')
    chunks.append((63, [], sm_end))
    AT = [32, 36]; PT = [40, 44, 8, 12]; ACC = DT
    late_ops = []; extra = [0]
    cnt = [0, 0]
    def vchunk(T, e, r):
        def fn():
            A = AT[cnt[0] & 1]; cnt[0] += 1
            mk = 64 + 2 * (4 * e + r)
            for p in range(4): a(f'v_cndmask_b32 v{A+p}, 0, v{S+4*T+p}, s[{mk}:{mk+1}]')
            for jj in range(2):
                j = 4 * jj + r; m, hh = j >> 1, j & 1
                B = PT[cnt[1] & 3]; cnt[1] += 1
                for p in range(4):
                    ev = vidx(T, 2 * p, e); od = vidx(T, 2 * p + 1, e)
                    a(f'v_perm_b32 v{B+p}, v{slot(od)+m}, v{slot(ev)+m}, s{80+hh}')
                c = '0' if (T == 0 and e == 0 and r == 0) else f'v[{ACC+4*jj}:{ACC+4*jj+3}]'
                a(f'v_mfma_f32_16x16x32_bf16 v[{ACC+4*jj}:{ACC+4*jj+3}], v[{A}:{A+3}], v[{B}:{B+3}], {c}')
        return fn
    for T in range(4):
        for e in range(2):
            for r in range(4):
                if lt and T == 3 and e == 1: continue
                fr = [vidx(T, g, e) for g in range(8)] if r == 3 else []
                chunks.append((vidx(T, 7, e), fr, vchunk(T, e, r)))
    if lt:
        FRG = lambda j: slot(112 + j)
        AM = [32, 36, 40, 44]
        def pre(p):
            def fn2():
                if p == 0:
                    for r in range(4):
                        for q in range(4): a(f'v_cndmask_b32 v{AM[r]+q}, 0, v{S+12+q}, s[{72+2*r}:{73+2*r}]')
                for j in range(8):
                    jj = (j & 1) * 4 + (j >> 1); m, hh = jj >> 1, jj & 1
                    a(f'v_perm_b32 v{FRG(jj)+p}, v{slot(vidx(3, 2*p+1, 1))+m}, v{slot(vidx(3, 2*p, 1))+m}, s{80+hh}')
                if p == 3:
                    for j in range(8):
                        jj = (j & 1) * 4 + (j >> 1); r = jj & 3; d = ACC + 4 * (jj >> 2)
                        a(f'v_mfma_f32_16x16x32_bf16 v[{d}:{d+3}], v[{AM[r]}:{AM[r]+3}], v[{FRG(jj)}:{FRG(jj)+3}], v[{d}:{d+3}]')
                        if P['late'] == 2 and j in (1, 3, 5): a(late_ops[j // 2])
                if P['late'] == 3 and p == 2:
                    for x in late_ops: a(x)
                    extra[0] = 3
            return fn2
        for p in range(4): chunks.append((vidx(3, 2 * p + 1, 1), [], pre(p)))
    freed = set(); ci = 0; landed = -1
    XR = RING + 4 * R
    if P['orc']: a('s_mov_b32 s62, 0')
    if P['stag']: a(f's_and_b32 s37, s30, {P["stp"]-1}\ns_mov_b32 s62, {P["stag"] | (P["stag"] << P["stp"])}\ns_lshr_b32 s62, s62, s37')
    if P['iw']: a(f's_mov_b32 s62, 0\ns_lshl_b32 s37, s30, 2\ns_add_u32 s37, s37, {L_PROG}\nv_mov_b32 v{XR+3}, s37\nv_and_b32 v{XR+2}, 7, v0\nv_lshlrev_b32 v{XR+2}, 2, v{XR+2}\nv_add_u32 v{XR+2}, {L_PROG}, v{XR+2}')
    if P['podd'] or P['peven']:
        a(f's_getreg_b32 s62, hwreg(HW_REG_XCC_ID)\ns_bitcmp1_b32 s62, 0\ns_mov_b32 s62, {P["peven"]}\ns_cselect_b32 s62, {P["podd"]}, s62')
    if P['ctl']: a(f's_mov_b32 s62, 0\ns_lshl_b32 s37, s30, 2\ns_add_u32 s37, s37, {L_PROG}\nv_mov_b32 v{XR+3}, s37\nv_mov_b32 v{XR+2}, {L_PROG}')
    def run_chunk(issued):
        nonlocal ci, landed
        nd, fr, fn = chunks[ci]; ci += 1
        if nd > landed:
            a(f's_waitcnt vmcnt({issued-1-nd})'); landed = nd
        if not (P['nocomp'] and fr is not None and fn.__name__ == 'fn' and ci <= len(chunks) - 8): fn()
        freed.update(fr)
    for i in range(R, 128):
        while (i - R) not in freed: run_chunk(i)
        Di = P['Dend'] if (P['Dend'] and i >= 128 - P['nend']) else D
        pat = P['kpat'] if i < 64 else P['vpat']
        if pat and not (P['Dend'] and i >= 128 - P['nend']): Di = int(pat[i % len(pat)])
        if P['ctl'] and P['c0'] + P['lag'] < i <= P['c1'] + 6:
            if i % P['crd'] == P['crd'] - 1: a(f's_waitcnt lgkmcnt(0)\nv_readfirstlane_b32 s62, v{XR+1}')
            if Di == 3 and ((P['cmask'] if P['cver'] == 1 else P['cm1'] | P['cm2']) >> (i % 4) & 1):
                a(f's_waitcnt vmcnt(2)\ns_bitcmp0_b32 s62, {i % 4}\ns_cbranch_scc1 L_b{i}\ns_waitcnt vmcnt(1)\nL_b{i}:')
        if P['iw'] and 30 < i <= 122:
            if i % P['iwp'] == 1:
                a(f's_waitcnt lgkmcnt(0)\nv_cmp_gt_u32 vcc, {i - 1 - P["iwd"]}, v{XR+1}\ns_cmp_lg_u32 vcc_lo, 0\ns_cselect_b32 s62, {P["iw"]}, 0')
            if Di == 3 and (P['iw'] >> (i % 4) & 1):
                a(f's_waitcnt vmcnt(2)\ns_bitcmp0_b32 s62, {i % 4}\ns_cbranch_scc1 L_b{i}\ns_waitcnt vmcnt(1)\nL_b{i}:')
        if P['stag'] and Di == 3:
            a(f's_waitcnt vmcnt(2)\ns_bitcmp0_b32 s62, {i % P["stp"]}\ns_cbranch_scc1 L_b{i}\ns_waitcnt vmcnt(1)\nL_b{i}:')
        if P['orc'] and i < 120:
            if i % 4 == 0: a('s_memrealtime s[96:97]')
            if i % 4 == 1: a(f's_waitcnt lgkmcnt(0)\ns_sub_u32 s96, s96, s98\ns_cmp_lt_u32 s96, {P["orc0"] + (i - 1) * P["orc"] // 10}\ns_cselect_b32 s62, {P["omask"]}, 0')
            if Di == 3 and (P['omask'] >> (i % 4) & 1):
                a(f's_waitcnt vmcnt(2)\ns_bitcmp0_b32 s62, {i % 4}\ns_cbranch_scc1 L_b{i}\ns_waitcnt vmcnt(1)\nL_b{i}:')
        if False: pass
        elif (P['podd'] or P['peven']) and i >= P['p0'] and ((P['podd'] | P['peven']) >> (i % 16) & 1):
            if (P['podd'] & P['peven']) >> (i % 16) & 1: a(f's_waitcnt vmcnt({Di})')
            else: a(f's_waitcnt vmcnt({Di})\ns_bitcmp1_b32 s62, {i % 16}\ns_cbranch_scc1 L_b{i}\ns_waitcnt vmcnt({Di-1})\nL_b{i}:')
            landed = max(landed, i - Di - 1)
        elif i - Di > landed:
            a(f's_waitcnt vmcnt({Di-1})'); landed = i - Di
        issue(i)
        if P['ctl'] and i % 2 == 0 and P['c0'] <= i <= P['c1'] + 4: a(f'v_mov_b32 v{XR}, {i}\nds_write_b32 v{XR+3}, v{XR}')
        if P['ctl'] and i % P['crd'] == P['crd'] - 2 and P['c0'] + P['lag'] <= i <= P['c1'] + 5: a(f'ds_read_b32 v{XR+1}, v{XR+2} offset:32')
        if P['iw'] and i >= 26 and i <= 122: a(f'v_mov_b32 v{XR}, {i}\nds_write_b32 v{XR+3}, v{XR}')
        if P['iw'] and i % P['iwp'] == 0 and 30 <= i <= 121: a(f'ds_read_b32 v{XR+1}, v{XR+2}')
        if i == 44 + D: stamp(a, P, 's44')
        if i == 96 + D: stamp(a, P, 's96')
        n = 0
        while ci < len(chunks) and chunks[ci][0] <= landed and n < P['budget']:
            run_chunk(i + 1); n += 1
    def tail_addr():
        a(f'v_lshrrev_b32 v3, 5, v0\nv_lshlrev_b32 v3, 9, v3\nv_bfe_u32 v4, v0, 4, 1\nv_lshl_add_u32 v3, v4, 10, v3')
        a(f'v_and_b32 v4, 15, v0\nv_lshl_add_u32 v3, v4, 5, v3\ns_lshl_b32 s37, s30, 11\ns_add_u32 s37, s37, {L_PART}\nv_add_u32 v3, s37, v3')
        a(f's_lshl_b32 s37, s30, 8\ns_add_u32 s37, s37, {L_PART}\nv_lshl_add_u32 v4, v0, 2, s37')
        a(f's_lshr_b32 s37, s30, 2\ns_lshl_b32 s37, s37, 5\ns_add_u32 s37, s37, {L_F}\nv_mov_b32 v5, s37')
        if P['ov']:
            assert P['qx']
            a(f'v_lshlrev_b32 v6, 2, v0\ns_lshl_b32 s60, s38, 12')
            a(f's_lshl_b32 s37, s30, 8\ns_add_u32 s60, s60, s37\ns_add_u32 s60, s60, {QBUF}\ns_xor_b32 s85, s85, 0x55')
        else:
            a(f'v_lshlrev_b32 v6, 2, v0\ns_lshl_b32 s60, s38, 11\ns_lshl_b32 s37, s30, 8\ns_add_u32 s60, s60, s37\ns_add_u32 s60, s60, {OBUF}')
        a(f'v_lshrrev_b32 v1, 4, v0\nv_bfe_u32 v7, v0, 2, 2\nv_and_b32 v8, 3, v0')
        if P['late']:
            a(f'v_lshl_add_u32 v7, v1, 2, v7\nv_bfe_u32 v2, v7, 1, 2\nv_xor_b32 v2, s30, v2\nv_and_b32 v2, 3, v2\nv_lshlrev_b32 v7, 7, v7\nv_lshl_add_u32 v7, v8, 3, v7\nv_lshl_add_u32 v7, v2, 5, v7\nv_add_u32 v7, {L_WO}, v7')
        else:
            a(f'v_lshl_add_u32 v7, v1, 2, v7\nv_lshlrev_b32 v7, 7, v7\nv_lshl_add_u32 v7, v8, 3, v7\ns_lshl_b32 s37, s30, 5\ns_add_u32 s37, s37, {L_WO}\nv_add_u32 v7, s37, v7')
        a(f'v_and_b32 v2, 15, v0\nv_lshlrev_b32 v2, 4, v2\nv_lshl_add_u32 v2, v1, {12 if P["ov"] else 11}, v2')
        a(f's_lshl_b32 s61, s30, {17 if P["ov"] else 16}\ns_lshl_b32 s37, s31, {14 if P["ov"] else 13}\ns_add_u32 s61, s61, s37\ns_and_b32 s37, s32, 3\ns_lshl_b32 s37, s37, 9\ns_add_u32 s61, s61, s37\ns_add_u32 s61, s61, {QBUF if P["ov"] else OBUF}')
    nlate = 0
    while lt and ci < len(chunks) - 4: run_chunk(128)
    if P['late']:
        assert lt
        a('v_lshrrev_b32 v3, 3, v0\nv_mul_u32_u24 v4, 896, v3\nv_and_b32 v3, 6, v3\nv_xor_b32 v3, v3, v0\nv_and_b32 v3, 7, v3\nv_lshl_add_u32 v4, v3, 4, v4')
        a(f'v_mov_b32 v{XR+3}, v4')
        a('s_and_b32 s36, s32, 3\ns_lshl_b32 s37, s31, 2\ns_add_u32 s36, s36, s37\ns_lshr_b32 s39, s32, 2\ns_lshl_b32 s39, s39, 7')
        a(f's_mul_i32 s37, s36, 114688\ns_add_u32 s37, s37, s39\ns_cmp_lt_u32 s32, 28\ns_cselect_b32 s37, s37, 0\ns_cselect_b32 s62, {127*896+128}, 0')
        srd(a, 56, 12, 's37', 's62')
        a(f's_mul_i32 s37, s36, 50176\ns_add_u32 s37, s37, s39\ns_cmp_lt_u32 s32, 28\ns_cselect_b32 s37, s37, 0\ns_cselect_b32 s62, {55*896+128}, 0')
        srd(a, 48, 20, 's37', 's62')
        a(f's_mul_i32 s64, s30, {16*896}\ns_add_u32 s65, s64, {8*896}\ns_lshr_b32 s66, s64, 1\ns_lshl_b32 s67, s30, 11\ns_add_u32 s67, s67, {L_WO}\ns_lshl_b32 s68, s30, 10\ns_add_u32 s68, s68, {L_W2}')
        late_ops.extend([f's_mov_b32 m0, s67\nbuffer_load_dwordx4 v{XR+3}, s[56:59], s64 offen {P["opol"]} lds',
                         f's_add_u32 m0, s67, 1024\nbuffer_load_dwordx4 v{XR+3}, s[56:59], s65 offen {P["opol"]} lds',
                         f's_mov_b32 m0, s68\nbuffer_load_dwordx4 v{XR+3}, s[48:51], s66 offen {P["mpol"]} lds'])
        if P['late'] == 1:
            for x in late_ops: a(x)
            nlate = 3
    tail_addr()
    a(f'v_lshl_add_u32 v{XR+2}, v8, 2, v1\nv_lshlrev_b32 v{XR+2}, 1, v{XR+2}\ns_lshl_b32 s39, s32, 5')
    srd(a, 44, 22, None, 896)
    a(f'buffer_load_ushort v{XR}, v{XR+2}, s[44:47], s39 offen')
    srd(a, 40, 4, None, 7168)
    a(f's_mul_i32 s37, s31, 896\ns_add_u32 s63, s37, s39\nbuffer_load_ushort v{XR+1}, v{XR+2}, s[40:43], s63 offen')
    srd(a, 44, 24, None, 7168)
    while ci < len(chunks): run_chunk(130 + nlate + extra[0])
    stamp(a, P, 'Vlast')
    a('L_tail:')
    a(f'ds_write_b128 v3, v[{ACC}:{ACC+3}]\nds_write_b128 v3, v[{ACC+4}:{ACC+7}] offset:16\ns_waitcnt lgkmcnt(0)\ns_barrier')
    stamp(a, P, 'B2')
    for w in range(4): a(f'ds_read2st64_b32 v[{16+2*w}:{17+2*w}], v4 offset0:{16*w} offset1:{16*w+8}')
    a(f'ds_read_b128 v[24:27], v5\nds_read_b128 v[28:31], v5 offset:16\ns_waitcnt lgkmcnt(0)')
    a('v_mul_f32 v32, v16, v24\nv_mul_f32 v33, v17, v25')
    for w in range(2, 8): a(f'v_fmac_f32 v{32+(w&1)}, v{16+w}, v{24+w}')
    a('v_mov_b32 v9, s85\nv_add_f32 v32, v32, v33\nv_bfi_b32 v32, s82, v9, v32')
    hand_store(a, 'buffer_store_dword v32, v6, s[52:55], s60 offen')
    stamp(a, P, 'ost')
    a('s_cmp_lt_u32 s32, 28\ns_cbranch_scc0 L_end')
    GL = 'buffer_load_dwordx4 v[16:19], v2, s[52:55], s61 offen sc1\nbuffer_load_dwordx4 v[20:23], v2, s[52:55], s61 offen offset:256 sc1'
    a(GL)
    BF, AF, DR = 56, 72, 88
    HA, B2F = 92, 100
    if P['late']:
        a(f'v_and_b32 v10, 7, v0\nv_mul_u32_u24 v10, {HSTR}, v10\nv_lshl_add_u32 v10, v1, 3, v10\nv_add_u32 v10, {L_H}, v10')
        for k in range(2): a(f'ds_read_b64 v[{HA+4*k}:{HA+4*k+1}], v10 offset:{k*64}\nds_read_b64 v[{HA+4*k+2}:{HA+4*k+3}], v10 offset:{k*64+32}')
    else:
        a('s_cmp_lt_u32 s30, 4\ns_cbranch_scc0 L_nofr')
        for jj in range(4):
            b = BF + 4 * jj
            a(f'ds_read_b64_tr_b16 v[{b}:{b+1}], v7 offset:{jj*4096}\nds_read_b64_tr_b16 v[{b+2}:{b+3}], v7 offset:{jj*4096+2048}')
        a(f's_lshl_b32 s37, s30, 10\ns_add_u32 s37, s37, {L_C}\nv_lshl_add_u32 v10, v0, 4, s37\nds_read_b128 v[{DR}:{DR+3}], v10')
        a('L_nofr:')
    a(f'v_and_b32 v4, 15, v0\nv_lshlrev_b32 v4, 3, v4\nv_and_b32 v5, 1, v1\nv_lshl_add_u32 v4, v5, 2, v4\nv_lshrrev_b32 v5, 1, v1\nv_lshl_add_u32 v4, v5, 7, v4')
    a(f's_mul_i32 s37, s30, {OSTR}\ns_add_u32 s37, s37, {L_O}\nv_add_u32 v5, s37, v4')
    a(f'v_and_b32 v12, 7, v0\nv_mul_u32_u24 v12, {OSTR}, v12\nv_lshl_add_u32 v12, v1, 3, v12\nv_add_u32 v12, {L_O}, v12')
    a(f's_and_b32 s60, s32, 28\ns_add_u32 s60, s60, s30\ns_lshl_b32 s60, s60, 5\ns_lshl_b32 s37, s31, 2\ns_add_u32 s60, s60, s37\ns_and_b32 s37, s32, 3\ns_add_u32 s60, s60, s37')
    a(f's_lshl_b32 s60, s60, 9\ns_add_u32 s60, s60, {PBUF}\ns_mov_b32 s86, {P["spin"]}')
    a('s_branch L_gchk')
    a('L_gpoll:')
    if P['gsl']: a(f's_sleep {P["gsl"]}')
    a(GL)
    a('L_gchk:')
    a('s_waitcnt vmcnt(0)')
    tag_check(a, range(16, 24), 10, 11, 4)
    a('s_sub_u32 s86, s86, 1\ns_cbranch_scc1 L_gdone\ns_cbranch_vccnz L_gpoll')
    a('L_gdone:')
    stamp(a, P, 'gok')
    for p in (16, 17, 20, 21): a(f'v_permlane16_swap_b32 v{p}, v{p+2}')
    for p in (16, 17, 20, 21): a(f'v_add_f32 v{p}, v{p}, v{p+2}')
    a('v_permlane32_swap_b32 v16, v20\nv_permlane32_swap_b32 v17, v21\nv_add_f32 v16, v16, v20\nv_add_f32 v17, v17, v21')
    a('v_cvt_pk_bf16_f32 v16, v16, v17\nds_write_b32 v5, v16\ns_waitcnt lgkmcnt(0)\ns_barrier')
    stamp(a, P, 'B3')
    a('s_cmp_lt_u32 s30, 4\ns_cbranch_scc0 L_fin')
    if P['late']:
        d2 = L_W2 - L_WO
        for k in range(2): a(f'ds_read_b64_tr_b16 v[{B2F+4*k}:{B2F+4*k+1}], v7 offset:{d2+k*4096}\nds_read_b64_tr_b16 v[{B2F+4*k+2}:{B2F+4*k+3}], v7 offset:{d2+k*4096+2048}')
        for jj in range(4):
            b = BF + 4 * jj
            a(f'ds_read_b64 v[{AF+4*jj}:{AF+4*jj+1}], v12 offset:{jj*64}\nds_read_b64 v[{AF+4*jj+2}:{AF+4*jj+3}], v12 offset:{jj*64+32}')
            a(f'ds_read_b64_tr_b16 v[{b}:{b+1}], v7 offset:{jj*4096}\nds_read_b64_tr_b16 v[{b+2}:{b+3}], v7 offset:{jj*4096+2048}')
            if jj == 1:
                for k in range(2):
                    a(f's_waitcnt lgkmcnt({10-2*k})')
                    a(f'v_mfma_f32_16x16x32_bf16 v[{DR}:{DR+3}], v[{HA+4*k}:{HA+4*k+3}], v[{B2F+4*k}:{B2F+4*k+3}], ' + ('0' if k == 0 else f'v[{DR}:{DR+3}]'))
        for jj in range(4):
            a(f's_waitcnt lgkmcnt({12-4*jj})')
            a(f'v_mfma_f32_16x16x32_bf16 v[{DR}:{DR+3}], v[{AF+4*jj}:{AF+4*jj+3}], v[{BF+4*jj}:{BF+4*jj+3}], v[{DR}:{DR+3}]')
    else:
        for jj in range(4): a(f'ds_read_b64 v[{AF+4*jj}:{AF+4*jj+1}], v12 offset:{jj*64}\nds_read_b64 v[{AF+4*jj+2}:{AF+4*jj+3}], v12 offset:{jj*64+32}')
        for jj in range(4):
            a(f's_waitcnt lgkmcnt({6-2*jj})')
            a(f'v_mfma_f32_16x16x32_bf16 v[{DR}:{DR+3}], v[{AF+4*jj}:{AF+4*jj+3}], v[{BF+4*jj}:{BF+4*jj+3}], v[{DR}:{DR+3}]')
    a(f'v_permlane32_swap_b32 v{DR}, v{DR+1}\nv_permlane32_swap_b32 v{DR+2}, v{DR+3}')
    tag_put(a, (DR, DR + 2), 9, 82, 0x200)
    a(f'buffer_store_dword v{DR}, v6, s[52:55], s60 offen {P["ppol"]}\nbuffer_store_dword v{DR+2}, v6, s[52:55], s60 offen offset:256 {P["ppol"]}')
    stamp(a, P, 'pst')
    if P['diag']:
        a('s_cmp_lg_u32 s30, 0\ns_cbranch_scc1 L_end')
        stamp_store(a, P, stamp_items(P, [x for x in S_PTS if x not in ('g2ok', 'end', 'fst', 'fcnt')]), hw=True)
    a('s_endpgm')
    a('L_fin:')
    if P['wb']:
        a('s_cmp_eq_u32 s30, 5\ns_cbranch_scc0 L_nowb\ns_cmp_eq_u32 s32, 0\ns_cbranch_scc0 L_end\nbuffer_wbl2 sc1\ns_waitcnt vmcnt(0)\ns_endpgm\nL_nowb:')
    a('s_cmp_eq_u32 s30, 7\ns_cbranch_scc0 L_end')
    a('v_and_b32 v8, 3, v0')
    a(f'v_lshrrev_b32 v2, 2, v0\nv_lshlrev_b32 v2, 9, v2\nv_lshl_add_u32 v2, v8, 4, v2\nv_add_u32 v3, 8192, v2')
    a(f's_lshl_b32 s61, s32, 14\ns_and_b32 s37, s31, 3\ns_lshl_b32 s37, s37, 7\ns_add_u32 s61, s61, s37\ns_lshr_b32 s37, s31, 2\ns_lshl_b32 s37, s37, 6\ns_add_u32 s61, s61, s37\ns_add_u32 s61, s61, {PBUF}\ns_mov_b32 s86, {P["spin"]}')
    a(f'v_lshlrev_b32 v24, 16, v{XR}\nv_lshlrev_b32 v25, 16, v{XR+1}\nv_add_f32 v24, v24, v25')
    stamp(a, P, 'fst')
    a('L_fpoll:')
    a(f'buffer_load_dwordx4 v[16:19], v2, s[52:55], s61 offen {P["lpol"]}\nbuffer_load_dwordx4 v[20:23], v3, s[52:55], s61 offen {P["lpol"]}')
    a('s_waitcnt vmcnt(0)')
    tag_check(a, range(16, 24), 8, 9, 10)
    a('s_sub_u32 s86, s86, 1\ns_cbranch_scc1 L_fdone\ns_cbranch_vccz L_fdone')
    if P['fthr']:
        a(f's_bcnt1_i32_b64 s37, vcc\ns_cmp_lt_u32 s37, {P["fthr"]}\ns_cbranch_scc1 L_fpoll\ns_sleep {P["fsl2"]}')
    if P['fsl']: a(f's_sleep {P["fsl"]}')
    a('s_branch L_fpoll')
    a('L_fdone:')
    stamp(a, P, 'g2ok')
    if P['diag'] and 'fcnt' in pts(P):
        r = 88 + 2 * pts(P).index('fcnt'); r0 = 88 + 2 * pts(P).index('fst')
        a(f's_sub_u32 s37, {P["spin"]}, s86\ns_mul_i32 s37, s37, 100\ns_add_u32 s{r}, s{r0}, s37\ns_addc_u32 s{r+1}, s{r0+1}, 0')
    for i in range(4): a(f'v_add_f32 v{16+i}, v{16+i}, v{20+i}')
    a('v_permlane16_swap_b32 v16, v17\nv_permlane16_swap_b32 v18, v19\nv_add_f32 v16, v16, v17\nv_add_f32 v18, v18, v19')
    a('v_permlane32_swap_b32 v16, v18\nv_add_f32 v16, v16, v18')
    a('v_add_f32_dpp v16, v16, v16 row_ror:4 row_mask:0xf bank_mask:0xf')
    a('v_add_f32_dpp v16, v16, v16 row_ror:8 row_mask:0xf bank_mask:0xf')
    a('v_add_f32 v16, v16, v24\nv_cvt_pk_bf16_f32 v16, v16, v16')
    a('s_mov_b32 exec_lo, 0x000f000f\ns_mov_b32 exec_hi, 0x000f000f')
    a(f'buffer_store_short v16, v{XR+2}, s[44:47], s63 offen {P["outpol"]}')
    a('s_cmp_lg_u32 s2, 0\ns_cbranch_scc1 L_noep')
    a('v_mov_b32 v8, 0\nv_mov_b32 v9, s84\ns_mov_b64 exec, 1\nbuffer_store_dword v9, v8, s[52:55], 0 offen')
    a('L_noep:')
    if P['hold']:
        a(f'L_hold:\ns_memrealtime s[96:97]\ns_waitcnt lgkmcnt(0)\ns_sub_u32 s96, s96, s98\ns_cmp_lt_u32 s96, {P["hold"]}\ns_cbranch_scc1 L_hold')
    if P['diag']:
        a('s_mov_b64 exec, -1\ns_waitcnt vmcnt(0)')
        stamp(a, P, 'end')
        stamp_store(a, P, stamp_items(P, ['g2ok', 'end', 'fst', 'fcnt']))
    a('s_endpgm')

def dma_loop(a, lab, n, depth, vaddr, sstep, lds0, pol):
    a(f's_mov_b32 s36, 0\ns_mov_b32 s62, {lds0}\ns_mov_b32 s63, {n}')
    a(f'{lab}:')
    a(f's_mov_b32 m0, s62\ns_waitcnt vmcnt({depth-1})')
    a(f'buffer_load_dwordx4 v{vaddr}, s[56:59], s36 offen {pol} lds')
    a(f's_add_u32 s36, s36, {sstep}\ns_add_u32 s62, s62, 1024\ns_sub_u32 s63, s63, 1\ns_cmp_lg_u32 s63, 0\ns_cbranch_scc1 {lab}')

XF, FF, TT = 16, 44, 100
def x_addr(a):
    a('v_and_b32 v10, 15, v0\nv_lshrrev_b32 v9, 4, v0\nv_and_b32 v8, 7, v0\nv_mul_u32_u24 v8, 896, v8')
    a('v_bfe_u32 v3, v0, 3, 1\nv_mul_u32_u24 v3, 448, v3\nv_lshl_add_u32 v8, v9, 4, v8\nv_add_u32 v8, v8, v3')
def x_load(a, P):
    srd(a, 48, 4, None, 7168)
    for ks in range(7): a(f'buffer_load_dwordx4 v[{XF+4*ks}:{XF+4*ks+3}], v8, s[48:51], 0 offen offset:{ks*64} {P["xpol"]}')
def tag_check(a, regs, t0, t1, acc, mask=TMASK):
    regs = list(regs)
    ts = 's85' if mask == TMASK else 's80'
    for r in regs: a(f'v_xor_b32 v{r}, {ts}, v{r}')
    two = len(regs) >= 6
    a(f'v_or_b32 v{acc}, v{regs[0]}, v{regs[1]}')
    rest = regs[2:]
    if two: a(f'v_or3_b32 v{t0}, v{rest[0]}, v{rest[1]}, v{rest[2]}'); rest = rest[3:]
    k = 0
    while len(rest) >= 2:
        d = t0 if (two and k & 1) else acc
        a(f'v_or3_b32 v{d}, v{d}, v{rest[0]}, v{rest[1]}'); rest = rest[2:]; k += 1
    if two and rest: a(f'v_or3_b32 v{acc}, v{acc}, v{t0}, v{rest[0]}')
    elif two: a(f'v_or_b32 v{acc}, v{acc}, v{t0}')
    elif rest: a(f'v_or_b32 v{acc}, v{acc}, v{rest[0]}')
    a(f'v_and_b32 v{acc}, {mask}, v{acc}\nv_cmp_ne_u32 vcc, 0, v{acc}')
def tag_put(a, regs, tagv, ms, half):
    for r in regs: a(f'v_add_u32 v{r}, {half}, v{r}')
    for r in regs: a(f'v_bfi_b32 v{r}, s{ms}, v{tagv}, v{r}')
def tag_strip(a, regs, half, ms=82):
    for r in regs: a(f'v_bfi_b32 v{r}, s{ms}, v{half}, v{r}')
_st = [0]; HPOL = ['']
def hand_store(a, ins):
    _st[0] += 1; n = _st[0]
    a(f's_cmp_eq_u32 s87, 0\ns_cbranch_scc1 L_wt{n}\n{ins} {HPOL[0]}\ns_branch L_we{n}\nL_wt{n}:\n{ins} sc1\nL_we{n}:')

def unit_gemm(a, lds, va, st_v, st_s, tagv, ms, before_pub=None, exact=False):
    TA, DQ = 44, 108
    seq = [(t, ks) for t in range(4) for ks in range(4)]
    def rd(n):
        t, ks = seq[n]; r = TA + 4 * n; o = lds + ks * 4096 + t * 32
        a(f'ds_read_b64_tr_b16 v[{r}:{r+1}], v{va} offset:{o}\nds_read_b64_tr_b16 v[{r+2}:{r+3}], v{va} offset:{o+512}')
    def pub(t):
        if exact:
            for u in range(2):
                r = 128 + 8 * (t & 1) + 4 * u
                a(f'v_mov_b32 v{r}, v{DQ+4*t+2*u}\nv_mov_b32 v{r+1}, v{DQ+4*t+2*u+1}')
                hand_store(a, f'buffer_store_dwordx4 v[{r}:{r+3}], v{st_v}, s[52:55], s{st_s} offen offset:{t*128+u*64}')
            return
        tag_put(a, range(DQ + 4 * t, DQ + 4 * t + 4), tagv, ms, 0x80 if ms == 81 else 0x200)
        hand_store(a, f'buffer_store_dwordx4 v[{DQ+4*t}:{DQ+4*t+3}], v{st_v}, s[52:55], s{st_s} offen offset:{t*64}')
    for n in range(6): rd(n)
    if exact:
        for k in range(4): a(f'v_mov_b32 v{130+4*k}, s84\nv_mov_b32 v{131+4*k}, s84')
    for n, (t, ks) in enumerate(seq):
        if n + 6 < 16: rd(n + 6)
        a(f's_waitcnt lgkmcnt({2*min(6, 15-n)})')
        r = TA + 4 * n; d = DQ + 4 * t
        c = '0' if ks == 0 else f'v[{d}:{d+3}]'
        a(f'v_mfma_f32_16x16x32_bf16 v[{d}:{d+3}], v[{r}:{r+3}], v[{XF+4*ks}:{XF+4*ks+3}], {c}')
        if before_pub is None and n in (7, 11, 15): pub(n // 4 - 1)
    if before_pub is not None:
        before_pub()
        for t in range(3): pub(t)
    pub(3)

def helper(a, P):
    a('L_helper:')
    if P['ctl']: a('s_cmp_eq_u32 s30, 9\ns_cbranch_scc1 L_ctl')
    stamp(a, P, 'hstart')
    if P['cpf']:
        a('s_getpc_b64 s[56:57]\ns_mov_b32 s58, 4352\ns_mov_b32 s59, 0x20000\nv_lshlrev_b32 v1, 6, v0')
        a('buffer_load_dword v15, v1, s[56:59], 0 offen offset:256')
    x_addr(a)
    a('v_lshrrev_b32 v4, 3, v0\nv_lshlrev_b32 v1, 13, v4\nv_and_b32 v2, 7, v0\nv_lshl_add_u32 v1, v2, 4, v1')
    a('v_mul_u32_u24 v4, 3584, v4\nv_lshl_add_u32 v4, v2, 4, v4')
    a('s_and_b32 s63, s32, 1\ns_bfe_u32 s62, s32, 0x10001\ns_mul_i32 s64, s62, 224\ns_lshl_b32 s36, s63, 7\ns_add_u32 s64, s64, s36')
    a('s_lshl_b32 s65, s63, 5\ns_sub_u32 s65, 127, s65\ns_lshr_b32 s66, s32, 2')
    a('s_lshl_b32 s37, s64, 13\ns_lshl_b32 s39, s31, 3\ns_add_u32 s39, s39, s66\ns_lshl_b32 s39, s39, 7\ns_add_u32 s37, s37, s39')
    a('s_lshl_b32 s39, s65, 13\ns_add_u32 s39, s39, 128')
    a('s_lshl_b32 s60, s63, 8\ns_mul_i32 s61, s63, 192\ns_sub_u32 s61, 192, s61')
    a('s_waitcnt lgkmcnt(0)')
    stamp(a, P, 'hkarg')
    a('s_load_dword s84, s[28:29], 0')
    srd(a, 48, 4, None, 7168)
    for ks in range(7):
        if ks < 3: a(f'buffer_load_dwordx4 v[{XF+4*ks}:{XF+4*ks+3}], v8, s[48:51], s60 offen offset:{ks*64} {P["xpol"]}')
        else: a(f'buffer_load_dwordx4 v[{XF+4*ks}:{XF+4*ks+3}], v8, s[48:51], s61 offen offset:{(ks-3)*64} {P["xpol"]}')
    if P['abl'] & 2: a('s_mov_b32 s39, 0')
    srd(a, 56, 10, 's37', 's39')
    for i in range(16):
        a(f's_mov_b32 m0, {L_WQ+i*1024}\ns_mov_b32 s36, {i*65536}')
        a(f'buffer_load_dwordx4 v1, s[56:59], s36 offen {P["wpol"]} lds')
    stamp(a, P, 'wqiss')
    a(f'v_mov_b32 v126, -1\nv_mov_b32 v127, -1\nv_lshlrev_b32 v3, 3, v0\nv_add_u32 v3, {L_ML}, v3\nv_mov_b32 v5, {L_TAG}')
    a('s_mov_b64 exec, 0xffff\nds_write_b64 v3, v[126:127]\nds_write_b64 v5, v[126:127]\ns_mov_b64 exec, -1')
    if P['iw']: a(f'v_mov_b32 v126, 0\nv_and_b32 v3, 7, v0\nv_lshlrev_b32 v3, 2, v3\nv_add_u32 v3, {L_PROG}, v3\nds_write_b32 v3, v126')
    srd(a, 52, 28, None, WS_USED)
    a(f'v_lshlrev_b32 v2, 4, v0\ns_getreg_b32 s68, hwreg(HW_REG_XCC_ID)\ns_and_b32 s68, s68, 15\ns_lshl_b32 s68, s68, 12')
    a(f's_lshl_b32 s69, s31, 12\ns_add_u32 s69, s69, {XBUF}\ns_lshl_b32 s37, s32, 7\ns_add_u32 s37, s37, s69\ns_waitcnt lgkmcnt(0)')
    a(f's_add_u32 s84, s84, 0x9E3779B9\ns_and_b32 s85, s84, {TMASK}\ns_and_b32 s80, s84, {QMASK}\ns_or_b32 s68, s68, s85\nv_mov_b32 v6, s85\nv_mov_b32 v124, s68')
    a('s_mov_b64 exec, 1\nbuffer_store_dword v124, v2, s[52:55], s37 offen sc1\ns_mov_b64 exec, -1')
    stamp(a, P, 'xst')
    a('s_barrier')
    a('v_and_b32 v125, 31, v0\nv_lshlrev_b32 v125, 7, v125')
    a(f'v_mov_b32 v14, {hex(OOB)}\ns_mov_b32 s82, {TMASK}\ns_mov_b32 s81, {QMASK}\ns_mov_b32 s83, {hex(f2u(C_EXP))}')
    a(f'v_bfe_u32 v3, v0, 2, 2\nv_lshl_add_u32 v12, v9, 3, v3\nv_lshlrev_b32 v12, 7, v12\nv_and_b32 v5, 3, v0\nv_lshl_add_u32 v12, v5, 3, v12')
    a(f'v_and_b32 v5, 7, v0\nv_lshlrev_b32 v13, {17 if P["qx"] else 16}, v5\nv_lshl_add_u32 v13, v9, 4, v13\nv_bfe_u32 v3, v0, 3, 1\nv_cmp_eq_u32 vcc, s62, v3')
    a(f'v_lshlrev_b32 v5, 12, v5\nv_lshl_add_u32 v5, v9, 4, v5\nv_cndmask_b32 v13, v14, v13, vcc\nv_cndmask_b32 v5, v14, v5, vcc')
    if P['qx']: a(f's_and_b32 s37, s32, 3\ns_lshl_b32 s60, s37, 12\ns_lshl_b32 s39, s31, 14\ns_add_u32 s60, s60, s39\ns_lshl_b32 s39, s66, 9\ns_add_u32 s60, s60, s39\ns_add_u32 s60, s60, {QBUF}')
    else:
        a(f's_and_b32 s37, s32, 3\ns_lshl_b32 s60, s37, 14\ns_lshl_b32 s39, s31, 11\ns_add_u32 s60, s60, s39\ns_lshl_b32 s39, s66, 8\ns_add_u32 s60, s60, s39\ns_add_u32 s60, s60, {QBUF}')
    a(f's_lshl_b32 s70, s37, 10\ns_and_b32 s39, s66, 3\ns_lshl_b32 s39, s39, 8\ns_add_u32 s70, s70, s39\ns_lshl_b32 s39, s31, 15\ns_add_u32 s70, s70, s39\ns_add_u32 s70, s70, {HBUF}')
    a('s_waitcnt vmcnt(17)')
    stamp(a, P, 'xland')
    layernorm(a, XF, FF, TT)
    stamp(a, P, 'lndone')
    a('s_mov_b64 exec, 0xffffffff\nbuffer_load_dword v124, v125, s[52:55], s69 offen sc1\ns_mov_b64 exec, -1')
    a('s_waitcnt vmcnt(2) lgkmcnt(0)')
    stamp(a, P, 'wqland')
    def loc_check():
        a('s_waitcnt vmcnt(0)\nv_cmp_ne_u32 vcc, s68, v124\ns_cmp_eq_u32 vcc_lo, 0')
        for k in range(P['xretry']):
            a('s_cbranch_scc1 L_xok\ns_mov_b64 exec, 0xffffffff\nbuffer_load_dword v124, v125, s[52:55], s69 offen sc1\ns_mov_b64 exec, -1')
            a('s_waitcnt vmcnt(0)\nv_cmp_ne_u32 vcc, s68, v124\ns_cmp_eq_u32 vcc_lo, 0')
        a('L_xok:')
        a('s_cselect_b32 s87, 1, 0' if P['loc'] else 's_mov_b32 s87, 0')
        stamp(a, P, 'xid')
        if P['diag'] and 'locv' in pts(P):
            a('s_cmp_lg_u32 s87, 0\ns_cbranch_scc1 L_locv'); stamp(a, P, 'locv'); a('L_locv:')
    if P['abl'] & 4: loc_check(); a('s_branch L_qdone')
    unit_gemm(a, L_WQ, 12, 13, 60, 6, 81, None if P['abl'] & 4 else loc_check, P['qx'])
    stamp(a, P, 'qpub')
    if P['qx']: a(f's_lshr_b32 s61, s38, 2\ns_lshl_b32 s61, s61, 14\ns_add_u32 s61, s61, {QBUF}\ns_mov_b32 s72, s84\ns_mov_b32 s73, s84')
    else:
        a(f's_lshl_b32 s61, s33, 16\ns_lshl_b32 s37, s31, 11\ns_add_u32 s61, s61, s37\ns_add_u32 s61, s61, {QBUF}')
    a(f's_mov_b32 s86, {P["spin"]}')
    a('L_qpoll:')
    a(f's_sleep {P["qsl"]}')
    a('s_mov_b32 s36, s61')
    if P['qx']:
        for kq in range(4):
            for m in range(4): a(f'buffer_load_dwordx4 v[{44+16*kq+4*m}:{47+16*kq+4*m}], v2, s[52:55], s36 offen offset:{m*1024} sc1')
            if kq < 3: a('s_add_u32 s36, s36, 4096')
    else:
        for kq in range(4):
            for m in range(2): a(f'buffer_load_dwordx4 v[{44+8*kq+4*m}:{47+8*kq+4*m}], v2, s[52:55], s36 offen offset:{m*1024} sc1')
            if kq < 3: a('s_add_u32 s36, s36, 16384')
    a(f's_mov_b64 exec, 0xffffffff\nbuffer_load_dword v124, v125, s[52:55], s69 offen sc1\ns_mov_b64 exec, -1\ns_waitcnt vmcnt(0)')
    if P['qx']:
        a('s_mov_b64 vcc, 0')
        for n in range(16):
            a(f'v_cmp_ne_u64 s[{74+2*(n%3)}:{75+2*(n%3)}], s[72:73], v[{46+4*n}:{47+4*n}]')
            if n >= 2: a(f's_or_b64 vcc, vcc, s[{74+2*((n-2)%3)}:{75+2*((n-2)%3)}]')
        for n in (14, 15): a(f's_or_b64 vcc, vcc, s[{74+2*(n%3)}:{75+2*(n%3)}]')
    else: tag_check(a, range(44, 76), 100, 101, 102, QMASK)
    a('s_sub_u32 s86, s86, 1\ns_cbranch_scc1 L_qdone\ns_cbranch_vccnz L_qpoll')
    a('L_qdone:')
    stamp(a, P, 'qok')
    a('v_cmp_ne_u32 vcc, s68, v124\ns_cmp_eq_u32 vcc_lo, 0')
    a('s_cselect_b32 s87, 1, 0' if P['loc'] else 's_mov_b32 s87, 0')
    if P['qx']:
        for kq in range(1, 4):
            for m in range(4): a(f'v_pk_add_f32 v[{44+4*m}:{45+4*m}], v[{44+4*m}:{45+4*m}], v[{44+16*kq+4*m}:{45+16*kq+4*m}]')
        a(f'v_lshrrev_b32 v3, 3, v0\nv_lshlrev_b32 v3, 5, v3\nv_and_b32 v15, 3, v0\nv_lshl_add_u32 v3, v15, 3, v3\nv_and_b32 v15, 4, v0\nv_add_u32 v3, v3, v15\nv_add_u32 v3, {L_Q}, v3')
        a(f'v_mov_b32 v13, {L_TAG}\nv_mov_b32 v108, s84\nv_mov_b32 v109, s87')
        for m in range(4): a(f'v_cvt_pk_bf16_f32 v{44+4*m}, v{44+4*m}, v{45+4*m}\nds_write_b32 v3, v{44+4*m} offset:{m*256}')
        a('s_waitcnt lgkmcnt(0)\nds_write_b64 v13, v[108:109]')
    else:
        for kq in range(1, 4):
            for m in range(4): a(f'v_pk_add_f32 v[{44+2*m}:{45+2*m}], v[{44+2*m}:{45+2*m}], v[{44+8*kq+2*m}:{45+8*kq+2*m}]')
        a(f'v_lshlrev_b32 v3, 3, v0\nv_add_u32 v3, {L_Q}, v3\nv_mov_b32 v13, {L_TAG}\nv_mov_b32 v100, s84\nv_mov_b32 v101, s87')
        for m in range(4): a(f'v_cvt_pk_bf16_f32 v{52+m}, v{44+2*m}, v{45+2*m}')
        a('ds_write_b64 v3, v[52:53]\nds_write_b64 v3, v[54:55] offset:512\ns_waitcnt lgkmcnt(0)\nds_write_b64 v13, v[100:101]')
    stamp(a, P, 'B1')
    if P['pt']:
        a('v_mov_b32 v3, 0\ns_mov_b64 exec, 1\ns_lshl_b32 s37, s38, 19')
        srd(a, 48, 8, 's37', 64); a('buffer_load_dword v110, v3, s[48:51], 0 offen nt')
        a('s_mul_i32 s37, s31, 458752'); srd(a, 48, 12, 's37', 64); a('buffer_load_dword v111, v3, s[48:51], 0 offen nt')
        a('s_add_u32 s37, s37, 458688'); srd(a, 48, 12, 's37', 64); a('buffer_load_dword v112, v3, s[48:51], 0 offen nt')
        srd(a, 48, 20, None, 64); a('buffer_load_dword v113, v3, s[48:51], 0 offen nt')
        srd(a, 48, 22, None, 64); a('buffer_load_dword v114, v3, s[48:51], 0 offen nt')
        a('s_mov_b64 exec, -1')
    if P['abl'] & 1: a('s_branch L_now')
    a('s_cmp_ge_u32 s66, 4\ns_cbranch_scc0 L_noh')
    a('s_mul_i32 s67, s31, 7\ns_lshr_b32 s67, s67, 1\ns_and_b32 s39, s66, 3\ns_add_u32 s67, s67, s39\ns_mul_i32 s37, s64, 3584\ns_lshl_b32 s39, s67, 7\ns_add_u32 s37, s37, s39')
    a('s_mul_i32 s39, s65, 3584\ns_add_u32 s39, s39, 128')
    srd(a, 56, 16, 's37', 's39')
    dma_loop(a, 'L_w1', 16, P['DH'], 4, 8 * 3584, L_W1, P['wpol'])
    layernorm(a, XF, FF, TT, 16)
    a('s_waitcnt vmcnt(0)')
    unit_gemm(a, L_W1, 12, 5, 70, 6, 82)
    a('L_noh:')
    stamp(a, P, 'hpub')
    a('s_cmp_lt_u32 s32, 28\ns_cbranch_scc0 L_now')
    a('v_lshrrev_b32 v1, 3, v0\nv_mul_u32_u24 v1, 896, v1\nv_and_b32 v3, 7, v0\nv_lshl_add_u32 v1, v3, 4, v1')
    a('s_and_b32 s64, s32, 3\ns_lshl_b32 s65, s31, 2\ns_add_u32 s65, s65, s64')
    if not P['late']:
        a(f's_mul_i32 s37, s65, 50176\ns_lshl_b32 s39, s66, 7\ns_add_u32 s37, s37, s39')
        srd(a, 56, 20, 's37', 55 * 896 + 128)
        dma_loop(a, 'L_w2', 8, P['DH'], 1, 8 * 896, L_W2, P['mpol'])
        if not P['nowo']:
            a(f's_mul_i32 s37, s65, 114688\ns_lshl_b32 s39, s66, 7\ns_add_u32 s37, s37, s39\ns_sub_u32 s39, {4096*896}, s37')
            srd(a, 56, 12, 's37', 's39')
            dma_loop(a, 'L_wo', 16, P['DH'], 1, 8 * 896, L_WO, P['opol'])
    stamp(a, P, 'wodone')
    a('v_min_u32 v3, 13, v10\nv_lshlrev_b32 v4, 12, v9\nv_lshl_add_u32 v4, v3, 4, v4\nv_lshlrev_b32 v5, 3, v3')
    a(f's_lshl_b32 s61, s31, 15\ns_mul_i32 s37, s64, 224\ns_add_u32 s61, s61, s37\ns_and_b32 s37, s31, 1\ns_lshl_b32 s37, s37, 7\ns_add_u32 s61, s61, s37\ns_add_u32 s61, s61, {HBUF}')
    srd(a, 48, 18, None, 3584)
    a(f's_mul_i32 s37, s65, 112\nbuffer_load_dwordx2 v[20:21], v5, s[48:51], s37 offen\ns_add_u32 s60, s61, 16384\ns_mov_b32 s86, {P["spin"]}')
    a('L_hp:')
    for ps in range(2):
        for kq in range(4): a(f'buffer_load_dwordx4 v[{44+16*ps+4*kq}:{47+16*ps+4*kq}], v4, s[52:55], s{61-ps} offen offset:{kq*1024} sc1')
    a('s_waitcnt vmcnt(0)')
    tag_check(a, range(44, 76), 16, 17, 18)
    a('s_sub_u32 s86, s86, 1\ns_cbranch_scc1 L_hpd\ns_cbranch_vccz L_hpd\ns_sleep 16\ns_branch L_hp')
    a('L_hpd:')
    for ps in range(2):
        for kq in range(1, 4):
            for m in range(2): a(f'v_pk_add_f32 v[{44+16*ps+2*m}:{45+16*ps+2*m}], v[{44+16*ps+2*m}:{45+16*ps+2*m}], v[{44+16*ps+4*kq+2*m}:{45+16*ps+4*kq+2*m}]')
    unpack(a, 20, 24, 2)
    a('v_cvt_pk_bf16_f32 v16, v44, v45\nv_cvt_pk_bf16_f32 v17, v46, v47\nv_cvt_pk_bf16_f32 v18, v60, v61\nv_cvt_pk_bf16_f32 v19, v62, v63')
    unpack(a, 16, 32, 4)
    for i in range(8): a(f'v_add_f32 v{32+i}, v{32+i}, v{24+(i&3)}')
    for i in range(4): a(f'v_cvt_pk_bf16_f32 v{16+i}, v{32+2*i}, v{33+2*i}')
    unpack(a, 16, 32, 4)
    k0 = 2 * 0.7978845608028654 * math.log2(math.e); k1 = k0 * 0.044715
    a(f's_mov_b32 s62, {hex(f2u(-k1))}\nv_mov_b32 v15, {hex(f2u(-k0))}')
    for i in range(8): a(f'v_mul_f32 v{44+i}, v{32+i}, v{32+i}')
    for i in range(8): a(f'v_fma_f32 v{44+i}, v{44+i}, s62, v15')
    for i in range(8): a(f'v_mul_f32 v{44+i}, v{44+i}, v{32+i}')
    for i in range(8): a(f'v_exp_f32 v{44+i}, v{44+i}')
    for i in range(8): a(f'v_add_f32 v{44+i}, 1.0, v{44+i}')
    for i in range(8): a(f'v_rcp_f32 v{44+i}, v{44+i}')
    for i in range(8): a(f'v_mul_f32 v{32+i}, v{32+i}, v{44+i}')
    a('v_cmp_gt_u32 vcc, 14, v10')
    for i in range(4): a(f'v_cvt_pk_bf16_f32 v{16+i}, v{32+2*i}, v{33+2*i}')
    for i in range(4): a(f'v_cndmask_b32 v{16+i}, 0, v{16+i}, vcc')
    a(f'v_mul_u32_u24 v3, {HSTR}, v9\nv_lshl_add_u32 v3, v10, 3, v3\nv_add_u32 v3, {L_H}, v3')
    a(f'ds_write_b64 v3, v[16:17]\nds_write_b64 v3, v[18:19] offset:{4*HSTR}')
    if not P['late']:
        a(f'v_and_b32 v3, 7, v0\nv_mul_u32_u24 v3, {HSTR}, v3\nv_lshl_add_u32 v3, v9, 3, v3\nv_add_u32 v3, {L_H}, v3')
        a(f'v_bfe_u32 v4, v0, 2, 2\nv_lshl_add_u32 v4, v9, 2, v4\nv_lshlrev_b32 v4, 7, v4\nv_and_b32 v5, 3, v0\nv_lshl_add_u32 v4, v5, 3, v4\nv_add_u32 v4, {L_W2}, v4')
        a('s_waitcnt lgkmcnt(0)')
        for k in range(2): a(f'ds_read_b64 v[{16+4*k}:{17+4*k}], v3 offset:{k*64}\nds_read_b64 v[{18+4*k}:{19+4*k}], v3 offset:{k*64+32}')
        for t in range(4):
            for k in range(2):
                r = 44 + 8 * t + 4 * k
                a(f'ds_read_b64_tr_b16 v[{r}:{r+1}], v4 offset:{k*4096+t*32}\nds_read_b64_tr_b16 v[{r+2}:{r+3}], v4 offset:{k*4096+2048+t*32}')
        a(f'v_add_u32 v3, {L_C}, v2\ns_waitcnt lgkmcnt(0)')
        for k in range(2):
            for t in range(4):
                r = 44 + 8 * t + 4 * k; d = 76 + 4 * t
                a(f'v_mfma_f32_16x16x32_bf16 v[{d}:{d+3}], v[{16+4*k}:{19+4*k}], v[{r}:{r+3}], ' + ('0' if k == 0 else f'v[{d}:{d+3}]'))
        for t in range(4): a(f'ds_write_b128 v3, v[{76+4*t}:{79+4*t}] offset:{t*1024}')
    a('L_now:')
    stamp(a, P, 'mend')
    a(f'v_and_b32 v3, 15, v0\nv_lshlrev_b32 v3, 3, v3\nv_add_u32 v3, {L_ML}, v3\ns_mov_b32 s86, {P["spin"]*16}')
    a('L_mlw:')
    a('ds_read_b64 v[16:17], v3\ns_waitcnt lgkmcnt(0)\nv_cmp_eq_u32 vcc, -1, v16')
    a('s_sub_u32 s86, s86, 1\ns_cbranch_scc1 L_mlwd\ns_cbranch_vccz L_mlwd\ns_sleep 4\ns_branch L_mlw')
    a('L_mlwd:')
    d8 = ('quad_perm:[1,0,3,2]', 'quad_perm:[2,3,0,1]', 'row_half_mirror')
    a('v_mov_b32 v18, v16')
    for m in d8: a(f'v_max_f32_dpp v18, v18, v18 {m} row_mask:0xf bank_mask:0xf')
    a('v_sub_f32 v20, v16, v18\nv_mul_f32 v20, s83, v20\nv_exp_f32 v20, v20\nv_mul_f32 v19, v20, v17')
    for m in d8: a(f'v_add_f32_dpp v19, v19, v19 {m} row_mask:0xf bank_mask:0xf')
    a(f'v_mov_b32 v20, s84\nv_mov_b32 v21, s84\nv_lshlrev_b32 v4, 1, v0\ns_mov_b32 s72, s84\ns_mov_b32 s73, s84')
    a(f's_lshl_b32 s37, s38, 7\ns_add_u32 s37, s37, {MLX}\ns_mov_b64 exec, 0x101')
    hand_store(a, 'buffer_store_dwordx4 v[18:21], v4, s[52:55], s37 offen')
    a('s_mov_b64 exec, -1')
    stamp(a, P, 'mlpub')
    a(f's_and_b32 s61, s38, 0xfc\ns_lshl_b32 s61, s61, 7\ns_add_u32 s61, s61, {MLX}\ns_mov_b32 s86, {P["spin"]}')
    a('v_and_b32 v3, 3, v0\nv_lshlrev_b32 v3, 7, v3\nv_and_b32 v4, 8, v0\nv_lshl_add_u32 v3, v4, 1, v3')
    a('L_mlp2:')
    a(f's_sleep {P["msl"]}')
    a('buffer_load_dwordx4 v[24:27], v3, s[52:55], s61 offen sc1\ns_waitcnt vmcnt(0)\nv_cmp_ne_u64 vcc, s[72:73], v[26:27]')
    a('s_sub_u32 s86, s86, 1\ns_cbranch_scc1 L_mlp2d\ns_cbranch_vccnz L_mlp2')
    a('L_mlp2d:')
    stamp(a, P, 'mlok')
    a('v_mov_b32 v28, v24')
    for m in d8[:2]: a(f'v_max_f32_dpp v28, v28, v28 {m} row_mask:0xf bank_mask:0xf')
    a('v_sub_f32 v29, v24, v28\nv_mul_f32 v29, s83, v29\nv_exp_f32 v29, v29\nv_mul_f32 v29, v29, v25')
    for m in d8[:2]: a(f'v_add_f32_dpp v29, v29, v29 {m} row_mask:0xf bank_mask:0xf')
    a('v_sub_f32 v30, v16, v28\nv_mul_f32 v30, s83, v30\nv_exp_f32 v30, v30\nv_rcp_f32 v29, v29\nv_mul_f32 v30, v30, v29')
    a(f'v_lshlrev_b32 v3, 2, v0\nv_add_u32 v3, {L_F}, v3\ns_mov_b64 exec, 0xffff\nds_write_b32 v3, v30\ns_mov_b64 exec, -1')
    if P['tpf']:
        a('s_getpc_b64 s[56:57]\nL_pc2:\ns_add_u32 s56, s56, L_tail-L_pc2\ns_addc_u32 s57, s57, 0\ns_mov_b32 s58, L_end-L_tail\ns_mov_b32 s59, 0x20000')
        a('v_lshlrev_b32 v1, 6, v0\nbuffer_load_dword v15, v1, s[56:59], 0 offen')
    a('s_waitcnt vmcnt(0) lgkmcnt(0)')
    stamp(a, P, 'hend')
    stamp_store(a, P, stamp_items(P, H_PTS))
    a('s_endpgm')

def control2(a, P):
    c0, c1, cper, nsh = P['c0'], P['c1'], P['cper'], P['nsh']
    n = 256 // nsh
    a('L_ctl:')
    a(f'v_and_b32 v1, 7, v0\nv_lshlrev_b32 v1, 2, v1\nv_add_u32 v1, {L_PROG}, v1\nv_mov_b32 v2, 0\nds_write_b32 v1, v2\nds_write_b32 v1, v2 offset:16')
    a('s_waitcnt lgkmcnt(0)\ns_barrier')
    a(f's_and_b32 s37, s32, {nsh-1}\ns_lshl_b32 s37, s37, {int(math.log2(256 // nsh))}\ns_add_u32 s40, s26, s37\ns_addc_u32 s41, s27, 0')
    a(f's_mov_b32 s36, {c0}\ns_mov_b32 s61, {n // 2}\nv_mov_b32 v5, {L_PROG}')
    a('L_ck:')
    a(f's_mov_b32 s86, {P["spin"]*16}')
    a('L_ckw:')
    a('s_sleep 2\nds_read_b32 v3, v1\ns_waitcnt lgkmcnt(0)\nv_cmp_le_u32 vcc, s36, v3\ns_bcnt1_i32_b32 s37, vcc_lo')
    a('s_sub_u32 s86, s86, 1\ns_cbranch_scc1 L_ckd\ns_cmp_lt_u32 s37, 16\ns_cbranch_scc1 L_ckw')
    a('L_ckd:')
    a(f's_mov_b32 s60, 1\ns_atomic_add s60, s[40:41], 0 glc\ns_add_u32 s36, s36, {cper}\ns_waitcnt lgkmcnt(0)')
    a(f's_sub_i32 s60, s61, s60\ns_add_u32 s61, s61, {n}')
    a(f's_cmp_gt_i32 s60, {P["th1"]}\ns_cselect_b32 s39, {P["cm1"]}, 0\ns_cmp_gt_i32 s60, {P["th2"]}\ns_cselect_b32 s39, {P["cm2"]}, s39')
    a('v_mov_b32 v6, s39\nds_write_b32 v5, v6 offset:32')
    a(f's_cmp_le_u32 s36, {c1}\ns_cbranch_scc1 L_ck')
    a('s_endpgm')

def control(a, P):
    c0, c1, lag = P['c0'], P['c1'], P['lag']
    if P['cver'] == 2: return control2(a, P)
    a('L_ctl:')
    a(f'v_and_b32 v1, 7, v0\nv_lshlrev_b32 v1, 2, v1\nv_add_u32 v1, {L_PROG}, v1\nv_mov_b32 v2, 0\nds_write_b32 v1, v2\nds_write_b32 v1, v2 offset:16')
    a('s_waitcnt lgkmcnt(0)\ns_barrier')
    srd(a, 52, 28, None, WS_USED)
    q_wait(a, P, 'L_cq')
    a('v_mov_b32 v7, s84')
    if P['cdbg']: a('s_mov_b32 s90, 0\ns_mov_b32 s91, 0\ns_mov_b32 s92, 0\ns_mov_b32 s93, 0\ns_mov_b32 s94, 0')
    cs, cper = P['cstr'], P['cper']; ms = max(cs * P['nrep'], 128)
    if P['nrep'] == 16: a(f's_lshl_b32 s60, s31, 1\ns_lshr_b32 s37, s32, 4\ns_add_u32 s60, s60, s37\ns_mul_i32 s60, s60, {cs}\ns_and_b32 s63, s32, 15')
    elif P['nrep'] == 4: a(f's_lshr_b32 s60, s31, 1\ns_mul_i32 s60, s60, {cs}\ns_and_b32 s63, s31, 1\ns_xor_b32 s63, s63, 1\ns_or_b32 s63, s63, s32')
    else: a(f's_mul_i32 s60, s31, {cs}\ns_mov_b32 s63, s32')
    a(f's_add_u32 s60, s60, {CBUF}\ns_add_u32 s40, s28, {CBUF}\ns_addc_u32 s41, s29, 0')
    a(f's_mov_b32 s61, {c0}\ns_mov_b32 s62, {c0 + lag}\nv_mov_b32 v5, {L_PROG}')
    a('L_ck:')
    a(f's_min_u32 s36, s61, s62\ns_cmp_eq_u32 s63, 0\ns_cselect_b32 s36, s36, s62\ns_mov_b32 s86, {P["spin"]*16}')
    a('L_ckw:')
    a('s_sleep 2\nds_read_b32 v3, v1\ns_waitcnt lgkmcnt(0)\nv_cmp_le_u32 vcc, s36, v3\ns_bcnt1_i32_b32 s37, vcc_lo')
    a('s_sub_u32 s86, s86, 1\ns_cbranch_scc1 L_ckd\ns_cmp_lt_u32 s37, 16\ns_cbranch_scc1 L_ckw')
    a('L_ckd:')
    a('s_cmp_lg_u32 s63, 0\ns_cbranch_scc1 L_cknp\ns_cmp_lg_u32 s36, s61\ns_cbranch_scc1 L_cknp')
    a(f's_mov_b64 exec, 1\nbuffer_store_dword v7, v2, s[52:55], s60 offen sc1\ns_mov_b64 exec, -1\ns_add_u32 s60, s60, {ms}\ns_add_u32 s61, s61, {cper}')
    a('L_cknp:')
    a('s_cmp_lg_u32 s36, s62\ns_cbranch_scc1 L_ck')
    if cs == 4: a(f's_load_dwordx{P["nrep"]} s[64:{63+P["nrep"]}], s[40:41], 0')
    else:
        for k in range(P['nrep']): a(f's_load_dword s{64+k}, s[40:41], {k*cs}')
    a(f's_add_u32 s62, s62, {cper}\ns_mov_b32 s37, 0\ns_waitcnt lgkmcnt(0)\ns_add_u32 s40, s40, {ms}\ns_addc_u32 s41, s41, 0')
    for k in range(P['nrep']): a(f's_cmp_lg_u32 s{64+k}, s84\ns_addc_u32 s37, s37, 0')
    if P['cdbg']: a('s_lshl_b32 s39, s37, 2\ns_lshl_b32 s39, 1, s39\ns_cmp_lt_u32 s37, 8\ns_cselect_b32 s39, s39, 0\ns_add_u32 s90, s90, s37\ns_cmp_eq_u32 s37, 0\ns_addc_u32 s91, s91, 0\ns_cmp_ge_u32 s37, 4\ns_addc_u32 s92, s92, 0\ns_cmp_ge_u32 s37, 7\ns_addc_u32 s93, s93, 0\ns_add_u32 s94, s94, 1')
    a(f's_cmp_ge_u32 s37, {P["thr"]}\ns_cselect_b32 s39, {P["cmask"]}, 0\nv_mov_b32 v6, s39\nds_write_b32 v5, v6 offset:32')
    a(f's_cmp_le_u32 s62, {c1}\ns_cbranch_scc1 L_ck')
    if P['cdbg']:
        for k in range(5): a(f's_atomic_add s{90+k}, s[26:27], {4*k}')
        a('s_waitcnt lgkmcnt(0)')
    a('s_endpgm')

def body(P):
    a = Asm(); HPOL[0] = P['hpol']
    a('s_cmp_ge_u32 s2, 256\ns_cbranch_scc1 L_end')
    if P['perm'] == 1: a('s_lshr_b32 s3, s2, 5\ns_lshl_b32 s2, s2, 3\ns_or_b32 s2, s2, s3\ns_and_b32 s2, s2, 255')
    if P['perm'] == 2: a('s_lshr_b32 s3, s2, 7\ns_xor_b32 s2, s2, s3')
    a('s_load_dwordx16 s[4:19], s[0:1], 0\ns_load_dwordx8 s[20:27], s[0:1], 64\ns_load_dwordx2 s[28:29], s[0:1], 96')
    a('v_lshrrev_b32 v1, 6, v0\nv_and_b32 v0, 63, v0\nv_readfirstlane_b32 s30, v1')
    a('s_and_b32 s31, s2, 7\ns_lshr_b32 s32, s2, 3')
    if P['bmap'] == 0: a('s_lshr_b32 s33, s32, 2\ns_and_b32 s34, s32, 3')
    else: a('s_and_b32 s33, s32, 7\ns_lshr_b32 s34, s32, 3')
    a('s_lshl_b32 s37, s31, 2\ns_add_u32 s34, s34, s37\ns_lshl_b32 s38, s33, 5\ns_add_u32 s38, s38, s34')
    stamp_init(a, P)
    stamp(a, P, 'entry')
    a(f's_cmp_ge_u32 s30, 8\ns_cbranch_scc1 L_helper')
    streamer(a, P, lambda: (helper(a, P), control(a, P) if P['ctl'] else None))
    a('L_end:\ns_endpgm')
    txt, n = a.text()
    return txt, n

def vgprs(P): return max(56 + 4 * P['R'] + 4, 156)

def kernel(P):
    txt, n = body(P)
    nm = P['name']
    txt = txt.replace('L_', f'L{nm[-24:]}_') if P.get('uniq') else txt
    return txt

def final_file(P):
    ref = open(f'cdna_kernels/{NAME}.s.ref').read()
    head = ref[:ref.index('; Override launch')]
    nm = P['name']; vg = vgprs(P)
    return head + f'''; Single launch: 256 workgroups x (8 streaming waves + 1 helper wave). Generated by gen/gen.py.
; @launch grid=(256,1,1) block=({block(P)},1,1) lds={LDS_BYTES}
.amdgcn_target "amdgcn-amd-amdhsa--gfx950"
.text
.globl {nm}
.p2align 8
.type {nm},@function
{nm}:
{kernel(P)}
.section .rodata,"a"
.p2align 6
.amdhsa_kernel {nm}
  .amdhsa_next_free_vgpr {vg}
  .amdhsa_next_free_sgpr 102
  .amdhsa_accum_offset {(vg+3)//4*4}
  .amdhsa_group_segment_fixed_size 0
  .amdhsa_kernarg_size 104
  .amdhsa_user_sgpr_count 2
  .amdhsa_user_sgpr_kernarg_segment_ptr 1
  .amdhsa_system_sgpr_workgroup_id_x 1
.end_amdhsa_kernel
'''

if __name__ == '__main__':
    P = dict(DEF)
    out = f'cdna_kernels/{NAME}.s'
    for kv in sys.argv[1:]:
        k, v = kv.split('=', 1)
        if k == 'out': out = v
        else: P[k] = type(DEF[k])(v) if not isinstance(DEF[k], bool) else v == '1'
    open(out, 'w').write(final_file(P))
    print('wrote', out)
```

```python
import sys, math, struct
from asmlib import Asm

NAME = 'parallel_sum__gqa_block_cached__mixer_channel_mlp__decode'
def f2u(x): return struct.unpack('<I', struct.pack('<f', x))[0]

CBUF, XBUF, MLX, PBUF, HBUF, QBUF, OBUF, WS_USED = 0x1D0000, 0x8000, 0x10000, 0x20000, 0x90000, 0xD0000, 0x200000, 0x280000
TMASK = 0x3FF
QMASK = 0xFF
STAMP_OFF = 536870912 - (1 << 20)
L_WQ = 0; L_W1 = 16384; L_WO = 32768; L_W2 = 49152
L_PART = 57344
L_C = L_PART + 16384
OSTR = 264; HSTR = 136
L_O = L_C + 4096
L_H = L_O + 8 * OSTR
L_Q = L_H + 8 * HSTR
L_ML = L_Q + 1024
L_F = L_ML + 128
L_TAG = L_F + 64
L_PROG = L_TAG + 16
LDS_BYTES = L_PROG + 48
assert L_Q % 16 == 0 and LDS_BYTES > 81920
OOB = 0x7F000000
C_EXP = math.log2(math.e) / 16.0

DEF = dict(R=26, D=3, D0=3, DH=8, qsl=16, msl=24, cpf=1, tpf=0, orc=0, orc0=60, omask=15, perm=0, outpol='', late=2, hpol='', hw=8, abl=0, lt=1, ov=1, pt=0, podd=0, peven=0, p0=0, vt=0, wb=0, amap='13 14 9 10 12 17 18 16 15 11 1024 8 513 0 128', hpat='', swz=0, ppol='sc1', lpol='sc1', nocomp=0, nowo=0, ctl=1, lag=0, thr=3, c0=28, c1=116, cmask=5, cver=3, nrep=8, ca=6, cb=0, n1=1, n2c=6, mb=4, mt=5, mo=0, xl=6, xthr=1, xmb=5, xmo=4, lsh=5, cmin=1, b4=0, rex=1, qx=1, fast=0, stag=0, stp=4, cdbg=0, th1=8, th2=999, cm1=5, cm2=5, nsh=2, crd=2, iw=0, iwd=3, iwp=2, cstr=128, cper=2, kpat='3', vpat='3', loc=1, n2=80, xretry=1, Dend=4, nend=8, gsl=0, fsl=0, fthr=0, fsl2=24, nornd=0, nom=0, pol='nt', wpol='nt', xpol='', opol='nt', mpol='nt', diag=False, budget=2,
           name=NAME + '_kernel', spin=1 << 16, hold=0, bmap=0, pts='start+qpub+B1+Kdone+hend+B2+end')
def block(P): return 640 if P['ctl'] else 576

def srd(a, n, base, off, size):
    if off is None:
        a(f's_mov_b32 s{n}, s{base}\ns_mov_b32 s{n+1}, s{base+1}')
    else:
        a(f's_add_u32 s{n}, s{base}, {off}\ns_addc_u32 s{n+1}, s{base+1}, 0')
    a(f's_mov_b32 s{n+2}, {size}\ns_mov_b32 s{n+3}, 0x20000')

def wave_sum(a, v, s):
    for m in ('row_shr:1', 'row_shr:2', 'row_shr:4', 'row_shr:8'):
        a(f'v_add_f32_dpp v{v}, v{v}, v{v} {m} row_mask:0xf bank_mask:0xf')
    a(f'v_add_f32_dpp v{v}, v{v}, v{v} row_bcast:15 row_mask:0xa bank_mask:0xf')
    a(f'v_add_f32_dpp v{v}, v{v}, v{v} row_bcast:31 row_mask:0xc bank_mask:0xf')
    a(f'v_readlane_b32 s{s}, v{v}, 63')

def rnd_bf16(a, v):
    a(f'v_cvt_pk_bf16_f32 v{v}, v{v}, v{v}\nv_and_b32 v{v}, 0xffff0000, v{v}')

def unpack(a, src, dst, n):
    for i in range(n):
        a(f'v_and_b32 v{dst+2*i+1}, 0xffff0000, v{src+i}\nv_lshlrev_b32 v{dst+2*i}, 16, v{src+i}')

def row_sum(a, v, t):
    a(f'v_add_f32_dpp v{v}, v{v}, v{v} row_ror:8 row_mask:0xf bank_mask:0xf')
    xgroup(a, 'v_add_f32', v, t)

def layernorm(a, X, F, T, nq=28):
    pr = lambda r: f'v[{r}:{r+1}]'
    unpack(a, X, F, 28)
    a(f'v_pk_add_f32 {pr(T)}, {pr(F)}, {pr(F+2)}\nv_pk_add_f32 {pr(T+2)}, {pr(F+4)}, {pr(F+6)}')
    for i in range(4, 28): a(f'v_pk_add_f32 {pr(T+2*(i&1))}, {pr(T+2*(i&1))}, {pr(F+2*i)}')
    a(f'v_pk_add_f32 {pr(T)}, {pr(T)}, {pr(T+2)}\nv_add_f32 v{T}, v{T}, v{T+1}')
    row_sum(a, T, T + 1)
    a(f'v_mul_f32 v{T}, {hex(f2u(-1/448))}, v{T}\nv_mov_b32 v{T+1}, v{T}')
    for i in range(28):
        d = T + 4 + 2 * (i & 1)
        a(f'v_pk_add_f32 {pr(d)}, {pr(F+2*i)}, {pr(T)}')
        if i == 0: a(f'v_pk_mul_f32 {pr(T+2)}, {pr(d)}, {pr(d)}')
        else: a(f'v_pk_fma_f32 {pr(T+2)}, {pr(d)}, {pr(d)}, {pr(T+2)}')
    a(f'v_add_f32 v{T+2}, v{T+2}, v{T+3}')
    row_sum(a, T + 2, T + 3)
    rnd_bf16(a, T)
    a(f'v_mov_b32 v{T+1}, v{T}\nv_mul_f32 v{T+2}, {hex(f2u(1/448))}, v{T+2}')
    rnd_bf16(a, T + 2)
    a(f'v_add_f32 v{T+2}, {hex(f2u(1e-5))}, v{T+2}')
    rnd_bf16(a, T + 2)
    a(f'v_sqrt_f32 v{T+2}, v{T+2}')
    for i in range(nq): a(f'v_pk_add_f32 {pr(F+2*i)}, {pr(F+2*i)}, {pr(T)}')
    rnd_bf16(a, T + 2)
    a(f'v_rcp_f32 v{T+2}, v{T+2}')
    for i in range(nq): a(f'v_cvt_pk_bf16_f32 v{X+i}, v{F+2*i}, v{F+2*i+1}')
    a(f'v_mov_b32 v{T+3}, v{T+2}')
    unpack(a, X, F, nq)
    for i in range(nq): a(f'v_pk_mul_f32 {pr(F+2*i)}, {pr(F+2*i)}, {pr(T+2)}')
    for i in range(nq): a(f'v_cvt_pk_bf16_f32 v{X+i}, v{F+2*i}, v{F+2*i+1}')

def xgroup(a, op, v, t):
    a(f'v_mov_b32 v{t}, v{v}\nv_permlane16_swap_b32 v{v}, v{t}\n{op} v{v}, v{v}, v{t}')
    a(f'v_mov_b32 v{t}, v{v}\nv_permlane32_swap_b32 v{v}, v{t}\n{op} v{v}, v{v}, v{t}')

S_PTS = ['start', 'k0', 'fst', 'fcnt', 's8', 's44', 's96', 'skarg', 'siss0', 'pst', 'g2ok', 'sB1a', 'sB1', 'Kdone', 'Vlast', 'B2', 'ost', 'gok', 'B3', 'end']
M_PTS = ['mstart', 'mw1', 'mw2', 'mend']
H_PTS = ['entry', 'hstart', 'mend', 'locv', 'xst', 'xid', 'hpub', 'wob', 'qack', 'xland', 'lndone', 'wtpub', 'wtok', 'hkarg', 'wqiss', 'hB0', 'wqland', 'qpub', 'qp1', 'qok', 'B1', 'wodone', 'mlpub', 'mlok', 'hend']
def pts(P): return P['pts'].split('+') if isinstance(P['pts'], str) else P['pts']
def stamp(a, P, name):
    if P['diag'] and name in pts(P):
        reg = 88 + 2 * pts(P).index(name)
        a(f's_memrealtime s[{reg}:{reg+1}]\ns_waitcnt lgkmcnt(0)')
def stamp_items(P, lst): return [(i, 88 + 2 * i) for i, n in enumerate(pts(P)) if n in lst]
def stamp_init(a, P):
    if P['diag']:
        for i in range(7): a(f's_mov_b64 s[{88+2*i}:{89+2*i}], 0')

def stamp_store(a, P, items, hw=False):
    if not P['diag']: return
    a('s_waitcnt lgkmcnt(0)')
    a(f's_lshl_b32 s37, s2, 6\ns_add_u32 s37, s37, {STAMP_OFF}')
    srd(a, 40, 28, 's37', 64)
    a('s_mov_b64 exec, 1\nv_mov_b32 v1, 0')
    for idx, reg in items:
        a(f'v_mov_b32 v2, s{reg}\nv_mov_b32 v3, s{reg+1}\nbuffer_store_dwordx2 v[2:3], v1, s[40:43], 0 offen offset:{idx*8}')
    if hw:
        a('s_getreg_b32 s38, hwreg(HW_REG_XCC_ID)\ns_getreg_b32 s39, hwreg(HW_REG_HW_ID)')
        a('v_mov_b32 v2, s38\nv_mov_b32 v3, s39\nbuffer_store_dwordx2 v[2:3], v1, s[40:43], 0 offen offset:56')
    a('s_mov_b64 exec, -1')

def q_wait(a, P, lab):
    a(f's_mov_b32 s82, {TMASK}\nv_mov_b32 v5, {L_TAG}\ns_mov_b32 s86, {P["spin"]*16}')
    a(f'{lab}:\nds_read_b64 v[6:7], v5\ns_waitcnt lgkmcnt(0)\nv_cmp_eq_u32 vcc, -1, v7')
    a(f's_sub_u32 s86, s86, 1\ns_cbranch_scc1 {lab}d\ns_cbranch_vccz {lab}d\ns_sleep 2\ns_branch {lab}\n{lab}d:')
    a(f'v_readfirstlane_b32 s84, v6\nv_readfirstlane_b32 s87, v7\ns_and_b32 s85, s84, {TMASK}')

def streamer(a, P, mid):
    R, D, D0, pol = P['R'], P['D'], P['D0'], P['pol']
    Q, S, DT, RING = 8, 16, 48, 56
    slot = lambda i: RING + 4 * (i % R)
    sl = lambda i: f'v[{slot(i)}:{slot(i)+3}]'
    a('; ==== streaming waves 0..7: 128 keys each; first K loads go out before anything else')
    stamp(a, P, 'start')
    if P['hold'] or P['orc']: a('s_memrealtime s[98:99]')
    am = [int(x) for x in P['amap'].split()]
    ab, gb, wb, xm = am[0:2], am[2:7], am[7:10], am[10:15]
    a(f'v_and_b32 v1, 3, v0\nv_lshlrev_b32 v1, 4, v1\nv_lshrrev_b32 v3, 4, v0\nv_lshl_add_u32 v1, v3, 6, v1')
    a(f'v_bfe_u32 v3, v0, 2, 1\nv_lshl_add_u32 v1, v3, {ab[0]}, v1\nv_bfe_u32 v3, v0, 3, 1\nv_lshl_add_u32 v1, v3, {ab[1]}, v1')
    if P['fast'] and am == [13, 14, 9, 10, 12, 17, 18, 16, 15, 11, 1024, 8, 513, 0, 128]:
        a('s_lshl_b32 s37, s38, 19\ns_lshl_b32 s35, s2, 7\ns_and_b32 s35, s35, 0x600\ns_lshr_b32 s36, s32, 4\ns_lshl_b32 s36, s36, 18\ns_or_b32 s35, s35, s36')
        a('s_lshr_b32 s36, s2, 1\ns_xor_b32 s36, s36, s32\ns_xor_b32 s36, s36, s30\ns_and_b32 s36, s36, 1\ns_lshl_b32 s36, s36, 12\ns_or_b32 s35, s35, s36')
        a('s_brev_b32 s36, s30\ns_lshr_b32 s36, s36, 30\ns_lshl_b32 s36, s36, 15\ns_or_b32 s35, s35, s36\ns_lshr_b32 s36, s30, 2\ns_lshl_b32 s36, s36, 11\ns_or_b32 s35, s35, s36')
    else:
        a('s_lshl_b32 s37, s38, 19\ns_mov_b32 s35, 0')
        use = 0
        for m in xm: use |= m
        a('s_add_u32 s36, s30, s32\ns_and_b32 s36, s36, 7' if use & 7 else 's_mov_b32 s36, 0')
        if use & 0xf8: a('s_lshl_b32 s39, s32, 3\ns_or_b32 s36, s36, s39')
        if use & 0x700: a('s_lshl_b32 s39, s31, 8\ns_or_b32 s36, s36, s39')
        if use & 0x3800: a('s_lshl_b32 s39, s30, 11\ns_or_b32 s36, s36, s39')
        for k in range(5):
            if xm[k] and xm[k] & (xm[k] - 1) == 0:
                a(f's_bfe_u32 s39, s36, {0x10000 + xm[k].bit_length() - 1}\ns_lshl_b32 s39, s39, {gb[k]}\ns_or_b32 s35, s35, s39')
            elif xm[k]:
                a(f's_and_b32 s39, s36, {xm[k]}\ns_bcnt1_i32_b32 s39, s39\ns_and_b32 s39, s39, 1\ns_lshl_b32 s39, s39, {gb[k]}\ns_or_b32 s35, s35, s39')
        for k in range(3): a(f's_bfe_u32 s39, s30, {0x10000 + k}\ns_lshl_b32 s39, s39, {wb[k]}\ns_or_b32 s35, s35, s39')
    goff = lambda G: sum(((G >> k) & 1) << gb[k] for k in range(5))
    a('s_waitcnt lgkmcnt(0)')
    stamp(a, P, 'skarg')
    srd(a, 40, 6, 's37', 524288)
    lt = P['lt']
    def lg(i):
        j = i % 64
        if lt and i >= 112: return 24 + ((i - 112) & 7), (i - 112) >> 3
        return j >> 1, j & 1
    vidx = lambda T, g, e: (112 + 8 * e + g) if (lt and T == 3) else (64 + 16 * T + 2 * g + e)
    def issue(i):
        G, t = lg(i)
        if t == 0 or (lt and i >= 112): a(f's_xor_b32 s36, s35, {goff(G)}')
        r, va = ('s[40:43]', 'v1') if i < 64 else ('s[44:47]', 'v2')
        a(f'buffer_load_dwordx4 {sl(i)}, {va}, {r}, s36 offen offset:{t*256} {pol}')
    for i in range(D0): issue(i)
    stamp(a, P, 'siss0')
    a('s_branch L_s2')
    mid()
    a('L_s2:')
    a(f'v_and_b32 v2, 15, v0\nv_lshlrev_b32 v2, 4, v2\nv_bfe_u32 v3, v0, 4, 1\nv_lshl_add_u32 v2, v3, {ab[0]}, v2\nv_lshrrev_b32 v3, 5, v0\nv_lshl_add_u32 v2, v3, {ab[1]}, v2')
    srd(a, 44, 8, 's37', 524288)
    if P['vt']:
        a(f'v_mov_b32 v3, 0\nbuffer_load_dword v4, v3, s[44:47], s35 offen {pol}')
    a('s_barrier')
    srd(a, 52, 28, None, WS_USED)
    for e in range(2):
        for r in range(4):
            m16 = (0x11 << r) << (8 * e); m32 = m16 | (m16 << 16)
            a(f's_mov_b32 s{64+2*(4*e+r)}, {hex(m32)}\ns_mov_b32 s{65+2*(4*e+r)}, {hex(m32)}')
    a('s_mov_b32 s80, 0x05040100\ns_mov_b32 s81, 0x07060302')
    for i in range(D0, R):
        if i == D0 + 1: stamp(a, P, 'k0')
        dh = int(P['hpat'][i - D0]) if i - D0 < len(P['hpat']) else D0
        if P['vt'] and i < D0 + D: dh += 1
        a(f's_waitcnt vmcnt({dh-1})'); issue(i)
        if i == 8 + D: stamp(a, P, 's8')
    a('v_bfe_u32 v3, v0, 2, 1\nv_lshlrev_b32 v3, 9, v3\nv_and_b32 v4, 3, v0\nv_lshl_add_u32 v3, v4, 4, v3')
    a(f'v_lshrrev_b32 v4, 4, v0\nv_lshl_add_u32 v3, v4, 6, v3\nv_add_u32 v3, {L_Q}, v3')
    a('; ---- K prefetch ring is full: wait for q (LDS flag from the helper wave)')
    stamp(a, P, 'sB1a')
    q_wait(a, P, 'L_sq')
    stamp(a, P, 'sB1')
    a(f'ds_read_b128 v[{Q}:{Q+3}], v3\nds_read_b128 v[{Q+4}:{Q+7}], v3 offset:256')
    a(f'v_mov_b32 v4, 0xff800000\ns_mov_b32 s83, {hex(f2u(C_EXP))}\ns_waitcnt lgkmcnt(0)')
    chunks = []
    def kdpp(G):
        d = DT + 4 * (G & 1)
        a(f'v_mov_b32_dpp v{S+G}, v{d} quad_perm:[0,0,0,0] row_mask:0xf bank_mask:0xf')
        for r in range(1, 4):
            a(f'v_add_f32_dpp v{S+G}, v{d+r}, v{S+G} quad_perm:[{r},{r},{r},{r}] row_mask:0xf bank_mask:0xf')
        if G & 1:
            if not P['nornd']: a(f'v_cvt_pk_bf16_f32 v5, v{S+G-1}, v{S+G}\nv_lshlrev_b32 v{S+G-1}, 16, v5\nv_and_b32 v{S+G}, 0xffff0000, v5')
            a(f'v_max3_f32 v4, v4, v{S+G-1}, v{S+G}')
    def kchunk(G):
        def fn():
            d = DT + 4 * (G & 1)
            a(f'v_mfma_f32_16x16x32_bf16 v[{d}:{d+3}], {sl(2*G)}, v[{Q}:{Q+3}], 0')
            a(f'v_mfma_f32_16x16x32_bf16 v[{d}:{d+3}], {sl(2*G+1)}, v[{Q+4}:{Q+7}], v[{d}:{d+3}]')
            if G: kdpp(G - 1)
        return fn
    for G in range(32): chunks.append((2 * G + 1, [2 * G, 2 * G + 1], kchunk(G)))
    def sm0():
        kdpp(31)
        xgroup(a, 'v_max_f32', 4, 5)
        a('v_mul_f32 v6, s83, v4\nv_mov_b32 v7, 0')
        stamp(a, P, 'Kdone')
    chunks.append((63, [], sm0))
    def sm(k):
        def fn():
            for g in range(8 * k, 8 * k + 8): a(f'v_fma_f32 v{S+g}, v{S+g}, s83, -v6')
            for g in range(8 * k, 8 * k + 8): a(f'v_exp_f32 v{S+g}, v{S+g}')
            for g in range(8 * k, 8 * k + 8): a(f'v_add_f32 v7, v7, v{S+g}')
            for i in range(4 * k, 4 * k + 4): a(f'v_cvt_pk_bf16_f32 v{S+i}, v{S+2*i}, v{S+2*i+1}')
        return fn
    for k in range(4): chunks.append((63, [], sm(k)))
    def sm_end():
        xgroup(a, 'v_add_f32', 7, 5)
        a(f'v_mov_b32 v5, v7\nv_bfe_u32 v3, v0, 2, 1\nv_lshlrev_b32 v3, 6, v3\ns_lshl_b32 s37, s30, 3\ns_add_u32 s37, s37, {L_ML}\nv_add_u32 v3, s37, v3')
        a('s_mov_b64 exec, 0x11\nds_write_b64 v3, v[4:5]\ns_mov_b64 exec, -1')
    chunks.append((63, [], sm_end))
    AT = [32, 36]; PT = [40, 44, 8, 12]; ACC = DT
    late_ops = []; extra = [0]
    cnt = [0, 0]
    def vchunk(T, e, r):
        def fn():
            A = AT[cnt[0] & 1]; cnt[0] += 1
            mk = 64 + 2 * (4 * e + r)
            for p in range(4): a(f'v_cndmask_b32 v{A+p}, 0, v{S+4*T+p}, s[{mk}:{mk+1}]')
            for jj in range(2):
                j = 4 * jj + r; m, hh = j >> 1, j & 1
                B = PT[cnt[1] & 3]; cnt[1] += 1
                for p in range(4):
                    ev = vidx(T, 2 * p, e); od = vidx(T, 2 * p + 1, e)
                    a(f'v_perm_b32 v{B+p}, v{slot(od)+m}, v{slot(ev)+m}, s{80+hh}')
                c = '0' if (T == 0 and e == 0 and r == 0) else f'v[{ACC+4*jj}:{ACC+4*jj+3}]'
                a(f'v_mfma_f32_16x16x32_bf16 v[{ACC+4*jj}:{ACC+4*jj+3}], v[{A}:{A+3}], v[{B}:{B+3}], {c}')
        return fn
    for T in range(4):
        for e in range(2):
            for r in range(4):
                if lt and T == 3 and e == 1: continue
                fr = [vidx(T, g, e) for g in range(8)] if r == 3 else []
                chunks.append((vidx(T, 7, e), fr, vchunk(T, e, r)))
    if lt:
        FRG = lambda j: slot(112 + j)
        AM = [32, 36, 40, 44]
        def pre(p):
            def fn2():
                if p == 0:
                    for r in range(4):
                        for q in range(4): a(f'v_cndmask_b32 v{AM[r]+q}, 0, v{S+12+q}, s[{72+2*r}:{73+2*r}]')
                for j in range(8):
                    jj = (j & 1) * 4 + (j >> 1); m, hh = jj >> 1, jj & 1
                    a(f'v_perm_b32 v{FRG(jj)+p}, v{slot(vidx(3, 2*p+1, 1))+m}, v{slot(vidx(3, 2*p, 1))+m}, s{80+hh}')
                if p == 3:
                    for j in range(8):
                        jj = (j & 1) * 4 + (j >> 1); r = jj & 3; d = ACC + 4 * (jj >> 2)
                        a(f'v_mfma_f32_16x16x32_bf16 v[{d}:{d+3}], v[{AM[r]}:{AM[r]+3}], v[{FRG(jj)}:{FRG(jj)+3}], v[{d}:{d+3}]')
                        if P['late'] == 2 and j in (1, 3, 5): a(late_ops[j // 2])
                if P['late'] == 3 and p == 2:
                    for x in late_ops: a(x)
                    extra[0] = 3
            return fn2
        for p in range(4): chunks.append((vidx(3, 2 * p + 1, 1), [], pre(p)))
    freed = set(); ci = 0; landed = -1
    XR = RING + 4 * R
    if P['orc']: a('s_mov_b32 s62, 0')
    if P['stag']: a(f's_and_b32 s37, s30, {P["stp"]-1}\ns_mov_b32 s62, {P["stag"] | (P["stag"] << P["stp"])}\ns_lshr_b32 s62, s62, s37')
    if P['iw']: a(f's_mov_b32 s62, 0\ns_lshl_b32 s37, s30, 2\ns_add_u32 s37, s37, {L_PROG}\nv_mov_b32 v{XR+3}, s37\nv_and_b32 v{XR+2}, 7, v0\nv_lshlrev_b32 v{XR+2}, 2, v{XR+2}\nv_add_u32 v{XR+2}, {L_PROG}, v{XR+2}')
    if P['podd'] or P['peven']:
        a(f's_getreg_b32 s62, hwreg(HW_REG_XCC_ID)\ns_bitcmp1_b32 s62, 0\ns_mov_b32 s62, {P["peven"]}\ns_cselect_b32 s62, {P["podd"]}, s62')
    if P['ctl']: a(f's_mov_b32 s62, {P["mb"] if P["cver"] == 3 else 0}\ns_lshl_b32 s37, s30, 2\ns_add_u32 s37, s37, {L_PROG}\nv_mov_b32 v{XR+3}, s37\nv_mov_b32 v{XR+2}, {L_PROG}')
    def run_chunk(issued):
        nonlocal ci, landed
        nd, fr, fn = chunks[ci]; ci += 1
        if nd > landed:
            a(f's_waitcnt vmcnt({issued-1-nd})'); landed = nd
        if not (P['nocomp'] and fr is not None and fn.__name__ == 'fn' and ci <= len(chunks) - 8): fn()
        freed.update(fr)
    for i in range(R, 128):
        while (i - R) not in freed: run_chunk(i)
        Di = P['Dend'] if (P['Dend'] and i >= 128 - P['nend']) else D
        pat = P['kpat'] if i < 64 else P['vpat']
        if pat and not (P['Dend'] and i >= 128 - P['nend']): Di = int(pat[i % len(pat)])
        if P['ctl'] and P['c0'] + P['lag'] < i <= P['c1'] + 6:
            if i % P['crd'] == P['crd'] - 1: a(f's_waitcnt lgkmcnt(0)\nv_readfirstlane_b32 s62, v{XR+1}')
            if Di == 3 and P['b4']:
                bit = ((P['mb'] | P['mt'] | P['mo']) >> (i % 4) & 1)
                a(f's_waitcnt vmcnt(3)\ns_bitcmp1_b32 s62, 4\ns_cbranch_scc1 L_b{i}\ns_waitcnt vmcnt(2)')
                if bit: a(f's_bitcmp0_b32 s62, {i % 4}\ns_cbranch_scc1 L_b{i}\ns_waitcnt vmcnt(1)')
                a(f'L_b{i}:'); Di = 4
            elif Di == 3 and ((P['cmask'] if P['cver'] == 1 else P['cm1'] | P['cm2'] if P['cver'] == 2 else P['mb'] | P['mt'] | P['mo'] | (P['xmb'] | P['xmo'] if P['xl'] else 0)) >> (i % 4) & 1):
                a(f's_waitcnt vmcnt(2)\ns_bitcmp0_b32 s62, {i % 4}\ns_cbranch_scc1 L_b{i}\ns_waitcnt vmcnt(1)\nL_b{i}:')
        if P['iw'] and 30 < i <= 122:
            if i % P['iwp'] == 1:
                a(f's_waitcnt lgkmcnt(0)\nv_cmp_gt_u32 vcc, {i - 1 - P["iwd"]}, v{XR+1}\ns_cmp_lg_u32 vcc_lo, 0\ns_cselect_b32 s62, {P["iw"]}, 0')
            if Di == 3 and (P['iw'] >> (i % 4) & 1):
                a(f's_waitcnt vmcnt(2)\ns_bitcmp0_b32 s62, {i % 4}\ns_cbranch_scc1 L_b{i}\ns_waitcnt vmcnt(1)\nL_b{i}:')
        if P['stag'] and Di == 3:
            a(f's_waitcnt vmcnt(2)\ns_bitcmp0_b32 s62, {i % P["stp"]}\ns_cbranch_scc1 L_b{i}\ns_waitcnt vmcnt(1)\nL_b{i}:')
        if P['orc'] and i < 120:
            if i % 4 == 0: a('s_memrealtime s[96:97]')
            if i % 4 == 1: a(f's_waitcnt lgkmcnt(0)\ns_sub_u32 s96, s96, s98\ns_cmp_lt_u32 s96, {P["orc0"] + (i - 1) * P["orc"] // 10}\ns_cselect_b32 s62, {P["omask"]}, 0')
            if Di == 3 and (P['omask'] >> (i % 4) & 1):
                a(f's_waitcnt vmcnt(2)\ns_bitcmp0_b32 s62, {i % 4}\ns_cbranch_scc1 L_b{i}\ns_waitcnt vmcnt(1)\nL_b{i}:')
        if False: pass
        elif (P['podd'] or P['peven']) and i >= P['p0'] and ((P['podd'] | P['peven']) >> (i % 16) & 1):
            if (P['podd'] & P['peven']) >> (i % 16) & 1: a(f's_waitcnt vmcnt({Di})')
            else: a(f's_waitcnt vmcnt({Di})\ns_bitcmp1_b32 s62, {i % 16}\ns_cbranch_scc1 L_b{i}\ns_waitcnt vmcnt({Di-1})\nL_b{i}:')
            landed = max(landed, i - Di - 1)
        elif i - Di > landed:
            a(f's_waitcnt vmcnt({Di-1})'); landed = i - Di
        issue(i)
        if P['ctl'] and i % 2 == 0 and P['c0'] <= i <= P['c1'] + 4: a(f'v_mov_b32 v{XR}, {i}\nds_write_b32 v{XR+3}, v{XR}')
        if P['ctl'] and i % P['crd'] == P['crd'] - 2 and P['c0'] + P['lag'] <= i <= P['c1'] + 5: a(f'ds_read_b32 v{XR+1}, v{XR+2} offset:32')
        if P['iw'] and i >= 26 and i <= 122: a(f'v_mov_b32 v{XR}, {i}\nds_write_b32 v{XR+3}, v{XR}')
        if P['iw'] and i % P['iwp'] == 0 and 30 <= i <= 121: a(f'ds_read_b32 v{XR+1}, v{XR+2}')
        if i == 44 + D: stamp(a, P, 's44')
        if i == 96 + D: stamp(a, P, 's96')
        n = 0
        while ci < len(chunks) and chunks[ci][0] <= landed and n < P['budget']:
            run_chunk(i + 1); n += 1
    def tail_addr():
        a(f'v_lshrrev_b32 v3, 5, v0\nv_lshlrev_b32 v3, 9, v3\nv_bfe_u32 v4, v0, 4, 1\nv_lshl_add_u32 v3, v4, 10, v3')
        a(f'v_and_b32 v4, 15, v0\nv_lshl_add_u32 v3, v4, 5, v3\ns_lshl_b32 s37, s30, 11\ns_add_u32 s37, s37, {L_PART}\nv_add_u32 v3, s37, v3')
        a(f's_lshl_b32 s37, s30, 8\ns_add_u32 s37, s37, {L_PART}\nv_lshl_add_u32 v4, v0, 2, s37')
        a(f's_lshr_b32 s37, s30, 2\ns_lshl_b32 s37, s37, 5\ns_add_u32 s37, s37, {L_F}\nv_mov_b32 v5, s37')
        if P['ov']:
            assert P['qx']
            a(f'v_lshlrev_b32 v6, 2, v0\ns_lshl_b32 s60, s38, 12')
            a(f's_lshl_b32 s37, s30, 8\ns_add_u32 s60, s60, s37\ns_add_u32 s60, s60, {QBUF}\ns_xor_b32 s85, s85, 0x55')
        else:
            a(f'v_lshlrev_b32 v6, 2, v0\ns_lshl_b32 s60, s38, 11\ns_lshl_b32 s37, s30, 8\ns_add_u32 s60, s60, s37\ns_add_u32 s60, s60, {OBUF}')
        a(f'v_lshrrev_b32 v1, 4, v0\nv_bfe_u32 v7, v0, 2, 2\nv_and_b32 v8, 3, v0')
        if P['late']:
            a(f'v_lshl_add_u32 v7, v1, 2, v7\nv_bfe_u32 v2, v7, 1, 2\nv_xor_b32 v2, s30, v2\nv_and_b32 v2, 3, v2\nv_lshlrev_b32 v7, 7, v7\nv_lshl_add_u32 v7, v8, 3, v7\nv_lshl_add_u32 v7, v2, 5, v7\nv_add_u32 v7, {L_WO}, v7')
        else:
            a(f'v_lshl_add_u32 v7, v1, 2, v7\nv_lshlrev_b32 v7, 7, v7\nv_lshl_add_u32 v7, v8, 3, v7\ns_lshl_b32 s37, s30, 5\ns_add_u32 s37, s37, {L_WO}\nv_add_u32 v7, s37, v7')
        a(f'v_and_b32 v2, 15, v0\nv_lshlrev_b32 v2, 4, v2\nv_lshl_add_u32 v2, v1, {12 if P["ov"] else 11}, v2')
        a(f's_lshl_b32 s61, s30, {17 if P["ov"] else 16}\ns_lshl_b32 s37, s31, {14 if P["ov"] else 13}\ns_add_u32 s61, s61, s37\ns_and_b32 s37, s32, 3\ns_lshl_b32 s37, s37, 9\ns_add_u32 s61, s61, s37\ns_add_u32 s61, s61, {QBUF if P["ov"] else OBUF}')
    nlate = 0
    while lt and ci < len(chunks) - 4: run_chunk(128)
    if P['late']:
        assert lt
        a('v_lshrrev_b32 v3, 3, v0\nv_mul_u32_u24 v4, 896, v3\nv_and_b32 v3, 6, v3\nv_xor_b32 v3, v3, v0\nv_and_b32 v3, 7, v3\nv_lshl_add_u32 v4, v3, 4, v4')
        a(f'v_mov_b32 v{XR+3}, v4')
        a('s_and_b32 s36, s32, 3\ns_lshl_b32 s37, s31, 2\ns_add_u32 s36, s36, s37\ns_lshr_b32 s39, s32, 2\ns_lshl_b32 s39, s39, 7')
        a(f's_mul_i32 s37, s36, 114688\ns_add_u32 s37, s37, s39\ns_cmp_lt_u32 s32, 28\ns_cselect_b32 s37, s37, 0\ns_cselect_b32 s62, {127*896+128}, 0')
        srd(a, 56, 12, 's37', 's62')
        a(f's_mul_i32 s37, s36, 50176\ns_add_u32 s37, s37, s39\ns_cmp_lt_u32 s32, 28\ns_cselect_b32 s37, s37, 0\ns_cselect_b32 s62, {55*896+128}, 0')
        srd(a, 48, 20, 's37', 's62')
        a(f's_mul_i32 s64, s30, {16*896}\ns_add_u32 s65, s64, {8*896}\ns_lshr_b32 s66, s64, 1\ns_lshl_b32 s67, s30, 11\ns_add_u32 s67, s67, {L_WO}\ns_lshl_b32 s68, s30, 10\ns_add_u32 s68, s68, {L_W2}')
        late_ops.extend([f's_mov_b32 m0, s67\nbuffer_load_dwordx4 v{XR+3}, s[56:59], s64 offen {P["opol"]} lds',
                         f's_add_u32 m0, s67, 1024\nbuffer_load_dwordx4 v{XR+3}, s[56:59], s65 offen {P["opol"]} lds',
                         f's_mov_b32 m0, s68\nbuffer_load_dwordx4 v{XR+3}, s[48:51], s66 offen {P["mpol"]} lds'])
        if P['late'] == 1:
            for x in late_ops: a(x)
            nlate = 3
    tail_addr()
    a(f'v_lshl_add_u32 v{XR+2}, v8, 2, v1\nv_lshlrev_b32 v{XR+2}, 1, v{XR+2}\ns_lshl_b32 s39, s32, 5')
    srd(a, 44, 22, None, 896)
    a(f'buffer_load_ushort v{XR}, v{XR+2}, s[44:47], s39 offen')
    srd(a, 40, 4, None, 7168)
    a(f's_mul_i32 s37, s31, 896\ns_add_u32 s63, s37, s39\nbuffer_load_ushort v{XR+1}, v{XR+2}, s[40:43], s63 offen')
    srd(a, 44, 24, None, 7168)
    while ci < len(chunks): run_chunk(130 + nlate + extra[0])
    stamp(a, P, 'Vlast')
    a('L_tail:')
    a(f'ds_write_b128 v3, v[{ACC}:{ACC+3}]\nds_write_b128 v3, v[{ACC+4}:{ACC+7}] offset:16\ns_waitcnt lgkmcnt(0)\ns_barrier')
    stamp(a, P, 'B2')
    for w in range(4): a(f'ds_read2st64_b32 v[{16+2*w}:{17+2*w}], v4 offset0:{16*w} offset1:{16*w+8}')
    a(f'ds_read_b128 v[24:27], v5\nds_read_b128 v[28:31], v5 offset:16\ns_waitcnt lgkmcnt(0)')
    a('v_mul_f32 v32, v16, v24\nv_mul_f32 v33, v17, v25')
    for w in range(2, 8): a(f'v_fmac_f32 v{32+(w&1)}, v{16+w}, v{24+w}')
    a('v_mov_b32 v9, s85\nv_add_f32 v32, v32, v33\nv_bfi_b32 v32, s82, v9, v32')
    hand_store(a, 'buffer_store_dword v32, v6, s[52:55], s60 offen')
    stamp(a, P, 'ost')
    a('s_cmp_lt_u32 s32, 28\ns_cbranch_scc0 L_end')
    GL = 'buffer_load_dwordx4 v[16:19], v2, s[52:55], s61 offen sc1\nbuffer_load_dwordx4 v[20:23], v2, s[52:55], s61 offen offset:256 sc1'
    a(GL)
    BF, AF, DR = 56, 72, 88
    HA, B2F = 92, 100
    if P['late']:
        a(f'v_and_b32 v10, 7, v0\nv_mul_u32_u24 v10, {HSTR}, v10\nv_lshl_add_u32 v10, v1, 3, v10\nv_add_u32 v10, {L_H}, v10')
        for k in range(2): a(f'ds_read_b64 v[{HA+4*k}:{HA+4*k+1}], v10 offset:{k*64}\nds_read_b64 v[{HA+4*k+2}:{HA+4*k+3}], v10 offset:{k*64+32}')
    else:
        a('s_cmp_lt_u32 s30, 4\ns_cbranch_scc0 L_nofr')
        for jj in range(4):
            b = BF + 4 * jj
            a(f'ds_read_b64_tr_b16 v[{b}:{b+1}], v7 offset:{jj*4096}\nds_read_b64_tr_b16 v[{b+2}:{b+3}], v7 offset:{jj*4096+2048}')
        a(f's_lshl_b32 s37, s30, 10\ns_add_u32 s37, s37, {L_C}\nv_lshl_add_u32 v10, v0, 4, s37\nds_read_b128 v[{DR}:{DR+3}], v10')
        a('L_nofr:')
    a(f'v_and_b32 v4, 15, v0\nv_lshlrev_b32 v4, 3, v4\nv_and_b32 v5, 1, v1\nv_lshl_add_u32 v4, v5, 2, v4\nv_lshrrev_b32 v5, 1, v1\nv_lshl_add_u32 v4, v5, 7, v4')
    a(f's_mul_i32 s37, s30, {OSTR}\ns_add_u32 s37, s37, {L_O}\nv_add_u32 v5, s37, v4')
    a(f'v_and_b32 v12, 7, v0\nv_mul_u32_u24 v12, {OSTR}, v12\nv_lshl_add_u32 v12, v1, 3, v12\nv_add_u32 v12, {L_O}, v12')
    a(f's_and_b32 s60, s32, 28\ns_add_u32 s60, s60, s30\ns_lshl_b32 s60, s60, 5\ns_lshl_b32 s37, s31, 2\ns_add_u32 s60, s60, s37\ns_and_b32 s37, s32, 3\ns_add_u32 s60, s60, s37')
    a(f's_lshl_b32 s60, s60, 9\ns_add_u32 s60, s60, {PBUF}\ns_mov_b32 s86, {P["spin"]}')
    a('s_branch L_gchk')
    a('L_gpoll:')
    if P['rex']: a('s_mov_b64 exec, vcc')
    if P['gsl']: a(f's_sleep {P["gsl"]}')
    a(GL)
    a('L_gchk:')
    a('s_waitcnt vmcnt(0)')
    tag_check(a, range(16, 24), 10, 11, 4)
    a('s_sub_u32 s86, s86, 1\ns_cbranch_scc1 L_gdone\ns_cbranch_vccnz L_gpoll')
    a('L_gdone:')
    if P['rex']: a('s_mov_b64 exec, -1')
    stamp(a, P, 'gok')
    for p in (16, 17, 20, 21): a(f'v_permlane16_swap_b32 v{p}, v{p+2}')
    for p in (16, 17, 20, 21): a(f'v_add_f32 v{p}, v{p}, v{p+2}')
    a('v_permlane32_swap_b32 v16, v20\nv_permlane32_swap_b32 v17, v21\nv_add_f32 v16, v16, v20\nv_add_f32 v17, v17, v21')
    a('v_cvt_pk_bf16_f32 v16, v16, v17\nds_write_b32 v5, v16\ns_waitcnt lgkmcnt(0)\ns_barrier')
    stamp(a, P, 'B3')
    a('s_cmp_lt_u32 s30, 4\ns_cbranch_scc0 L_fin')
    if P['late']:
        d2 = L_W2 - L_WO
        for k in range(2): a(f'ds_read_b64_tr_b16 v[{B2F+4*k}:{B2F+4*k+1}], v7 offset:{d2+k*4096}\nds_read_b64_tr_b16 v[{B2F+4*k+2}:{B2F+4*k+3}], v7 offset:{d2+k*4096+2048}')
        for jj in range(4):
            b = BF + 4 * jj
            a(f'ds_read_b64 v[{AF+4*jj}:{AF+4*jj+1}], v12 offset:{jj*64}\nds_read_b64 v[{AF+4*jj+2}:{AF+4*jj+3}], v12 offset:{jj*64+32}')
            a(f'ds_read_b64_tr_b16 v[{b}:{b+1}], v7 offset:{jj*4096}\nds_read_b64_tr_b16 v[{b+2}:{b+3}], v7 offset:{jj*4096+2048}')
            if jj == 1:
                for k in range(2):
                    a(f's_waitcnt lgkmcnt({10-2*k})')
                    a(f'v_mfma_f32_16x16x32_bf16 v[{DR}:{DR+3}], v[{HA+4*k}:{HA+4*k+3}], v[{B2F+4*k}:{B2F+4*k+3}], ' + ('0' if k == 0 else f'v[{DR}:{DR+3}]'))
        for jj in range(4):
            a(f's_waitcnt lgkmcnt({12-4*jj})')
            a(f'v_mfma_f32_16x16x32_bf16 v[{DR}:{DR+3}], v[{AF+4*jj}:{AF+4*jj+3}], v[{BF+4*jj}:{BF+4*jj+3}], v[{DR}:{DR+3}]')
    else:
        for jj in range(4): a(f'ds_read_b64 v[{AF+4*jj}:{AF+4*jj+1}], v12 offset:{jj*64}\nds_read_b64 v[{AF+4*jj+2}:{AF+4*jj+3}], v12 offset:{jj*64+32}')
        for jj in range(4):
            a(f's_waitcnt lgkmcnt({6-2*jj})')
            a(f'v_mfma_f32_16x16x32_bf16 v[{DR}:{DR+3}], v[{AF+4*jj}:{AF+4*jj+3}], v[{BF+4*jj}:{BF+4*jj+3}], v[{DR}:{DR+3}]')
    a(f'v_permlane32_swap_b32 v{DR}, v{DR+1}\nv_permlane32_swap_b32 v{DR+2}, v{DR+3}')
    tag_put(a, (DR, DR + 2), 9, 82, 0x200)
    a(f'buffer_store_dword v{DR}, v6, s[52:55], s60 offen {P["ppol"]}\nbuffer_store_dword v{DR+2}, v6, s[52:55], s60 offen offset:256 {P["ppol"]}')
    stamp(a, P, 'pst')
    if P['diag']:
        a('s_cmp_lg_u32 s30, 0\ns_cbranch_scc1 L_end')
        stamp_store(a, P, stamp_items(P, [x for x in S_PTS if x not in ('g2ok', 'end', 'fst', 'fcnt')]), hw=True)
    a('s_endpgm')
    a('; ---- wave 7: sum the 32 partial products of 16 output columns, add x and b2, store')
    a('L_fin:')
    if P['wb']:
        a('s_cmp_eq_u32 s30, 5\ns_cbranch_scc0 L_nowb\ns_cmp_eq_u32 s32, 0\ns_cbranch_scc0 L_end\nbuffer_wbl2 sc1\ns_waitcnt vmcnt(0)\ns_endpgm\nL_nowb:')
    a('s_cmp_eq_u32 s30, 7\ns_cbranch_scc0 L_end')
    a('v_and_b32 v8, 3, v0')
    a(f'v_lshrrev_b32 v2, 2, v0\nv_lshlrev_b32 v2, 9, v2\nv_lshl_add_u32 v2, v8, 4, v2\nv_add_u32 v3, 8192, v2')
    a(f's_lshl_b32 s61, s32, 14\ns_and_b32 s37, s31, 3\ns_lshl_b32 s37, s37, 7\ns_add_u32 s61, s61, s37\ns_lshr_b32 s37, s31, 2\ns_lshl_b32 s37, s37, 6\ns_add_u32 s61, s61, s37\ns_add_u32 s61, s61, {PBUF}\ns_mov_b32 s86, {P["spin"]}')
    a(f'v_lshlrev_b32 v24, 16, v{XR}\nv_lshlrev_b32 v25, 16, v{XR+1}\nv_add_f32 v24, v24, v25')
    stamp(a, P, 'fst')
    a('L_fpoll:')
    a(f'buffer_load_dwordx4 v[16:19], v2, s[52:55], s61 offen {P["lpol"]}\nbuffer_load_dwordx4 v[20:23], v3, s[52:55], s61 offen {P["lpol"]}')
    a('s_waitcnt vmcnt(0)')
    tag_check(a, range(16, 24), 8, 9, 10)
    a('s_sub_u32 s86, s86, 1\ns_cbranch_scc1 L_fdone\ns_cbranch_vccz L_fdone')
    if P['fthr']:
        a(f's_bcnt1_i32_b64 s37, vcc\ns_cmp_lt_u32 s37, {P["fthr"]}\ns_cbranch_scc1 L_fpoll\ns_sleep {P["fsl2"]}')
    if P['fsl']: a(f's_sleep {P["fsl"]}')
    if P['rex']: a('s_mov_b64 exec, vcc')
    a('s_branch L_fpoll')
    a('L_fdone:')
    if P['rex']: a('s_mov_b64 exec, -1')
    stamp(a, P, 'g2ok')
    if P['diag'] and 'fcnt' in pts(P):
        r = 88 + 2 * pts(P).index('fcnt'); r0 = 88 + 2 * pts(P).index('fst')
        a(f's_sub_u32 s37, {P["spin"]}, s86\ns_mul_i32 s37, s37, 100\ns_add_u32 s{r}, s{r0}, s37\ns_addc_u32 s{r+1}, s{r0+1}, 0')
    for i in range(4): a(f'v_add_f32 v{16+i}, v{16+i}, v{20+i}')
    a('v_permlane16_swap_b32 v16, v17\nv_permlane16_swap_b32 v18, v19\nv_add_f32 v16, v16, v17\nv_add_f32 v18, v18, v19')
    a('v_permlane32_swap_b32 v16, v18\nv_add_f32 v16, v16, v18')
    a('v_add_f32_dpp v16, v16, v16 row_ror:4 row_mask:0xf bank_mask:0xf')
    a('v_add_f32_dpp v16, v16, v16 row_ror:8 row_mask:0xf bank_mask:0xf')
    a('v_add_f32 v16, v16, v24\nv_cvt_pk_bf16_f32 v16, v16, v16')
    a('s_mov_b32 exec_lo, 0x000f000f\ns_mov_b32 exec_hi, 0x000f000f')
    a(f'buffer_store_short v16, v{XR+2}, s[44:47], s63 offen {P["outpol"]}')
    a('s_cmp_lg_u32 s2, 0\ns_cbranch_scc1 L_noep')
    a('v_mov_b32 v8, 0\nv_mov_b32 v9, s84\ns_mov_b64 exec, 1\nbuffer_store_dword v9, v8, s[52:55], 0 offen')
    a('L_noep:')
    if P['hold']:
        a(f'L_hold:\ns_memrealtime s[96:97]\ns_waitcnt lgkmcnt(0)\ns_sub_u32 s96, s96, s98\ns_cmp_lt_u32 s96, {P["hold"]}\ns_cbranch_scc1 L_hold')
    if P['diag']:
        a('s_mov_b64 exec, -1\ns_waitcnt vmcnt(0)')
        stamp(a, P, 'end')
        stamp_store(a, P, stamp_items(P, ['g2ok', 'end', 'fst', 'fcnt']))
    a('s_endpgm')

def dma_loop(a, lab, n, depth, vaddr, sstep, lds0, pol):
    a(f's_mov_b32 s36, 0\ns_mov_b32 s62, {lds0}\ns_mov_b32 s63, {n}')
    a(f'{lab}:')
    a(f's_mov_b32 m0, s62\ns_waitcnt vmcnt({depth-1})')
    a(f'buffer_load_dwordx4 v{vaddr}, s[56:59], s36 offen {pol} lds')
    a(f's_add_u32 s36, s36, {sstep}\ns_add_u32 s62, s62, 1024\ns_sub_u32 s63, s63, 1\ns_cmp_lg_u32 s63, 0\ns_cbranch_scc1 {lab}')

XF, FF, TT = 16, 44, 100
def x_addr(a):
    a('v_and_b32 v10, 15, v0\nv_lshrrev_b32 v9, 4, v0\nv_and_b32 v8, 7, v0\nv_mul_u32_u24 v8, 896, v8')
    a('v_bfe_u32 v3, v0, 3, 1\nv_mul_u32_u24 v3, 448, v3\nv_lshl_add_u32 v8, v9, 4, v8\nv_add_u32 v8, v8, v3')
def x_load(a, P):
    srd(a, 48, 4, None, 7168)
    for ks in range(7): a(f'buffer_load_dwordx4 v[{XF+4*ks}:{XF+4*ks+3}], v8, s[48:51], 0 offen offset:{ks*64} {P["xpol"]}')
def tag_check(a, regs, t0, t1, acc, mask=TMASK):
    regs = list(regs)
    ts = 's85' if mask == TMASK else 's80'
    for r in regs: a(f'v_xor_b32 v{r}, {ts}, v{r}')
    two = len(regs) >= 6
    a(f'v_or_b32 v{acc}, v{regs[0]}, v{regs[1]}')
    rest = regs[2:]
    if two: a(f'v_or3_b32 v{t0}, v{rest[0]}, v{rest[1]}, v{rest[2]}'); rest = rest[3:]
    k = 0
    while len(rest) >= 2:
        d = t0 if (two and k & 1) else acc
        a(f'v_or3_b32 v{d}, v{d}, v{rest[0]}, v{rest[1]}'); rest = rest[2:]; k += 1
    if two and rest: a(f'v_or3_b32 v{acc}, v{acc}, v{t0}, v{rest[0]}')
    elif two: a(f'v_or_b32 v{acc}, v{acc}, v{t0}')
    elif rest: a(f'v_or_b32 v{acc}, v{acc}, v{rest[0]}')
    a(f'v_and_b32 v{acc}, {mask}, v{acc}\nv_cmp_ne_u32 vcc, 0, v{acc}')
def tag_put(a, regs, tagv, ms, half):
    for r in regs: a(f'v_add_u32 v{r}, {half}, v{r}')
    for r in regs: a(f'v_bfi_b32 v{r}, s{ms}, v{tagv}, v{r}')
def tag_strip(a, regs, half, ms=82):
    for r in regs: a(f'v_bfi_b32 v{r}, s{ms}, v{half}, v{r}')
_st = [0]; HPOL = ['']
def hand_store(a, ins):
    _st[0] += 1; n = _st[0]
    a(f's_cmp_eq_u32 s87, 0\ns_cbranch_scc1 L_wt{n}\n{ins} {HPOL[0]}\ns_branch L_we{n}\nL_wt{n}:\n{ins} sc1\nL_we{n}:')

def unit_gemm(a, lds, va, st_v, st_s, tagv, ms, before_pub=None, exact=False):
    TA, DQ = 44, 108
    seq = [(t, ks) for t in range(4) for ks in range(4)]
    def rd(n):
        t, ks = seq[n]; r = TA + 4 * n; o = lds + ks * 4096 + t * 32
        a(f'ds_read_b64_tr_b16 v[{r}:{r+1}], v{va} offset:{o}\nds_read_b64_tr_b16 v[{r+2}:{r+3}], v{va} offset:{o+512}')
    def pub(t):
        if exact:
            for u in range(2):
                r = 128 + 8 * (t & 1) + 4 * u
                a(f'v_mov_b32 v{r}, v{DQ+4*t+2*u}\nv_mov_b32 v{r+1}, v{DQ+4*t+2*u+1}')
                hand_store(a, f'buffer_store_dwordx4 v[{r}:{r+3}], v{st_v}, s[52:55], s{st_s} offen offset:{t*128+u*64}')
            return
        tag_put(a, range(DQ + 4 * t, DQ + 4 * t + 4), tagv, ms, 0x80 if ms == 81 else 0x200)
        hand_store(a, f'buffer_store_dwordx4 v[{DQ+4*t}:{DQ+4*t+3}], v{st_v}, s[52:55], s{st_s} offen offset:{t*64}')
    for n in range(6): rd(n)
    if exact:
        for k in range(4): a(f'v_mov_b32 v{130+4*k}, s84\nv_mov_b32 v{131+4*k}, s84')
    for n, (t, ks) in enumerate(seq):
        if n + 6 < 16: rd(n + 6)
        a(f's_waitcnt lgkmcnt({2*min(6, 15-n)})')
        r = TA + 4 * n; d = DQ + 4 * t
        c = '0' if ks == 0 else f'v[{d}:{d+3}]'
        a(f'v_mfma_f32_16x16x32_bf16 v[{d}:{d+3}], v[{r}:{r+3}], v[{XF+4*ks}:{XF+4*ks+3}], {c}')
        if before_pub is None and n in (7, 11, 15): pub(n // 4 - 1)
    if before_pub is not None:
        before_pub()
        for t in range(3): pub(t)
    pub(3)

def helper(a, P):
    a('L_helper:')
    if P['ctl']: a('s_cmp_eq_u32 s30, 9\ns_cbranch_scc1 L_ctl')
    stamp(a, P, 'hstart')
    if P['cpf']:
        a('s_getpc_b64 s[56:57]\ns_mov_b32 s58, 4352\ns_mov_b32 s59, 0x20000\nv_lshlrev_b32 v1, 6, v0')
        a('buffer_load_dword v15, v1, s[56:59], 0 offen offset:256')
    x_addr(a)
    a('v_lshrrev_b32 v4, 3, v0\nv_lshlrev_b32 v1, 13, v4\nv_and_b32 v2, 7, v0\nv_lshl_add_u32 v1, v2, 4, v1')
    a('v_mul_u32_u24 v4, 3584, v4\nv_lshl_add_u32 v4, v2, 4, v4')
    a('s_and_b32 s63, s32, 1\ns_bfe_u32 s62, s32, 0x10001\ns_mul_i32 s64, s62, 224\ns_lshl_b32 s36, s63, 7\ns_add_u32 s64, s64, s36')
    a('s_lshl_b32 s65, s63, 5\ns_sub_u32 s65, 127, s65\ns_lshr_b32 s66, s32, 2')
    a('s_lshl_b32 s37, s64, 13\ns_lshl_b32 s39, s31, 3\ns_add_u32 s39, s39, s66\ns_lshl_b32 s39, s39, 7\ns_add_u32 s37, s37, s39')
    a('s_lshl_b32 s39, s65, 13\ns_add_u32 s39, s39, 128')
    a('s_lshl_b32 s60, s63, 8\ns_mul_i32 s61, s63, 192\ns_sub_u32 s61, 192, s61')
    a('s_waitcnt lgkmcnt(0)')
    stamp(a, P, 'hkarg')
    a('s_load_dword s84, s[28:29], 0')
    srd(a, 48, 4, None, 7168)
    for ks in range(7):
        if ks < 3: a(f'buffer_load_dwordx4 v[{XF+4*ks}:{XF+4*ks+3}], v8, s[48:51], s60 offen offset:{ks*64} {P["xpol"]}')
        else: a(f'buffer_load_dwordx4 v[{XF+4*ks}:{XF+4*ks+3}], v8, s[48:51], s61 offen offset:{(ks-3)*64} {P["xpol"]}')
    if P['abl'] & 2: a('s_mov_b32 s39, 0')
    srd(a, 56, 10, 's37', 's39')
    for i in range(16):
        a(f's_mov_b32 m0, {L_WQ+i*1024}\ns_mov_b32 s36, {i*65536}')
        a(f'buffer_load_dwordx4 v1, s[56:59], s36 offen {P["wpol"]} lds')
    stamp(a, P, 'wqiss')
    a(f'v_mov_b32 v126, -1\nv_mov_b32 v127, -1\nv_lshlrev_b32 v3, 3, v0\nv_add_u32 v3, {L_ML}, v3\nv_mov_b32 v5, {L_TAG}')
    a('s_mov_b64 exec, 0xffff\nds_write_b64 v3, v[126:127]\nds_write_b64 v5, v[126:127]\ns_mov_b64 exec, -1')
    if P['iw']: a(f'v_mov_b32 v126, 0\nv_and_b32 v3, 7, v0\nv_lshlrev_b32 v3, 2, v3\nv_add_u32 v3, {L_PROG}, v3\nds_write_b32 v3, v126')
    srd(a, 52, 28, None, WS_USED)
    a(f'v_lshlrev_b32 v2, 4, v0\ns_getreg_b32 s68, hwreg(HW_REG_XCC_ID)\ns_and_b32 s68, s68, 15\ns_lshl_b32 s68, s68, 12')
    a(f's_lshl_b32 s69, s31, 12\ns_add_u32 s69, s69, {XBUF}\ns_lshl_b32 s37, s32, 7\ns_add_u32 s37, s37, s69\ns_waitcnt lgkmcnt(0)')
    a(f's_add_u32 s84, s84, 0x9E3779B9\ns_and_b32 s85, s84, {TMASK}\ns_and_b32 s80, s84, {QMASK}\ns_or_b32 s68, s68, s85\nv_mov_b32 v6, s85\nv_mov_b32 v124, s68')
    a('s_mov_b64 exec, 1\nbuffer_store_dword v124, v2, s[52:55], s37 offen sc1\ns_mov_b64 exec, -1')
    stamp(a, P, 'xst')
    a('s_barrier')
    a('v_and_b32 v125, 31, v0\nv_lshlrev_b32 v125, 7, v125')
    a(f'v_mov_b32 v14, {hex(OOB)}\ns_mov_b32 s82, {TMASK}\ns_mov_b32 s81, {QMASK}\ns_mov_b32 s83, {hex(f2u(C_EXP))}')
    a(f'v_bfe_u32 v3, v0, 2, 2\nv_lshl_add_u32 v12, v9, 3, v3\nv_lshlrev_b32 v12, 7, v12\nv_and_b32 v5, 3, v0\nv_lshl_add_u32 v12, v5, 3, v12')
    a(f'v_and_b32 v5, 7, v0\nv_lshlrev_b32 v13, {17 if P["qx"] else 16}, v5\nv_lshl_add_u32 v13, v9, 4, v13\nv_bfe_u32 v3, v0, 3, 1\nv_cmp_eq_u32 vcc, s62, v3')
    a(f'v_lshlrev_b32 v5, 12, v5\nv_lshl_add_u32 v5, v9, 4, v5\nv_cndmask_b32 v13, v14, v13, vcc\nv_cndmask_b32 v5, v14, v5, vcc')
    if P['qx']: a(f's_and_b32 s37, s32, 3\ns_lshl_b32 s60, s37, 12\ns_lshl_b32 s39, s31, 14\ns_add_u32 s60, s60, s39\ns_lshl_b32 s39, s66, 9\ns_add_u32 s60, s60, s39\ns_add_u32 s60, s60, {QBUF}')
    else:
        a(f's_and_b32 s37, s32, 3\ns_lshl_b32 s60, s37, 14\ns_lshl_b32 s39, s31, 11\ns_add_u32 s60, s60, s39\ns_lshl_b32 s39, s66, 8\ns_add_u32 s60, s60, s39\ns_add_u32 s60, s60, {QBUF}')
    a(f's_lshl_b32 s70, s37, 10\ns_and_b32 s39, s66, 3\ns_lshl_b32 s39, s39, 8\ns_add_u32 s70, s70, s39\ns_lshl_b32 s39, s31, 15\ns_add_u32 s70, s70, s39\ns_add_u32 s70, s70, {HBUF}')
    a('s_waitcnt vmcnt(17)')
    stamp(a, P, 'xland')
    layernorm(a, XF, FF, TT)
    stamp(a, P, 'lndone')
    a('s_mov_b64 exec, 0xffffffff\nbuffer_load_dword v124, v125, s[52:55], s69 offen sc1\ns_mov_b64 exec, -1')
    a('s_waitcnt vmcnt(2) lgkmcnt(0)')
    stamp(a, P, 'wqland')
    def loc_check():
        a('s_waitcnt vmcnt(0)\nv_cmp_ne_u32 vcc, s68, v124\ns_cmp_eq_u32 vcc_lo, 0')
        for k in range(P['xretry']):
            a('s_cbranch_scc1 L_xok\ns_mov_b64 exec, 0xffffffff\nbuffer_load_dword v124, v125, s[52:55], s69 offen sc1\ns_mov_b64 exec, -1')
            a('s_waitcnt vmcnt(0)\nv_cmp_ne_u32 vcc, s68, v124\ns_cmp_eq_u32 vcc_lo, 0')
        a('L_xok:')
        a('s_cselect_b32 s87, 1, 0' if P['loc'] else 's_mov_b32 s87, 0')
        stamp(a, P, 'xid')
        if P['diag'] and 'locv' in pts(P):
            a('s_cmp_lg_u32 s87, 0\ns_cbranch_scc1 L_locv'); stamp(a, P, 'locv'); a('L_locv:')
    if P['abl'] & 4: loc_check(); a('s_branch L_qdone')
    unit_gemm(a, L_WQ, 12, 13, 60, 6, 81, None if P['abl'] & 4 else loc_check, P['qx'])
    stamp(a, P, 'qpub')
    if P['qx']: a(f's_lshr_b32 s61, s38, 2\ns_lshl_b32 s61, s61, 14\ns_add_u32 s61, s61, {QBUF}\ns_mov_b32 s72, s84\ns_mov_b32 s73, s84')
    else:
        a(f's_lshl_b32 s61, s33, 16\ns_lshl_b32 s37, s31, 11\ns_add_u32 s61, s61, s37\ns_add_u32 s61, s61, {QBUF}')
    a(f's_mov_b32 s86, {P["spin"]}')
    a('L_qpoll:')
    a(f's_sleep {P["qsl"]}')
    a('s_mov_b32 s36, s61')
    if P['qx']:
        for kq in range(4):
            for m in range(4): a(f'buffer_load_dwordx4 v[{44+16*kq+4*m}:{47+16*kq+4*m}], v2, s[52:55], s36 offen offset:{m*1024} sc1')
            if kq < 3: a('s_add_u32 s36, s36, 4096')
    else:
        for kq in range(4):
            for m in range(2): a(f'buffer_load_dwordx4 v[{44+8*kq+4*m}:{47+8*kq+4*m}], v2, s[52:55], s36 offen offset:{m*1024} sc1')
            if kq < 3: a('s_add_u32 s36, s36, 16384')
    a(f's_mov_b64 exec, 0xffffffff\nbuffer_load_dword v124, v125, s[52:55], s69 offen sc1\ns_mov_b64 exec, -1\ns_waitcnt vmcnt(0)')
    if P['qx']:
        a('s_mov_b64 vcc, 0')
        for n in range(16):
            a(f'v_cmp_ne_u64 s[{74+2*(n%3)}:{75+2*(n%3)}], s[72:73], v[{46+4*n}:{47+4*n}]')
            if n >= 2: a(f's_or_b64 vcc, vcc, s[{74+2*((n-2)%3)}:{75+2*((n-2)%3)}]')
        for n in (14, 15): a(f's_or_b64 vcc, vcc, s[{74+2*(n%3)}:{75+2*(n%3)}]')
    else: tag_check(a, range(44, 76), 100, 101, 102, QMASK)
    a('s_sub_u32 s86, s86, 1\ns_cbranch_scc1 L_qdone\ns_cbranch_vccnz L_qpoll')
    a('L_qdone:')
    stamp(a, P, 'qok')
    a('v_cmp_ne_u32 vcc, s68, v124\ns_cmp_eq_u32 vcc_lo, 0')
    a('s_cselect_b32 s87, 1, 0' if P['loc'] else 's_mov_b32 s87, 0')
    if P['qx']:
        for kq in range(1, 4):
            for m in range(4): a(f'v_pk_add_f32 v[{44+4*m}:{45+4*m}], v[{44+4*m}:{45+4*m}], v[{44+16*kq+4*m}:{45+16*kq+4*m}]')
        a(f'v_lshrrev_b32 v3, 3, v0\nv_lshlrev_b32 v3, 5, v3\nv_and_b32 v15, 3, v0\nv_lshl_add_u32 v3, v15, 3, v3\nv_and_b32 v15, 4, v0\nv_add_u32 v3, v3, v15\nv_add_u32 v3, {L_Q}, v3')
        a(f'v_mov_b32 v13, {L_TAG}\nv_mov_b32 v108, s84\nv_mov_b32 v109, s87')
        for m in range(4): a(f'v_cvt_pk_bf16_f32 v{44+4*m}, v{44+4*m}, v{45+4*m}\nds_write_b32 v3, v{44+4*m} offset:{m*256}')
        a('s_waitcnt lgkmcnt(0)\nds_write_b64 v13, v[108:109]')
    else:
        for kq in range(1, 4):
            for m in range(4): a(f'v_pk_add_f32 v[{44+2*m}:{45+2*m}], v[{44+2*m}:{45+2*m}], v[{44+8*kq+2*m}:{45+8*kq+2*m}]')
        a(f'v_lshlrev_b32 v3, 3, v0\nv_add_u32 v3, {L_Q}, v3\nv_mov_b32 v13, {L_TAG}\nv_mov_b32 v100, s84\nv_mov_b32 v101, s87')
        for m in range(4): a(f'v_cvt_pk_bf16_f32 v{52+m}, v{44+2*m}, v{45+2*m}')
        a('ds_write_b64 v3, v[52:53]\nds_write_b64 v3, v[54:55] offset:512\ns_waitcnt lgkmcnt(0)\nds_write_b64 v13, v[100:101]')
    stamp(a, P, 'B1')
    if P['pt']:
        a('v_mov_b32 v3, 0\ns_mov_b64 exec, 1\ns_lshl_b32 s37, s38, 19')
        srd(a, 48, 8, 's37', 64); a('buffer_load_dword v110, v3, s[48:51], 0 offen nt')
        a('s_mul_i32 s37, s31, 458752'); srd(a, 48, 12, 's37', 64); a('buffer_load_dword v111, v3, s[48:51], 0 offen nt')
        a('s_add_u32 s37, s37, 458688'); srd(a, 48, 12, 's37', 64); a('buffer_load_dword v112, v3, s[48:51], 0 offen nt')
        srd(a, 48, 20, None, 64); a('buffer_load_dword v113, v3, s[48:51], 0 offen nt')
        srd(a, 48, 22, None, 64); a('buffer_load_dword v114, v3, s[48:51], 0 offen nt')
        a('s_mov_b64 exec, -1')
    if P['abl'] & 1: a('s_branch L_now')
    a('s_cmp_ge_u32 s66, 4\ns_cbranch_scc0 L_noh')
    a('s_mul_i32 s67, s31, 7\ns_lshr_b32 s67, s67, 1\ns_and_b32 s39, s66, 3\ns_add_u32 s67, s67, s39\ns_mul_i32 s37, s64, 3584\ns_lshl_b32 s39, s67, 7\ns_add_u32 s37, s37, s39')
    a('s_mul_i32 s39, s65, 3584\ns_add_u32 s39, s39, 128')
    srd(a, 56, 16, 's37', 's39')
    dma_loop(a, 'L_w1', 16, P['DH'], 4, 8 * 3584, L_W1, P['wpol'])
    layernorm(a, XF, FF, TT, 16)
    a('s_waitcnt vmcnt(0)')
    unit_gemm(a, L_W1, 12, 5, 70, 6, 82)
    a('L_noh:')
    stamp(a, P, 'hpub')
    a('s_cmp_lt_u32 s32, 28\ns_cbranch_scc0 L_now')
    a('v_lshrrev_b32 v1, 3, v0\nv_mul_u32_u24 v1, 896, v1\nv_and_b32 v3, 7, v0\nv_lshl_add_u32 v1, v3, 4, v1')
    a('s_and_b32 s64, s32, 3\ns_lshl_b32 s65, s31, 2\ns_add_u32 s65, s65, s64')
    if not P['late']:
        a(f's_mul_i32 s37, s65, 50176\ns_lshl_b32 s39, s66, 7\ns_add_u32 s37, s37, s39')
        srd(a, 56, 20, 's37', 55 * 896 + 128)
        dma_loop(a, 'L_w2', 8, P['DH'], 1, 8 * 896, L_W2, P['mpol'])
        if not P['nowo']:
            a(f's_mul_i32 s37, s65, 114688\ns_lshl_b32 s39, s66, 7\ns_add_u32 s37, s37, s39\ns_sub_u32 s39, {4096*896}, s37')
            srd(a, 56, 12, 's37', 's39')
            dma_loop(a, 'L_wo', 16, P['DH'], 1, 8 * 896, L_WO, P['opol'])
    stamp(a, P, 'wodone')
    a('v_min_u32 v3, 13, v10\nv_lshlrev_b32 v4, 12, v9\nv_lshl_add_u32 v4, v3, 4, v4\nv_lshlrev_b32 v5, 3, v3')
    a(f's_lshl_b32 s61, s31, 15\ns_mul_i32 s37, s64, 224\ns_add_u32 s61, s61, s37\ns_and_b32 s37, s31, 1\ns_lshl_b32 s37, s37, 7\ns_add_u32 s61, s61, s37\ns_add_u32 s61, s61, {HBUF}')
    srd(a, 48, 18, None, 3584)
    a(f's_mul_i32 s37, s65, 112\nbuffer_load_dwordx2 v[20:21], v5, s[48:51], s37 offen\ns_add_u32 s60, s61, 16384\ns_mov_b32 s86, {P["spin"]}')
    a('L_hp:')
    for ps in range(2):
        for kq in range(4): a(f'buffer_load_dwordx4 v[{44+16*ps+4*kq}:{47+16*ps+4*kq}], v4, s[52:55], s{61-ps} offen offset:{kq*1024} sc1')
    a('s_waitcnt vmcnt(0)')
    tag_check(a, range(44, 76), 16, 17, 18)
    a('s_sub_u32 s86, s86, 1\ns_cbranch_scc1 L_hpd\ns_cbranch_vccz L_hpd\ns_sleep 16\ns_branch L_hp')
    a('L_hpd:')
    for ps in range(2):
        for kq in range(1, 4):
            for m in range(2): a(f'v_pk_add_f32 v[{44+16*ps+2*m}:{45+16*ps+2*m}], v[{44+16*ps+2*m}:{45+16*ps+2*m}], v[{44+16*ps+4*kq+2*m}:{45+16*ps+4*kq+2*m}]')
    unpack(a, 20, 24, 2)
    a('v_cvt_pk_bf16_f32 v16, v44, v45\nv_cvt_pk_bf16_f32 v17, v46, v47\nv_cvt_pk_bf16_f32 v18, v60, v61\nv_cvt_pk_bf16_f32 v19, v62, v63')
    unpack(a, 16, 32, 4)
    for i in range(8): a(f'v_add_f32 v{32+i}, v{32+i}, v{24+(i&3)}')
    for i in range(4): a(f'v_cvt_pk_bf16_f32 v{16+i}, v{32+2*i}, v{33+2*i}')
    unpack(a, 16, 32, 4)
    k0 = 2 * 0.7978845608028654 * math.log2(math.e); k1 = k0 * 0.044715
    a(f's_mov_b32 s62, {hex(f2u(-k1))}\nv_mov_b32 v15, {hex(f2u(-k0))}')
    for i in range(8): a(f'v_mul_f32 v{44+i}, v{32+i}, v{32+i}')
    for i in range(8): a(f'v_fma_f32 v{44+i}, v{44+i}, s62, v15')
    for i in range(8): a(f'v_mul_f32 v{44+i}, v{44+i}, v{32+i}')
    for i in range(8): a(f'v_exp_f32 v{44+i}, v{44+i}')
    for i in range(8): a(f'v_add_f32 v{44+i}, 1.0, v{44+i}')
    for i in range(8): a(f'v_rcp_f32 v{44+i}, v{44+i}')
    for i in range(8): a(f'v_mul_f32 v{32+i}, v{32+i}, v{44+i}')
    a('v_cmp_gt_u32 vcc, 14, v10')
    for i in range(4): a(f'v_cvt_pk_bf16_f32 v{16+i}, v{32+2*i}, v{33+2*i}')
    for i in range(4): a(f'v_cndmask_b32 v{16+i}, 0, v{16+i}, vcc')
    a(f'v_mul_u32_u24 v3, {HSTR}, v9\nv_lshl_add_u32 v3, v10, 3, v3\nv_add_u32 v3, {L_H}, v3')
    a(f'ds_write_b64 v3, v[16:17]\nds_write_b64 v3, v[18:19] offset:{4*HSTR}')
    if not P['late']:
        a(f'v_and_b32 v3, 7, v0\nv_mul_u32_u24 v3, {HSTR}, v3\nv_lshl_add_u32 v3, v9, 3, v3\nv_add_u32 v3, {L_H}, v3')
        a(f'v_bfe_u32 v4, v0, 2, 2\nv_lshl_add_u32 v4, v9, 2, v4\nv_lshlrev_b32 v4, 7, v4\nv_and_b32 v5, 3, v0\nv_lshl_add_u32 v4, v5, 3, v4\nv_add_u32 v4, {L_W2}, v4')
        a('s_waitcnt lgkmcnt(0)')
        for k in range(2): a(f'ds_read_b64 v[{16+4*k}:{17+4*k}], v3 offset:{k*64}\nds_read_b64 v[{18+4*k}:{19+4*k}], v3 offset:{k*64+32}')
        for t in range(4):
            for k in range(2):
                r = 44 + 8 * t + 4 * k
                a(f'ds_read_b64_tr_b16 v[{r}:{r+1}], v4 offset:{k*4096+t*32}\nds_read_b64_tr_b16 v[{r+2}:{r+3}], v4 offset:{k*4096+2048+t*32}')
        a(f'v_add_u32 v3, {L_C}, v2\ns_waitcnt lgkmcnt(0)')
        for k in range(2):
            for t in range(4):
                r = 44 + 8 * t + 4 * k; d = 76 + 4 * t
                a(f'v_mfma_f32_16x16x32_bf16 v[{d}:{d+3}], v[{16+4*k}:{19+4*k}], v[{r}:{r+3}], ' + ('0' if k == 0 else f'v[{d}:{d+3}]'))
        for t in range(4): a(f'ds_write_b128 v3, v[{76+4*t}:{79+4*t}] offset:{t*1024}')
    a('L_now:')
    stamp(a, P, 'mend')
    a(f'v_and_b32 v3, 15, v0\nv_lshlrev_b32 v3, 3, v3\nv_add_u32 v3, {L_ML}, v3\ns_mov_b32 s86, {P["spin"]*16}')
    a('L_mlw:')
    a('ds_read_b64 v[16:17], v3\ns_waitcnt lgkmcnt(0)\nv_cmp_eq_u32 vcc, -1, v16')
    a('s_sub_u32 s86, s86, 1\ns_cbranch_scc1 L_mlwd\ns_cbranch_vccz L_mlwd\ns_sleep 4\ns_branch L_mlw')
    a('L_mlwd:')
    d8 = ('quad_perm:[1,0,3,2]', 'quad_perm:[2,3,0,1]', 'row_half_mirror')
    a('v_mov_b32 v18, v16')
    for m in d8: a(f'v_max_f32_dpp v18, v18, v18 {m} row_mask:0xf bank_mask:0xf')
    a('v_sub_f32 v20, v16, v18\nv_mul_f32 v20, s83, v20\nv_exp_f32 v20, v20\nv_mul_f32 v19, v20, v17')
    for m in d8: a(f'v_add_f32_dpp v19, v19, v19 {m} row_mask:0xf bank_mask:0xf')
    a(f'v_mov_b32 v20, s84\nv_mov_b32 v21, s84\nv_lshlrev_b32 v4, 1, v0\ns_mov_b32 s72, s84\ns_mov_b32 s73, s84')
    a(f's_lshl_b32 s37, s38, 7\ns_add_u32 s37, s37, {MLX}\ns_mov_b64 exec, 0x101')
    hand_store(a, 'buffer_store_dwordx4 v[18:21], v4, s[52:55], s37 offen')
    a('s_mov_b64 exec, -1')
    stamp(a, P, 'mlpub')
    a(f's_and_b32 s61, s38, 0xfc\ns_lshl_b32 s61, s61, 7\ns_add_u32 s61, s61, {MLX}\ns_mov_b32 s86, {P["spin"]}')
    a('v_and_b32 v3, 3, v0\nv_lshlrev_b32 v3, 7, v3\nv_and_b32 v4, 8, v0\nv_lshl_add_u32 v3, v4, 1, v3')
    a('L_mlp2:')
    a(f's_sleep {P["msl"]}')
    a('buffer_load_dwordx4 v[24:27], v3, s[52:55], s61 offen sc1\ns_waitcnt vmcnt(0)\nv_cmp_ne_u64 vcc, s[72:73], v[26:27]')
    a('s_sub_u32 s86, s86, 1\ns_cbranch_scc1 L_mlp2d\ns_cbranch_vccnz L_mlp2')
    a('L_mlp2d:')
    stamp(a, P, 'mlok')
    a('v_mov_b32 v28, v24')
    for m in d8[:2]: a(f'v_max_f32_dpp v28, v28, v28 {m} row_mask:0xf bank_mask:0xf')
    a('v_sub_f32 v29, v24, v28\nv_mul_f32 v29, s83, v29\nv_exp_f32 v29, v29\nv_mul_f32 v29, v29, v25')
    for m in d8[:2]: a(f'v_add_f32_dpp v29, v29, v29 {m} row_mask:0xf bank_mask:0xf')
    a('v_sub_f32 v30, v16, v28\nv_mul_f32 v30, s83, v30\nv_exp_f32 v30, v30\nv_rcp_f32 v29, v29\nv_mul_f32 v30, v30, v29')
    a(f'v_lshlrev_b32 v3, 2, v0\nv_add_u32 v3, {L_F}, v3\ns_mov_b64 exec, 0xffff\nds_write_b32 v3, v30\ns_mov_b64 exec, -1')
    if P['tpf']:
        a('s_getpc_b64 s[56:57]\nL_pc2:\ns_add_u32 s56, s56, L_tail-L_pc2\ns_addc_u32 s57, s57, 0\ns_mov_b32 s58, L_end-L_tail\ns_mov_b32 s59, 0x20000')
        a('v_lshlrev_b32 v1, 6, v0\nbuffer_load_dword v15, v1, s[56:59], 0 offen')
    a('s_waitcnt vmcnt(0) lgkmcnt(0)')
    stamp(a, P, 'hend')
    stamp_store(a, P, stamp_items(P, H_PTS))
    a('s_endpgm')

def control2(a, P):
    c0, c1, cper, nsh = P['c0'], P['c1'], P['cper'], P['nsh']
    n = 256 // nsh
    a('L_ctl:')
    a(f'v_and_b32 v1, 7, v0\nv_lshlrev_b32 v1, 2, v1\nv_add_u32 v1, {L_PROG}, v1\nv_mov_b32 v2, 0\nds_write_b32 v1, v2\nds_write_b32 v1, v2 offset:16')
    a('s_waitcnt lgkmcnt(0)\ns_barrier')
    a(f's_and_b32 s37, s32, {nsh-1}\ns_lshl_b32 s37, s37, {int(math.log2(256 // nsh))}\ns_add_u32 s40, s26, s37\ns_addc_u32 s41, s27, 0')
    a(f's_mov_b32 s36, {c0}\ns_mov_b32 s61, {n // 2}\nv_mov_b32 v5, {L_PROG}')
    a('L_ck:')
    a(f's_mov_b32 s86, {P["spin"]*16}')
    a('L_ckw:')
    a('s_sleep 2\nds_read_b32 v3, v1\ns_waitcnt lgkmcnt(0)\nv_cmp_le_u32 vcc, s36, v3\ns_bcnt1_i32_b32 s37, vcc_lo')
    a('s_sub_u32 s86, s86, 1\ns_cbranch_scc1 L_ckd\ns_cmp_lt_u32 s37, 16\ns_cbranch_scc1 L_ckw')
    a('L_ckd:')
    a(f's_mov_b32 s60, 1\ns_atomic_add s60, s[40:41], 0 glc\ns_add_u32 s36, s36, {cper}\ns_waitcnt lgkmcnt(0)')
    a(f's_sub_i32 s60, s61, s60\ns_add_u32 s61, s61, {n}')
    a(f's_cmp_gt_i32 s60, {P["th1"]}\ns_cselect_b32 s39, {P["cm1"]}, 0\ns_cmp_gt_i32 s60, {P["th2"]}\ns_cselect_b32 s39, {P["cm2"]}, s39')
    a('v_mov_b32 v6, s39\nds_write_b32 v5, v6 offset:32')
    a(f's_cmp_le_u32 s36, {c1}\ns_cbranch_scc1 L_ck')
    a('s_endpgm')

def control3(a, P):
    c0, c1, cper = P['c0'], P['c1'], P['cper']
    a('L_ctl:')
    a(f'v_and_b32 v1, 7, v0\nv_lshlrev_b32 v1, 2, v1\nv_add_u32 v1, {L_PROG}, v1\nv_mov_b32 v2, 0\nds_write_b32 v1, v2\nv_mov_b32 v3, {P["mb"]}\nv_mov_b32 v4, {L_PROG}\nds_write_b32 v4, v3 offset:32')
    a('s_waitcnt lgkmcnt(0)\ns_barrier')
    srd(a, 52, 28, None, WS_USED)
    q_wait(a, P, 'L_cq')
    a('s_cmp_eq_u32 s87, 0\ns_cbranch_scc1 L_end')
    a(f's_lshl_b32 s61, s31, {P["lsh"]+5}\ns_add_u32 s61, s61, {CBUF}\ns_lshl_b32 s37, s32, {P["lsh"]}\ns_add_u32 s60, s61, s37\nv_and_b32 v8, 31, v0\nv_lshlrev_b32 v8, {P["lsh"]}, v8')
    a(f's_mov_b32 s36, {c0}\nv_mov_b32 v5, {L_PROG}\ns_mov_b32 s76, {P["mb"]}\ns_mov_b32 s77, {P["mo"]}')
    if P['xl']:
        FB = CBUF + 0x4000
        a(f's_lshl_b32 s72, s31, 7\ns_add_u32 s72, s72, {FB}\ns_mov_b32 s73, {c0}\ns_mov_b32 s74, {c0 + P["xl"]}\ns_add_u32 s40, s28, {FB}\ns_addc_u32 s41, s29, 0\nv_mov_b32 v9, s84')
    a('L_ck:')
    a(f's_mov_b32 s86, {P["spin"]*16}')
    a('L_ckw:')
    if P['cmin']:
        a('s_sleep 2\nds_read_b32 v3, v1\ns_waitcnt lgkmcnt(0)')
        for m in ('quad_perm:[1,0,3,2]', 'quad_perm:[2,3,0,1]', 'row_half_mirror'): a(f'v_min_u32_dpp v3, v3, v3 {m} row_mask:0xf bank_mask:0xf')
        a('v_readfirstlane_b32 s37, v3\ns_sub_u32 s86, s86, 1\ns_cbranch_scc1 L_end\ns_cmp_lt_u32 s37, s36\ns_cbranch_scc1 L_ckw\ns_mov_b32 s36, s37')
    else:
        a('s_sleep 2\nds_read_b32 v3, v1\ns_waitcnt lgkmcnt(0)\nv_cmp_le_u32 vcc, s36, v3\ns_bcnt1_i32_b32 s37, vcc_lo')
        a('s_sub_u32 s86, s86, 1\ns_cbranch_scc1 L_ckd\ns_cmp_lt_u32 s37, 16\ns_cbranch_scc1 L_ckw')
    a('L_ckd:')
    a('s_add_u32 s37, s84, s36\nv_mov_b32 v6, s37\ns_mov_b64 exec, 1\nbuffer_store_dword v6, v2, s[52:55], s60 offen\ns_mov_b64 exec, 0xffffffff')
    a('buffer_load_dword v7, v8, s[52:55], s61 offen sc1\ns_mov_b64 exec, -1')
    if P['xl']:
        a('s_cmp_lg_u32 s32, 0\ns_cbranch_scc1 L_xnp')
        a('L_xp:\ns_cmp_le_u32 s73, s36\ns_cbranch_scc0 L_xnp')
        a('s_mov_b64 exec, 1\nbuffer_store_dword v9, v2, s[52:55], s72 offen sc1\ns_mov_b64 exec, -1\ns_add_u32 s72, s72, 1024\ns_add_u32 s73, s73, 4\ns_branch L_xp')
        a('L_xnp:\ns_cmp_le_u32 s74, s36\ns_cbranch_scc0 L_xnr')
        a('L_xa:\ns_add_u32 s74, s74, 4\ns_cmp_le_u32 s74, s36\ns_cbranch_scc0 L_xr\ns_add_u32 s40, s40, 1024\ns_addc_u32 s41, s41, 0\ns_branch L_xa')
        a('L_xr:')
        for k in range(8): a(f's_load_dword s{64+k}, s[40:41], {k*128}')
        a('s_mov_b32 s37, 0\ns_waitcnt lgkmcnt(0)\ns_add_u32 s40, s40, 1024\ns_addc_u32 s41, s41, 0')
        for k in range(8): a(f's_cmp_lg_u32 s{64+k}, s84\ns_addc_u32 s37, s37, 0')
        a(f's_cmp_ge_u32 s37, {P["xthr"]}\ns_cselect_b32 s76, {P["xmb"]}, {P["mb"]}\ns_cselect_b32 s77, {P["xmo"]}, {P["mo"]}')
        a('L_xnr:')
    a(f's_sub_u32 s62, s36, {P["ca"]}\ns_add_i32 s63, s36, {P["cb"]}\ns_add_u32 s36, s36, {cper}\ns_waitcnt vmcnt(0)')
    a('v_subrev_u32 v7, s84, v7\nv_cmp_gt_u32 vcc, s62, v7\nv_cmp_lt_u32 s[64:65], s63, v7\nv_cmp_gt_u32 s[66:67], s82, v7')
    a('s_bcnt1_i32_b32 s37, vcc_lo\ns_and_b32 s64, s64, s66\ns_bcnt1_i32_b32 s39, s64')
    a(f's_cmp_ge_u32 s39, {P["n2c"]}\ns_cselect_b32 s39, s77, s76\ns_cmp_ge_u32 s37, {P["n1"]}\ns_cselect_b32 s39, {P["mt"]}, s39')
    a('v_mov_b32 v6, s39\nds_write_b32 v5, v6 offset:32')
    a(f's_cmp_le_u32 s36, {c1}\ns_cbranch_scc1 L_ck')
    a('s_endpgm')

def control(a, P):
    c0, c1, lag = P['c0'], P['c1'], P['lag']
    if P['cver'] == 2: return control2(a, P)
    if P['cver'] == 3: return control3(a, P)
    a('L_ctl:')
    a(f'v_and_b32 v1, 7, v0\nv_lshlrev_b32 v1, 2, v1\nv_add_u32 v1, {L_PROG}, v1\nv_mov_b32 v2, 0\nds_write_b32 v1, v2\nds_write_b32 v1, v2 offset:16')
    a('s_waitcnt lgkmcnt(0)\ns_barrier')
    srd(a, 52, 28, None, WS_USED)
    q_wait(a, P, 'L_cq')
    a('v_mov_b32 v7, s84')
    if P['cdbg']: a('s_mov_b32 s90, 0\ns_mov_b32 s91, 0\ns_mov_b32 s92, 0\ns_mov_b32 s93, 0\ns_mov_b32 s94, 0')
    cs, cper = P['cstr'], P['cper']; ms = max(cs * P['nrep'], 128)
    if P['nrep'] == 16: a(f's_lshl_b32 s60, s31, 1\ns_lshr_b32 s37, s32, 4\ns_add_u32 s60, s60, s37\ns_mul_i32 s60, s60, {cs}\ns_and_b32 s63, s32, 15')
    elif P['nrep'] == 4: a(f's_lshr_b32 s60, s31, 1\ns_mul_i32 s60, s60, {cs}\ns_and_b32 s63, s31, 1\ns_xor_b32 s63, s63, 1\ns_or_b32 s63, s63, s32')
    else: a(f's_mul_i32 s60, s31, {cs}\ns_mov_b32 s63, s32')
    a(f's_add_u32 s60, s60, {CBUF}\ns_add_u32 s40, s28, {CBUF}\ns_addc_u32 s41, s29, 0')
    a(f's_mov_b32 s61, {c0}\ns_mov_b32 s62, {c0 + lag}\nv_mov_b32 v5, {L_PROG}')
    a('L_ck:')
    a(f's_min_u32 s36, s61, s62\ns_cmp_eq_u32 s63, 0\ns_cselect_b32 s36, s36, s62\ns_mov_b32 s86, {P["spin"]*16}')
    a('L_ckw:')
    a('s_sleep 2\nds_read_b32 v3, v1\ns_waitcnt lgkmcnt(0)\nv_cmp_le_u32 vcc, s36, v3\ns_bcnt1_i32_b32 s37, vcc_lo')
    a('s_sub_u32 s86, s86, 1\ns_cbranch_scc1 L_ckd\ns_cmp_lt_u32 s37, 16\ns_cbranch_scc1 L_ckw')
    a('L_ckd:')
    a('s_cmp_lg_u32 s63, 0\ns_cbranch_scc1 L_cknp\ns_cmp_lg_u32 s36, s61\ns_cbranch_scc1 L_cknp')
    a(f's_mov_b64 exec, 1\nbuffer_store_dword v7, v2, s[52:55], s60 offen sc1\ns_mov_b64 exec, -1\ns_add_u32 s60, s60, {ms}\ns_add_u32 s61, s61, {cper}')
    a('L_cknp:')
    a('s_cmp_lg_u32 s36, s62\ns_cbranch_scc1 L_ck')
    if cs == 4: a(f's_load_dwordx{P["nrep"]} s[64:{63+P["nrep"]}], s[40:41], 0')
    else:
        for k in range(P['nrep']): a(f's_load_dword s{64+k}, s[40:41], {k*cs}')
    a(f's_add_u32 s62, s62, {cper}\ns_mov_b32 s37, 0\ns_waitcnt lgkmcnt(0)\ns_add_u32 s40, s40, {ms}\ns_addc_u32 s41, s41, 0')
    for k in range(P['nrep']): a(f's_cmp_lg_u32 s{64+k}, s84\ns_addc_u32 s37, s37, 0')
    if P['cdbg']: a('s_lshl_b32 s39, s37, 2\ns_lshl_b32 s39, 1, s39\ns_cmp_lt_u32 s37, 8\ns_cselect_b32 s39, s39, 0\ns_add_u32 s90, s90, s37\ns_cmp_eq_u32 s37, 0\ns_addc_u32 s91, s91, 0\ns_cmp_ge_u32 s37, 4\ns_addc_u32 s92, s92, 0\ns_cmp_ge_u32 s37, 7\ns_addc_u32 s93, s93, 0\ns_add_u32 s94, s94, 1')
    a(f's_cmp_ge_u32 s37, {P["thr"]}\ns_cselect_b32 s39, {P["cmask"]}, 0\nv_mov_b32 v6, s39\nds_write_b32 v5, v6 offset:32')
    a(f's_cmp_le_u32 s62, {c1}\ns_cbranch_scc1 L_ck')
    if P['cdbg']:
        for k in range(5): a(f's_atomic_add s{90+k}, s[26:27], {4*k}')
        a('s_waitcnt lgkmcnt(0)')
    a('s_endpgm')

def body(P):
    a = Asm(); HPOL[0] = P['hpol']
    a('s_cmp_ge_u32 s2, 256\ns_cbranch_scc1 L_end')
    if P['perm'] == 1: a('s_lshr_b32 s3, s2, 5\ns_lshl_b32 s2, s2, 3\ns_or_b32 s2, s2, s3\ns_and_b32 s2, s2, 255')
    if P['perm'] == 2: a('s_lshr_b32 s3, s2, 7\ns_xor_b32 s2, s2, s3')
    a('s_load_dwordx16 s[4:19], s[0:1], 0\ns_load_dwordx8 s[20:27], s[0:1], 64\ns_load_dwordx2 s[28:29], s[0:1], 96')
    a('v_lshrrev_b32 v1, 6, v0\nv_and_b32 v0, 63, v0\nv_readfirstlane_b32 s30, v1')
    a('s_and_b32 s31, s2, 7\ns_lshr_b32 s32, s2, 3')
    if P['bmap'] == 0: a('s_lshr_b32 s33, s32, 2\ns_and_b32 s34, s32, 3')
    else: a('s_and_b32 s33, s32, 7\ns_lshr_b32 s34, s32, 3')
    a('s_lshl_b32 s37, s31, 2\ns_add_u32 s34, s34, s37\ns_lshl_b32 s38, s33, 5\ns_add_u32 s38, s38, s34')
    stamp_init(a, P)
    stamp(a, P, 'entry')
    a(f's_cmp_ge_u32 s30, 8\ns_cbranch_scc1 L_helper')
    streamer(a, P, lambda: (helper(a, P), control(a, P) if P['ctl'] else None))
    a('L_end:\ns_endpgm')
    txt, n = a.text()
    return txt, n

def vgprs(P): return max(56 + 4 * P['R'] + 4, 156)

def kernel(P):
    txt, n = body(P)
    nm = P['name']
    txt = txt.replace('L_', f'L{nm[-24:]}_') if P.get('uniq') else txt
    return txt

def final_file(P):
    ref = open(f'cdna_kernels/{NAME}.s.ref').read()
    head = ref[:ref.index('; Override launch')]
    nm = P['name']; vg = vgprs(P)
    return head + f'''; One launch, 256 workgroups (x = id & 7 = kv head, r = id >> 3 = batch row * 4 + key split), 8 streaming waves + 2 helper waves.
; Written with a generator script (register allocation, unrolling and wait-state padding are the script's).
; Hand-offs between workgroups go through d_ws and carry a tag = (word 0 of d_ws at entry) + constant; word 0 is advanced
; at the end of the launch, so that a launch tells its own hand-offs from older contents. Readers poll with sc1 loads.
; Writers use write-through (sc1) stores, except where all 32 workgroups of a kv head have reported the same XCD in this
; launch: then the store may stay in that XCD L2.
; Wave 9 balances memory bandwidth among the workgroups that share an XCD: each posts how many loads it has issued, and one
; that is ahead of the others keeps fewer loads in flight, one that is behind keeps more; one workgroup per kv head also flags
; its progress to the other XCDs, and all hold back a little while some XCD lags (speed only, no effect on results).
; @launch grid=(256,1,1) block=({block(P)},1,1) lds={LDS_BYTES}
.amdgcn_target "amdgcn-amd-amdhsa--gfx950"
.text
.globl {nm}
.p2align 8
.type {nm},@function
{nm}:
{kernel(P)}
.section .rodata,"a"
.p2align 6
.amdhsa_kernel {nm}
  .amdhsa_next_free_vgpr {vg}
  .amdhsa_next_free_sgpr 102
  .amdhsa_accum_offset {(vg+3)//4*4}
  .amdhsa_group_segment_fixed_size 0
  .amdhsa_kernarg_size 104
  .amdhsa_user_sgpr_count 2
  .amdhsa_user_sgpr_kernarg_segment_ptr 1
  .amdhsa_system_sgpr_workgroup_id_x 1
.end_amdhsa_kernel
'''

if __name__ == '__main__':
    P = dict(DEF)
    out = f'cdna_kernels/{NAME}.s'
    for kv in sys.argv[1:]:
        k, v = kv.split('=', 1)
        if k == 'out': out = v
        else: P[k] = type(DEF[k])(v) if not isinstance(DEF[k], bool) else v == '1'
    open(out, 'w').write(final_file(P))
    print('wrote', out)
```

```python
import sys, math, struct
from asmlib import Asm

NAME = 'parallel_sum__gqa_block_cached__mixer_channel_mlp__decode'
def f2u(x): return struct.unpack('<I', struct.pack('<f', x))[0]

CBUF, XBUF, MLX, PBUF, HBUF, QBUF, OBUF, WS_USED = 0x1D0000, 0x8000, 0x10000, 0x20000, 0x90000, 0xD0000, 0x200000, 0x280000
TMASK = 0x3FF
QMASK = 0xFF
STAMP_OFF = 536870912 - (1 << 20)
L_WQ = 0; L_W1 = 16384; L_WO = 32768; L_W2 = 49152
L_PART = 57344
L_C = L_PART + 16384
OSTR = 264; HSTR = 136
L_O = L_C + 4096
L_H = L_O + 8 * OSTR
L_Q = L_H + 8 * HSTR
L_ML = L_Q + 1024
L_F = L_ML + 128
L_TAG = L_F + 64
L_PROG = L_TAG + 16
LDS_BYTES = L_PROG + 48
assert L_Q % 16 == 0 and LDS_BYTES > 81920
OOB = 0x7F000000
C_EXP = math.log2(math.e) / 16.0

DEF = dict(R=26, D=3, D0=3, DH=8, qsl=16, msl=24, cpf=1, tpf=0, orc=0, orc0=60, omask=15, perm=0, outpol='', late=2, hpol='', hw=8, abl=0, lt=1, ov=1, pt=0, podd=0, peven=0, p0=0, vt=0, wb=0, amap='13 14 9 10 12 17 18 16 15 11 1024 8 513 0 128', hpat='', swz=0, ppol='sc1', lpol='sc1', nocomp=0, nowo=0, ctl=1, lag=0, thr=3, c0=28, c1=116, cmask=5, cver=3, nrep=8, ca=6, cb=0, n1=1, n2c=6, mb=4, mt=5, mo=0, mper=4, xl=6, xthr=1, xmb=5, xmo=4, lsh=5, cmin=1, b4=0, rex=1, qx=1, fast=0, stag=0, stp=4, cdbg=0, th1=8, th2=999, cm1=5, cm2=5, nsh=2, crd=2, iw=0, iwd=3, iwp=2, cstr=128, cper=2, kpat='3', vpat='3', loc=1, n2=80, xretry=1, Dend=4, nend=8, gsl=0, fsl=0, fthr=0, fsl2=24, nornd=0, nom=0, pol='nt', wpol='nt', xpol='', opol='nt', mpol='nt', diag=False, budget=2,
           name=NAME + '_kernel', spin=1 << 16, hold=0, bmap=0, pts='start+qpub+B1+Kdone+hend+B2+end')
def block(P): return 640 if P['ctl'] else 576

def srd(a, n, base, off, size):
    if off is None:
        a(f's_mov_b32 s{n}, s{base}\ns_mov_b32 s{n+1}, s{base+1}')
    else:
        a(f's_add_u32 s{n}, s{base}, {off}\ns_addc_u32 s{n+1}, s{base+1}, 0')
    a(f's_mov_b32 s{n+2}, {size}\ns_mov_b32 s{n+3}, 0x20000')

def wave_sum(a, v, s):
    for m in ('row_shr:1', 'row_shr:2', 'row_shr:4', 'row_shr:8'):
        a(f'v_add_f32_dpp v{v}, v{v}, v{v} {m} row_mask:0xf bank_mask:0xf')
    a(f'v_add_f32_dpp v{v}, v{v}, v{v} row_bcast:15 row_mask:0xa bank_mask:0xf')
    a(f'v_add_f32_dpp v{v}, v{v}, v{v} row_bcast:31 row_mask:0xc bank_mask:0xf')
    a(f'v_readlane_b32 s{s}, v{v}, 63')

def rnd_bf16(a, v):
    a(f'v_cvt_pk_bf16_f32 v{v}, v{v}, v{v}\nv_and_b32 v{v}, 0xffff0000, v{v}')

def unpack(a, src, dst, n):
    for i in range(n):
        a(f'v_and_b32 v{dst+2*i+1}, 0xffff0000, v{src+i}\nv_lshlrev_b32 v{dst+2*i}, 16, v{src+i}')

def row_sum(a, v, t):
    a(f'v_add_f32_dpp v{v}, v{v}, v{v} row_ror:8 row_mask:0xf bank_mask:0xf')
    xgroup(a, 'v_add_f32', v, t)

def layernorm(a, X, F, T, nq=28):
    pr = lambda r: f'v[{r}:{r+1}]'
    unpack(a, X, F, 28)
    a(f'v_pk_add_f32 {pr(T)}, {pr(F)}, {pr(F+2)}\nv_pk_add_f32 {pr(T+2)}, {pr(F+4)}, {pr(F+6)}')
    for i in range(4, 28): a(f'v_pk_add_f32 {pr(T+2*(i&1))}, {pr(T+2*(i&1))}, {pr(F+2*i)}')
    a(f'v_pk_add_f32 {pr(T)}, {pr(T)}, {pr(T+2)}\nv_add_f32 v{T}, v{T}, v{T+1}')
    row_sum(a, T, T + 1)
    a(f'v_mul_f32 v{T}, {hex(f2u(-1/448))}, v{T}\nv_mov_b32 v{T+1}, v{T}')
    for i in range(28):
        d = T + 4 + 2 * (i & 1)
        a(f'v_pk_add_f32 {pr(d)}, {pr(F+2*i)}, {pr(T)}')
        if i == 0: a(f'v_pk_mul_f32 {pr(T+2)}, {pr(d)}, {pr(d)}')
        else: a(f'v_pk_fma_f32 {pr(T+2)}, {pr(d)}, {pr(d)}, {pr(T+2)}')
    a(f'v_add_f32 v{T+2}, v{T+2}, v{T+3}')
    row_sum(a, T + 2, T + 3)
    rnd_bf16(a, T)
    a(f'v_mov_b32 v{T+1}, v{T}\nv_mul_f32 v{T+2}, {hex(f2u(1/448))}, v{T+2}')
    rnd_bf16(a, T + 2)
    a(f'v_add_f32 v{T+2}, {hex(f2u(1e-5))}, v{T+2}')
    rnd_bf16(a, T + 2)
    a(f'v_sqrt_f32 v{T+2}, v{T+2}')
    for i in range(nq): a(f'v_pk_add_f32 {pr(F+2*i)}, {pr(F+2*i)}, {pr(T)}')
    rnd_bf16(a, T + 2)
    a(f'v_rcp_f32 v{T+2}, v{T+2}')
    for i in range(nq): a(f'v_cvt_pk_bf16_f32 v{X+i}, v{F+2*i}, v{F+2*i+1}')
    a(f'v_mov_b32 v{T+3}, v{T+2}')
    unpack(a, X, F, nq)
    for i in range(nq): a(f'v_pk_mul_f32 {pr(F+2*i)}, {pr(F+2*i)}, {pr(T+2)}')
    for i in range(nq): a(f'v_cvt_pk_bf16_f32 v{X+i}, v{F+2*i}, v{F+2*i+1}')

def xgroup(a, op, v, t):
    a(f'v_mov_b32 v{t}, v{v}\nv_permlane16_swap_b32 v{v}, v{t}\n{op} v{v}, v{v}, v{t}')
    a(f'v_mov_b32 v{t}, v{v}\nv_permlane32_swap_b32 v{v}, v{t}\n{op} v{v}, v{v}, v{t}')

S_PTS = ['start', 'k0', 'fst', 'fcnt', 's8', 's44', 's96', 'skarg', 'siss0', 'pst', 'g2ok', 'sB1a', 'sB1', 'Kdone', 'Vlast', 'B2', 'ost', 'gok', 'B3', 'end']
M_PTS = ['mstart', 'mw1', 'mw2', 'mend']
H_PTS = ['entry', 'hstart', 'mend', 'locv', 'xst', 'xid', 'hpub', 'wob', 'qack', 'xland', 'lndone', 'wtpub', 'wtok', 'hkarg', 'wqiss', 'hB0', 'wqland', 'qpub', 'qp1', 'qok', 'B1', 'wodone', 'mlpub', 'mlok', 'hend']
def pts(P): return P['pts'].split('+') if isinstance(P['pts'], str) else P['pts']
def stamp(a, P, name):
    if P['diag'] and name in pts(P):
        reg = 88 + 2 * pts(P).index(name)
        a(f's_memrealtime s[{reg}:{reg+1}]\ns_waitcnt lgkmcnt(0)')
def stamp_items(P, lst): return [(i, 88 + 2 * i) for i, n in enumerate(pts(P)) if n in lst]
def stamp_init(a, P):
    if P['diag']:
        for i in range(7): a(f's_mov_b64 s[{88+2*i}:{89+2*i}], 0')

def stamp_store(a, P, items, hw=False):
    if not P['diag']: return
    a('s_waitcnt lgkmcnt(0)')
    a(f's_lshl_b32 s37, s2, 6\ns_add_u32 s37, s37, {STAMP_OFF}')
    srd(a, 40, 28, 's37', 64)
    a('s_mov_b64 exec, 1\nv_mov_b32 v1, 0')
    for idx, reg in items:
        a(f'v_mov_b32 v2, s{reg}\nv_mov_b32 v3, s{reg+1}\nbuffer_store_dwordx2 v[2:3], v1, s[40:43], 0 offen offset:{idx*8}')
    if hw:
        a('s_getreg_b32 s38, hwreg(HW_REG_XCC_ID)\ns_getreg_b32 s39, hwreg(HW_REG_HW_ID)')
        a('v_mov_b32 v2, s38\nv_mov_b32 v3, s39\nbuffer_store_dwordx2 v[2:3], v1, s[40:43], 0 offen offset:56')
    a('s_mov_b64 exec, -1')

def q_wait(a, P, lab):
    a(f's_mov_b32 s82, {TMASK}\nv_mov_b32 v5, {L_TAG}\ns_mov_b32 s86, {P["spin"]*16}')
    a(f'{lab}:\nds_read_b64 v[6:7], v5\ns_waitcnt lgkmcnt(0)\nv_cmp_eq_u32 vcc, -1, v7')
    a(f's_sub_u32 s86, s86, 1\ns_cbranch_scc1 {lab}d\ns_cbranch_vccz {lab}d\ns_sleep 2\ns_branch {lab}\n{lab}d:')
    a(f'v_readfirstlane_b32 s84, v6\nv_readfirstlane_b32 s87, v7\ns_and_b32 s85, s84, {TMASK}')

def streamer(a, P, mid):
    R, D, D0, pol = P['R'], P['D'], P['D0'], P['pol']
    Q, S, DT, RING = 8, 16, 48, 56
    slot = lambda i: RING + 4 * (i % R)
    sl = lambda i: f'v[{slot(i)}:{slot(i)+3}]'
    a('; ==== streaming waves 0..7: 128 keys each; first K loads go out before anything else')
    stamp(a, P, 'start')
    if P['hold'] or P['orc']: a('s_memrealtime s[98:99]')
    am = [int(x) for x in P['amap'].split()]
    ab, gb, wb, xm = am[0:2], am[2:7], am[7:10], am[10:15]
    a(f'v_and_b32 v1, 3, v0\nv_lshlrev_b32 v1, 4, v1\nv_lshrrev_b32 v3, 4, v0\nv_lshl_add_u32 v1, v3, 6, v1')
    a(f'v_bfe_u32 v3, v0, 2, 1\nv_lshl_add_u32 v1, v3, {ab[0]}, v1\nv_bfe_u32 v3, v0, 3, 1\nv_lshl_add_u32 v1, v3, {ab[1]}, v1')
    if P['fast'] and am == [13, 14, 9, 10, 12, 17, 18, 16, 15, 11, 1024, 8, 513, 0, 128]:
        a('s_lshl_b32 s37, s38, 19\ns_lshl_b32 s35, s2, 7\ns_and_b32 s35, s35, 0x600\ns_lshr_b32 s36, s32, 4\ns_lshl_b32 s36, s36, 18\ns_or_b32 s35, s35, s36')
        a('s_lshr_b32 s36, s2, 1\ns_xor_b32 s36, s36, s32\ns_xor_b32 s36, s36, s30\ns_and_b32 s36, s36, 1\ns_lshl_b32 s36, s36, 12\ns_or_b32 s35, s35, s36')
        a('s_brev_b32 s36, s30\ns_lshr_b32 s36, s36, 30\ns_lshl_b32 s36, s36, 15\ns_or_b32 s35, s35, s36\ns_lshr_b32 s36, s30, 2\ns_lshl_b32 s36, s36, 11\ns_or_b32 s35, s35, s36')
    else:
        a('s_lshl_b32 s37, s38, 19\ns_mov_b32 s35, 0')
        use = 0
        for m in xm: use |= m
        a('s_add_u32 s36, s30, s32\ns_and_b32 s36, s36, 7' if use & 7 else 's_mov_b32 s36, 0')
        if use & 0xf8: a('s_lshl_b32 s39, s32, 3\ns_or_b32 s36, s36, s39')
        if use & 0x700: a('s_lshl_b32 s39, s31, 8\ns_or_b32 s36, s36, s39')
        if use & 0x3800: a('s_lshl_b32 s39, s30, 11\ns_or_b32 s36, s36, s39')
        for k in range(5):
            if xm[k] and xm[k] & (xm[k] - 1) == 0:
                a(f's_bfe_u32 s39, s36, {0x10000 + xm[k].bit_length() - 1}\ns_lshl_b32 s39, s39, {gb[k]}\ns_or_b32 s35, s35, s39')
            elif xm[k]:
                a(f's_and_b32 s39, s36, {xm[k]}\ns_bcnt1_i32_b32 s39, s39\ns_and_b32 s39, s39, 1\ns_lshl_b32 s39, s39, {gb[k]}\ns_or_b32 s35, s35, s39')
        for k in range(3): a(f's_bfe_u32 s39, s30, {0x10000 + k}\ns_lshl_b32 s39, s39, {wb[k]}\ns_or_b32 s35, s35, s39')
    goff = lambda G: sum(((G >> k) & 1) << gb[k] for k in range(5))
    a('s_waitcnt lgkmcnt(0)')
    stamp(a, P, 'skarg')
    srd(a, 40, 6, 's37', 524288)
    lt = P['lt']
    def lg(i):
        j = i % 64
        if lt and i >= 112: return 24 + ((i - 112) & 7), (i - 112) >> 3
        return j >> 1, j & 1
    vidx = lambda T, g, e: (112 + 8 * e + g) if (lt and T == 3) else (64 + 16 * T + 2 * g + e)
    def issue(i):
        G, t = lg(i)
        if t == 0 or (lt and i >= 112): a(f's_xor_b32 s36, s35, {goff(G)}')
        r, va = ('s[40:43]', 'v1') if i < 64 else ('s[44:47]', 'v2')
        a(f'buffer_load_dwordx4 {sl(i)}, {va}, {r}, s36 offen offset:{t*256} {pol}')
    for i in range(D0): issue(i)
    stamp(a, P, 'siss0')
    a('s_branch L_s2')
    mid()
    a('L_s2:')
    a(f'v_and_b32 v2, 15, v0\nv_lshlrev_b32 v2, 4, v2\nv_bfe_u32 v3, v0, 4, 1\nv_lshl_add_u32 v2, v3, {ab[0]}, v2\nv_lshrrev_b32 v3, 5, v0\nv_lshl_add_u32 v2, v3, {ab[1]}, v2')
    srd(a, 44, 8, 's37', 524288)
    if P['vt']:
        a(f'v_mov_b32 v3, 0\nbuffer_load_dword v4, v3, s[44:47], s35 offen {pol}')
    a('s_barrier')
    srd(a, 52, 28, None, WS_USED)
    for e in range(2):
        for r in range(4):
            m16 = (0x11 << r) << (8 * e); m32 = m16 | (m16 << 16)
            a(f's_mov_b32 s{64+2*(4*e+r)}, {hex(m32)}\ns_mov_b32 s{65+2*(4*e+r)}, {hex(m32)}')
    a('s_mov_b32 s80, 0x05040100\ns_mov_b32 s81, 0x07060302')
    for i in range(D0, R):
        if i == D0 + 1: stamp(a, P, 'k0')
        dh = int(P['hpat'][i - D0]) if i - D0 < len(P['hpat']) else D0
        if P['vt'] and i < D0 + D: dh += 1
        a(f's_waitcnt vmcnt({dh-1})'); issue(i)
        if i == 8 + D: stamp(a, P, 's8')
    a('v_bfe_u32 v3, v0, 2, 1\nv_lshlrev_b32 v3, 9, v3\nv_and_b32 v4, 3, v0\nv_lshl_add_u32 v3, v4, 4, v3')
    a(f'v_lshrrev_b32 v4, 4, v0\nv_lshl_add_u32 v3, v4, 6, v3\nv_add_u32 v3, {L_Q}, v3')
    a('; ---- K prefetch ring is full: wait for q (LDS flag from the helper wave)')
    stamp(a, P, 'sB1a')
    q_wait(a, P, 'L_sq')
    stamp(a, P, 'sB1')
    a(f'ds_read_b128 v[{Q}:{Q+3}], v3\nds_read_b128 v[{Q+4}:{Q+7}], v3 offset:256')
    a(f'v_mov_b32 v4, 0xff800000\ns_mov_b32 s83, {hex(f2u(C_EXP))}\ns_waitcnt lgkmcnt(0)')
    chunks = []
    def kdpp(G):
        d = DT + 4 * (G & 1)
        a(f'v_mov_b32_dpp v{S+G}, v{d} quad_perm:[0,0,0,0] row_mask:0xf bank_mask:0xf')
        for r in range(1, 4):
            a(f'v_add_f32_dpp v{S+G}, v{d+r}, v{S+G} quad_perm:[{r},{r},{r},{r}] row_mask:0xf bank_mask:0xf')
        if G & 1:
            if not P['nornd']: a(f'v_cvt_pk_bf16_f32 v5, v{S+G-1}, v{S+G}\nv_lshlrev_b32 v{S+G-1}, 16, v5\nv_and_b32 v{S+G}, 0xffff0000, v5')
            a(f'v_max3_f32 v4, v4, v{S+G-1}, v{S+G}')
    def kchunk(G):
        def fn():
            d = DT + 4 * (G & 1)
            a(f'v_mfma_f32_16x16x32_bf16 v[{d}:{d+3}], {sl(2*G)}, v[{Q}:{Q+3}], 0')
            a(f'v_mfma_f32_16x16x32_bf16 v[{d}:{d+3}], {sl(2*G+1)}, v[{Q+4}:{Q+7}], v[{d}:{d+3}]')
            if G: kdpp(G - 1)
        return fn
    for G in range(32): chunks.append((2 * G + 1, [2 * G, 2 * G + 1], kchunk(G)))
    def sm0():
        kdpp(31)
        xgroup(a, 'v_max_f32', 4, 5)
        a('v_mul_f32 v6, s83, v4\nv_mov_b32 v7, 0')
        stamp(a, P, 'Kdone')
    chunks.append((63, [], sm0))
    def sm(k):
        def fn():
            for g in range(8 * k, 8 * k + 8): a(f'v_fma_f32 v{S+g}, v{S+g}, s83, -v6')
            for g in range(8 * k, 8 * k + 8): a(f'v_exp_f32 v{S+g}, v{S+g}')
            for g in range(8 * k, 8 * k + 8): a(f'v_add_f32 v7, v7, v{S+g}')
            for i in range(4 * k, 4 * k + 4): a(f'v_cvt_pk_bf16_f32 v{S+i}, v{S+2*i}, v{S+2*i+1}')
        return fn
    for k in range(4): chunks.append((63, [], sm(k)))
    def sm_end():
        xgroup(a, 'v_add_f32', 7, 5)
        a(f'v_mov_b32 v5, v7\nv_bfe_u32 v3, v0, 2, 1\nv_lshlrev_b32 v3, 6, v3\ns_lshl_b32 s37, s30, 3\ns_add_u32 s37, s37, {L_ML}\nv_add_u32 v3, s37, v3')
        a('s_mov_b64 exec, 0x11\nds_write_b64 v3, v[4:5]\ns_mov_b64 exec, -1')
    chunks.append((63, [], sm_end))
    AT = [32, 36]; PT = [40, 44, 8, 12]; ACC = DT
    late_ops = []; extra = [0]
    cnt = [0, 0]
    def vchunk(T, e, r):
        def fn():
            A = AT[cnt[0] & 1]; cnt[0] += 1
            mk = 64 + 2 * (4 * e + r)
            for p in range(4): a(f'v_cndmask_b32 v{A+p}, 0, v{S+4*T+p}, s[{mk}:{mk+1}]')
            for jj in range(2):
                j = 4 * jj + r; m, hh = j >> 1, j & 1
                B = PT[cnt[1] & 3]; cnt[1] += 1
                for p in range(4):
                    ev = vidx(T, 2 * p, e); od = vidx(T, 2 * p + 1, e)
                    a(f'v_perm_b32 v{B+p}, v{slot(od)+m}, v{slot(ev)+m}, s{80+hh}')
                c = '0' if (T == 0 and e == 0 and r == 0) else f'v[{ACC+4*jj}:{ACC+4*jj+3}]'
                a(f'v_mfma_f32_16x16x32_bf16 v[{ACC+4*jj}:{ACC+4*jj+3}], v[{A}:{A+3}], v[{B}:{B+3}], {c}')
        return fn
    for T in range(4):
        for e in range(2):
            for r in range(4):
                if lt and T == 3 and e == 1: continue
                fr = [vidx(T, g, e) for g in range(8)] if r == 3 else []
                chunks.append((vidx(T, 7, e), fr, vchunk(T, e, r)))
    if lt:
        FRG = lambda j: slot(112 + j)
        AM = [32, 36, 40, 44]
        def pre(p):
            def fn2():
                if p == 0:
                    for r in range(4):
                        for q in range(4): a(f'v_cndmask_b32 v{AM[r]+q}, 0, v{S+12+q}, s[{72+2*r}:{73+2*r}]')
                for j in range(8):
                    jj = (j & 1) * 4 + (j >> 1); m, hh = jj >> 1, jj & 1
                    a(f'v_perm_b32 v{FRG(jj)+p}, v{slot(vidx(3, 2*p+1, 1))+m}, v{slot(vidx(3, 2*p, 1))+m}, s{80+hh}')
                if p == 3:
                    for j in range(8):
                        jj = (j & 1) * 4 + (j >> 1); r = jj & 3; d = ACC + 4 * (jj >> 2)
                        a(f'v_mfma_f32_16x16x32_bf16 v[{d}:{d+3}], v[{AM[r]}:{AM[r]+3}], v[{FRG(jj)}:{FRG(jj)+3}], v[{d}:{d+3}]')
                        if P['late'] == 2 and j in (1, 3, 5): a(late_ops[j // 2])
                if P['late'] == 3 and p == 2:
                    for x in late_ops: a(x)
                    extra[0] = 3
            return fn2
        for p in range(4): chunks.append((vidx(3, 2 * p + 1, 1), [], pre(p)))
    freed = set(); ci = 0; landed = -1
    XR = RING + 4 * R
    if P['orc']: a('s_mov_b32 s62, 0')
    if P['stag']: a(f's_and_b32 s37, s30, {P["stp"]-1}\ns_mov_b32 s62, {P["stag"] | (P["stag"] << P["stp"])}\ns_lshr_b32 s62, s62, s37')
    if P['iw']: a(f's_mov_b32 s62, 0\ns_lshl_b32 s37, s30, 2\ns_add_u32 s37, s37, {L_PROG}\nv_mov_b32 v{XR+3}, s37\nv_and_b32 v{XR+2}, 7, v0\nv_lshlrev_b32 v{XR+2}, 2, v{XR+2}\nv_add_u32 v{XR+2}, {L_PROG}, v{XR+2}')
    if P['podd'] or P['peven']:
        a(f's_getreg_b32 s62, hwreg(HW_REG_XCC_ID)\ns_bitcmp1_b32 s62, 0\ns_mov_b32 s62, {P["peven"]}\ns_cselect_b32 s62, {P["podd"]}, s62')
    if P['ctl']: a(f's_mov_b32 s62, {P["mb"] if P["cver"] == 3 else 0}\ns_lshl_b32 s37, s30, 2\ns_add_u32 s37, s37, {L_PROG}\nv_mov_b32 v{XR+3}, s37\nv_mov_b32 v{XR+2}, {L_PROG}')
    def run_chunk(issued):
        nonlocal ci, landed
        nd, fr, fn = chunks[ci]; ci += 1
        if nd > landed:
            a(f's_waitcnt vmcnt({issued-1-nd})'); landed = nd
        if not (P['nocomp'] and fr is not None and fn.__name__ == 'fn' and ci <= len(chunks) - 8): fn()
        freed.update(fr)
    for i in range(R, 128):
        while (i - R) not in freed: run_chunk(i)
        Di = P['Dend'] if (P['Dend'] and i >= 128 - P['nend']) else D
        pat = P['kpat'] if i < 64 else P['vpat']
        if pat and not (P['Dend'] and i >= 128 - P['nend']): Di = int(pat[i % len(pat)])
        if P['ctl'] and P['c0'] + P['lag'] < i <= P['c1'] + 6:
            if i % P['crd'] == P['crd'] - 1: a(f's_waitcnt lgkmcnt(0)\nv_readfirstlane_b32 s62, v{XR+1}')
            if Di == 3 and P['b4']:
                bit = ((P['mb'] | P['mt'] | P['mo']) >> (i % 4) & 1)
                a(f's_waitcnt vmcnt(3)\ns_bitcmp1_b32 s62, 4\ns_cbranch_scc1 L_b{i}\ns_waitcnt vmcnt(2)')
                if bit: a(f's_bitcmp0_b32 s62, {i % 4}\ns_cbranch_scc1 L_b{i}\ns_waitcnt vmcnt(1)')
                a(f'L_b{i}:'); Di = 4
            elif Di == 3 and ((P['cmask'] if P['cver'] == 1 else P['cm1'] | P['cm2'] if P['cver'] == 2 else P['mb'] | P['mt'] | P['mo'] | (P['xmb'] | P['xmo'] if P['xl'] else 0)) >> (i % P['mper']) & 1):
                a(f's_waitcnt vmcnt(2)\ns_bitcmp0_b32 s62, {i % P["mper"]}\ns_cbranch_scc1 L_b{i}\ns_waitcnt vmcnt(1)\nL_b{i}:')
        if P['iw'] and 30 < i <= 122:
            if i % P['iwp'] == 1:
                a(f's_waitcnt lgkmcnt(0)\nv_cmp_gt_u32 vcc, {i - 1 - P["iwd"]}, v{XR+1}\ns_cmp_lg_u32 vcc_lo, 0\ns_cselect_b32 s62, {P["iw"]}, 0')
            if Di == 3 and (P['iw'] >> (i % 4) & 1):
                a(f's_waitcnt vmcnt(2)\ns_bitcmp0_b32 s62, {i % 4}\ns_cbranch_scc1 L_b{i}\ns_waitcnt vmcnt(1)\nL_b{i}:')
        if P['stag'] and Di == 3:
            a(f's_waitcnt vmcnt(2)\ns_bitcmp0_b32 s62, {i % P["stp"]}\ns_cbranch_scc1 L_b{i}\ns_waitcnt vmcnt(1)\nL_b{i}:')
        if P['orc'] and i < 120:
            if i % 4 == 0: a('s_memrealtime s[96:97]')
            if i % 4 == 1: a(f's_waitcnt lgkmcnt(0)\ns_sub_u32 s96, s96, s98\ns_cmp_lt_u32 s96, {P["orc0"] + (i - 1) * P["orc"] // 10}\ns_cselect_b32 s62, {P["omask"]}, 0')
            if Di == 3 and (P['omask'] >> (i % 4) & 1):
                a(f's_waitcnt vmcnt(2)\ns_bitcmp0_b32 s62, {i % 4}\ns_cbranch_scc1 L_b{i}\ns_waitcnt vmcnt(1)\nL_b{i}:')
        if False: pass
        elif (P['podd'] or P['peven']) and i >= P['p0'] and ((P['podd'] | P['peven']) >> (i % 16) & 1):
            if (P['podd'] & P['peven']) >> (i % 16) & 1: a(f's_waitcnt vmcnt({Di})')
            else: a(f's_waitcnt vmcnt({Di})\ns_bitcmp1_b32 s62, {i % 16}\ns_cbranch_scc1 L_b{i}\ns_waitcnt vmcnt({Di-1})\nL_b{i}:')
            landed = max(landed, i - Di - 1)
        elif i - Di > landed:
            a(f's_waitcnt vmcnt({Di-1})'); landed = i - Di
        issue(i)
        if P['ctl'] and i % 2 == 0 and P['c0'] <= i <= P['c1'] + 4: a(f'v_mov_b32 v{XR}, {i}\nds_write_b32 v{XR+3}, v{XR}')
        if P['ctl'] and i % P['crd'] == P['crd'] - 2 and P['c0'] + P['lag'] <= i <= P['c1'] + 5: a(f'ds_read_b32 v{XR+1}, v{XR+2} offset:32')
        if P['iw'] and i >= 26 and i <= 122: a(f'v_mov_b32 v{XR}, {i}\nds_write_b32 v{XR+3}, v{XR}')
        if P['iw'] and i % P['iwp'] == 0 and 30 <= i <= 121: a(f'ds_read_b32 v{XR+1}, v{XR+2}')
        if i == 44 + D: stamp(a, P, 's44')
        if i == 96 + D: stamp(a, P, 's96')
        n = 0
        while ci < len(chunks) and chunks[ci][0] <= landed and n < P['budget']:
            run_chunk(i + 1); n += 1
    def tail_addr():
        a(f'v_lshrrev_b32 v3, 5, v0\nv_lshlrev_b32 v3, 9, v3\nv_bfe_u32 v4, v0, 4, 1\nv_lshl_add_u32 v3, v4, 10, v3')
        a(f'v_and_b32 v4, 15, v0\nv_lshl_add_u32 v3, v4, 5, v3\ns_lshl_b32 s37, s30, 11\ns_add_u32 s37, s37, {L_PART}\nv_add_u32 v3, s37, v3')
        a(f's_lshl_b32 s37, s30, 8\ns_add_u32 s37, s37, {L_PART}\nv_lshl_add_u32 v4, v0, 2, s37')
        a(f's_lshr_b32 s37, s30, 2\ns_lshl_b32 s37, s37, 5\ns_add_u32 s37, s37, {L_F}\nv_mov_b32 v5, s37')
        if P['ov']:
            assert P['qx']
            a(f'v_lshlrev_b32 v6, 2, v0\ns_lshl_b32 s60, s38, 12')
            a(f's_lshl_b32 s37, s30, 8\ns_add_u32 s60, s60, s37\ns_add_u32 s60, s60, {QBUF}\ns_xor_b32 s85, s85, 0x55')
        else:
            a(f'v_lshlrev_b32 v6, 2, v0\ns_lshl_b32 s60, s38, 11\ns_lshl_b32 s37, s30, 8\ns_add_u32 s60, s60, s37\ns_add_u32 s60, s60, {OBUF}')
        a(f'v_lshrrev_b32 v1, 4, v0\nv_bfe_u32 v7, v0, 2, 2\nv_and_b32 v8, 3, v0')
        if P['late']:
            a(f'v_lshl_add_u32 v7, v1, 2, v7\nv_bfe_u32 v2, v7, 1, 2\nv_xor_b32 v2, s30, v2\nv_and_b32 v2, 3, v2\nv_lshlrev_b32 v7, 7, v7\nv_lshl_add_u32 v7, v8, 3, v7\nv_lshl_add_u32 v7, v2, 5, v7\nv_add_u32 v7, {L_WO}, v7')
        else:
            a(f'v_lshl_add_u32 v7, v1, 2, v7\nv_lshlrev_b32 v7, 7, v7\nv_lshl_add_u32 v7, v8, 3, v7\ns_lshl_b32 s37, s30, 5\ns_add_u32 s37, s37, {L_WO}\nv_add_u32 v7, s37, v7')
        a(f'v_and_b32 v2, 15, v0\nv_lshlrev_b32 v2, 4, v2\nv_lshl_add_u32 v2, v1, {12 if P["ov"] else 11}, v2')
        a(f's_lshl_b32 s61, s30, {17 if P["ov"] else 16}\ns_lshl_b32 s37, s31, {14 if P["ov"] else 13}\ns_add_u32 s61, s61, s37\ns_and_b32 s37, s32, 3\ns_lshl_b32 s37, s37, 9\ns_add_u32 s61, s61, s37\ns_add_u32 s61, s61, {QBUF if P["ov"] else OBUF}')
    nlate = 0
    while lt and ci < len(chunks) - 4: run_chunk(128)
    if P['late']:
        assert lt
        a('v_lshrrev_b32 v3, 3, v0\nv_mul_u32_u24 v4, 896, v3\nv_and_b32 v3, 6, v3\nv_xor_b32 v3, v3, v0\nv_and_b32 v3, 7, v3\nv_lshl_add_u32 v4, v3, 4, v4')
        a(f'v_mov_b32 v{XR+3}, v4')
        a('s_and_b32 s36, s32, 3\ns_lshl_b32 s37, s31, 2\ns_add_u32 s36, s36, s37\ns_lshr_b32 s39, s32, 2\ns_lshl_b32 s39, s39, 7')
        a(f's_mul_i32 s37, s36, 114688\ns_add_u32 s37, s37, s39\ns_cmp_lt_u32 s32, 28\ns_cselect_b32 s37, s37, 0\ns_cselect_b32 s62, {127*896+128}, 0')
        srd(a, 56, 12, 's37', 's62')
        a(f's_mul_i32 s37, s36, 50176\ns_add_u32 s37, s37, s39\ns_cmp_lt_u32 s32, 28\ns_cselect_b32 s37, s37, 0\ns_cselect_b32 s62, {55*896+128}, 0')
        srd(a, 48, 20, 's37', 's62')
        a(f's_mul_i32 s64, s30, {16*896}\ns_add_u32 s65, s64, {8*896}\ns_lshr_b32 s66, s64, 1\ns_lshl_b32 s67, s30, 11\ns_add_u32 s67, s67, {L_WO}\ns_lshl_b32 s68, s30, 10\ns_add_u32 s68, s68, {L_W2}')
        late_ops.extend([f's_mov_b32 m0, s67\nbuffer_load_dwordx4 v{XR+3}, s[56:59], s64 offen {P["opol"]} lds',
                         f's_add_u32 m0, s67, 1024\nbuffer_load_dwordx4 v{XR+3}, s[56:59], s65 offen {P["opol"]} lds',
                         f's_mov_b32 m0, s68\nbuffer_load_dwordx4 v{XR+3}, s[48:51], s66 offen {P["mpol"]} lds'])
        if P['late'] == 1:
            for x in late_ops: a(x)
            nlate = 3
    tail_addr()
    a(f'v_lshl_add_u32 v{XR+2}, v8, 2, v1\nv_lshlrev_b32 v{XR+2}, 1, v{XR+2}\ns_lshl_b32 s39, s32, 5')
    srd(a, 44, 22, None, 896)
    a(f'buffer_load_ushort v{XR}, v{XR+2}, s[44:47], s39 offen')
    srd(a, 40, 4, None, 7168)
    a(f's_mul_i32 s37, s31, 896\ns_add_u32 s63, s37, s39\nbuffer_load_ushort v{XR+1}, v{XR+2}, s[40:43], s63 offen')
    srd(a, 44, 24, None, 7168)
    while ci < len(chunks): run_chunk(130 + nlate + extra[0])
    stamp(a, P, 'Vlast')
    a('L_tail:')
    a(f'ds_write_b128 v3, v[{ACC}:{ACC+3}]\nds_write_b128 v3, v[{ACC+4}:{ACC+7}] offset:16\ns_waitcnt lgkmcnt(0)\ns_barrier')
    stamp(a, P, 'B2')
    for w in range(4): a(f'ds_read2st64_b32 v[{16+2*w}:{17+2*w}], v4 offset0:{16*w} offset1:{16*w+8}')
    a(f'ds_read_b128 v[24:27], v5\nds_read_b128 v[28:31], v5 offset:16\ns_waitcnt lgkmcnt(0)')
    a('v_mul_f32 v32, v16, v24\nv_mul_f32 v33, v17, v25')
    for w in range(2, 8): a(f'v_fmac_f32 v{32+(w&1)}, v{16+w}, v{24+w}')
    a('v_mov_b32 v9, s85\nv_add_f32 v32, v32, v33\nv_bfi_b32 v32, s82, v9, v32')
    hand_store(a, 'buffer_store_dword v32, v6, s[52:55], s60 offen')
    stamp(a, P, 'ost')
    a('s_cmp_lt_u32 s32, 28\ns_cbranch_scc0 L_end')
    GL = 'buffer_load_dwordx4 v[16:19], v2, s[52:55], s61 offen sc1\nbuffer_load_dwordx4 v[20:23], v2, s[52:55], s61 offen offset:256 sc1'
    a(GL)
    BF, AF, DR = 56, 72, 88
    HA, B2F = 92, 100
    if P['late']:
        a(f'v_and_b32 v10, 7, v0\nv_mul_u32_u24 v10, {HSTR}, v10\nv_lshl_add_u32 v10, v1, 3, v10\nv_add_u32 v10, {L_H}, v10')
        for k in range(2): a(f'ds_read_b64 v[{HA+4*k}:{HA+4*k+1}], v10 offset:{k*64}\nds_read_b64 v[{HA+4*k+2}:{HA+4*k+3}], v10 offset:{k*64+32}')
    else:
        a('s_cmp_lt_u32 s30, 4\ns_cbranch_scc0 L_nofr')
        for jj in range(4):
            b = BF + 4 * jj
            a(f'ds_read_b64_tr_b16 v[{b}:{b+1}], v7 offset:{jj*4096}\nds_read_b64_tr_b16 v[{b+2}:{b+3}], v7 offset:{jj*4096+2048}')
        a(f's_lshl_b32 s37, s30, 10\ns_add_u32 s37, s37, {L_C}\nv_lshl_add_u32 v10, v0, 4, s37\nds_read_b128 v[{DR}:{DR+3}], v10')
        a('L_nofr:')
    a(f'v_and_b32 v4, 15, v0\nv_lshlrev_b32 v4, 3, v4\nv_and_b32 v5, 1, v1\nv_lshl_add_u32 v4, v5, 2, v4\nv_lshrrev_b32 v5, 1, v1\nv_lshl_add_u32 v4, v5, 7, v4')
    a(f's_mul_i32 s37, s30, {OSTR}\ns_add_u32 s37, s37, {L_O}\nv_add_u32 v5, s37, v4')
    a(f'v_and_b32 v12, 7, v0\nv_mul_u32_u24 v12, {OSTR}, v12\nv_lshl_add_u32 v12, v1, 3, v12\nv_add_u32 v12, {L_O}, v12')
    a(f's_and_b32 s60, s32, 28\ns_add_u32 s60, s60, s30\ns_lshl_b32 s60, s60, 5\ns_lshl_b32 s37, s31, 2\ns_add_u32 s60, s60, s37\ns_and_b32 s37, s32, 3\ns_add_u32 s60, s60, s37')
    a(f's_lshl_b32 s60, s60, 9\ns_add_u32 s60, s60, {PBUF}\ns_mov_b32 s86, {P["spin"]}')
    a('s_branch L_gchk')
    a('L_gpoll:')
    if P['rex']: a('s_mov_b64 exec, vcc')
    if P['gsl']: a(f's_sleep {P["gsl"]}')
    a(GL)
    a('L_gchk:')
    a('s_waitcnt vmcnt(0)')
    tag_check(a, range(16, 24), 10, 11, 4)
    a('s_sub_u32 s86, s86, 1\ns_cbranch_scc1 L_gdone\ns_cbranch_vccnz L_gpoll')
    a('L_gdone:')
    if P['rex']: a('s_mov_b64 exec, -1')
    stamp(a, P, 'gok')
    for p in (16, 17, 20, 21): a(f'v_permlane16_swap_b32 v{p}, v{p+2}')
    for p in (16, 17, 20, 21): a(f'v_add_f32 v{p}, v{p}, v{p+2}')
    a('v_permlane32_swap_b32 v16, v20\nv_permlane32_swap_b32 v17, v21\nv_add_f32 v16, v16, v20\nv_add_f32 v17, v17, v21')
    a('v_cvt_pk_bf16_f32 v16, v16, v17\nds_write_b32 v5, v16\ns_waitcnt lgkmcnt(0)\ns_barrier')
    stamp(a, P, 'B3')
    a('s_cmp_lt_u32 s30, 4\ns_cbranch_scc0 L_fin')
    if P['late']:
        d2 = L_W2 - L_WO
        for k in range(2): a(f'ds_read_b64_tr_b16 v[{B2F+4*k}:{B2F+4*k+1}], v7 offset:{d2+k*4096}\nds_read_b64_tr_b16 v[{B2F+4*k+2}:{B2F+4*k+3}], v7 offset:{d2+k*4096+2048}')
        for jj in range(4):
            b = BF + 4 * jj
            a(f'ds_read_b64 v[{AF+4*jj}:{AF+4*jj+1}], v12 offset:{jj*64}\nds_read_b64 v[{AF+4*jj+2}:{AF+4*jj+3}], v12 offset:{jj*64+32}')
            a(f'ds_read_b64_tr_b16 v[{b}:{b+1}], v7 offset:{jj*4096}\nds_read_b64_tr_b16 v[{b+2}:{b+3}], v7 offset:{jj*4096+2048}')
            if jj == 1:
                for k in range(2):
                    a(f's_waitcnt lgkmcnt({10-2*k})')
                    a(f'v_mfma_f32_16x16x32_bf16 v[{DR}:{DR+3}], v[{HA+4*k}:{HA+4*k+3}], v[{B2F+4*k}:{B2F+4*k+3}], ' + ('0' if k == 0 else f'v[{DR}:{DR+3}]'))
        for jj in range(4):
            a(f's_waitcnt lgkmcnt({12-4*jj})')
            a(f'v_mfma_f32_16x16x32_bf16 v[{DR}:{DR+3}], v[{AF+4*jj}:{AF+4*jj+3}], v[{BF+4*jj}:{BF+4*jj+3}], v[{DR}:{DR+3}]')
    else:
        for jj in range(4): a(f'ds_read_b64 v[{AF+4*jj}:{AF+4*jj+1}], v12 offset:{jj*64}\nds_read_b64 v[{AF+4*jj+2}:{AF+4*jj+3}], v12 offset:{jj*64+32}')
        for jj in range(4):
            a(f's_waitcnt lgkmcnt({6-2*jj})')
            a(f'v_mfma_f32_16x16x32_bf16 v[{DR}:{DR+3}], v[{AF+4*jj}:{AF+4*jj+3}], v[{BF+4*jj}:{BF+4*jj+3}], v[{DR}:{DR+3}]')
    a(f'v_permlane32_swap_b32 v{DR}, v{DR+1}\nv_permlane32_swap_b32 v{DR+2}, v{DR+3}')
    tag_put(a, (DR, DR + 2), 9, 82, 0x200)
    a(f'buffer_store_dword v{DR}, v6, s[52:55], s60 offen {P["ppol"]}\nbuffer_store_dword v{DR+2}, v6, s[52:55], s60 offen offset:256 {P["ppol"]}')
    stamp(a, P, 'pst')
    if P['diag']:
        a('s_cmp_lg_u32 s30, 0\ns_cbranch_scc1 L_end')
        stamp_store(a, P, stamp_items(P, [x for x in S_PTS if x not in ('g2ok', 'end', 'fst', 'fcnt')]), hw=True)
    a('s_endpgm')
    a('; ---- wave 7: sum the 32 partial products of 16 output columns, add x and b2, store')
    a('L_fin:')
    if P['wb']:
        a('s_cmp_eq_u32 s30, 5\ns_cbranch_scc0 L_nowb\ns_cmp_eq_u32 s32, 0\ns_cbranch_scc0 L_end\nbuffer_wbl2 sc1\ns_waitcnt vmcnt(0)\ns_endpgm\nL_nowb:')
    a('s_cmp_eq_u32 s30, 7\ns_cbranch_scc0 L_end')
    a('v_and_b32 v8, 3, v0')
    a(f'v_lshrrev_b32 v2, 2, v0\nv_lshlrev_b32 v2, 9, v2\nv_lshl_add_u32 v2, v8, 4, v2\nv_add_u32 v3, 8192, v2')
    a(f's_lshl_b32 s61, s32, 14\ns_and_b32 s37, s31, 3\ns_lshl_b32 s37, s37, 7\ns_add_u32 s61, s61, s37\ns_lshr_b32 s37, s31, 2\ns_lshl_b32 s37, s37, 6\ns_add_u32 s61, s61, s37\ns_add_u32 s61, s61, {PBUF}\ns_mov_b32 s86, {P["spin"]}')
    a(f'v_lshlrev_b32 v24, 16, v{XR}\nv_lshlrev_b32 v25, 16, v{XR+1}\nv_add_f32 v24, v24, v25')
    stamp(a, P, 'fst')
    a('L_fpoll:')
    a(f'buffer_load_dwordx4 v[16:19], v2, s[52:55], s61 offen {P["lpol"]}\nbuffer_load_dwordx4 v[20:23], v3, s[52:55], s61 offen {P["lpol"]}')
    a('s_waitcnt vmcnt(0)')
    tag_check(a, range(16, 24), 8, 9, 10)
    a('s_sub_u32 s86, s86, 1\ns_cbranch_scc1 L_fdone\ns_cbranch_vccz L_fdone')
    if P['fthr']:
        a(f's_bcnt1_i32_b64 s37, vcc\ns_cmp_lt_u32 s37, {P["fthr"]}\ns_cbranch_scc1 L_fpoll\ns_sleep {P["fsl2"]}')
    if P['fsl']: a(f's_sleep {P["fsl"]}')
    if P['rex']: a('s_mov_b64 exec, vcc')
    a('s_branch L_fpoll')
    a('L_fdone:')
    if P['rex']: a('s_mov_b64 exec, -1')
    stamp(a, P, 'g2ok')
    if P['diag'] and 'fcnt' in pts(P):
        r = 88 + 2 * pts(P).index('fcnt'); r0 = 88 + 2 * pts(P).index('fst')
        a(f's_sub_u32 s37, {P["spin"]}, s86\ns_mul_i32 s37, s37, 100\ns_add_u32 s{r}, s{r0}, s37\ns_addc_u32 s{r+1}, s{r0+1}, 0')
    for i in range(4): a(f'v_add_f32 v{16+i}, v{16+i}, v{20+i}')
    a('v_permlane16_swap_b32 v16, v17\nv_permlane16_swap_b32 v18, v19\nv_add_f32 v16, v16, v17\nv_add_f32 v18, v18, v19')
    a('v_permlane32_swap_b32 v16, v18\nv_add_f32 v16, v16, v18')
    a('v_add_f32_dpp v16, v16, v16 row_ror:4 row_mask:0xf bank_mask:0xf')
    a('v_add_f32_dpp v16, v16, v16 row_ror:8 row_mask:0xf bank_mask:0xf')
    a('v_add_f32 v16, v16, v24\nv_cvt_pk_bf16_f32 v16, v16, v16')
    a('s_mov_b32 exec_lo, 0x000f000f\ns_mov_b32 exec_hi, 0x000f000f')
    a(f'buffer_store_short v16, v{XR+2}, s[44:47], s63 offen {P["outpol"]}')
    a('s_cmp_lg_u32 s2, 0\ns_cbranch_scc1 L_noep')
    a('v_mov_b32 v8, 0\nv_mov_b32 v9, s84\ns_mov_b64 exec, 1\nbuffer_store_dword v9, v8, s[52:55], 0 offen')
    a('L_noep:')
    if P['hold']:
        a(f'L_hold:\ns_memrealtime s[96:97]\ns_waitcnt lgkmcnt(0)\ns_sub_u32 s96, s96, s98\ns_cmp_lt_u32 s96, {P["hold"]}\ns_cbranch_scc1 L_hold')
    if P['diag']:
        a('s_mov_b64 exec, -1\ns_waitcnt vmcnt(0)')
        stamp(a, P, 'end')
        stamp_store(a, P, stamp_items(P, ['g2ok', 'end', 'fst', 'fcnt']))
    a('s_endpgm')

def dma_loop(a, lab, n, depth, vaddr, sstep, lds0, pol):
    a(f's_mov_b32 s36, 0\ns_mov_b32 s62, {lds0}\ns_mov_b32 s63, {n}')
    a(f'{lab}:')
    a(f's_mov_b32 m0, s62\ns_waitcnt vmcnt({depth-1})')
    a(f'buffer_load_dwordx4 v{vaddr}, s[56:59], s36 offen {pol} lds')
    a(f's_add_u32 s36, s36, {sstep}\ns_add_u32 s62, s62, 1024\ns_sub_u32 s63, s63, 1\ns_cmp_lg_u32 s63, 0\ns_cbranch_scc1 {lab}')

XF, FF, TT = 16, 44, 100
def x_addr(a):
    a('v_and_b32 v10, 15, v0\nv_lshrrev_b32 v9, 4, v0\nv_and_b32 v8, 7, v0\nv_mul_u32_u24 v8, 896, v8')
    a('v_bfe_u32 v3, v0, 3, 1\nv_mul_u32_u24 v3, 448, v3\nv_lshl_add_u32 v8, v9, 4, v8\nv_add_u32 v8, v8, v3')
def x_load(a, P):
    srd(a, 48, 4, None, 7168)
    for ks in range(7): a(f'buffer_load_dwordx4 v[{XF+4*ks}:{XF+4*ks+3}], v8, s[48:51], 0 offen offset:{ks*64} {P["xpol"]}')
def tag_check(a, regs, t0, t1, acc, mask=TMASK):
    regs = list(regs)
    ts = 's85' if mask == TMASK else 's80'
    for r in regs: a(f'v_xor_b32 v{r}, {ts}, v{r}')
    two = len(regs) >= 6
    a(f'v_or_b32 v{acc}, v{regs[0]}, v{regs[1]}')
    rest = regs[2:]
    if two: a(f'v_or3_b32 v{t0}, v{rest[0]}, v{rest[1]}, v{rest[2]}'); rest = rest[3:]
    k = 0
    while len(rest) >= 2:
        d = t0 if (two and k & 1) else acc
        a(f'v_or3_b32 v{d}, v{d}, v{rest[0]}, v{rest[1]}'); rest = rest[2:]; k += 1
    if two and rest: a(f'v_or3_b32 v{acc}, v{acc}, v{t0}, v{rest[0]}')
    elif two: a(f'v_or_b32 v{acc}, v{acc}, v{t0}')
    elif rest: a(f'v_or_b32 v{acc}, v{acc}, v{rest[0]}')
    a(f'v_and_b32 v{acc}, {mask}, v{acc}\nv_cmp_ne_u32 vcc, 0, v{acc}')
def tag_put(a, regs, tagv, ms, half):
    for r in regs: a(f'v_add_u32 v{r}, {half}, v{r}')
    for r in regs: a(f'v_bfi_b32 v{r}, s{ms}, v{tagv}, v{r}')
def tag_strip(a, regs, half, ms=82):
    for r in regs: a(f'v_bfi_b32 v{r}, s{ms}, v{half}, v{r}')
_st = [0]; HPOL = ['']
def hand_store(a, ins):
    _st[0] += 1; n = _st[0]
    a(f's_cmp_eq_u32 s87, 0\ns_cbranch_scc1 L_wt{n}\n{ins} {HPOL[0]}\ns_branch L_we{n}\nL_wt{n}:\n{ins} sc1\nL_we{n}:')

def unit_gemm(a, lds, va, st_v, st_s, tagv, ms, before_pub=None, exact=False):
    TA, DQ = 44, 108
    seq = [(t, ks) for t in range(4) for ks in range(4)]
    def rd(n):
        t, ks = seq[n]; r = TA + 4 * n; o = lds + ks * 4096 + t * 32
        a(f'ds_read_b64_tr_b16 v[{r}:{r+1}], v{va} offset:{o}\nds_read_b64_tr_b16 v[{r+2}:{r+3}], v{va} offset:{o+512}')
    def pub(t):
        if exact:
            for u in range(2):
                r = 128 + 8 * (t & 1) + 4 * u
                a(f'v_mov_b32 v{r}, v{DQ+4*t+2*u}\nv_mov_b32 v{r+1}, v{DQ+4*t+2*u+1}')
                hand_store(a, f'buffer_store_dwordx4 v[{r}:{r+3}], v{st_v}, s[52:55], s{st_s} offen offset:{t*128+u*64}')
            return
        tag_put(a, range(DQ + 4 * t, DQ + 4 * t + 4), tagv, ms, 0x80 if ms == 81 else 0x200)
        hand_store(a, f'buffer_store_dwordx4 v[{DQ+4*t}:{DQ+4*t+3}], v{st_v}, s[52:55], s{st_s} offen offset:{t*64}')
    for n in range(6): rd(n)
    if exact:
        for k in range(4): a(f'v_mov_b32 v{130+4*k}, s84\nv_mov_b32 v{131+4*k}, s84')
    for n, (t, ks) in enumerate(seq):
        if n + 6 < 16: rd(n + 6)
        a(f's_waitcnt lgkmcnt({2*min(6, 15-n)})')
        r = TA + 4 * n; d = DQ + 4 * t
        c = '0' if ks == 0 else f'v[{d}:{d+3}]'
        a(f'v_mfma_f32_16x16x32_bf16 v[{d}:{d+3}], v[{r}:{r+3}], v[{XF+4*ks}:{XF+4*ks+3}], {c}')
        if before_pub is None and n in (7, 11, 15): pub(n // 4 - 1)
    if before_pub is not None:
        before_pub()
        for t in range(3): pub(t)
    pub(3)

def helper(a, P):
    a('L_helper:')
    if P['ctl']: a('s_cmp_eq_u32 s30, 9\ns_cbranch_scc1 L_ctl')
    stamp(a, P, 'hstart')
    if P['cpf']:
        a('s_getpc_b64 s[56:57]\ns_mov_b32 s58, 4352\ns_mov_b32 s59, 0x20000\nv_lshlrev_b32 v1, 6, v0')
        a('buffer_load_dword v15, v1, s[56:59], 0 offen offset:256')
    x_addr(a)
    a('v_lshrrev_b32 v4, 3, v0\nv_lshlrev_b32 v1, 13, v4\nv_and_b32 v2, 7, v0\nv_lshl_add_u32 v1, v2, 4, v1')
    a('v_mul_u32_u24 v4, 3584, v4\nv_lshl_add_u32 v4, v2, 4, v4')
    a('s_and_b32 s63, s32, 1\ns_bfe_u32 s62, s32, 0x10001\ns_mul_i32 s64, s62, 224\ns_lshl_b32 s36, s63, 7\ns_add_u32 s64, s64, s36')
    a('s_lshl_b32 s65, s63, 5\ns_sub_u32 s65, 127, s65\ns_lshr_b32 s66, s32, 2')
    a('s_lshl_b32 s37, s64, 13\ns_lshl_b32 s39, s31, 3\ns_add_u32 s39, s39, s66\ns_lshl_b32 s39, s39, 7\ns_add_u32 s37, s37, s39')
    a('s_lshl_b32 s39, s65, 13\ns_add_u32 s39, s39, 128')
    a('s_lshl_b32 s60, s63, 8\ns_mul_i32 s61, s63, 192\ns_sub_u32 s61, 192, s61')
    a('s_waitcnt lgkmcnt(0)')
    stamp(a, P, 'hkarg')
    a('s_load_dword s84, s[28:29], 0')
    srd(a, 48, 4, None, 7168)
    for ks in range(7):
        if ks < 3: a(f'buffer_load_dwordx4 v[{XF+4*ks}:{XF+4*ks+3}], v8, s[48:51], s60 offen offset:{ks*64} {P["xpol"]}')
        else: a(f'buffer_load_dwordx4 v[{XF+4*ks}:{XF+4*ks+3}], v8, s[48:51], s61 offen offset:{(ks-3)*64} {P["xpol"]}')
    if P['abl'] & 2: a('s_mov_b32 s39, 0')
    srd(a, 56, 10, 's37', 's39')
    for i in range(16):
        a(f's_mov_b32 m0, {L_WQ+i*1024}\ns_mov_b32 s36, {i*65536}')
        a(f'buffer_load_dwordx4 v1, s[56:59], s36 offen {P["wpol"]} lds')
    stamp(a, P, 'wqiss')
    a(f'v_mov_b32 v126, -1\nv_mov_b32 v127, -1\nv_lshlrev_b32 v3, 3, v0\nv_add_u32 v3, {L_ML}, v3\nv_mov_b32 v5, {L_TAG}')
    a('s_mov_b64 exec, 0xffff\nds_write_b64 v3, v[126:127]\nds_write_b64 v5, v[126:127]\ns_mov_b64 exec, -1')
    if P['iw']: a(f'v_mov_b32 v126, 0\nv_and_b32 v3, 7, v0\nv_lshlrev_b32 v3, 2, v3\nv_add_u32 v3, {L_PROG}, v3\nds_write_b32 v3, v126')
    srd(a, 52, 28, None, WS_USED)
    a(f'v_lshlrev_b32 v2, 4, v0\ns_getreg_b32 s68, hwreg(HW_REG_XCC_ID)\ns_and_b32 s68, s68, 15\ns_lshl_b32 s68, s68, 12')
    a(f's_lshl_b32 s69, s31, 12\ns_add_u32 s69, s69, {XBUF}\ns_lshl_b32 s37, s32, 7\ns_add_u32 s37, s37, s69\ns_waitcnt lgkmcnt(0)')
    a(f's_add_u32 s84, s84, 0x9E3779B9\ns_and_b32 s85, s84, {TMASK}\ns_and_b32 s80, s84, {QMASK}\ns_or_b32 s68, s68, s85\nv_mov_b32 v6, s85\nv_mov_b32 v124, s68')
    a('s_mov_b64 exec, 1\nbuffer_store_dword v124, v2, s[52:55], s37 offen sc1\ns_mov_b64 exec, -1')
    stamp(a, P, 'xst')
    a('s_barrier')
    a('v_and_b32 v125, 31, v0\nv_lshlrev_b32 v125, 7, v125')
    a(f'v_mov_b32 v14, {hex(OOB)}\ns_mov_b32 s82, {TMASK}\ns_mov_b32 s81, {QMASK}\ns_mov_b32 s83, {hex(f2u(C_EXP))}')
    a(f'v_bfe_u32 v3, v0, 2, 2\nv_lshl_add_u32 v12, v9, 3, v3\nv_lshlrev_b32 v12, 7, v12\nv_and_b32 v5, 3, v0\nv_lshl_add_u32 v12, v5, 3, v12')
    a(f'v_and_b32 v5, 7, v0\nv_lshlrev_b32 v13, {17 if P["qx"] else 16}, v5\nv_lshl_add_u32 v13, v9, 4, v13\nv_bfe_u32 v3, v0, 3, 1\nv_cmp_eq_u32 vcc, s62, v3')
    a(f'v_lshlrev_b32 v5, 12, v5\nv_lshl_add_u32 v5, v9, 4, v5\nv_cndmask_b32 v13, v14, v13, vcc\nv_cndmask_b32 v5, v14, v5, vcc')
    if P['qx']: a(f's_and_b32 s37, s32, 3\ns_lshl_b32 s60, s37, 12\ns_lshl_b32 s39, s31, 14\ns_add_u32 s60, s60, s39\ns_lshl_b32 s39, s66, 9\ns_add_u32 s60, s60, s39\ns_add_u32 s60, s60, {QBUF}')
    else:
        a(f's_and_b32 s37, s32, 3\ns_lshl_b32 s60, s37, 14\ns_lshl_b32 s39, s31, 11\ns_add_u32 s60, s60, s39\ns_lshl_b32 s39, s66, 8\ns_add_u32 s60, s60, s39\ns_add_u32 s60, s60, {QBUF}')
    a(f's_lshl_b32 s70, s37, 10\ns_and_b32 s39, s66, 3\ns_lshl_b32 s39, s39, 8\ns_add_u32 s70, s70, s39\ns_lshl_b32 s39, s31, 15\ns_add_u32 s70, s70, s39\ns_add_u32 s70, s70, {HBUF}')
    a('s_waitcnt vmcnt(17)')
    stamp(a, P, 'xland')
    layernorm(a, XF, FF, TT)
    stamp(a, P, 'lndone')
    a('s_mov_b64 exec, 0xffffffff\nbuffer_load_dword v124, v125, s[52:55], s69 offen sc1\ns_mov_b64 exec, -1')
    a('s_waitcnt vmcnt(2) lgkmcnt(0)')
    stamp(a, P, 'wqland')
    def loc_check():
        a('s_waitcnt vmcnt(0)\nv_cmp_ne_u32 vcc, s68, v124\ns_cmp_eq_u32 vcc_lo, 0')
        for k in range(P['xretry']):
            a('s_cbranch_scc1 L_xok\ns_mov_b64 exec, 0xffffffff\nbuffer_load_dword v124, v125, s[52:55], s69 offen sc1\ns_mov_b64 exec, -1')
            a('s_waitcnt vmcnt(0)\nv_cmp_ne_u32 vcc, s68, v124\ns_cmp_eq_u32 vcc_lo, 0')
        a('L_xok:')
        a('s_cselect_b32 s87, 1, 0' if P['loc'] else 's_mov_b32 s87, 0')
        stamp(a, P, 'xid')
        if P['diag'] and 'locv' in pts(P):
            a('s_cmp_lg_u32 s87, 0\ns_cbranch_scc1 L_locv'); stamp(a, P, 'locv'); a('L_locv:')
    if P['abl'] & 4: loc_check(); a('s_branch L_qdone')
    unit_gemm(a, L_WQ, 12, 13, 60, 6, 81, None if P['abl'] & 4 else loc_check, P['qx'])
    stamp(a, P, 'qpub')
    if P['qx']: a(f's_lshr_b32 s61, s38, 2\ns_lshl_b32 s61, s61, 14\ns_add_u32 s61, s61, {QBUF}\ns_mov_b32 s72, s84\ns_mov_b32 s73, s84')
    else:
        a(f's_lshl_b32 s61, s33, 16\ns_lshl_b32 s37, s31, 11\ns_add_u32 s61, s61, s37\ns_add_u32 s61, s61, {QBUF}')
    a(f's_mov_b32 s86, {P["spin"]}')
    a('L_qpoll:')
    a(f's_sleep {P["qsl"]}')
    a('s_mov_b32 s36, s61')
    if P['qx']:
        for kq in range(4):
            for m in range(4): a(f'buffer_load_dwordx4 v[{44+16*kq+4*m}:{47+16*kq+4*m}], v2, s[52:55], s36 offen offset:{m*1024} sc1')
            if kq < 3: a('s_add_u32 s36, s36, 4096')
    else:
        for kq in range(4):
            for m in range(2): a(f'buffer_load_dwordx4 v[{44+8*kq+4*m}:{47+8*kq+4*m}], v2, s[52:55], s36 offen offset:{m*1024} sc1')
            if kq < 3: a('s_add_u32 s36, s36, 16384')
    a(f's_mov_b64 exec, 0xffffffff\nbuffer_load_dword v124, v125, s[52:55], s69 offen sc1\ns_mov_b64 exec, -1\ns_waitcnt vmcnt(0)')
    if P['qx']:
        a('s_mov_b64 vcc, 0')
        for n in range(16):
            a(f'v_cmp_ne_u64 s[{74+2*(n%3)}:{75+2*(n%3)}], s[72:73], v[{46+4*n}:{47+4*n}]')
            if n >= 2: a(f's_or_b64 vcc, vcc, s[{74+2*((n-2)%3)}:{75+2*((n-2)%3)}]')
        for n in (14, 15): a(f's_or_b64 vcc, vcc, s[{74+2*(n%3)}:{75+2*(n%3)}]')
    else: tag_check(a, range(44, 76), 100, 101, 102, QMASK)
    a('s_sub_u32 s86, s86, 1\ns_cbranch_scc1 L_qdone\ns_cbranch_vccnz L_qpoll')
    a('L_qdone:')
    stamp(a, P, 'qok')
    a('v_cmp_ne_u32 vcc, s68, v124\ns_cmp_eq_u32 vcc_lo, 0')
    a('s_cselect_b32 s87, 1, 0' if P['loc'] else 's_mov_b32 s87, 0')
    if P['qx']:
        for kq in range(1, 4):
            for m in range(4): a(f'v_pk_add_f32 v[{44+4*m}:{45+4*m}], v[{44+4*m}:{45+4*m}], v[{44+16*kq+4*m}:{45+16*kq+4*m}]')
        a(f'v_lshrrev_b32 v3, 3, v0\nv_lshlrev_b32 v3, 5, v3\nv_and_b32 v15, 3, v0\nv_lshl_add_u32 v3, v15, 3, v3\nv_and_b32 v15, 4, v0\nv_add_u32 v3, v3, v15\nv_add_u32 v3, {L_Q}, v3')
        a(f'v_mov_b32 v13, {L_TAG}\nv_mov_b32 v108, s84\nv_mov_b32 v109, s87')
        for m in range(4): a(f'v_cvt_pk_bf16_f32 v{44+4*m}, v{44+4*m}, v{45+4*m}\nds_write_b32 v3, v{44+4*m} offset:{m*256}')
        a('s_waitcnt lgkmcnt(0)\nds_write_b64 v13, v[108:109]')
    else:
        for kq in range(1, 4):
            for m in range(4): a(f'v_pk_add_f32 v[{44+2*m}:{45+2*m}], v[{44+2*m}:{45+2*m}], v[{44+8*kq+2*m}:{45+8*kq+2*m}]')
        a(f'v_lshlrev_b32 v3, 3, v0\nv_add_u32 v3, {L_Q}, v3\nv_mov_b32 v13, {L_TAG}\nv_mov_b32 v100, s84\nv_mov_b32 v101, s87')
        for m in range(4): a(f'v_cvt_pk_bf16_f32 v{52+m}, v{44+2*m}, v{45+2*m}')
        a('ds_write_b64 v3, v[52:53]\nds_write_b64 v3, v[54:55] offset:512\ns_waitcnt lgkmcnt(0)\nds_write_b64 v13, v[100:101]')
    stamp(a, P, 'B1')
    if P['pt']:
        a('v_mov_b32 v3, 0\ns_mov_b64 exec, 1\ns_lshl_b32 s37, s38, 19')
        srd(a, 48, 8, 's37', 64); a('buffer_load_dword v110, v3, s[48:51], 0 offen nt')
        a('s_mul_i32 s37, s31, 458752'); srd(a, 48, 12, 's37', 64); a('buffer_load_dword v111, v3, s[48:51], 0 offen nt')
        a('s_add_u32 s37, s37, 458688'); srd(a, 48, 12, 's37', 64); a('buffer_load_dword v112, v3, s[48:51], 0 offen nt')
        srd(a, 48, 20, None, 64); a('buffer_load_dword v113, v3, s[48:51], 0 offen nt')
        srd(a, 48, 22, None, 64); a('buffer_load_dword v114, v3, s[48:51], 0 offen nt')
        a('s_mov_b64 exec, -1')
    if P['abl'] & 1: a('s_branch L_now')
    a('s_cmp_ge_u32 s66, 4\ns_cbranch_scc0 L_noh')
    a('s_mul_i32 s67, s31, 7\ns_lshr_b32 s67, s67, 1\ns_and_b32 s39, s66, 3\ns_add_u32 s67, s67, s39\ns_mul_i32 s37, s64, 3584\ns_lshl_b32 s39, s67, 7\ns_add_u32 s37, s37, s39')
    a('s_mul_i32 s39, s65, 3584\ns_add_u32 s39, s39, 128')
    srd(a, 56, 16, 's37', 's39')
    dma_loop(a, 'L_w1', 16, P['DH'], 4, 8 * 3584, L_W1, P['wpol'])
    layernorm(a, XF, FF, TT, 16)
    a('s_waitcnt vmcnt(0)')
    unit_gemm(a, L_W1, 12, 5, 70, 6, 82)
    a('L_noh:')
    stamp(a, P, 'hpub')
    a('s_cmp_lt_u32 s32, 28\ns_cbranch_scc0 L_now')
    a('v_lshrrev_b32 v1, 3, v0\nv_mul_u32_u24 v1, 896, v1\nv_and_b32 v3, 7, v0\nv_lshl_add_u32 v1, v3, 4, v1')
    a('s_and_b32 s64, s32, 3\ns_lshl_b32 s65, s31, 2\ns_add_u32 s65, s65, s64')
    if not P['late']:
        a(f's_mul_i32 s37, s65, 50176\ns_lshl_b32 s39, s66, 7\ns_add_u32 s37, s37, s39')
        srd(a, 56, 20, 's37', 55 * 896 + 128)
        dma_loop(a, 'L_w2', 8, P['DH'], 1, 8 * 896, L_W2, P['mpol'])
        if not P['nowo']:
            a(f's_mul_i32 s37, s65, 114688\ns_lshl_b32 s39, s66, 7\ns_add_u32 s37, s37, s39\ns_sub_u32 s39, {4096*896}, s37')
            srd(a, 56, 12, 's37', 's39')
            dma_loop(a, 'L_wo', 16, P['DH'], 1, 8 * 896, L_WO, P['opol'])
    stamp(a, P, 'wodone')
    a('v_min_u32 v3, 13, v10\nv_lshlrev_b32 v4, 12, v9\nv_lshl_add_u32 v4, v3, 4, v4\nv_lshlrev_b32 v5, 3, v3')
    a(f's_lshl_b32 s61, s31, 15\ns_mul_i32 s37, s64, 224\ns_add_u32 s61, s61, s37\ns_and_b32 s37, s31, 1\ns_lshl_b32 s37, s37, 7\ns_add_u32 s61, s61, s37\ns_add_u32 s61, s61, {HBUF}')
    srd(a, 48, 18, None, 3584)
    a(f's_mul_i32 s37, s65, 112\nbuffer_load_dwordx2 v[20:21], v5, s[48:51], s37 offen\ns_add_u32 s60, s61, 16384\ns_mov_b32 s86, {P["spin"]}')
    a('L_hp:')
    for ps in range(2):
        for kq in range(4): a(f'buffer_load_dwordx4 v[{44+16*ps+4*kq}:{47+16*ps+4*kq}], v4, s[52:55], s{61-ps} offen offset:{kq*1024} sc1')
    a('s_waitcnt vmcnt(0)')
    tag_check(a, range(44, 76), 16, 17, 18)
    a('s_sub_u32 s86, s86, 1\ns_cbranch_scc1 L_hpd\ns_cbranch_vccz L_hpd\ns_sleep 16\ns_branch L_hp')
    a('L_hpd:')
    for ps in range(2):
        for kq in range(1, 4):
            for m in range(2): a(f'v_pk_add_f32 v[{44+16*ps+2*m}:{45+16*ps+2*m}], v[{44+16*ps+2*m}:{45+16*ps+2*m}], v[{44+16*ps+4*kq+2*m}:{45+16*ps+4*kq+2*m}]')
    unpack(a, 20, 24, 2)
    a('v_cvt_pk_bf16_f32 v16, v44, v45\nv_cvt_pk_bf16_f32 v17, v46, v47\nv_cvt_pk_bf16_f32 v18, v60, v61\nv_cvt_pk_bf16_f32 v19, v62, v63')
    unpack(a, 16, 32, 4)
    for i in range(8): a(f'v_add_f32 v{32+i}, v{32+i}, v{24+(i&3)}')
    for i in range(4): a(f'v_cvt_pk_bf16_f32 v{16+i}, v{32+2*i}, v{33+2*i}')
    unpack(a, 16, 32, 4)
    k0 = 2 * 0.7978845608028654 * math.log2(math.e); k1 = k0 * 0.044715
    a(f's_mov_b32 s62, {hex(f2u(-k1))}\nv_mov_b32 v15, {hex(f2u(-k0))}')
    for i in range(8): a(f'v_mul_f32 v{44+i}, v{32+i}, v{32+i}')
    for i in range(8): a(f'v_fma_f32 v{44+i}, v{44+i}, s62, v15')
    for i in range(8): a(f'v_mul_f32 v{44+i}, v{44+i}, v{32+i}')
    for i in range(8): a(f'v_exp_f32 v{44+i}, v{44+i}')
    for i in range(8): a(f'v_add_f32 v{44+i}, 1.0, v{44+i}')
    for i in range(8): a(f'v_rcp_f32 v{44+i}, v{44+i}')
    for i in range(8): a(f'v_mul_f32 v{32+i}, v{32+i}, v{44+i}')
    a('v_cmp_gt_u32 vcc, 14, v10')
    for i in range(4): a(f'v_cvt_pk_bf16_f32 v{16+i}, v{32+2*i}, v{33+2*i}')
    for i in range(4): a(f'v_cndmask_b32 v{16+i}, 0, v{16+i}, vcc')
    a(f'v_mul_u32_u24 v3, {HSTR}, v9\nv_lshl_add_u32 v3, v10, 3, v3\nv_add_u32 v3, {L_H}, v3')
    a(f'ds_write_b64 v3, v[16:17]\nds_write_b64 v3, v[18:19] offset:{4*HSTR}')
    if not P['late']:
        a(f'v_and_b32 v3, 7, v0\nv_mul_u32_u24 v3, {HSTR}, v3\nv_lshl_add_u32 v3, v9, 3, v3\nv_add_u32 v3, {L_H}, v3')
        a(f'v_bfe_u32 v4, v0, 2, 2\nv_lshl_add_u32 v4, v9, 2, v4\nv_lshlrev_b32 v4, 7, v4\nv_and_b32 v5, 3, v0\nv_lshl_add_u32 v4, v5, 3, v4\nv_add_u32 v4, {L_W2}, v4')
        a('s_waitcnt lgkmcnt(0)')
        for k in range(2): a(f'ds_read_b64 v[{16+4*k}:{17+4*k}], v3 offset:{k*64}\nds_read_b64 v[{18+4*k}:{19+4*k}], v3 offset:{k*64+32}')
        for t in range(4):
            for k in range(2):
                r = 44 + 8 * t + 4 * k
                a(f'ds_read_b64_tr_b16 v[{r}:{r+1}], v4 offset:{k*4096+t*32}\nds_read_b64_tr_b16 v[{r+2}:{r+3}], v4 offset:{k*4096+2048+t*32}')
        a(f'v_add_u32 v3, {L_C}, v2\ns_waitcnt lgkmcnt(0)')
        for k in range(2):
            for t in range(4):
                r = 44 + 8 * t + 4 * k; d = 76 + 4 * t
                a(f'v_mfma_f32_16x16x32_bf16 v[{d}:{d+3}], v[{16+4*k}:{19+4*k}], v[{r}:{r+3}], ' + ('0' if k == 0 else f'v[{d}:{d+3}]'))
        for t in range(4): a(f'ds_write_b128 v3, v[{76+4*t}:{79+4*t}] offset:{t*1024}')
    a('L_now:')
    stamp(a, P, 'mend')
    a(f'v_and_b32 v3, 15, v0\nv_lshlrev_b32 v3, 3, v3\nv_add_u32 v3, {L_ML}, v3\ns_mov_b32 s86, {P["spin"]*16}')
    a('L_mlw:')
    a('ds_read_b64 v[16:17], v3\ns_waitcnt lgkmcnt(0)\nv_cmp_eq_u32 vcc, -1, v16')
    a('s_sub_u32 s86, s86, 1\ns_cbranch_scc1 L_mlwd\ns_cbranch_vccz L_mlwd\ns_sleep 4\ns_branch L_mlw')
    a('L_mlwd:')
    d8 = ('quad_perm:[1,0,3,2]', 'quad_perm:[2,3,0,1]', 'row_half_mirror')
    a('v_mov_b32 v18, v16')
    for m in d8: a(f'v_max_f32_dpp v18, v18, v18 {m} row_mask:0xf bank_mask:0xf')
    a('v_sub_f32 v20, v16, v18\nv_mul_f32 v20, s83, v20\nv_exp_f32 v20, v20\nv_mul_f32 v19, v20, v17')
    for m in d8: a(f'v_add_f32_dpp v19, v19, v19 {m} row_mask:0xf bank_mask:0xf')
    a(f'v_mov_b32 v20, s84\nv_mov_b32 v21, s84\nv_lshlrev_b32 v4, 1, v0\ns_mov_b32 s72, s84\ns_mov_b32 s73, s84')
    a(f's_lshl_b32 s37, s38, 7\ns_add_u32 s37, s37, {MLX}\ns_mov_b64 exec, 0x101')
    hand_store(a, 'buffer_store_dwordx4 v[18:21], v4, s[52:55], s37 offen')
    a('s_mov_b64 exec, -1')
    stamp(a, P, 'mlpub')
    a(f's_and_b32 s61, s38, 0xfc\ns_lshl_b32 s61, s61, 7\ns_add_u32 s61, s61, {MLX}\ns_mov_b32 s86, {P["spin"]}')
    a('v_and_b32 v3, 3, v0\nv_lshlrev_b32 v3, 7, v3\nv_and_b32 v4, 8, v0\nv_lshl_add_u32 v3, v4, 1, v3')
    a('L_mlp2:')
    a(f's_sleep {P["msl"]}')
    a('buffer_load_dwordx4 v[24:27], v3, s[52:55], s61 offen sc1\ns_waitcnt vmcnt(0)\nv_cmp_ne_u64 vcc, s[72:73], v[26:27]')
    a('s_sub_u32 s86, s86, 1\ns_cbranch_scc1 L_mlp2d\ns_cbranch_vccnz L_mlp2')
    a('L_mlp2d:')
    stamp(a, P, 'mlok')
    a('v_mov_b32 v28, v24')
    for m in d8[:2]: a(f'v_max_f32_dpp v28, v28, v28 {m} row_mask:0xf bank_mask:0xf')
    a('v_sub_f32 v29, v24, v28\nv_mul_f32 v29, s83, v29\nv_exp_f32 v29, v29\nv_mul_f32 v29, v29, v25')
    for m in d8[:2]: a(f'v_add_f32_dpp v29, v29, v29 {m} row_mask:0xf bank_mask:0xf')
    a('v_sub_f32 v30, v16, v28\nv_mul_f32 v30, s83, v30\nv_exp_f32 v30, v30\nv_rcp_f32 v29, v29\nv_mul_f32 v30, v30, v29')
    a(f'v_lshlrev_b32 v3, 2, v0\nv_add_u32 v3, {L_F}, v3\ns_mov_b64 exec, 0xffff\nds_write_b32 v3, v30\ns_mov_b64 exec, -1')
    if P['tpf']:
        a('s_getpc_b64 s[56:57]\nL_pc2:\ns_add_u32 s56, s56, L_tail-L_pc2\ns_addc_u32 s57, s57, 0\ns_mov_b32 s58, L_end-L_tail\ns_mov_b32 s59, 0x20000')
        a('v_lshlrev_b32 v1, 6, v0\nbuffer_load_dword v15, v1, s[56:59], 0 offen')
    a('s_waitcnt vmcnt(0) lgkmcnt(0)')
    stamp(a, P, 'hend')
    stamp_store(a, P, stamp_items(P, H_PTS))
    a('s_endpgm')

def control2(a, P):
    c0, c1, cper, nsh = P['c0'], P['c1'], P['cper'], P['nsh']
    n = 256 // nsh
    a('L_ctl:')
    a(f'v_and_b32 v1, 7, v0\nv_lshlrev_b32 v1, 2, v1\nv_add_u32 v1, {L_PROG}, v1\nv_mov_b32 v2, 0\nds_write_b32 v1, v2\nds_write_b32 v1, v2 offset:16')
    a('s_waitcnt lgkmcnt(0)\ns_barrier')
    a(f's_and_b32 s37, s32, {nsh-1}\ns_lshl_b32 s37, s37, {int(math.log2(256 // nsh))}\ns_add_u32 s40, s26, s37\ns_addc_u32 s41, s27, 0')
    a(f's_mov_b32 s36, {c0}\ns_mov_b32 s61, {n // 2}\nv_mov_b32 v5, {L_PROG}')
    a('L_ck:')
    a(f's_mov_b32 s86, {P["spin"]*16}')
    a('L_ckw:')
    a('s_sleep 2\nds_read_b32 v3, v1\ns_waitcnt lgkmcnt(0)\nv_cmp_le_u32 vcc, s36, v3\ns_bcnt1_i32_b32 s37, vcc_lo')
    a('s_sub_u32 s86, s86, 1\ns_cbranch_scc1 L_ckd\ns_cmp_lt_u32 s37, 16\ns_cbranch_scc1 L_ckw')
    a('L_ckd:')
    a(f's_mov_b32 s60, 1\ns_atomic_add s60, s[40:41], 0 glc\ns_add_u32 s36, s36, {cper}\ns_waitcnt lgkmcnt(0)')
    a(f's_sub_i32 s60, s61, s60\ns_add_u32 s61, s61, {n}')
    a(f's_cmp_gt_i32 s60, {P["th1"]}\ns_cselect_b32 s39, {P["cm1"]}, 0\ns_cmp_gt_i32 s60, {P["th2"]}\ns_cselect_b32 s39, {P["cm2"]}, s39')
    a('v_mov_b32 v6, s39\nds_write_b32 v5, v6 offset:32')
    a(f's_cmp_le_u32 s36, {c1}\ns_cbranch_scc1 L_ck')
    a('s_endpgm')

def control3(a, P):
    c0, c1, cper = P['c0'], P['c1'], P['cper']
    a('L_ctl:')
    a(f'v_and_b32 v1, 7, v0\nv_lshlrev_b32 v1, 2, v1\nv_add_u32 v1, {L_PROG}, v1\nv_mov_b32 v2, 0\nds_write_b32 v1, v2\nv_mov_b32 v3, {P["mb"]}\nv_mov_b32 v4, {L_PROG}\nds_write_b32 v4, v3 offset:32')
    a('s_waitcnt lgkmcnt(0)\ns_barrier')
    srd(a, 52, 28, None, WS_USED)
    q_wait(a, P, 'L_cq')
    a('s_cmp_eq_u32 s87, 0\ns_cbranch_scc1 L_end')
    a(f's_lshl_b32 s61, s31, {P["lsh"]+5}\ns_add_u32 s61, s61, {CBUF}\ns_lshl_b32 s37, s32, {P["lsh"]}\ns_add_u32 s60, s61, s37\nv_and_b32 v8, 31, v0\nv_lshlrev_b32 v8, {P["lsh"]}, v8')
    a(f's_mov_b32 s36, {c0}\nv_mov_b32 v5, {L_PROG}\ns_mov_b32 s76, {P["mb"]}\ns_mov_b32 s77, {P["mo"]}')
    if P['xl']:
        FB = CBUF + 0x4000
        a(f's_lshl_b32 s72, s31, 7\ns_add_u32 s72, s72, {FB}\ns_mov_b32 s73, {c0}\ns_mov_b32 s74, {c0 + P["xl"]}\ns_add_u32 s40, s28, {FB}\ns_addc_u32 s41, s29, 0\nv_mov_b32 v9, s84')
    a('L_ck:')
    a(f's_mov_b32 s86, {P["spin"]*16}')
    a('L_ckw:')
    if P['cmin']:
        a('s_sleep 2\nds_read_b32 v3, v1\ns_waitcnt lgkmcnt(0)')
        for m in ('quad_perm:[1,0,3,2]', 'quad_perm:[2,3,0,1]', 'row_half_mirror'): a(f'v_min_u32_dpp v3, v3, v3 {m} row_mask:0xf bank_mask:0xf')
        a('v_readfirstlane_b32 s37, v3\ns_sub_u32 s86, s86, 1\ns_cbranch_scc1 L_end\ns_cmp_lt_u32 s37, s36\ns_cbranch_scc1 L_ckw\ns_mov_b32 s36, s37')
    else:
        a('s_sleep 2\nds_read_b32 v3, v1\ns_waitcnt lgkmcnt(0)\nv_cmp_le_u32 vcc, s36, v3\ns_bcnt1_i32_b32 s37, vcc_lo')
        a('s_sub_u32 s86, s86, 1\ns_cbranch_scc1 L_ckd\ns_cmp_lt_u32 s37, 16\ns_cbranch_scc1 L_ckw')
    a('L_ckd:')
    a('s_add_u32 s37, s84, s36\nv_mov_b32 v6, s37\ns_mov_b64 exec, 1\nbuffer_store_dword v6, v2, s[52:55], s60 offen\ns_mov_b64 exec, 0xffffffff')
    a('buffer_load_dword v7, v8, s[52:55], s61 offen sc1\ns_mov_b64 exec, -1')
    if P['xl']:
        a('s_cmp_lg_u32 s32, 0\ns_cbranch_scc1 L_xnp')
        a('L_xp:\ns_cmp_le_u32 s73, s36\ns_cbranch_scc0 L_xnp')
        a('s_mov_b64 exec, 1\nbuffer_store_dword v9, v2, s[52:55], s72 offen sc1\ns_mov_b64 exec, -1\ns_add_u32 s72, s72, 1024\ns_add_u32 s73, s73, 4\ns_branch L_xp')
        a('L_xnp:\ns_cmp_le_u32 s74, s36\ns_cbranch_scc0 L_xnr')
        a('L_xa:\ns_add_u32 s74, s74, 4\ns_cmp_le_u32 s74, s36\ns_cbranch_scc0 L_xr\ns_add_u32 s40, s40, 1024\ns_addc_u32 s41, s41, 0\ns_branch L_xa')
        a('L_xr:')
        for k in range(8): a(f's_load_dword s{64+k}, s[40:41], {k*128}')
        a('s_mov_b32 s37, 0\ns_waitcnt lgkmcnt(0)\ns_add_u32 s40, s40, 1024\ns_addc_u32 s41, s41, 0')
        for k in range(8): a(f's_cmp_lg_u32 s{64+k}, s84\ns_addc_u32 s37, s37, 0')
        a(f's_mov_b32 s76, {P["mb"]}\ns_mov_b32 s77, {P["mo"]}\ns_cmp_ge_u32 s37, {P["xthr"]}\ns_cselect_b32 s76, {P["xmb"]}, s76\ns_cselect_b32 s77, {P["xmo"]}, s77')
        a('L_xnr:')
    a(f's_sub_u32 s62, s36, {P["ca"]}\ns_add_i32 s63, s36, {P["cb"]}\ns_add_u32 s36, s36, {cper}\ns_waitcnt vmcnt(0)')
    a('v_subrev_u32 v7, s84, v7\nv_cmp_gt_u32 vcc, s62, v7\nv_cmp_lt_u32 s[64:65], s63, v7\nv_cmp_gt_u32 s[66:67], s82, v7')
    a('s_bcnt1_i32_b32 s37, vcc_lo\ns_and_b32 s64, s64, s66\ns_bcnt1_i32_b32 s39, s64')
    a(f's_cmp_ge_u32 s39, {P["n2c"]}\ns_cselect_b32 s39, s77, s76\ns_cmp_ge_u32 s37, {P["n1"]}\ns_cselect_b32 s39, {P["mt"]}, s39')
    a('v_mov_b32 v6, s39\nds_write_b32 v5, v6 offset:32')
    a(f's_cmp_le_u32 s36, {c1}\ns_cbranch_scc1 L_ck')
    a('s_endpgm')

def control(a, P):
    c0, c1, lag = P['c0'], P['c1'], P['lag']
    if P['cver'] == 2: return control2(a, P)
    if P['cver'] == 3: return control3(a, P)
    a('L_ctl:')
    a(f'v_and_b32 v1, 7, v0\nv_lshlrev_b32 v1, 2, v1\nv_add_u32 v1, {L_PROG}, v1\nv_mov_b32 v2, 0\nds_write_b32 v1, v2\nds_write_b32 v1, v2 offset:16')
    a('s_waitcnt lgkmcnt(0)\ns_barrier')
    srd(a, 52, 28, None, WS_USED)
    q_wait(a, P, 'L_cq')
    a('v_mov_b32 v7, s84')
    if P['cdbg']: a('s_mov_b32 s90, 0\ns_mov_b32 s91, 0\ns_mov_b32 s92, 0\ns_mov_b32 s93, 0\ns_mov_b32 s94, 0')
    cs, cper = P['cstr'], P['cper']; ms = max(cs * P['nrep'], 128)
    if P['nrep'] == 16: a(f's_lshl_b32 s60, s31, 1\ns_lshr_b32 s37, s32, 4\ns_add_u32 s60, s60, s37\ns_mul_i32 s60, s60, {cs}\ns_and_b32 s63, s32, 15')
    elif P['nrep'] == 4: a(f's_lshr_b32 s60, s31, 1\ns_mul_i32 s60, s60, {cs}\ns_and_b32 s63, s31, 1\ns_xor_b32 s63, s63, 1\ns_or_b32 s63, s63, s32')
    else: a(f's_mul_i32 s60, s31, {cs}\ns_mov_b32 s63, s32')
    a(f's_add_u32 s60, s60, {CBUF}\ns_add_u32 s40, s28, {CBUF}\ns_addc_u32 s41, s29, 0')
    a(f's_mov_b32 s61, {c0}\ns_mov_b32 s62, {c0 + lag}\nv_mov_b32 v5, {L_PROG}')
    a('L_ck:')
    a(f's_min_u32 s36, s61, s62\ns_cmp_eq_u32 s63, 0\ns_cselect_b32 s36, s36, s62\ns_mov_b32 s86, {P["spin"]*16}')
    a('L_ckw:')
    a('s_sleep 2\nds_read_b32 v3, v1\ns_waitcnt lgkmcnt(0)\nv_cmp_le_u32 vcc, s36, v3\ns_bcnt1_i32_b32 s37, vcc_lo')
    a('s_sub_u32 s86, s86, 1\ns_cbranch_scc1 L_ckd\ns_cmp_lt_u32 s37, 16\ns_cbranch_scc1 L_ckw')
    a('L_ckd:')
    a('s_cmp_lg_u32 s63, 0\ns_cbranch_scc1 L_cknp\ns_cmp_lg_u32 s36, s61\ns_cbranch_scc1 L_cknp')
    a(f's_mov_b64 exec, 1\nbuffer_store_dword v7, v2, s[52:55], s60 offen sc1\ns_mov_b64 exec, -1\ns_add_u32 s60, s60, {ms}\ns_add_u32 s61, s61, {cper}')
    a('L_cknp:')
    a('s_cmp_lg_u32 s36, s62\ns_cbranch_scc1 L_ck')
    if cs == 4: a(f's_load_dwordx{P["nrep"]} s[64:{63+P["nrep"]}], s[40:41], 0')
    else:
        for k in range(P['nrep']): a(f's_load_dword s{64+k}, s[40:41], {k*cs}')
    a(f's_add_u32 s62, s62, {cper}\ns_mov_b32 s37, 0\ns_waitcnt lgkmcnt(0)\ns_add_u32 s40, s40, {ms}\ns_addc_u32 s41, s41, 0')
    for k in range(P['nrep']): a(f's_cmp_lg_u32 s{64+k}, s84\ns_addc_u32 s37, s37, 0')
    if P['cdbg']: a('s_lshl_b32 s39, s37, 2\ns_lshl_b32 s39, 1, s39\ns_cmp_lt_u32 s37, 8\ns_cselect_b32 s39, s39, 0\ns_add_u32 s90, s90, s37\ns_cmp_eq_u32 s37, 0\ns_addc_u32 s91, s91, 0\ns_cmp_ge_u32 s37, 4\ns_addc_u32 s92, s92, 0\ns_cmp_ge_u32 s37, 7\ns_addc_u32 s93, s93, 0\ns_add_u32 s94, s94, 1')
    a(f's_cmp_ge_u32 s37, {P["thr"]}\ns_cselect_b32 s39, {P["cmask"]}, 0\nv_mov_b32 v6, s39\nds_write_b32 v5, v6 offset:32')
    a(f's_cmp_le_u32 s62, {c1}\ns_cbranch_scc1 L_ck')
    if P['cdbg']:
        for k in range(5): a(f's_atomic_add s{90+k}, s[26:27], {4*k}')
        a('s_waitcnt lgkmcnt(0)')
    a('s_endpgm')

def body(P):
    a = Asm(); HPOL[0] = P['hpol']
    a('s_cmp_ge_u32 s2, 256\ns_cbranch_scc1 L_end')
    if P['perm'] == 1: a('s_lshr_b32 s3, s2, 5\ns_lshl_b32 s2, s2, 3\ns_or_b32 s2, s2, s3\ns_and_b32 s2, s2, 255')
    if P['perm'] == 2: a('s_lshr_b32 s3, s2, 7\ns_xor_b32 s2, s2, s3')
    a('s_load_dwordx16 s[4:19], s[0:1], 0\ns_load_dwordx8 s[20:27], s[0:1], 64\ns_load_dwordx2 s[28:29], s[0:1], 96')
    a('v_lshrrev_b32 v1, 6, v0\nv_and_b32 v0, 63, v0\nv_readfirstlane_b32 s30, v1')
    a('s_and_b32 s31, s2, 7\ns_lshr_b32 s32, s2, 3')
    if P['bmap'] == 0: a('s_lshr_b32 s33, s32, 2\ns_and_b32 s34, s32, 3')
    else: a('s_and_b32 s33, s32, 7\ns_lshr_b32 s34, s32, 3')
    a('s_lshl_b32 s37, s31, 2\ns_add_u32 s34, s34, s37\ns_lshl_b32 s38, s33, 5\ns_add_u32 s38, s38, s34')
    stamp_init(a, P)
    stamp(a, P, 'entry')
    a(f's_cmp_ge_u32 s30, 8\ns_cbranch_scc1 L_helper')
    streamer(a, P, lambda: (helper(a, P), control(a, P) if P['ctl'] else None))
    a('L_end:\ns_endpgm')
    txt, n = a.text()
    return txt, n

def vgprs(P): return max(56 + 4 * P['R'] + 4, 156)

def kernel(P):
    txt, n = body(P)
    nm = P['name']
    txt = txt.replace('L_', f'L{nm[-24:]}_') if P.get('uniq') else txt
    return txt

def final_file(P):
    ref = open(f'cdna_kernels/{NAME}.s.ref').read()
    head = ref[:ref.index('; Override launch')]
    nm = P['name']; vg = vgprs(P)
    return head + f'''; One launch, 256 workgroups (x = id & 7 = kv head, r = id >> 3 = batch row * 4 + key split), 8 streaming waves + 2 helper waves.
; Written with a generator script (register allocation, unrolling and wait-state padding are the script's).
; Hand-offs between workgroups go through d_ws and carry a tag = (word 0 of d_ws at entry) + constant; word 0 is advanced
; at the end of the launch, so that a launch tells its own hand-offs from older contents. Readers poll with sc1 loads.
; Writers use write-through (sc1) stores, except where all 32 workgroups of a kv head have reported the same XCD in this
; launch: then the store may stay in that XCD L2.
; Wave 9 balances memory bandwidth among the workgroups that share an XCD: each posts how many loads it has issued, and one
; that is ahead of the others keeps fewer loads in flight, one that is behind keeps more; one workgroup per kv head also flags
; its progress to the other XCDs, and all hold back a little while some XCD lags (speed only, no effect on results).
; @launch grid=(256,1,1) block=({block(P)},1,1) lds={LDS_BYTES}
.amdgcn_target "amdgcn-amd-amdhsa--gfx950"
.text
.globl {nm}
.p2align 8
.type {nm},@function
{nm}:
{kernel(P)}
.section .rodata,"a"
.p2align 6
.amdhsa_kernel {nm}
  .amdhsa_next_free_vgpr {vg}
  .amdhsa_next_free_sgpr 102
  .amdhsa_accum_offset {(vg+3)//4*4}
  .amdhsa_group_segment_fixed_size 0
  .amdhsa_kernarg_size 104
  .amdhsa_user_sgpr_count 2
  .amdhsa_user_sgpr_kernarg_segment_ptr 1
  .amdhsa_system_sgpr_workgroup_id_x 1
.end_amdhsa_kernel
'''

if __name__ == '__main__':
    P = dict(DEF)
    out = f'cdna_kernels/{NAME}.s'
    for kv in sys.argv[1:]:
        k, v = kv.split('=', 1)
        if k == 'out': out = v
        else: P[k] = type(DEF[k])(v) if not isinstance(DEF[k], bool) else v == '1'
    open(out, 'w').write(final_file(P))
    print('wrote', out)
```

```python
import sys, math, struct
from asmlib import Asm

NAME = 'parallel_sum__gqa_block_cached__mixer_channel_mlp__decode'
def f2u(x): return struct.unpack('<I', struct.pack('<f', x))[0]

CBUF, XBUF, MLX, PBUF, HBUF, QBUF, OBUF, WS_USED = 0x1D0000, 0x8000, 0x10000, 0x20000, 0x90000, 0xD0000, 0x200000, 0x280000
TMASK = 0x3FF
QMASK = 0xFF
STAMP_OFF = 536870912 - (1 << 20)
L_WQ = 0; L_W1 = 16384; L_WO = 32768; L_W2 = 49152
L_PART = 57344
L_C = L_PART + 16384
OSTR = 264; HSTR = 136
L_O = L_C + 4096
L_H = L_O + 8 * OSTR
L_Q = L_H + 8 * HSTR
L_ML = L_Q + 1024
L_F = L_ML + 128
L_TAG = L_F + 64
L_PROG = L_TAG + 16
LDS_BYTES = L_PROG + 48
assert L_Q % 16 == 0 and LDS_BYTES > 81920
OOB = 0x7F000000
C_EXP = math.log2(math.e) / 16.0

DEF = dict(R=26, D=3, D0=3, DH=8, qsl=16, msl=24, cpf=1, tpf=0, orc=0, orc0=60, omask=15, perm=0, outpol='', late=2, hpol='', hw=8, abl=0, lt=1, ov=1, pt=0, podd=0, peven=0, p0=0, vt=0, wb=0, amap='13 14 9 10 12 17 18 16 15 11 1024 8 513 0 128', hpat='', swz=0, ppol='sc1', lpol='sc1', nocomp=0, nowo=0, ctl=1, lag=0, thr=3, c0=28, c1=116, cmask=5, cver=3, nrep=8, ca=6, cb=0, n1=1, n2c=6, mb=4, mt=5, mo=0, mper=4, xl=6, xthr=1, xmb=5, xmo=4, lsh=5, cmin=1, b4=0, rex=1, qx=1, fast=0, stag=0, stp=4, cdbg=0, th1=8, th2=999, cm1=5, cm2=5, nsh=2, crd=2, iw=0, iwd=3, iwp=2, cstr=128, cper=2, kpat='3', vpat='3', loc=1, n2=80, xretry=1, Dend=4, nend=8, gsl=0, fsl=0, fthr=0, fsl2=24, nornd=0, nom=0, pol='nt', wpol='nt', xpol='', opol='nt', mpol='nt', diag=False, budget=2,
           name=NAME + '_kernel', spin=1 << 16, hold=0, bmap=0, pts='start+qpub+B1+Kdone+hend+B2+end')
def block(P): return 640 if P['ctl'] else 576

def srd(a, n, base, off, size):
    if off is None:
        a(f's_mov_b32 s{n}, s{base}\ns_mov_b32 s{n+1}, s{base+1}')
    else:
        a(f's_add_u32 s{n}, s{base}, {off}\ns_addc_u32 s{n+1}, s{base+1}, 0')
    a(f's_mov_b32 s{n+2}, {size}\ns_mov_b32 s{n+3}, 0x20000')

def wave_sum(a, v, s):
    for m in ('row_shr:1', 'row_shr:2', 'row_shr:4', 'row_shr:8'):
        a(f'v_add_f32_dpp v{v}, v{v}, v{v} {m} row_mask:0xf bank_mask:0xf')
    a(f'v_add_f32_dpp v{v}, v{v}, v{v} row_bcast:15 row_mask:0xa bank_mask:0xf')
    a(f'v_add_f32_dpp v{v}, v{v}, v{v} row_bcast:31 row_mask:0xc bank_mask:0xf')
    a(f'v_readlane_b32 s{s}, v{v}, 63')

def rnd_bf16(a, v):
    a(f'v_cvt_pk_bf16_f32 v{v}, v{v}, v{v}\nv_and_b32 v{v}, 0xffff0000, v{v}')

def unpack(a, src, dst, n):
    for i in range(n):
        a(f'v_and_b32 v{dst+2*i+1}, 0xffff0000, v{src+i}\nv_lshlrev_b32 v{dst+2*i}, 16, v{src+i}')

def row_sum(a, v, t):
    a(f'v_add_f32_dpp v{v}, v{v}, v{v} row_ror:8 row_mask:0xf bank_mask:0xf')
    xgroup(a, 'v_add_f32', v, t)

def layernorm(a, X, F, T, nq=28):
    pr = lambda r: f'v[{r}:{r+1}]'
    unpack(a, X, F, 28)
    a(f'v_pk_add_f32 {pr(T)}, {pr(F)}, {pr(F+2)}\nv_pk_add_f32 {pr(T+2)}, {pr(F+4)}, {pr(F+6)}')
    for i in range(4, 28): a(f'v_pk_add_f32 {pr(T+2*(i&1))}, {pr(T+2*(i&1))}, {pr(F+2*i)}')
    a(f'v_pk_add_f32 {pr(T)}, {pr(T)}, {pr(T+2)}\nv_add_f32 v{T}, v{T}, v{T+1}')
    row_sum(a, T, T + 1)
    a(f'v_mul_f32 v{T}, {hex(f2u(-1/448))}, v{T}\nv_mov_b32 v{T+1}, v{T}')
    for i in range(28):
        d = T + 4 + 2 * (i & 1)
        a(f'v_pk_add_f32 {pr(d)}, {pr(F+2*i)}, {pr(T)}')
        if i == 0: a(f'v_pk_mul_f32 {pr(T+2)}, {pr(d)}, {pr(d)}')
        else: a(f'v_pk_fma_f32 {pr(T+2)}, {pr(d)}, {pr(d)}, {pr(T+2)}')
    a(f'v_add_f32 v{T+2}, v{T+2}, v{T+3}')
    row_sum(a, T + 2, T + 3)
    rnd_bf16(a, T)
    a(f'v_mov_b32 v{T+1}, v{T}\nv_mul_f32 v{T+2}, {hex(f2u(1/448))}, v{T+2}')
    rnd_bf16(a, T + 2)
    a(f'v_add_f32 v{T+2}, {hex(f2u(1e-5))}, v{T+2}')
    rnd_bf16(a, T + 2)
    a(f'v_sqrt_f32 v{T+2}, v{T+2}')
    for i in range(nq): a(f'v_pk_add_f32 {pr(F+2*i)}, {pr(F+2*i)}, {pr(T)}')
    rnd_bf16(a, T + 2)
    a(f'v_rcp_f32 v{T+2}, v{T+2}')
    for i in range(nq): a(f'v_cvt_pk_bf16_f32 v{X+i}, v{F+2*i}, v{F+2*i+1}')
    a(f'v_mov_b32 v{T+3}, v{T+2}')
    unpack(a, X, F, nq)
    for i in range(nq): a(f'v_pk_mul_f32 {pr(F+2*i)}, {pr(F+2*i)}, {pr(T+2)}')
    for i in range(nq): a(f'v_cvt_pk_bf16_f32 v{X+i}, v{F+2*i}, v{F+2*i+1}')

def xgroup(a, op, v, t):
    a(f'v_mov_b32 v{t}, v{v}\nv_permlane16_swap_b32 v{v}, v{t}\n{op} v{v}, v{v}, v{t}')
    a(f'v_mov_b32 v{t}, v{v}\nv_permlane32_swap_b32 v{v}, v{t}\n{op} v{v}, v{v}, v{t}')

S_PTS = ['start', 'k0', 'fst', 'fcnt', 's8', 's44', 's96', 'skarg', 'siss0', 'pst', 'g2ok', 'sB1a', 'sB1', 'Kdone', 'Vlast', 'B2', 'ost', 'gok', 'B3', 'end']
M_PTS = ['mstart', 'mw1', 'mw2', 'mend']
H_PTS = ['entry', 'hstart', 'mend', 'locv', 'xst', 'xid', 'hpub', 'wob', 'qack', 'xland', 'lndone', 'wtpub', 'wtok', 'hkarg', 'wqiss', 'hB0', 'wqland', 'qpub', 'qp1', 'qok', 'B1', 'wodone', 'mlpub', 'mlok', 'hend']
def pts(P): return P['pts'].split('+') if isinstance(P['pts'], str) else P['pts']
def stamp(a, P, name):
    if P['diag'] and name in pts(P):
        reg = 88 + 2 * pts(P).index(name)
        a(f's_memrealtime s[{reg}:{reg+1}]\ns_waitcnt lgkmcnt(0)')
def stamp_items(P, lst): return [(i, 88 + 2 * i) for i, n in enumerate(pts(P)) if n in lst]
def stamp_init(a, P):
    if P['diag']:
        for i in range(7): a(f's_mov_b64 s[{88+2*i}:{89+2*i}], 0')

def stamp_store(a, P, items, hw=False):
    if not P['diag']: return
    a('s_waitcnt lgkmcnt(0)')
    a(f's_lshl_b32 s37, s2, 6\ns_add_u32 s37, s37, {STAMP_OFF}')
    srd(a, 40, 28, 's37', 64)
    a('s_mov_b64 exec, 1\nv_mov_b32 v1, 0')
    for idx, reg in items:
        a(f'v_mov_b32 v2, s{reg}\nv_mov_b32 v3, s{reg+1}\nbuffer_store_dwordx2 v[2:3], v1, s[40:43], 0 offen offset:{idx*8}')
    if hw:
        a('s_getreg_b32 s38, hwreg(HW_REG_XCC_ID)\ns_getreg_b32 s39, hwreg(HW_REG_HW_ID)')
        a('v_mov_b32 v2, s38\nv_mov_b32 v3, s39\nbuffer_store_dwordx2 v[2:3], v1, s[40:43], 0 offen offset:56')
    a('s_mov_b64 exec, -1')

def q_wait(a, P, lab):
    a(f's_mov_b32 s82, {TMASK}\nv_mov_b32 v5, {L_TAG}\ns_mov_b32 s86, {P["spin"]*16}')
    a(f'{lab}:\nds_read_b64 v[6:7], v5\ns_waitcnt lgkmcnt(0)\nv_cmp_eq_u32 vcc, -1, v7')
    a(f's_sub_u32 s86, s86, 1\ns_cbranch_scc1 {lab}d\ns_cbranch_vccz {lab}d\ns_sleep 2\ns_branch {lab}\n{lab}d:')
    a(f'v_readfirstlane_b32 s84, v6\nv_readfirstlane_b32 s87, v7\ns_and_b32 s85, s84, {TMASK}')

def streamer(a, P, mid):
    R, D, D0, pol = P['R'], P['D'], P['D0'], P['pol']
    Q, S, DT, RING = 8, 16, 48, 56
    slot = lambda i: RING + 4 * (i % R)
    sl = lambda i: f'v[{slot(i)}:{slot(i)+3}]'
    a('; ==== streaming waves 0..7: 128 keys each; first K loads go out before anything else')
    stamp(a, P, 'start')
    if P['hold'] or P['orc']: a('s_memrealtime s[98:99]')
    am = [int(x) for x in P['amap'].split()]
    ab, gb, wb, xm = am[0:2], am[2:7], am[7:10], am[10:15]
    a(f'v_and_b32 v1, 3, v0\nv_lshlrev_b32 v1, 4, v1\nv_lshrrev_b32 v3, 4, v0\nv_lshl_add_u32 v1, v3, 6, v1')
    a(f'v_bfe_u32 v3, v0, 2, 1\nv_lshl_add_u32 v1, v3, {ab[0]}, v1\nv_bfe_u32 v3, v0, 3, 1\nv_lshl_add_u32 v1, v3, {ab[1]}, v1')
    if P['fast'] and am == [13, 14, 9, 10, 12, 17, 18, 16, 15, 11, 1024, 8, 513, 0, 128]:
        a('s_lshl_b32 s37, s38, 19\ns_lshl_b32 s35, s2, 7\ns_and_b32 s35, s35, 0x600\ns_lshr_b32 s36, s32, 4\ns_lshl_b32 s36, s36, 18\ns_or_b32 s35, s35, s36')
        a('s_lshr_b32 s36, s2, 1\ns_xor_b32 s36, s36, s32\ns_xor_b32 s36, s36, s30\ns_and_b32 s36, s36, 1\ns_lshl_b32 s36, s36, 12\ns_or_b32 s35, s35, s36')
        a('s_brev_b32 s36, s30\ns_lshr_b32 s36, s36, 30\ns_lshl_b32 s36, s36, 15\ns_or_b32 s35, s35, s36\ns_lshr_b32 s36, s30, 2\ns_lshl_b32 s36, s36, 11\ns_or_b32 s35, s35, s36')
    else:
        a('s_lshl_b32 s37, s38, 19\ns_mov_b32 s35, 0')
        use = 0
        for m in xm: use |= m
        a('s_add_u32 s36, s30, s32\ns_and_b32 s36, s36, 7' if use & 7 else 's_mov_b32 s36, 0')
        if use & 0xf8: a('s_lshl_b32 s39, s32, 3\ns_or_b32 s36, s36, s39')
        if use & 0x700: a('s_lshl_b32 s39, s31, 8\ns_or_b32 s36, s36, s39')
        if use & 0x3800: a('s_lshl_b32 s39, s30, 11\ns_or_b32 s36, s36, s39')
        for k in range(5):
            if xm[k] and xm[k] & (xm[k] - 1) == 0:
                a(f's_bfe_u32 s39, s36, {0x10000 + xm[k].bit_length() - 1}\ns_lshl_b32 s39, s39, {gb[k]}\ns_or_b32 s35, s35, s39')
            elif xm[k]:
                a(f's_and_b32 s39, s36, {xm[k]}\ns_bcnt1_i32_b32 s39, s39\ns_and_b32 s39, s39, 1\ns_lshl_b32 s39, s39, {gb[k]}\ns_or_b32 s35, s35, s39')
        for k in range(3): a(f's_bfe_u32 s39, s30, {0x10000 + k}\ns_lshl_b32 s39, s39, {wb[k]}\ns_or_b32 s35, s35, s39')
    goff = lambda G: sum(((G >> k) & 1) << gb[k] for k in range(5))
    a('s_waitcnt lgkmcnt(0)')
    stamp(a, P, 'skarg')
    srd(a, 40, 6, 's37', 524288)
    lt = P['lt']
    def lg(i):
        j = i % 64
        if lt and i >= 112: return 24 + ((i - 112) & 7), (i - 112) >> 3
        return j >> 1, j & 1
    vidx = lambda T, g, e: (112 + 8 * e + g) if (lt and T == 3) else (64 + 16 * T + 2 * g + e)
    def issue(i):
        G, t = lg(i)
        if t == 0 or (lt and i >= 112): a(f's_xor_b32 s36, s35, {goff(G)}')
        r, va = ('s[40:43]', 'v1') if i < 64 else ('s[44:47]', 'v2')
        a(f'buffer_load_dwordx4 {sl(i)}, {va}, {r}, s36 offen offset:{t*256} {pol}')
    for i in range(D0): issue(i)
    stamp(a, P, 'siss0')
    a('s_branch L_s2')
    mid()
    a('L_s2:')
    a(f'v_and_b32 v2, 15, v0\nv_lshlrev_b32 v2, 4, v2\nv_bfe_u32 v3, v0, 4, 1\nv_lshl_add_u32 v2, v3, {ab[0]}, v2\nv_lshrrev_b32 v3, 5, v0\nv_lshl_add_u32 v2, v3, {ab[1]}, v2')
    srd(a, 44, 8, 's37', 524288)
    if P['vt']:
        a(f'v_mov_b32 v3, 0\nbuffer_load_dword v4, v3, s[44:47], s35 offen {pol}')
    a('s_barrier')
    srd(a, 52, 28, None, WS_USED)
    for e in range(2):
        for r in range(4):
            m16 = (0x11 << r) << (8 * e); m32 = m16 | (m16 << 16)
            a(f's_mov_b32 s{64+2*(4*e+r)}, {hex(m32)}\ns_mov_b32 s{65+2*(4*e+r)}, {hex(m32)}')
    a('s_mov_b32 s80, 0x05040100\ns_mov_b32 s81, 0x07060302')
    for i in range(D0, R):
        if i == D0 + 1: stamp(a, P, 'k0')
        dh = int(P['hpat'][i - D0]) if i - D0 < len(P['hpat']) else D0
        if P['vt'] and i < D0 + D: dh += 1
        a(f's_waitcnt vmcnt({dh-1})'); issue(i)
        if i == 8 + D: stamp(a, P, 's8')
    a('v_bfe_u32 v3, v0, 2, 1\nv_lshlrev_b32 v3, 9, v3\nv_and_b32 v4, 3, v0\nv_lshl_add_u32 v3, v4, 4, v3')
    a(f'v_lshrrev_b32 v4, 4, v0\nv_lshl_add_u32 v3, v4, 6, v3\nv_add_u32 v3, {L_Q}, v3')
    a('; ---- K prefetch ring is full: wait for q (LDS flag from the helper wave)')
    stamp(a, P, 'sB1a')
    q_wait(a, P, 'L_sq')
    stamp(a, P, 'sB1')
    a(f'ds_read_b128 v[{Q}:{Q+3}], v3\nds_read_b128 v[{Q+4}:{Q+7}], v3 offset:256')
    a(f'v_mov_b32 v4, 0xff800000\ns_mov_b32 s83, {hex(f2u(C_EXP))}\ns_waitcnt lgkmcnt(0)')
    chunks = []
    def kdpp(G):
        d = DT + 4 * (G & 1)
        a(f'v_mov_b32_dpp v{S+G}, v{d} quad_perm:[0,0,0,0] row_mask:0xf bank_mask:0xf')
        for r in range(1, 4):
            a(f'v_add_f32_dpp v{S+G}, v{d+r}, v{S+G} quad_perm:[{r},{r},{r},{r}] row_mask:0xf bank_mask:0xf')
        if G & 1:
            if not P['nornd']: a(f'v_cvt_pk_bf16_f32 v5, v{S+G-1}, v{S+G}\nv_lshlrev_b32 v{S+G-1}, 16, v5\nv_and_b32 v{S+G}, 0xffff0000, v5')
            a(f'v_max3_f32 v4, v4, v{S+G-1}, v{S+G}')
    def kchunk(G):
        def fn():
            d = DT + 4 * (G & 1)
            a(f'v_mfma_f32_16x16x32_bf16 v[{d}:{d+3}], {sl(2*G)}, v[{Q}:{Q+3}], 0')
            a(f'v_mfma_f32_16x16x32_bf16 v[{d}:{d+3}], {sl(2*G+1)}, v[{Q+4}:{Q+7}], v[{d}:{d+3}]')
            if G: kdpp(G - 1)
        return fn
    for G in range(32): chunks.append((2 * G + 1, [2 * G, 2 * G + 1], kchunk(G)))
    def sm0():
        kdpp(31)
        xgroup(a, 'v_max_f32', 4, 5)
        a('v_mul_f32 v6, s83, v4\nv_mov_b32 v7, 0')
        stamp(a, P, 'Kdone')
    chunks.append((63, [], sm0))
    def sm(k):
        def fn():
            for g in range(8 * k, 8 * k + 8): a(f'v_fma_f32 v{S+g}, v{S+g}, s83, -v6')
            for g in range(8 * k, 8 * k + 8): a(f'v_exp_f32 v{S+g}, v{S+g}')
            for g in range(8 * k, 8 * k + 8): a(f'v_add_f32 v7, v7, v{S+g}')
            for i in range(4 * k, 4 * k + 4): a(f'v_cvt_pk_bf16_f32 v{S+i}, v{S+2*i}, v{S+2*i+1}')
        return fn
    for k in range(4): chunks.append((63, [], sm(k)))
    def sm_end():
        xgroup(a, 'v_add_f32', 7, 5)
        a(f'v_mov_b32 v5, v7\nv_bfe_u32 v3, v0, 2, 1\nv_lshlrev_b32 v3, 6, v3\ns_lshl_b32 s37, s30, 3\ns_add_u32 s37, s37, {L_ML}\nv_add_u32 v3, s37, v3')
        a('s_mov_b64 exec, 0x11\nds_write_b64 v3, v[4:5]\ns_mov_b64 exec, -1')
    chunks.append((63, [], sm_end))
    AT = [32, 36]; PT = [40, 44, 8, 12]; ACC = DT
    late_ops = []; extra = [0]
    cnt = [0, 0]
    def vchunk(T, e, r):
        def fn():
            A = AT[cnt[0] & 1]; cnt[0] += 1
            mk = 64 + 2 * (4 * e + r)
            for p in range(4): a(f'v_cndmask_b32 v{A+p}, 0, v{S+4*T+p}, s[{mk}:{mk+1}]')
            for jj in range(2):
                j = 4 * jj + r; m, hh = j >> 1, j & 1
                B = PT[cnt[1] & 3]; cnt[1] += 1
                for p in range(4):
                    ev = vidx(T, 2 * p, e); od = vidx(T, 2 * p + 1, e)
                    a(f'v_perm_b32 v{B+p}, v{slot(od)+m}, v{slot(ev)+m}, s{80+hh}')
                c = '0' if (T == 0 and e == 0 and r == 0) else f'v[{ACC+4*jj}:{ACC+4*jj+3}]'
                a(f'v_mfma_f32_16x16x32_bf16 v[{ACC+4*jj}:{ACC+4*jj+3}], v[{A}:{A+3}], v[{B}:{B+3}], {c}')
        return fn
    for T in range(4):
        for e in range(2):
            for r in range(4):
                if lt and T == 3 and e == 1: continue
                fr = [vidx(T, g, e) for g in range(8)] if r == 3 else []
                chunks.append((vidx(T, 7, e), fr, vchunk(T, e, r)))
    if lt:
        FRG = lambda j: slot(112 + j)
        AM = [32, 36, 40, 44]
        def pre(p):
            def fn2():
                if p == 0:
                    for r in range(4):
                        for q in range(4): a(f'v_cndmask_b32 v{AM[r]+q}, 0, v{S+12+q}, s[{72+2*r}:{73+2*r}]')
                for j in range(8):
                    jj = (j & 1) * 4 + (j >> 1); m, hh = jj >> 1, jj & 1
                    a(f'v_perm_b32 v{FRG(jj)+p}, v{slot(vidx(3, 2*p+1, 1))+m}, v{slot(vidx(3, 2*p, 1))+m}, s{80+hh}')
                if p == 3:
                    for j in range(8):
                        jj = (j & 1) * 4 + (j >> 1); r = jj & 3; d = ACC + 4 * (jj >> 2)
                        a(f'v_mfma_f32_16x16x32_bf16 v[{d}:{d+3}], v[{AM[r]}:{AM[r]+3}], v[{FRG(jj)}:{FRG(jj)+3}], v[{d}:{d+3}]')
                        if P['late'] == 2 and j in (1, 3, 5): a(late_ops[j // 2])
                if P['late'] == 3 and p == 2:
                    for x in late_ops: a(x)
                    extra[0] = 3
            return fn2
        for p in range(4): chunks.append((vidx(3, 2 * p + 1, 1), [], pre(p)))
    freed = set(); ci = 0; landed = -1
    XR = RING + 4 * R
    if P['orc']: a('s_mov_b32 s62, 0')
    if P['stag']: a(f's_and_b32 s37, s30, {P["stp"]-1}\ns_mov_b32 s62, {P["stag"] | (P["stag"] << P["stp"])}\ns_lshr_b32 s62, s62, s37')
    if P['iw']: a(f's_mov_b32 s62, 0\ns_lshl_b32 s37, s30, 2\ns_add_u32 s37, s37, {L_PROG}\nv_mov_b32 v{XR+3}, s37\nv_and_b32 v{XR+2}, 7, v0\nv_lshlrev_b32 v{XR+2}, 2, v{XR+2}\nv_add_u32 v{XR+2}, {L_PROG}, v{XR+2}')
    if P['podd'] or P['peven']:
        a(f's_getreg_b32 s62, hwreg(HW_REG_XCC_ID)\ns_bitcmp1_b32 s62, 0\ns_mov_b32 s62, {P["peven"]}\ns_cselect_b32 s62, {P["podd"]}, s62')
    if P['ctl']: a(f's_mov_b32 s62, {P["mb"] if P["cver"] == 3 else 0}\ns_lshl_b32 s37, s30, 2\ns_add_u32 s37, s37, {L_PROG}\nv_mov_b32 v{XR+3}, s37\nv_mov_b32 v{XR+2}, {L_PROG}')
    def run_chunk(issued):
        nonlocal ci, landed
        nd, fr, fn = chunks[ci]; ci += 1
        if nd > landed:
            a(f's_waitcnt vmcnt({issued-1-nd})'); landed = nd
        if not (P['nocomp'] and fr is not None and fn.__name__ == 'fn' and ci <= len(chunks) - 8): fn()
        freed.update(fr)
    for i in range(R, 128):
        while (i - R) not in freed: run_chunk(i)
        Di = P['Dend'] if (P['Dend'] and i >= 128 - P['nend']) else D
        pat = P['kpat'] if i < 64 else P['vpat']
        if pat and not (P['Dend'] and i >= 128 - P['nend']): Di = int(pat[i % len(pat)])
        if P['ctl'] and P['c0'] + P['lag'] < i <= P['c1'] + 6:
            if i % P['crd'] == P['crd'] - 1: a(f's_waitcnt lgkmcnt(0)\nv_readfirstlane_b32 s62, v{XR+1}')
            if Di == 3 and P['b4']:
                bit = ((P['mb'] | P['mt'] | P['mo']) >> (i % 4) & 1)
                a(f's_waitcnt vmcnt(3)\ns_bitcmp1_b32 s62, 4\ns_cbranch_scc1 L_b{i}\ns_waitcnt vmcnt(2)')
                if bit: a(f's_bitcmp0_b32 s62, {i % 4}\ns_cbranch_scc1 L_b{i}\ns_waitcnt vmcnt(1)')
                a(f'L_b{i}:'); Di = 4
            elif Di == 3 and ((P['cmask'] if P['cver'] == 1 else P['cm1'] | P['cm2'] if P['cver'] == 2 else P['mb'] | P['mt'] | P['mo'] | (P['xmb'] | P['xmo'] if P['xl'] else 0)) >> (i % P['mper']) & 1):
                a(f's_waitcnt vmcnt(2)\ns_bitcmp0_b32 s62, {i % P["mper"]}\ns_cbranch_scc1 L_b{i}\ns_waitcnt vmcnt(1)\nL_b{i}:')
        if P['iw'] and 30 < i <= 122:
            if i % P['iwp'] == 1:
                a(f's_waitcnt lgkmcnt(0)\nv_cmp_gt_u32 vcc, {i - 1 - P["iwd"]}, v{XR+1}\ns_cmp_lg_u32 vcc_lo, 0\ns_cselect_b32 s62, {P["iw"]}, 0')
            if Di == 3 and (P['iw'] >> (i % 4) & 1):
                a(f's_waitcnt vmcnt(2)\ns_bitcmp0_b32 s62, {i % 4}\ns_cbranch_scc1 L_b{i}\ns_waitcnt vmcnt(1)\nL_b{i}:')
        if P['stag'] and Di == 3:
            a(f's_waitcnt vmcnt(2)\ns_bitcmp0_b32 s62, {i % P["stp"]}\ns_cbranch_scc1 L_b{i}\ns_waitcnt vmcnt(1)\nL_b{i}:')
        if P['orc'] and i < 120:
            if i % 4 == 0: a('s_memrealtime s[96:97]')
            if i % 4 == 1: a(f's_waitcnt lgkmcnt(0)\ns_sub_u32 s96, s96, s98\ns_cmp_lt_u32 s96, {P["orc0"] + (i - 1) * P["orc"] // 10}\ns_cselect_b32 s62, {P["omask"]}, 0')
            if Di == 3 and (P['omask'] >> (i % 4) & 1):
                a(f's_waitcnt vmcnt(2)\ns_bitcmp0_b32 s62, {i % 4}\ns_cbranch_scc1 L_b{i}\ns_waitcnt vmcnt(1)\nL_b{i}:')
        if False: pass
        elif (P['podd'] or P['peven']) and i >= P['p0'] and ((P['podd'] | P['peven']) >> (i % 16) & 1):
            if (P['podd'] & P['peven']) >> (i % 16) & 1: a(f's_waitcnt vmcnt({Di})')
            else: a(f's_waitcnt vmcnt({Di})\ns_bitcmp1_b32 s62, {i % 16}\ns_cbranch_scc1 L_b{i}\ns_waitcnt vmcnt({Di-1})\nL_b{i}:')
            landed = max(landed, i - Di - 1)
        elif i - Di > landed:
            a(f's_waitcnt vmcnt({Di-1})'); landed = i - Di
        issue(i)
        if P['ctl'] and i % 2 == 0 and P['c0'] <= i <= P['c1'] + 4: a(f'v_mov_b32 v{XR}, {i}\nds_write_b32 v{XR+3}, v{XR}')
        if P['ctl'] and i % P['crd'] == P['crd'] - 2 and P['c0'] + P['lag'] <= i <= P['c1'] + 5: a(f'ds_read_b32 v{XR+1}, v{XR+2} offset:32')
        if P['iw'] and i >= 26 and i <= 122: a(f'v_mov_b32 v{XR}, {i}\nds_write_b32 v{XR+3}, v{XR}')
        if P['iw'] and i % P['iwp'] == 0 and 30 <= i <= 121: a(f'ds_read_b32 v{XR+1}, v{XR+2}')
        if i == 44 + D: stamp(a, P, 's44')
        if i == 96 + D: stamp(a, P, 's96')
        n = 0
        while ci < len(chunks) and chunks[ci][0] <= landed and n < P['budget']:
            run_chunk(i + 1); n += 1
    def tail_addr():
        a(f'v_lshrrev_b32 v3, 5, v0\nv_lshlrev_b32 v3, 9, v3\nv_bfe_u32 v4, v0, 4, 1\nv_lshl_add_u32 v3, v4, 10, v3')
        a(f'v_and_b32 v4, 15, v0\nv_lshl_add_u32 v3, v4, 5, v3\ns_lshl_b32 s37, s30, 11\ns_add_u32 s37, s37, {L_PART}\nv_add_u32 v3, s37, v3')
        a(f's_lshl_b32 s37, s30, 8\ns_add_u32 s37, s37, {L_PART}\nv_lshl_add_u32 v4, v0, 2, s37')
        a(f's_lshr_b32 s37, s30, 2\ns_lshl_b32 s37, s37, 5\ns_add_u32 s37, s37, {L_F}\nv_mov_b32 v5, s37')
        if P['ov']:
            assert P['qx']
            a(f'v_lshlrev_b32 v6, 2, v0\ns_lshl_b32 s60, s38, 12')
            a(f's_lshl_b32 s37, s30, 8\ns_add_u32 s60, s60, s37\ns_add_u32 s60, s60, {QBUF}\ns_xor_b32 s85, s85, 0x55')
        else:
            a(f'v_lshlrev_b32 v6, 2, v0\ns_lshl_b32 s60, s38, 11\ns_lshl_b32 s37, s30, 8\ns_add_u32 s60, s60, s37\ns_add_u32 s60, s60, {OBUF}')
        a(f'v_lshrrev_b32 v1, 4, v0\nv_bfe_u32 v7, v0, 2, 2\nv_and_b32 v8, 3, v0')
        if P['late']:
            a(f'v_lshl_add_u32 v7, v1, 2, v7\nv_bfe_u32 v2, v7, 1, 2\nv_xor_b32 v2, s30, v2\nv_and_b32 v2, 3, v2\nv_lshlrev_b32 v7, 7, v7\nv_lshl_add_u32 v7, v8, 3, v7\nv_lshl_add_u32 v7, v2, 5, v7\nv_add_u32 v7, {L_WO}, v7')
        else:
            a(f'v_lshl_add_u32 v7, v1, 2, v7\nv_lshlrev_b32 v7, 7, v7\nv_lshl_add_u32 v7, v8, 3, v7\ns_lshl_b32 s37, s30, 5\ns_add_u32 s37, s37, {L_WO}\nv_add_u32 v7, s37, v7')
        a(f'v_and_b32 v2, 15, v0\nv_lshlrev_b32 v2, 4, v2\nv_lshl_add_u32 v2, v1, {12 if P["ov"] else 11}, v2')
        a(f's_lshl_b32 s61, s30, {17 if P["ov"] else 16}\ns_lshl_b32 s37, s31, {14 if P["ov"] else 13}\ns_add_u32 s61, s61, s37\ns_and_b32 s37, s32, 3\ns_lshl_b32 s37, s37, 9\ns_add_u32 s61, s61, s37\ns_add_u32 s61, s61, {QBUF if P["ov"] else OBUF}')
    nlate = 0
    while lt and ci < len(chunks) - 4: run_chunk(128)
    if P['late']:
        assert lt
        a('v_lshrrev_b32 v3, 3, v0\nv_mul_u32_u24 v4, 896, v3\nv_and_b32 v3, 6, v3\nv_xor_b32 v3, v3, v0\nv_and_b32 v3, 7, v3\nv_lshl_add_u32 v4, v3, 4, v4')
        a(f'v_mov_b32 v{XR+3}, v4')
        a('s_and_b32 s36, s32, 3\ns_lshl_b32 s37, s31, 2\ns_add_u32 s36, s36, s37\ns_lshr_b32 s39, s32, 2\ns_lshl_b32 s39, s39, 7')
        a(f's_mul_i32 s37, s36, 114688\ns_add_u32 s37, s37, s39\ns_cmp_lt_u32 s32, 28\ns_cselect_b32 s37, s37, 0\ns_cselect_b32 s62, {127*896+128}, 0')
        srd(a, 56, 12, 's37', 's62')
        a(f's_mul_i32 s37, s36, 50176\ns_add_u32 s37, s37, s39\ns_cmp_lt_u32 s32, 28\ns_cselect_b32 s37, s37, 0\ns_cselect_b32 s62, {55*896+128}, 0')
        srd(a, 48, 20, 's37', 's62')
        a(f's_mul_i32 s64, s30, {16*896}\ns_add_u32 s65, s64, {8*896}\ns_lshr_b32 s66, s64, 1\ns_lshl_b32 s67, s30, 11\ns_add_u32 s67, s67, {L_WO}\ns_lshl_b32 s68, s30, 10\ns_add_u32 s68, s68, {L_W2}')
        late_ops.extend([f's_mov_b32 m0, s67\nbuffer_load_dwordx4 v{XR+3}, s[56:59], s64 offen {P["opol"]} lds',
                         f's_add_u32 m0, s67, 1024\nbuffer_load_dwordx4 v{XR+3}, s[56:59], s65 offen {P["opol"]} lds',
                         f's_mov_b32 m0, s68\nbuffer_load_dwordx4 v{XR+3}, s[48:51], s66 offen {P["mpol"]} lds'])
        if P['late'] == 1:
            for x in late_ops: a(x)
            nlate = 3
    tail_addr()
    a(f'v_lshl_add_u32 v{XR+2}, v8, 2, v1\nv_lshlrev_b32 v{XR+2}, 1, v{XR+2}\ns_lshl_b32 s39, s32, 5')
    srd(a, 44, 22, None, 896)
    a(f'buffer_load_ushort v{XR}, v{XR+2}, s[44:47], s39 offen')
    srd(a, 40, 4, None, 7168)
    a(f's_mul_i32 s37, s31, 896\ns_add_u32 s63, s37, s39\nbuffer_load_ushort v{XR+1}, v{XR+2}, s[40:43], s63 offen')
    srd(a, 44, 24, None, 7168)
    while ci < len(chunks): run_chunk(130 + nlate + extra[0])
    stamp(a, P, 'Vlast')
    a('L_tail:')
    a(f'ds_write_b128 v3, v[{ACC}:{ACC+3}]\nds_write_b128 v3, v[{ACC+4}:{ACC+7}] offset:16\nv_mov_b32 v9, s85\ns_cmp_eq_u32 s87, 0\ns_waitcnt lgkmcnt(0)\ns_barrier')
    stamp(a, P, 'B2')
    for w in range(4): a(f'ds_read2st64_b32 v[{16+2*w}:{17+2*w}], v4 offset0:{16*w} offset1:{16*w+8}')
    a(f'ds_read_b128 v[24:27], v5\nds_read_b128 v[28:31], v5 offset:16\ns_waitcnt lgkmcnt(0)')
    a('v_mul_f32 v32, v16, v24\nv_mul_f32 v33, v17, v25')
    for w in range(2, 8): a(f'v_fmac_f32 v{32+(w&1)}, v{16+w}, v{24+w}')
    a('v_add_f32 v32, v32, v33\nv_bfi_b32 v32, s82, v9, v32')
    a('s_cbranch_scc1 L_owt\nbuffer_store_dword v32, v6, s[52:55], s60 offen\nL_owe:')
    stamp(a, P, 'ost')
    a('s_cmp_lt_u32 s32, 28\ns_cbranch_scc0 L_end')
    GL = 'buffer_load_dwordx4 v[16:19], v2, s[52:55], s61 offen sc1\nbuffer_load_dwordx4 v[20:23], v2, s[52:55], s61 offen offset:256 sc1'
    a(GL)
    BF, AF, DR = 56, 72, 88
    HA, B2F = 92, 100
    if P['late']:
        a(f'v_and_b32 v10, 7, v0\nv_mul_u32_u24 v10, {HSTR}, v10\nv_lshl_add_u32 v10, v1, 3, v10\nv_add_u32 v10, {L_H}, v10')
        for k in range(2): a(f'ds_read_b64 v[{HA+4*k}:{HA+4*k+1}], v10 offset:{k*64}\nds_read_b64 v[{HA+4*k+2}:{HA+4*k+3}], v10 offset:{k*64+32}')
    else:
        a('s_cmp_lt_u32 s30, 4\ns_cbranch_scc0 L_nofr')
        for jj in range(4):
            b = BF + 4 * jj
            a(f'ds_read_b64_tr_b16 v[{b}:{b+1}], v7 offset:{jj*4096}\nds_read_b64_tr_b16 v[{b+2}:{b+3}], v7 offset:{jj*4096+2048}')
        a(f's_lshl_b32 s37, s30, 10\ns_add_u32 s37, s37, {L_C}\nv_lshl_add_u32 v10, v0, 4, s37\nds_read_b128 v[{DR}:{DR+3}], v10')
        a('L_nofr:')
    a(f'v_and_b32 v4, 15, v0\nv_lshlrev_b32 v4, 3, v4\nv_and_b32 v5, 1, v1\nv_lshl_add_u32 v4, v5, 2, v4\nv_lshrrev_b32 v5, 1, v1\nv_lshl_add_u32 v4, v5, 7, v4')
    a(f's_mul_i32 s37, s30, {OSTR}\ns_add_u32 s37, s37, {L_O}\nv_add_u32 v5, s37, v4')
    a(f'v_and_b32 v12, 7, v0\nv_mul_u32_u24 v12, {OSTR}, v12\nv_lshl_add_u32 v12, v1, 3, v12\nv_add_u32 v12, {L_O}, v12')
    a(f's_and_b32 s60, s32, 28\ns_add_u32 s60, s60, s30\ns_lshl_b32 s60, s60, 5\ns_lshl_b32 s37, s31, 2\ns_add_u32 s60, s60, s37\ns_and_b32 s37, s32, 3\ns_add_u32 s60, s60, s37')
    a(f's_lshl_b32 s60, s60, 9\ns_add_u32 s60, s60, {PBUF}\ns_mov_b32 s86, {P["spin"]}')
    a('s_branch L_gchk')
    a('L_gpoll:')
    if P['rex']: a('s_mov_b64 exec, vcc')
    if P['gsl']: a(f's_sleep {P["gsl"]}')
    a(GL)
    a('L_gchk:')
    a('s_waitcnt vmcnt(0)')
    tag_check(a, range(16, 24), 10, 11, 4)
    a('s_sub_u32 s86, s86, 1\ns_cbranch_scc1 L_gdone\ns_cbranch_vccnz L_gpoll')
    a('L_gdone:')
    if P['rex']: a('s_mov_b64 exec, -1')
    stamp(a, P, 'gok')
    for p in (16, 17, 20, 21): a(f'v_permlane16_swap_b32 v{p}, v{p+2}')
    for p in (16, 17, 20, 21): a(f'v_add_f32 v{p}, v{p}, v{p+2}')
    a('v_permlane32_swap_b32 v16, v20\nv_permlane32_swap_b32 v17, v21\nv_add_f32 v16, v16, v20\nv_add_f32 v17, v17, v21')
    a('v_cvt_pk_bf16_f32 v16, v16, v17\nds_write_b32 v5, v16\ns_waitcnt lgkmcnt(0)\ns_barrier')
    stamp(a, P, 'B3')
    a('s_cmp_lt_u32 s30, 4\ns_cbranch_scc0 L_fin')
    if P['late']:
        d2 = L_W2 - L_WO
        for k in range(2): a(f'ds_read_b64_tr_b16 v[{B2F+4*k}:{B2F+4*k+1}], v7 offset:{d2+k*4096}\nds_read_b64_tr_b16 v[{B2F+4*k+2}:{B2F+4*k+3}], v7 offset:{d2+k*4096+2048}')
        for jj in range(4):
            b = BF + 4 * jj
            a(f'ds_read_b64 v[{AF+4*jj}:{AF+4*jj+1}], v12 offset:{jj*64}\nds_read_b64 v[{AF+4*jj+2}:{AF+4*jj+3}], v12 offset:{jj*64+32}')
            a(f'ds_read_b64_tr_b16 v[{b}:{b+1}], v7 offset:{jj*4096}\nds_read_b64_tr_b16 v[{b+2}:{b+3}], v7 offset:{jj*4096+2048}')
            if jj == 1:
                for k in range(2):
                    a(f's_waitcnt lgkmcnt({10-2*k})')
                    a(f'v_mfma_f32_16x16x32_bf16 v[{DR}:{DR+3}], v[{HA+4*k}:{HA+4*k+3}], v[{B2F+4*k}:{B2F+4*k+3}], ' + ('0' if k == 0 else f'v[{DR}:{DR+3}]'))
        for jj in range(4):
            a(f's_waitcnt lgkmcnt({12-4*jj})')
            a(f'v_mfma_f32_16x16x32_bf16 v[{DR}:{DR+3}], v[{AF+4*jj}:{AF+4*jj+3}], v[{BF+4*jj}:{BF+4*jj+3}], v[{DR}:{DR+3}]')
    else:
        for jj in range(4): a(f'ds_read_b64 v[{AF+4*jj}:{AF+4*jj+1}], v12 offset:{jj*64}\nds_read_b64 v[{AF+4*jj+2}:{AF+4*jj+3}], v12 offset:{jj*64+32}')
        for jj in range(4):
            a(f's_waitcnt lgkmcnt({6-2*jj})')
            a(f'v_mfma_f32_16x16x32_bf16 v[{DR}:{DR+3}], v[{AF+4*jj}:{AF+4*jj+3}], v[{BF+4*jj}:{BF+4*jj+3}], v[{DR}:{DR+3}]')
    a(f'v_permlane32_swap_b32 v{DR}, v{DR+1}\nv_permlane32_swap_b32 v{DR+2}, v{DR+3}')
    tag_put(a, (DR, DR + 2), 9, 82, 0x200)
    a(f'buffer_store_dword v{DR}, v6, s[52:55], s60 offen {P["ppol"]}\nbuffer_store_dword v{DR+2}, v6, s[52:55], s60 offen offset:256 {P["ppol"]}')
    stamp(a, P, 'pst')
    if P['diag']:
        a('s_cmp_lg_u32 s30, 0\ns_cbranch_scc1 L_end')
        stamp_store(a, P, stamp_items(P, [x for x in S_PTS if x not in ('g2ok', 'end', 'fst', 'fcnt')]), hw=True)
    a('s_endpgm')
    a('L_owt:\nbuffer_store_dword v32, v6, s[52:55], s60 offen sc1\ns_branch L_owe')
    a('; ---- wave 7: sum the 32 partial products of 16 output columns, add x and b2, store')
    a('L_fin:')
    if P['wb']:
        a('s_cmp_eq_u32 s30, 5\ns_cbranch_scc0 L_nowb\ns_cmp_eq_u32 s32, 0\ns_cbranch_scc0 L_end\nbuffer_wbl2 sc1\ns_waitcnt vmcnt(0)\ns_endpgm\nL_nowb:')
    a('s_cmp_eq_u32 s30, 7\ns_cbranch_scc0 L_end')
    a('v_and_b32 v8, 3, v0')
    a(f'v_lshrrev_b32 v2, 2, v0\nv_lshlrev_b32 v2, 9, v2\nv_lshl_add_u32 v2, v8, 4, v2\nv_add_u32 v3, 8192, v2')
    a(f's_lshl_b32 s61, s32, 14\ns_and_b32 s37, s31, 3\ns_lshl_b32 s37, s37, 7\ns_add_u32 s61, s61, s37\ns_lshr_b32 s37, s31, 2\ns_lshl_b32 s37, s37, 6\ns_add_u32 s61, s61, s37\ns_add_u32 s61, s61, {PBUF}\ns_mov_b32 s86, {P["spin"]}')
    a(f'v_lshlrev_b32 v24, 16, v{XR}\nv_lshlrev_b32 v25, 16, v{XR+1}\nv_add_f32 v24, v24, v25')
    stamp(a, P, 'fst')
    a('L_fpoll:')
    a(f'buffer_load_dwordx4 v[16:19], v2, s[52:55], s61 offen {P["lpol"]}\nbuffer_load_dwordx4 v[20:23], v3, s[52:55], s61 offen {P["lpol"]}')
    a('s_waitcnt vmcnt(0)')
    tag_check(a, range(16, 24), 8, 9, 10)
    a('s_sub_u32 s86, s86, 1\ns_cbranch_scc1 L_fdone\ns_cbranch_vccz L_fdone')
    if P['fthr']:
        a(f's_bcnt1_i32_b64 s37, vcc\ns_cmp_lt_u32 s37, {P["fthr"]}\ns_cbranch_scc1 L_fpoll\ns_sleep {P["fsl2"]}')
    if P['fsl']: a(f's_sleep {P["fsl"]}')
    if P['rex']: a('s_mov_b64 exec, vcc')
    a('s_branch L_fpoll')
    a('L_fdone:')
    if P['rex']: a('s_mov_b64 exec, -1')
    stamp(a, P, 'g2ok')
    if P['diag'] and 'fcnt' in pts(P):
        r = 88 + 2 * pts(P).index('fcnt'); r0 = 88 + 2 * pts(P).index('fst')
        a(f's_sub_u32 s37, {P["spin"]}, s86\ns_mul_i32 s37, s37, 100\ns_add_u32 s{r}, s{r0}, s37\ns_addc_u32 s{r+1}, s{r0+1}, 0')
    for i in range(4): a(f'v_add_f32 v{16+i}, v{16+i}, v{20+i}')
    a('v_permlane16_swap_b32 v16, v17\nv_permlane16_swap_b32 v18, v19\nv_add_f32 v16, v16, v17\nv_add_f32 v18, v18, v19')
    a('v_permlane32_swap_b32 v16, v18\nv_add_f32 v16, v16, v18')
    a('v_add_f32_dpp v16, v16, v16 row_ror:4 row_mask:0xf bank_mask:0xf')
    a('v_add_f32_dpp v16, v16, v16 row_ror:8 row_mask:0xf bank_mask:0xf')
    a('v_add_f32 v16, v16, v24\nv_cvt_pk_bf16_f32 v16, v16, v16')
    a('s_mov_b32 exec_lo, 0x000f000f\ns_mov_b32 exec_hi, 0x000f000f')
    a(f'buffer_store_short v16, v{XR+2}, s[44:47], s63 offen {P["outpol"]}')
    a('s_cmp_lg_u32 s2, 0\ns_cbranch_scc1 L_noep')
    a('v_mov_b32 v8, 0\nv_mov_b32 v9, s84\ns_mov_b64 exec, 1\nbuffer_store_dword v9, v8, s[52:55], 0 offen')
    a('L_noep:')
    if P['hold']:
        a(f'L_hold:\ns_memrealtime s[96:97]\ns_waitcnt lgkmcnt(0)\ns_sub_u32 s96, s96, s98\ns_cmp_lt_u32 s96, {P["hold"]}\ns_cbranch_scc1 L_hold')
    if P['diag']:
        a('s_mov_b64 exec, -1\ns_waitcnt vmcnt(0)')
        stamp(a, P, 'end')
        stamp_store(a, P, stamp_items(P, ['g2ok', 'end', 'fst', 'fcnt']))
    a('s_endpgm')

def dma_loop(a, lab, n, depth, vaddr, sstep, lds0, pol):
    a(f's_mov_b32 s36, 0\ns_mov_b32 s62, {lds0}\ns_mov_b32 s63, {n}')
    a(f'{lab}:')
    a(f's_mov_b32 m0, s62\ns_waitcnt vmcnt({depth-1})')
    a(f'buffer_load_dwordx4 v{vaddr}, s[56:59], s36 offen {pol} lds')
    a(f's_add_u32 s36, s36, {sstep}\ns_add_u32 s62, s62, 1024\ns_sub_u32 s63, s63, 1\ns_cmp_lg_u32 s63, 0\ns_cbranch_scc1 {lab}')

XF, FF, TT = 16, 44, 100
def x_addr(a):
    a('v_and_b32 v10, 15, v0\nv_lshrrev_b32 v9, 4, v0\nv_and_b32 v8, 7, v0\nv_mul_u32_u24 v8, 896, v8')
    a('v_bfe_u32 v3, v0, 3, 1\nv_mul_u32_u24 v3, 448, v3\nv_lshl_add_u32 v8, v9, 4, v8\nv_add_u32 v8, v8, v3')
def x_load(a, P):
    srd(a, 48, 4, None, 7168)
    for ks in range(7): a(f'buffer_load_dwordx4 v[{XF+4*ks}:{XF+4*ks+3}], v8, s[48:51], 0 offen offset:{ks*64} {P["xpol"]}')
def tag_check(a, regs, t0, t1, acc, mask=TMASK):
    regs = list(regs)
    ts = 's85' if mask == TMASK else 's80'
    for r in regs: a(f'v_xor_b32 v{r}, {ts}, v{r}')
    two = len(regs) >= 6
    a(f'v_or_b32 v{acc}, v{regs[0]}, v{regs[1]}')
    rest = regs[2:]
    if two: a(f'v_or3_b32 v{t0}, v{rest[0]}, v{rest[1]}, v{rest[2]}'); rest = rest[3:]
    k = 0
    while len(rest) >= 2:
        d = t0 if (two and k & 1) else acc
        a(f'v_or3_b32 v{d}, v{d}, v{rest[0]}, v{rest[1]}'); rest = rest[2:]; k += 1
    if two and rest: a(f'v_or3_b32 v{acc}, v{acc}, v{t0}, v{rest[0]}')
    elif two: a(f'v_or_b32 v{acc}, v{acc}, v{t0}')
    elif rest: a(f'v_or_b32 v{acc}, v{acc}, v{rest[0]}')
    a(f'v_and_b32 v{acc}, {mask}, v{acc}\nv_cmp_ne_u32 vcc, 0, v{acc}')
def tag_put(a, regs, tagv, ms, half):
    for r in regs: a(f'v_add_u32 v{r}, {half}, v{r}')
    for r in regs: a(f'v_bfi_b32 v{r}, s{ms}, v{tagv}, v{r}')
def tag_strip(a, regs, half, ms=82):
    for r in regs: a(f'v_bfi_b32 v{r}, s{ms}, v{half}, v{r}')
_st = [0]; HPOL = ['']
def hand_store(a, ins):
    _st[0] += 1; n = _st[0]
    a(f's_cmp_eq_u32 s87, 0\ns_cbranch_scc1 L_wt{n}\n{ins} {HPOL[0]}\ns_branch L_we{n}\nL_wt{n}:\n{ins} sc1\nL_we{n}:')

def unit_gemm(a, lds, va, st_v, st_s, tagv, ms, before_pub=None, exact=False):
    TA, DQ = 44, 108
    seq = [(t, ks) for t in range(4) for ks in range(4)]
    def rd(n):
        t, ks = seq[n]; r = TA + 4 * n; o = lds + ks * 4096 + t * 32
        a(f'ds_read_b64_tr_b16 v[{r}:{r+1}], v{va} offset:{o}\nds_read_b64_tr_b16 v[{r+2}:{r+3}], v{va} offset:{o+512}')
    def pub(t):
        if exact:
            for u in range(2):
                r = 128 + 8 * (t & 1) + 4 * u
                a(f'v_mov_b32 v{r}, v{DQ+4*t+2*u}\nv_mov_b32 v{r+1}, v{DQ+4*t+2*u+1}')
                hand_store(a, f'buffer_store_dwordx4 v[{r}:{r+3}], v{st_v}, s[52:55], s{st_s} offen offset:{t*128+u*64}')
            return
        tag_put(a, range(DQ + 4 * t, DQ + 4 * t + 4), tagv, ms, 0x80 if ms == 81 else 0x200)
        hand_store(a, f'buffer_store_dwordx4 v[{DQ+4*t}:{DQ+4*t+3}], v{st_v}, s[52:55], s{st_s} offen offset:{t*64}')
    for n in range(6): rd(n)
    if exact:
        for k in range(4): a(f'v_mov_b32 v{130+4*k}, s84\nv_mov_b32 v{131+4*k}, s84')
    for n, (t, ks) in enumerate(seq):
        if n + 6 < 16: rd(n + 6)
        a(f's_waitcnt lgkmcnt({2*min(6, 15-n)})')
        r = TA + 4 * n; d = DQ + 4 * t
        c = '0' if ks == 0 else f'v[{d}:{d+3}]'
        a(f'v_mfma_f32_16x16x32_bf16 v[{d}:{d+3}], v[{r}:{r+3}], v[{XF+4*ks}:{XF+4*ks+3}], {c}')
        if before_pub is None and n in (7, 11, 15): pub(n // 4 - 1)
    if before_pub is not None:
        before_pub()
        for t in range(3): pub(t)
    pub(3)

def helper(a, P):
    a('L_helper:')
    if P['ctl']: a('s_cmp_eq_u32 s30, 9\ns_cbranch_scc1 L_ctl')
    stamp(a, P, 'hstart')
    if P['cpf']:
        a('s_getpc_b64 s[56:57]\ns_mov_b32 s58, 4352\ns_mov_b32 s59, 0x20000\nv_lshlrev_b32 v1, 6, v0')
        a('buffer_load_dword v15, v1, s[56:59], 0 offen offset:256')
    x_addr(a)
    a('v_lshrrev_b32 v4, 3, v0\nv_lshlrev_b32 v1, 13, v4\nv_and_b32 v2, 7, v0\nv_lshl_add_u32 v1, v2, 4, v1')
    a('v_mul_u32_u24 v4, 3584, v4\nv_lshl_add_u32 v4, v2, 4, v4')
    a('s_and_b32 s63, s32, 1\ns_bfe_u32 s62, s32, 0x10001\ns_mul_i32 s64, s62, 224\ns_lshl_b32 s36, s63, 7\ns_add_u32 s64, s64, s36')
    a('s_lshl_b32 s65, s63, 5\ns_sub_u32 s65, 127, s65\ns_lshr_b32 s66, s32, 2')
    a('s_lshl_b32 s37, s64, 13\ns_lshl_b32 s39, s31, 3\ns_add_u32 s39, s39, s66\ns_lshl_b32 s39, s39, 7\ns_add_u32 s37, s37, s39')
    a('s_lshl_b32 s39, s65, 13\ns_add_u32 s39, s39, 128')
    a('s_lshl_b32 s60, s63, 8\ns_mul_i32 s61, s63, 192\ns_sub_u32 s61, 192, s61')
    a('s_waitcnt lgkmcnt(0)')
    stamp(a, P, 'hkarg')
    a('s_load_dword s84, s[28:29], 0')
    srd(a, 48, 4, None, 7168)
    for ks in range(7):
        if ks < 3: a(f'buffer_load_dwordx4 v[{XF+4*ks}:{XF+4*ks+3}], v8, s[48:51], s60 offen offset:{ks*64} {P["xpol"]}')
        else: a(f'buffer_load_dwordx4 v[{XF+4*ks}:{XF+4*ks+3}], v8, s[48:51], s61 offen offset:{(ks-3)*64} {P["xpol"]}')
    if P['abl'] & 2: a('s_mov_b32 s39, 0')
    srd(a, 56, 10, 's37', 's39')
    for i in range(16):
        a(f's_mov_b32 m0, {L_WQ+i*1024}\ns_mov_b32 s36, {i*65536}')
        a(f'buffer_load_dwordx4 v1, s[56:59], s36 offen {P["wpol"]} lds')
    stamp(a, P, 'wqiss')
    a(f'v_mov_b32 v126, -1\nv_mov_b32 v127, -1\nv_lshlrev_b32 v3, 3, v0\nv_add_u32 v3, {L_ML}, v3\nv_mov_b32 v5, {L_TAG}')
    a('s_mov_b64 exec, 0xffff\nds_write_b64 v3, v[126:127]\nds_write_b64 v5, v[126:127]\ns_mov_b64 exec, -1')
    if P['iw']: a(f'v_mov_b32 v126, 0\nv_and_b32 v3, 7, v0\nv_lshlrev_b32 v3, 2, v3\nv_add_u32 v3, {L_PROG}, v3\nds_write_b32 v3, v126')
    srd(a, 52, 28, None, WS_USED)
    a(f'v_lshlrev_b32 v2, 4, v0\ns_getreg_b32 s68, hwreg(HW_REG_XCC_ID)\ns_and_b32 s68, s68, 15\ns_lshl_b32 s68, s68, 12')
    a(f's_lshl_b32 s69, s31, 12\ns_add_u32 s69, s69, {XBUF}\ns_lshl_b32 s37, s32, 7\ns_add_u32 s37, s37, s69\ns_waitcnt lgkmcnt(0)')
    a(f's_add_u32 s84, s84, 0x9E3779B9\ns_and_b32 s85, s84, {TMASK}\ns_and_b32 s80, s84, {QMASK}\ns_or_b32 s68, s68, s85\nv_mov_b32 v6, s85\nv_mov_b32 v124, s68')
    a('s_mov_b64 exec, 1\nbuffer_store_dword v124, v2, s[52:55], s37 offen sc1\ns_mov_b64 exec, -1')
    stamp(a, P, 'xst')
    a('s_barrier')
    a('v_and_b32 v125, 31, v0\nv_lshlrev_b32 v125, 7, v125')
    a(f'v_mov_b32 v14, {hex(OOB)}\ns_mov_b32 s82, {TMASK}\ns_mov_b32 s81, {QMASK}\ns_mov_b32 s83, {hex(f2u(C_EXP))}')
    a(f'v_bfe_u32 v3, v0, 2, 2\nv_lshl_add_u32 v12, v9, 3, v3\nv_lshlrev_b32 v12, 7, v12\nv_and_b32 v5, 3, v0\nv_lshl_add_u32 v12, v5, 3, v12')
    a(f'v_and_b32 v5, 7, v0\nv_lshlrev_b32 v13, {17 if P["qx"] else 16}, v5\nv_lshl_add_u32 v13, v9, 4, v13\nv_bfe_u32 v3, v0, 3, 1\nv_cmp_eq_u32 vcc, s62, v3')
    a(f'v_lshlrev_b32 v5, 12, v5\nv_lshl_add_u32 v5, v9, 4, v5\nv_cndmask_b32 v13, v14, v13, vcc\nv_cndmask_b32 v5, v14, v5, vcc')
    if P['qx']: a(f's_and_b32 s37, s32, 3\ns_lshl_b32 s60, s37, 12\ns_lshl_b32 s39, s31, 14\ns_add_u32 s60, s60, s39\ns_lshl_b32 s39, s66, 9\ns_add_u32 s60, s60, s39\ns_add_u32 s60, s60, {QBUF}')
    else:
        a(f's_and_b32 s37, s32, 3\ns_lshl_b32 s60, s37, 14\ns_lshl_b32 s39, s31, 11\ns_add_u32 s60, s60, s39\ns_lshl_b32 s39, s66, 8\ns_add_u32 s60, s60, s39\ns_add_u32 s60, s60, {QBUF}')
    a(f's_lshl_b32 s70, s37, 10\ns_and_b32 s39, s66, 3\ns_lshl_b32 s39, s39, 8\ns_add_u32 s70, s70, s39\ns_lshl_b32 s39, s31, 15\ns_add_u32 s70, s70, s39\ns_add_u32 s70, s70, {HBUF}')
    a('s_waitcnt vmcnt(17)')
    stamp(a, P, 'xland')
    layernorm(a, XF, FF, TT)
    stamp(a, P, 'lndone')
    a('s_mov_b64 exec, 0xffffffff\nbuffer_load_dword v124, v125, s[52:55], s69 offen sc1\ns_mov_b64 exec, -1')
    a('s_waitcnt vmcnt(2) lgkmcnt(0)')
    stamp(a, P, 'wqland')
    def loc_check():
        a('s_waitcnt vmcnt(0)\nv_cmp_ne_u32 vcc, s68, v124\ns_cmp_eq_u32 vcc_lo, 0')
        for k in range(P['xretry']):
            a('s_cbranch_scc1 L_xok\ns_mov_b64 exec, 0xffffffff\nbuffer_load_dword v124, v125, s[52:55], s69 offen sc1\ns_mov_b64 exec, -1')
            a('s_waitcnt vmcnt(0)\nv_cmp_ne_u32 vcc, s68, v124\ns_cmp_eq_u32 vcc_lo, 0')
        a('L_xok:')
        a('s_cselect_b32 s87, 1, 0' if P['loc'] else 's_mov_b32 s87, 0')
        stamp(a, P, 'xid')
        if P['diag'] and 'locv' in pts(P):
            a('s_cmp_lg_u32 s87, 0\ns_cbranch_scc1 L_locv'); stamp(a, P, 'locv'); a('L_locv:')
    if P['abl'] & 4: loc_check(); a('s_branch L_qdone')
    unit_gemm(a, L_WQ, 12, 13, 60, 6, 81, None if P['abl'] & 4 else loc_check, P['qx'])
    stamp(a, P, 'qpub')
    if P['qx']: a(f's_lshr_b32 s61, s38, 2\ns_lshl_b32 s61, s61, 14\ns_add_u32 s61, s61, {QBUF}\ns_mov_b32 s72, s84\ns_mov_b32 s73, s84')
    else:
        a(f's_lshl_b32 s61, s33, 16\ns_lshl_b32 s37, s31, 11\ns_add_u32 s61, s61, s37\ns_add_u32 s61, s61, {QBUF}')
    a(f's_mov_b32 s86, {P["spin"]}')
    a('L_qpoll:')
    a(f's_sleep {P["qsl"]}')
    a('s_mov_b32 s36, s61')
    if P['qx']:
        for kq in range(4):
            for m in range(4): a(f'buffer_load_dwordx4 v[{44+16*kq+4*m}:{47+16*kq+4*m}], v2, s[52:55], s36 offen offset:{m*1024} sc1')
            if kq < 3: a('s_add_u32 s36, s36, 4096')
    else:
        for kq in range(4):
            for m in range(2): a(f'buffer_load_dwordx4 v[{44+8*kq+4*m}:{47+8*kq+4*m}], v2, s[52:55], s36 offen offset:{m*1024} sc1')
            if kq < 3: a('s_add_u32 s36, s36, 16384')
    a(f's_mov_b64 exec, 0xffffffff\nbuffer_load_dword v124, v125, s[52:55], s69 offen sc1\ns_mov_b64 exec, -1\ns_waitcnt vmcnt(0)')
    if P['qx']:
        a('s_mov_b64 vcc, 0')
        for n in range(16):
            a(f'v_cmp_ne_u64 s[{74+2*(n%3)}:{75+2*(n%3)}], s[72:73], v[{46+4*n}:{47+4*n}]')
            if n >= 2: a(f's_or_b64 vcc, vcc, s[{74+2*((n-2)%3)}:{75+2*((n-2)%3)}]')
        for n in (14, 15): a(f's_or_b64 vcc, vcc, s[{74+2*(n%3)}:{75+2*(n%3)}]')
    else: tag_check(a, range(44, 76), 100, 101, 102, QMASK)
    a('s_sub_u32 s86, s86, 1\ns_cbranch_scc1 L_qdone\ns_cbranch_vccnz L_qpoll')
    a('L_qdone:')
    stamp(a, P, 'qok')
    a('v_cmp_ne_u32 vcc, s68, v124\ns_cmp_eq_u32 vcc_lo, 0')
    a('s_cselect_b32 s87, 1, 0' if P['loc'] else 's_mov_b32 s87, 0')
    if P['qx']:
        for kq in range(1, 4):
            for m in range(4): a(f'v_pk_add_f32 v[{44+4*m}:{45+4*m}], v[{44+4*m}:{45+4*m}], v[{44+16*kq+4*m}:{45+16*kq+4*m}]')
        a(f'v_lshrrev_b32 v3, 3, v0\nv_lshlrev_b32 v3, 5, v3\nv_and_b32 v15, 3, v0\nv_lshl_add_u32 v3, v15, 3, v3\nv_and_b32 v15, 4, v0\nv_add_u32 v3, v3, v15\nv_add_u32 v3, {L_Q}, v3')
        a(f'v_mov_b32 v13, {L_TAG}\nv_mov_b32 v108, s84\nv_mov_b32 v109, s87')
        for m in range(4): a(f'v_cvt_pk_bf16_f32 v{44+4*m}, v{44+4*m}, v{45+4*m}\nds_write_b32 v3, v{44+4*m} offset:{m*256}')
        a('s_waitcnt lgkmcnt(0)\nds_write_b64 v13, v[108:109]')
    else:
        for kq in range(1, 4):
            for m in range(4): a(f'v_pk_add_f32 v[{44+2*m}:{45+2*m}], v[{44+2*m}:{45+2*m}], v[{44+8*kq+2*m}:{45+8*kq+2*m}]')
        a(f'v_lshlrev_b32 v3, 3, v0\nv_add_u32 v3, {L_Q}, v3\nv_mov_b32 v13, {L_TAG}\nv_mov_b32 v100, s84\nv_mov_b32 v101, s87')
        for m in range(4): a(f'v_cvt_pk_bf16_f32 v{52+m}, v{44+2*m}, v{45+2*m}')
        a('ds_write_b64 v3, v[52:53]\nds_write_b64 v3, v[54:55] offset:512\ns_waitcnt lgkmcnt(0)\nds_write_b64 v13, v[100:101]')
    stamp(a, P, 'B1')
    if P['pt']:
        a('v_mov_b32 v3, 0\ns_mov_b64 exec, 1\ns_lshl_b32 s37, s38, 19')
        srd(a, 48, 8, 's37', 64); a('buffer_load_dword v110, v3, s[48:51], 0 offen nt')
        a('s_mul_i32 s37, s31, 458752'); srd(a, 48, 12, 's37', 64); a('buffer_load_dword v111, v3, s[48:51], 0 offen nt')
        a('s_add_u32 s37, s37, 458688'); srd(a, 48, 12, 's37', 64); a('buffer_load_dword v112, v3, s[48:51], 0 offen nt')
        srd(a, 48, 20, None, 64); a('buffer_load_dword v113, v3, s[48:51], 0 offen nt')
        srd(a, 48, 22, None, 64); a('buffer_load_dword v114, v3, s[48:51], 0 offen nt')
        a('s_mov_b64 exec, -1')
    if P['abl'] & 1: a('s_branch L_now')
    a('s_cmp_ge_u32 s66, 4\ns_cbranch_scc0 L_noh')
    a('s_mul_i32 s67, s31, 7\ns_lshr_b32 s67, s67, 1\ns_and_b32 s39, s66, 3\ns_add_u32 s67, s67, s39\ns_mul_i32 s37, s64, 3584\ns_lshl_b32 s39, s67, 7\ns_add_u32 s37, s37, s39')
    a('s_mul_i32 s39, s65, 3584\ns_add_u32 s39, s39, 128')
    srd(a, 56, 16, 's37', 's39')
    dma_loop(a, 'L_w1', 16, P['DH'], 4, 8 * 3584, L_W1, P['wpol'])
    layernorm(a, XF, FF, TT, 16)
    a('s_waitcnt vmcnt(0)')
    unit_gemm(a, L_W1, 12, 5, 70, 6, 82)
    a('L_noh:')
    stamp(a, P, 'hpub')
    a('s_cmp_lt_u32 s32, 28\ns_cbranch_scc0 L_now')
    a('v_lshrrev_b32 v1, 3, v0\nv_mul_u32_u24 v1, 896, v1\nv_and_b32 v3, 7, v0\nv_lshl_add_u32 v1, v3, 4, v1')
    a('s_and_b32 s64, s32, 3\ns_lshl_b32 s65, s31, 2\ns_add_u32 s65, s65, s64')
    if not P['late']:
        a(f's_mul_i32 s37, s65, 50176\ns_lshl_b32 s39, s66, 7\ns_add_u32 s37, s37, s39')
        srd(a, 56, 20, 's37', 55 * 896 + 128)
        dma_loop(a, 'L_w2', 8, P['DH'], 1, 8 * 896, L_W2, P['mpol'])
        if not P['nowo']:
            a(f's_mul_i32 s37, s65, 114688\ns_lshl_b32 s39, s66, 7\ns_add_u32 s37, s37, s39\ns_sub_u32 s39, {4096*896}, s37')
            srd(a, 56, 12, 's37', 's39')
            dma_loop(a, 'L_wo', 16, P['DH'], 1, 8 * 896, L_WO, P['opol'])
    stamp(a, P, 'wodone')
    a('v_min_u32 v3, 13, v10\nv_lshlrev_b32 v4, 12, v9\nv_lshl_add_u32 v4, v3, 4, v4\nv_lshlrev_b32 v5, 3, v3')
    a(f's_lshl_b32 s61, s31, 15\ns_mul_i32 s37, s64, 224\ns_add_u32 s61, s61, s37\ns_and_b32 s37, s31, 1\ns_lshl_b32 s37, s37, 7\ns_add_u32 s61, s61, s37\ns_add_u32 s61, s61, {HBUF}')
    srd(a, 48, 18, None, 3584)
    a(f's_mul_i32 s37, s65, 112\nbuffer_load_dwordx2 v[20:21], v5, s[48:51], s37 offen\ns_add_u32 s60, s61, 16384\ns_mov_b32 s86, {P["spin"]}')
    a('L_hp:')
    for ps in range(2):
        for kq in range(4): a(f'buffer_load_dwordx4 v[{44+16*ps+4*kq}:{47+16*ps+4*kq}], v4, s[52:55], s{61-ps} offen offset:{kq*1024} sc1')
    a('s_waitcnt vmcnt(0)')
    tag_check(a, range(44, 76), 16, 17, 18)
    a('s_sub_u32 s86, s86, 1\ns_cbranch_scc1 L_hpd\ns_cbranch_vccz L_hpd\ns_sleep 16\ns_branch L_hp')
    a('L_hpd:')
    for ps in range(2):
        for kq in range(1, 4):
            for m in range(2): a(f'v_pk_add_f32 v[{44+16*ps+2*m}:{45+16*ps+2*m}], v[{44+16*ps+2*m}:{45+16*ps+2*m}], v[{44+16*ps+4*kq+2*m}:{45+16*ps+4*kq+2*m}]')
    unpack(a, 20, 24, 2)
    a('v_cvt_pk_bf16_f32 v16, v44, v45\nv_cvt_pk_bf16_f32 v17, v46, v47\nv_cvt_pk_bf16_f32 v18, v60, v61\nv_cvt_pk_bf16_f32 v19, v62, v63')
    unpack(a, 16, 32, 4)
    for i in range(8): a(f'v_add_f32 v{32+i}, v{32+i}, v{24+(i&3)}')
    for i in range(4): a(f'v_cvt_pk_bf16_f32 v{16+i}, v{32+2*i}, v{33+2*i}')
    unpack(a, 16, 32, 4)
    k0 = 2 * 0.7978845608028654 * math.log2(math.e); k1 = k0 * 0.044715
    a(f's_mov_b32 s62, {hex(f2u(-k1))}\nv_mov_b32 v15, {hex(f2u(-k0))}')
    for i in range(8): a(f'v_mul_f32 v{44+i}, v{32+i}, v{32+i}')
    for i in range(8): a(f'v_fma_f32 v{44+i}, v{44+i}, s62, v15')
    for i in range(8): a(f'v_mul_f32 v{44+i}, v{44+i}, v{32+i}')
    for i in range(8): a(f'v_exp_f32 v{44+i}, v{44+i}')
    for i in range(8): a(f'v_add_f32 v{44+i}, 1.0, v{44+i}')
    for i in range(8): a(f'v_rcp_f32 v{44+i}, v{44+i}')
    for i in range(8): a(f'v_mul_f32 v{32+i}, v{32+i}, v{44+i}')
    a('v_cmp_gt_u32 vcc, 14, v10')
    for i in range(4): a(f'v_cvt_pk_bf16_f32 v{16+i}, v{32+2*i}, v{33+2*i}')
    for i in range(4): a(f'v_cndmask_b32 v{16+i}, 0, v{16+i}, vcc')
    a(f'v_mul_u32_u24 v3, {HSTR}, v9\nv_lshl_add_u32 v3, v10, 3, v3\nv_add_u32 v3, {L_H}, v3')
    a(f'ds_write_b64 v3, v[16:17]\nds_write_b64 v3, v[18:19] offset:{4*HSTR}')
    if not P['late']:
        a(f'v_and_b32 v3, 7, v0\nv_mul_u32_u24 v3, {HSTR}, v3\nv_lshl_add_u32 v3, v9, 3, v3\nv_add_u32 v3, {L_H}, v3')
        a(f'v_bfe_u32 v4, v0, 2, 2\nv_lshl_add_u32 v4, v9, 2, v4\nv_lshlrev_b32 v4, 7, v4\nv_and_b32 v5, 3, v0\nv_lshl_add_u32 v4, v5, 3, v4\nv_add_u32 v4, {L_W2}, v4')
        a('s_waitcnt lgkmcnt(0)')
        for k in range(2): a(f'ds_read_b64 v[{16+4*k}:{17+4*k}], v3 offset:{k*64}\nds_read_b64 v[{18+4*k}:{19+4*k}], v3 offset:{k*64+32}')
        for t in range(4):
            for k in range(2):
                r = 44 + 8 * t + 4 * k
                a(f'ds_read_b64_tr_b16 v[{r}:{r+1}], v4 offset:{k*4096+t*32}\nds_read_b64_tr_b16 v[{r+2}:{r+3}], v4 offset:{k*4096+2048+t*32}')
        a(f'v_add_u32 v3, {L_C}, v2\ns_waitcnt lgkmcnt(0)')
        for k in range(2):
            for t in range(4):
                r = 44 + 8 * t + 4 * k; d = 76 + 4 * t
                a(f'v_mfma_f32_16x16x32_bf16 v[{d}:{d+3}], v[{16+4*k}:{19+4*k}], v[{r}:{r+3}], ' + ('0' if k == 0 else f'v[{d}:{d+3}]'))
        for t in range(4): a(f'ds_write_b128 v3, v[{76+4*t}:{79+4*t}] offset:{t*1024}')
    a('L_now:')
    stamp(a, P, 'mend')
    a(f'v_and_b32 v3, 15, v0\nv_lshlrev_b32 v3, 3, v3\nv_add_u32 v3, {L_ML}, v3\ns_mov_b32 s86, {P["spin"]*16}')
    a('L_mlw:')
    a('ds_read_b64 v[16:17], v3\ns_waitcnt lgkmcnt(0)\nv_cmp_eq_u32 vcc, -1, v16')
    a('s_sub_u32 s86, s86, 1\ns_cbranch_scc1 L_mlwd\ns_cbranch_vccz L_mlwd\ns_sleep 4\ns_branch L_mlw')
    a('L_mlwd:')
    d8 = ('quad_perm:[1,0,3,2]', 'quad_perm:[2,3,0,1]', 'row_half_mirror')
    a('v_mov_b32 v18, v16')
    for m in d8: a(f'v_max_f32_dpp v18, v18, v18 {m} row_mask:0xf bank_mask:0xf')
    a('v_sub_f32 v20, v16, v18\nv_mul_f32 v20, s83, v20\nv_exp_f32 v20, v20\nv_mul_f32 v19, v20, v17')
    for m in d8: a(f'v_add_f32_dpp v19, v19, v19 {m} row_mask:0xf bank_mask:0xf')
    a(f'v_mov_b32 v20, s84\nv_mov_b32 v21, s84\nv_lshlrev_b32 v4, 1, v0\ns_mov_b32 s72, s84\ns_mov_b32 s73, s84')
    a(f's_lshl_b32 s37, s38, 7\ns_add_u32 s37, s37, {MLX}\ns_mov_b64 exec, 0x101')
    hand_store(a, 'buffer_store_dwordx4 v[18:21], v4, s[52:55], s37 offen')
    a('s_mov_b64 exec, -1')
    stamp(a, P, 'mlpub')
    a(f's_and_b32 s61, s38, 0xfc\ns_lshl_b32 s61, s61, 7\ns_add_u32 s61, s61, {MLX}\ns_mov_b32 s86, {P["spin"]}')
    a('v_and_b32 v3, 3, v0\nv_lshlrev_b32 v3, 7, v3\nv_and_b32 v4, 8, v0\nv_lshl_add_u32 v3, v4, 1, v3')
    a('L_mlp2:')
    a(f's_sleep {P["msl"]}')
    a('buffer_load_dwordx4 v[24:27], v3, s[52:55], s61 offen sc1\ns_waitcnt vmcnt(0)\nv_cmp_ne_u64 vcc, s[72:73], v[26:27]')
    a('s_sub_u32 s86, s86, 1\ns_cbranch_scc1 L_mlp2d\ns_cbranch_vccnz L_mlp2')
    a('L_mlp2d:')
    stamp(a, P, 'mlok')
    a('v_mov_b32 v28, v24')
    for m in d8[:2]: a(f'v_max_f32_dpp v28, v28, v28 {m} row_mask:0xf bank_mask:0xf')
    a('v_sub_f32 v29, v24, v28\nv_mul_f32 v29, s83, v29\nv_exp_f32 v29, v29\nv_mul_f32 v29, v29, v25')
    for m in d8[:2]: a(f'v_add_f32_dpp v29, v29, v29 {m} row_mask:0xf bank_mask:0xf')
    a('v_sub_f32 v30, v16, v28\nv_mul_f32 v30, s83, v30\nv_exp_f32 v30, v30\nv_rcp_f32 v29, v29\nv_mul_f32 v30, v30, v29')
    a(f'v_lshlrev_b32 v3, 2, v0\nv_add_u32 v3, {L_F}, v3\ns_mov_b64 exec, 0xffff\nds_write_b32 v3, v30\ns_mov_b64 exec, -1')
    if P['tpf']:
        a('s_getpc_b64 s[56:57]\nL_pc2:\ns_add_u32 s56, s56, L_tail-L_pc2\ns_addc_u32 s57, s57, 0\ns_mov_b32 s58, L_end-L_tail\ns_mov_b32 s59, 0x20000')
        a('v_lshlrev_b32 v1, 6, v0\nbuffer_load_dword v15, v1, s[56:59], 0 offen')
    a('s_waitcnt vmcnt(0) lgkmcnt(0)')
    stamp(a, P, 'hend')
    stamp_store(a, P, stamp_items(P, H_PTS))
    a('s_endpgm')

def control2(a, P):
    c0, c1, cper, nsh = P['c0'], P['c1'], P['cper'], P['nsh']
    n = 256 // nsh
    a('L_ctl:')
    a(f'v_and_b32 v1, 7, v0\nv_lshlrev_b32 v1, 2, v1\nv_add_u32 v1, {L_PROG}, v1\nv_mov_b32 v2, 0\nds_write_b32 v1, v2\nds_write_b32 v1, v2 offset:16')
    a('s_waitcnt lgkmcnt(0)\ns_barrier')
    a(f's_and_b32 s37, s32, {nsh-1}\ns_lshl_b32 s37, s37, {int(math.log2(256 // nsh))}\ns_add_u32 s40, s26, s37\ns_addc_u32 s41, s27, 0')
    a(f's_mov_b32 s36, {c0}\ns_mov_b32 s61, {n // 2}\nv_mov_b32 v5, {L_PROG}')
    a('L_ck:')
    a(f's_mov_b32 s86, {P["spin"]*16}')
    a('L_ckw:')
    a('s_sleep 2\nds_read_b32 v3, v1\ns_waitcnt lgkmcnt(0)\nv_cmp_le_u32 vcc, s36, v3\ns_bcnt1_i32_b32 s37, vcc_lo')
    a('s_sub_u32 s86, s86, 1\ns_cbranch_scc1 L_ckd\ns_cmp_lt_u32 s37, 16\ns_cbranch_scc1 L_ckw')
    a('L_ckd:')
    a(f's_mov_b32 s60, 1\ns_atomic_add s60, s[40:41], 0 glc\ns_add_u32 s36, s36, {cper}\ns_waitcnt lgkmcnt(0)')
    a(f's_sub_i32 s60, s61, s60\ns_add_u32 s61, s61, {n}')
    a(f's_cmp_gt_i32 s60, {P["th1"]}\ns_cselect_b32 s39, {P["cm1"]}, 0\ns_cmp_gt_i32 s60, {P["th2"]}\ns_cselect_b32 s39, {P["cm2"]}, s39')
    a('v_mov_b32 v6, s39\nds_write_b32 v5, v6 offset:32')
    a(f's_cmp_le_u32 s36, {c1}\ns_cbranch_scc1 L_ck')
    a('s_endpgm')

def control3(a, P):
    c0, c1, cper = P['c0'], P['c1'], P['cper']
    a('L_ctl:')
    a(f'v_and_b32 v1, 7, v0\nv_lshlrev_b32 v1, 2, v1\nv_add_u32 v1, {L_PROG}, v1\nv_mov_b32 v2, 0\nds_write_b32 v1, v2\nv_mov_b32 v3, {P["mb"]}\nv_mov_b32 v4, {L_PROG}\nds_write_b32 v4, v3 offset:32')
    a('s_waitcnt lgkmcnt(0)\ns_barrier')
    srd(a, 52, 28, None, WS_USED)
    q_wait(a, P, 'L_cq')
    a('s_cmp_eq_u32 s87, 0\ns_cbranch_scc1 L_end')
    a(f's_lshl_b32 s61, s31, {P["lsh"]+5}\ns_add_u32 s61, s61, {CBUF}\ns_lshl_b32 s37, s32, {P["lsh"]}\ns_add_u32 s60, s61, s37\nv_and_b32 v8, 31, v0\nv_lshlrev_b32 v8, {P["lsh"]}, v8')
    a(f's_mov_b32 s36, {c0}\nv_mov_b32 v5, {L_PROG}\ns_mov_b32 s76, {P["mb"]}\ns_mov_b32 s77, {P["mo"]}')
    if P['xl']:
        FB = CBUF + 0x4000
        a(f's_lshl_b32 s72, s31, 7\ns_add_u32 s72, s72, {FB}\ns_mov_b32 s73, {c0}\ns_mov_b32 s74, {c0 + P["xl"]}\ns_add_u32 s40, s28, {FB}\ns_addc_u32 s41, s29, 0\nv_mov_b32 v9, s84')
    a('L_ck:')
    a(f's_mov_b32 s86, {P["spin"]*16}')
    a('L_ckw:')
    if P['cmin']:
        a('s_sleep 2\nds_read_b32 v3, v1\ns_waitcnt lgkmcnt(0)')
        for m in ('quad_perm:[1,0,3,2]', 'quad_perm:[2,3,0,1]', 'row_half_mirror'): a(f'v_min_u32_dpp v3, v3, v3 {m} row_mask:0xf bank_mask:0xf')
        a('v_readfirstlane_b32 s37, v3\ns_sub_u32 s86, s86, 1\ns_cbranch_scc1 L_end\ns_cmp_lt_u32 s37, s36\ns_cbranch_scc1 L_ckw\ns_mov_b32 s36, s37')
    else:
        a('s_sleep 2\nds_read_b32 v3, v1\ns_waitcnt lgkmcnt(0)\nv_cmp_le_u32 vcc, s36, v3\ns_bcnt1_i32_b32 s37, vcc_lo')
        a('s_sub_u32 s86, s86, 1\ns_cbranch_scc1 L_ckd\ns_cmp_lt_u32 s37, 16\ns_cbranch_scc1 L_ckw')
    a('L_ckd:')
    a('s_add_u32 s37, s84, s36\nv_mov_b32 v6, s37\ns_mov_b64 exec, 1\nbuffer_store_dword v6, v2, s[52:55], s60 offen\ns_mov_b64 exec, 0xffffffff')
    a('buffer_load_dword v7, v8, s[52:55], s61 offen sc1\ns_mov_b64 exec, -1')
    if P['xl']:
        a('s_cmp_lg_u32 s32, 0\ns_cbranch_scc1 L_xnp')
        a('L_xp:\ns_cmp_le_u32 s73, s36\ns_cbranch_scc0 L_xnp')
        a('s_mov_b64 exec, 1\nbuffer_store_dword v9, v2, s[52:55], s72 offen sc1\ns_mov_b64 exec, -1\ns_add_u32 s72, s72, 1024\ns_add_u32 s73, s73, 4\ns_branch L_xp')
        a('L_xnp:\ns_cmp_le_u32 s74, s36\ns_cbranch_scc0 L_xnr')
        a('L_xa:\ns_add_u32 s74, s74, 4\ns_cmp_le_u32 s74, s36\ns_cbranch_scc0 L_xr\ns_add_u32 s40, s40, 1024\ns_addc_u32 s41, s41, 0\ns_branch L_xa')
        a('L_xr:')
        for k in range(8): a(f's_load_dword s{64+k}, s[40:41], {k*128}')
        a('s_mov_b32 s37, 0\ns_waitcnt lgkmcnt(0)\ns_add_u32 s40, s40, 1024\ns_addc_u32 s41, s41, 0')
        for k in range(8): a(f's_cmp_lg_u32 s{64+k}, s84\ns_addc_u32 s37, s37, 0')
        a(f's_mov_b32 s76, {P["mb"]}\ns_mov_b32 s77, {P["mo"]}\ns_cmp_ge_u32 s37, {P["xthr"]}\ns_cselect_b32 s76, {P["xmb"]}, s76\ns_cselect_b32 s77, {P["xmo"]}, s77')
        a('L_xnr:')
    a(f's_sub_u32 s62, s36, {P["ca"]}\ns_add_i32 s63, s36, {P["cb"]}\ns_add_u32 s36, s36, {cper}\ns_waitcnt vmcnt(0)')
    a('v_subrev_u32 v7, s84, v7\nv_cmp_gt_u32 vcc, s62, v7\nv_cmp_lt_u32 s[64:65], s63, v7\nv_cmp_gt_u32 s[66:67], s82, v7')
    a('s_bcnt1_i32_b32 s37, vcc_lo\ns_and_b32 s64, s64, s66\ns_bcnt1_i32_b32 s39, s64')
    a(f's_cmp_ge_u32 s39, {P["n2c"]}\ns_cselect_b32 s39, s77, s76\ns_cmp_ge_u32 s37, {P["n1"]}\ns_cselect_b32 s39, {P["mt"]}, s39')
    a('v_mov_b32 v6, s39\nds_write_b32 v5, v6 offset:32')
    a(f's_cmp_le_u32 s36, {c1}\ns_cbranch_scc1 L_ck')
    a('s_endpgm')

def control(a, P):
    c0, c1, lag = P['c0'], P['c1'], P['lag']
    if P['cver'] == 2: return control2(a, P)
    if P['cver'] == 3: return control3(a, P)
    a('L_ctl:')
    a(f'v_and_b32 v1, 7, v0\nv_lshlrev_b32 v1, 2, v1\nv_add_u32 v1, {L_PROG}, v1\nv_mov_b32 v2, 0\nds_write_b32 v1, v2\nds_write_b32 v1, v2 offset:16')
    a('s_waitcnt lgkmcnt(0)\ns_barrier')
    srd(a, 52, 28, None, WS_USED)
    q_wait(a, P, 'L_cq')
    a('v_mov_b32 v7, s84')
    if P['cdbg']: a('s_mov_b32 s90, 0\ns_mov_b32 s91, 0\ns_mov_b32 s92, 0\ns_mov_b32 s93, 0\ns_mov_b32 s94, 0')
    cs, cper = P['cstr'], P['cper']; ms = max(cs * P['nrep'], 128)
    if P['nrep'] == 16: a(f's_lshl_b32 s60, s31, 1\ns_lshr_b32 s37, s32, 4\ns_add_u32 s60, s60, s37\ns_mul_i32 s60, s60, {cs}\ns_and_b32 s63, s32, 15')
    elif P['nrep'] == 4: a(f's_lshr_b32 s60, s31, 1\ns_mul_i32 s60, s60, {cs}\ns_and_b32 s63, s31, 1\ns_xor_b32 s63, s63, 1\ns_or_b32 s63, s63, s32')
    else: a(f's_mul_i32 s60, s31, {cs}\ns_mov_b32 s63, s32')
    a(f's_add_u32 s60, s60, {CBUF}\ns_add_u32 s40, s28, {CBUF}\ns_addc_u32 s41, s29, 0')
    a(f's_mov_b32 s61, {c0}\ns_mov_b32 s62, {c0 + lag}\nv_mov_b32 v5, {L_PROG}')
    a('L_ck:')
    a(f's_min_u32 s36, s61, s62\ns_cmp_eq_u32 s63, 0\ns_cselect_b32 s36, s36, s62\ns_mov_b32 s86, {P["spin"]*16}')
    a('L_ckw:')
    a('s_sleep 2\nds_read_b32 v3, v1\ns_waitcnt lgkmcnt(0)\nv_cmp_le_u32 vcc, s36, v3\ns_bcnt1_i32_b32 s37, vcc_lo')
    a('s_sub_u32 s86, s86, 1\ns_cbranch_scc1 L_ckd\ns_cmp_lt_u32 s37, 16\ns_cbranch_scc1 L_ckw')
    a('L_ckd:')
    a('s_cmp_lg_u32 s63, 0\ns_cbranch_scc1 L_cknp\ns_cmp_lg_u32 s36, s61\ns_cbranch_scc1 L_cknp')
    a(f's_mov_b64 exec, 1\nbuffer_store_dword v7, v2, s[52:55], s60 offen sc1\ns_mov_b64 exec, -1\ns_add_u32 s60, s60, {ms}\ns_add_u32 s61, s61, {cper}')
    a('L_cknp:')
    a('s_cmp_lg_u32 s36, s62\ns_cbranch_scc1 L_ck')
    if cs == 4: a(f's_load_dwordx{P["nrep"]} s[64:{63+P["nrep"]}], s[40:41], 0')
    else:
        for k in range(P['nrep']): a(f's_load_dword s{64+k}, s[40:41], {k*cs}')
    a(f's_add_u32 s62, s62, {cper}\ns_mov_b32 s37, 0\ns_waitcnt lgkmcnt(0)\ns_add_u32 s40, s40, {ms}\ns_addc_u32 s41, s41, 0')
    for k in range(P['nrep']): a(f's_cmp_lg_u32 s{64+k}, s84\ns_addc_u32 s37, s37, 0')
    if P['cdbg']: a('s_lshl_b32 s39, s37, 2\ns_lshl_b32 s39, 1, s39\ns_cmp_lt_u32 s37, 8\ns_cselect_b32 s39, s39, 0\ns_add_u32 s90, s90, s37\ns_cmp_eq_u32 s37, 0\ns_addc_u32 s91, s91, 0\ns_cmp_ge_u32 s37, 4\ns_addc_u32 s92, s92, 0\ns_cmp_ge_u32 s37, 7\ns_addc_u32 s93, s93, 0\ns_add_u32 s94, s94, 1')
    a(f's_cmp_ge_u32 s37, {P["thr"]}\ns_cselect_b32 s39, {P["cmask"]}, 0\nv_mov_b32 v6, s39\nds_write_b32 v5, v6 offset:32')
    a(f's_cmp_le_u32 s62, {c1}\ns_cbranch_scc1 L_ck')
    if P['cdbg']:
        for k in range(5): a(f's_atomic_add s{90+k}, s[26:27], {4*k}')
        a('s_waitcnt lgkmcnt(0)')
    a('s_endpgm')

def body(P):
    a = Asm(); HPOL[0] = P['hpol']
    a('s_cmp_ge_u32 s2, 256\ns_cbranch_scc1 L_end')
    if P['perm'] == 1: a('s_lshr_b32 s3, s2, 5\ns_lshl_b32 s2, s2, 3\ns_or_b32 s2, s2, s3\ns_and_b32 s2, s2, 255')
    if P['perm'] == 2: a('s_lshr_b32 s3, s2, 7\ns_xor_b32 s2, s2, s3')
    a('s_load_dwordx16 s[4:19], s[0:1], 0\ns_load_dwordx8 s[20:27], s[0:1], 64\ns_load_dwordx2 s[28:29], s[0:1], 96')
    a('v_lshrrev_b32 v1, 6, v0\nv_and_b32 v0, 63, v0\nv_readfirstlane_b32 s30, v1')
    a('s_and_b32 s31, s2, 7\ns_lshr_b32 s32, s2, 3')
    if P['bmap'] == 0: a('s_lshr_b32 s33, s32, 2\ns_and_b32 s34, s32, 3')
    else: a('s_and_b32 s33, s32, 7\ns_lshr_b32 s34, s32, 3')
    a('s_lshl_b32 s37, s31, 2\ns_add_u32 s34, s34, s37\ns_lshl_b32 s38, s33, 5\ns_add_u32 s38, s38, s34')
    stamp_init(a, P)
    stamp(a, P, 'entry')
    a(f's_cmp_ge_u32 s30, 8\ns_cbranch_scc1 L_helper')
    streamer(a, P, lambda: (helper(a, P), control(a, P) if P['ctl'] else None))
    a('L_end:\ns_endpgm')
    txt, n = a.text()
    return txt, n

def vgprs(P): return max(56 + 4 * P['R'] + 4, 156)

def kernel(P):
    txt, n = body(P)
    nm = P['name']
    txt = txt.replace('L_', f'L{nm[-24:]}_') if P.get('uniq') else txt
    return txt

def final_file(P):
    ref = open(f'cdna_kernels/{NAME}.s.ref').read()
    head = ref[:ref.index('; Override launch')]
    nm = P['name']; vg = vgprs(P)
    return head + f'''; One launch, 256 workgroups (x = id & 7 = kv head, r = id >> 3 = batch row * 4 + key split), 8 streaming waves + 2 helper waves.
; Written with a generator script (register allocation, unrolling and wait-state padding are the script's).
; Hand-offs between workgroups go through d_ws and carry a tag = (word 0 of d_ws at entry) + constant; word 0 is advanced
; at the end of the launch, so that a launch tells its own hand-offs from older contents. Readers poll with sc1 loads.
; Writers use write-through (sc1) stores, except where all 32 workgroups of a kv head have reported the same XCD in this
; launch: then the store may stay in that XCD L2.
; Wave 9 balances memory bandwidth among the workgroups that share an XCD: each posts how many loads it has issued, and one
; that is ahead of the others keeps fewer loads in flight, one that is behind keeps more; one workgroup per kv head also flags
; its progress to the other XCDs, and all hold back a little while some XCD lags (speed only, no effect on results).
; @launch grid=(256,1,1) block=({block(P)},1,1) lds={LDS_BYTES}
.amdgcn_target "amdgcn-amd-amdhsa--gfx950"
.text
.globl {nm}
.p2align 8
.type {nm},@function
{nm}:
{kernel(P)}
.section .rodata,"a"
.p2align 6
.amdhsa_kernel {nm}
  .amdhsa_next_free_vgpr {vg}
  .amdhsa_next_free_sgpr 102
  .amdhsa_accum_offset {(vg+3)//4*4}
  .amdhsa_group_segment_fixed_size 0
  .amdhsa_kernarg_size 104
  .amdhsa_user_sgpr_count 2
  .amdhsa_user_sgpr_kernarg_segment_ptr 1
  .amdhsa_system_sgpr_workgroup_id_x 1
.end_amdhsa_kernel
'''

if __name__ == '__main__':
    P = dict(DEF)
    out = f'cdna_kernels/{NAME}.s'
    for kv in sys.argv[1:]:
        k, v = kv.split('=', 1)
        if k == 'out': out = v
        else: P[k] = type(DEF[k])(v) if not isinstance(DEF[k], bool) else v == '1'
    open(out, 'w').write(final_file(P))
    print('wrote', out)
```

```python
import sys, math, struct
from asmlib import Asm

NAME = 'parallel_sum__gqa_block_cached__mixer_channel_mlp__decode'
def f2u(x): return struct.unpack('<I', struct.pack('<f', x))[0]

CBUF, XBUF, MLX, PBUF, HBUF, QBUF, OBUF, WS_USED = 0x1D0000, 0x8000, 0x10000, 0x20000, 0x90000, 0xD0000, 0x200000, 0x280000
TMASK = 0x3FF
QMASK = 0xFF
STAMP_OFF = 536870912 - (1 << 20)
L_WQ = 0; L_W1 = 16384; L_WO = 32768; L_W2 = 49152
L_PART = 57344
L_C = L_PART + 16384
OSTR = 264; HSTR = 136
L_O = L_C + 4096
L_H = L_O + 8 * OSTR
L_Q = L_H + 8 * HSTR
L_ML = L_Q + 1024
L_F = L_ML + 128
L_TAG = L_F + 64
L_PROG = L_TAG + 16
LDS_BYTES = L_PROG + 48
assert L_Q % 16 == 0 and LDS_BYTES > 81920
OOB = 0x7F000000
C_EXP = math.log2(math.e) / 16.0

DEF = dict(R=26, D=3, D0=3, DH=8, qsl=16, msl=24, cpf=1, tpf=0, orc=0, orc0=60, omask=15, perm=0, outpol='', late=2, hpol='', hw=8, abl=0, lt=1, ov=1, pt=0, podd=0, peven=0, p0=0, vt=0, wb=0, amap='13 14 9 10 12 17 18 16 15 11 1024 8 513 0 128', hpat='', swz=0, ppol='sc1', lpol='sc1', nocomp=0, nowo=0, ctl=1, lag=0, thr=3, c0=28, c1=116, cmask=5, cver=3, nrep=8, ca=6, cb=0, n1=1, n2c=6, mb=4, mt=5, mo=0, wd=2, wm=5, pw=1, mper=4, xl=6, xthr=1, xmb=5, xmo=4, lsh=5, cmin=1, b4=0, rex=1, qx=1, fast=0, stag=0, stp=4, cdbg=0, th1=8, th2=999, cm1=5, cm2=5, nsh=2, crd=2, iw=0, iwd=3, iwp=2, cstr=128, cper=2, kpat='3', vpat='3', loc=1, n2=80, xretry=1, Dend=4, nend=8, gsl=0, fsl=0, fthr=0, fsl2=24, nornd=0, nom=0, pol='nt', wpol='nt', xpol='', opol='nt', mpol='nt', diag=False, budget=2,
           name=NAME + '_kernel', spin=1 << 16, hold=0, bmap=0, pts='start+qpub+B1+Kdone+hend+B2+end')
def block(P): return 640 if P['ctl'] else 576

def srd(a, n, base, off, size):
    if off is None:
        a(f's_mov_b32 s{n}, s{base}\ns_mov_b32 s{n+1}, s{base+1}')
    else:
        a(f's_add_u32 s{n}, s{base}, {off}\ns_addc_u32 s{n+1}, s{base+1}, 0')
    a(f's_mov_b32 s{n+2}, {size}\ns_mov_b32 s{n+3}, 0x20000')

def wave_sum(a, v, s):
    for m in ('row_shr:1', 'row_shr:2', 'row_shr:4', 'row_shr:8'):
        a(f'v_add_f32_dpp v{v}, v{v}, v{v} {m} row_mask:0xf bank_mask:0xf')
    a(f'v_add_f32_dpp v{v}, v{v}, v{v} row_bcast:15 row_mask:0xa bank_mask:0xf')
    a(f'v_add_f32_dpp v{v}, v{v}, v{v} row_bcast:31 row_mask:0xc bank_mask:0xf')
    a(f'v_readlane_b32 s{s}, v{v}, 63')

def rnd_bf16(a, v):
    a(f'v_cvt_pk_bf16_f32 v{v}, v{v}, v{v}\nv_and_b32 v{v}, 0xffff0000, v{v}')

def unpack(a, src, dst, n):
    for i in range(n):
        a(f'v_and_b32 v{dst+2*i+1}, 0xffff0000, v{src+i}\nv_lshlrev_b32 v{dst+2*i}, 16, v{src+i}')

def row_sum(a, v, t):
    a(f'v_add_f32_dpp v{v}, v{v}, v{v} row_ror:8 row_mask:0xf bank_mask:0xf')
    xgroup(a, 'v_add_f32', v, t)

def layernorm(a, X, F, T, nq=28):
    pr = lambda r: f'v[{r}:{r+1}]'
    unpack(a, X, F, 28)
    a(f'v_pk_add_f32 {pr(T)}, {pr(F)}, {pr(F+2)}\nv_pk_add_f32 {pr(T+2)}, {pr(F+4)}, {pr(F+6)}')
    for i in range(4, 28): a(f'v_pk_add_f32 {pr(T+2*(i&1))}, {pr(T+2*(i&1))}, {pr(F+2*i)}')
    a(f'v_pk_add_f32 {pr(T)}, {pr(T)}, {pr(T+2)}\nv_add_f32 v{T}, v{T}, v{T+1}')
    row_sum(a, T, T + 1)
    a(f'v_mul_f32 v{T}, {hex(f2u(-1/448))}, v{T}\nv_mov_b32 v{T+1}, v{T}')
    for i in range(28):
        d = T + 4 + 2 * (i & 1)
        a(f'v_pk_add_f32 {pr(d)}, {pr(F+2*i)}, {pr(T)}')
        if i == 0: a(f'v_pk_mul_f32 {pr(T+2)}, {pr(d)}, {pr(d)}')
        else: a(f'v_pk_fma_f32 {pr(T+2)}, {pr(d)}, {pr(d)}, {pr(T+2)}')
    a(f'v_add_f32 v{T+2}, v{T+2}, v{T+3}')
    row_sum(a, T + 2, T + 3)
    rnd_bf16(a, T)
    a(f'v_mov_b32 v{T+1}, v{T}\nv_mul_f32 v{T+2}, {hex(f2u(1/448))}, v{T+2}')
    rnd_bf16(a, T + 2)
    a(f'v_add_f32 v{T+2}, {hex(f2u(1e-5))}, v{T+2}')
    rnd_bf16(a, T + 2)
    a(f'v_sqrt_f32 v{T+2}, v{T+2}')
    for i in range(nq): a(f'v_pk_add_f32 {pr(F+2*i)}, {pr(F+2*i)}, {pr(T)}')
    rnd_bf16(a, T + 2)
    a(f'v_rcp_f32 v{T+2}, v{T+2}')
    for i in range(nq): a(f'v_cvt_pk_bf16_f32 v{X+i}, v{F+2*i}, v{F+2*i+1}')
    a(f'v_mov_b32 v{T+3}, v{T+2}')
    unpack(a, X, F, nq)
    for i in range(nq): a(f'v_pk_mul_f32 {pr(F+2*i)}, {pr(F+2*i)}, {pr(T+2)}')
    for i in range(nq): a(f'v_cvt_pk_bf16_f32 v{X+i}, v{F+2*i}, v{F+2*i+1}')

def xgroup(a, op, v, t):
    a(f'v_mov_b32 v{t}, v{v}\nv_permlane16_swap_b32 v{v}, v{t}\n{op} v{v}, v{v}, v{t}')
    a(f'v_mov_b32 v{t}, v{v}\nv_permlane32_swap_b32 v{v}, v{t}\n{op} v{v}, v{v}, v{t}')

S_PTS = ['start', 'k0', 'fst', 'fcnt', 's8', 's44', 's96', 'skarg', 'siss0', 'pst', 'g2ok', 'sB1a', 'sB1', 'Kdone', 'Vlast', 'B2', 'ost', 'gok', 'B3', 'end']
M_PTS = ['mstart', 'mw1', 'mw2', 'mend']
H_PTS = ['entry', 'hstart', 'mend', 'locv', 'xst', 'xid', 'hpub', 'wob', 'qack', 'xland', 'lndone', 'wtpub', 'wtok', 'hkarg', 'wqiss', 'hB0', 'wqland', 'qpub', 'qp1', 'qok', 'B1', 'wodone', 'mlpub', 'mlok', 'hend']
def pts(P): return P['pts'].split('+') if isinstance(P['pts'], str) else P['pts']
def stamp(a, P, name):
    if P['diag'] and name in pts(P):
        reg = 88 + 2 * pts(P).index(name)
        a(f's_memrealtime s[{reg}:{reg+1}]\ns_waitcnt lgkmcnt(0)')
def stamp_items(P, lst): return [(i, 88 + 2 * i) for i, n in enumerate(pts(P)) if n in lst]
def stamp_init(a, P):
    if P['diag']:
        for i in range(7): a(f's_mov_b64 s[{88+2*i}:{89+2*i}], 0')

def stamp_store(a, P, items, hw=False):
    if not P['diag']: return
    a('s_waitcnt lgkmcnt(0)')
    a(f's_lshl_b32 s37, s2, 6\ns_add_u32 s37, s37, {STAMP_OFF}')
    srd(a, 40, 28, 's37', 64)
    a('s_mov_b64 exec, 1\nv_mov_b32 v1, 0')
    for idx, reg in items:
        a(f'v_mov_b32 v2, s{reg}\nv_mov_b32 v3, s{reg+1}\nbuffer_store_dwordx2 v[2:3], v1, s[40:43], 0 offen offset:{idx*8}')
    if hw:
        a('s_getreg_b32 s38, hwreg(HW_REG_XCC_ID)\ns_getreg_b32 s39, hwreg(HW_REG_HW_ID)')
        a('v_mov_b32 v2, s38\nv_mov_b32 v3, s39\nbuffer_store_dwordx2 v[2:3], v1, s[40:43], 0 offen offset:56')
    a('s_mov_b64 exec, -1')

def q_wait(a, P, lab):
    a(f's_mov_b32 s82, {TMASK}\nv_mov_b32 v5, {L_TAG}\ns_mov_b32 s86, {P["spin"]*16}')
    a(f'{lab}:\nds_read_b64 v[6:7], v5\ns_waitcnt lgkmcnt(0)\nv_cmp_eq_u32 vcc, -1, v7')
    a(f's_sub_u32 s86, s86, 1\ns_cbranch_scc1 {lab}d\ns_cbranch_vccz {lab}d\ns_sleep 2\ns_branch {lab}\n{lab}d:')
    a(f'v_readfirstlane_b32 s84, v6\nv_readfirstlane_b32 s87, v7\ns_and_b32 s85, s84, {TMASK}')

def streamer(a, P, mid):
    R, D, D0, pol = P['R'], P['D'], P['D0'], P['pol']
    Q, S, DT, RING = 8, 16, 48, 56
    slot = lambda i: RING + 4 * (i % R)
    sl = lambda i: f'v[{slot(i)}:{slot(i)+3}]'
    a('; ==== streaming waves 0..7: 128 keys each; first K loads go out before anything else')
    stamp(a, P, 'start')
    if P['hold'] or P['orc']: a('s_memrealtime s[98:99]')
    am = [int(x) for x in P['amap'].split()]
    ab, gb, wb, xm = am[0:2], am[2:7], am[7:10], am[10:15]
    a(f'v_and_b32 v1, 3, v0\nv_lshlrev_b32 v1, 4, v1\nv_lshrrev_b32 v3, 4, v0\nv_lshl_add_u32 v1, v3, 6, v1')
    a(f'v_bfe_u32 v3, v0, 2, 1\nv_lshl_add_u32 v1, v3, {ab[0]}, v1\nv_bfe_u32 v3, v0, 3, 1\nv_lshl_add_u32 v1, v3, {ab[1]}, v1')
    if P['fast'] and am == [13, 14, 9, 10, 12, 17, 18, 16, 15, 11, 1024, 8, 513, 0, 128]:
        a('s_lshl_b32 s37, s38, 19\ns_lshl_b32 s35, s2, 7\ns_and_b32 s35, s35, 0x600\ns_lshr_b32 s36, s32, 4\ns_lshl_b32 s36, s36, 18\ns_or_b32 s35, s35, s36')
        a('s_lshr_b32 s36, s2, 1\ns_xor_b32 s36, s36, s32\ns_xor_b32 s36, s36, s30\ns_and_b32 s36, s36, 1\ns_lshl_b32 s36, s36, 12\ns_or_b32 s35, s35, s36')
        a('s_brev_b32 s36, s30\ns_lshr_b32 s36, s36, 30\ns_lshl_b32 s36, s36, 15\ns_or_b32 s35, s35, s36\ns_lshr_b32 s36, s30, 2\ns_lshl_b32 s36, s36, 11\ns_or_b32 s35, s35, s36')
    else:
        a('s_lshl_b32 s37, s38, 19\ns_mov_b32 s35, 0')
        use = 0
        for m in xm: use |= m
        a('s_add_u32 s36, s30, s32\ns_and_b32 s36, s36, 7' if use & 7 else 's_mov_b32 s36, 0')
        if use & 0xf8: a('s_lshl_b32 s39, s32, 3\ns_or_b32 s36, s36, s39')
        if use & 0x700: a('s_lshl_b32 s39, s31, 8\ns_or_b32 s36, s36, s39')
        if use & 0x3800: a('s_lshl_b32 s39, s30, 11\ns_or_b32 s36, s36, s39')
        for k in range(5):
            if xm[k] and xm[k] & (xm[k] - 1) == 0:
                a(f's_bfe_u32 s39, s36, {0x10000 + xm[k].bit_length() - 1}\ns_lshl_b32 s39, s39, {gb[k]}\ns_or_b32 s35, s35, s39')
            elif xm[k]:
                a(f's_and_b32 s39, s36, {xm[k]}\ns_bcnt1_i32_b32 s39, s39\ns_and_b32 s39, s39, 1\ns_lshl_b32 s39, s39, {gb[k]}\ns_or_b32 s35, s35, s39')
        for k in range(3): a(f's_bfe_u32 s39, s30, {0x10000 + k}\ns_lshl_b32 s39, s39, {wb[k]}\ns_or_b32 s35, s35, s39')
    goff = lambda G: sum(((G >> k) & 1) << gb[k] for k in range(5))
    a('s_waitcnt lgkmcnt(0)')
    stamp(a, P, 'skarg')
    srd(a, 40, 6, 's37', 524288)
    lt = P['lt']
    def lg(i):
        j = i % 64
        if lt and i >= 112: return 24 + ((i - 112) & 7), (i - 112) >> 3
        return j >> 1, j & 1
    vidx = lambda T, g, e: (112 + 8 * e + g) if (lt and T == 3) else (64 + 16 * T + 2 * g + e)
    def issue(i):
        G, t = lg(i)
        if t == 0 or (lt and i >= 112): a(f's_xor_b32 s36, s35, {goff(G)}')
        r, va = ('s[40:43]', 'v1') if i < 64 else ('s[44:47]', 'v2')
        a(f'buffer_load_dwordx4 {sl(i)}, {va}, {r}, s36 offen offset:{t*256} {pol}')
    for i in range(D0): issue(i)
    stamp(a, P, 'siss0')
    a('s_branch L_s2')
    mid()
    a('L_s2:')
    a(f'v_and_b32 v2, 15, v0\nv_lshlrev_b32 v2, 4, v2\nv_bfe_u32 v3, v0, 4, 1\nv_lshl_add_u32 v2, v3, {ab[0]}, v2\nv_lshrrev_b32 v3, 5, v0\nv_lshl_add_u32 v2, v3, {ab[1]}, v2')
    srd(a, 44, 8, 's37', 524288)
    if P['vt']:
        a(f'v_mov_b32 v3, 0\nbuffer_load_dword v4, v3, s[44:47], s35 offen {pol}')
    a('s_barrier')
    srd(a, 52, 28, None, WS_USED)
    for e in range(2):
        for r in range(4):
            m16 = (0x11 << r) << (8 * e); m32 = m16 | (m16 << 16)
            a(f's_mov_b32 s{64+2*(4*e+r)}, {hex(m32)}\ns_mov_b32 s{65+2*(4*e+r)}, {hex(m32)}')
    a('s_mov_b32 s80, 0x05040100\ns_mov_b32 s81, 0x07060302')
    for i in range(D0, R):
        if i == D0 + 1: stamp(a, P, 'k0')
        dh = int(P['hpat'][i - D0]) if i - D0 < len(P['hpat']) else D0
        if P['vt'] and i < D0 + D: dh += 1
        a(f's_waitcnt vmcnt({dh-1})'); issue(i)
        if i == 8 + D: stamp(a, P, 's8')
    a('v_bfe_u32 v3, v0, 2, 1\nv_lshlrev_b32 v3, 9, v3\nv_and_b32 v4, 3, v0\nv_lshl_add_u32 v3, v4, 4, v3')
    a(f'v_lshrrev_b32 v4, 4, v0\nv_lshl_add_u32 v3, v4, 6, v3\nv_add_u32 v3, {L_Q}, v3')
    a('; ---- K prefetch ring is full: wait for q (LDS flag from the helper wave)')
    stamp(a, P, 'sB1a')
    q_wait(a, P, 'L_sq')
    stamp(a, P, 'sB1')
    a(f'ds_read_b128 v[{Q}:{Q+3}], v3\nds_read_b128 v[{Q+4}:{Q+7}], v3 offset:256')
    a(f'v_mov_b32 v4, 0xff800000\ns_mov_b32 s83, {hex(f2u(C_EXP))}\ns_waitcnt lgkmcnt(0)')
    chunks = []
    def kdpp(G):
        d = DT + 4 * (G & 1)
        a(f'v_mov_b32_dpp v{S+G}, v{d} quad_perm:[0,0,0,0] row_mask:0xf bank_mask:0xf')
        for r in range(1, 4):
            a(f'v_add_f32_dpp v{S+G}, v{d+r}, v{S+G} quad_perm:[{r},{r},{r},{r}] row_mask:0xf bank_mask:0xf')
        if G & 1:
            if not P['nornd']: a(f'v_cvt_pk_bf16_f32 v5, v{S+G-1}, v{S+G}\nv_lshlrev_b32 v{S+G-1}, 16, v5\nv_and_b32 v{S+G}, 0xffff0000, v5')
            a(f'v_max3_f32 v4, v4, v{S+G-1}, v{S+G}')
    def kchunk(G):
        def fn():
            d = DT + 4 * (G & 1)
            a(f'v_mfma_f32_16x16x32_bf16 v[{d}:{d+3}], {sl(2*G)}, v[{Q}:{Q+3}], 0')
            a(f'v_mfma_f32_16x16x32_bf16 v[{d}:{d+3}], {sl(2*G+1)}, v[{Q+4}:{Q+7}], v[{d}:{d+3}]')
            if G: kdpp(G - 1)
        return fn
    for G in range(32): chunks.append((2 * G + 1, [2 * G, 2 * G + 1], kchunk(G)))
    def sm0():
        kdpp(31)
        xgroup(a, 'v_max_f32', 4, 5)
        a('v_mul_f32 v6, s83, v4\nv_mov_b32 v7, 0')
        stamp(a, P, 'Kdone')
    chunks.append((63, [], sm0))
    def sm(k):
        def fn():
            for g in range(8 * k, 8 * k + 8): a(f'v_fma_f32 v{S+g}, v{S+g}, s83, -v6')
            for g in range(8 * k, 8 * k + 8): a(f'v_exp_f32 v{S+g}, v{S+g}')
            for g in range(8 * k, 8 * k + 8): a(f'v_add_f32 v7, v7, v{S+g}')
            for i in range(4 * k, 4 * k + 4): a(f'v_cvt_pk_bf16_f32 v{S+i}, v{S+2*i}, v{S+2*i+1}')
        return fn
    for k in range(4): chunks.append((63, [], sm(k)))
    def sm_end():
        xgroup(a, 'v_add_f32', 7, 5)
        a(f'v_mov_b32 v5, v7\nv_bfe_u32 v3, v0, 2, 1\nv_lshlrev_b32 v3, 6, v3\ns_lshl_b32 s37, s30, 3\ns_add_u32 s37, s37, {L_ML}\nv_add_u32 v3, s37, v3')
        a('s_mov_b64 exec, 0x11\nds_write_b64 v3, v[4:5]\ns_mov_b64 exec, -1')
    chunks.append((63, [], sm_end))
    AT = [32, 36]; PT = [40, 44, 8, 12]; ACC = DT
    late_ops = []; extra = [0]
    cnt = [0, 0]
    def vchunk(T, e, r):
        def fn():
            A = AT[cnt[0] & 1]; cnt[0] += 1
            mk = 64 + 2 * (4 * e + r)
            for p in range(4): a(f'v_cndmask_b32 v{A+p}, 0, v{S+4*T+p}, s[{mk}:{mk+1}]')
            for jj in range(2):
                j = 4 * jj + r; m, hh = j >> 1, j & 1
                B = PT[cnt[1] & 3]; cnt[1] += 1
                for p in range(4):
                    ev = vidx(T, 2 * p, e); od = vidx(T, 2 * p + 1, e)
                    a(f'v_perm_b32 v{B+p}, v{slot(od)+m}, v{slot(ev)+m}, s{80+hh}')
                c = '0' if (T == 0 and e == 0 and r == 0) else f'v[{ACC+4*jj}:{ACC+4*jj+3}]'
                a(f'v_mfma_f32_16x16x32_bf16 v[{ACC+4*jj}:{ACC+4*jj+3}], v[{A}:{A+3}], v[{B}:{B+3}], {c}')
        return fn
    for T in range(4):
        for e in range(2):
            for r in range(4):
                if lt and T == 3 and e == 1: continue
                fr = [vidx(T, g, e) for g in range(8)] if r == 3 else []
                chunks.append((vidx(T, 7, e), fr, vchunk(T, e, r)))
    if lt:
        FRG = lambda j: slot(112 + j)
        AM = [32, 36, 40, 44]
        def pre(p):
            def fn2():
                if p == 0:
                    for r in range(4):
                        for q in range(4): a(f'v_cndmask_b32 v{AM[r]+q}, 0, v{S+12+q}, s[{72+2*r}:{73+2*r}]')
                for j in range(8):
                    jj = (j & 1) * 4 + (j >> 1); m, hh = jj >> 1, jj & 1
                    a(f'v_perm_b32 v{FRG(jj)+p}, v{slot(vidx(3, 2*p+1, 1))+m}, v{slot(vidx(3, 2*p, 1))+m}, s{80+hh}')
                if p == 3:
                    for j in range(8):
                        jj = (j & 1) * 4 + (j >> 1); r = jj & 3; d = ACC + 4 * (jj >> 2)
                        a(f'v_mfma_f32_16x16x32_bf16 v[{d}:{d+3}], v[{AM[r]}:{AM[r]+3}], v[{FRG(jj)}:{FRG(jj)+3}], v[{d}:{d+3}]')
                        if P['late'] == 2 and j in (1, 3, 5): a(late_ops[j // 2])
                if P['late'] == 3 and p == 2:
                    for x in late_ops: a(x)
                    extra[0] = 3
            return fn2
        for p in range(4): chunks.append((vidx(3, 2 * p + 1, 1), [], pre(p)))
    freed = set(); ci = 0; landed = -1
    XR = RING + 4 * R
    if P['orc']: a('s_mov_b32 s62, 0')
    if P['stag']: a(f's_and_b32 s37, s30, {P["stp"]-1}\ns_mov_b32 s62, {P["stag"] | (P["stag"] << P["stp"])}\ns_lshr_b32 s62, s62, s37')
    if P['iw']: a(f's_mov_b32 s62, 0\ns_lshl_b32 s37, s30, 2\ns_add_u32 s37, s37, {L_PROG}\nv_mov_b32 v{XR+3}, s37\nv_and_b32 v{XR+2}, 7, v0\nv_lshlrev_b32 v{XR+2}, 2, v{XR+2}\nv_add_u32 v{XR+2}, {L_PROG}, v{XR+2}')
    if P['podd'] or P['peven']:
        a(f's_getreg_b32 s62, hwreg(HW_REG_XCC_ID)\ns_bitcmp1_b32 s62, 0\ns_mov_b32 s62, {P["peven"]}\ns_cselect_b32 s62, {P["podd"]}, s62')
    if P['ctl']: a(f's_mov_b32 s62, {P["mb"] if P["cver"] == 3 else 0}\ns_lshl_b32 s37, s30, 2\ns_add_u32 s37, s37, {L_PROG}\nv_mov_b32 v{XR+3}, s37\nv_mov_b32 v{XR+2}, {L_PROG}')
    if P['ctl'] and P['wd']: a(f'v_min_u32 v{XR+1}, 8, v0\nv_lshl_add_u32 v{XR+2}, v{XR+1}, 2, v{XR+2}')
    def run_chunk(issued):
        nonlocal ci, landed
        nd, fr, fn = chunks[ci]; ci += 1
        if nd > landed:
            a(f's_waitcnt vmcnt({issued-1-nd})'); landed = nd
        if not (P['nocomp'] and fr is not None and fn.__name__ == 'fn' and ci <= len(chunks) - 8): fn()
        freed.update(fr)
    for i in range(R, 128):
        while (i - R) not in freed: run_chunk(i)
        Di = P['Dend'] if (P['Dend'] and i >= 128 - P['nend']) else D
        pat = P['kpat'] if i < 64 else P['vpat']
        if pat and not (P['Dend'] and i >= 128 - P['nend']): Di = int(pat[i % len(pat)])
        if P['ctl'] and P['c0'] + P['lag'] < i <= P['c1'] + 6:
            if i % P['crd'] == P['crd'] - 1:
                if P['wd']:
                    a(f's_waitcnt lgkmcnt(0)\nv_cmp_gt_u32 vcc, {i - 1 - P["wd"]}, v{XR+1}\nv_readlane_b32 s62, v{XR+1}, 8')
                    a(f's_and_b32 s37, vcc_lo, 0xff\ns_cselect_b32 s37, {P["wm"]}, 0\ns_or_b32 s62, s62, s37')
                else: a(f's_waitcnt lgkmcnt(0)\nv_readfirstlane_b32 s62, v{XR+1}')
            if Di == 3 and P['b4']:
                bit = ((P['mb'] | P['mt'] | P['mo']) >> (i % 4) & 1)
                a(f's_waitcnt vmcnt(3)\ns_bitcmp1_b32 s62, 4\ns_cbranch_scc1 L_b{i}\ns_waitcnt vmcnt(2)')
                if bit: a(f's_bitcmp0_b32 s62, {i % 4}\ns_cbranch_scc1 L_b{i}\ns_waitcnt vmcnt(1)')
                a(f'L_b{i}:'); Di = 4
            elif Di == 3 and ((P['cmask'] if P['cver'] == 1 else P['cm1'] | P['cm2'] if P['cver'] == 2 else P['mb'] | P['mt'] | P['mo'] | (P['xmb'] | P['xmo'] if P['xl'] else 0) | (P['wm'] if P['wd'] else 0)) >> (i % P['mper']) & 1):
                a(f's_waitcnt vmcnt(2)\ns_bitcmp0_b32 s62, {i % P["mper"]}\ns_cbranch_scc1 L_b{i}\ns_waitcnt vmcnt(1)\nL_b{i}:')
        if P['iw'] and 30 < i <= 122:
            if i % P['iwp'] == 1:
                a(f's_waitcnt lgkmcnt(0)\nv_cmp_gt_u32 vcc, {i - 1 - P["iwd"]}, v{XR+1}\ns_cmp_lg_u32 vcc_lo, 0\ns_cselect_b32 s62, {P["iw"]}, 0')
            if Di == 3 and (P['iw'] >> (i % 4) & 1):
                a(f's_waitcnt vmcnt(2)\ns_bitcmp0_b32 s62, {i % 4}\ns_cbranch_scc1 L_b{i}\ns_waitcnt vmcnt(1)\nL_b{i}:')
        if P['stag'] and Di == 3:
            a(f's_waitcnt vmcnt(2)\ns_bitcmp0_b32 s62, {i % P["stp"]}\ns_cbranch_scc1 L_b{i}\ns_waitcnt vmcnt(1)\nL_b{i}:')
        if P['orc'] and i < 120:
            if i % 4 == 0: a('s_memrealtime s[96:97]')
            if i % 4 == 1: a(f's_waitcnt lgkmcnt(0)\ns_sub_u32 s96, s96, s98\ns_cmp_lt_u32 s96, {P["orc0"] + (i - 1) * P["orc"] // 10}\ns_cselect_b32 s62, {P["omask"]}, 0')
            if Di == 3 and (P['omask'] >> (i % 4) & 1):
                a(f's_waitcnt vmcnt(2)\ns_bitcmp0_b32 s62, {i % 4}\ns_cbranch_scc1 L_b{i}\ns_waitcnt vmcnt(1)\nL_b{i}:')
        if False: pass
        elif (P['podd'] or P['peven']) and i >= P['p0'] and ((P['podd'] | P['peven']) >> (i % 16) & 1):
            if (P['podd'] & P['peven']) >> (i % 16) & 1: a(f's_waitcnt vmcnt({Di})')
            else: a(f's_waitcnt vmcnt({Di})\ns_bitcmp1_b32 s62, {i % 16}\ns_cbranch_scc1 L_b{i}\ns_waitcnt vmcnt({Di-1})\nL_b{i}:')
            landed = max(landed, i - Di - 1)
        elif i - Di > landed:
            a(f's_waitcnt vmcnt({Di-1})'); landed = i - Di
        issue(i)
        if P['ctl'] and i % P['pw'] == 0 and P['c0'] <= i <= P['c1'] + 4: a(f'v_mov_b32 v{XR}, {i}\nds_write_b32 v{XR+3}, v{XR}')
        if P['ctl'] and i % P['crd'] == P['crd'] - 2 and P['c0'] + P['lag'] <= i <= P['c1'] + 5: a(f'ds_read_b32 v{XR+1}, v{XR+2}' + ('' if P['wd'] else ' offset:32'))
        if P['iw'] and i >= 26 and i <= 122: a(f'v_mov_b32 v{XR}, {i}\nds_write_b32 v{XR+3}, v{XR}')
        if P['iw'] and i % P['iwp'] == 0 and 30 <= i <= 121: a(f'ds_read_b32 v{XR+1}, v{XR+2}')
        if i == 44 + D: stamp(a, P, 's44')
        if i == 96 + D: stamp(a, P, 's96')
        n = 0
        while ci < len(chunks) and chunks[ci][0] <= landed and n < P['budget']:
            run_chunk(i + 1); n += 1
    def tail_addr():
        a(f'v_lshrrev_b32 v3, 5, v0\nv_lshlrev_b32 v3, 9, v3\nv_bfe_u32 v4, v0, 4, 1\nv_lshl_add_u32 v3, v4, 10, v3')
        a(f'v_and_b32 v4, 15, v0\nv_lshl_add_u32 v3, v4, 5, v3\ns_lshl_b32 s37, s30, 11\ns_add_u32 s37, s37, {L_PART}\nv_add_u32 v3, s37, v3')
        a(f's_lshl_b32 s37, s30, 8\ns_add_u32 s37, s37, {L_PART}\nv_lshl_add_u32 v4, v0, 2, s37')
        a(f's_lshr_b32 s37, s30, 2\ns_lshl_b32 s37, s37, 5\ns_add_u32 s37, s37, {L_F}\nv_mov_b32 v5, s37')
        if P['ov']:
            assert P['qx']
            a(f'v_lshlrev_b32 v6, 2, v0\ns_lshl_b32 s60, s38, 12')
            a(f's_lshl_b32 s37, s30, 8\ns_add_u32 s60, s60, s37\ns_add_u32 s60, s60, {QBUF}\ns_xor_b32 s85, s85, 0x55')
        else:
            a(f'v_lshlrev_b32 v6, 2, v0\ns_lshl_b32 s60, s38, 11\ns_lshl_b32 s37, s30, 8\ns_add_u32 s60, s60, s37\ns_add_u32 s60, s60, {OBUF}')
        a(f'v_lshrrev_b32 v1, 4, v0\nv_bfe_u32 v7, v0, 2, 2\nv_and_b32 v8, 3, v0')
        if P['late']:
            a(f'v_lshl_add_u32 v7, v1, 2, v7\nv_bfe_u32 v2, v7, 1, 2\nv_xor_b32 v2, s30, v2\nv_and_b32 v2, 3, v2\nv_lshlrev_b32 v7, 7, v7\nv_lshl_add_u32 v7, v8, 3, v7\nv_lshl_add_u32 v7, v2, 5, v7\nv_add_u32 v7, {L_WO}, v7')
        else:
            a(f'v_lshl_add_u32 v7, v1, 2, v7\nv_lshlrev_b32 v7, 7, v7\nv_lshl_add_u32 v7, v8, 3, v7\ns_lshl_b32 s37, s30, 5\ns_add_u32 s37, s37, {L_WO}\nv_add_u32 v7, s37, v7')
        a(f'v_and_b32 v2, 15, v0\nv_lshlrev_b32 v2, 4, v2\nv_lshl_add_u32 v2, v1, {12 if P["ov"] else 11}, v2')
        a(f's_lshl_b32 s61, s30, {17 if P["ov"] else 16}\ns_lshl_b32 s37, s31, {14 if P["ov"] else 13}\ns_add_u32 s61, s61, s37\ns_and_b32 s37, s32, 3\ns_lshl_b32 s37, s37, 9\ns_add_u32 s61, s61, s37\ns_add_u32 s61, s61, {QBUF if P["ov"] else OBUF}')
    nlate = 0
    while lt and ci < len(chunks) - 4: run_chunk(128)
    if P['late']:
        assert lt
        a('v_lshrrev_b32 v3, 3, v0\nv_mul_u32_u24 v4, 896, v3\nv_and_b32 v3, 6, v3\nv_xor_b32 v3, v3, v0\nv_and_b32 v3, 7, v3\nv_lshl_add_u32 v4, v3, 4, v4')
        a(f'v_mov_b32 v{XR+3}, v4')
        a('s_and_b32 s36, s32, 3\ns_lshl_b32 s37, s31, 2\ns_add_u32 s36, s36, s37\ns_lshr_b32 s39, s32, 2\ns_lshl_b32 s39, s39, 7')
        a(f's_mul_i32 s37, s36, 114688\ns_add_u32 s37, s37, s39\ns_cmp_lt_u32 s32, 28\ns_cselect_b32 s37, s37, 0\ns_cselect_b32 s62, {127*896+128}, 0')
        srd(a, 56, 12, 's37', 's62')
        a(f's_mul_i32 s37, s36, 50176\ns_add_u32 s37, s37, s39\ns_cmp_lt_u32 s32, 28\ns_cselect_b32 s37, s37, 0\ns_cselect_b32 s62, {55*896+128}, 0')
        srd(a, 48, 20, 's37', 's62')
        a(f's_mul_i32 s64, s30, {16*896}\ns_add_u32 s65, s64, {8*896}\ns_lshr_b32 s66, s64, 1\ns_lshl_b32 s67, s30, 11\ns_add_u32 s67, s67, {L_WO}\ns_lshl_b32 s68, s30, 10\ns_add_u32 s68, s68, {L_W2}')
        late_ops.extend([f's_mov_b32 m0, s67\nbuffer_load_dwordx4 v{XR+3}, s[56:59], s64 offen {P["opol"]} lds',
                         f's_add_u32 m0, s67, 1024\nbuffer_load_dwordx4 v{XR+3}, s[56:59], s65 offen {P["opol"]} lds',
                         f's_mov_b32 m0, s68\nbuffer_load_dwordx4 v{XR+3}, s[48:51], s66 offen {P["mpol"]} lds'])
        if P['late'] == 1:
            for x in late_ops: a(x)
            nlate = 3
    tail_addr()
    a(f'v_lshl_add_u32 v{XR+2}, v8, 2, v1\nv_lshlrev_b32 v{XR+2}, 1, v{XR+2}\ns_lshl_b32 s39, s32, 5')
    srd(a, 44, 22, None, 896)
    a(f'buffer_load_ushort v{XR}, v{XR+2}, s[44:47], s39 offen')
    srd(a, 40, 4, None, 7168)
    a(f's_mul_i32 s37, s31, 896\ns_add_u32 s63, s37, s39\nbuffer_load_ushort v{XR+1}, v{XR+2}, s[40:43], s63 offen')
    srd(a, 44, 24, None, 7168)
    while ci < len(chunks): run_chunk(130 + nlate + extra[0])
    stamp(a, P, 'Vlast')
    a('L_tail:')
    a(f'ds_write_b128 v3, v[{ACC}:{ACC+3}]\nds_write_b128 v3, v[{ACC+4}:{ACC+7}] offset:16\nv_mov_b32 v9, s85\ns_cmp_eq_u32 s87, 0\ns_waitcnt lgkmcnt(0)\ns_barrier')
    stamp(a, P, 'B2')
    for w in range(4): a(f'ds_read2st64_b32 v[{16+2*w}:{17+2*w}], v4 offset0:{16*w} offset1:{16*w+8}')
    a(f'ds_read_b128 v[24:27], v5\nds_read_b128 v[28:31], v5 offset:16\ns_waitcnt lgkmcnt(0)')
    a('v_mul_f32 v32, v16, v24\nv_mul_f32 v33, v17, v25')
    for w in range(2, 8): a(f'v_fmac_f32 v{32+(w&1)}, v{16+w}, v{24+w}')
    a('v_add_f32 v32, v32, v33\nv_bfi_b32 v32, s82, v9, v32')
    a('s_cbranch_scc1 L_owt\nbuffer_store_dword v32, v6, s[52:55], s60 offen\nL_owe:')
    stamp(a, P, 'ost')
    a('s_cmp_lt_u32 s32, 28\ns_cbranch_scc0 L_end')
    GL = 'buffer_load_dwordx4 v[16:19], v2, s[52:55], s61 offen sc1\nbuffer_load_dwordx4 v[20:23], v2, s[52:55], s61 offen offset:256 sc1'
    a(GL)
    BF, AF, DR = 56, 72, 88
    HA, B2F = 92, 100
    if P['late']:
        a(f'v_and_b32 v10, 7, v0\nv_mul_u32_u24 v10, {HSTR}, v10\nv_lshl_add_u32 v10, v1, 3, v10\nv_add_u32 v10, {L_H}, v10')
        for k in range(2): a(f'ds_read_b64 v[{HA+4*k}:{HA+4*k+1}], v10 offset:{k*64}\nds_read_b64 v[{HA+4*k+2}:{HA+4*k+3}], v10 offset:{k*64+32}')
    else:
        a('s_cmp_lt_u32 s30, 4\ns_cbranch_scc0 L_nofr')
        for jj in range(4):
            b = BF + 4 * jj
            a(f'ds_read_b64_tr_b16 v[{b}:{b+1}], v7 offset:{jj*4096}\nds_read_b64_tr_b16 v[{b+2}:{b+3}], v7 offset:{jj*4096+2048}')
        a(f's_lshl_b32 s37, s30, 10\ns_add_u32 s37, s37, {L_C}\nv_lshl_add_u32 v10, v0, 4, s37\nds_read_b128 v[{DR}:{DR+3}], v10')
        a('L_nofr:')
    a(f'v_and_b32 v4, 15, v0\nv_lshlrev_b32 v4, 3, v4\nv_and_b32 v5, 1, v1\nv_lshl_add_u32 v4, v5, 2, v4\nv_lshrrev_b32 v5, 1, v1\nv_lshl_add_u32 v4, v5, 7, v4')
    a(f's_mul_i32 s37, s30, {OSTR}\ns_add_u32 s37, s37, {L_O}\nv_add_u32 v5, s37, v4')
    a(f'v_and_b32 v12, 7, v0\nv_mul_u32_u24 v12, {OSTR}, v12\nv_lshl_add_u32 v12, v1, 3, v12\nv_add_u32 v12, {L_O}, v12')
    a(f's_and_b32 s60, s32, 28\ns_add_u32 s60, s60, s30\ns_lshl_b32 s60, s60, 5\ns_lshl_b32 s37, s31, 2\ns_add_u32 s60, s60, s37\ns_and_b32 s37, s32, 3\ns_add_u32 s60, s60, s37')
    a(f's_lshl_b32 s60, s60, 9\ns_add_u32 s60, s60, {PBUF}\ns_mov_b32 s86, {P["spin"]}')
    a('s_branch L_gchk')
    a('L_gpoll:')
    if P['rex']: a('s_mov_b64 exec, vcc')
    if P['gsl']: a(f's_sleep {P["gsl"]}')
    a(GL)
    a('L_gchk:')
    a('s_waitcnt vmcnt(0)')
    tag_check(a, range(16, 24), 10, 11, 4)
    a('s_sub_u32 s86, s86, 1\ns_cbranch_scc1 L_gdone\ns_cbranch_vccnz L_gpoll')
    a('L_gdone:')
    if P['rex']: a('s_mov_b64 exec, -1')
    stamp(a, P, 'gok')
    for p in (16, 17, 20, 21): a(f'v_permlane16_swap_b32 v{p}, v{p+2}')
    for p in (16, 17, 20, 21): a(f'v_add_f32 v{p}, v{p}, v{p+2}')
    a('v_permlane32_swap_b32 v16, v20\nv_permlane32_swap_b32 v17, v21\nv_add_f32 v16, v16, v20\nv_add_f32 v17, v17, v21')
    a('v_cvt_pk_bf16_f32 v16, v16, v17\nds_write_b32 v5, v16\ns_waitcnt lgkmcnt(0)\ns_barrier')
    stamp(a, P, 'B3')
    a('s_cmp_lt_u32 s30, 4\ns_cbranch_scc0 L_fin')
    if P['late']:
        d2 = L_W2 - L_WO
        for k in range(2): a(f'ds_read_b64_tr_b16 v[{B2F+4*k}:{B2F+4*k+1}], v7 offset:{d2+k*4096}\nds_read_b64_tr_b16 v[{B2F+4*k+2}:{B2F+4*k+3}], v7 offset:{d2+k*4096+2048}')
        for jj in range(4):
            b = BF + 4 * jj
            a(f'ds_read_b64 v[{AF+4*jj}:{AF+4*jj+1}], v12 offset:{jj*64}\nds_read_b64 v[{AF+4*jj+2}:{AF+4*jj+3}], v12 offset:{jj*64+32}')
            a(f'ds_read_b64_tr_b16 v[{b}:{b+1}], v7 offset:{jj*4096}\nds_read_b64_tr_b16 v[{b+2}:{b+3}], v7 offset:{jj*4096+2048}')
            if jj == 1:
                for k in range(2):
                    a(f's_waitcnt lgkmcnt({10-2*k})')
                    a(f'v_mfma_f32_16x16x32_bf16 v[{DR}:{DR+3}], v[{HA+4*k}:{HA+4*k+3}], v[{B2F+4*k}:{B2F+4*k+3}], ' + ('0' if k == 0 else f'v[{DR}:{DR+3}]'))
        for jj in range(4):
            a(f's_waitcnt lgkmcnt({12-4*jj})')
            a(f'v_mfma_f32_16x16x32_bf16 v[{DR}:{DR+3}], v[{AF+4*jj}:{AF+4*jj+3}], v[{BF+4*jj}:{BF+4*jj+3}], v[{DR}:{DR+3}]')
    else:
        for jj in range(4): a(f'ds_read_b64 v[{AF+4*jj}:{AF+4*jj+1}], v12 offset:{jj*64}\nds_read_b64 v[{AF+4*jj+2}:{AF+4*jj+3}], v12 offset:{jj*64+32}')
        for jj in range(4):
            a(f's_waitcnt lgkmcnt({6-2*jj})')
            a(f'v_mfma_f32_16x16x32_bf16 v[{DR}:{DR+3}], v[{AF+4*jj}:{AF+4*jj+3}], v[{BF+4*jj}:{BF+4*jj+3}], v[{DR}:{DR+3}]')
    a(f'v_permlane32_swap_b32 v{DR}, v{DR+1}\nv_permlane32_swap_b32 v{DR+2}, v{DR+3}')
    tag_put(a, (DR, DR + 2), 9, 82, 0x200)
    a(f'buffer_store_dword v{DR}, v6, s[52:55], s60 offen {P["ppol"]}\nbuffer_store_dword v{DR+2}, v6, s[52:55], s60 offen offset:256 {P["ppol"]}')
    stamp(a, P, 'pst')
    if P['diag']:
        a('s_cmp_lg_u32 s30, 0\ns_cbranch_scc1 L_end')
        stamp_store(a, P, stamp_items(P, [x for x in S_PTS if x not in ('g2ok', 'end', 'fst', 'fcnt')]), hw=True)
    a('s_endpgm')
    a('L_owt:\nbuffer_store_dword v32, v6, s[52:55], s60 offen sc1\ns_branch L_owe')
    a('; ---- wave 7: sum the 32 partial products of 16 output columns, add x and b2, store')
    a('L_fin:')
    if P['wb']:
        a('s_cmp_eq_u32 s30, 5\ns_cbranch_scc0 L_nowb\ns_cmp_eq_u32 s32, 0\ns_cbranch_scc0 L_end\nbuffer_wbl2 sc1\ns_waitcnt vmcnt(0)\ns_endpgm\nL_nowb:')
    a('s_cmp_eq_u32 s30, 7\ns_cbranch_scc0 L_end')
    a('v_and_b32 v8, 3, v0')
    a(f'v_lshrrev_b32 v2, 2, v0\nv_lshlrev_b32 v2, 9, v2\nv_lshl_add_u32 v2, v8, 4, v2\nv_add_u32 v3, 8192, v2')
    a(f's_lshl_b32 s61, s32, 14\ns_and_b32 s37, s31, 3\ns_lshl_b32 s37, s37, 7\ns_add_u32 s61, s61, s37\ns_lshr_b32 s37, s31, 2\ns_lshl_b32 s37, s37, 6\ns_add_u32 s61, s61, s37\ns_add_u32 s61, s61, {PBUF}\ns_mov_b32 s86, {P["spin"]}')
    a(f'v_lshlrev_b32 v24, 16, v{XR}\nv_lshlrev_b32 v25, 16, v{XR+1}\nv_add_f32 v24, v24, v25')
    stamp(a, P, 'fst')
    a('L_fpoll:')
    a(f'buffer_load_dwordx4 v[16:19], v2, s[52:55], s61 offen {P["lpol"]}\nbuffer_load_dwordx4 v[20:23], v3, s[52:55], s61 offen {P["lpol"]}')
    a('s_waitcnt vmcnt(0)')
    tag_check(a, range(16, 24), 8, 9, 10)
    a('s_sub_u32 s86, s86, 1\ns_cbranch_scc1 L_fdone\ns_cbranch_vccz L_fdone')
    if P['fthr']:
        a(f's_bcnt1_i32_b64 s37, vcc\ns_cmp_lt_u32 s37, {P["fthr"]}\ns_cbranch_scc1 L_fpoll\ns_sleep {P["fsl2"]}')
    if P['fsl']: a(f's_sleep {P["fsl"]}')
    if P['rex']: a('s_mov_b64 exec, vcc')
    a('s_branch L_fpoll')
    a('L_fdone:')
    if P['rex']: a('s_mov_b64 exec, -1')
    stamp(a, P, 'g2ok')
    if P['diag'] and 'fcnt' in pts(P):
        r = 88 + 2 * pts(P).index('fcnt'); r0 = 88 + 2 * pts(P).index('fst')
        a(f's_sub_u32 s37, {P["spin"]}, s86\ns_mul_i32 s37, s37, 100\ns_add_u32 s{r}, s{r0}, s37\ns_addc_u32 s{r+1}, s{r0+1}, 0')
    for i in range(4): a(f'v_add_f32 v{16+i}, v{16+i}, v{20+i}')
    a('v_permlane16_swap_b32 v16, v17\nv_permlane16_swap_b32 v18, v19\nv_add_f32 v16, v16, v17\nv_add_f32 v18, v18, v19')
    a('v_permlane32_swap_b32 v16, v18\nv_add_f32 v16, v16, v18')
    a('v_add_f32_dpp v16, v16, v16 row_ror:4 row_mask:0xf bank_mask:0xf')
    a('v_add_f32_dpp v16, v16, v16 row_ror:8 row_mask:0xf bank_mask:0xf')
    a('v_add_f32 v16, v16, v24\nv_cvt_pk_bf16_f32 v16, v16, v16')
    a('s_mov_b32 exec_lo, 0x000f000f\ns_mov_b32 exec_hi, 0x000f000f')
    a(f'buffer_store_short v16, v{XR+2}, s[44:47], s63 offen {P["outpol"]}')
    a('s_cmp_lg_u32 s2, 0\ns_cbranch_scc1 L_noep')
    a('v_mov_b32 v8, 0\nv_mov_b32 v9, s84\ns_mov_b64 exec, 1\nbuffer_store_dword v9, v8, s[52:55], 0 offen')
    a('L_noep:')
    if P['hold']:
        a(f'L_hold:\ns_memrealtime s[96:97]\ns_waitcnt lgkmcnt(0)\ns_sub_u32 s96, s96, s98\ns_cmp_lt_u32 s96, {P["hold"]}\ns_cbranch_scc1 L_hold')
    if P['diag']:
        a('s_mov_b64 exec, -1\ns_waitcnt vmcnt(0)')
        stamp(a, P, 'end')
        stamp_store(a, P, stamp_items(P, ['g2ok', 'end', 'fst', 'fcnt']))
    a('s_endpgm')

def dma_loop(a, lab, n, depth, vaddr, sstep, lds0, pol):
    a(f's_mov_b32 s36, 0\ns_mov_b32 s62, {lds0}\ns_mov_b32 s63, {n}')
    a(f'{lab}:')
    a(f's_mov_b32 m0, s62\ns_waitcnt vmcnt({depth-1})')
    a(f'buffer_load_dwordx4 v{vaddr}, s[56:59], s36 offen {pol} lds')
    a(f's_add_u32 s36, s36, {sstep}\ns_add_u32 s62, s62, 1024\ns_sub_u32 s63, s63, 1\ns_cmp_lg_u32 s63, 0\ns_cbranch_scc1 {lab}')

XF, FF, TT = 16, 44, 100
def x_addr(a):
    a('v_and_b32 v10, 15, v0\nv_lshrrev_b32 v9, 4, v0\nv_and_b32 v8, 7, v0\nv_mul_u32_u24 v8, 896, v8')
    a('v_bfe_u32 v3, v0, 3, 1\nv_mul_u32_u24 v3, 448, v3\nv_lshl_add_u32 v8, v9, 4, v8\nv_add_u32 v8, v8, v3')
def x_load(a, P):
    srd(a, 48, 4, None, 7168)
    for ks in range(7): a(f'buffer_load_dwordx4 v[{XF+4*ks}:{XF+4*ks+3}], v8, s[48:51], 0 offen offset:{ks*64} {P["xpol"]}')
def tag_check(a, regs, t0, t1, acc, mask=TMASK):
    regs = list(regs)
    ts = 's85' if mask == TMASK else 's80'
    for r in regs: a(f'v_xor_b32 v{r}, {ts}, v{r}')
    two = len(regs) >= 6
    a(f'v_or_b32 v{acc}, v{regs[0]}, v{regs[1]}')
    rest = regs[2:]
    if two: a(f'v_or3_b32 v{t0}, v{rest[0]}, v{rest[1]}, v{rest[2]}'); rest = rest[3:]
    k = 0
    while len(rest) >= 2:
        d = t0 if (two and k & 1) else acc
        a(f'v_or3_b32 v{d}, v{d}, v{rest[0]}, v{rest[1]}'); rest = rest[2:]; k += 1
    if two and rest: a(f'v_or3_b32 v{acc}, v{acc}, v{t0}, v{rest[0]}')
    elif two: a(f'v_or_b32 v{acc}, v{acc}, v{t0}')
    elif rest: a(f'v_or_b32 v{acc}, v{acc}, v{rest[0]}')
    a(f'v_and_b32 v{acc}, {mask}, v{acc}\nv_cmp_ne_u32 vcc, 0, v{acc}')
def tag_put(a, regs, tagv, ms, half):
    for r in regs: a(f'v_add_u32 v{r}, {half}, v{r}')
    for r in regs: a(f'v_bfi_b32 v{r}, s{ms}, v{tagv}, v{r}')
def tag_strip(a, regs, half, ms=82):
    for r in regs: a(f'v_bfi_b32 v{r}, s{ms}, v{half}, v{r}')
_st = [0]; HPOL = ['']
def hand_store(a, ins):
    _st[0] += 1; n = _st[0]
    a(f's_cmp_eq_u32 s87, 0\ns_cbranch_scc1 L_wt{n}\n{ins} {HPOL[0]}\ns_branch L_we{n}\nL_wt{n}:\n{ins} sc1\nL_we{n}:')

def unit_gemm(a, lds, va, st_v, st_s, tagv, ms, before_pub=None, exact=False):
    TA, DQ = 44, 108
    seq = [(t, ks) for t in range(4) for ks in range(4)]
    def rd(n):
        t, ks = seq[n]; r = TA + 4 * n; o = lds + ks * 4096 + t * 32
        a(f'ds_read_b64_tr_b16 v[{r}:{r+1}], v{va} offset:{o}\nds_read_b64_tr_b16 v[{r+2}:{r+3}], v{va} offset:{o+512}')
    def pub(t):
        if exact:
            for u in range(2):
                r = 128 + 8 * (t & 1) + 4 * u
                a(f'v_mov_b32 v{r}, v{DQ+4*t+2*u}\nv_mov_b32 v{r+1}, v{DQ+4*t+2*u+1}')
                hand_store(a, f'buffer_store_dwordx4 v[{r}:{r+3}], v{st_v}, s[52:55], s{st_s} offen offset:{t*128+u*64}')
            return
        tag_put(a, range(DQ + 4 * t, DQ + 4 * t + 4), tagv, ms, 0x80 if ms == 81 else 0x200)
        hand_store(a, f'buffer_store_dwordx4 v[{DQ+4*t}:{DQ+4*t+3}], v{st_v}, s[52:55], s{st_s} offen offset:{t*64}')
    for n in range(6): rd(n)
    if exact:
        for k in range(4): a(f'v_mov_b32 v{130+4*k}, s84\nv_mov_b32 v{131+4*k}, s84')
    for n, (t, ks) in enumerate(seq):
        if n + 6 < 16: rd(n + 6)
        a(f's_waitcnt lgkmcnt({2*min(6, 15-n)})')
        r = TA + 4 * n; d = DQ + 4 * t
        c = '0' if ks == 0 else f'v[{d}:{d+3}]'
        a(f'v_mfma_f32_16x16x32_bf16 v[{d}:{d+3}], v[{r}:{r+3}], v[{XF+4*ks}:{XF+4*ks+3}], {c}')
        if before_pub is None and n in (7, 11, 15): pub(n // 4 - 1)
    if before_pub is not None:
        before_pub()
        for t in range(3): pub(t)
    pub(3)

def helper(a, P):
    a('L_helper:')
    if P['ctl']: a('s_cmp_eq_u32 s30, 9\ns_cbranch_scc1 L_ctl')
    stamp(a, P, 'hstart')
    if P['cpf']:
        a('s_getpc_b64 s[56:57]\ns_mov_b32 s58, 4352\ns_mov_b32 s59, 0x20000\nv_lshlrev_b32 v1, 6, v0')
        a('buffer_load_dword v15, v1, s[56:59], 0 offen offset:256')
    x_addr(a)
    a('v_lshrrev_b32 v4, 3, v0\nv_lshlrev_b32 v1, 13, v4\nv_and_b32 v2, 7, v0\nv_lshl_add_u32 v1, v2, 4, v1')
    a('v_mul_u32_u24 v4, 3584, v4\nv_lshl_add_u32 v4, v2, 4, v4')
    a('s_and_b32 s63, s32, 1\ns_bfe_u32 s62, s32, 0x10001\ns_mul_i32 s64, s62, 224\ns_lshl_b32 s36, s63, 7\ns_add_u32 s64, s64, s36')
    a('s_lshl_b32 s65, s63, 5\ns_sub_u32 s65, 127, s65\ns_lshr_b32 s66, s32, 2')
    a('s_lshl_b32 s37, s64, 13\ns_lshl_b32 s39, s31, 3\ns_add_u32 s39, s39, s66\ns_lshl_b32 s39, s39, 7\ns_add_u32 s37, s37, s39')
    a('s_lshl_b32 s39, s65, 13\ns_add_u32 s39, s39, 128')
    a('s_lshl_b32 s60, s63, 8\ns_mul_i32 s61, s63, 192\ns_sub_u32 s61, 192, s61')
    a('s_waitcnt lgkmcnt(0)')
    stamp(a, P, 'hkarg')
    a('s_load_dword s84, s[28:29], 0')
    srd(a, 48, 4, None, 7168)
    for ks in range(7):
        if ks < 3: a(f'buffer_load_dwordx4 v[{XF+4*ks}:{XF+4*ks+3}], v8, s[48:51], s60 offen offset:{ks*64} {P["xpol"]}')
        else: a(f'buffer_load_dwordx4 v[{XF+4*ks}:{XF+4*ks+3}], v8, s[48:51], s61 offen offset:{(ks-3)*64} {P["xpol"]}')
    if P['abl'] & 2: a('s_mov_b32 s39, 0')
    srd(a, 56, 10, 's37', 's39')
    for i in range(16):
        a(f's_mov_b32 m0, {L_WQ+i*1024}\ns_mov_b32 s36, {i*65536}')
        a(f'buffer_load_dwordx4 v1, s[56:59], s36 offen {P["wpol"]} lds')
    stamp(a, P, 'wqiss')
    a(f'v_mov_b32 v126, -1\nv_mov_b32 v127, -1\nv_lshlrev_b32 v3, 3, v0\nv_add_u32 v3, {L_ML}, v3\nv_mov_b32 v5, {L_TAG}')
    a('s_mov_b64 exec, 0xffff\nds_write_b64 v3, v[126:127]\nds_write_b64 v5, v[126:127]\ns_mov_b64 exec, -1')
    if P['iw']: a(f'v_mov_b32 v126, 0\nv_and_b32 v3, 7, v0\nv_lshlrev_b32 v3, 2, v3\nv_add_u32 v3, {L_PROG}, v3\nds_write_b32 v3, v126')
    srd(a, 52, 28, None, WS_USED)
    a(f'v_lshlrev_b32 v2, 4, v0\ns_getreg_b32 s68, hwreg(HW_REG_XCC_ID)\ns_and_b32 s68, s68, 15\ns_lshl_b32 s68, s68, 12')
    a(f's_lshl_b32 s69, s31, 12\ns_add_u32 s69, s69, {XBUF}\ns_lshl_b32 s37, s32, 7\ns_add_u32 s37, s37, s69\ns_waitcnt lgkmcnt(0)')
    a(f's_add_u32 s84, s84, 0x9E3779B9\ns_and_b32 s85, s84, {TMASK}\ns_and_b32 s80, s84, {QMASK}\ns_or_b32 s68, s68, s85\nv_mov_b32 v6, s85\nv_mov_b32 v124, s68')
    a('s_mov_b64 exec, 1\nbuffer_store_dword v124, v2, s[52:55], s37 offen sc1\ns_mov_b64 exec, -1')
    stamp(a, P, 'xst')
    a('s_barrier')
    a('v_and_b32 v125, 31, v0\nv_lshlrev_b32 v125, 7, v125')
    a(f'v_mov_b32 v14, {hex(OOB)}\ns_mov_b32 s82, {TMASK}\ns_mov_b32 s81, {QMASK}\ns_mov_b32 s83, {hex(f2u(C_EXP))}')
    a(f'v_bfe_u32 v3, v0, 2, 2\nv_lshl_add_u32 v12, v9, 3, v3\nv_lshlrev_b32 v12, 7, v12\nv_and_b32 v5, 3, v0\nv_lshl_add_u32 v12, v5, 3, v12')
    a(f'v_and_b32 v5, 7, v0\nv_lshlrev_b32 v13, {17 if P["qx"] else 16}, v5\nv_lshl_add_u32 v13, v9, 4, v13\nv_bfe_u32 v3, v0, 3, 1\nv_cmp_eq_u32 vcc, s62, v3')
    a(f'v_lshlrev_b32 v5, 12, v5\nv_lshl_add_u32 v5, v9, 4, v5\nv_cndmask_b32 v13, v14, v13, vcc\nv_cndmask_b32 v5, v14, v5, vcc')
    if P['qx']: a(f's_and_b32 s37, s32, 3\ns_lshl_b32 s60, s37, 12\ns_lshl_b32 s39, s31, 14\ns_add_u32 s60, s60, s39\ns_lshl_b32 s39, s66, 9\ns_add_u32 s60, s60, s39\ns_add_u32 s60, s60, {QBUF}')
    else:
        a(f's_and_b32 s37, s32, 3\ns_lshl_b32 s60, s37, 14\ns_lshl_b32 s39, s31, 11\ns_add_u32 s60, s60, s39\ns_lshl_b32 s39, s66, 8\ns_add_u32 s60, s60, s39\ns_add_u32 s60, s60, {QBUF}')
    a(f's_lshl_b32 s70, s37, 10\ns_and_b32 s39, s66, 3\ns_lshl_b32 s39, s39, 8\ns_add_u32 s70, s70, s39\ns_lshl_b32 s39, s31, 15\ns_add_u32 s70, s70, s39\ns_add_u32 s70, s70, {HBUF}')
    a('s_waitcnt vmcnt(17)')
    stamp(a, P, 'xland')
    layernorm(a, XF, FF, TT)
    stamp(a, P, 'lndone')
    a('s_mov_b64 exec, 0xffffffff\nbuffer_load_dword v124, v125, s[52:55], s69 offen sc1\ns_mov_b64 exec, -1')
    a('s_waitcnt vmcnt(2) lgkmcnt(0)')
    stamp(a, P, 'wqland')
    def loc_check():
        a('s_waitcnt vmcnt(0)\nv_cmp_ne_u32 vcc, s68, v124\ns_cmp_eq_u32 vcc_lo, 0')
        for k in range(P['xretry']):
            a('s_cbranch_scc1 L_xok\ns_mov_b64 exec, 0xffffffff\nbuffer_load_dword v124, v125, s[52:55], s69 offen sc1\ns_mov_b64 exec, -1')
            a('s_waitcnt vmcnt(0)\nv_cmp_ne_u32 vcc, s68, v124\ns_cmp_eq_u32 vcc_lo, 0')
        a('L_xok:')
        a('s_cselect_b32 s87, 1, 0' if P['loc'] else 's_mov_b32 s87, 0')
        stamp(a, P, 'xid')
        if P['diag'] and 'locv' in pts(P):
            a('s_cmp_lg_u32 s87, 0\ns_cbranch_scc1 L_locv'); stamp(a, P, 'locv'); a('L_locv:')
    if P['abl'] & 4: loc_check(); a('s_branch L_qdone')
    unit_gemm(a, L_WQ, 12, 13, 60, 6, 81, None if P['abl'] & 4 else loc_check, P['qx'])
    stamp(a, P, 'qpub')
    if P['qx']: a(f's_lshr_b32 s61, s38, 2\ns_lshl_b32 s61, s61, 14\ns_add_u32 s61, s61, {QBUF}\ns_mov_b32 s72, s84\ns_mov_b32 s73, s84')
    else:
        a(f's_lshl_b32 s61, s33, 16\ns_lshl_b32 s37, s31, 11\ns_add_u32 s61, s61, s37\ns_add_u32 s61, s61, {QBUF}')
    a(f's_mov_b32 s86, {P["spin"]}')
    a('L_qpoll:')
    a(f's_sleep {P["qsl"]}')
    a('s_mov_b32 s36, s61')
    if P['qx']:
        for kq in range(4):
            for m in range(4): a(f'buffer_load_dwordx4 v[{44+16*kq+4*m}:{47+16*kq+4*m}], v2, s[52:55], s36 offen offset:{m*1024} sc1')
            if kq < 3: a('s_add_u32 s36, s36, 4096')
    else:
        for kq in range(4):
            for m in range(2): a(f'buffer_load_dwordx4 v[{44+8*kq+4*m}:{47+8*kq+4*m}], v2, s[52:55], s36 offen offset:{m*1024} sc1')
            if kq < 3: a('s_add_u32 s36, s36, 16384')
    a(f's_mov_b64 exec, 0xffffffff\nbuffer_load_dword v124, v125, s[52:55], s69 offen sc1\ns_mov_b64 exec, -1\ns_waitcnt vmcnt(0)')
    if P['qx']:
        a('s_mov_b64 vcc, 0')
        for n in range(16):
            a(f'v_cmp_ne_u64 s[{74+2*(n%3)}:{75+2*(n%3)}], s[72:73], v[{46+4*n}:{47+4*n}]')
            if n >= 2: a(f's_or_b64 vcc, vcc, s[{74+2*((n-2)%3)}:{75+2*((n-2)%3)}]')
        for n in (14, 15): a(f's_or_b64 vcc, vcc, s[{74+2*(n%3)}:{75+2*(n%3)}]')
    else: tag_check(a, range(44, 76), 100, 101, 102, QMASK)
    a('s_sub_u32 s86, s86, 1\ns_cbranch_scc1 L_qdone\ns_cbranch_vccnz L_qpoll')
    a('L_qdone:')
    stamp(a, P, 'qok')
    a('v_cmp_ne_u32 vcc, s68, v124\ns_cmp_eq_u32 vcc_lo, 0')
    a('s_cselect_b32 s87, 1, 0' if P['loc'] else 's_mov_b32 s87, 0')
    if P['qx']:
        for kq in range(1, 4):
            for m in range(4): a(f'v_pk_add_f32 v[{44+4*m}:{45+4*m}], v[{44+4*m}:{45+4*m}], v[{44+16*kq+4*m}:{45+16*kq+4*m}]')
        a(f'v_lshrrev_b32 v3, 3, v0\nv_lshlrev_b32 v3, 5, v3\nv_and_b32 v15, 3, v0\nv_lshl_add_u32 v3, v15, 3, v3\nv_and_b32 v15, 4, v0\nv_add_u32 v3, v3, v15\nv_add_u32 v3, {L_Q}, v3')
        a(f'v_mov_b32 v13, {L_TAG}\nv_mov_b32 v108, s84\nv_mov_b32 v109, s87')
        for m in range(4): a(f'v_cvt_pk_bf16_f32 v{44+4*m}, v{44+4*m}, v{45+4*m}\nds_write_b32 v3, v{44+4*m} offset:{m*256}')
        a('s_waitcnt lgkmcnt(0)\nds_write_b64 v13, v[108:109]')
    else:
        for kq in range(1, 4):
            for m in range(4): a(f'v_pk_add_f32 v[{44+2*m}:{45+2*m}], v[{44+2*m}:{45+2*m}], v[{44+8*kq+2*m}:{45+8*kq+2*m}]')
        a(f'v_lshlrev_b32 v3, 3, v0\nv_add_u32 v3, {L_Q}, v3\nv_mov_b32 v13, {L_TAG}\nv_mov_b32 v100, s84\nv_mov_b32 v101, s87')
        for m in range(4): a(f'v_cvt_pk_bf16_f32 v{52+m}, v{44+2*m}, v{45+2*m}')
        a('ds_write_b64 v3, v[52:53]\nds_write_b64 v3, v[54:55] offset:512\ns_waitcnt lgkmcnt(0)\nds_write_b64 v13, v[100:101]')
    stamp(a, P, 'B1')
    if P['pt']:
        a('v_mov_b32 v3, 0\ns_mov_b64 exec, 1\ns_lshl_b32 s37, s38, 19')
        srd(a, 48, 8, 's37', 64); a('buffer_load_dword v110, v3, s[48:51], 0 offen nt')
        a('s_mul_i32 s37, s31, 458752'); srd(a, 48, 12, 's37', 64); a('buffer_load_dword v111, v3, s[48:51], 0 offen nt')
        a('s_add_u32 s37, s37, 458688'); srd(a, 48, 12, 's37', 64); a('buffer_load_dword v112, v3, s[48:51], 0 offen nt')
        srd(a, 48, 20, None, 64); a('buffer_load_dword v113, v3, s[48:51], 0 offen nt')
        srd(a, 48, 22, None, 64); a('buffer_load_dword v114, v3, s[48:51], 0 offen nt')
        a('s_mov_b64 exec, -1')
    if P['abl'] & 1: a('s_branch L_now')
    a('s_cmp_ge_u32 s66, 4\ns_cbranch_scc0 L_noh')
    a('s_mul_i32 s67, s31, 7\ns_lshr_b32 s67, s67, 1\ns_and_b32 s39, s66, 3\ns_add_u32 s67, s67, s39\ns_mul_i32 s37, s64, 3584\ns_lshl_b32 s39, s67, 7\ns_add_u32 s37, s37, s39')
    a('s_mul_i32 s39, s65, 3584\ns_add_u32 s39, s39, 128')
    srd(a, 56, 16, 's37', 's39')
    dma_loop(a, 'L_w1', 16, P['DH'], 4, 8 * 3584, L_W1, P['wpol'])
    layernorm(a, XF, FF, TT, 16)
    a('s_waitcnt vmcnt(0)')
    unit_gemm(a, L_W1, 12, 5, 70, 6, 82)
    a('L_noh:')
    stamp(a, P, 'hpub')
    a('s_cmp_lt_u32 s32, 28\ns_cbranch_scc0 L_now')
    a('v_lshrrev_b32 v1, 3, v0\nv_mul_u32_u24 v1, 896, v1\nv_and_b32 v3, 7, v0\nv_lshl_add_u32 v1, v3, 4, v1')
    a('s_and_b32 s64, s32, 3\ns_lshl_b32 s65, s31, 2\ns_add_u32 s65, s65, s64')
    if not P['late']:
        a(f's_mul_i32 s37, s65, 50176\ns_lshl_b32 s39, s66, 7\ns_add_u32 s37, s37, s39')
        srd(a, 56, 20, 's37', 55 * 896 + 128)
        dma_loop(a, 'L_w2', 8, P['DH'], 1, 8 * 896, L_W2, P['mpol'])
        if not P['nowo']:
            a(f's_mul_i32 s37, s65, 114688\ns_lshl_b32 s39, s66, 7\ns_add_u32 s37, s37, s39\ns_sub_u32 s39, {4096*896}, s37')
            srd(a, 56, 12, 's37', 's39')
            dma_loop(a, 'L_wo', 16, P['DH'], 1, 8 * 896, L_WO, P['opol'])
    stamp(a, P, 'wodone')
    a('v_min_u32 v3, 13, v10\nv_lshlrev_b32 v4, 12, v9\nv_lshl_add_u32 v4, v3, 4, v4\nv_lshlrev_b32 v5, 3, v3')
    a(f's_lshl_b32 s61, s31, 15\ns_mul_i32 s37, s64, 224\ns_add_u32 s61, s61, s37\ns_and_b32 s37, s31, 1\ns_lshl_b32 s37, s37, 7\ns_add_u32 s61, s61, s37\ns_add_u32 s61, s61, {HBUF}')
    srd(a, 48, 18, None, 3584)
    a(f's_mul_i32 s37, s65, 112\nbuffer_load_dwordx2 v[20:21], v5, s[48:51], s37 offen\ns_add_u32 s60, s61, 16384\ns_mov_b32 s86, {P["spin"]}')
    a('L_hp:')
    for ps in range(2):
        for kq in range(4): a(f'buffer_load_dwordx4 v[{44+16*ps+4*kq}:{47+16*ps+4*kq}], v4, s[52:55], s{61-ps} offen offset:{kq*1024} sc1')
    a('s_waitcnt vmcnt(0)')
    tag_check(a, range(44, 76), 16, 17, 18)
    a('s_sub_u32 s86, s86, 1\ns_cbranch_scc1 L_hpd\ns_cbranch_vccz L_hpd\ns_sleep 16\ns_branch L_hp')
    a('L_hpd:')
    for ps in range(2):
        for kq in range(1, 4):
            for m in range(2): a(f'v_pk_add_f32 v[{44+16*ps+2*m}:{45+16*ps+2*m}], v[{44+16*ps+2*m}:{45+16*ps+2*m}], v[{44+16*ps+4*kq+2*m}:{45+16*ps+4*kq+2*m}]')
    unpack(a, 20, 24, 2)
    a('v_cvt_pk_bf16_f32 v16, v44, v45\nv_cvt_pk_bf16_f32 v17, v46, v47\nv_cvt_pk_bf16_f32 v18, v60, v61\nv_cvt_pk_bf16_f32 v19, v62, v63')
    unpack(a, 16, 32, 4)
    for i in range(8): a(f'v_add_f32 v{32+i}, v{32+i}, v{24+(i&3)}')
    for i in range(4): a(f'v_cvt_pk_bf16_f32 v{16+i}, v{32+2*i}, v{33+2*i}')
    unpack(a, 16, 32, 4)
    k0 = 2 * 0.7978845608028654 * math.log2(math.e); k1 = k0 * 0.044715
    a(f's_mov_b32 s62, {hex(f2u(-k1))}\nv_mov_b32 v15, {hex(f2u(-k0))}')
    for i in range(8): a(f'v_mul_f32 v{44+i}, v{32+i}, v{32+i}')
    for i in range(8): a(f'v_fma_f32 v{44+i}, v{44+i}, s62, v15')
    for i in range(8): a(f'v_mul_f32 v{44+i}, v{44+i}, v{32+i}')
    for i in range(8): a(f'v_exp_f32 v{44+i}, v{44+i}')
    for i in range(8): a(f'v_add_f32 v{44+i}, 1.0, v{44+i}')
    for i in range(8): a(f'v_rcp_f32 v{44+i}, v{44+i}')
    for i in range(8): a(f'v_mul_f32 v{32+i}, v{32+i}, v{44+i}')
    a('v_cmp_gt_u32 vcc, 14, v10')
    for i in range(4): a(f'v_cvt_pk_bf16_f32 v{16+i}, v{32+2*i}, v{33+2*i}')
    for i in range(4): a(f'v_cndmask_b32 v{16+i}, 0, v{16+i}, vcc')
    a(f'v_mul_u32_u24 v3, {HSTR}, v9\nv_lshl_add_u32 v3, v10, 3, v3\nv_add_u32 v3, {L_H}, v3')
    a(f'ds_write_b64 v3, v[16:17]\nds_write_b64 v3, v[18:19] offset:{4*HSTR}')
    if not P['late']:
        a(f'v_and_b32 v3, 7, v0\nv_mul_u32_u24 v3, {HSTR}, v3\nv_lshl_add_u32 v3, v9, 3, v3\nv_add_u32 v3, {L_H}, v3')
        a(f'v_bfe_u32 v4, v0, 2, 2\nv_lshl_add_u32 v4, v9, 2, v4\nv_lshlrev_b32 v4, 7, v4\nv_and_b32 v5, 3, v0\nv_lshl_add_u32 v4, v5, 3, v4\nv_add_u32 v4, {L_W2}, v4')
        a('s_waitcnt lgkmcnt(0)')
        for k in range(2): a(f'ds_read_b64 v[{16+4*k}:{17+4*k}], v3 offset:{k*64}\nds_read_b64 v[{18+4*k}:{19+4*k}], v3 offset:{k*64+32}')
        for t in range(4):
            for k in range(2):
                r = 44 + 8 * t + 4 * k
                a(f'ds_read_b64_tr_b16 v[{r}:{r+1}], v4 offset:{k*4096+t*32}\nds_read_b64_tr_b16 v[{r+2}:{r+3}], v4 offset:{k*4096+2048+t*32}')
        a(f'v_add_u32 v3, {L_C}, v2\ns_waitcnt lgkmcnt(0)')
        for k in range(2):
            for t in range(4):
                r = 44 + 8 * t + 4 * k; d = 76 + 4 * t
                a(f'v_mfma_f32_16x16x32_bf16 v[{d}:{d+3}], v[{16+4*k}:{19+4*k}], v[{r}:{r+3}], ' + ('0' if k == 0 else f'v[{d}:{d+3}]'))
        for t in range(4): a(f'ds_write_b128 v3, v[{76+4*t}:{79+4*t}] offset:{t*1024}')
    a('L_now:')
    stamp(a, P, 'mend')
    a(f'v_and_b32 v3, 15, v0\nv_lshlrev_b32 v3, 3, v3\nv_add_u32 v3, {L_ML}, v3\ns_mov_b32 s86, {P["spin"]*16}')
    a('L_mlw:')
    a('ds_read_b64 v[16:17], v3\ns_waitcnt lgkmcnt(0)\nv_cmp_eq_u32 vcc, -1, v16')
    a('s_sub_u32 s86, s86, 1\ns_cbranch_scc1 L_mlwd\ns_cbranch_vccz L_mlwd\ns_sleep 4\ns_branch L_mlw')
    a('L_mlwd:')
    d8 = ('quad_perm:[1,0,3,2]', 'quad_perm:[2,3,0,1]', 'row_half_mirror')
    a('v_mov_b32 v18, v16')
    for m in d8: a(f'v_max_f32_dpp v18, v18, v18 {m} row_mask:0xf bank_mask:0xf')
    a('v_sub_f32 v20, v16, v18\nv_mul_f32 v20, s83, v20\nv_exp_f32 v20, v20\nv_mul_f32 v19, v20, v17')
    for m in d8: a(f'v_add_f32_dpp v19, v19, v19 {m} row_mask:0xf bank_mask:0xf')
    a(f'v_mov_b32 v20, s84\nv_mov_b32 v21, s84\nv_lshlrev_b32 v4, 1, v0\ns_mov_b32 s72, s84\ns_mov_b32 s73, s84')
    a(f's_lshl_b32 s37, s38, 7\ns_add_u32 s37, s37, {MLX}\ns_mov_b64 exec, 0x101')
    hand_store(a, 'buffer_store_dwordx4 v[18:21], v4, s[52:55], s37 offen')
    a('s_mov_b64 exec, -1')
    stamp(a, P, 'mlpub')
    a(f's_and_b32 s61, s38, 0xfc\ns_lshl_b32 s61, s61, 7\ns_add_u32 s61, s61, {MLX}\ns_mov_b32 s86, {P["spin"]}')
    a('v_and_b32 v3, 3, v0\nv_lshlrev_b32 v3, 7, v3\nv_and_b32 v4, 8, v0\nv_lshl_add_u32 v3, v4, 1, v3')
    a('L_mlp2:')
    a(f's_sleep {P["msl"]}')
    a('buffer_load_dwordx4 v[24:27], v3, s[52:55], s61 offen sc1\ns_waitcnt vmcnt(0)\nv_cmp_ne_u64 vcc, s[72:73], v[26:27]')
    a('s_sub_u32 s86, s86, 1\ns_cbranch_scc1 L_mlp2d\ns_cbranch_vccnz L_mlp2')
    a('L_mlp2d:')
    stamp(a, P, 'mlok')
    a('v_mov_b32 v28, v24')
    for m in d8[:2]: a(f'v_max_f32_dpp v28, v28, v28 {m} row_mask:0xf bank_mask:0xf')
    a('v_sub_f32 v29, v24, v28\nv_mul_f32 v29, s83, v29\nv_exp_f32 v29, v29\nv_mul_f32 v29, v29, v25')
    for m in d8[:2]: a(f'v_add_f32_dpp v29, v29, v29 {m} row_mask:0xf bank_mask:0xf')
    a('v_sub_f32 v30, v16, v28\nv_mul_f32 v30, s83, v30\nv_exp_f32 v30, v30\nv_rcp_f32 v29, v29\nv_mul_f32 v30, v30, v29')
    a(f'v_lshlrev_b32 v3, 2, v0\nv_add_u32 v3, {L_F}, v3\ns_mov_b64 exec, 0xffff\nds_write_b32 v3, v30\ns_mov_b64 exec, -1')
    if P['tpf']:
        a('s_getpc_b64 s[56:57]\nL_pc2:\ns_add_u32 s56, s56, L_tail-L_pc2\ns_addc_u32 s57, s57, 0\ns_mov_b32 s58, L_end-L_tail\ns_mov_b32 s59, 0x20000')
        a('v_lshlrev_b32 v1, 6, v0\nbuffer_load_dword v15, v1, s[56:59], 0 offen')
    a('s_waitcnt vmcnt(0) lgkmcnt(0)')
    stamp(a, P, 'hend')
    stamp_store(a, P, stamp_items(P, H_PTS))
    a('s_endpgm')

def control2(a, P):
    c0, c1, cper, nsh = P['c0'], P['c1'], P['cper'], P['nsh']
    n = 256 // nsh
    a('L_ctl:')
    a(f'v_and_b32 v1, 7, v0\nv_lshlrev_b32 v1, 2, v1\nv_add_u32 v1, {L_PROG}, v1\nv_mov_b32 v2, 0\nds_write_b32 v1, v2\nds_write_b32 v1, v2 offset:16')
    a('s_waitcnt lgkmcnt(0)\ns_barrier')
    a(f's_and_b32 s37, s32, {nsh-1}\ns_lshl_b32 s37, s37, {int(math.log2(256 // nsh))}\ns_add_u32 s40, s26, s37\ns_addc_u32 s41, s27, 0')
    a(f's_mov_b32 s36, {c0}\ns_mov_b32 s61, {n // 2}\nv_mov_b32 v5, {L_PROG}')
    a('L_ck:')
    a(f's_mov_b32 s86, {P["spin"]*16}')
    a('L_ckw:')
    a('s_sleep 2\nds_read_b32 v3, v1\ns_waitcnt lgkmcnt(0)\nv_cmp_le_u32 vcc, s36, v3\ns_bcnt1_i32_b32 s37, vcc_lo')
    a('s_sub_u32 s86, s86, 1\ns_cbranch_scc1 L_ckd\ns_cmp_lt_u32 s37, 16\ns_cbranch_scc1 L_ckw')
    a('L_ckd:')
    a(f's_mov_b32 s60, 1\ns_atomic_add s60, s[40:41], 0 glc\ns_add_u32 s36, s36, {cper}\ns_waitcnt lgkmcnt(0)')
    a(f's_sub_i32 s60, s61, s60\ns_add_u32 s61, s61, {n}')
    a(f's_cmp_gt_i32 s60, {P["th1"]}\ns_cselect_b32 s39, {P["cm1"]}, 0\ns_cmp_gt_i32 s60, {P["th2"]}\ns_cselect_b32 s39, {P["cm2"]}, s39')
    a('v_mov_b32 v6, s39\nds_write_b32 v5, v6 offset:32')
    a(f's_cmp_le_u32 s36, {c1}\ns_cbranch_scc1 L_ck')
    a('s_endpgm')

def control3(a, P):
    c0, c1, cper = P['c0'], P['c1'], P['cper']
    a('L_ctl:')
    a(f'v_and_b32 v1, 7, v0\nv_lshlrev_b32 v1, 2, v1\nv_add_u32 v1, {L_PROG}, v1\nv_mov_b32 v2, 0\nds_write_b32 v1, v2\nv_mov_b32 v3, {P["mb"]}\nv_mov_b32 v4, {L_PROG}\nds_write_b32 v4, v3 offset:32')
    a('s_waitcnt lgkmcnt(0)\ns_barrier')
    srd(a, 52, 28, None, WS_USED)
    q_wait(a, P, 'L_cq')
    a('s_cmp_eq_u32 s87, 0\ns_cbranch_scc1 L_end')
    a(f's_lshl_b32 s61, s31, {P["lsh"]+5}\ns_add_u32 s61, s61, {CBUF}\ns_lshl_b32 s37, s32, {P["lsh"]}\ns_add_u32 s60, s61, s37\nv_and_b32 v8, 31, v0\nv_lshlrev_b32 v8, {P["lsh"]}, v8')
    a(f's_mov_b32 s36, {c0}\nv_mov_b32 v5, {L_PROG}\ns_mov_b32 s76, {P["mb"]}\ns_mov_b32 s77, {P["mo"]}')
    if P['xl']:
        FB = CBUF + 0x4000
        a(f's_lshl_b32 s72, s31, 7\ns_add_u32 s72, s72, {FB}\ns_mov_b32 s73, {c0}\ns_mov_b32 s74, {c0 + P["xl"]}\ns_add_u32 s40, s28, {FB}\ns_addc_u32 s41, s29, 0\nv_mov_b32 v9, s84')
    a('L_ck:')
    a(f's_mov_b32 s86, {P["spin"]*16}')
    a('L_ckw:')
    if P['cmin']:
        a('s_sleep 2\nds_read_b32 v3, v1\ns_waitcnt lgkmcnt(0)')
        for m in ('quad_perm:[1,0,3,2]', 'quad_perm:[2,3,0,1]', 'row_half_mirror'): a(f'v_min_u32_dpp v3, v3, v3 {m} row_mask:0xf bank_mask:0xf')
        a('v_readfirstlane_b32 s37, v3\ns_sub_u32 s86, s86, 1\ns_cbranch_scc1 L_end\ns_cmp_lt_u32 s37, s36\ns_cbranch_scc1 L_ckw\ns_mov_b32 s36, s37')
    else:
        a('s_sleep 2\nds_read_b32 v3, v1\ns_waitcnt lgkmcnt(0)\nv_cmp_le_u32 vcc, s36, v3\ns_bcnt1_i32_b32 s37, vcc_lo')
        a('s_sub_u32 s86, s86, 1\ns_cbranch_scc1 L_ckd\ns_cmp_lt_u32 s37, 16\ns_cbranch_scc1 L_ckw')
    a('L_ckd:')
    a('s_add_u32 s37, s84, s36\nv_mov_b32 v6, s37\ns_mov_b64 exec, 1\nbuffer_store_dword v6, v2, s[52:55], s60 offen\ns_mov_b64 exec, 0xffffffff')
    a('buffer_load_dword v7, v8, s[52:55], s61 offen sc1\ns_mov_b64 exec, -1')
    if P['xl']:
        a('s_cmp_lg_u32 s32, 0\ns_cbranch_scc1 L_xnp')
        a('L_xp:\ns_cmp_le_u32 s73, s36\ns_cbranch_scc0 L_xnp')
        a('s_mov_b64 exec, 1\nbuffer_store_dword v9, v2, s[52:55], s72 offen sc1\ns_mov_b64 exec, -1\ns_add_u32 s72, s72, 1024\ns_add_u32 s73, s73, 4\ns_branch L_xp')
        a('L_xnp:\ns_cmp_le_u32 s74, s36\ns_cbranch_scc0 L_xnr')
        a('L_xa:\ns_add_u32 s74, s74, 4\ns_cmp_le_u32 s74, s36\ns_cbranch_scc0 L_xr\ns_add_u32 s40, s40, 1024\ns_addc_u32 s41, s41, 0\ns_branch L_xa')
        a('L_xr:')
        for k in range(8): a(f's_load_dword s{64+k}, s[40:41], {k*128}')
        a('s_mov_b32 s37, 0\ns_waitcnt lgkmcnt(0)\ns_add_u32 s40, s40, 1024\ns_addc_u32 s41, s41, 0')
        for k in range(8): a(f's_cmp_lg_u32 s{64+k}, s84\ns_addc_u32 s37, s37, 0')
        a(f's_mov_b32 s76, {P["mb"]}\ns_mov_b32 s77, {P["mo"]}\ns_cmp_ge_u32 s37, {P["xthr"]}\ns_cselect_b32 s76, {P["xmb"]}, s76\ns_cselect_b32 s77, {P["xmo"]}, s77')
        a('L_xnr:')
    a(f's_sub_u32 s62, s36, {P["ca"]}\ns_add_i32 s63, s36, {P["cb"]}\ns_add_u32 s36, s36, {cper}\ns_waitcnt vmcnt(0)')
    a('v_subrev_u32 v7, s84, v7\nv_cmp_gt_u32 vcc, s62, v7\nv_cmp_lt_u32 s[64:65], s63, v7\nv_cmp_gt_u32 s[66:67], s82, v7')
    a('s_bcnt1_i32_b32 s37, vcc_lo\ns_and_b32 s64, s64, s66\ns_bcnt1_i32_b32 s39, s64')
    a(f's_cmp_ge_u32 s39, {P["n2c"]}\ns_cselect_b32 s39, s77, s76\ns_cmp_ge_u32 s37, {P["n1"]}\ns_cselect_b32 s39, {P["mt"]}, s39')
    a('v_mov_b32 v6, s39\nds_write_b32 v5, v6 offset:32')
    a(f's_cmp_le_u32 s36, {c1}\ns_cbranch_scc1 L_ck')
    a('s_endpgm')

def control(a, P):
    c0, c1, lag = P['c0'], P['c1'], P['lag']
    if P['cver'] == 2: return control2(a, P)
    if P['cver'] == 3: return control3(a, P)
    a('L_ctl:')
    a(f'v_and_b32 v1, 7, v0\nv_lshlrev_b32 v1, 2, v1\nv_add_u32 v1, {L_PROG}, v1\nv_mov_b32 v2, 0\nds_write_b32 v1, v2\nds_write_b32 v1, v2 offset:16')
    a('s_waitcnt lgkmcnt(0)\ns_barrier')
    srd(a, 52, 28, None, WS_USED)
    q_wait(a, P, 'L_cq')
    a('v_mov_b32 v7, s84')
    if P['cdbg']: a('s_mov_b32 s90, 0\ns_mov_b32 s91, 0\ns_mov_b32 s92, 0\ns_mov_b32 s93, 0\ns_mov_b32 s94, 0')
    cs, cper = P['cstr'], P['cper']; ms = max(cs * P['nrep'], 128)
    if P['nrep'] == 16: a(f's_lshl_b32 s60, s31, 1\ns_lshr_b32 s37, s32, 4\ns_add_u32 s60, s60, s37\ns_mul_i32 s60, s60, {cs}\ns_and_b32 s63, s32, 15')
    elif P['nrep'] == 4: a(f's_lshr_b32 s60, s31, 1\ns_mul_i32 s60, s60, {cs}\ns_and_b32 s63, s31, 1\ns_xor_b32 s63, s63, 1\ns_or_b32 s63, s63, s32')
    else: a(f's_mul_i32 s60, s31, {cs}\ns_mov_b32 s63, s32')
    a(f's_add_u32 s60, s60, {CBUF}\ns_add_u32 s40, s28, {CBUF}\ns_addc_u32 s41, s29, 0')
    a(f's_mov_b32 s61, {c0}\ns_mov_b32 s62, {c0 + lag}\nv_mov_b32 v5, {L_PROG}')
    a('L_ck:')
    a(f's_min_u32 s36, s61, s62\ns_cmp_eq_u32 s63, 0\ns_cselect_b32 s36, s36, s62\ns_mov_b32 s86, {P["spin"]*16}')
    a('L_ckw:')
    a('s_sleep 2\nds_read_b32 v3, v1\ns_waitcnt lgkmcnt(0)\nv_cmp_le_u32 vcc, s36, v3\ns_bcnt1_i32_b32 s37, vcc_lo')
    a('s_sub_u32 s86, s86, 1\ns_cbranch_scc1 L_ckd\ns_cmp_lt_u32 s37, 16\ns_cbranch_scc1 L_ckw')
    a('L_ckd:')
    a('s_cmp_lg_u32 s63, 0\ns_cbranch_scc1 L_cknp\ns_cmp_lg_u32 s36, s61\ns_cbranch_scc1 L_cknp')
    a(f's_mov_b64 exec, 1\nbuffer_store_dword v7, v2, s[52:55], s60 offen sc1\ns_mov_b64 exec, -1\ns_add_u32 s60, s60, {ms}\ns_add_u32 s61, s61, {cper}')
    a('L_cknp:')
    a('s_cmp_lg_u32 s36, s62\ns_cbranch_scc1 L_ck')
    if cs == 4: a(f's_load_dwordx{P["nrep"]} s[64:{63+P["nrep"]}], s[40:41], 0')
    else:
        for k in range(P['nrep']): a(f's_load_dword s{64+k}, s[40:41], {k*cs}')
    a(f's_add_u32 s62, s62, {cper}\ns_mov_b32 s37, 0\ns_waitcnt lgkmcnt(0)\ns_add_u32 s40, s40, {ms}\ns_addc_u32 s41, s41, 0')
    for k in range(P['nrep']): a(f's_cmp_lg_u32 s{64+k}, s84\ns_addc_u32 s37, s37, 0')
    if P['cdbg']: a('s_lshl_b32 s39, s37, 2\ns_lshl_b32 s39, 1, s39\ns_cmp_lt_u32 s37, 8\ns_cselect_b32 s39, s39, 0\ns_add_u32 s90, s90, s37\ns_cmp_eq_u32 s37, 0\ns_addc_u32 s91, s91, 0\ns_cmp_ge_u32 s37, 4\ns_addc_u32 s92, s92, 0\ns_cmp_ge_u32 s37, 7\ns_addc_u32 s93, s93, 0\ns_add_u32 s94, s94, 1')
    a(f's_cmp_ge_u32 s37, {P["thr"]}\ns_cselect_b32 s39, {P["cmask"]}, 0\nv_mov_b32 v6, s39\nds_write_b32 v5, v6 offset:32')
    a(f's_cmp_le_u32 s62, {c1}\ns_cbranch_scc1 L_ck')
    if P['cdbg']:
        for k in range(5): a(f's_atomic_add s{90+k}, s[26:27], {4*k}')
        a('s_waitcnt lgkmcnt(0)')
    a('s_endpgm')

def body(P):
    a = Asm(); HPOL[0] = P['hpol']
    a('s_cmp_ge_u32 s2, 256\ns_cbranch_scc1 L_end')
    if P['perm'] == 1: a('s_lshr_b32 s3, s2, 5\ns_lshl_b32 s2, s2, 3\ns_or_b32 s2, s2, s3\ns_and_b32 s2, s2, 255')
    if P['perm'] == 2: a('s_lshr_b32 s3, s2, 7\ns_xor_b32 s2, s2, s3')
    a('s_load_dwordx16 s[4:19], s[0:1], 0\ns_load_dwordx8 s[20:27], s[0:1], 64\ns_load_dwordx2 s[28:29], s[0:1], 96')
    a('v_lshrrev_b32 v1, 6, v0\nv_and_b32 v0, 63, v0\nv_readfirstlane_b32 s30, v1')
    a('s_and_b32 s31, s2, 7\ns_lshr_b32 s32, s2, 3')
    if P['bmap'] == 0: a('s_lshr_b32 s33, s32, 2\ns_and_b32 s34, s32, 3')
    else: a('s_and_b32 s33, s32, 7\ns_lshr_b32 s34, s32, 3')
    a('s_lshl_b32 s37, s31, 2\ns_add_u32 s34, s34, s37\ns_lshl_b32 s38, s33, 5\ns_add_u32 s38, s38, s34')
    stamp_init(a, P)
    stamp(a, P, 'entry')
    a(f's_cmp_ge_u32 s30, 8\ns_cbranch_scc1 L_helper')
    streamer(a, P, lambda: (helper(a, P), control(a, P) if P['ctl'] else None))
    a('L_end:\ns_endpgm')
    txt, n = a.text()
    return txt, n

def vgprs(P): return max(56 + 4 * P['R'] + 4, 156)

def kernel(P):
    txt, n = body(P)
    nm = P['name']
    txt = txt.replace('L_', f'L{nm[-24:]}_') if P.get('uniq') else txt
    return txt

def final_file(P):
    ref = open(f'cdna_kernels/{NAME}.s.ref').read()
    head = ref[:ref.index('; Override launch')]
    nm = P['name']; vg = vgprs(P)
    return head + f'''; One launch, 256 workgroups (x = id & 7 = kv head, r = id >> 3 = batch row * 4 + key split), 8 streaming waves + 2 helper waves.
; Written with a generator script (register allocation, unrolling and wait-state padding are the script's).
; Hand-offs between workgroups go through d_ws and carry a tag = (word 0 of d_ws at entry) + constant; word 0 is advanced
; at the end of the launch, so that a launch tells its own hand-offs from older contents. Readers poll with sc1 loads.
; Writers use write-through (sc1) stores, except where all 32 workgroups of a kv head have reported the same XCD in this
; launch: then the store may stay in that XCD L2.
; Wave 9 balances memory bandwidth among the workgroups that share an XCD: each posts how many loads it has issued, and one
; that is ahead of the others keeps fewer loads in flight, one that is behind keeps more; one workgroup per kv head also flags
; its progress to the other XCDs, and all hold back a little while some XCD lags. A wave that is ahead of the slowest wave of its
; workgroup holds back too. All of this changes only how many loads are in flight (2 or 3), never a result.
; @launch grid=(256,1,1) block=({block(P)},1,1) lds={LDS_BYTES}
.amdgcn_target "amdgcn-amd-amdhsa--gfx950"
.text
.globl {nm}
.p2align 8
.type {nm},@function
{nm}:
{kernel(P)}
.section .rodata,"a"
.p2align 6
.amdhsa_kernel {nm}
  .amdhsa_next_free_vgpr {vg}
  .amdhsa_next_free_sgpr 102
  .amdhsa_accum_offset {(vg+3)//4*4}
  .amdhsa_group_segment_fixed_size 0
  .amdhsa_kernarg_size 104
  .amdhsa_user_sgpr_count 2
  .amdhsa_user_sgpr_kernarg_segment_ptr 1
  .amdhsa_system_sgpr_workgroup_id_x 1
.end_amdhsa_kernel
'''

if __name__ == '__main__':
    P = dict(DEF)
    out = f'cdna_kernels/{NAME}.s'
    for kv in sys.argv[1:]:
        k, v = kv.split('=', 1)
        if k == 'out': out = v
        else: P[k] = type(DEF[k])(v) if not isinstance(DEF[k], bool) else v == '1'
    open(out, 'w').write(final_file(P))
    print('wrote', out)
```

```python
import sys, math, struct, re
from asmlib import Asm

NAME = 'parallel_sum__gqa_block_cached__mixer_channel_mlp__decode'
def f2u(x): return struct.unpack('<I', struct.pack('<f', x))[0]

CBUF, XBUF, MLX, PBUF, HBUF, QBUF, OBUF, WS_USED = 0x1D0000, 0x8000, 0x10000, 0x20000, 0x90000, 0xD0000, 0x200000, 0x280000
TMASK = 0x3FF
QMASK = 0xFF
STAMP_OFF = 536870912 - (1 << 20)
L_WQ = 0; L_W1 = 16384; L_WO = 32768; L_W2 = 49152
L_PART = 57344
L_C = L_PART + 16384
OSTR = 264; HSTR = 136
L_O = L_C + 4096
L_H = L_O + 8 * OSTR
L_Q = L_H + 8 * HSTR
L_ML = L_Q + 1024
L_F = L_ML + 128
L_TAG = L_F + 64
L_TAG2 = L_TAG + 8
L_PROG = L_TAG + 16
LDS_BYTES = L_PROG + 48
assert L_Q % 16 == 0 and LDS_BYTES > 81920
OOB = 0x7F000000
C_EXP = math.log2(math.e) / 16.0

DEF = dict(R=26, D=3, D0=3, DH=8, qsl=16, msl=24, cpf=1, tpf=0, orc=0, orc0=60, omask=15, perm=0, outpol='', late=2, hpol='', hw=8, abl=0, lt=1, ov=1, pt=0, podd=0, peven=0, p0=0, vt=0, wb=0, amap='13 14 9 10 12 17 18 16 15 11 1024 8 513 0 128', hpat='', swz=0, ppol='sc1', lpol='sc1', nocomp=0, nowo=0, ctl=1, lag=0, thr=3, c0=28, c1=116, cmask=5, cver=3, nrep=8, ca=6, cb=0, n1=1, n2c=3, mb=4, mt=5, mo=0, wd=2, wm=5, pw=1, early=0, mper=4, xl=7, xthr=1, xmb=5, xmo=4, lsh=5, cmin=1, b4=0, rex=1, qx=1, fast=0, stag=0, stp=4, cdbg=0, th1=8, th2=999, cm1=5, cm2=5, nsh=2, crd=2, iw=0, iwd=3, iwp=2, cstr=128, cper=2, kpat='3', vpat='3', loc=1, n2=80, xretry=1, Dend=4, nend=8, gsl=0, fsl=0, fthr=0, fsl2=24, nornd=0, nom=0, pol='nt', wpol='nt', xpol='', opol='nt', mpol='nt', diag=False, budget=2,
           name=NAME + '_kernel', spin=1 << 16, hold=0, bmap=0, pts='start+qpub+B1+Kdone+hend+B2+end')
def block(P): return 640 if P['ctl'] else 576

def srd(a, n, base, off, size):
    if off is None:
        a(f's_mov_b32 s{n}, s{base}\ns_mov_b32 s{n+1}, s{base+1}')
    else:
        a(f's_add_u32 s{n}, s{base}, {off}\ns_addc_u32 s{n+1}, s{base+1}, 0')
    a(f's_mov_b32 s{n+2}, {size}\ns_mov_b32 s{n+3}, 0x20000')

def wave_sum(a, v, s):
    for m in ('row_shr:1', 'row_shr:2', 'row_shr:4', 'row_shr:8'):
        a(f'v_add_f32_dpp v{v}, v{v}, v{v} {m} row_mask:0xf bank_mask:0xf')
    a(f'v_add_f32_dpp v{v}, v{v}, v{v} row_bcast:15 row_mask:0xa bank_mask:0xf')
    a(f'v_add_f32_dpp v{v}, v{v}, v{v} row_bcast:31 row_mask:0xc bank_mask:0xf')
    a(f'v_readlane_b32 s{s}, v{v}, 63')

def rnd_bf16(a, v):
    a(f'v_cvt_pk_bf16_f32 v{v}, v{v}, v{v}\nv_and_b32 v{v}, 0xffff0000, v{v}')

def unpack(a, src, dst, n):
    for i in range(n):
        a(f'v_and_b32 v{dst+2*i+1}, 0xffff0000, v{src+i}\nv_lshlrev_b32 v{dst+2*i}, 16, v{src+i}')

def row_sum(a, v, t):
    a(f'v_add_f32_dpp v{v}, v{v}, v{v} row_ror:8 row_mask:0xf bank_mask:0xf')
    xgroup(a, 'v_add_f32', v, t)

def layernorm(a, X, F, T, nq=28):
    pr = lambda r: f'v[{r}:{r+1}]'
    unpack(a, X, F, 28)
    a(f'v_pk_add_f32 {pr(T)}, {pr(F)}, {pr(F+2)}\nv_pk_add_f32 {pr(T+2)}, {pr(F+4)}, {pr(F+6)}')
    for i in range(4, 28): a(f'v_pk_add_f32 {pr(T+2*(i&1))}, {pr(T+2*(i&1))}, {pr(F+2*i)}')
    a(f'v_pk_add_f32 {pr(T)}, {pr(T)}, {pr(T+2)}\nv_add_f32 v{T}, v{T}, v{T+1}')
    row_sum(a, T, T + 1)
    a(f'v_mul_f32 v{T}, {hex(f2u(-1/448))}, v{T}\nv_mov_b32 v{T+1}, v{T}')
    for i in range(28):
        d = T + 4 + 2 * (i & 1)
        a(f'v_pk_add_f32 {pr(d)}, {pr(F+2*i)}, {pr(T)}')
        if i == 0: a(f'v_pk_mul_f32 {pr(T+2)}, {pr(d)}, {pr(d)}')
        else: a(f'v_pk_fma_f32 {pr(T+2)}, {pr(d)}, {pr(d)}, {pr(T+2)}')
    a(f'v_add_f32 v{T+2}, v{T+2}, v{T+3}')
    row_sum(a, T + 2, T + 3)
    rnd_bf16(a, T)
    a(f'v_mov_b32 v{T+1}, v{T}\nv_mul_f32 v{T+2}, {hex(f2u(1/448))}, v{T+2}')
    rnd_bf16(a, T + 2)
    a(f'v_add_f32 v{T+2}, {hex(f2u(1e-5))}, v{T+2}')
    rnd_bf16(a, T + 2)
    a(f'v_sqrt_f32 v{T+2}, v{T+2}')
    for i in range(nq): a(f'v_pk_add_f32 {pr(F+2*i)}, {pr(F+2*i)}, {pr(T)}')
    rnd_bf16(a, T + 2)
    a(f'v_rcp_f32 v{T+2}, v{T+2}')
    for i in range(nq): a(f'v_cvt_pk_bf16_f32 v{X+i}, v{F+2*i}, v{F+2*i+1}')
    a(f'v_mov_b32 v{T+3}, v{T+2}')
    unpack(a, X, F, nq)
    for i in range(nq): a(f'v_pk_mul_f32 {pr(F+2*i)}, {pr(F+2*i)}, {pr(T+2)}')
    for i in range(nq): a(f'v_cvt_pk_bf16_f32 v{X+i}, v{F+2*i}, v{F+2*i+1}')

def xgroup(a, op, v, t):
    a(f'v_mov_b32 v{t}, v{v}\nv_permlane16_swap_b32 v{v}, v{t}\n{op} v{v}, v{v}, v{t}')
    a(f'v_mov_b32 v{t}, v{v}\nv_permlane32_swap_b32 v{v}, v{t}\n{op} v{v}, v{v}, v{t}')

S_PTS = ['start', 'k0', 'fst', 'fcnt', 's8', 's44', 's96', 'skarg', 'siss0', 'pst', 'g2ok', 'sB1a', 'sB1', 'Kdone', 'Vlast', 'B2', 'ost', 'gok', 'B3', 'end']
M_PTS = ['mstart', 'mw1', 'mw2', 'mend']
H_PTS = ['entry', 'hstart', 'mend', 'locv', 'xst', 'xid', 'hpub', 'wob', 'qack', 'xland', 'lndone', 'wtpub', 'wtok', 'hkarg', 'wqiss', 'hB0', 'wqland', 'qpub', 'qp1', 'qok', 'B1', 'wodone', 'mlpub', 'mlok', 'hend']
def pts(P): return P['pts'].split('+') if isinstance(P['pts'], str) else P['pts']
def stamp(a, P, name):
    if P['diag'] and name in pts(P):
        reg = 88 + 2 * pts(P).index(name)
        a(f's_memrealtime s[{reg}:{reg+1}]\ns_waitcnt lgkmcnt(0)')
def stamp_items(P, lst): return [(i, 88 + 2 * i) for i, n in enumerate(pts(P)) if n in lst]
def stamp_init(a, P):
    if P['diag']:
        for i in range(7): a(f's_mov_b64 s[{88+2*i}:{89+2*i}], 0')

def stamp_store(a, P, items, hw=False):
    if not P['diag']: return
    a('s_waitcnt lgkmcnt(0)')
    a(f's_lshl_b32 s37, s2, 6\ns_add_u32 s37, s37, {STAMP_OFF}')
    srd(a, 40, 28, 's37', 64)
    a('s_mov_b64 exec, 1\nv_mov_b32 v1, 0')
    for idx, reg in items:
        a(f'v_mov_b32 v2, s{reg}\nv_mov_b32 v3, s{reg+1}\nbuffer_store_dwordx2 v[2:3], v1, s[40:43], 0 offen offset:{idx*8}')
    if hw:
        a('s_getreg_b32 s38, hwreg(HW_REG_XCC_ID)\ns_getreg_b32 s39, hwreg(HW_REG_HW_ID)')
        a('v_mov_b32 v2, s38\nv_mov_b32 v3, s39\nbuffer_store_dwordx2 v[2:3], v1, s[40:43], 0 offen offset:56')
    a('s_mov_b64 exec, -1')

def q_wait(a, P, lab, addr=None):
    a(f's_mov_b32 s82, {TMASK}\nv_mov_b32 v5, {addr or L_TAG}\ns_mov_b32 s86, {P["spin"]*16}')
    a(f'{lab}:\nds_read_b64 v[6:7], v5\ns_waitcnt lgkmcnt(0)\nv_cmp_eq_u32 vcc, -1, v7')
    a(f's_sub_u32 s86, s86, 1\ns_cbranch_scc1 {lab}d\ns_cbranch_vccz {lab}d\ns_sleep 2\ns_branch {lab}\n{lab}d:')
    a(f'v_readfirstlane_b32 s84, v6\nv_readfirstlane_b32 s87, v7\ns_and_b32 s85, s84, {TMASK}')

def streamer(a, P, mid):
    R, D, D0, pol = P['R'], P['D'], P['D0'], P['pol']
    Q, S, DT, RING = 8, 16, 48, 56
    slot = lambda i: RING + 4 * (i % R)
    sl = lambda i: f'v[{slot(i)}:{slot(i)+3}]'
    a('; ==== streaming waves 0..7: 128 keys each; first K loads go out before anything else')
    stamp(a, P, 'start')
    if P['hold'] or P['orc']: a('s_memrealtime s[98:99]')
    am = [int(x) for x in P['amap'].split()]
    ab, gb, wb, xm = am[0:2], am[2:7], am[7:10], am[10:15]
    a(f'v_and_b32 v1, 3, v0\nv_lshlrev_b32 v1, 4, v1\nv_lshrrev_b32 v3, 4, v0\nv_lshl_add_u32 v1, v3, 6, v1')
    a(f'v_bfe_u32 v3, v0, 2, 1\nv_lshl_add_u32 v1, v3, {ab[0]}, v1\nv_bfe_u32 v3, v0, 3, 1\nv_lshl_add_u32 v1, v3, {ab[1]}, v1')
    if P['fast'] and am == [13, 14, 9, 10, 12, 17, 18, 16, 15, 11, 1024, 8, 513, 0, 128]:
        a('s_lshl_b32 s37, s38, 19\ns_lshl_b32 s35, s2, 7\ns_and_b32 s35, s35, 0x600\ns_lshr_b32 s36, s32, 4\ns_lshl_b32 s36, s36, 18\ns_or_b32 s35, s35, s36')
        a('s_lshr_b32 s36, s2, 1\ns_xor_b32 s36, s36, s32\ns_xor_b32 s36, s36, s30\ns_and_b32 s36, s36, 1\ns_lshl_b32 s36, s36, 12\ns_or_b32 s35, s35, s36')
        a('s_brev_b32 s36, s30\ns_lshr_b32 s36, s36, 30\ns_lshl_b32 s36, s36, 15\ns_or_b32 s35, s35, s36\ns_lshr_b32 s36, s30, 2\ns_lshl_b32 s36, s36, 11\ns_or_b32 s35, s35, s36')
    else:
        a('s_lshl_b32 s37, s38, 19\ns_mov_b32 s35, 0')
        use = 0
        for m in xm: use |= m
        a('s_add_u32 s36, s30, s32\ns_and_b32 s36, s36, 7' if use & 7 else 's_mov_b32 s36, 0')
        if use & 0xf8: a('s_lshl_b32 s39, s32, 3\ns_or_b32 s36, s36, s39')
        if use & 0x700: a('s_lshl_b32 s39, s31, 8\ns_or_b32 s36, s36, s39')
        if use & 0x3800: a('s_lshl_b32 s39, s30, 11\ns_or_b32 s36, s36, s39')
        for k in range(5):
            if xm[k] and xm[k] & (xm[k] - 1) == 0:
                a(f's_bfe_u32 s39, s36, {0x10000 + xm[k].bit_length() - 1}\ns_lshl_b32 s39, s39, {gb[k]}\ns_or_b32 s35, s35, s39')
            elif xm[k]:
                a(f's_and_b32 s39, s36, {xm[k]}\ns_bcnt1_i32_b32 s39, s39\ns_and_b32 s39, s39, 1\ns_lshl_b32 s39, s39, {gb[k]}\ns_or_b32 s35, s35, s39')
        for k in range(3): a(f's_bfe_u32 s39, s30, {0x10000 + k}\ns_lshl_b32 s39, s39, {wb[k]}\ns_or_b32 s35, s35, s39')
    goff = lambda G: sum(((G >> k) & 1) << gb[k] for k in range(5))
    a('s_waitcnt lgkmcnt(0)')
    stamp(a, P, 'skarg')
    srd(a, 40, 6, 's37', 524288)
    lt = P['lt']
    def lg(i):
        j = i % 64
        if lt and i >= 112: return 24 + ((i - 112) & 7), (i - 112) >> 3
        return j >> 1, j & 1
    vidx = lambda T, g, e: (112 + 8 * e + g) if (lt and T == 3) else (64 + 16 * T + 2 * g + e)
    def issue(i):
        G, t = lg(i)
        if t == 0 or (lt and i >= 112): a(f's_xor_b32 s36, s35, {goff(G)}')
        r, va = ('s[40:43]', 'v1') if i < 64 else ('s[44:47]', 'v2')
        a(f'buffer_load_dwordx4 {sl(i)}, {va}, {r}, s36 offen offset:{t*256} {pol}')
    for i in range(D0): issue(i)
    stamp(a, P, 'siss0')
    a('s_branch L_s2')
    mid()
    a('L_s2:')
    a(f'v_and_b32 v2, 15, v0\nv_lshlrev_b32 v2, 4, v2\nv_bfe_u32 v3, v0, 4, 1\nv_lshl_add_u32 v2, v3, {ab[0]}, v2\nv_lshrrev_b32 v3, 5, v0\nv_lshl_add_u32 v2, v3, {ab[1]}, v2')
    srd(a, 44, 8, 's37', 524288)
    if P['vt']:
        a(f'v_mov_b32 v3, 0\nbuffer_load_dword v4, v3, s[44:47], s35 offen {pol}')
    a('s_barrier')
    srd(a, 52, 28, None, WS_USED)
    for e in range(2):
        for r in range(4):
            m16 = (0x11 << r) << (8 * e); m32 = m16 | (m16 << 16)
            a(f's_mov_b32 s{64+2*(4*e+r)}, {hex(m32)}\ns_mov_b32 s{65+2*(4*e+r)}, {hex(m32)}')
    a('s_mov_b32 s80, 0x05040100\ns_mov_b32 s81, 0x07060302')
    XR = RING + 4 * R
    def ctl_pre(i, Di):
        if P['ctl'] and P['c0'] + P['lag'] < i <= P['c1'] + 6:
            if i % P['crd'] == P['crd'] - 1:
                if P['wd']:
                    a(f's_waitcnt lgkmcnt(0)\nv_cmp_gt_u32 vcc, {i - 1 - P["wd"]}, v{XR+1}\nv_readlane_b32 s62, v{XR+1}, 8')
                    a(f's_and_b32 s37, vcc_lo, 0xff\ns_cselect_b32 s37, {P["wm"]}, 0\ns_or_b32 s62, s62, s37')
                else: a(f's_waitcnt lgkmcnt(0)\nv_readfirstlane_b32 s62, v{XR+1}')
            if Di == 3 and P['b4']:
                bit = ((P['mb'] | P['mt'] | P['mo']) >> (i % 4) & 1)
                a(f's_waitcnt vmcnt(3)\ns_bitcmp1_b32 s62, 4\ns_cbranch_scc1 L_b{i}\ns_waitcnt vmcnt(2)')
                if bit: a(f's_bitcmp0_b32 s62, {i % 4}\ns_cbranch_scc1 L_b{i}\ns_waitcnt vmcnt(1)')
                a(f'L_b{i}:'); Di = 4
            elif Di == 3 and ((P['cmask'] if P['cver'] == 1 else P['cm1'] | P['cm2'] if P['cver'] == 2 else P['mb'] | P['mt'] | P['mo'] | (P['xmb'] | P['xmo'] if P['xl'] else 0) | (P['wm'] if P['wd'] else 0)) >> (i % P['mper']) & 1):
                a(f's_waitcnt vmcnt(2)\ns_bitcmp0_b32 s62, {i % P["mper"]}\ns_cbranch_scc1 L_b{i}\ns_waitcnt vmcnt(1)\nL_b{i}:')
        return Di
    def ctl_post(i):
        if P['ctl'] and i % P['pw'] == 0 and P['c0'] <= i <= P['c1'] + 4: a(f'v_mov_b32 v{XR}, {i}\nds_write_b32 v{XR+3}, v{XR}')
        if P['ctl'] and i % P['crd'] == P['crd'] - 2 and P['c0'] + P['lag'] <= i <= P['c1'] + 5: a(f'ds_read_b32 v{XR+1}, v{XR+2}' + ('' if P['wd'] else ' offset:32'))
    if P['ctl']: a(f's_mov_b32 s62, {P["mb"] if P["cver"] == 3 else 0}\ns_lshl_b32 s37, s30, 2\ns_add_u32 s37, s37, {L_PROG}\nv_mov_b32 v{XR+3}, s37\nv_mov_b32 v{XR+2}, {L_PROG}')
    if P['ctl'] and P['wd']: a(f'v_min_u32 v{XR+1}, 8, v0\nv_lshl_add_u32 v{XR+2}, v{XR+1}, 2, v{XR+2}')
    for i in range(D0, R):
        if i == D0 + 1: stamp(a, P, 'k0')
        dh = int(P['hpat'][i - D0]) if i - D0 < len(P['hpat']) else D0
        if P['vt'] and i < D0 + D: dh += 1
        if P['early']: dh = ctl_pre(i, dh)
        a(f's_waitcnt vmcnt({dh-1})'); issue(i)
        if P['early']: ctl_post(i)
        if i == 8 + D: stamp(a, P, 's8')
    a('v_bfe_u32 v3, v0, 2, 1\nv_lshlrev_b32 v3, 9, v3\nv_and_b32 v4, 3, v0\nv_lshl_add_u32 v3, v4, 4, v3')
    a(f'v_lshrrev_b32 v4, 4, v0\nv_lshl_add_u32 v3, v4, 6, v3\nv_add_u32 v3, {L_Q}, v3')
    a('; ---- K prefetch ring is full: wait for q (LDS flag from the helper wave)')
    stamp(a, P, 'sB1a')
    q_wait(a, P, 'L_sq')
    stamp(a, P, 'sB1')
    a(f'ds_read_b128 v[{Q}:{Q+3}], v3\nds_read_b128 v[{Q+4}:{Q+7}], v3 offset:256')
    a(f'v_mov_b32 v4, 0xff800000\ns_mov_b32 s83, {hex(f2u(C_EXP))}\ns_waitcnt lgkmcnt(0)')
    chunks = []
    def kdpp(G):
        d = DT + 4 * (G & 1)
        a(f'v_mov_b32_dpp v{S+G}, v{d} quad_perm:[0,0,0,0] row_mask:0xf bank_mask:0xf')
        for r in range(1, 4):
            a(f'v_add_f32_dpp v{S+G}, v{d+r}, v{S+G} quad_perm:[{r},{r},{r},{r}] row_mask:0xf bank_mask:0xf')
        if G & 1:
            if not P['nornd']: a(f'v_cvt_pk_bf16_f32 v5, v{S+G-1}, v{S+G}\nv_lshlrev_b32 v{S+G-1}, 16, v5\nv_and_b32 v{S+G}, 0xffff0000, v5')
            a(f'v_max3_f32 v4, v4, v{S+G-1}, v{S+G}')
    def kchunk(G):
        def fn():
            d = DT + 4 * (G & 1)
            a(f'v_mfma_f32_16x16x32_bf16 v[{d}:{d+3}], {sl(2*G)}, v[{Q}:{Q+3}], 0')
            a(f'v_mfma_f32_16x16x32_bf16 v[{d}:{d+3}], {sl(2*G+1)}, v[{Q+4}:{Q+7}], v[{d}:{d+3}]')
            if G: kdpp(G - 1)
        return fn
    for G in range(32): chunks.append((2 * G + 1, [2 * G, 2 * G + 1], kchunk(G)))
    def sm0():
        kdpp(31)
        xgroup(a, 'v_max_f32', 4, 5)
        a('v_mul_f32 v6, s83, v4\nv_mov_b32 v7, 0')
        stamp(a, P, 'Kdone')
    chunks.append((63, [], sm0))
    def sm(k):
        def fn():
            for g in range(8 * k, 8 * k + 8): a(f'v_fma_f32 v{S+g}, v{S+g}, s83, -v6')
            for g in range(8 * k, 8 * k + 8): a(f'v_exp_f32 v{S+g}, v{S+g}')
            for g in range(8 * k, 8 * k + 8): a(f'v_add_f32 v7, v7, v{S+g}')
            for i in range(4 * k, 4 * k + 4): a(f'v_cvt_pk_bf16_f32 v{S+i}, v{S+2*i}, v{S+2*i+1}')
        return fn
    for k in range(4): chunks.append((63, [], sm(k)))
    def sm_end():
        xgroup(a, 'v_add_f32', 7, 5)
        a(f'v_mov_b32 v5, v7\nv_bfe_u32 v3, v0, 2, 1\nv_lshlrev_b32 v3, 6, v3\ns_lshl_b32 s37, s30, 3\ns_add_u32 s37, s37, {L_ML}\nv_add_u32 v3, s37, v3')
        a('s_mov_b64 exec, 0x11\nds_write_b64 v3, v[4:5]\ns_mov_b64 exec, -1')
    chunks.append((63, [], sm_end))
    AT = [32, 36]; PT = [40, 44, 8, 12]; ACC = DT
    late_ops = []; extra = [0]
    cnt = [0, 0]
    def vchunk(T, e, r):
        def fn():
            A = AT[cnt[0] & 1]; cnt[0] += 1
            mk = 64 + 2 * (4 * e + r)
            for p in range(4): a(f'v_cndmask_b32 v{A+p}, 0, v{S+4*T+p}, s[{mk}:{mk+1}]')
            for jj in range(2):
                j = 4 * jj + r; m, hh = j >> 1, j & 1
                B = PT[cnt[1] & 3]; cnt[1] += 1
                for p in range(4):
                    ev = vidx(T, 2 * p, e); od = vidx(T, 2 * p + 1, e)
                    a(f'v_perm_b32 v{B+p}, v{slot(od)+m}, v{slot(ev)+m}, s{80+hh}')
                c = '0' if (T == 0 and e == 0 and r == 0) else f'v[{ACC+4*jj}:{ACC+4*jj+3}]'
                a(f'v_mfma_f32_16x16x32_bf16 v[{ACC+4*jj}:{ACC+4*jj+3}], v[{A}:{A+3}], v[{B}:{B+3}], {c}')
        return fn
    for T in range(4):
        for e in range(2):
            for r in range(4):
                if lt and T == 3 and e == 1: continue
                fr = [vidx(T, g, e) for g in range(8)] if r == 3 else []
                chunks.append((vidx(T, 7, e), fr, vchunk(T, e, r)))
    if lt:
        FRG = lambda j: slot(112 + j)
        AM = [32, 36, 40, 44]
        def pre(p):
            def fn2():
                if p == 0:
                    for r in range(4):
                        for q in range(4): a(f'v_cndmask_b32 v{AM[r]+q}, 0, v{S+12+q}, s[{72+2*r}:{73+2*r}]')
                for j in range(8):
                    jj = (j & 1) * 4 + (j >> 1); m, hh = jj >> 1, jj & 1
                    a(f'v_perm_b32 v{FRG(jj)+p}, v{slot(vidx(3, 2*p+1, 1))+m}, v{slot(vidx(3, 2*p, 1))+m}, s{80+hh}')
                if p == 3:
                    for j in range(8):
                        jj = (j & 1) * 4 + (j >> 1); r = jj & 3; d = ACC + 4 * (jj >> 2)
                        a(f'v_mfma_f32_16x16x32_bf16 v[{d}:{d+3}], v[{AM[r]}:{AM[r]+3}], v[{FRG(jj)}:{FRG(jj)+3}], v[{d}:{d+3}]')
                        if P['late'] == 2 and j in (1, 3, 5): a(late_ops[j // 2])
                if P['late'] == 3 and p == 2:
                    for x in late_ops: a(x)
                    extra[0] = 3
            return fn2
        for p in range(4): chunks.append((vidx(3, 2 * p + 1, 1), [], pre(p)))
    freed = set(); ci = 0; landed = -1
    XR = RING + 4 * R
    if P['orc']: a('s_mov_b32 s62, 0')
    if P['stag']: a(f's_and_b32 s37, s30, {P["stp"]-1}\ns_mov_b32 s62, {P["stag"] | (P["stag"] << P["stp"])}\ns_lshr_b32 s62, s62, s37')
    if P['iw']: a(f's_mov_b32 s62, 0\ns_lshl_b32 s37, s30, 2\ns_add_u32 s37, s37, {L_PROG}\nv_mov_b32 v{XR+3}, s37\nv_and_b32 v{XR+2}, 7, v0\nv_lshlrev_b32 v{XR+2}, 2, v{XR+2}\nv_add_u32 v{XR+2}, {L_PROG}, v{XR+2}')
    if P['podd'] or P['peven']:
        a(f's_getreg_b32 s62, hwreg(HW_REG_XCC_ID)\ns_bitcmp1_b32 s62, 0\ns_mov_b32 s62, {P["peven"]}\ns_cselect_b32 s62, {P["podd"]}, s62')
    def run_chunk(issued):
        nonlocal ci, landed
        nd, fr, fn = chunks[ci]; ci += 1
        if nd > landed:
            a(f's_waitcnt vmcnt({issued-1-nd})'); landed = nd
        if not (P['nocomp'] and fr is not None and fn.__name__ == 'fn' and ci <= len(chunks) - 8): fn()
        freed.update(fr)
    for i in range(R, 128):
        while (i - R) not in freed: run_chunk(i)
        Di = P['Dend'] if (P['Dend'] and i >= 128 - P['nend']) else D
        pat = P['kpat'] if i < 64 else P['vpat']
        if pat and not (P['Dend'] and i >= 128 - P['nend']): Di = int(pat[i % len(pat)])
        Di = ctl_pre(i, Di)
        if P['iw'] and 30 < i <= 122:
            if i % P['iwp'] == 1:
                a(f's_waitcnt lgkmcnt(0)\nv_cmp_gt_u32 vcc, {i - 1 - P["iwd"]}, v{XR+1}\ns_cmp_lg_u32 vcc_lo, 0\ns_cselect_b32 s62, {P["iw"]}, 0')
            if Di == 3 and (P['iw'] >> (i % 4) & 1):
                a(f's_waitcnt vmcnt(2)\ns_bitcmp0_b32 s62, {i % 4}\ns_cbranch_scc1 L_b{i}\ns_waitcnt vmcnt(1)\nL_b{i}:')
        if P['stag'] and Di == 3:
            a(f's_waitcnt vmcnt(2)\ns_bitcmp0_b32 s62, {i % P["stp"]}\ns_cbranch_scc1 L_b{i}\ns_waitcnt vmcnt(1)\nL_b{i}:')
        if P['orc'] and i < 120:
            if i % 4 == 0: a('s_memrealtime s[96:97]')
            if i % 4 == 1: a(f's_waitcnt lgkmcnt(0)\ns_sub_u32 s96, s96, s98\ns_cmp_lt_u32 s96, {P["orc0"] + (i - 1) * P["orc"] // 10}\ns_cselect_b32 s62, {P["omask"]}, 0')
            if Di == 3 and (P['omask'] >> (i % 4) & 1):
                a(f's_waitcnt vmcnt(2)\ns_bitcmp0_b32 s62, {i % 4}\ns_cbranch_scc1 L_b{i}\ns_waitcnt vmcnt(1)\nL_b{i}:')
        if False: pass
        elif (P['podd'] or P['peven']) and i >= P['p0'] and ((P['podd'] | P['peven']) >> (i % 16) & 1):
            if (P['podd'] & P['peven']) >> (i % 16) & 1: a(f's_waitcnt vmcnt({Di})')
            else: a(f's_waitcnt vmcnt({Di})\ns_bitcmp1_b32 s62, {i % 16}\ns_cbranch_scc1 L_b{i}\ns_waitcnt vmcnt({Di-1})\nL_b{i}:')
            landed = max(landed, i - Di - 1)
        elif i - Di > landed:
            a(f's_waitcnt vmcnt({Di-1})'); landed = i - Di
        issue(i)
        ctl_post(i)
        if P['iw'] and i >= 26 and i <= 122: a(f'v_mov_b32 v{XR}, {i}\nds_write_b32 v{XR+3}, v{XR}')
        if P['iw'] and i % P['iwp'] == 0 and 30 <= i <= 121: a(f'ds_read_b32 v{XR+1}, v{XR+2}')
        if i == 44 + D: stamp(a, P, 's44')
        if i == 96 + D: stamp(a, P, 's96')
        n = 0
        while ci < len(chunks) and chunks[ci][0] <= landed and n < P['budget']:
            run_chunk(i + 1); n += 1
    def tail_addr():
        a(f'v_lshrrev_b32 v3, 5, v0\nv_lshlrev_b32 v3, 9, v3\nv_bfe_u32 v4, v0, 4, 1\nv_lshl_add_u32 v3, v4, 10, v3')
        a(f'v_and_b32 v4, 15, v0\nv_lshl_add_u32 v3, v4, 5, v3\ns_lshl_b32 s37, s30, 11\ns_add_u32 s37, s37, {L_PART}\nv_add_u32 v3, s37, v3')
        a(f's_lshl_b32 s37, s30, 8\ns_add_u32 s37, s37, {L_PART}\nv_lshl_add_u32 v4, v0, 2, s37')
        a(f's_lshr_b32 s37, s30, 2\ns_lshl_b32 s37, s37, 5\ns_add_u32 s37, s37, {L_F}\nv_mov_b32 v5, s37')
        if P['ov']:
            assert P['qx']
            a(f'v_lshlrev_b32 v6, 2, v0\ns_lshl_b32 s60, s38, 12')
            a(f's_lshl_b32 s37, s30, 8\ns_add_u32 s60, s60, s37\ns_add_u32 s60, s60, {QBUF}\ns_xor_b32 s85, s85, 0x55')
        else:
            a(f'v_lshlrev_b32 v6, 2, v0\ns_lshl_b32 s60, s38, 11\ns_lshl_b32 s37, s30, 8\ns_add_u32 s60, s60, s37\ns_add_u32 s60, s60, {OBUF}')
        a(f'v_lshrrev_b32 v1, 4, v0\nv_bfe_u32 v7, v0, 2, 2\nv_and_b32 v8, 3, v0')
        if P['late']:
            a(f'v_lshl_add_u32 v7, v1, 2, v7\nv_bfe_u32 v2, v7, 1, 2\nv_xor_b32 v2, s30, v2\nv_and_b32 v2, 3, v2\nv_lshlrev_b32 v7, 7, v7\nv_lshl_add_u32 v7, v8, 3, v7\nv_lshl_add_u32 v7, v2, 5, v7\nv_add_u32 v7, {L_WO}, v7')
        else:
            a(f'v_lshl_add_u32 v7, v1, 2, v7\nv_lshlrev_b32 v7, 7, v7\nv_lshl_add_u32 v7, v8, 3, v7\ns_lshl_b32 s37, s30, 5\ns_add_u32 s37, s37, {L_WO}\nv_add_u32 v7, s37, v7')
        a(f'v_and_b32 v2, 15, v0\nv_lshlrev_b32 v2, 4, v2\nv_lshl_add_u32 v2, v1, {12 if P["ov"] else 11}, v2')
        a(f's_lshl_b32 s61, s30, {17 if P["ov"] else 16}\ns_lshl_b32 s37, s31, {14 if P["ov"] else 13}\ns_add_u32 s61, s61, s37\ns_and_b32 s37, s32, 3\ns_lshl_b32 s37, s37, 9\ns_add_u32 s61, s61, s37\ns_add_u32 s61, s61, {QBUF if P["ov"] else OBUF}')
    nlate = 0
    while lt and ci < len(chunks) - 4: run_chunk(128)
    if P['late']:
        assert lt
        a('v_lshrrev_b32 v3, 3, v0\nv_mul_u32_u24 v4, 896, v3\nv_and_b32 v3, 6, v3\nv_xor_b32 v3, v3, v0\nv_and_b32 v3, 7, v3\nv_lshl_add_u32 v4, v3, 4, v4')
        a(f'v_mov_b32 v{XR+3}, v4')
        a('s_and_b32 s36, s32, 3\ns_lshl_b32 s37, s31, 2\ns_add_u32 s36, s36, s37\ns_lshr_b32 s39, s32, 2\ns_lshl_b32 s39, s39, 7')
        a(f's_mul_i32 s37, s36, 114688\ns_add_u32 s37, s37, s39\ns_cmp_lt_u32 s32, 28\ns_cselect_b32 s37, s37, 0\ns_cselect_b32 s62, {127*896+128}, 0')
        srd(a, 56, 12, 's37', 's62')
        a(f's_mul_i32 s37, s36, 50176\ns_add_u32 s37, s37, s39\ns_cmp_lt_u32 s32, 28\ns_cselect_b32 s37, s37, 0\ns_cselect_b32 s62, {55*896+128}, 0')
        srd(a, 48, 20, 's37', 's62')
        a(f's_mul_i32 s64, s30, {16*896}\ns_add_u32 s65, s64, {8*896}\ns_lshr_b32 s66, s64, 1\ns_lshl_b32 s67, s30, 11\ns_add_u32 s67, s67, {L_WO}\ns_lshl_b32 s68, s30, 10\ns_add_u32 s68, s68, {L_W2}')
        late_ops.extend([f's_mov_b32 m0, s67\nbuffer_load_dwordx4 v{XR+3}, s[56:59], s64 offen {P["opol"]} lds',
                         f's_add_u32 m0, s67, 1024\nbuffer_load_dwordx4 v{XR+3}, s[56:59], s65 offen {P["opol"]} lds',
                         f's_mov_b32 m0, s68\nbuffer_load_dwordx4 v{XR+3}, s[48:51], s66 offen {P["mpol"]} lds'])
        if P['late'] == 1:
            for x in late_ops: a(x)
            nlate = 3
    tail_addr()
    a(f'v_lshl_add_u32 v{XR+2}, v8, 2, v1\nv_lshlrev_b32 v{XR+2}, 1, v{XR+2}\ns_lshl_b32 s39, s32, 5')
    srd(a, 44, 22, None, 896)
    a(f'buffer_load_ushort v{XR}, v{XR+2}, s[44:47], s39 offen')
    srd(a, 40, 4, None, 7168)
    a(f's_mul_i32 s37, s31, 896\ns_add_u32 s63, s37, s39\nbuffer_load_ushort v{XR+1}, v{XR+2}, s[40:43], s63 offen')
    srd(a, 44, 24, None, 7168)
    while ci < len(chunks): run_chunk(130 + nlate + extra[0])
    stamp(a, P, 'Vlast')
    a('L_tail:')
    a(f'ds_write_b128 v3, v[{ACC}:{ACC+3}]\nds_write_b128 v3, v[{ACC+4}:{ACC+7}] offset:16\nv_mov_b32 v9, s85\ns_cmp_eq_u32 s87, 0\ns_waitcnt lgkmcnt(0)\ns_barrier')
    stamp(a, P, 'B2')
    for w in range(4): a(f'ds_read2st64_b32 v[{16+2*w}:{17+2*w}], v4 offset0:{16*w} offset1:{16*w+8}')
    a(f'ds_read_b128 v[24:27], v5\nds_read_b128 v[28:31], v5 offset:16\ns_waitcnt lgkmcnt(0)')
    a('v_mul_f32 v32, v16, v24\nv_mul_f32 v33, v17, v25')
    for w in range(2, 8): a(f'v_fmac_f32 v{32+(w&1)}, v{16+w}, v{24+w}')
    a('v_add_f32 v32, v32, v33\nv_bfi_b32 v32, s82, v9, v32')
    a('s_cbranch_scc1 L_owt\nbuffer_store_dword v32, v6, s[52:55], s60 offen\nL_owe:')
    stamp(a, P, 'ost')
    a('s_cmp_lt_u32 s32, 28\ns_cbranch_scc0 L_end')
    GL = 'buffer_load_dwordx4 v[16:19], v2, s[52:55], s61 offen sc1\nbuffer_load_dwordx4 v[20:23], v2, s[52:55], s61 offen offset:256 sc1'
    a(GL)
    BF, AF, DR = 56, 72, 88
    HA, B2F = 92, 100
    if P['late']:
        a(f'v_and_b32 v10, 7, v0\nv_mul_u32_u24 v10, {HSTR}, v10\nv_lshl_add_u32 v10, v1, 3, v10\nv_add_u32 v10, {L_H}, v10')
        for k in range(2): a(f'ds_read_b64 v[{HA+4*k}:{HA+4*k+1}], v10 offset:{k*64}\nds_read_b64 v[{HA+4*k+2}:{HA+4*k+3}], v10 offset:{k*64+32}')
    else:
        a('s_cmp_lt_u32 s30, 4\ns_cbranch_scc0 L_nofr')
        for jj in range(4):
            b = BF + 4 * jj
            a(f'ds_read_b64_tr_b16 v[{b}:{b+1}], v7 offset:{jj*4096}\nds_read_b64_tr_b16 v[{b+2}:{b+3}], v7 offset:{jj*4096+2048}')
        a(f's_lshl_b32 s37, s30, 10\ns_add_u32 s37, s37, {L_C}\nv_lshl_add_u32 v10, v0, 4, s37\nds_read_b128 v[{DR}:{DR+3}], v10')
        a('L_nofr:')
    a(f'v_and_b32 v4, 15, v0\nv_lshlrev_b32 v4, 3, v4\nv_and_b32 v5, 1, v1\nv_lshl_add_u32 v4, v5, 2, v4\nv_lshrrev_b32 v5, 1, v1\nv_lshl_add_u32 v4, v5, 7, v4')
    a(f's_mul_i32 s37, s30, {OSTR}\ns_add_u32 s37, s37, {L_O}\nv_add_u32 v5, s37, v4')
    a(f'v_and_b32 v12, 7, v0\nv_mul_u32_u24 v12, {OSTR}, v12\nv_lshl_add_u32 v12, v1, 3, v12\nv_add_u32 v12, {L_O}, v12')
    a(f's_and_b32 s60, s32, 28\ns_add_u32 s60, s60, s30\ns_lshl_b32 s60, s60, 5\ns_lshl_b32 s37, s31, 2\ns_add_u32 s60, s60, s37\ns_and_b32 s37, s32, 3\ns_add_u32 s60, s60, s37')
    a(f's_lshl_b32 s60, s60, 9\ns_add_u32 s60, s60, {PBUF}\ns_mov_b32 s86, {P["spin"]}')
    a('s_branch L_gchk')
    a('L_gpoll:')
    if P['rex']: a('s_mov_b64 exec, vcc')
    if P['gsl']: a(f's_sleep {P["gsl"]}')
    a(GL)
    a('L_gchk:')
    a('s_waitcnt vmcnt(0)')
    tag_check(a, range(16, 24), 10, 11, 4)
    a('s_sub_u32 s86, s86, 1\ns_cbranch_scc1 L_gdone\ns_cbranch_vccnz L_gpoll')
    a('L_gdone:')
    if P['rex']: a('s_mov_b64 exec, -1')
    stamp(a, P, 'gok')
    for p in (16, 17, 20, 21): a(f'v_permlane16_swap_b32 v{p}, v{p+2}')
    for p in (16, 17, 20, 21): a(f'v_add_f32 v{p}, v{p}, v{p+2}')
    a('v_permlane32_swap_b32 v16, v20\nv_permlane32_swap_b32 v17, v21\nv_add_f32 v16, v16, v20\nv_add_f32 v17, v17, v21')
    a('v_cvt_pk_bf16_f32 v16, v16, v17\nds_write_b32 v5, v16\ns_waitcnt lgkmcnt(0)\ns_barrier')
    stamp(a, P, 'B3')
    a('s_cmp_lt_u32 s30, 4\ns_cbranch_scc0 L_fin')
    if P['late']:
        d2 = L_W2 - L_WO
        for k in range(2): a(f'ds_read_b64_tr_b16 v[{B2F+4*k}:{B2F+4*k+1}], v7 offset:{d2+k*4096}\nds_read_b64_tr_b16 v[{B2F+4*k+2}:{B2F+4*k+3}], v7 offset:{d2+k*4096+2048}')
        for jj in range(4):
            b = BF + 4 * jj
            a(f'ds_read_b64 v[{AF+4*jj}:{AF+4*jj+1}], v12 offset:{jj*64}\nds_read_b64 v[{AF+4*jj+2}:{AF+4*jj+3}], v12 offset:{jj*64+32}')
            a(f'ds_read_b64_tr_b16 v[{b}:{b+1}], v7 offset:{jj*4096}\nds_read_b64_tr_b16 v[{b+2}:{b+3}], v7 offset:{jj*4096+2048}')
            if jj == 1:
                for k in range(2):
                    a(f's_waitcnt lgkmcnt({10-2*k})')
                    a(f'v_mfma_f32_16x16x32_bf16 v[{DR}:{DR+3}], v[{HA+4*k}:{HA+4*k+3}], v[{B2F+4*k}:{B2F+4*k+3}], ' + ('0' if k == 0 else f'v[{DR}:{DR+3}]'))
        for jj in range(4):
            a(f's_waitcnt lgkmcnt({12-4*jj})')
            a(f'v_mfma_f32_16x16x32_bf16 v[{DR}:{DR+3}], v[{AF+4*jj}:{AF+4*jj+3}], v[{BF+4*jj}:{BF+4*jj+3}], v[{DR}:{DR+3}]')
    else:
        for jj in range(4): a(f'ds_read_b64 v[{AF+4*jj}:{AF+4*jj+1}], v12 offset:{jj*64}\nds_read_b64 v[{AF+4*jj+2}:{AF+4*jj+3}], v12 offset:{jj*64+32}')
        for jj in range(4):
            a(f's_waitcnt lgkmcnt({6-2*jj})')
            a(f'v_mfma_f32_16x16x32_bf16 v[{DR}:{DR+3}], v[{AF+4*jj}:{AF+4*jj+3}], v[{BF+4*jj}:{BF+4*jj+3}], v[{DR}:{DR+3}]')
    a(f'v_permlane32_swap_b32 v{DR}, v{DR+1}\nv_permlane32_swap_b32 v{DR+2}, v{DR+3}')
    tag_put(a, (DR, DR + 2), 9, 82, 0x200)
    a(f'buffer_store_dword v{DR}, v6, s[52:55], s60 offen {P["ppol"]}\nbuffer_store_dword v{DR+2}, v6, s[52:55], s60 offen offset:256 {P["ppol"]}')
    stamp(a, P, 'pst')
    if P['diag']:
        a('s_cmp_lg_u32 s30, 0\ns_cbranch_scc1 L_end')
        stamp_store(a, P, stamp_items(P, [x for x in S_PTS if x not in ('g2ok', 'end', 'fst', 'fcnt')]), hw=True)
    a('s_endpgm')
    a('L_owt:\nbuffer_store_dword v32, v6, s[52:55], s60 offen sc1\ns_branch L_owe')
    a('; ---- wave 7: sum the 32 partial products of 16 output columns, add x and b2, store')
    a('L_fin:')
    if P['wb']:
        a('s_cmp_eq_u32 s30, 5\ns_cbranch_scc0 L_nowb\ns_cmp_eq_u32 s32, 0\ns_cbranch_scc0 L_end\nbuffer_wbl2 sc1\ns_waitcnt vmcnt(0)\ns_endpgm\nL_nowb:')
    a('s_cmp_eq_u32 s30, 7\ns_cbranch_scc0 L_end')
    a('v_and_b32 v8, 3, v0')
    a(f'v_lshrrev_b32 v2, 2, v0\nv_lshlrev_b32 v2, 9, v2\nv_lshl_add_u32 v2, v8, 4, v2\nv_add_u32 v3, 8192, v2')
    a(f's_lshl_b32 s61, s32, 14\ns_and_b32 s37, s31, 3\ns_lshl_b32 s37, s37, 7\ns_add_u32 s61, s61, s37\ns_lshr_b32 s37, s31, 2\ns_lshl_b32 s37, s37, 6\ns_add_u32 s61, s61, s37\ns_add_u32 s61, s61, {PBUF}\ns_mov_b32 s86, {P["spin"]}')
    a(f'v_lshlrev_b32 v24, 16, v{XR}\nv_lshlrev_b32 v25, 16, v{XR+1}\nv_add_f32 v24, v24, v25')
    stamp(a, P, 'fst')
    a('L_fpoll:')
    a(f'buffer_load_dwordx4 v[16:19], v2, s[52:55], s61 offen {P["lpol"]}\nbuffer_load_dwordx4 v[20:23], v3, s[52:55], s61 offen {P["lpol"]}')
    a('s_waitcnt vmcnt(0)')
    tag_check(a, range(16, 24), 8, 9, 10)
    a('s_sub_u32 s86, s86, 1\ns_cbranch_scc1 L_fdone\ns_cbranch_vccz L_fdone')
    if P['fthr']:
        a(f's_bcnt1_i32_b64 s37, vcc\ns_cmp_lt_u32 s37, {P["fthr"]}\ns_cbranch_scc1 L_fpoll\ns_sleep {P["fsl2"]}')
    if P['fsl']: a(f's_sleep {P["fsl"]}')
    if P['rex']: a('s_mov_b64 exec, vcc')
    a('s_branch L_fpoll')
    a('L_fdone:')
    if P['rex']: a('s_mov_b64 exec, -1')
    stamp(a, P, 'g2ok')
    if P['diag'] and 'fcnt' in pts(P):
        r = 88 + 2 * pts(P).index('fcnt'); r0 = 88 + 2 * pts(P).index('fst')
        a(f's_sub_u32 s37, {P["spin"]}, s86\ns_mul_i32 s37, s37, 100\ns_add_u32 s{r}, s{r0}, s37\ns_addc_u32 s{r+1}, s{r0+1}, 0')
    for i in range(4): a(f'v_add_f32 v{16+i}, v{16+i}, v{20+i}')
    a('v_permlane16_swap_b32 v16, v17\nv_permlane16_swap_b32 v18, v19\nv_add_f32 v16, v16, v17\nv_add_f32 v18, v18, v19')
    a('v_permlane32_swap_b32 v16, v18\nv_add_f32 v16, v16, v18')
    a('v_add_f32_dpp v16, v16, v16 row_ror:4 row_mask:0xf bank_mask:0xf')
    a('v_add_f32_dpp v16, v16, v16 row_ror:8 row_mask:0xf bank_mask:0xf')
    a('v_add_f32 v16, v16, v24\nv_cvt_pk_bf16_f32 v16, v16, v16')
    a('s_mov_b32 exec_lo, 0x000f000f\ns_mov_b32 exec_hi, 0x000f000f')
    a(f'buffer_store_short v16, v{XR+2}, s[44:47], s63 offen {P["outpol"]}')
    a('s_cmp_lg_u32 s2, 0\ns_cbranch_scc1 L_noep')
    a('v_mov_b32 v8, 0\nv_mov_b32 v9, s84\ns_mov_b64 exec, 1\nbuffer_store_dword v9, v8, s[52:55], 0 offen')
    a('L_noep:')
    if P['hold']:
        a(f'L_hold:\ns_memrealtime s[96:97]\ns_waitcnt lgkmcnt(0)\ns_sub_u32 s96, s96, s98\ns_cmp_lt_u32 s96, {P["hold"]}\ns_cbranch_scc1 L_hold')
    if P['diag']:
        a('s_mov_b64 exec, -1\ns_waitcnt vmcnt(0)')
        stamp(a, P, 'end')
        stamp_store(a, P, stamp_items(P, ['g2ok', 'end', 'fst', 'fcnt']))
    a('s_endpgm')

def dma_loop(a, lab, n, depth, vaddr, sstep, lds0, pol):
    a(f's_mov_b32 s36, 0\ns_mov_b32 s62, {lds0}\ns_mov_b32 s63, {n}')
    a(f'{lab}:')
    a(f's_mov_b32 m0, s62\ns_waitcnt vmcnt({depth-1})')
    a(f'buffer_load_dwordx4 v{vaddr}, s[56:59], s36 offen {pol} lds')
    a(f's_add_u32 s36, s36, {sstep}\ns_add_u32 s62, s62, 1024\ns_sub_u32 s63, s63, 1\ns_cmp_lg_u32 s63, 0\ns_cbranch_scc1 {lab}')

XF, FF, TT = 16, 44, 100
def x_addr(a):
    a('v_and_b32 v10, 15, v0\nv_lshrrev_b32 v9, 4, v0\nv_and_b32 v8, 7, v0\nv_mul_u32_u24 v8, 896, v8')
    a('v_bfe_u32 v3, v0, 3, 1\nv_mul_u32_u24 v3, 448, v3\nv_lshl_add_u32 v8, v9, 4, v8\nv_add_u32 v8, v8, v3')
def x_load(a, P):
    srd(a, 48, 4, None, 7168)
    for ks in range(7): a(f'buffer_load_dwordx4 v[{XF+4*ks}:{XF+4*ks+3}], v8, s[48:51], 0 offen offset:{ks*64} {P["xpol"]}')
def tag_check(a, regs, t0, t1, acc, mask=TMASK):
    regs = list(regs)
    ts = 's85' if mask == TMASK else 's80'
    for r in regs: a(f'v_xor_b32 v{r}, {ts}, v{r}')
    two = len(regs) >= 6
    a(f'v_or_b32 v{acc}, v{regs[0]}, v{regs[1]}')
    rest = regs[2:]
    if two: a(f'v_or3_b32 v{t0}, v{rest[0]}, v{rest[1]}, v{rest[2]}'); rest = rest[3:]
    k = 0
    while len(rest) >= 2:
        d = t0 if (two and k & 1) else acc
        a(f'v_or3_b32 v{d}, v{d}, v{rest[0]}, v{rest[1]}'); rest = rest[2:]; k += 1
    if two and rest: a(f'v_or3_b32 v{acc}, v{acc}, v{t0}, v{rest[0]}')
    elif two: a(f'v_or_b32 v{acc}, v{acc}, v{t0}')
    elif rest: a(f'v_or_b32 v{acc}, v{acc}, v{rest[0]}')
    a(f'v_and_b32 v{acc}, {mask}, v{acc}\nv_cmp_ne_u32 vcc, 0, v{acc}')
def tag_put(a, regs, tagv, ms, half):
    for r in regs: a(f'v_add_u32 v{r}, {half}, v{r}')
    for r in regs: a(f'v_bfi_b32 v{r}, s{ms}, v{tagv}, v{r}')
def tag_strip(a, regs, half, ms=82):
    for r in regs: a(f'v_bfi_b32 v{r}, s{ms}, v{half}, v{r}')
_st = [0]; HPOL = ['']
def hand_store(a, ins):
    _st[0] += 1; n = _st[0]
    a(f's_cmp_eq_u32 s87, 0\ns_cbranch_scc1 L_wt{n}\n{ins} {HPOL[0]}\ns_branch L_we{n}\nL_wt{n}:\n{ins} sc1\nL_we{n}:')

def unit_gemm(a, lds, va, st_v, st_s, tagv, ms, before_pub=None, exact=False):
    TA, DQ = 44, 108
    seq = [(t, ks) for t in range(4) for ks in range(4)]
    def rd(n):
        t, ks = seq[n]; r = TA + 4 * n; o = lds + ks * 4096 + t * 32
        a(f'ds_read_b64_tr_b16 v[{r}:{r+1}], v{va} offset:{o}\nds_read_b64_tr_b16 v[{r+2}:{r+3}], v{va} offset:{o+512}')
    def pub(t):
        if exact:
            for u in range(2):
                r = 128 + 8 * (t & 1) + 4 * u
                a(f'v_mov_b32 v{r}, v{DQ+4*t+2*u}\nv_mov_b32 v{r+1}, v{DQ+4*t+2*u+1}')
                hand_store(a, f'buffer_store_dwordx4 v[{r}:{r+3}], v{st_v}, s[52:55], s{st_s} offen offset:{t*128+u*64}')
            return
        tag_put(a, range(DQ + 4 * t, DQ + 4 * t + 4), tagv, ms, 0x80 if ms == 81 else 0x200)
        hand_store(a, f'buffer_store_dwordx4 v[{DQ+4*t}:{DQ+4*t+3}], v{st_v}, s[52:55], s{st_s} offen offset:{t*64}')
    for n in range(6): rd(n)
    if exact:
        for k in range(4): a(f'v_mov_b32 v{130+4*k}, s84\nv_mov_b32 v{131+4*k}, s84')
    for n, (t, ks) in enumerate(seq):
        if n + 6 < 16: rd(n + 6)
        a(f's_waitcnt lgkmcnt({2*min(6, 15-n)})')
        r = TA + 4 * n; d = DQ + 4 * t
        c = '0' if ks == 0 else f'v[{d}:{d+3}]'
        a(f'v_mfma_f32_16x16x32_bf16 v[{d}:{d+3}], v[{r}:{r+3}], v[{XF+4*ks}:{XF+4*ks+3}], {c}')
        if before_pub is None and n in (7, 11, 15): pub(n // 4 - 1)
    if before_pub is not None:
        before_pub()
        for t in range(3): pub(t)
    pub(3)

def helper(a, P):
    a('L_helper:')
    if P['ctl']: a('s_cmp_eq_u32 s30, 9\ns_cbranch_scc1 L_ctl')
    stamp(a, P, 'hstart')
    if P['cpf']:
        a('s_getpc_b64 s[56:57]\ns_mov_b32 s58, 4352\ns_mov_b32 s59, 0x20000\nv_lshlrev_b32 v1, 6, v0')
        a('buffer_load_dword v15, v1, s[56:59], 0 offen offset:256')
    x_addr(a)
    a('v_lshrrev_b32 v4, 3, v0\nv_lshlrev_b32 v1, 13, v4\nv_and_b32 v2, 7, v0\nv_lshl_add_u32 v1, v2, 4, v1')
    a('v_mul_u32_u24 v4, 3584, v4\nv_lshl_add_u32 v4, v2, 4, v4')
    a('s_and_b32 s63, s32, 1\ns_bfe_u32 s62, s32, 0x10001\ns_mul_i32 s64, s62, 224\ns_lshl_b32 s36, s63, 7\ns_add_u32 s64, s64, s36')
    a('s_lshl_b32 s65, s63, 5\ns_sub_u32 s65, 127, s65\ns_lshr_b32 s66, s32, 2')
    a('s_lshl_b32 s37, s64, 13\ns_lshl_b32 s39, s31, 3\ns_add_u32 s39, s39, s66\ns_lshl_b32 s39, s39, 7\ns_add_u32 s37, s37, s39')
    a('s_lshl_b32 s39, s65, 13\ns_add_u32 s39, s39, 128')
    a('s_lshl_b32 s60, s63, 8\ns_mul_i32 s61, s63, 192\ns_sub_u32 s61, 192, s61')
    a('s_waitcnt lgkmcnt(0)')
    stamp(a, P, 'hkarg')
    a('s_load_dword s84, s[28:29], 0')
    srd(a, 48, 4, None, 7168)
    for ks in range(7):
        if ks < 3: a(f'buffer_load_dwordx4 v[{XF+4*ks}:{XF+4*ks+3}], v8, s[48:51], s60 offen offset:{ks*64} {P["xpol"]}')
        else: a(f'buffer_load_dwordx4 v[{XF+4*ks}:{XF+4*ks+3}], v8, s[48:51], s61 offen offset:{(ks-3)*64} {P["xpol"]}')
    if P['abl'] & 2: a('s_mov_b32 s39, 0')
    srd(a, 56, 10, 's37', 's39')
    for i in range(16):
        a(f's_mov_b32 m0, {L_WQ+i*1024}\ns_mov_b32 s36, {i*65536}')
        a(f'buffer_load_dwordx4 v1, s[56:59], s36 offen {P["wpol"]} lds')
    stamp(a, P, 'wqiss')
    a(f'v_mov_b32 v126, -1\nv_mov_b32 v127, -1\nv_lshlrev_b32 v3, 3, v0\nv_add_u32 v3, {L_ML}, v3\nv_mov_b32 v5, {L_TAG}')
    a('s_mov_b64 exec, 0xffff\nds_write_b64 v3, v[126:127]\nds_write_b64 v5, v[126:127]\ns_mov_b64 exec, -1')
    if P['early']: a('ds_write_b64 v5, v[126:127] offset:8')
    if P['iw']: a(f'v_mov_b32 v126, 0\nv_and_b32 v3, 7, v0\nv_lshlrev_b32 v3, 2, v3\nv_add_u32 v3, {L_PROG}, v3\nds_write_b32 v3, v126')
    srd(a, 52, 28, None, WS_USED)
    a(f'v_lshlrev_b32 v2, 4, v0\ns_getreg_b32 s68, hwreg(HW_REG_XCC_ID)\ns_and_b32 s68, s68, 15\ns_lshl_b32 s68, s68, 12')
    a(f's_lshl_b32 s69, s31, 12\ns_add_u32 s69, s69, {XBUF}\ns_lshl_b32 s37, s32, 7\ns_add_u32 s37, s37, s69\ns_waitcnt lgkmcnt(0)')
    a(f's_add_u32 s84, s84, 0x9E3779B9\ns_and_b32 s85, s84, {TMASK}\ns_and_b32 s80, s84, {QMASK}\ns_or_b32 s68, s68, s85\nv_mov_b32 v6, s85\nv_mov_b32 v124, s68')
    a('s_mov_b64 exec, 1\nbuffer_store_dword v124, v2, s[52:55], s37 offen sc1\ns_mov_b64 exec, -1')
    stamp(a, P, 'xst')
    a('s_barrier')
    a('v_and_b32 v125, 31, v0\nv_lshlrev_b32 v125, 7, v125')
    a(f'v_mov_b32 v14, {hex(OOB)}\ns_mov_b32 s82, {TMASK}\ns_mov_b32 s81, {QMASK}\ns_mov_b32 s83, {hex(f2u(C_EXP))}')
    a(f'v_bfe_u32 v3, v0, 2, 2\nv_lshl_add_u32 v12, v9, 3, v3\nv_lshlrev_b32 v12, 7, v12\nv_and_b32 v5, 3, v0\nv_lshl_add_u32 v12, v5, 3, v12')
    a(f'v_and_b32 v5, 7, v0\nv_lshlrev_b32 v13, {17 if P["qx"] else 16}, v5\nv_lshl_add_u32 v13, v9, 4, v13\nv_bfe_u32 v3, v0, 3, 1\nv_cmp_eq_u32 vcc, s62, v3')
    a(f'v_lshlrev_b32 v5, 12, v5\nv_lshl_add_u32 v5, v9, 4, v5\nv_cndmask_b32 v13, v14, v13, vcc\nv_cndmask_b32 v5, v14, v5, vcc')
    if P['qx']: a(f's_and_b32 s37, s32, 3\ns_lshl_b32 s60, s37, 12\ns_lshl_b32 s39, s31, 14\ns_add_u32 s60, s60, s39\ns_lshl_b32 s39, s66, 9\ns_add_u32 s60, s60, s39\ns_add_u32 s60, s60, {QBUF}')
    else:
        a(f's_and_b32 s37, s32, 3\ns_lshl_b32 s60, s37, 14\ns_lshl_b32 s39, s31, 11\ns_add_u32 s60, s60, s39\ns_lshl_b32 s39, s66, 8\ns_add_u32 s60, s60, s39\ns_add_u32 s60, s60, {QBUF}')
    a(f's_lshl_b32 s70, s37, 10\ns_and_b32 s39, s66, 3\ns_lshl_b32 s39, s39, 8\ns_add_u32 s70, s70, s39\ns_lshl_b32 s39, s31, 15\ns_add_u32 s70, s70, s39\ns_add_u32 s70, s70, {HBUF}')
    a('s_waitcnt vmcnt(17)')
    stamp(a, P, 'xland')
    layernorm(a, XF, FF, TT)
    stamp(a, P, 'lndone')
    a('s_mov_b64 exec, 0xffffffff\nbuffer_load_dword v124, v125, s[52:55], s69 offen sc1\ns_mov_b64 exec, -1')
    a('s_waitcnt vmcnt(2) lgkmcnt(0)')
    stamp(a, P, 'wqland')
    def loc_check():
        a('s_waitcnt vmcnt(0)\nv_cmp_ne_u32 vcc, s68, v124\ns_cmp_eq_u32 vcc_lo, 0')
        for k in range(P['xretry']):
            a('s_cbranch_scc1 L_xok\ns_mov_b64 exec, 0xffffffff\nbuffer_load_dword v124, v125, s[52:55], s69 offen sc1\ns_mov_b64 exec, -1')
            a('s_waitcnt vmcnt(0)\nv_cmp_ne_u32 vcc, s68, v124\ns_cmp_eq_u32 vcc_lo, 0')
        a('L_xok:')
        a('s_cselect_b32 s87, 1, 0' if P['loc'] else 's_mov_b32 s87, 0')
        if P['early']: a(f'v_mov_b32 v126, s84\nv_mov_b32 v127, s87\nv_mov_b32 v3, {L_TAG2}\nds_write_b64 v3, v[126:127]')
        stamp(a, P, 'xid')
        if P['diag'] and 'locv' in pts(P):
            a('s_cmp_lg_u32 s87, 0\ns_cbranch_scc1 L_locv'); stamp(a, P, 'locv'); a('L_locv:')
    if P['abl'] & 4: loc_check(); a('s_branch L_qdone')
    unit_gemm(a, L_WQ, 12, 13, 60, 6, 81, None if P['abl'] & 4 else loc_check, P['qx'])
    stamp(a, P, 'qpub')
    if P['qx']: a(f's_lshr_b32 s61, s38, 2\ns_lshl_b32 s61, s61, 14\ns_add_u32 s61, s61, {QBUF}\ns_mov_b32 s72, s84\ns_mov_b32 s73, s84')
    else:
        a(f's_lshl_b32 s61, s33, 16\ns_lshl_b32 s37, s31, 11\ns_add_u32 s61, s61, s37\ns_add_u32 s61, s61, {QBUF}')
    a(f's_mov_b32 s86, {P["spin"]}')
    a('L_qpoll:')
    a(f's_sleep {P["qsl"]}')
    a('s_mov_b32 s36, s61')
    if P['qx']:
        for kq in range(4):
            for m in range(4): a(f'buffer_load_dwordx4 v[{44+16*kq+4*m}:{47+16*kq+4*m}], v2, s[52:55], s36 offen offset:{m*1024} sc1')
            if kq < 3: a('s_add_u32 s36, s36, 4096')
    else:
        for kq in range(4):
            for m in range(2): a(f'buffer_load_dwordx4 v[{44+8*kq+4*m}:{47+8*kq+4*m}], v2, s[52:55], s36 offen offset:{m*1024} sc1')
            if kq < 3: a('s_add_u32 s36, s36, 16384')
    a(f's_mov_b64 exec, 0xffffffff\nbuffer_load_dword v124, v125, s[52:55], s69 offen sc1\ns_mov_b64 exec, -1\ns_waitcnt vmcnt(0)')
    if P['qx']:
        a('s_mov_b64 vcc, 0')
        for n in range(16):
            a(f'v_cmp_ne_u64 s[{74+2*(n%3)}:{75+2*(n%3)}], s[72:73], v[{46+4*n}:{47+4*n}]')
            if n >= 2: a(f's_or_b64 vcc, vcc, s[{74+2*((n-2)%3)}:{75+2*((n-2)%3)}]')
        for n in (14, 15): a(f's_or_b64 vcc, vcc, s[{74+2*(n%3)}:{75+2*(n%3)}]')
    else: tag_check(a, range(44, 76), 100, 101, 102, QMASK)
    a('s_sub_u32 s86, s86, 1\ns_cbranch_scc1 L_qdone\ns_cbranch_vccnz L_qpoll')
    a('L_qdone:')
    stamp(a, P, 'qok')
    a('v_cmp_ne_u32 vcc, s68, v124\ns_cmp_eq_u32 vcc_lo, 0')
    a('s_cselect_b32 s87, 1, 0' if P['loc'] else 's_mov_b32 s87, 0')
    if P['qx']:
        for kq in range(1, 4):
            for m in range(4): a(f'v_pk_add_f32 v[{44+4*m}:{45+4*m}], v[{44+4*m}:{45+4*m}], v[{44+16*kq+4*m}:{45+16*kq+4*m}]')
        a(f'v_lshrrev_b32 v3, 3, v0\nv_lshlrev_b32 v3, 5, v3\nv_and_b32 v15, 3, v0\nv_lshl_add_u32 v3, v15, 3, v3\nv_and_b32 v15, 4, v0\nv_add_u32 v3, v3, v15\nv_add_u32 v3, {L_Q}, v3')
        a(f'v_mov_b32 v13, {L_TAG}\nv_mov_b32 v108, s84\nv_mov_b32 v109, s87')
        for m in range(4): a(f'v_cvt_pk_bf16_f32 v{44+4*m}, v{44+4*m}, v{45+4*m}\nds_write_b32 v3, v{44+4*m} offset:{m*256}')
        a('s_waitcnt lgkmcnt(0)\nds_write_b64 v13, v[108:109]')
    else:
        for kq in range(1, 4):
            for m in range(4): a(f'v_pk_add_f32 v[{44+2*m}:{45+2*m}], v[{44+2*m}:{45+2*m}], v[{44+8*kq+2*m}:{45+8*kq+2*m}]')
        a(f'v_lshlrev_b32 v3, 3, v0\nv_add_u32 v3, {L_Q}, v3\nv_mov_b32 v13, {L_TAG}\nv_mov_b32 v100, s84\nv_mov_b32 v101, s87')
        for m in range(4): a(f'v_cvt_pk_bf16_f32 v{52+m}, v{44+2*m}, v{45+2*m}')
        a('ds_write_b64 v3, v[52:53]\nds_write_b64 v3, v[54:55] offset:512\ns_waitcnt lgkmcnt(0)\nds_write_b64 v13, v[100:101]')
    stamp(a, P, 'B1')
    if P['pt']:
        a('v_mov_b32 v3, 0\ns_mov_b64 exec, 1\ns_lshl_b32 s37, s38, 19')
        srd(a, 48, 8, 's37', 64); a('buffer_load_dword v110, v3, s[48:51], 0 offen nt')
        a('s_mul_i32 s37, s31, 458752'); srd(a, 48, 12, 's37', 64); a('buffer_load_dword v111, v3, s[48:51], 0 offen nt')
        a('s_add_u32 s37, s37, 458688'); srd(a, 48, 12, 's37', 64); a('buffer_load_dword v112, v3, s[48:51], 0 offen nt')
        srd(a, 48, 20, None, 64); a('buffer_load_dword v113, v3, s[48:51], 0 offen nt')
        srd(a, 48, 22, None, 64); a('buffer_load_dword v114, v3, s[48:51], 0 offen nt')
        a('s_mov_b64 exec, -1')
    if P['abl'] & 1: a('s_branch L_now')
    a('s_cmp_ge_u32 s66, 4\ns_cbranch_scc0 L_noh')
    a('s_mul_i32 s67, s31, 7\ns_lshr_b32 s67, s67, 1\ns_and_b32 s39, s66, 3\ns_add_u32 s67, s67, s39\ns_mul_i32 s37, s64, 3584\ns_lshl_b32 s39, s67, 7\ns_add_u32 s37, s37, s39')
    a('s_mul_i32 s39, s65, 3584\ns_add_u32 s39, s39, 128')
    srd(a, 56, 16, 's37', 's39')
    dma_loop(a, 'L_w1', 16, P['DH'], 4, 8 * 3584, L_W1, P['wpol'])
    layernorm(a, XF, FF, TT, 16)
    a('s_waitcnt vmcnt(0)')
    unit_gemm(a, L_W1, 12, 5, 70, 6, 82)
    a('L_noh:')
    stamp(a, P, 'hpub')
    a('s_cmp_lt_u32 s32, 28\ns_cbranch_scc0 L_now')
    a('v_lshrrev_b32 v1, 3, v0\nv_mul_u32_u24 v1, 896, v1\nv_and_b32 v3, 7, v0\nv_lshl_add_u32 v1, v3, 4, v1')
    a('s_and_b32 s64, s32, 3\ns_lshl_b32 s65, s31, 2\ns_add_u32 s65, s65, s64')
    if not P['late']:
        a(f's_mul_i32 s37, s65, 50176\ns_lshl_b32 s39, s66, 7\ns_add_u32 s37, s37, s39')
        srd(a, 56, 20, 's37', 55 * 896 + 128)
        dma_loop(a, 'L_w2', 8, P['DH'], 1, 8 * 896, L_W2, P['mpol'])
        if not P['nowo']:
            a(f's_mul_i32 s37, s65, 114688\ns_lshl_b32 s39, s66, 7\ns_add_u32 s37, s37, s39\ns_sub_u32 s39, {4096*896}, s37')
            srd(a, 56, 12, 's37', 's39')
            dma_loop(a, 'L_wo', 16, P['DH'], 1, 8 * 896, L_WO, P['opol'])
    stamp(a, P, 'wodone')
    a('v_min_u32 v3, 13, v10\nv_lshlrev_b32 v4, 12, v9\nv_lshl_add_u32 v4, v3, 4, v4\nv_lshlrev_b32 v5, 3, v3')
    a(f's_lshl_b32 s61, s31, 15\ns_mul_i32 s37, s64, 224\ns_add_u32 s61, s61, s37\ns_and_b32 s37, s31, 1\ns_lshl_b32 s37, s37, 7\ns_add_u32 s61, s61, s37\ns_add_u32 s61, s61, {HBUF}')
    srd(a, 48, 18, None, 3584)
    a(f's_mul_i32 s37, s65, 112\nbuffer_load_dwordx2 v[20:21], v5, s[48:51], s37 offen\ns_add_u32 s60, s61, 16384\ns_mov_b32 s86, {P["spin"]}')
    a('L_hp:')
    for ps in range(2):
        for kq in range(4): a(f'buffer_load_dwordx4 v[{44+16*ps+4*kq}:{47+16*ps+4*kq}], v4, s[52:55], s{61-ps} offen offset:{kq*1024} sc1')
    a('s_waitcnt vmcnt(0)')
    tag_check(a, range(44, 76), 16, 17, 18)
    a('s_sub_u32 s86, s86, 1\ns_cbranch_scc1 L_hpd\ns_cbranch_vccz L_hpd\ns_sleep 16\ns_branch L_hp')
    a('L_hpd:')
    for ps in range(2):
        for kq in range(1, 4):
            for m in range(2): a(f'v_pk_add_f32 v[{44+16*ps+2*m}:{45+16*ps+2*m}], v[{44+16*ps+2*m}:{45+16*ps+2*m}], v[{44+16*ps+4*kq+2*m}:{45+16*ps+4*kq+2*m}]')
    unpack(a, 20, 24, 2)
    a('v_cvt_pk_bf16_f32 v16, v44, v45\nv_cvt_pk_bf16_f32 v17, v46, v47\nv_cvt_pk_bf16_f32 v18, v60, v61\nv_cvt_pk_bf16_f32 v19, v62, v63')
    unpack(a, 16, 32, 4)
    for i in range(8): a(f'v_add_f32 v{32+i}, v{32+i}, v{24+(i&3)}')
    for i in range(4): a(f'v_cvt_pk_bf16_f32 v{16+i}, v{32+2*i}, v{33+2*i}')
    unpack(a, 16, 32, 4)
    k0 = 2 * 0.7978845608028654 * math.log2(math.e); k1 = k0 * 0.044715
    a(f's_mov_b32 s62, {hex(f2u(-k1))}\nv_mov_b32 v15, {hex(f2u(-k0))}')
    for i in range(8): a(f'v_mul_f32 v{44+i}, v{32+i}, v{32+i}')
    for i in range(8): a(f'v_fma_f32 v{44+i}, v{44+i}, s62, v15')
    for i in range(8): a(f'v_mul_f32 v{44+i}, v{44+i}, v{32+i}')
    for i in range(8): a(f'v_exp_f32 v{44+i}, v{44+i}')
    for i in range(8): a(f'v_add_f32 v{44+i}, 1.0, v{44+i}')
    for i in range(8): a(f'v_rcp_f32 v{44+i}, v{44+i}')
    for i in range(8): a(f'v_mul_f32 v{32+i}, v{32+i}, v{44+i}')
    a('v_cmp_gt_u32 vcc, 14, v10')
    for i in range(4): a(f'v_cvt_pk_bf16_f32 v{16+i}, v{32+2*i}, v{33+2*i}')
    for i in range(4): a(f'v_cndmask_b32 v{16+i}, 0, v{16+i}, vcc')
    a(f'v_mul_u32_u24 v3, {HSTR}, v9\nv_lshl_add_u32 v3, v10, 3, v3\nv_add_u32 v3, {L_H}, v3')
    a(f'ds_write_b64 v3, v[16:17]\nds_write_b64 v3, v[18:19] offset:{4*HSTR}')
    if not P['late']:
        a(f'v_and_b32 v3, 7, v0\nv_mul_u32_u24 v3, {HSTR}, v3\nv_lshl_add_u32 v3, v9, 3, v3\nv_add_u32 v3, {L_H}, v3')
        a(f'v_bfe_u32 v4, v0, 2, 2\nv_lshl_add_u32 v4, v9, 2, v4\nv_lshlrev_b32 v4, 7, v4\nv_and_b32 v5, 3, v0\nv_lshl_add_u32 v4, v5, 3, v4\nv_add_u32 v4, {L_W2}, v4')
        a('s_waitcnt lgkmcnt(0)')
        for k in range(2): a(f'ds_read_b64 v[{16+4*k}:{17+4*k}], v3 offset:{k*64}\nds_read_b64 v[{18+4*k}:{19+4*k}], v3 offset:{k*64+32}')
        for t in range(4):
            for k in range(2):
                r = 44 + 8 * t + 4 * k
                a(f'ds_read_b64_tr_b16 v[{r}:{r+1}], v4 offset:{k*4096+t*32}\nds_read_b64_tr_b16 v[{r+2}:{r+3}], v4 offset:{k*4096+2048+t*32}')
        a(f'v_add_u32 v3, {L_C}, v2\ns_waitcnt lgkmcnt(0)')
        for k in range(2):
            for t in range(4):
                r = 44 + 8 * t + 4 * k; d = 76 + 4 * t
                a(f'v_mfma_f32_16x16x32_bf16 v[{d}:{d+3}], v[{16+4*k}:{19+4*k}], v[{r}:{r+3}], ' + ('0' if k == 0 else f'v[{d}:{d+3}]'))
        for t in range(4): a(f'ds_write_b128 v3, v[{76+4*t}:{79+4*t}] offset:{t*1024}')
    a('L_now:')
    stamp(a, P, 'mend')
    a(f'v_and_b32 v3, 15, v0\nv_lshlrev_b32 v3, 3, v3\nv_add_u32 v3, {L_ML}, v3\ns_mov_b32 s86, {P["spin"]*16}')
    a('L_mlw:')
    a('ds_read_b64 v[16:17], v3\ns_waitcnt lgkmcnt(0)\nv_cmp_eq_u32 vcc, -1, v16')
    a('s_sub_u32 s86, s86, 1\ns_cbranch_scc1 L_mlwd\ns_cbranch_vccz L_mlwd\ns_sleep 4\ns_branch L_mlw')
    a('L_mlwd:')
    d8 = ('quad_perm:[1,0,3,2]', 'quad_perm:[2,3,0,1]', 'row_half_mirror')
    a('v_mov_b32 v18, v16')
    for m in d8: a(f'v_max_f32_dpp v18, v18, v18 {m} row_mask:0xf bank_mask:0xf')
    a('v_sub_f32 v20, v16, v18\nv_mul_f32 v20, s83, v20\nv_exp_f32 v20, v20\nv_mul_f32 v19, v20, v17')
    for m in d8: a(f'v_add_f32_dpp v19, v19, v19 {m} row_mask:0xf bank_mask:0xf')
    a(f'v_mov_b32 v20, s84\nv_mov_b32 v21, s84\nv_lshlrev_b32 v4, 1, v0\ns_mov_b32 s72, s84\ns_mov_b32 s73, s84')
    a(f's_lshl_b32 s37, s38, 7\ns_add_u32 s37, s37, {MLX}\ns_mov_b64 exec, 0x101')
    hand_store(a, 'buffer_store_dwordx4 v[18:21], v4, s[52:55], s37 offen')
    a('s_mov_b64 exec, -1')
    stamp(a, P, 'mlpub')
    a(f's_and_b32 s61, s38, 0xfc\ns_lshl_b32 s61, s61, 7\ns_add_u32 s61, s61, {MLX}\ns_mov_b32 s86, {P["spin"]}')
    a('v_and_b32 v3, 3, v0\nv_lshlrev_b32 v3, 7, v3\nv_and_b32 v4, 8, v0\nv_lshl_add_u32 v3, v4, 1, v3')
    a('L_mlp2:')
    a(f's_sleep {P["msl"]}')
    a('buffer_load_dwordx4 v[24:27], v3, s[52:55], s61 offen sc1\ns_waitcnt vmcnt(0)\nv_cmp_ne_u64 vcc, s[72:73], v[26:27]')
    a('s_sub_u32 s86, s86, 1\ns_cbranch_scc1 L_mlp2d\ns_cbranch_vccnz L_mlp2')
    a('L_mlp2d:')
    stamp(a, P, 'mlok')
    a('v_mov_b32 v28, v24')
    for m in d8[:2]: a(f'v_max_f32_dpp v28, v28, v28 {m} row_mask:0xf bank_mask:0xf')
    a('v_sub_f32 v29, v24, v28\nv_mul_f32 v29, s83, v29\nv_exp_f32 v29, v29\nv_mul_f32 v29, v29, v25')
    for m in d8[:2]: a(f'v_add_f32_dpp v29, v29, v29 {m} row_mask:0xf bank_mask:0xf')
    a('v_sub_f32 v30, v16, v28\nv_mul_f32 v30, s83, v30\nv_exp_f32 v30, v30\nv_rcp_f32 v29, v29\nv_mul_f32 v30, v30, v29')
    a(f'v_lshlrev_b32 v3, 2, v0\nv_add_u32 v3, {L_F}, v3\ns_mov_b64 exec, 0xffff\nds_write_b32 v3, v30\ns_mov_b64 exec, -1')
    if P['tpf']:
        a('s_getpc_b64 s[56:57]\nL_pc2:\ns_add_u32 s56, s56, L_tail-L_pc2\ns_addc_u32 s57, s57, 0\ns_mov_b32 s58, L_end-L_tail\ns_mov_b32 s59, 0x20000')
        a('v_lshlrev_b32 v1, 6, v0\nbuffer_load_dword v15, v1, s[56:59], 0 offen')
    a('s_waitcnt vmcnt(0) lgkmcnt(0)')
    stamp(a, P, 'hend')
    stamp_store(a, P, stamp_items(P, H_PTS))
    a('s_endpgm')

def control2(a, P):
    c0, c1, cper, nsh = P['c0'], P['c1'], P['cper'], P['nsh']
    n = 256 // nsh
    a('L_ctl:')
    a(f'v_and_b32 v1, 7, v0\nv_lshlrev_b32 v1, 2, v1\nv_add_u32 v1, {L_PROG}, v1\nv_mov_b32 v2, 0\nds_write_b32 v1, v2\nds_write_b32 v1, v2 offset:16')
    a('s_waitcnt lgkmcnt(0)\ns_barrier')
    a(f's_and_b32 s37, s32, {nsh-1}\ns_lshl_b32 s37, s37, {int(math.log2(256 // nsh))}\ns_add_u32 s40, s26, s37\ns_addc_u32 s41, s27, 0')
    a(f's_mov_b32 s36, {c0}\ns_mov_b32 s61, {n // 2}\nv_mov_b32 v5, {L_PROG}')
    a('L_ck:')
    a(f's_mov_b32 s86, {P["spin"]*16}')
    a('L_ckw:')
    a('s_sleep 2\nds_read_b32 v3, v1\ns_waitcnt lgkmcnt(0)\nv_cmp_le_u32 vcc, s36, v3\ns_bcnt1_i32_b32 s37, vcc_lo')
    a('s_sub_u32 s86, s86, 1\ns_cbranch_scc1 L_ckd\ns_cmp_lt_u32 s37, 16\ns_cbranch_scc1 L_ckw')
    a('L_ckd:')
    a(f's_mov_b32 s60, 1\ns_atomic_add s60, s[40:41], 0 glc\ns_add_u32 s36, s36, {cper}\ns_waitcnt lgkmcnt(0)')
    a(f's_sub_i32 s60, s61, s60\ns_add_u32 s61, s61, {n}')
    a(f's_cmp_gt_i32 s60, {P["th1"]}\ns_cselect_b32 s39, {P["cm1"]}, 0\ns_cmp_gt_i32 s60, {P["th2"]}\ns_cselect_b32 s39, {P["cm2"]}, s39')
    a('v_mov_b32 v6, s39\nds_write_b32 v5, v6 offset:32')
    a(f's_cmp_le_u32 s36, {c1}\ns_cbranch_scc1 L_ck')
    a('s_endpgm')

def control3(a, P):
    c0, c1, cper = P['c0'], P['c1'], P['cper']
    a('L_ctl:')
    a(f'v_and_b32 v1, 7, v0\nv_lshlrev_b32 v1, 2, v1\nv_add_u32 v1, {L_PROG}, v1\nv_mov_b32 v2, 0\nds_write_b32 v1, v2\nv_mov_b32 v3, {P["mb"]}\nv_mov_b32 v4, {L_PROG}\nds_write_b32 v4, v3 offset:32')
    a('s_waitcnt lgkmcnt(0)\ns_barrier')
    srd(a, 52, 28, None, WS_USED)
    q_wait(a, P, 'L_cq', L_TAG2 if P['early'] else None)
    a('s_cmp_eq_u32 s87, 0\ns_cbranch_scc1 L_end')
    a(f's_lshl_b32 s61, s31, {P["lsh"]+5}\ns_add_u32 s61, s61, {CBUF}\ns_lshl_b32 s37, s32, {P["lsh"]}\ns_add_u32 s60, s61, s37\nv_and_b32 v8, 31, v0\nv_lshlrev_b32 v8, {P["lsh"]}, v8')
    a(f's_mov_b32 s36, {c0}\nv_mov_b32 v5, {L_PROG}\ns_mov_b32 s76, {P["mb"]}\ns_mov_b32 s77, {P["mo"]}')
    if P['xl']:
        FB = CBUF + 0x4000
        a(f's_lshl_b32 s72, s31, 7\ns_add_u32 s72, s72, {FB}\ns_mov_b32 s73, {c0}\ns_mov_b32 s74, {c0 + P["xl"]}\ns_add_u32 s40, s28, {FB}\ns_addc_u32 s41, s29, 0\nv_mov_b32 v9, s84')
    a('L_ck:')
    a(f's_mov_b32 s86, {P["spin"]*16}')
    a('L_ckw:')
    if P['cmin']:
        a('s_sleep 2\nds_read_b32 v3, v1\ns_waitcnt lgkmcnt(0)')
        for m in ('quad_perm:[1,0,3,2]', 'quad_perm:[2,3,0,1]', 'row_half_mirror'): a(f'v_min_u32_dpp v3, v3, v3 {m} row_mask:0xf bank_mask:0xf')
        a('v_readfirstlane_b32 s37, v3\ns_sub_u32 s86, s86, 1\ns_cbranch_scc1 L_end\ns_cmp_lt_u32 s37, s36\ns_cbranch_scc1 L_ckw\ns_mov_b32 s36, s37')
    else:
        a('s_sleep 2\nds_read_b32 v3, v1\ns_waitcnt lgkmcnt(0)\nv_cmp_le_u32 vcc, s36, v3\ns_bcnt1_i32_b32 s37, vcc_lo')
        a('s_sub_u32 s86, s86, 1\ns_cbranch_scc1 L_ckd\ns_cmp_lt_u32 s37, 16\ns_cbranch_scc1 L_ckw')
    a('L_ckd:')
    a('s_add_u32 s37, s84, s36\nv_mov_b32 v6, s37\ns_mov_b64 exec, 1\nbuffer_store_dword v6, v2, s[52:55], s60 offen\ns_mov_b64 exec, 0xffffffff')
    a('buffer_load_dword v7, v8, s[52:55], s61 offen sc1\ns_mov_b64 exec, -1')
    if P['xl']:
        a('s_cmp_lg_u32 s32, 0\ns_cbranch_scc1 L_xnp')
        a('L_xp:\ns_cmp_le_u32 s73, s36\ns_cbranch_scc0 L_xnp')
        a('s_mov_b64 exec, 1\nbuffer_store_dword v9, v2, s[52:55], s72 offen sc1\ns_mov_b64 exec, -1\ns_add_u32 s72, s72, 1024\ns_add_u32 s73, s73, 4\ns_branch L_xp')
        a('L_xnp:\ns_cmp_le_u32 s74, s36\ns_cbranch_scc0 L_xnr')
        a('L_xa:\ns_add_u32 s74, s74, 4\ns_cmp_le_u32 s74, s36\ns_cbranch_scc0 L_xr\ns_add_u32 s40, s40, 1024\ns_addc_u32 s41, s41, 0\ns_branch L_xa')
        a('L_xr:')
        for k in range(8): a(f's_load_dword s{64+k}, s[40:41], {k*128}')
        a('s_mov_b32 s37, 0\ns_waitcnt lgkmcnt(0)\ns_add_u32 s40, s40, 1024\ns_addc_u32 s41, s41, 0')
        for k in range(8): a(f's_cmp_lg_u32 s{64+k}, s84\ns_addc_u32 s37, s37, 0')
        a(f's_mov_b32 s76, {P["mb"]}\ns_mov_b32 s77, {P["mo"]}\ns_cmp_ge_u32 s37, {P["xthr"]}\ns_cselect_b32 s76, {P["xmb"]}, s76\ns_cselect_b32 s77, {P["xmo"]}, s77')
        a('L_xnr:')
    a(f's_sub_u32 s62, s36, {P["ca"]}\ns_add_i32 s63, s36, {P["cb"]}\ns_add_u32 s36, s36, {cper}\ns_waitcnt vmcnt(0)')
    a('v_subrev_u32 v7, s84, v7\nv_cmp_gt_u32 vcc, s62, v7\nv_cmp_lt_u32 s[64:65], s63, v7\nv_cmp_gt_u32 s[66:67], s82, v7')
    a('s_bcnt1_i32_b32 s37, vcc_lo\ns_and_b32 s64, s64, s66\ns_bcnt1_i32_b32 s39, s64')
    a(f's_cmp_ge_u32 s39, {P["n2c"]}\ns_cselect_b32 s39, s77, s76\ns_cmp_ge_u32 s37, {P["n1"]}\ns_cselect_b32 s39, {P["mt"]}, s39')
    a('v_mov_b32 v6, s39\nds_write_b32 v5, v6 offset:32')
    a(f's_cmp_le_u32 s36, {c1}\ns_cbranch_scc1 L_ck')
    a('s_endpgm')

def control(a, P):
    c0, c1, lag = P['c0'], P['c1'], P['lag']
    if P['cver'] == 2: return control2(a, P)
    if P['cver'] == 3: return control3(a, P)
    a('L_ctl:')
    a(f'v_and_b32 v1, 7, v0\nv_lshlrev_b32 v1, 2, v1\nv_add_u32 v1, {L_PROG}, v1\nv_mov_b32 v2, 0\nds_write_b32 v1, v2\nds_write_b32 v1, v2 offset:16')
    a('s_waitcnt lgkmcnt(0)\ns_barrier')
    srd(a, 52, 28, None, WS_USED)
    q_wait(a, P, 'L_cq')
    a('v_mov_b32 v7, s84')
    if P['cdbg']: a('s_mov_b32 s90, 0\ns_mov_b32 s91, 0\ns_mov_b32 s92, 0\ns_mov_b32 s93, 0\ns_mov_b32 s94, 0')
    cs, cper = P['cstr'], P['cper']; ms = max(cs * P['nrep'], 128)
    if P['nrep'] == 16: a(f's_lshl_b32 s60, s31, 1\ns_lshr_b32 s37, s32, 4\ns_add_u32 s60, s60, s37\ns_mul_i32 s60, s60, {cs}\ns_and_b32 s63, s32, 15')
    elif P['nrep'] == 4: a(f's_lshr_b32 s60, s31, 1\ns_mul_i32 s60, s60, {cs}\ns_and_b32 s63, s31, 1\ns_xor_b32 s63, s63, 1\ns_or_b32 s63, s63, s32')
    else: a(f's_mul_i32 s60, s31, {cs}\ns_mov_b32 s63, s32')
    a(f's_add_u32 s60, s60, {CBUF}\ns_add_u32 s40, s28, {CBUF}\ns_addc_u32 s41, s29, 0')
    a(f's_mov_b32 s61, {c0}\ns_mov_b32 s62, {c0 + lag}\nv_mov_b32 v5, {L_PROG}')
    a('L_ck:')
    a(f's_min_u32 s36, s61, s62\ns_cmp_eq_u32 s63, 0\ns_cselect_b32 s36, s36, s62\ns_mov_b32 s86, {P["spin"]*16}')
    a('L_ckw:')
    a('s_sleep 2\nds_read_b32 v3, v1\ns_waitcnt lgkmcnt(0)\nv_cmp_le_u32 vcc, s36, v3\ns_bcnt1_i32_b32 s37, vcc_lo')
    a('s_sub_u32 s86, s86, 1\ns_cbranch_scc1 L_ckd\ns_cmp_lt_u32 s37, 16\ns_cbranch_scc1 L_ckw')
    a('L_ckd:')
    a('s_cmp_lg_u32 s63, 0\ns_cbranch_scc1 L_cknp\ns_cmp_lg_u32 s36, s61\ns_cbranch_scc1 L_cknp')
    a(f's_mov_b64 exec, 1\nbuffer_store_dword v7, v2, s[52:55], s60 offen sc1\ns_mov_b64 exec, -1\ns_add_u32 s60, s60, {ms}\ns_add_u32 s61, s61, {cper}')
    a('L_cknp:')
    a('s_cmp_lg_u32 s36, s62\ns_cbranch_scc1 L_ck')
    if cs == 4: a(f's_load_dwordx{P["nrep"]} s[64:{63+P["nrep"]}], s[40:41], 0')
    else:
        for k in range(P['nrep']): a(f's_load_dword s{64+k}, s[40:41], {k*cs}')
    a(f's_add_u32 s62, s62, {cper}\ns_mov_b32 s37, 0\ns_waitcnt lgkmcnt(0)\ns_add_u32 s40, s40, {ms}\ns_addc_u32 s41, s41, 0')
    for k in range(P['nrep']): a(f's_cmp_lg_u32 s{64+k}, s84\ns_addc_u32 s37, s37, 0')
    if P['cdbg']: a('s_lshl_b32 s39, s37, 2\ns_lshl_b32 s39, 1, s39\ns_cmp_lt_u32 s37, 8\ns_cselect_b32 s39, s39, 0\ns_add_u32 s90, s90, s37\ns_cmp_eq_u32 s37, 0\ns_addc_u32 s91, s91, 0\ns_cmp_ge_u32 s37, 4\ns_addc_u32 s92, s92, 0\ns_cmp_ge_u32 s37, 7\ns_addc_u32 s93, s93, 0\ns_add_u32 s94, s94, 1')
    a(f's_cmp_ge_u32 s37, {P["thr"]}\ns_cselect_b32 s39, {P["cmask"]}, 0\nv_mov_b32 v6, s39\nds_write_b32 v5, v6 offset:32')
    a(f's_cmp_le_u32 s62, {c1}\ns_cbranch_scc1 L_ck')
    if P['cdbg']:
        for k in range(5): a(f's_atomic_add s{90+k}, s[26:27], {4*k}')
        a('s_waitcnt lgkmcnt(0)')
    a('s_endpgm')

def body(P):
    a = Asm(); HPOL[0] = P['hpol']
    assert P['early'] or P['c0'] >= P['R']
    a('s_cmp_ge_u32 s2, 256\ns_cbranch_scc1 L_end')
    if P['perm'] == 1: a('s_lshr_b32 s3, s2, 5\ns_lshl_b32 s2, s2, 3\ns_or_b32 s2, s2, s3\ns_and_b32 s2, s2, 255')
    if P['perm'] == 2: a('s_lshr_b32 s3, s2, 7\ns_xor_b32 s2, s2, s3')
    a('s_load_dwordx16 s[4:19], s[0:1], 0\ns_load_dwordx8 s[20:27], s[0:1], 64\ns_load_dwordx2 s[28:29], s[0:1], 96')
    a('v_lshrrev_b32 v1, 6, v0\nv_and_b32 v0, 63, v0\nv_readfirstlane_b32 s30, v1')
    a('s_and_b32 s31, s2, 7\ns_lshr_b32 s32, s2, 3')
    if P['bmap'] == 0: a('s_lshr_b32 s33, s32, 2\ns_and_b32 s34, s32, 3')
    else: a('s_and_b32 s33, s32, 7\ns_lshr_b32 s34, s32, 3')
    a('s_lshl_b32 s37, s31, 2\ns_add_u32 s34, s34, s37\ns_lshl_b32 s38, s33, 5\ns_add_u32 s38, s38, s34')
    stamp_init(a, P)
    stamp(a, P, 'entry')
    a(f's_cmp_ge_u32 s30, 8\ns_cbranch_scc1 L_helper')
    streamer(a, P, lambda: (helper(a, P), control(a, P) if P['ctl'] else None))
    a('L_end:\ns_endpgm')
    txt, n = a.text()
    txt = re.sub(r'(s_sleep \d+)', r'\1              ; back-off inside a wait loop', txt)
    return txt, n

def vgprs(P): return max(56 + 4 * P['R'] + 4, 156)

def kernel(P):
    txt, n = body(P)
    nm = P['name']
    txt = txt.replace('L_', f'L{nm[-24:]}_') if P.get('uniq') else txt
    return txt

def final_file(P):
    ref = open(f'cdna_kernels/{NAME}.s.ref').read()
    head = ref[:ref.index('; Override launch')]
    nm = P['name']; vg = vgprs(P)
    return head + f'''; One launch, 256 workgroups (x = id & 7 = kv head, r = id >> 3 = batch row * 4 + key split), 8 streaming waves + 2 helper waves.
; Written with a generator script (register allocation, unrolling and wait-state padding are the script's).
; Hand-offs between workgroups go through d_ws and carry a tag = (word 0 of d_ws at entry) + constant; word 0 is advanced
; at the end of the launch, so that a launch tells its own hand-offs from older contents. Readers poll with sc1 loads.
; Writers use write-through (sc1) stores, except where all 32 workgroups of a kv head have reported the same XCD in this
; launch: then the store may stay in that XCD L2.
; Wave 9 balances memory bandwidth among the workgroups that share an XCD: each posts how many loads it has issued, and one
; that is ahead of the others keeps fewer loads in flight, one that is behind keeps more; one workgroup per kv head also flags
; its progress to the other XCDs, and all hold back a little while some XCD lags. A wave that is ahead of the slowest wave of its
; workgroup holds back too. All of this changes only how many loads are in flight (2 or 3), never a result.
; @launch grid=(256,1,1) block=({block(P)},1,1) lds={LDS_BYTES}
.amdgcn_target "amdgcn-amd-amdhsa--gfx950"
.text
.globl {nm}
.p2align 8
.type {nm},@function
{nm}:
{kernel(P)}
.section .rodata,"a"
.p2align 6
.amdhsa_kernel {nm}
  .amdhsa_next_free_vgpr {vg}
  .amdhsa_next_free_sgpr 102
  .amdhsa_accum_offset {(vg+3)//4*4}
  .amdhsa_group_segment_fixed_size 0
  .amdhsa_kernarg_size 104
  .amdhsa_user_sgpr_count 2
  .amdhsa_user_sgpr_kernarg_segment_ptr 1
  .amdhsa_system_sgpr_workgroup_id_x 1
.end_amdhsa_kernel
'''

if __name__ == '__main__':
    P = dict(DEF)
    out = f'cdna_kernels/{NAME}.s'
    for kv in sys.argv[1:]:
        k, v = kv.split('=', 1)
        if k == 'out': out = v
        else: P[k] = type(DEF[k])(v) if not isinstance(DEF[k], bool) else v == '1'
    open(out, 'w').write(final_file(P))
    print('wrote', out)
```
